```python
import torch

def _softmax(x, axis=-1):
    return torch.softmax(x, dim=axis)
def _gelu(x):
    return torch.nn.functional.gelu(x, approximate="tanh")
def _silu(x):
    return torch.nn.functional.silu(x)
def _sigmoid(x):
    return torch.sigmoid(x)
def _layernorm(x, axis=-1, eps=1e-5):
    m = x.mean(dim=axis, keepdim=True)
    v = x.var(dim=axis, keepdim=True, unbiased=False)
    return (x - m) / torch.sqrt(v + eps)
def _scatter_add(tgt, idx, src, axis=0):
    return tgt.clone().index_add_(axis, idx, src)
def _segment_sum(src, seg, n):
    out = torch.zeros((n,) + src.shape[1:], dtype=src.dtype)
    return out.index_add_(0, seg, src)
def _pad(x, pw):
    flat = tuple(v for pair in reversed(pw) for v in pair)
    return torch.nn.functional.pad(x, flat)

kernel_name = 'gated_mix__ssm_conv_s5__glu_gated_reglu__prompt'

def setup_inputs():

    _w = (lambda a: (lambda t: t.to(torch.bfloat16) if t.is_floating_point() else t)(torch.as_tensor(a)))
    def _A_setup():
        B, S, D = 1, 2048, 576
        P = D
        Lambda_re = -0.5 * (lambda _x: torch.exp(torch.as_tensor(_x)))((lambda *s: torch.randn(*s, dtype=torch.bfloat16) * 0.2)(P))
        Lambda_im = (lambda *s: torch.randn(*s, dtype=torch.bfloat16) * 0.4)(P) * 1.0
        B_re = (lambda *s: torch.randn(*s, dtype=torch.bfloat16) * 0.2)(P, D) * (D ** -0.5)
        B_im = (lambda *s: torch.randn(*s, dtype=torch.bfloat16) * 0.2)(P, D) * (D ** -0.5)
        C_re = (lambda *s: torch.randn(*s, dtype=torch.bfloat16) * 0.2)(D, P) * (P ** -0.5)
        C_im = (lambda *s: torch.randn(*s, dtype=torch.bfloat16) * 0.2)(D, P) * (P ** -0.5)
        log_dt = (lambda *s: torch.randn(*s, dtype=torch.bfloat16) * 0.2)(P) * 0.3 - 2.0
        Dskip = (lambda *s: torch.randn(*s, dtype=torch.bfloat16) * 0.05)(D)
        return {
            "x": _w((lambda *s: torch.randn(*s, dtype=torch.bfloat16) * 0.05)(B, S, D)),
            "Lambda_re": _w(Lambda_re),
            "Lambda_im": _w(Lambda_im),
            "B_re": _w(B_re),
            "B_im": _w(B_im),
            "C_re": _w(C_re),
            "C_im": _w(C_im),
            "log_dt": _w(log_dt),
            "Dskip": _w(Dskip),
        }
    _A_in = _A_setup()

    def _B_setup():
        B, S, D, F = 1, 2048, 576, 4608
        return {
            "x": _w((lambda *s: torch.randn(*s, dtype=torch.bfloat16) * 0.05)(B, S, D)),
            "W_gate": _w((lambda *s: torch.randn(*s, dtype=torch.bfloat16) * 0.8)(D, F) * (2.0 / D) ** 0.5),
            "W_up": _w((lambda *s: torch.randn(*s, dtype=torch.bfloat16) * 0.8)(D, F) * (2.0 / D) ** 0.5),
            "W_down": _w((lambda *s: torch.randn(*s, dtype=torch.bfloat16) * 0.8)(F, D) * (1.0 / F) ** 0.5),
        }
    _B_in = _B_setup()

    return {
        "A_x": _A_in["x"],
        "A_Lambda_re": _A_in["Lambda_re"],
        "A_Lambda_im": _A_in["Lambda_im"],
        "A_B_re": _A_in["B_re"],
        "A_B_im": _A_in["B_im"],
        "A_C_re": _A_in["C_re"],
        "A_C_im": _A_in["C_im"],
        "A_log_dt": _A_in["log_dt"],
        "A_Dskip": _A_in["Dskip"],
        "B_x": _B_in["x"],
        "B_W_gate": _B_in["W_gate"],
        "B_W_up": _B_in["W_up"],
        "B_W_down": _B_in["W_down"],
        "gate_w": _w((lambda *s: torch.randn(*s, dtype=torch.bfloat16) * 0.05)(576) * 16.0),
    }

def reference(A_x, A_Lambda_re, A_Lambda_im, A_B_re, A_B_im, A_C_re, A_C_im, A_log_dt, A_Dskip, B_x, B_W_gate, B_W_up, B_W_down, gate_w):
    def _A_ref(x, Lambda_re, Lambda_im, B_re, B_im, C_re, C_im, log_dt, Dskip):
        Bsz, L, H = x.shape
        Lam = Lambda_re + 1j * Lambda_im
        Bmat = B_re + 1j * B_im
        Cmat = C_re + 1j * C_im
        dt = torch.exp(log_dt)
        Lam_bar = torch.exp(dt * Lam)
        B_bar = ((Lam_bar - 1.0) / Lam)[:, None] * Bmat
        Bu = torch.einsum("bld,pd->blp", x + 0j, B_bar)
        h = torch.zeros_like(Bu[:, 0, :])
        hs = []
        for t in range(L):
            h = Lam_bar[None, :] * h + Bu[:, t, :]
            hs.append(h)
        hseq = torch.stack(hs, 1)
        y = 2.0 * torch.einsum("blp,dp->bld", hseq, Cmat).real + x * Dskip[None, None, :]
        return y

    def _B_ref(x, W_gate, W_up, W_down):
        gate = torch.einsum("bsd,df->bsf", x, W_gate)
        up = torch.einsum("bsd,df->bsf", x, W_up)
        gate = gate * (lambda x, dt: x.to(dt))(gate > 0, gate.dtype)
        h = gate * up
        return torch.einsum("bsf,fd->bsd", h, W_down)

    x = A_x
    g = _sigmoid((x * gate_w).sum(-1, keepdims=True))
    a = _A_ref(x, A_Lambda_re, A_Lambda_im, A_B_re, A_B_im, A_C_re, A_C_im, A_log_dt, A_Dskip)
    b = _B_ref(x, B_W_gate, B_W_up, B_W_down)
    return g * a + (1 - g) * b
```

```python
import re
from collections import deque

TRANS = ("v_exp_f32", "v_log_f32", "v_rcp_f32", "v_rsq_f32", "v_sqrt_f32", "v_sin_f32", "v_cos_f32")
_reg = re.compile(r"^-?\|?([vas])(\d+)\|?$")
_rng = re.compile(r"^-?\|?([vas])\[(\d+):(\d+)\]\|?$")


def regs_of(tok):
    tok = tok.strip()
    m = _reg.match(tok)
    if m:
        return [m.group(1) + m.group(2)]
    m = _rng.match(tok)
    if m:
        return [m.group(1) + str(i) for i in range(int(m.group(2)), int(m.group(3)) + 1)]
    if tok in ("vcc", "m0", "exec", "scc"):
        return [tok]
    return []


class I:
    __slots__ = ("txt", "op", "kind", "dst", "src", "tag", "srcC", "cexact", "wide", "args", "note")

    def __init__(self, txt, tag=None, note=None):
        self.txt = txt
        self.tag = tag
        self.note = note
        self.args = None
        self.srcC = []
        self.cexact = None
        self.wide = False
        t = txt.strip()
        if t.endswith(":"):
            self.op = "label"; self.kind = "label"; self.dst = []; self.src = []
            return
        parts = t.split(None, 1)
        op = parts[0]
        self.op = op
        rest = parts[1] if len(parts) > 1 else ""
        toks = []
        for p in rest.split(","):
            toks += [p.strip()]
        if toks:
            last = toks[-1].split()
            toks = toks[:-1] + ([last[0]] if last else [])
            mods = last[1:]
        else:
            mods = []
        R = [regs_of(x) for x in toks]
        flat = lambda l: [r for x in l for r in x]
        dst, src = [], []
        if op.startswith("v_mfma"):
            kind = "mfma"; dst = R[0]; src = flat(R[1:3]); self.srcC = R[3]; src = src + R[3]
            self.cexact = (toks[0] == toks[3])
        elif op.startswith("ds_read"):
            kind = "ds_rd"; dst = R[0]; src = flat(R[1:])
        elif op.startswith("ds_write"):
            kind = "ds_wr"; src = flat(R)
        elif op.startswith("buffer_load") and "lds" in mods:
            kind = "dma"; src = flat(R) + ["m0"]
        elif op.startswith("buffer_load") or op.startswith("global_load"):
            kind = "vm_ld"; dst = R[0]; src = flat(R[1:])
        elif op.startswith("buffer_store"):
            kind = "vm_st"; src = flat(R); self.wide = op.endswith("x4") or op.endswith("x3")
            self.args = R[0]
        elif op.startswith("s_load"):
            kind = "smem"; dst = R[0]; src = flat(R[1:])
        elif op == "s_waitcnt":
            kind = "wait"
        elif op == "s_nop":
            kind = "nop"; self.args = int(toks[0])
        elif op == "s_barrier":
            kind = "barrier"
        elif op.startswith("s_cbranch") or op == "s_branch":
            kind = "branch"; src = ["scc"] if "scc" in op else (["vcc"] if "vcc" in op else [])
        elif op.startswith("s_cmp"):
            kind = "salu"; dst = ["scc"]; src = flat(R)
        elif op in ("s_setprio", "s_sleep", "s_endpgm"):
            kind = "salu"
        elif op.startswith("s_"):
            kind = "salu"; dst = list(R[0]); src = flat(R[1:])
            if op.startswith(("s_add", "s_sub", "s_and", "s_or", "s_xor", "s_lshl", "s_lshr", "s_not", "s_andn2", "s_ashr", "s_min", "s_max")):
                dst = dst + ["scc"]
            if op.startswith("s_cselect") or op.startswith("s_addc"):
                src = src + ["scc"]
        elif op.startswith("v_cmp"):
            kind = "valu"; dst = R[0]; src = flat(R[1:])
        elif op.startswith("v_"):
            kind = "valu"; dst = list(R[0]); src = flat(R[1:])
            if op.startswith("v_fmac") or op.startswith("v_permlane"):
                src = src + dst
            if op.startswith("v_cndmask") and len(toks) == 3:
                src = src + ["vcc"]
        else:
            raise ValueError("unknown instruction: " + txt)
        self.kind = kind; self.dst = dst; self.src = src

    def __repr__(self):
        return self.txt


class WaitRegs(I):
    def __init__(self, regs):
        self.txt = "; waitregs"; self.op = "waitregs"; self.kind = "pwait"; self.dst = []; self.src = list(regs)
        self.tag = None; self.note = None; self.args = None; self.srcC = []; self.cexact = None; self.wide = False


class WaitTag(I):
    def __init__(self, *tags):
        self.txt = "; waittag"; self.op = "waittag"; self.kind = "pwait"; self.dst = []; self.src = []
        self.tag = None; self.note = None; self.args = set(tags); self.srcC = []; self.cexact = None; self.wide = False


def expand(x):
    if isinstance(x, str):
        return [I(x)]
    if isinstance(x, I):
        return [x]
    out = []
    for y in x:
        out += expand(y)
    return out


class Stream:
    def __init__(self, name, prio):
        self.name = name; self.prio = prio; self.q = deque()

    def add(self, ins, earliest=0, deadline=None):
        self.q.append((expand(ins), earliest, deadline))

    def extend(self, lst, earliest=0, deadline=None):
        for x in lst:
            self.add(x, earliest, deadline)


class Slot:
    __slots__ = ("mfma", "pre", "post")

    def __init__(self, mfma, pre=None, post=None):
        self.mfma = I(mfma) if isinstance(mfma, str) else mfma
        self.pre = expand(pre or []); self.post = expand(post or [])


def schedule(slots, streams, budget=2):
    out = []
    streams = sorted(streams, key=lambda s: s.prio)
    stats = {"over": 0, "forced": 0, "idle": 0}
    n = len(slots)
    for k, sl in enumerate(slots):
        for s in streams:
            last = -1
            for idx, (g, e, d) in enumerate(s.q):
                if d is not None and d <= k:
                    last = idx
                if idx > 400: break
            for _ in range(last + 1):
                g, e, d = s.q.popleft()
                assert e <= k, f"stream {s.name}: deadline {d} before earliest {e}"
                out += g; stats["forced"] += len(g)
        out += sl.pre
        out.append(sl.mfma)
        out += sl.post
        used = len(sl.post) + (len(slots[k + 1].pre) if k + 1 < n else 0)
        if used > budget: stats["over"] += used - budget
        while used < budget:
            pick = None
            for s in streams:
                if s.q and s.q[0][1] <= k:
                    pick = s; break
            if pick is None:
                stats["idle"] += budget - used
                break
            g, e, d = pick.q.popleft()
            out += g; used += len(g)
            if used > budget: stats["over"] += used - budget
    rest = []
    for s in streams:
        while s.q:
            g, e, d = s.q.popleft()
            rest += g
    return out, rest, stats


VM = ("vm_ld", "vm_st", "dma")
LG = ("ds_rd", "ds_wr")


def insert_waits(prog):
    out = []
    vm = []
    lg = []
    smem_pending = set()
    nwait = 0

    def need(lst, pred):
        idx = -1
        for i, e in enumerate(lst):
            if pred(e): idx = i
        if idx < 0: return None
        return len(lst) - 1 - idx

    def emit_wait(v, l):
        nonlocal nwait
        parts = []
        if v is not None:
            assert v <= 63
            parts.append(f"vmcnt({v})"); del vm[:len(vm) - v]
        if l is not None:
            assert l <= 15, "lgkmcnt overflow"
            parts.append(f"lgkmcnt({l})"); del lg[:len(lg) - l]
        out.append(I("s_waitcnt " + " ".join(parts))); nwait += 1

    for ins in prog:
        if ins.kind == "label" or ins.kind == "branch":
            out.append(ins); continue
        if ins.kind == "wait":
            m = re.search(r"vmcnt\((\d+)\)", ins.txt)
            if m:
                v = int(m.group(1))
                if len(vm) > v: del vm[:len(vm) - v]
            m = re.search(r"lgkmcnt\((\d+)\)", ins.txt)
            if m:
                l = int(m.group(1))
                if len(lg) > l: del lg[:len(lg) - l]
                if l == 0: smem_pending.clear()
            out.append(ins); continue
        if ins.kind == "pwait" and ins.op == "waittag":
            tags = ins.args
            v = need(vm, lambda e: e[1] in tags); l = need(lg, lambda e: e[1] in tags)
            if v is not None or l is not None: emit_wait(v, l)
            continue
        touched = set(ins.src) | set(ins.dst)
        touched.discard("scc")
        if smem_pending & touched:
            raise RuntimeError("SMEM result used before lgkmcnt(0): " + ins.txt)
        v = need(vm, lambda e: e[0] & touched); l = need(lg, lambda e: e[0] & touched)
        if v is not None or l is not None: emit_wait(v, l)
        if ins.kind == "pwait":
            continue
        out.append(ins)
        if ins.kind in VM:
            vm.append((set(ins.dst), ins.tag))
            if len(vm) > 63:
                pass
        elif ins.kind in LG:
            if len(lg) >= 15:
                out.pop(); emit_wait(None, 14); out.append(ins)
            lg.append((set(ins.dst), ins.tag))
        elif ins.kind == "smem":
            smem_pending |= set(ins.dst)
    return out, nwait


def is_v(r): return r[0] in "va" and r[1:].isdigit()


def pad_hazards(prog):
    out = []
    t = 0
    w_valu = {}; w_mfma = {}; w_trans = {}; c_mfma = {}; w_valu_s = {}; w_salu_m0 = -99; st_wide = {}
    mfma_dst = {}
    nn = 0
    for ins in prog:
        if ins.kind == "label":
            out.append(ins); continue
        need = 0

        def req(prev, dist):
            nonlocal need
            if prev is not None:
                need = max(need, dist - (t - prev - 1))
        k = ins.kind
        isdpp = "dpp" in ins.txt or "row_" in ins.txt
        if k == "mfma":
            for r in ins.src:
                req(w_valu.get(r), 2)
            ab = ins.src[:len(ins.src) - len(ins.srcC)]
            for r in ab: req(w_mfma.get(r), 8)
            for r in ins.srcC:
                if r in w_mfma:
                    if mfma_dst.get(r) != tuple(ins.srcC): req(w_mfma[r], 6)
            for r in ins.dst:
                if r in w_mfma and mfma_dst.get(r) != tuple(ins.dst): req(w_mfma[r], 6)
        elif k == "valu":
            for r in ins.src + ins.dst:
                req(w_mfma.get(r), 8)
            for r in ins.dst:
                req(c_mfma.get(r), 3); req(st_wide.get(r), 2)
            if ins.op not in TRANS:
                for r in ins.src: req(w_trans.get(r), 1)
            for r in ins.src:
                if r[0] == "s" or r == "vcc": req(w_valu_s.get(r), 2)
            if ins.op.startswith("v_readfirstlane") or ins.op.startswith("v_readlane"):
                for r in ins.src: req(w_valu.get(r), 1)
            if isdpp or ins.op.startswith("v_permlane"):
                for r in ins.src: req(w_valu.get(r), 2)
        elif k in ("vm_ld", "vm_st", "dma", "ds_rd", "ds_wr"):
            for r in ins.src + ins.dst:
                req(w_mfma.get(r), 8)
            for r in ins.src:
                if r[0] == "s": req(w_valu_s.get(r), 5)
            for r in ins.dst: req(st_wide.get(r), 1)
            if k == "dma": req(w_salu_m0, 1)
        elif k in ("salu", "branch"):
            for r in ins.src:
                req(w_valu_s.get(r), 4)
        if need > 0:
            nn += need
            while need > 0:
                x = min(need, 16)
                out.append(I(f"s_nop {x - 1}")); t += x; need -= x
        out.append(ins)
        if k == "mfma":
            for r in ins.dst:
                w_mfma[r] = t; mfma_dst[r] = tuple(ins.dst); w_valu.pop(r, None)
            for r in ins.srcC: c_mfma[r] = t
        elif k == "valu":
            for r in ins.dst:
                if is_v(r):
                    w_valu[r] = t; w_mfma.pop(r, None)
                    if ins.op in TRANS: w_trans[r] = t
                    else: w_trans.pop(r, None)
                else:
                    w_valu_s[r] = t
        elif k == "salu":
            if "m0" in ins.dst: w_salu_m0 = t
            for r in ins.dst: w_valu_s.pop(r, None)
        elif k == "vm_st" and ins.wide:
            for r in ins.args: st_wide[r] = t
        elif k in ("vm_ld", "ds_rd"):
            for r in ins.dst:
                w_valu.pop(r, None); w_mfma.pop(r, None)
        t += (ins.args + 1) if k == "nop" else 1
    return out, nn


def render(prog):
    return "\n".join(("" if i.kind == "label" else "  ") + i.txt for i in prog)
```

```python
import sys
from fw import *

NAME = "gated_mix__ssm_conv_s5__glu_gated_reglu__prompt"
LOG2E = 0x3fb8aa3b
INV2PI = 0x3e22f983
OOB = 0x7ffffff0

SLOT = 24576; NSLOT = 6
MISC = SLOT * NSLOT
PRIV = MISC
WTOT = MISC + 12288
TAB = WTOT + 1536
LDS_BYTES = TAB + 2304

WS_P = 0
P_BYTES = 16 * 16 * 4 * 36 * 1024
WS_S = P_BYTES
WS_G = WS_S + 16 * 16 * 384
WS_END = WS_G + 8192

ACC = [0, 64]
XB = 128
LG = 176
P1 = 184
P2 = 196
D1 = 203; D2 = 209
SF = 215
A4 = 217; A32 = 219; A128 = 221; PW = 223
LANE = 225
VST = 226
VCH = 227
T = 228
VE = T + 16
VP = T + 18
VT = T + 19
TS = T + 20
TA = T + 24
AX = 0; AF = 144; AH = 176
L = f"v{LANE}"

S_X, S_W1, S_WD, S_B, S_C, S_WS, S_S, S_DBG, S_P = 4, 8, 12, 16, 20, 24, 28, 32, 36
sW, sTILE, sSLICE, sC0, sOA, sOB, sW6, sW3, sPST = 40, 41, 42, 43, 44, 45, 46, 47, 48
sT0, sT1, sT2 = 49, 50, 51
sC2, sFULL, sHALF, sT3 = 52, 53, 54, 55
sMASK = 56
sM1, sM2, sM3 = 58, 59, 60
sWB0 = 61
sW1F, sW1H, sWD2, sWD2B, sWD1, sC1, sXO = 64, 65, 66, 67, 68, 69, 70


def xfrag(ks, n): return f"a[{AX + 8*ks + 4*n}:{AX + 8*ks + 4*n + 3}]"
def afrag(u): return AF + 4 * (u % 8)
def vr(b, n=4): return f"v[{b}:{b+n-1}]" if n > 1 else f"v{b}"
def ar(b, n=4): return f"a[{b}:{b+n-1}]"
def sr(b): return f"s[{b}:{b+3}]"
def xb(b, mat, n): return XB + ((b * 2 + mat) * 2 + n) * 4
def srd(base, lo, hi, size):
    return [f"s_mov_b32 s{base}, {lo}", f"s_mov_b32 s{base+1}, {hi}", f"s_mov_b32 s{base+2}, {size}", f"s_mov_b32 s{base+3}, 0x20000"]
def mf(d, a, b, c): return f"v_mfma_f32_16x16x32_bf16 {d}, {a}, {b}, {c}"
def slot_base(k): return (k % NSLOT) * SLOT
def setof(k): return (k % NSLOT) // 2
def slot_rel(k): return (k % 2) * SLOT


class Stage:
    def __init__(self, fmt, units, pieces, wq, pre):
        self.fmt, self.units, self.pieces, self.wq, self.pre = fmt, units, pieces, wq, pre


def comp(d, j): return [f"v_subrev_u32 v{d}, {1024*(j%4)}, v{d}"] if j % 4 else []

def voff_B(dst, t):
    o = []
    for j in range(6):
        d = dst + j
        o += [f"v_lshrrev_b32 v{d}, 4, {L}", f"v_add_u32 v{d}, {4*(j&1)}, v{d}", f"v_and_b32 v{t}, 7, {L}", f"v_xor_b32 v{d}, v{d}, v{t}",
              f"v_lshlrev_b32 v{d}, 4, v{d}", f"v_lshrrev_b32 v{t}, 3, {L}", f"v_add_u32 v{t}, {8*j}, v{t}",
              f"v_mul_u32_u24 v{t}, 1152, v{t}", f"v_add_u32 v{d}, v{d}, v{t}"] + comp(d, j)
    return o

def voff_W1full(dst, t):
    o = []
    for j in range(6):
        d = dst + j
        o += [f"v_bfe_u32 v{d}, {L}, 4, 1", f"v_lshlrev_b32 v{d}, 1, v{d}", f"v_and_b32 v{t}, 7, {L}", f"v_xor_b32 v{d}, v{d}, v{t}"]
        if j & 1: o += [f"v_xor_b32 v{d}, 4, v{d}"]
        o += [f"v_lshlrev_b32 v{d}, 4, v{d}", f"v_lshrrev_b32 v{t}, 3, {L}", f"v_add_u32 v{t}, {8*j}, v{t}",
              f"v_mul_u32_u24 v{t}, 9216, v{t}", f"v_add_u32 v{d}, v{d}, v{t}"] + comp(d, j)
    return o

def voff_W1half(dst, t):
    o = []
    for j in range(6):
        d = dst + j
        o += [f"v_lshrrev_b32 v{d}, 5, {L}", f"v_lshlrev_b32 v{d}, 1, v{d}", f"v_and_b32 v{t}, 3, {L}", f"v_xor_b32 v{d}, v{d}, v{t}",
              f"v_lshlrev_b32 v{d}, 4, v{d}", f"v_lshrrev_b32 v{t}, 2, {L}", f"v_add_u32 v{t}, {16*j}, v{t}",
              f"v_mul_u32_u24 v{t}, 9216, v{t}", f"v_add_u32 v{d}, v{d}, v{t}"] + comp(d, j)
    return o

def voff_Wd(dst, t):
    o = []
    for j in range(6):
        d = dst + j
        o += [f"v_lshrrev_b32 v{d}, 4, {L}", f"v_lshlrev_b32 v{d}, 1, v{d}", f"v_and_b32 v{t}, 7, {L}", f"v_xor_b32 v{d}, v{d}, v{t}",
              f"v_lshlrev_b32 v{d}, 4, v{d}", f"v_lshrrev_b32 v{t}, 3, {L}", f"v_add_u32 v{t}, {8*j}, v{t}",
              f"v_mul_u32_u24 v{t}, 1152, v{t}", f"v_add_u32 v{d}, v{d}, v{t}"] + comp(d, j)
    return o

def voff_C(dst, t):
    o = []
    for j in range(6):
        d = dst + j
        o += [f"v_add_u32 v{t}, {64*j}, {L}", f"v_mul_u32_u24 v{t+1}, 10923, v{t}", f"v_lshrrev_b32 v{t+1}, 16, v{t+1}",
              f"v_mul_u32_u24 v{d}, 6, v{t+1}", f"v_sub_u32 v{d}, v{t}, v{d}",
              f"v_bfe_u32 v{t}, v{t+1}, 3, 1", f"v_xor_b32 v{d}, v{d}, v{t}", f"v_lshlrev_b32 v{d}, 4, v{d}",
              f"v_mul_u32_u24 v{t+1}, 1152, v{t+1}", f"v_add_u32 v{d}, v{d}, v{t+1}"] + comp(d, j)
    return o

def base_T128(dst, qrows, t):
    o = [f"v_lshrrev_b32 v{t}, 4, {L}", f"v_mul_u32_u24 v{t}, {qrows}, v{t}", f"v_bfe_u32 v{t+1}, {L}, 2, 2", f"v_add_u32 v{t}, v{t}, v{t+1}",
         f"v_lshlrev_b32 v{t}, 7, v{t}", f"v_and_b32 v{t+1}, 3, {L}", f"v_lshlrev_b32 v{t+1}, 3, v{t+1}", f"v_add_u32 v{t}, v{t}, v{t+1}",
         f"v_bfe_u32 v{t+1}, {L}, 3, 2"]
    for mt in range(4):
        d = dst + mt
        o += [f"v_xor_b32 v{d}, {mt}, v{t+1}", f"v_lshlrev_b32 v{d}, 5, v{d}", f"v_add_u32 v{d}, v{d}, v{t}",
              f"v_add_u32 v{d+4}, 49152, v{d}", f"v_add_u32 v{d+8}, {2*49152}, v{d}"]
    return o

def base_T64(dst, t):
    o = [f"v_lshrrev_b32 v{t}, 4, {L}", f"v_lshlrev_b32 v{t}, 3, v{t}", f"v_bfe_u32 v{t+1}, {L}, 2, 2", f"v_add_u32 v{t}, v{t}, v{t+1}",
         f"v_lshlrev_b32 v{t}, 6, v{t}", f"v_and_b32 v{t+1}, 3, {L}", f"v_lshlrev_b32 v{t+1}, 3, v{t+1}", f"v_add_u32 v{t}, v{t}, v{t+1}",
         f"v_bfe_u32 v{t+1}, {L}, 4, 1"]
    for mt in range(2):
        d = dst + mt
        o += [f"v_xor_b32 v{d}, {mt}, v{t+1}", f"v_lshlrev_b32 v{d}, 5, v{d}", f"v_add_u32 v{d}, v{d}, v{t}",
              f"v_add_u32 v{d+2}, 49152, v{d}", f"v_add_u32 v{d+4}, {2*49152}, v{d}"]
    return o

def base_R(dst, t):
    o = [f"v_and_b32 v{t}, 15, {L}", f"v_lshrrev_b32 v{t+1}, 1, v{t}", f"v_lshlrev_b32 v{t}, 7, v{t}"]
    for h in range(2):
        d = dst + h
        o += [f"v_lshrrev_b32 v{d}, 4, {L}", f"v_add_u32 v{d}, {4*h}, v{d}", f"v_xor_b32 v{d}, v{d}, v{t+1}", f"v_lshlrev_b32 v{d}, 4, v{d}",
              f"v_add_u32 v{d}, v{d}, v{t}", f"v_add_u32 v{d+2}, 49152, v{d}", f"v_add_u32 v{d+4}, {2*49152}, v{d}"]
    return o

def base_C(dst, t):
    return [f"v_and_b32 v{t}, 15, {L}", f"v_mul_u32_u24 v{t+1}, 96, v{t}", f"v_lshrrev_b32 v{t}, 3, v{t}", f"v_lshrrev_b32 v{t+2}, 5, {L}",
            f"v_xor_b32 v{t}, v{t}, v{t+2}", f"v_lshlrev_b32 v{t}, 4, v{t}", f"v_add_u32 v{t}, v{t}, v{t+1}",
            f"v_bfe_u32 v{t+1}, {L}, 4, 1", f"v_lshlrev_b32 v{t+1}, 3, v{t+1}", f"v_add_u32 v{dst}, v{t}, v{t+1}",
            f"v_add_u32 v{dst+1}, 49152, v{dst}", f"v_add_u32 v{dst+2}, {2*49152}, v{dst}"]


def cmul_acc(dre, dim, are, aim, sre, sim):
    return [f"v_fmac_f32 v{dre}, v{are}, v{sre}", f"v_fmac_f32 v{dim}, v{are}, v{sim}",
            f"v_fma_f32 v{dre}, -v{aim}, v{sim}, v{dre}", f"v_fmac_f32 v{dim}, v{aim}, v{sre}"]


def build_stages():
    stages = []
    tr = "ds_read_b64_tr_b16"
    for st in range(5):
        units = []
        for ksl in range(4 if st < 4 else 2):
            ks = 4 * st + ksl
            line, half = ksl >> 1, ksl & 1
            for b in range(3):
                for mat in range(2):
                    off = (2 * mat + line) * 6144 + b * 2048
                    acc = [xb(b, mat, n) for n in range(2)]
                    units.append(dict(reads=[("ds_read_b128", 4, P2 + half, off, "S2")],
                                      mf=[(vr(acc[n]), xfrag(ks, n), None, vr(acc[n]) if ks else "0") for n in range(2)], swap=True))
            units.append(dict(reads=[("ds_read_b128", 4, P2 + 6, ks * 64, "abs")],
                              mf=[(vr(LG + 4 * n), xfrag(ks, n), None, vr(LG + 4 * n) if ks else "0") for n in range(2)], swap=True))
        pre = [] if st == 0 else [f"s_add_u32 s{sOA}, s{sOA}, 256"]
        stages.append(Stage("B", units, [(D1 + j, S_B, sOA) for j in range(6)], sW6, pre))
    for c in range(4):
        for st in range(6):
            units = []
            for ksl in range(3):
                ks = 3 * st + ksl
                for mat in range(2):
                    for mt in range(4):
                        acc = ACC[c & 1] + (mat * 4 + mt) * 8
                        off = mat * 12288 + ksl * 4096
                        units.append(dict(reads=[(tr, 2, P1 + mt, off, "S4"), (tr, 2, P1 + mt, off + 512, "S4")],
                                          mf=[(vr(acc + 4 * n), None, xfrag(ks, n), vr(acc + 4 * n) if ks else "0") for n in range(2)], swap=False))
            pre = [f"s_add_u32 s{sOA}, s{sW1F}, {128*c}"] if st == 0 else [f"s_add_u32 s{sOA}, s{sOA}, {96*9216}"]
            stages.append(Stage("W1", units, [(D2 + j, S_W1, sOA) for j in range(6)], sW6, pre))
    for st in range(3):
        units = []
        for ksl in range(6):
            ks = 6 * st + ksl
            for mat in range(2):
                for mt in range(2):
                    acc = ACC[0] + (mat * 4 + mt) * 8
                    off = mat * 12288 + ksl * 2048
                    units.append(dict(reads=[(tr, 2, P2 + mt, off, "S2"), (tr, 2, P2 + mt, off + 256, "S2")],
                                      mf=[(vr(acc + 4 * n), None, xfrag(ks, n), vr(acc + 4 * n) if ks else "0") for n in range(2)], swap=False))
        pre = [f"s_mov_b32 s{sOA}, s{sW1H}"] if st == 0 else [f"s_add_u32 s{sOA}, s{sOA}, {192*9216}"]
        stages.append(Stage("W1h", units, [(D1 + j, S_W1, sOA) for j in range(6)], sW6, pre))
    hfrag = lambda K, n: ar(AH + 8 * K + 4 * n)
    sfrag = lambda b, n: vr(xb(b, 0, n))
    def wd_units(Ks, lines, buf, koff):
        units = []
        for K in Ks:
            for line in range(lines):
                for mt in range(4):
                    acc = buf + (line * 4 + mt) * 8
                    off = line * 12288 + (K - koff) * 4096
                    units.append(dict(reads=[(tr, 2, P1 + mt, off, "S4"), (tr, 2, P1 + mt, off + 2048, "S4")],
                                      mf=[(vr(acc + 4 * n), None, hfrag(K, n), vr(acc + 4 * n) if K else "0") for n in range(2)], swap=False))
        return units
    def c_units(nm, buf, imoff):
        units = []
        for b in range(3):
            for m in range(nm):
                acc = buf + m * 8
                off = m * 1536 + 32 * b
                units.append(dict(reads=[("ds_read_b64", 2, P2 + 2, off, "S1"), ("ds_read_b64", 2, P2 + 2, off + imoff, "S1")],
                                  mf=[(vr(acc + 4 * n), None, sfrag(b, n), vr(acc + 4 * n)) for n in range(2)], swap=False))
        return units
    for p in range(5):
        buf = ACC[(p + 1) & 1]
        col = 256 * p
        if p < 4:
            for st in range(3):
                units = wd_units(range(3 * st, 3 * st + 3), 2, buf, 3 * st)
                if st < 2:
                    pre = [f"s_add_u32 s{sOA}, s{sWD2}, {col + st*96*1152}"]
                    pcs = [(D2 + j, S_WD, sOA) for j in range(6)]
                else:
                    pre = [f"s_add_u32 s{sOA}, s{sWD2}, {col + 2*96*1152}", f"s_add_u32 s{sOB}, s{sWD2B}, {col}"]
                    pcs = [(D2 + j, S_WD, sOA if j < 2 else sOB) for j in range(6)]
                stages.append(Stage("Wd", units, pcs, sW6, pre))
            stages.append(Stage("C", c_units(8, buf, 12288), [(D1 + j, S_C, sOA) for j in range(6)], sW6, [f"s_add_u32 s{sOA}, s{sC2}, {128*p*1152}"]))
        else:
            stages.append(Stage("Wd1a", wd_units(range(6), 1, buf, 0), [(D2 + j, S_WD, sOA) for j in range(6)], sW6, [f"s_add_u32 s{sOA}, s{sWD1}, {col}"]))
            stages.append(Stage("Wd1b", wd_units(range(6, 9), 1, buf, 6), [(D2 + j, S_WD, sWB0 + j) for j in range(3)], sW3, []))
            stages.append(Stage("C1", c_units(4, buf, 6144), [(D1 + j, S_C, sOA) for j in range(3)], sW3, [f"s_add_u32 s{sOA}, s{sC1}, {128*4*1152}"]))
    return stages


def build_main(opt):
    pro = []
    A = lambda *x: pro.extend(expand(list(x)))
    stages = build_stages()
    NST = len(stages)
    A("s_cmp_ge_u32 s2, 256", "s_cbranch_scc1 L_main_end")
    A("s_load_dwordx16 s[64:79], s[0:1], 0", "s_load_dwordx16 s[80:95], s[0:1], 64", "s_load_dwordx2 s[96:97], s[0:1], 128")
    A(f"v_and_b32 {L}, 63, v0", "v_lshrrev_b32 v1, 6, v0")
    A(f"s_and_b32 s{sT0}, s2, 7", f"s_lshr_b32 s{sT1}, s2, 3")
    A(f"v_readfirstlane_b32 s{sW}, v1")
    A(f"s_lshl_b32 s{sSLICE}, s{sT0}, 1", f"s_and_b32 s{sT0}, s{sT1}, 1", f"s_add_u32 s{sSLICE}, s{sSLICE}, s{sT0}", f"s_lshr_b32 s{sTILE}, s{sT1}, 1")
    A(f"s_mul_i32 s{sC0}, s{sSLICE}, 9", f"s_lshr_b32 s{sC0}, s{sC0}, 1", f"s_lshl_b32 s{sC0}, s{sC0}, 3")
    A(f"v_lshlrev_b32 v{VST}, 4, {L}", f"v_min_u32 v8, 47, {L}", f"v_lshlrev_b32 v{VCH}, 3, v8")
    A(f"s_mul_i32 s{sW6}, s{sW}, 6144", f"s_mul_i32 s{sW3}, s{sW}, 3072")
    A("s_waitcnt lgkmcnt(0)")
    A(srd(S_X, "s64", "s65", 2359296))
    A(f"s_cmp_lt_u32 s{sW}, 2")
    A(f"s_cselect_b32 s{S_W1}, s84, s86", f"s_cselect_b32 s{S_W1+1}, s85, s87", f"s_mov_b32 s{S_W1+2}, 5308416", f"s_mov_b32 s{S_W1+3}, 0x20000")
    A(f"s_cselect_b32 s{S_B}, s70, s72", f"s_cselect_b32 s{S_B+1}, s71, s73", f"s_mov_b32 s{S_B+2}, 663552", f"s_mov_b32 s{S_B+3}, 0x20000")
    A(f"s_cselect_b32 s{S_C}, s74, s76", f"s_cselect_b32 s{S_C+1}, s75, s77", f"s_mov_b32 s{S_C+2}, 663552", f"s_mov_b32 s{S_C+3}, 0x20000")
    A(srd(S_WD, "s88", "s89", 5308416))
    A(srd(S_WS, "s96", "s97", WS_END))
    A(f"s_mul_i32 s{sT0}, s{sSLICE}, 6144", f"s_add_u32 s{sT0}, s{sT0}, {WS_S}", f"s_add_u32 s{S_S}, s96, s{sT0}", f"s_addc_u32 s{S_S+1}, s97, 0",
      f"s_mov_b32 s{S_S+2}, 6144", f"s_mov_b32 s{S_S+3}, 0x20000")
    A(srd(S_DBG, "s94", "s95", 256))
    A(f"v_add_u32 v9, s{sC0}, v8", "v_lshlrev_b32 v9, 1, v9")
    PLRE, PLIM, PLDT = 20, 21, 22
    A(srd(S_P, "s66", "s67", 1152)); A(f"buffer_load_ushort v{PLRE}, v9, {sr(S_P)}, 0 offen")
    A(srd(56, "s68", "s69", 1152)); A(f"buffer_load_ushort v{PLIM}, v9, s[56:59], 0 offen")
    A(srd(60, "s78", "s79", 1152)); A(f"buffer_load_ushort v{PLDT}, v9, s[60:63], 0 offen")
    A(srd(S_P, "s90", "s91", 1152))
    A(f"s_add_u32 m0, s{sW3}, {PRIV}")
    A(I(f"buffer_load_dwordx4 v{VST}, {sr(S_P)}, 0 offen lds", tag="gw"))
    A(I(f"buffer_load_dwordx4 v{VST}, {sr(S_P)}, 0 offen offset:1024 lds", tag="gw"))
    A(voff_B(D1, 10))
    A(f"s_and_b32 s{sT3}, s{sW}, 1")
    A(f"s_mul_i32 s{sOA}, s{sC0}, 1152", f"s_lshl_b32 s{sT0}, s{sT3}, 7", f"s_add_u32 s{sOA}, s{sOA}, s{sT0}")
    A(f"s_lshl_b32 s{sT0}, s{sTILE}, 7", f"s_lshl_b32 s{sT1}, s{sW}, 5", f"s_add_u32 s{sT0}, s{sT0}, s{sT1}", f"s_mul_i32 s{sXO}, s{sT0}, 1152")
    A(f"v_and_b32 v2, 15, {L}", f"v_lshrrev_b32 v3, 4, {L}", "v_mul_u32_u24 v10, 1152, v2", "v_lshlrev_b32 v11, 4, v3", "v_add_u32 v10, v10, v11", "v_add_u32 v11, 18432, v10")

    def dma_items(k):
        st = stages[k]
        items = [[x] for x in st.pre] + [[f"s_add_u32 m0, s{st.wq}, {slot_base(k)}"]]
        for j, (v, s, so) in enumerate(st.pieces):
            if j == 4: items.append([f"s_add_u32 m0, s{st.wq}, {slot_base(k) + 4096}"])
            imm = 1024 * (j % 4)
            items.append([I(f"buffer_load_dwordx4 v{v}, {sr(s)}, s{so} offen" + (f" offset:{imm}" if imm else "") + " lds", tag=f"st{k}")])
        return items
    def xload(ks):
        return [f"buffer_load_dwordx4 {xfrag(ks, n)}, v{10+n}, {sr(S_X)}, s{sXO} offen offset:{64*ks}" for n in range(2)]
    for k in range(5):
        for it in dma_items(k): A(it)
        for ks in range(4 * k, min(4 * k + 4, 18)): A(xload(ks))
        if k == 3: A("s_waitcnt vmcnt(40)")

    A(f"s_mul_i32 s{sT0}, s{sSLICE}, 576", f"s_and_b32 s{sT1}, s{sSLICE}, 1", f"s_lshl_b32 s{sT1}, s{sT1}, 6", f"s_add_u32 s{sFULL}, s{sT0}, s{sT1}")
    A(f"s_cmp_eq_u32 s{sT1}, 0", f"s_cselect_b32 s{sT1}, 512, 0", f"s_add_u32 s{sHALF}, s{sT0}, s{sT1}")
    A(f"s_mul_i32 s{sT1}, s{sT3}, {48*9216}", f"s_add_u32 s{sW1F}, s{sFULL}, s{sT1}", f"s_mul_i32 s{sT1}, s{sT3}, {96*9216}", f"s_add_u32 s{sW1H}, s{sHALF}, s{sT1}")
    A(f"s_mul_i32 s{sFULL}, s{sFULL}, 576", f"s_mul_i32 s{sHALF}, s{sHALF}, 576")
    A(f"s_mul_i32 s{sT1}, s{sT3}, {48*1152}", f"s_lshr_b32 s{sT2}, s{sW}, 1", f"s_lshl_b32 s{sT2}, s{sT2}, 7")
    A(f"s_add_u32 s{sWD2}, s{sFULL}, s{sT1}", f"s_add_u32 s{sWD2}, s{sWD2}, s{sT2}")
    A(f"s_add_u32 s{sWD2B}, s{sWD2}, {192*1152}", f"s_sub_u32 s{sT1}, s{sHALF}, {16*1152}", f"s_add_u32 s{sT1}, s{sT1}, s{sT2}",
      f"s_cmp_eq_u32 s{sT3}, 0", f"s_cselect_b32 s{sWD2B}, s{sWD2B}, s{sT1}")
    A(f"s_mul_i32 s{sT1}, s{sW}, {48*1152}", f"s_add_u32 s{sWD1}, s{sFULL}, s{sT1}")
    for j in range(3):
        A(f"s_mul_i32 s{sT0}, s{sW}, 24", f"s_add_u32 s{sT1}, s{sT0}, {8*j}",
          f"s_add_u32 s{sT2}, s{sT0}, 192", f"s_mul_i32 s{sT2}, s{sT2}, 1152", f"s_add_u32 s{sT2}, s{sT2}, s{sFULL}",
          f"s_sub_u32 s{sT0}, s{sT0}, 64", f"s_mul_i32 s{sT0}, s{sT0}, 1152", f"s_add_u32 s{sT0}, s{sT0}, s{sHALF}",
          f"s_cmp_lt_u32 s{sT1}, 64", f"s_cselect_b32 s{sWB0+j}, s{sT2}, s{sT0}", f"s_add_u32 s{sWB0+j}, s{sWB0+j}, 1024")
    A(f"s_mul_i32 s{sT1}, s{sT3}, {64*1152}", f"s_lshl_b32 s{sT2}, s{sC0}, 1", f"s_add_u32 s{sC2}, s{sT1}, s{sT2}",
      f"s_mul_i32 s{sT1}, s{sT3}, {32*1152}", f"s_add_u32 s{sC1}, s{sT1}, s{sT2}")
    A(f"s_lshl_b32 s{sPST}, s{sSLICE}, 4", f"s_add_u32 s{sPST}, s{sPST}, s{sTILE}", f"s_lshl_b32 s{sPST}, s{sPST}, 2", f"s_add_u32 s{sPST}, s{sPST}, s{sW}",
      f"s_mul_i32 s{sPST}, s{sPST}, {36*1024}")
    A(f"s_bfm_b64 s[{sMASK}:{sMASK+1}], s{sTILE}, 0", f"s_not_b64 s[{sMASK}:{sMASK+1}], s[{sMASK}:{sMASK+1}]")
    for k, sm in ((1, sM1), (2, sM2), (3, sM3)):
        A(f"s_cmp_ge_u32 s{sW}, {k}", f"s_cselect_b32 s{sm}, 1.0, 0")
    A(voff_W1full(D2, 12))
    A(base_T128(P1, 8, 12)); A(base_R(P2, 12))
    A(f"v_lshlrev_b32 v{P2+6}, 4, v3", f"v_add_u32 v{P2+6}, s{sW3}, v{P2+6}", f"v_add_u32 v{P2+6}, {PRIV}, v{P2+6}")
    LRE, LIM, DT, E1, R1, M_, A_ = 23, 24, 25, 26, 27, 28, 29
    TB = 32
    A(f"v_lshlrev_b32 v{LRE}, 16, v{PLRE}", f"v_lshlrev_b32 v{LIM}, 16, v{PLIM}", f"v_lshlrev_b32 v{DT}, 16, v{PLDT}")
    A(f"v_mul_f32 v{DT}, {hex(LOG2E)}, v{DT}", f"v_exp_f32 v{DT}, v{DT}", f"v_cvt_pk_bf16_f32 v{DT}, v{DT}, v{DT}", f"v_lshlrev_b32 v{DT}, 16, v{DT}")
    A(f"v_mul_f32 v{E1}, v{DT}, v{LRE}", f"v_mul_f32 v{R1}, v{DT}, v{LIM}", f"v_mul_f32 v{E1}, {hex(LOG2E)}, v{E1}", f"v_mul_f32 v{R1}, {hex(INV2PI)}, v{R1}")
    def cpow(dre, dim, nsrc):
        return [f"v_mul_f32 v{M_}, {nsrc}, v{E1}", f"v_mul_f32 v{A_}, {nsrc}, v{R1}", f"v_exp_f32 v{M_}, v{M_}", f"v_fract_f32 v{A_}, v{A_}",
                f"v_cos_f32 v{dre}, v{A_}", f"v_sin_f32 v{dim}, v{A_}", f"v_mul_f32 v{dre}, v{M_}, v{dre}", f"v_mul_f32 v{dim}, v{M_}, v{dim}"]
    A(cpow(TB, TB + 1, "1.0"), cpow(TB + 2, TB + 3, "2.0"))
    A(f"s_mov_b32 s{sT0}, 0x40400000"); A(cpow(TB + 4, TB + 5, f"s{sT0}"))
    A(cpow(TB + 6, TB + 7, "4.0"))
    A(f"v_mov_b32 v{A4}, v{TB+6}", f"v_mov_b32 v{A4+1}, v{TB+7}")
    A(f"s_mov_b32 s{sT0}, 0x42000000"); A(cpow(A32, A32 + 1, f"s{sT0}"))
    A(f"s_mov_b32 s{sT0}, 0x43000000"); A(cpow(A128, A128 + 1, f"s{sT0}"))
    A(f"s_lshl_b32 s{sT0}, s{sW}, 5", f"v_cvt_f32_u32 v30, s{sT0}"); A(cpow(PW, PW + 1, "v30"))
    A(f"v_add_f32 v{M_}, -1.0, v{TB}", f"v_mul_f32 v{A_}, v{LRE}, v{LRE}", f"v_fmac_f32 v{A_}, v{LIM}, v{LIM}", f"v_rcp_f32 v{A_}, v{A_}",
      f"v_mul_f32 v{TB+8}, v{M_}, v{LRE}", f"v_fmac_f32 v{TB+8}, v{TB+1}, v{LIM}",
      f"v_mul_f32 v{TB+9}, v{TB+1}, v{LRE}", f"v_fma_f32 v{TB+9}, -v{M_}, v{LIM}, v{TB+9}",
      f"v_mul_f32 v{TB+8}, v{TB+8}, v{A_}", f"v_mul_f32 v{TB+9}, v{TB+9}, v{A_}")
    A(f"s_and_b32 s{sT0}, s{sSLICE}, 1", f"s_lshl_b32 s{sT0}, s{sT0}, 3", f"s_add_u32 s{sT0}, s{sT0}, 32")
    A(f"v_cmp_gt_u32 vcc, s{sT0}, v8", f"v_cndmask_b32 v{TB+8}, 0, v{TB+8}, vcc", f"v_cndmask_b32 v{TB+9}, 0, v{TB+9}, vcc")
    A(f"v_mov_b32 v{TB+10}, 0", f"v_mov_b32 v{TB+11}, 0")
    A("v_mul_u32_u24 v12, 48, v8", f"v_add_u32 v12, {TAB}, v12")
    for j in range(3): A(I(f"ds_write_b128 v12, {vr(TB+4*j)} offset:{16*j}", tag="tab"))

    units, ustage, u0 = [], [], []
    for k, st in enumerate(stages):
        u0.append(len(units))
        for un in st.units: units.append(un); ustage.append(k)
    NU = len(units); u0.append(NU)

    def read_ins(u):
        un = units[u]; k = ustage[u]
        o = []; d = afrag(u)
        for (op, nreg, base, off, mode) in un["reads"]:
            if mode == "abs": b, o2 = base, off
            else: b, o2 = base + int(mode[1:]) * setof(k), off + slot_rel(k)
            assert o2 < 65536
            o.append(I(f"{op} {ar(d, nreg)}, v{b} offset:{o2}")); d += nreg
        return o

    DEPTH = 4
    slots = []; bar_mf = {}; extra_pre = {}
    for u in range(NU):
        un = units[u]; fr = ar(afrag(u))
        rd = read_ins(u + DEPTH) if u + DEPTH < NU else []
        pre = []
        kn = ustage[u + DEPTH] if u + DEPTH < NU else None
        if kn is not None and u + DEPTH == u0[kn]:
            pre += [WaitTag(f"st{kn}", "wtot"), I("s_barrier")]
            bar_mf[kn] = 2 * u
        if u % 2 == 0:
            pre += [WaitRegs(regs_of(fr) + (regs_of(ar(afrag(u + 1))) if u + 1 < NU else []))]
        for n in range(2):
            d, a, b, c = un["mf"][n]
            txt = mf(d, a, fr, c) if un["swap"] else mf(d, fr, b, c)
            slots.append(Slot(txt, pre if n == 0 else [], rd[n:n + 1] if n < len(rd) else []))
    mend = lambda k: 2 * u0[k + 1] - 1
    mbeg = lambda k: 2 * u0[k]
    A(WaitTag("st0", "gw", "tab"), "s_barrier")
    for u in range(DEPTH): A(read_ins(u))

    kF = lambda c: 5 + 6 * c
    kH = 29; kG = 32
    kP = lambda p: kG + 4 * p
    mXB = mend(4)
    sD = Stream("dma", 0)
    for k in range(5, NST):
        for it in dma_items(k): sD.add(it, bar_mf[k - 4], bar_mf.get(k - 3))
    sA = Stream("addr", 1)
    sA.extend(voff_W1half(D1, TA), mXB + 1, bar_mf[kH - 4])
    sA.extend(base_T64(P2, TA), mXB + 1, bar_mf[kH])
    sA.extend(voff_Wd(D2, TA), bar_mf[28 - 3], bar_mf[kG - 4])
    sA.extend(voff_C(D1, TA), bar_mf[31 - 3], bar_mf[kG + 3 - 4])
    sA.extend(base_T128(P1, 4, TA), bar_mf[kH] + 8, bar_mf[kG])
    sA.extend(base_C(P2 + 2, TA), bar_mf[kG] + 8, bar_mf[kG + 3])

    sE = Stream("epi", 2)
    def ffn_epi(c, nblk, earliest, deadline):
        buf = ACC[c & 1]
        for mt in range(nblk):
            K = 2 * c + (mt >> 1); half = mt & 1
            for n in range(2):
                g = buf + mt * 8 + 4 * n; u_ = buf + (4 + mt) * 8 + 4 * n
                o = []
                for r in range(4): o += [f"v_max_f32 v{g+r}, 0, v{g+r}", f"v_mul_f32 v{u_+r}, v{SF+n}, v{u_+r}"]
                for r in range(4): o += [f"v_mul_f32 v{g+r}, v{g+r}, v{u_+r}"]
                o += [f"v_cvt_pk_bf16_f32 v{u_}, v{g}, v{g+1}", f"v_cvt_pk_bf16_f32 v{u_+1}, v{g+2}, v{g+3}"]
                h = AH + 8 * K + 4 * n + 2 * half
                o += [f"v_accvgpr_write_b32 a{h}, v{u_}", f"v_accvgpr_write_b32 a{h+1}, v{u_+1}"]
                sE.extend(o, earliest, deadline)
    for c in range(4):
        nxt = mend(kF(c) + 5)
        dl = mbeg(kF(c + 2)) if c < 2 else (mbeg(kH) if c == 2 else mbeg(kP(0)))
        ffn_epi(c, 4, nxt + 4, dl)
    ffn_epi(4, 2, mend(kH + 2) + 4, mbeg(kP(0) + 2) + 2 * 16)
    for p in range(5):
        buf = ACC[(p + 1) & 1]
        nm = 8 if p < 4 else 4
        last = mend(kP(p) + 3) if p < 4 else mend(NST - 1)
        dl = mbeg(kP(p + 2)) if p < 3 else None
        for m in range(nm):
            a = buf + m * 8
            o = [f"v_cvt_pk_bf16_f32 v{a}, v{a}, v{a+1}", f"v_cvt_pk_bf16_f32 v{a+1}, v{a+2}, v{a+3}",
                 f"v_cvt_pk_bf16_f32 v{a+2}, v{a+4}, v{a+5}", f"v_cvt_pk_bf16_f32 v{a+3}, v{a+6}, v{a+7}"]
            sE.extend(o, last + 4, dl)
            imm = 1024 * (m % 4)
            sE.add(f"buffer_store_dwordx4 {vr(a)}, v{VST}, {sr(S_WS)}, s{sPST} offen" + (f" offset:{imm}" if imm else "") + opt.get("pst", ""), last + 4, dl)
            if m % 4 == 3: sE.add(f"s_add_u32 s{sPST}, s{sPST}, 4096", last + 4, dl)

    sS = Stream("ssm", 3)
    e = mXB + 4
    add = lambda x, earliest=None, deadline=None: sS.add(x, e if earliest is None else earliest, deadline)
    def adds(lst, **kw):
        for x in lst: add(x, **kw)
    dlG = mend(kF(0) + 5)
    G0, G1, Z = T, T + 1, T + 2
    adds([f"v_lshrrev_b32 v{G0}, 4, {L}", f"v_lshlrev_b32 v{G0}, 4, v{G0}", f"v_add_u32 v{G0}, s{sW3}, v{G0}", f"v_add_u32 v{G0}, {PRIV}, v{G0}"])
    for n in range(2): add(f"ds_write_b128 v{G0}, {vr(LG+4*n)} offset:{64*n}")
    adds([f"v_and_b32 v{G1}, 31, {L}", f"v_lshlrev_b32 v{G1}, 2, v{G1}", f"v_add_u32 v{G1}, s{sW3}, v{G1}", f"v_add_u32 v{G1}, {PRIV}, v{G1}",
          f"ds_read_b32 v{Z}, v{G1}"])
    TA1 = T + 8
    adds([f"v_and_b32 v{VT}, 15, {L}", f"v_mul_u32_u24 v{VT}, 48, v{VT}", f"v_add_u32 v{VT}, {TAB}, v{VT}"])
    for b in range(3): add(f"ds_read_b64 {vr(TA1+2*b, 2)}, v{VT} offset:{b*768}")
    adds([f"v_cvt_pk_bf16_f32 v{Z}, v{Z}, v{Z}", f"v_lshlrev_b32 v{Z}, 16, v{Z}", f"v_mul_f32 v{Z}, {hex(LOG2E ^ 0x80000000)}, v{Z}", f"v_exp_f32 v{Z}, v{Z}",
          f"v_lshrrev_b32 v{VE}, 4, {L}",
          f"v_add_f32 v{Z}, 1.0, v{Z}", f"v_rcp_f32 v{Z}, v{Z}", f"v_mul_u32_u24 v{VE}, 384, v{VE}",
          f"v_cvt_pk_bf16_f32 v{Z}, v{Z}, v{Z}", f"v_lshlrev_b32 v{Z}, 16, v{Z}",
          f"v_sub_f32 v{T+3}, 1.0, v{Z}", f"v_cvt_pk_bf16_f32 v{T+3}, v{T+3}, v{T+3}", f"v_lshlrev_b32 v{T+3}, 16, v{T+3}", f"v_add_f32 v{T+4}, v{Z}, v{Z}",
          f"ds_write_b32 v{G1}, v{T+3} offset:128", f"ds_write_b32 v{G1}, v{T+4} offset:256"])
    add([f"s_lshl_b32 s{sT0}, s{sTILE}, 7", f"s_lshl_b32 s{sT1}, s{sW}, 5", f"s_add_u32 s{sT0}, s{sT0}, s{sT1}", f"s_lshl_b32 s{sT0}, s{sT0}, 2",
         f"s_add_u32 s{sT0}, s{sT0}, {WS_G}", f"s_cmp_eq_u32 s{sSLICE}, 0", f"s_cselect_b32 s{sT1}, 32, 0"])
    adds([f"v_lshlrev_b32 v{T+5}, 2, {L}", f"v_cmp_gt_u32 vcc, s{sT1}, {L}", f"v_mov_b32 v{T+6}, {hex(OOB)}", f"v_and_b32 v{T+7}, 15, {L}",
          f"v_cndmask_b32 v{T+5}, v{T+6}, v{T+5}, vcc", f"buffer_store_dword v{Z}, v{T+5}, {sr(S_WS)}, s{sT0} offen",
          f"v_lshlrev_b32 v{T+7}, 2, v{T+7}", f"v_add_u32 v{T+7}, s{sW3}, v{T+7}", f"v_add_u32 v{T+7}, {PRIV}, v{T+7}"])
    for n in range(2): add(f"ds_read_b32 v{SF+n}, v{T+7} offset:{128+64*n}")
    for n in range(2): add(f"ds_read_b128 {vr(LG+4*n)}, v{G0} offset:{256+64*n}")
    adds([f"v_and_b32 v{VE+1}, 15, {L}", f"v_lshlrev_b32 v{VE+1}, 3, v{VE+1}", f"v_add_u32 v{VE}, v{VE}, v{VE+1}", f"v_add_u32 v{VE}, s{sW3}, v{VE}",
          f"v_add_u32 v{VE}, {PRIV}, v{VE}", f"v_add_u32 v{VE+1}, 1536, v{VE}"])
    add(WaitRegs([f"v{SF}", f"v{SF+1}"] + regs_of(vr(LG, 8))), deadline=dlG)
    for r in range(1, 4):
        for b in range(3):
            are, aim = TA1 + 2 * b, TA1 + 2 * b + 1
            for n in range(2):
                R, Im = xb(b, 0, n), xb(b, 1, n)
                adds([f"v_fmac_f32 v{R+r}, v{are}, v{R+r-1}", f"v_fmac_f32 v{Im+r}, v{are}, v{Im+r-1}"])
            for n in range(2):
                R, Im = xb(b, 0, n), xb(b, 1, n)
                adds([f"v_fma_f32 v{R+r}, -v{aim}, v{Im+r-1}, v{R+r}", f"v_fmac_f32 v{Im+r}, v{aim}, v{R+r-1}"])
    for b in range(3):
        for n in range(2):
            add(f"ds_write2_b32 v{VE+n}, v{xb(b,0,n)+3}, v{xb(b,1,n)+3} offset0:{32*b} offset1:{32*b+1}")
    adds([f"v_add_u32 v{VP}, s{sW3}, v{VCH}", f"v_add_u32 v{VP}, {PRIV}, v{VP}"])
    for m in range(8): add(f"ds_read_b64 {vr(T+2*m, 2)}, v{VP} offset:{384*m}")
    add([f"s_mul_i32 s{sT0}, s{sW}, 384", f"s_add_u32 s{sT0}, s{sT0}, {WTOT}"]); add(f"v_add_u32 v{TS}, s{sT0}, v{VCH}")
    for m in range(1, 8): adds(cmul_acc(T + 2*m, T + 2*m + 1, A4, A4 + 1, T + 2*m - 2, T + 2*m - 1))
    kWB = kF(1) + 2
    add(I(f"ds_write_b64 v{TS}, {vr(T+14, 2)}", tag="wtot"), deadline=bar_mf[kWB] - 2)
    e = bar_mf[kWB]
    adds([f"v_add_u32 v{TS}, {WTOT}, v{VCH}"])
    for m in range(4): add(f"ds_read_b64 {vr(T+2*m, 2)}, v{TS} offset:{384*m}")
    add([f"s_mul_i32 s{sT0}, s{sTILE}, 384", f"s_cmp_eq_u32 s{sW}, 0", f"s_cselect_b32 s{sT1}, 48, 0"])
    adds([f"v_add_u32 v{TS+1}, s{sT0}, v{VCH}", f"v_cmp_gt_u32 vcc, s{sT1}, {L}", f"v_mov_b32 v{TS+2}, {hex(OOB)}"])
    for m in range(1, 4): adds(cmul_acc(T + 2*m, T + 2*m + 1, A32, A32 + 1, T + 2*m - 2, T + 2*m - 1))
    adds([f"v_cndmask_b32 v{TS+1}, v{TS+2}, v{TS+1}, vcc"])
    add(I(f"buffer_store_dwordx2 {vr(T+6, 2)}, v{TS+1}, {sr(S_S)}, 0 offen sc1", tag="sst"))
    add([f"s_lshl_b32 s{sT0}, s{sSLICE}, 4", f"s_add_u32 s{sT0}, s{sT0}, s{sTILE}", f"s_cmp_eq_u32 s{sW}, 0", f"s_cselect_b32 s{sT1}, 1, 0"])
    adds([f"v_mov_b32 v{TS+1}, s{sT0}", f"v_cmp_gt_u32 vcc, s{sT1}, {L}", f"v_mov_b32 v{TS+3}, 1", f"v_cndmask_b32 v{TS+1}, v{TS+2}, v{TS+1}, vcc"])
    e = bar_mf[kWB + 2]
    add([WaitTag("sst"), I(f"buffer_store_byte v{TS+3}, v{TS+1}, {sr(S_DBG)}, 0 offen sc1")])
    kPoll = kF(2) + 1
    e = bar_mf[kPoll]
    add([f"s_lshl_b32 s{sT0}, s{sSLICE}, 4"]); add(f"v_add_u32 v{TS}, s{sT0}, {L}"); add(f"v_cmp_gt_u32 vcc, 16, {L}"); add(f"v_mov_b32 v{TS+2}, {hex(OOB)}")
    add(f"v_cndmask_b32 v{TS}, v{TS+2}, v{TS}, vcc")
    add(f"buffer_load_ubyte v{TS+1}, v{TS}, {sr(S_DBG)}, 0 offen sc1")
    e = bar_mf[kPoll + 2]
    add([I(f"v_cmp_ne_u32 vcc, 0, v{TS+1}"), I(f"s_or_b64 vcc, vcc, s[{sMASK}:{sMASK+1}]"), I("s_cmp_eq_u64 vcc, -1"), I("s_cbranch_scc0 L_slow_poll"), I("L_back_poll:")])
    add([f"s_mul_i32 s{sT0}, s{sTILE}, 384"]); add(f"v_add_u32 v{TS}, s{sT0}, v{VCH}")
    for idx, k in enumerate(range(15, 7, -1)):
        t_ = TS + 1 + (idx & 1)
        add(f"v_subrev_u32 v{t_}, {k*384}, v{TS}")
        add(f"buffer_load_dwordx2 {vr(T+2*idx, 2)}, v{t_}, {sr(S_S)}, 0 offen sc1")
    e = bar_mf[kPoll + 4]
    CC = TS + 2
    for m in range(1, 8): adds(cmul_acc(T + 2*m, T + 2*m + 1, A128, A128 + 1, T + 2*m - 2, T + 2*m - 1))
    adds([f"v_mov_b32 v{CC}, v{T+14}", f"v_mov_b32 v{CC+1}, v{T+15}"])
    for idx, k in enumerate(range(7, 0, -1)):
        add(f"v_subrev_u32 v{TS+1}, {k*384}, v{TS}")
        add(f"buffer_load_dwordx2 {vr(T+2*idx, 2)}, v{TS+1}, {sr(S_S)}, 0 offen sc1")
    e = bar_mf[kPoll + 6]
    adds(cmul_acc(T, T + 1, A128, A128 + 1, CC, CC + 1))
    for m in range(1, 7): adds(cmul_acc(T + 2*m, T + 2*m + 1, A128, A128 + 1, T + 2*m - 2, T + 2*m - 1))
    adds([f"v_mov_b32 v{CC}, v{T+12}", f"v_mov_b32 v{CC+1}, v{T+13}"])
    for k in (3, 2, 1):
        add([f"s_sub_u32 s{sT0}, s{sW}, {k}", f"s_max_i32 s{sT0}, s{sT0}, 0", f"s_mul_i32 s{sT0}, s{sT0}, 384", f"s_add_u32 s{sT0}, s{sT0}, {WTOT}"])
        add(f"v_add_u32 v{TS}, s{sT0}, v{VCH}")
        add(f"ds_read_b64 {vr(T+2*(3-k), 2)}, v{TS}")
    for k, sm in ((3, sM3), (2, sM2), (1, sM1)):
        j = T + 2 * (3 - k)
        adds([f"v_mul_f32 v{j}, s{sm}, v{j}", f"v_mul_f32 v{j+1}, s{sm}, v{j+1}"])
    adds(cmul_acc(T + 2, T + 3, A32, A32 + 1, T, T + 1)); adds(cmul_acc(T + 4, T + 5, A32, A32 + 1, T + 2, T + 3))
    adds(cmul_acc(T + 4, T + 5, PW, PW + 1, CC, CC + 1))
    adds([f"v_mov_b32 v{CC}, v{T+4}", f"v_mov_b32 v{CC+1}, v{T+5}"])
    for m in range(7): add(f"ds_read_b64 {vr(T+2*m, 2)}, v{VP} offset:{384*m}")
    add(f"ds_write_b64 v{VP}, {vr(CC, 2)}")
    adds(cmul_acc(T, T + 1, A4, A4 + 1, CC, CC + 1))
    add(f"ds_write_b64 v{VP}, {vr(T, 2)} offset:384")
    for m in range(1, 7):
        adds(cmul_acc(T + 2*m, T + 2*m + 1, A4, A4 + 1, T + 2*m - 2, T + 2*m - 1))
        add(f"ds_write_b64 v{VP}, {vr(T+2*m, 2)} offset:{384*(m+1)}")
    VW, VR = TS, TS + 1
    adds([f"v_and_b32 v{VW}, 15, {L}", f"v_lshlrev_b32 v{VW}, 5, v{VW}", f"v_lshrrev_b32 v{VR}, 4, {L}", f"v_lshlrev_b32 v{VR}, 3, v{VR}",
          f"v_add_u32 v{VW}, v{VW}, v{VR}", f"v_add_u32 v{VW}, s{sW3}, v{VW}", f"v_add_u32 v{VW}, {PRIV}, v{VW}",
          f"v_lshlrev_b32 v{VR}, 3, {L}", f"v_add_u32 v{VR}, s{sW3}, v{VR}", f"v_add_u32 v{VR}, {PRIV}, v{VR}"])
    dlS = bar_mf[kP(0) + 3]
    for n in range(2):
        for b in range(3): add(f"ds_read_b64 {vr(T+2*b, 2)}, v{VE+n} offset:{128*b}")
        for b in range(3):
            TBL = T + 6
            adds([f"ds_read_b128 {vr(TBL)}, v{VT} offset:{b*768}", f"ds_read_b128 {vr(TBL+4)}, v{VT} offset:{b*768+16}", f"ds_read_b64 {vr(TBL+8, 2)}, v{VT} offset:{b*768+32}"])
            R, Im = xb(b, 0, n), xb(b, 1, n)
            cre, cim = T + 2 * b, T + 2 * b + 1
            for r in range(4): adds(cmul_acc(R + r, Im + r, TBL + 2*r, TBL + 2*r + 1, cre, cim))
            kr, ki, tt = TBL + 8, TBL + 9, TS + 2
            for r in range(4):
                t_ = tt + (r & 1)
                adds([f"v_mul_f32 v{t_}, v{kr}, v{R+r}", f"v_fma_f32 v{t_}, -v{ki}, v{Im+r}, v{t_}",
                      f"v_mul_f32 v{Im+r}, v{kr}, v{Im+r}", f"v_fmac_f32 v{Im+r}, v{ki}, v{R+r}",
                      f"v_mul_f32 v{R+r}, v{LG+4*n+r}, v{t_}", f"v_mul_f32_e64 v{Im+r}, -v{LG+4*n+r}, v{Im+r}"])
            adds([f"v_cvt_pk_bf16_f32 v{R}, v{R}, v{R+1}", f"v_cvt_pk_bf16_f32 v{R+1}, v{R+2}, v{R+3}",
                  f"v_cvt_pk_bf16_f32 v{Im}, v{Im}, v{Im+1}", f"v_cvt_pk_bf16_f32 v{Im+1}, v{Im+2}, v{Im+3}"])
            so = 1536 * n
            adds([f"ds_write_b64 v{VW}, {vr(R, 2)} offset:{so}", f"ds_write_b64 v{VW}, {vr(Im, 2)} offset:{so+512}",
                  f"ds_read_b64_tr_b16 {vr(R, 2)}, v{VR} offset:{so}", f"ds_read_b64_tr_b16 {vr(R+2, 2)}, v{VR} offset:{so+512}"], deadline=dlS)
    add(WaitRegs([f"v{xb(b,0,n)+r}" for b in range(3) for n in range(2) for r in range(4)]), deadline=dlS)

    streams = [sD, sA, sE, sS]
    body, rest, stats = schedule(slots, streams)
    tail = rest
    slow = [I("L_slow_poll:"), I(f"s_mov_b32 s{sT2}, 0"), I("L_slow_poll_loop:"), I("s_sleep 2"),
            I(f"buffer_load_ubyte v{TS+1}, v{TS}, {sr(S_DBG)}, 0 offen sc1"), I("s_waitcnt vmcnt(0)"),
            I(f"v_cmp_ne_u32 vcc, 0, v{TS+1}"), I("s_nop 4"), I(f"s_or_b64 vcc, vcc, s[{sMASK}:{sMASK+1}]"), I("s_cmp_eq_u64 vcc, -1"),
            I("s_cbranch_scc1 L_back_poll"), I(f"s_add_u32 s{sT2}, s{sT2}, 1"), I(f"s_cmp_lt_u32 s{sT2}, 0x40000"),
            I("s_cbranch_scc1 L_slow_poll_loop"), I("s_branch L_back_poll")]
    prog = pro + body + tail
    prog, nw = insert_waits(prog)
    prog, nn = pad_hazards(prog)
    info = dict(stats, NU=NU, nwait=nw, nnop=nn, ninstr=len(prog), NST=NST, tail=len(tail))
    txt = render(prog) + "\n  s_endpgm\n" + render(slow) + "\nL_main_end:\n  s_endpgm\n"
    return txt, info


def build_reduce(opt):
    o = []
    A = lambda *x: o.extend(expand(list(x)))
    A("s_cmp_ge_u32 s2, 576", "s_cbranch_scc1 L_red_end")
    A("s_load_dwordx2 s[64:65], s[0:1], 0", "s_load_dwordx2 s[66:67], s[0:1], 64", "s_load_dwordx2 s[68:69], s[0:1], 112", "s_load_dwordx2 s[70:71], s[0:1], 128")
    A("v_lshrrev_b32 v1, 6, v0", "v_and_b32 v2, 63, v0")
    A("v_readfirstlane_b32 s20, v1")
    A("s_lshl_b32 s21, s2, 2", "s_add_u32 s21, s21, s20")
    A("s_mul_i32 s22, s21, 1821", "s_lshr_b32 s22, s22, 16")
    A("s_mul_i32 s23, s22, 36", "s_sub_u32 s23, s21, s23")
    A("s_lshl_b32 s24, s21, 10")
    A("s_lshl_b32 s25, s22, 5")
    A("v_lshlrev_b32 v3, 4, v2", "v_and_b32 v4, 15, v2", "v_lshrrev_b32 v5, 4, v2")
    A("s_waitcnt lgkmcnt(0)")
    A(srd(4, "s70", "s71", WS_END), srd(8, "s64", "s65", 2359296), srd(12, "s66", "s67", 1152), srd(16, "s68", "s69", 4718592))
    for s in range(16):
        A(f"buffer_load_dwordx4 {vr(32+4*s)}, v3, s[4:7], s24 offen" + opt.get("rld", ""))
        if s < 15: A(f"s_add_u32 s24, s24, {16*4*36*1024}")
    A("s_lshl_b32 s26, s23, 4", "v_lshlrev_b32 v6, 2, v5", "v_add_u32 v6, s26, v6")
    A("v_add_u32 v7, s25, v4")
    A("v_mul_u32_u24 v8, 576, v7", "v_add_u32 v8, v8, v6")
    A("v_lshlrev_b32 v9, 1, v8", "v_lshlrev_b32 v10, 2, v8", "v_lshlrev_b32 v11, 1, v6", "v_lshlrev_b32 v12, 2, v7")
    A("buffer_load_dwordx2 v[14:15], v9, s[8:11], 0 offen")
    A("s_mov_b32 s27, 18432", "buffer_load_dwordx2 v[16:17], v9, s[8:11], s27 offen")
    A("buffer_load_dwordx2 v[18:19], v11, s[12:15], 0 offen")
    A(f"s_mov_b32 s28, {WS_G}", "buffer_load_dword v20, v12, s[4:7], s28 offen", "buffer_load_dword v21, v12, s[4:7], s28 offen offset:64")
    for r in range(8): A(f"v_mov_b32 v{100+r}, 0")
    for s in range(16):
        for j in range(4):
            src = 32 + 4 * s + j
            A(f"v_lshlrev_b32 v22, 16, v{src}", f"v_and_b32 v23, 0xffff0000, v{src}", f"v_add_f32 v{100+2*j}, v{100+2*j}, v22", f"v_add_f32 v{101+2*j}, v{101+2*j}, v23")
    for n in range(2):
        for j in range(2):
            xs, ds = 14 + 2 * n + j, 18 + j
            A(f"v_lshlrev_b32 v22, 16, v{xs}", f"v_and_b32 v23, 0xffff0000, v{xs}", f"v_lshlrev_b32 v24, 16, v{ds}", f"v_and_b32 v25, 0xffff0000, v{ds}",
              "v_mul_f32 v22, v22, v24", "v_mul_f32 v23, v23, v25", "v_cvt_pk_bf16_f32 v22, v22, v23",
              "v_and_b32 v23, 0xffff0000, v22", "v_lshlrev_b32 v22, 16, v22",
              f"v_fmac_f32 v{100+4*n+2*j}, v{20+n}, v22", f"v_fmac_f32 v{101+4*n+2*j}, v{20+n}, v23")
    A("buffer_store_dwordx4 v[100:103], v10, s[16:19], 0 offen")
    A("s_mov_b32 s27, 36864", "buffer_store_dwordx4 v[104:107], v10, s[16:19], s27 offen")
    prog, nw = insert_waits(o)
    prog, nn = pad_hazards(prog)
    return render(prog) + "\nL_red_end:\n  s_endpgm\n"


HEADER = open("cdna_kernels/" + NAME + ".s.ref").read().split("; Override launch geometry")[0]

def kd(name, vg, acc, sg):
    return f""".p2align 6
.amdhsa_kernel {name}
  .amdhsa_next_free_vgpr {vg}
  .amdhsa_next_free_sgpr {sg}
  .amdhsa_accum_offset {acc}
  .amdhsa_group_segment_fixed_size 0
  .amdhsa_kernarg_size 136
  .amdhsa_user_sgpr_count 2
  .amdhsa_user_sgpr_kernarg_segment_ptr 1
  .amdhsa_system_sgpr_workgroup_id_x 1
.end_amdhsa_kernel
"""

def build(opt):
    main, info = build_main(opt)
    red = build_reduce(opt)
    k1, k2 = NAME + "_kernel", "reduce_kernel"
    s = HEADER
    s += f"; @launch kernel={k1} grid=(256,1,1) block=(256,1,1) lds={LDS_BYTES}\n"
    s += f"; @launch kernel={k2} grid=(576,1,1) block=(256,1,1) lds=0\n"
    s += '.amdgcn_target "amdgcn-amd-amdhsa--gfx950"\n.text\n'
    s += f".globl {k1}\n.p2align 8\n.type {k1},@function\n{k1}:\n" + main
    s += f".globl {k2}\n.p2align 8\n.type {k2},@function\n{k2}:\n" + red
    s += '.section .rodata,"a"\n' + kd(k1, 512, 256, 102) + kd(k2, 128, 128, 96)
    return s, info


if __name__ == "__main__":
    out = sys.argv[1] if len(sys.argv) > 1 else "cdna_kernels/" + NAME + ".s"
    opt = {}
    for a in sys.argv[2:]:
        k, v = a.split("=", 1); opt[k] = v
    s, info = build(opt)
    open(out, "w").write(s)
    print(info, len(s))
```

```python
import re
from collections import deque

TRANS = ("v_exp_f32", "v_log_f32", "v_rcp_f32", "v_rsq_f32", "v_sqrt_f32", "v_sin_f32", "v_cos_f32")
_reg = re.compile(r"^-?\|?([vas])(\d+)\|?$")
_rng = re.compile(r"^-?\|?([vas])\[(\d+):(\d+)\]\|?$")


def regs_of(tok):
    tok = tok.strip()
    m = _reg.match(tok)
    if m:
        return [m.group(1) + m.group(2)]
    m = _rng.match(tok)
    if m:
        return [m.group(1) + str(i) for i in range(int(m.group(2)), int(m.group(3)) + 1)]
    if tok in ("vcc", "m0", "exec", "scc"):
        return [tok]
    return []


class I:
    __slots__ = ("txt", "op", "kind", "dst", "src", "tag", "srcC", "cexact", "wide", "args", "note")

    def __init__(self, txt, tag=None, note=None):
        self.txt = txt
        self.tag = tag
        self.note = note
        self.args = None
        self.srcC = []
        self.cexact = None
        self.wide = False
        t = txt.strip()
        if t.endswith(":"):
            self.op = "label"; self.kind = "label"; self.dst = []; self.src = []
            return
        parts = t.split(None, 1)
        op = parts[0]
        self.op = op
        rest = parts[1] if len(parts) > 1 else ""
        toks = []
        for p in rest.split(","):
            toks += [p.strip()]
        if toks:
            last = toks[-1].split()
            toks = toks[:-1] + ([last[0]] if last else [])
            mods = last[1:]
        else:
            mods = []
        R = [regs_of(x) for x in toks]
        flat = lambda l: [r for x in l for r in x]
        dst, src = [], []
        if op.startswith("v_mfma"):
            kind = "mfma"; dst = R[0]; src = flat(R[1:3]); self.srcC = R[3]; src = src + R[3]
            self.cexact = (toks[0] == toks[3])
        elif op.startswith("ds_read"):
            kind = "ds_rd"; dst = R[0]; src = flat(R[1:])
        elif op.startswith("ds_write"):
            kind = "ds_wr"; src = flat(R)
        elif op.startswith("buffer_load") and "lds" in mods:
            kind = "dma"; src = flat(R) + ["m0"]
        elif op.startswith("buffer_load") or op.startswith("global_load"):
            kind = "vm_ld"; dst = R[0]; src = flat(R[1:])
        elif op.startswith("buffer_store"):
            kind = "vm_st"; src = flat(R); self.wide = op.endswith("x4") or op.endswith("x3")
            self.args = R[0]
        elif op.startswith("s_memtime") or op.startswith("s_memrealtime"):
            kind = "salu"; dst = []; src = []
        elif op.startswith("v_writelane"):
            kind = "valu"; dst = list(R[0]); src = []
        elif op.startswith("s_load"):
            kind = "smem"; dst = R[0]; src = flat(R[1:])
        elif op == "s_waitcnt":
            kind = "wait"
        elif op == "s_nop":
            kind = "nop"; self.args = int(toks[0])
        elif op == "s_barrier":
            kind = "barrier"
        elif op.startswith("s_cbranch") or op == "s_branch":
            kind = "branch"; src = ["scc"] if "scc" in op else (["vcc"] if "vcc" in op else [])
        elif op.startswith("s_cmp"):
            kind = "salu"; dst = ["scc"]; src = flat(R)
        elif op in ("s_setprio", "s_sleep", "s_endpgm"):
            kind = "salu"
        elif op.startswith("s_"):
            kind = "salu"; dst = list(R[0]); src = flat(R[1:])
            if op.startswith(("s_add", "s_sub", "s_and", "s_or", "s_xor", "s_lshl", "s_lshr", "s_not", "s_andn2", "s_ashr", "s_min", "s_max")):
                dst = dst + ["scc"]
            if op.startswith("s_cselect") or op.startswith("s_addc"):
                src = src + ["scc"]
        elif op.startswith("v_cmp"):
            kind = "valu"; dst = R[0]; src = flat(R[1:])
        elif op.startswith("v_"):
            kind = "valu"; dst = list(R[0]); src = flat(R[1:])
            if op.startswith("v_fmac") or op.startswith("v_permlane"):
                src = src + dst
            if op.startswith("v_cndmask") and len(toks) == 3:
                src = src + ["vcc"]
        else:
            raise ValueError("unknown instruction: " + txt)
        self.kind = kind; self.dst = dst; self.src = src

    def __repr__(self):
        return self.txt


class WaitRegs(I):
    def __init__(self, regs):
        self.txt = "; waitregs"; self.op = "waitregs"; self.kind = "pwait"; self.dst = []; self.src = list(regs)
        self.tag = None; self.note = None; self.args = None; self.srcC = []; self.cexact = None; self.wide = False


class WaitTag(I):
    def __init__(self, *tags):
        self.txt = "; waittag"; self.op = "waittag"; self.kind = "pwait"; self.dst = []; self.src = []
        self.tag = None; self.note = None; self.args = set(tags); self.srcC = []; self.cexact = None; self.wide = False


def expand(x):
    if isinstance(x, str):
        return [I(x)]
    if isinstance(x, I):
        return [x]
    out = []
    for y in x:
        out += expand(y)
    return out


class Stream:
    def __init__(self, name, prio):
        self.name = name; self.prio = prio; self.q = deque()

    def add(self, ins, earliest=0, deadline=None):
        self.q.append((expand(ins), earliest, deadline))

    def extend(self, lst, earliest=0, deadline=None):
        for x in lst:
            self.add(x, earliest, deadline)


class Slot:
    __slots__ = ("mfma", "pre", "post")

    def __init__(self, mfma, pre=None, post=None):
        self.mfma = I(mfma) if isinstance(mfma, str) else mfma
        self.pre = expand(pre or []); self.post = expand(post or [])


LDS_LAT = 8
VM_LAT = 90
VM_GAP = 5


def schedule(slots, streams, budget=2, horizon=None):
    import bisect
    n = len(slots)
    BIG = n + 10
    S = []
    for s in streams:
        items = list(s.q)
        dl = BIG; eff = [0] * len(items)
        for i in range(len(items) - 1, -1, -1):
            d = items[i][2]
            if d is not None: dl = min(dl, d)
            eff[i] = dl
        S.append(deque((g, e, eff[i]) for i, (g, e, d) in enumerate(items)))
    mand = [len(slots[k].post) + (len(slots[k + 1].pre) if k + 1 < n else 0) for k in range(n)]
    free = [max(0, budget - m) for m in mand]
    cum = [0] * (n + 1)
    for k in range(n): cum[k + 1] = cum[k] + free[k]
    out = []
    stats = {"over": 0, "forced": 0, "idle": 0}
    overlog = [0] * n
    ready = {}; tready = {}
    lastvm = [-99]

    def note(ins_list, k):
        for x in ins_list:
            if x.kind in ("vm_ld", "vm_st", "dma"): lastvm[0] = k
            if x.kind == "ds_rd":
                for r in x.dst: ready[r] = k + LDS_LAT
            elif x.kind == "vm_ld":
                for r in x.dst: ready[r] = k + VM_LAT
            if x.tag is not None and x.kind in ("ds_rd", "ds_wr", "vm_ld", "vm_st", "dma"):
                tready[x.tag] = k + (LDS_LAT if x.kind.startswith("ds") else VM_LAT)


    def eligible(g, k):
        for x in g:
            if x.kind in ("vm_ld", "vm_st", "dma") and k - lastvm[0] < VM_GAP: return False
            if x.kind == "pwait" and x.op == "waittag":
                if any(tready.get(t, -1) > k for t in x.args): return False
            else:
                for r in x.src + x.dst:
                    if ready.get(r, -1) > k: return False
        return True
    for k, sl in enumerate(slots):
        for si, q in enumerate(S):
            while q and q[0][2] <= k:
                g, e, d = q.popleft()
                assert e <= k, f"stream {streams[si].name}: deadline {d} before earliest {e}: {g}"
                out += g; stats["forced"] += len(g); overlog[k] += len(g); note(g, k)
        out += sl.pre
        out.append(sl.mfma)
        out += sl.post
        note(sl.post, k)
        used = mand[k]
        extra = 0
        cnt = {}
        for q in S:
            for (g, e, d) in q:
                if d >= BIG: break
                cnt[d] = cnt.get(d, 0) + len(g)
        acc = 0
        for d in sorted(cnt):
            acc += cnt[d]
            span = d - k
            if span <= 0: continue
            cap = cum[min(d, n)] - cum[k]
            if acc > cap:
                extra = max(extra, (acc - cap) / span)
        carry = stats.get("_carry", 0.0) + extra
        b = budget + int(carry)
        stats["_carry"] = carry - int(carry) if extra > 0 else 0.0
        while used < b:
            pick = None; best = None
            for si, q in enumerate(S):
                if q and q[0][1] <= k and eligible(q[0][0], k):
                    key = (q[0][2], streams[si].prio)
                    if best is None or key < best: best = key; pick = q
            if pick is None: break
            g, e, d = pick.popleft()
            out += g; used += len(g); note(g, k)
        if used > budget:
            stats["over"] += used - budget; overlog[k] += used - budget
        elif used < budget: stats["idle"] += budget - used
    rest = []
    for q in S:
        while q:
            g, e, d = q.popleft(); rest += g
    stats.pop("_carry", None)
    stats["overlog"] = overlog
    return out, rest, stats


VM = ("vm_ld", "vm_st", "dma")
LG = ("ds_rd", "ds_wr")


def insert_waits(prog):
    out = []
    vm = []
    lg = []
    smem_pending = set()
    nwait = 0

    def need(lst, pred):
        idx = -1
        for i, e in enumerate(lst):
            if pred(e): idx = i
        if idx < 0: return None
        return len(lst) - 1 - idx

    def emit_wait(v, l):
        nonlocal nwait
        parts = []
        if v is not None:
            assert v <= 63
            parts.append(f"vmcnt({v})"); del vm[:len(vm) - v]
        if l is not None:
            assert l <= 15, "lgkmcnt overflow"
            parts.append(f"lgkmcnt({l})"); del lg[:len(lg) - l]
        out.append(I("s_waitcnt " + " ".join(parts))); nwait += 1

    for ins in prog:
        if ins.kind == "label" or ins.kind == "branch":
            out.append(ins); continue
        if ins.kind == "wait":
            m = re.search(r"vmcnt\((\d+)\)", ins.txt)
            if m:
                v = int(m.group(1))
                if len(vm) > v: del vm[:len(vm) - v]
            m = re.search(r"lgkmcnt\((\d+)\)", ins.txt)
            if m:
                l = int(m.group(1))
                if len(lg) > l: del lg[:len(lg) - l]
                if l == 0: smem_pending.clear()
            out.append(ins); continue
        if ins.kind == "pwait" and ins.op == "waittag":
            tags = ins.args
            v = need(vm, lambda e: e[1] in tags); l = need(lg, lambda e: e[1] in tags)
            if v is not None or l is not None: emit_wait(v, l)
            continue
        touched = set(ins.src) | set(ins.dst)
        touched.discard("scc")
        if smem_pending & touched:
            raise RuntimeError("SMEM result used before lgkmcnt(0): " + ins.txt)
        v = need(vm, lambda e: e[0] & touched); l = need(lg, lambda e: e[0] & touched)
        if v is not None or l is not None: emit_wait(v, l)
        if ins.kind == "pwait":
            continue
        out.append(ins)
        if ins.kind in VM:
            vm.append((set(ins.dst), ins.tag))
            if len(vm) > 63:
                pass
        elif ins.kind in LG:
            if len(lg) >= 15:
                out.pop(); emit_wait(None, 14); out.append(ins)
            lg.append((set(ins.dst), ins.tag))
        elif ins.kind == "smem":
            smem_pending |= set(ins.dst)
    return out, nwait


def is_v(r): return r[0] in "va" and r[1:].isdigit()


def pad_hazards(prog):
    out = []
    t = 0
    w_valu = {}; w_mfma = {}; w_trans = {}; c_mfma = {}; w_valu_s = {}; w_salu_m0 = -99; st_wide = {}
    mfma_dst = {}
    nn = 0
    for ins in prog:
        if ins.kind == "label":
            out.append(ins); continue
        need = 0

        def req(prev, dist):
            nonlocal need
            if prev is not None:
                need = max(need, dist - (t - prev - 1))
        k = ins.kind
        isdpp = "dpp" in ins.txt or "row_" in ins.txt
        if k == "mfma":
            for r in ins.src:
                req(w_valu.get(r), 2)
            ab = ins.src[:len(ins.src) - len(ins.srcC)]
            for r in ab: req(w_mfma.get(r), 8)
            for r in ins.srcC:
                if r in w_mfma:
                    if mfma_dst.get(r) != tuple(ins.srcC): req(w_mfma[r], 6)
            for r in ins.dst:
                if r in w_mfma and mfma_dst.get(r) != tuple(ins.dst): req(w_mfma[r], 6)
        elif k == "valu":
            for r in ins.src + ins.dst:
                req(w_mfma.get(r), 8)
            for r in ins.dst:
                req(c_mfma.get(r), 3); req(st_wide.get(r), 2)
            if ins.op not in TRANS:
                for r in ins.src: req(w_trans.get(r), 1)
            for r in ins.src:
                if r[0] == "s" or r == "vcc": req(w_valu_s.get(r), 2)
            if ins.op.startswith("v_readfirstlane") or ins.op.startswith("v_readlane"):
                for r in ins.src: req(w_valu.get(r), 1)
            if isdpp or ins.op.startswith("v_permlane"):
                for r in ins.src: req(w_valu.get(r), 2)
        elif k in ("vm_ld", "vm_st", "dma", "ds_rd", "ds_wr"):
            for r in ins.src + ins.dst:
                req(w_mfma.get(r), 8)
            for r in ins.src:
                if r[0] == "s": req(w_valu_s.get(r), 5)
            for r in ins.dst: req(st_wide.get(r), 1)
            if k == "dma": req(w_salu_m0, 1)
        elif k in ("salu", "branch"):
            for r in ins.src:
                req(w_valu_s.get(r), 4)
        if need > 0:
            nn += need
            while need > 0:
                x = min(need, 16)
                out.append(I(f"s_nop {x - 1}")); t += x; need -= x
        out.append(ins)
        if k == "mfma":
            for r in ins.dst:
                w_mfma[r] = t; mfma_dst[r] = tuple(ins.dst); w_valu.pop(r, None)
            for r in ins.srcC: c_mfma[r] = t
        elif k == "valu":
            for r in ins.dst:
                if is_v(r):
                    w_valu[r] = t; w_mfma.pop(r, None)
                    if ins.op in TRANS: w_trans[r] = t
                    else: w_trans.pop(r, None)
                else:
                    w_valu_s[r] = t
        elif k == "salu":
            if "m0" in ins.dst: w_salu_m0 = t
            for r in ins.dst: w_valu_s.pop(r, None)
        elif k == "vm_st" and ins.wide:
            for r in ins.args: st_wide[r] = t
        elif k in ("vm_ld", "ds_rd"):
            for r in ins.dst:
                w_valu.pop(r, None); w_mfma.pop(r, None)
        t += (ins.args + 1) if k == "nop" else 1
    return out, nn


def render(prog):
    return "\n".join(("" if i.kind == "label" else "  ") + i.txt for i in prog)
```

```python
import sys
import fw
from fw import *

NAME = "gated_mix__ssm_conv_s5__glu_gated_reglu__prompt"
LOG2E = 0x3fb8aa3b
INV2PI = 0x3e22f983
OOB = 0x7ffffff0

SLOT = 24576; NSLOT = 6
MISC = SLOT * NSLOT
PRIV = MISC
WTOT = MISC + 12288
TAB = WTOT + 1536
LDS_BYTES = TAB + 2304

WS_P = 0
P_BYTES = 16 * 16 * 4 * 36 * 1024
WS_S = P_BYTES
WS_G = WS_S + 16 * 16 * 384
WS_END = WS_G + 8192

ACC = [0, 64]
XB = 128
LG = 176
P1 = 184
P2 = 196
D1 = 203; D2 = 209
SF = 215
A4 = 217; A32 = 219; A128 = 221; PW = 223
LANE = 225
VST = 226
VCH = 227
T = 228
VE = T + 16
VP = T + 18
VT = T + 19
TS = T + 20
TA = T + 24
AX = 0; AF = 144; AH = 176
L = f"v{LANE}"

S_X, S_W1, S_WD, S_B, S_C, S_WS, S_S, S_DBG, S_P = 4, 8, 12, 16, 20, 24, 28, 32, 36
sW, sTILE, sSLICE, sC0, sOA, sOB, sW6, sW3, sPST = 40, 41, 42, 43, 44, 45, 46, 47, 48
sT0, sT1, sT2 = 49, 50, 51
sC2, sFULL, sHALF, sT3 = 52, 53, 54, 55
sMASK = 56
sM1, sM2, sM3 = 58, 59, 60
sWB0 = 61
sW1F, sW1H, sWD2, sWD2B, sWD1, sC1 = 64, 65, 66, 67, 68, 69
sXO, sXL = 98, 99
sT4 = 70


def xfrag(ks, n): return f"a[{AX + 8*ks + 4*n}:{AX + 8*ks + 4*n + 3}]"
def afrag(u): return AF + 4 * (u % 8)
def vr(b, n=4): return f"v[{b}:{b+n-1}]" if n > 1 else f"v{b}"
def ar(b, n=4): return f"a[{b}:{b+n-1}]"
def sr(b): return f"s[{b}:{b+3}]"
def xb(b, mat, n): return XB + ((b * 2 + mat) * 2 + n) * 4
def srd(base, lo, hi, size):
    return [f"s_mov_b32 s{base}, {lo}", f"s_mov_b32 s{base+1}, {hi}", f"s_mov_b32 s{base+2}, {size}", f"s_mov_b32 s{base+3}, 0x20000"]
def mf(d, a, b, c): return f"v_mfma_f32_16x16x32_bf16 {d}, {a}, {b}, {c}"
def slot_of(k): return {4: 5, 5: 4}.get(k, k % NSLOT)
def slot_base(k): return slot_of(k) * SLOT
def setof(k): return slot_of(k) // 2
def slot_rel(k): return (slot_of(k) % 2) * SLOT
XBASE = 3 * SLOT
XPOS = [0, 1, 2, 3, 0, 1, 2, 3, 2]


class Stage:
    def __init__(self, fmt, units, pieces, wq, pre):
        self.fmt, self.units, self.pieces, self.wq, self.pre = fmt, units, pieces, wq, pre


def comp(d, j): return [f"v_subrev_u32 v{d}, {1024*(j%4)}, v{d}"] if j % 4 else []

def voff_par(dst, t, stride, chunk0):
    o = chunk0 + [f"v_lshlrev_b32 v{dst}, 4, v{dst}", f"v_lshrrev_b32 v{t}, 3, {L}", f"v_mul_u32_u24 v{t}, {stride}, v{t}",
                  f"v_xor_b32 v{dst+1}, 64, v{dst}", f"v_add_u32 v{dst}, v{dst}, v{t}", f"v_add_u32 v{dst+1}, v{dst+1}, v{t}",
                  f"v_add_u32 v{dst+1}, {8*stride - 1024}, v{dst+1}"]
    for j in range(2, 6):
        delta = (j - (j & 1)) * 8 * stride - (1024 * (j % 4) - 1024 * (j & 1))
        o += [f"v_add_u32 v{dst+j}, {delta}, v{dst + (j & 1)}"]
    return o

def voff_lin(dst, t, rows, stride, first):
    o = list(first)
    for j in range(1, 6): o += [f"v_add_u32 v{dst+j}, {j*rows*stride - 1024*(j%4)}, v{dst}"]
    return o

def voff_B(dst, t):
    return voff_par(dst, t, 1152, [f"v_lshrrev_b32 v{dst}, 4, {L}", f"v_and_b32 v{t}, 7, {L}", f"v_xor_b32 v{dst}, v{dst}, v{t}"])

def voff_W1full(dst, t):
    return voff_par(dst, t, 9216, [f"v_bfe_u32 v{dst}, {L}, 4, 1", f"v_lshlrev_b32 v{dst}, 1, v{dst}", f"v_and_b32 v{t}, 7, {L}", f"v_xor_b32 v{dst}, v{dst}, v{t}"])

def voff_W1half(dst, t):
    d = dst
    return voff_lin(dst, t, 16, 9216, [f"v_lshrrev_b32 v{d}, 5, {L}", f"v_lshlrev_b32 v{d}, 1, v{d}", f"v_and_b32 v{t}, 3, {L}", f"v_xor_b32 v{d}, v{d}, v{t}",
                                       f"v_lshlrev_b32 v{d}, 4, v{d}", f"v_lshrrev_b32 v{t}, 2, {L}", f"v_mul_u32_u24 v{t}, 9216, v{t}", f"v_add_u32 v{d}, v{d}, v{t}"])

def voff_Wd(dst, t):
    d = dst
    return voff_lin(dst, t, 8, 1152, [f"v_lshrrev_b32 v{d}, 4, {L}", f"v_lshlrev_b32 v{d}, 1, v{d}", f"v_and_b32 v{t}, 7, {L}", f"v_xor_b32 v{d}, v{d}, v{t}",
                                      f"v_lshlrev_b32 v{d}, 4, v{d}", f"v_lshrrev_b32 v{t}, 3, {L}", f"v_mul_u32_u24 v{t}, 1152, v{t}", f"v_add_u32 v{d}, v{d}, v{t}"])

def voff_C(dst, t):
    o = []
    for j in range(3):
        d = dst + j
        o += [f"v_add_u32 v{t}, {64*j}, {L}", f"v_mul_u32_u24 v{t+1}, 10923, v{t}", f"v_lshrrev_b32 v{t+1}, 16, v{t+1}",
              f"v_mul_u32_u24 v{d}, 6, v{t+1}", f"v_sub_u32 v{d}, v{t}, v{d}",
              f"v_bfe_u32 v{t}, v{t+1}, 3, 1", f"v_xor_b32 v{d}, v{d}, v{t}", f"v_lshlrev_b32 v{d}, 4, v{d}",
              f"v_mul_u32_u24 v{t+1}, 1152, v{t+1}", f"v_add_u32 v{d}, v{d}, v{t+1}"] + comp(d, j)
    for j in range(3):
        o += [f"v_add_u32 v{dst+j+3}, {32*1152 + 1024*(j%4) - 1024*((j+3)%4)}, v{dst+j}"]
    return o

def base_T128(dst, qrows, t):
    o = [f"v_lshrrev_b32 v{t}, 4, {L}", f"v_mul_u32_u24 v{t}, {qrows}, v{t}", f"v_bfe_u32 v{t+1}, {L}, 2, 2", f"v_add_u32 v{t}, v{t}, v{t+1}",
         f"v_lshlrev_b32 v{t}, 7, v{t}", f"v_and_b32 v{t+1}, 3, {L}", f"v_lshlrev_b32 v{t+1}, 3, v{t+1}", f"v_add_u32 v{t}, v{t}, v{t+1}",
         f"v_bfe_u32 v{t+1}, {L}, 3, 2"]
    for mt in range(4):
        d = dst + mt
        o += [f"v_xor_b32 v{d}, {mt}, v{t+1}", f"v_lshlrev_b32 v{d}, 5, v{d}", f"v_add_u32 v{d}, v{d}, v{t}",
              f"v_add_u32 v{d+4}, 49152, v{d}", f"v_add_u32 v{d+8}, {2*49152}, v{d}"]
    return o

def base_T64(dst, t):
    o = [f"v_lshrrev_b32 v{t}, 4, {L}", f"v_lshlrev_b32 v{t}, 3, v{t}", f"v_bfe_u32 v{t+1}, {L}, 2, 2", f"v_add_u32 v{t}, v{t}, v{t+1}",
         f"v_lshlrev_b32 v{t}, 6, v{t}", f"v_and_b32 v{t+1}, 3, {L}", f"v_lshlrev_b32 v{t+1}, 3, v{t+1}", f"v_add_u32 v{t}, v{t}, v{t+1}",
         f"v_bfe_u32 v{t+1}, {L}, 4, 1"]
    for mt in range(2):
        d = dst + mt
        o += [f"v_xor_b32 v{d}, {mt}, v{t+1}", f"v_lshlrev_b32 v{d}, 5, v{d}", f"v_add_u32 v{d}, v{d}, v{t}",
              f"v_add_u32 v{d+2}, 49152, v{d}", f"v_add_u32 v{d+4}, {2*49152}, v{d}"]
    return o

def base_R(dst, t):
    o = [f"v_and_b32 v{t}, 15, {L}", f"v_lshrrev_b32 v{t+1}, 1, v{t}", f"v_lshlrev_b32 v{t}, 7, v{t}"]
    for h in range(2):
        d = dst + h
        o += [f"v_lshrrev_b32 v{d}, 4, {L}", f"v_add_u32 v{d}, {4*h}, v{d}", f"v_xor_b32 v{d}, v{d}, v{t+1}", f"v_lshlrev_b32 v{d}, 4, v{d}",
              f"v_add_u32 v{d}, v{d}, v{t}", f"v_add_u32 v{d+2}, 49152, v{d}", f"v_add_u32 v{d+4}, {2*49152}, v{d}"]
    return o

def base_C(dst, t):
    return [f"v_and_b32 v{t}, 15, {L}", f"v_mul_u32_u24 v{t+1}, 96, v{t}", f"v_lshrrev_b32 v{t}, 3, v{t}", f"v_lshrrev_b32 v{t+2}, 5, {L}",
            f"v_xor_b32 v{t}, v{t}, v{t+2}", f"v_lshlrev_b32 v{t}, 4, v{t}", f"v_add_u32 v{t}, v{t}, v{t+1}",
            f"v_bfe_u32 v{t+1}, {L}, 4, 1", f"v_lshlrev_b32 v{t+1}, 3, v{t+1}", f"v_add_u32 v{dst}, v{t}, v{t+1}",
            f"v_add_u32 v{dst+1}, 49152, v{dst}", f"v_add_u32 v{dst+2}, {2*49152}, v{dst}"]


def cmul_acc(dre, dim, are, aim, sre, sim):
    return [f"v_fmac_f32 v{dre}, v{are}, v{sre}", f"v_fmac_f32 v{dim}, v{are}, v{sim}",
            f"v_fma_f32 v{dre}, -v{aim}, v{sim}, v{dre}", f"v_fmac_f32 v{dim}, v{aim}, v{sre}"]


def build_stages():
    stages = []
    tr = "ds_read_b64_tr_b16"
    for st in range(5):
        units = []
        for ksl in range(4 if st < 4 else 2):
            ks = 4 * st + ksl
            line, half = ksl >> 1, ksl & 1
            for b in range(3):
                for mat in range(2):
                    off = (2 * mat + line) * 6144 + b * 2048
                    acc = [xb(b, mat, n) for n in range(2)]
                    units.append(dict(reads=[("ds_read_b128", 4, P2 + half, off, "S2")],
                                      mf=[(vr(acc[n]), xfrag(ks, n), None, vr(acc[n]) if ks else "0") for n in range(2)], swap=True))
            units.append(dict(reads=[("ds_read_b128", 4, P2 + 6, ks * 64, "abs")],
                              mf=[(vr(LG + 4 * n), xfrag(ks, n), None, vr(LG + 4 * n) if ks else "0") for n in range(2)], swap=True))
        pre = [] if st == 0 else [f"s_add_u32 s{sOA}, s{sOA}, 256"]
        stages.append(Stage("B", units, [(D1 + j, S_B, sOA) for j in range(6)], sW6, pre))
    for c in range(4):
        for st in range(6):
            units = []
            for ksl in range(3):
                ks = 3 * st + ksl
                for mat in range(2):
                    for mt in range(4):
                        acc = ACC[c & 1] + (mat * 4 + mt) * 8
                        off = mat * 12288 + ksl * 4096
                        units.append(dict(reads=[(tr, 2, P1 + mt, off, "S4"), (tr, 2, P1 + mt, off + 512, "S4")],
                                          mf=[(vr(acc + 4 * n), None, xfrag(ks, n), vr(acc + 4 * n) if ks else "0") for n in range(2)], swap=False))
            pre = [f"s_add_u32 s{sOA}, s{sW1F}, {128*c}"] if st == 0 else [f"s_add_u32 s{sOA}, s{sOA}, {96*9216}"]
            stages.append(Stage("W1", units, [(D2 + j, S_W1, sOA) for j in range(6)], sW6, pre))
    for st in range(3):
        units = []
        for ksl in range(6):
            ks = 6 * st + ksl
            for mat in range(2):
                for mt in range(2):
                    acc = ACC[0] + (mat * 4 + mt) * 8
                    off = mat * 12288 + ksl * 2048
                    units.append(dict(reads=[(tr, 2, P2 + mt, off, "S2"), (tr, 2, P2 + mt, off + 256, "S2")],
                                      mf=[(vr(acc + 4 * n), None, xfrag(ks, n), vr(acc + 4 * n) if ks else "0") for n in range(2)], swap=False))
        pre = [f"s_mov_b32 s{sOA}, s{sW1H}"] if st == 0 else [f"s_add_u32 s{sOA}, s{sOA}, {192*9216}"]
        stages.append(Stage("W1h", units, [(D1 + j, S_W1, sOA) for j in range(6)], sW6, pre))
    hfrag = lambda K, n: ar(AH + 8 * K + 4 * n)
    sfrag = lambda b, n: vr(xb(b, 0, n))
    def wd_units(Ks, lines, buf, koff):
        units = []
        for K in Ks:
            for line in range(lines):
                for mt in range(4):
                    acc = buf + (line * 4 + mt) * 8
                    off = line * 12288 + (K - koff) * 4096
                    units.append(dict(reads=[(tr, 2, P1 + mt, off, "S4"), (tr, 2, P1 + mt, off + 2048, "S4")],
                                      mf=[(vr(acc + 4 * n), None, hfrag(K, n), vr(acc + 4 * n) if K else "0") for n in range(2)], swap=False))
        return units
    def c_units(nm, buf, imoff):
        units = []
        for b in range(3):
            for m in range(nm):
                acc = buf + m * 8
                off = m * 1536 + 32 * b
                units.append(dict(reads=[("ds_read_b64", 2, P2 + 2, off, "S1"), ("ds_read_b64", 2, P2 + 2, off + imoff, "S1")],
                                  mf=[(vr(acc + 4 * n), None, sfrag(b, n), vr(acc + 4 * n)) for n in range(2)], swap=False))
        return units
    for p in range(5):
        buf = ACC[(p + 1) & 1]
        col = 256 * p
        if p < 4:
            for st in range(3):
                units = wd_units(range(3 * st, 3 * st + 3), 2, buf, 3 * st)
                if st < 2:
                    pre = [f"s_add_u32 s{sOA}, s{sWD2}, {col + st*96*1152}"]
                    pcs = [(D2 + j, S_WD, sOA) for j in range(6)]
                else:
                    pre = [f"s_add_u32 s{sOA}, s{sWD2}, {col + 2*96*1152}", f"s_add_u32 s{sOB}, s{sWD2B}, {col}"]
                    pcs = [(D2 + j, S_WD, sOA if j < 2 else sOB) for j in range(6)]
                stages.append(Stage("Wd", units, pcs, sW6, pre))
            stages.append(Stage("C", c_units(8, buf, 12288), [(D1 + j, S_C, sOA) for j in range(6)], sW6, [f"s_add_u32 s{sOA}, s{sC2}, {128*p*1152}"]))
        else:
            stages.append(Stage("Wd1a", wd_units(range(6), 1, buf, 0), [(D2 + j, S_WD, sOA) for j in range(6)], sW6, [f"s_add_u32 s{sOA}, s{sWD1}, {col}"]))
            stages.append(Stage("Wd1b", wd_units(range(6, 9), 1, buf, 6), [(D2 + j, S_WD, sWB0 + j) for j in range(3)], sW3, []))
            stages.append(Stage("C1", c_units(4, buf, 6144), [(D1 + j, S_C, sOA) for j in range(3)], sW3, [f"s_add_u32 s{sOA}, s{sC1}, {128*4*1152}"]))
    return stages


def build_main(opt):
    pro = []
    A = lambda *x: pro.extend(expand(list(x)))
    stages = build_stages()
    NST = len(stages)
    A("s_cmp_ge_u32 s2, 256", "s_cbranch_scc1 L_main_end")
    A("s_load_dwordx16 s[64:79], s[0:1], 0", "s_load_dwordx16 s[80:95], s[0:1], 64", "s_load_dwordx2 s[96:97], s[0:1], 128")
    A(f"v_and_b32 {L}, 63, v0", "v_lshrrev_b32 v1, 6, v0")
    A(f"s_and_b32 s{sT0}, s2, 7", f"s_lshr_b32 s{sT1}, s2, 3")
    A(f"v_readfirstlane_b32 s{sW}, v1")
    A(f"s_lshl_b32 s{sSLICE}, s{sT0}, 1", f"s_and_b32 s{sT0}, s{sT1}, 1", f"s_add_u32 s{sSLICE}, s{sSLICE}, s{sT0}", f"s_lshr_b32 s{sTILE}, s{sT1}, 1")
    A(f"s_mul_i32 s{sC0}, s{sSLICE}, 9", f"s_lshr_b32 s{sC0}, s{sC0}, 1", f"s_lshl_b32 s{sC0}, s{sC0}, 3")
    A(f"v_lshlrev_b32 v{VST}, 4, {L}", f"v_min_u32 v8, 47, {L}", f"v_lshlrev_b32 v{VCH}, 3, v8")
    A(f"s_mul_i32 s{sW6}, s{sW}, 6144", f"s_mul_i32 s{sW3}, s{sW}, 3072")
    A(voff_B(D1, 10))
    A(f"s_and_b32 s{sT3}, s{sW}, 1")
    A(f"s_mul_i32 s{sOA}, s{sC0}, 1152", f"s_lshl_b32 s{sT0}, s{sT3}, 7", f"s_add_u32 s{sOA}, s{sOA}, s{sT0}")
    A(f"s_lshl_b32 s{sT0}, s{sTILE}, 7", f"s_lshl_b32 s{sT1}, s{sW}, 5", f"s_add_u32 s{sT0}, s{sT0}, s{sT1}", f"s_mul_i32 s{sXO}, s{sT0}, 1152")
    A(f"s_lshl_b32 s{sXL}, s{sW}, 12", f"s_add_u32 s{sXL}, s{sXL}, {XBASE}")
    A(f"v_add_u32 v9, s{sC0}, v8", "v_lshlrev_b32 v9, 1, v9")
    if opt.get("ts"): A("s_memtime s[100:101]", "s_waitcnt lgkmcnt(0)", "v_mov_b32 v255, 0", "v_writelane_b32 v255, s100, 0", "s_memrealtime s[100:101]")
    A("s_waitcnt lgkmcnt(0)")
    if opt.get("ts"): A("v_writelane_b32 v255, s100, 61")
    A(srd(S_X, "s64", "s65", 2359296))
    A(f"s_cmp_lt_u32 s{sW}, 2")
    A(f"s_cselect_b32 s{S_B}, s70, s72", f"s_cselect_b32 s{S_B+1}, s71, s73", f"s_mov_b32 s{S_B+2}, 663552", f"s_mov_b32 s{S_B+3}, 0x20000")

    def dma_items(k):
        st = stages[k]
        items = [[x] for x in st.pre] + [[f"s_add_u32 m0, s{st.wq}, {slot_base(k)}"]]
        for j, (v, s_, so) in enumerate(st.pieces):
            if j == 4: items.append([f"s_add_u32 m0, s{st.wq}, {slot_base(k) + 4096}"])
            imm = 1024 * (j % 4)
            items.append([I(f"buffer_load_dwordx4 v{v}, {sr(s_)}, s{so} offen" + (f" offset:{imm}" if imm else "") + " lds", tag=f"st{k}")])
        return items
    def xdma(j):
        items = [[f"s_add_u32 s{sOB}, s{sXO}, {128*j}"], [f"s_add_u32 m0, s{sXL}, {16384*XPOS[j]}"]]
        for g in range(4):
            items.append([I(f"buffer_load_dwordx4 v{D1+g}, {sr(S_X)}, s{sOB} offen" + (f" offset:{1024*g}" if g else "") + " lds", tag=f"x{j}")])
        return items
    XV = TA
    def xreads(j):
        return [I(f"ds_read_b128 {xfrag(2*j+h, n)}, v{XV+h} offset:{16384*XPOS[j] + 2048*n}", tag=f"xr{j}") for h in range(2) for n in range(2)]
    for it in dma_items(0): A(it)
    for j in range(2):
        for it in xdma(j): A(it)
    PLRE, PLIM, PLDT = T, T + 1, T + 2
    A(srd(S_P, "s66", "s67", 1152)); A(f"buffer_load_ushort v{PLRE}, v9, {sr(S_P)}, 0 offen")
    A(srd(56, "s68", "s69", 1152)); A(f"buffer_load_ushort v{PLIM}, v9, s[56:59], 0 offen")
    A(srd(60, "s78", "s79", 1152)); A(f"buffer_load_ushort v{PLDT}, v9, s[60:63], 0 offen")
    A(srd(S_P, "s90", "s91", 1152))
    A(f"s_add_u32 m0, s{sW3}, {PRIV}")
    A(I(f"buffer_load_dwordx4 v{VST}, {sr(S_P)}, 0 offen lds", tag="gw"))
    A(I(f"buffer_load_dwordx4 v{VST}, {sr(S_P)}, 0 offen offset:1024 lds", tag="gw"))
    A(f"s_cmp_lt_u32 s{sW}, 2")
    A(f"s_cselect_b32 s{S_W1}, s84, s86", f"s_cselect_b32 s{S_W1+1}, s85, s87", f"s_mov_b32 s{S_W1+2}, 5308416", f"s_mov_b32 s{S_W1+3}, 0x20000")
    A(f"s_cselect_b32 s{S_C}, s74, s76", f"s_cselect_b32 s{S_C+1}, s75, s77", f"s_mov_b32 s{S_C+2}, 663552", f"s_mov_b32 s{S_C+3}, 0x20000")
    A(srd(S_WD, "s88", "s89", 5308416))
    if WSOFF: A(f"s_add_u32 s96, s96, {WSOFF}", "s_addc_u32 s97, s97, 0")
    A(srd(S_WS, "s96", "s97", WS_END + (1 << 18) * bool(opt.get("ts"))))
    A(f"s_mul_i32 s{sT0}, s{sSLICE}, 6144", f"s_add_u32 s{sT0}, s{sT0}, {WS_S}", f"s_add_u32 s{S_S}, s96, s{sT0}", f"s_addc_u32 s{S_S+1}, s97, 0",
      f"s_mov_b32 s{S_S+2}, 6144", f"s_mov_b32 s{S_S+3}, 0x20000")
    A(srd(S_DBG, "s94", "s95", 256))
    A(base_R(P2, 12))
    A(f"v_add_u32 v{XV}, s{sXL}, v{P2}", f"v_add_u32 v{XV+1}, s{sXL}, v{P2+1}")
    A(f"v_lshrrev_b32 v3, 4, {L}", f"v_lshlrev_b32 v{P2+6}, 4, v3", f"v_add_u32 v{P2+6}, s{sW3}, v{P2+6}", f"v_add_u32 v{P2+6}, {PRIV}, v{P2+6}")

    setup = []
    B_ = lambda *x: setup.extend(list(x))
    B_([f"s_mul_i32 s{sT0}, s{sSLICE}, 576", f"s_and_b32 s{sT1}, s{sSLICE}, 1", f"s_lshl_b32 s{sT1}, s{sT1}, 6", f"s_add_u32 s{sFULL}, s{sT0}, s{sT1}",
        f"s_cmp_eq_u32 s{sT1}, 0", f"s_cselect_b32 s{sT1}, 512, 0", f"s_add_u32 s{sHALF}, s{sT0}, s{sT1}"])
    B_(f"s_mul_i32 s{sT1}, s{sT3}, {48*9216}", f"s_add_u32 s{sW1F}, s{sFULL}, s{sT1}", f"s_mul_i32 s{sT1}, s{sT3}, {96*9216}", f"s_add_u32 s{sW1H}, s{sHALF}, s{sT1}")
    B_(*voff_W1full(D2, TA + 2))
    nW1 = len(setup)
    B_(*base_T128(P1, 8, T + 20))
    nP1 = len(setup)
    B_(f"s_mul_i32 s{sFULL}, s{sFULL}, 576", f"s_mul_i32 s{sHALF}, s{sHALF}, 576")
    B_(f"s_mul_i32 s{sT1}, s{sT3}, {48*1152}", f"s_lshr_b32 s{sT2}, s{sW}, 1", f"s_lshl_b32 s{sT2}, s{sT2}, 7")
    B_(f"s_add_u32 s{sWD2}, s{sFULL}, s{sT1}", f"s_add_u32 s{sWD2}, s{sWD2}, s{sT2}")
    B_(f"s_add_u32 s{sWD2B}, s{sWD2}, {192*1152}", f"s_sub_u32 s{sT1}, s{sHALF}, {16*1152}", f"s_add_u32 s{sT1}, s{sT1}, s{sT2}",
       [f"s_cmp_eq_u32 s{sT3}, 0", f"s_cselect_b32 s{sWD2B}, s{sWD2B}, s{sT1}"])
    B_(f"s_mul_i32 s{sT1}, s{sW}, {48*1152}", f"s_add_u32 s{sWD1}, s{sFULL}, s{sT1}")
    for j in range(3):
        B_(f"s_mul_i32 s{sT0}, s{sW}, 24", f"s_add_u32 s{sT1}, s{sT0}, {8*j}",
           f"s_add_u32 s{sT2}, s{sT0}, 192", f"s_mul_i32 s{sT2}, s{sT2}, 1152", f"s_add_u32 s{sT2}, s{sT2}, s{sFULL}",
           f"s_sub_u32 s{sT0}, s{sT0}, 64", f"s_mul_i32 s{sT0}, s{sT0}, 1152", f"s_add_u32 s{sT0}, s{sT0}, s{sHALF}",
           [f"s_cmp_lt_u32 s{sT1}, 64", f"s_cselect_b32 s{sWB0+j}, s{sT2}, s{sT0}"], f"s_add_u32 s{sWB0+j}, s{sWB0+j}, 1024")
    B_(f"s_mul_i32 s{sT1}, s{sT3}, {64*1152}", f"s_lshl_b32 s{sT2}, s{sC0}, 1", f"s_add_u32 s{sC2}, s{sT1}, s{sT2}",
       f"s_mul_i32 s{sT1}, s{sT3}, {32*1152}", f"s_add_u32 s{sC1}, s{sT1}, s{sT2}")
    B_(f"s_lshl_b32 s{sPST}, s{sSLICE}, 4", f"s_add_u32 s{sPST}, s{sPST}, s{sTILE}", f"s_lshl_b32 s{sPST}, s{sPST}, 2", f"s_add_u32 s{sPST}, s{sPST}, s{sW}",
       f"s_mul_i32 s{sPST}, s{sPST}, {36*1024}")
    B_(f"s_bfm_b64 s[{sMASK}:{sMASK+1}], s{sTILE}, 0", f"s_not_b64 s[{sMASK}:{sMASK+1}], s[{sMASK}:{sMASK+1}]")
    for k, sm in ((1, sM1), (2, sM2), (3, sM3)):
        B_([f"s_cmp_ge_u32 s{sW}, {k}", f"s_cselect_b32 s{sm}, 1.0, 0"])
    LRE, LIM, DT, E1, R1, M_, A_ = T + 3, T + 4, T + 5, T + 6, T + 7, T + 20, T + 21
    TB = T + 8
    CH = T + 22
    B_(f"v_lshlrev_b32 v{LRE}, 16, v{PLRE}", f"v_lshlrev_b32 v{LIM}, 16, v{PLIM}", f"v_lshlrev_b32 v{DT}, 16, v{PLDT}")
    B_(f"v_mul_f32 v{DT}, {hex(LOG2E)}, v{DT}", f"v_exp_f32 v{DT}, v{DT}", f"v_lshrrev_b32 v{CH}, 3, v{VCH}",
       f"v_cvt_pk_bf16_f32 v{DT}, v{DT}, v{DT}", f"v_lshlrev_b32 v{DT}, 16, v{DT}")
    B_(f"v_mul_f32 v{E1}, v{DT}, v{LRE}", f"v_mul_f32 v{R1}, v{DT}, v{LIM}", f"v_mul_f32 v{E1}, {hex(LOG2E)}, v{E1}", f"v_mul_f32 v{R1}, {hex(INV2PI)}, v{R1}")
    def cpow(dre, dim, nsrc):
        return [f"v_mul_f32 v{M_}, {nsrc}, v{E1}", f"v_mul_f32 v{A_}, {nsrc}, v{R1}", f"v_exp_f32 v{M_}, v{M_}", f"v_fract_f32 v{A_}, v{A_}",
                f"v_cos_f32 v{dre}, v{A_}", f"v_sin_f32 v{dim}, v{A_}", f"v_mul_f32 v{dre}, v{M_}, v{dre}", f"v_mul_f32 v{dim}, v{M_}, v{dim}"]
    TB2 = T + 16
    B_(*cpow(TB, TB + 1, "1.0")); B_(*cpow(TB + 2, TB + 3, "2.0"))
    B_(f"s_mov_b32 s{sT0}, 0x40400000"); B_(*cpow(TB + 4, TB + 5, f"s{sT0}"))
    B_(*cpow(TB + 6, TB + 7, "4.0"))
    B_(f"v_mov_b32 v{A4}, v{TB+6}", f"v_mov_b32 v{A4+1}, v{TB+7}")
    B_(f"s_mov_b32 s{sT0}, 0x42000000"); B_(*cpow(A32, A32 + 1, f"s{sT0}"))
    B_(f"s_mov_b32 s{sT0}, 0x43000000"); B_(*cpow(A128, A128 + 1, f"s{sT0}"))
    B_(f"s_lshl_b32 s{sT0}, s{sW}, 5", f"v_cvt_f32_u32 v{T+23}, s{sT0}"); B_(*cpow(PW, PW + 1, f"v{T+23}"))
    KC = T
    B_(f"v_add_f32 v{M_}, -1.0, v{TB}", f"v_mul_f32 v{A_}, v{LRE}, v{LRE}", f"v_fmac_f32 v{A_}, v{LIM}, v{LIM}", f"v_rcp_f32 v{A_}, v{A_}",
       f"v_mul_f32 v{KC}, v{M_}, v{LRE}", f"v_fmac_f32 v{KC}, v{TB+1}, v{LIM}",
       f"v_mul_f32 v{KC+1}, v{TB+1}, v{LRE}", f"v_fma_f32 v{KC+1}, -v{M_}, v{LIM}, v{KC+1}",
       f"v_mul_f32 v{KC}, v{KC}, v{A_}", f"v_mul_f32 v{KC+1}, v{KC+1}, v{A_}")
    B_(f"s_and_b32 s{sT0}, s{sSLICE}, 1", f"s_lshl_b32 s{sT0}, s{sT0}, 3", f"s_add_u32 s{sT0}, s{sT0}, 32")
    B_(f"v_cmp_gt_u32 vcc, s{sT0}, v{CH}", f"v_mul_u32_u24 v{CH}, 48, v{CH}", f"v_add_u32 v{CH}, {TAB}, v{CH}",
       f"v_cndmask_b32 v{KC}, 0, v{KC}, vcc", f"v_cndmask_b32 v{KC+1}, 0, v{KC+1}, vcc")
    B_(f"v_mov_b32 v{KC+2}, 0", f"v_mov_b32 v{KC+3}, 0")
    B_(f"ds_write_b128 v{CH}, {vr(TB)}", f"ds_write_b128 v{CH}, {vr(TB+4)} offset:16", f"ds_write_b128 v{CH}, {vr(KC)} offset:32")

    units, ustage, u0 = [], [], []
    for k, st in enumerate(stages):
        u0.append(len(units))
        for un in st.units: units.append(un); ustage.append(k)
    NU = len(units); u0.append(NU)

    def read_ins(u):
        un = units[u]; k = ustage[u]
        o = []; d = afrag(u)
        for (op, nreg, base, off, mode) in un["reads"]:
            if mode == "abs": b, o2 = base, off
            else: b, o2 = base + int(mode[1:]) * setof(k), off + slot_rel(k)
            assert o2 < 65536
            o.append(I(f"{op} {ar(d, nreg)}, v{b} offset:{o2}")); d += nreg
        return o

    DEPTH = int(opt.get('depth', 6)); WE = int(opt.get('we', 4))
    def stamp(i):
        return [I("s_memtime s[100:101]"), I("s_waitcnt lgkmcnt(0)"), I(f"v_writelane_b32 v255, s100, {i}")]
    XR_AT = {2: ('xr4', 'xr5'), 3: ('xr7', 'xr6'), 4: ('xr8',)}
    slots = []; bar_mf = {}; extra_pre = {}
    for u in range(NU):
        un = units[u]; fr = ar(afrag(u))
        rd = read_ins(u + DEPTH) if u + DEPTH < NU else []
        pre = []
        kn = ustage[u + DEPTH] if u + DEPTH < NU else None
        if kn is not None and u + DEPTH == u0[kn]:
            pre += [WaitTag(f"st{kn}", "wtot", *XR_AT.get(kn, ())), I("s_barrier")]
            if opt.get("ts") == "1" or (opt.get("ts") == "2" and kn in (1, 2, 3, 4, 5, 11, 17, 23, 29, 32, 36, 40, 44, 48)): pre += stamp(kn + 1)
            bar_mf[kn] = 2 * u
        if u % WE == 0:
            rg = []
            for x in range(u, min(u + WE, NU)): rg += regs_of(ar(afrag(x)))
            pre += [WaitRegs(rg)]
        for n in range(2):
            d, a, b, c = un["mf"][n]
            txt = mf(d, a, fr, c) if un["swap"] else mf(d, fr, b, c)
            slots.append(Slot(txt, pre if n == 0 else [], rd[n:n + 1] if n < len(rd) else []))
    mend = lambda k: 2 * u0[k + 1] - 1
    mbeg = lambda k: 2 * u0[k]
    if opt.get("ts"): A(stamp(60))
    A(WaitTag("x0")); A(xreads(0)); A(WaitTag("x1")); A(xreads(1))
    A(WaitTag("st0", "gw"), "s_barrier")
    if opt.get("ts"): A(stamp(1))
    for u in range(DEPTH): A(read_ins(u))

    kF = lambda c: 5 + 6 * c
    kH = 29; kG = 32
    kP = lambda p: kG + 4 * p
    mXB = mend(4)
    sD = Stream("dma", 0)
    fr_of = lambda j: [r for h in range(2) for n in range(2) for r in regs_of(xfrag(2*j+h, n))]
    def xd(j, e, dl, after=None):
        its = xdma(j)
        if after is not None: sD.add([WaitRegs(fr_of(after))], e, dl)
        for it in its: sD.add(it, e, dl)
    def xr(j, e, dl):
        sD.add([WaitTag(f"x{j}")], e, dl)
        for r_ in xreads(j): sD.add(r_, e, dl)
    xd(2, 0, 4); xd(3, 0, 8)
    for it in dma_items(1): sD.add(it, 0, 12)
    xd(4, 2, 16); xd(5, 2, 20)
    for it in dma_items(2): sD.add(it, 0, 26)
    xr(2, 26, 34); xr(3, 26, 40)
    xd(6, 36, 48, after=2); xd(7, 36, 54, after=3)
    xr(4, 56, bar_mf[2] - 8); xr(5, 56, bar_mf[2] - 2)
    for it in dma_items(3): sD.add(it, bar_mf[2], bar_mf[2] + 12)
    xr(6, bar_mf[2] + 12, bar_mf[2] + 24)
    xd(8, bar_mf[2] + 20, bar_mf[2] + 34, after=6)
    xr(7, bar_mf[2] + 24, bar_mf[3] - 2)
    for it in dma_items(4): sD.add(it, bar_mf[3], bar_mf[3] + 12)
    xr(8, bar_mf[3] + 30, bar_mf[4] - 2)
    for it in dma_items(5): sD.add(it, bar_mf[4], bar_mf[4] + 12)
    xdone = bar_mf[4]
    prev_user = {}
    e_prev = bar_mf[4] + 12; d_prev = e_prev
    for k in range(NST):
        sl_ = slot_of(k)
        if k >= 6:
            e_ = bar_mf[prev_user[sl_] + 2]
            e_ = max(e_, e_prev)
            d_ = min(max(e_ + 44, d_prev + 20), bar_mf[k] - 2)
            for it in dma_items(k): sD.add(it, e_, d_)
            e_prev, d_prev = e_, d_
        prev_user[sl_] = k
    sP = Stream("setup", 1)
    for i_, x in enumerate(setup):
        sP.add(x, 0, bar_mf[4] if i_ < nW1 else (bar_mf[5] if i_ < nP1 else mXB))
    sA = Stream("addr", 1)
    sA.extend(voff_W1half(D1, TA), max(mXB + 1, xdone + 1), bar_mf[kH - 4])
    sA.extend(base_T64(P2, TA), mXB + 1, bar_mf[kH])
    sA.extend(voff_Wd(D2, TA), bar_mf[28 - 3], bar_mf[kG - 4])
    sA.extend(voff_C(D1, TA), bar_mf[31 - 3], bar_mf[kG + 3 - 4])
    sA.extend(base_T128(P1, 4, TA), bar_mf[kH] + 8, bar_mf[kG])
    sA.extend(base_C(P2 + 2, TA), bar_mf[kG] + 8, bar_mf[kG + 3])

    sE = Stream("epi", 2)
    def ffn_epi(c, nblk, earliest, deadline):
        buf = ACC[c & 1]
        for mt in range(nblk):
            K = 2 * c + (mt >> 1); half = mt & 1
            for n in range(2):
                g = buf + mt * 8 + 4 * n; u_ = buf + (4 + mt) * 8 + 4 * n
                o = []
                for r in range(4): o += [f"v_max_f32 v{g+r}, 0, v{g+r}", f"v_mul_f32 v{u_+r}, v{SF+n}, v{u_+r}"]
                for r in range(4): o += [f"v_mul_f32 v{g+r}, v{g+r}, v{u_+r}"]
                o += [f"v_cvt_pk_bf16_f32 v{u_}, v{g}, v{g+1}", f"v_cvt_pk_bf16_f32 v{u_+1}, v{g+2}, v{g+3}"]
                h = AH + 8 * K + 4 * n + 2 * half
                o += [f"v_accvgpr_write_b32 a{h}, v{u_}", f"v_accvgpr_write_b32 a{h+1}, v{u_+1}"]
                sE.extend(o, earliest, deadline)
    for c in range(4):
        nxt = mend(kF(c) + 5)
        dl = mbeg(kF(c + 2)) if c < 2 else (mbeg(kH) if c == 2 else mbeg(kP(0)))
        ffn_epi(c, 4, nxt + 4, dl)
    ffn_epi(4, 2, mend(kH + 2) + 4, mbeg(kP(0) + 2) + 2 * 16)
    for p in range(5):
        buf = ACC[(p + 1) & 1]
        nm = 8 if p < 4 else 4
        last = mend(kP(p) + 3) if p < 4 else mend(NST - 1)
        dl = mbeg(kP(p + 2)) if p < 3 else None
        for m in range(nm):
            a = buf + m * 8
            o = [f"v_cvt_pk_bf16_f32 v{a}, v{a}, v{a+1}", f"v_cvt_pk_bf16_f32 v{a+1}, v{a+2}, v{a+3}",
                 f"v_cvt_pk_bf16_f32 v{a+2}, v{a+4}, v{a+5}", f"v_cvt_pk_bf16_f32 v{a+3}, v{a+6}, v{a+7}"]
            sE.extend(o, last + 4, dl)
            imm = 1024 * (m % 4)
            sE.add(f"buffer_store_dwordx4 {vr(a)}, v{VST}, {sr(S_WS)}, s{sPST} offen" + (f" offset:{imm}" if imm else "") + opt.get("pst", ""), last + 4, dl)
            if m % 4 == 3: sE.add(f"s_add_u32 s{sPST}, s{sPST}, 4096", last + 4, dl)

    sS = Stream("ssm", 3)
    e = mXB + 4
    add = lambda x, earliest=None, deadline=None: sS.add(x, e if earliest is None else earliest, deadline)
    def adds(lst, **kw):
        for x in lst: add(x, **kw)
    dlG = mend(kF(0) + 5)
    G0, G1, Z = T, T + 1, T + 2
    adds([f"v_lshrrev_b32 v{G0}, 4, {L}", f"v_lshlrev_b32 v{G0}, 4, v{G0}", f"v_add_u32 v{G0}, s{sW3}, v{G0}", f"v_add_u32 v{G0}, {PRIV}, v{G0}"])
    for n in range(2): add(f"ds_write_b128 v{G0}, {vr(LG+4*n)} offset:{64*n}")
    adds([f"v_and_b32 v{G1}, 31, {L}", f"v_lshlrev_b32 v{G1}, 2, v{G1}", f"v_add_u32 v{G1}, s{sW3}, v{G1}", f"v_add_u32 v{G1}, {PRIV}, v{G1}",
          f"ds_read_b32 v{Z}, v{G1}"])
    TA1 = T + 8
    adds([f"v_and_b32 v{VT}, 15, {L}", f"v_mul_u32_u24 v{VT}, 48, v{VT}", f"v_add_u32 v{VT}, {TAB}, v{VT}"])
    for b in range(3): add(f"ds_read_b64 {vr(TA1+2*b, 2)}, v{VT} offset:{b*768}")
    adds([f"v_cvt_pk_bf16_f32 v{Z}, v{Z}, v{Z}", f"v_lshlrev_b32 v{Z}, 16, v{Z}", f"v_mul_f32 v{Z}, {hex(LOG2E ^ 0x80000000)}, v{Z}", f"v_exp_f32 v{Z}, v{Z}",
          f"v_lshrrev_b32 v{VE}, 4, {L}",
          f"v_add_f32 v{Z}, 1.0, v{Z}", f"v_rcp_f32 v{Z}, v{Z}", f"v_mul_u32_u24 v{VE}, 384, v{VE}",
          f"v_cvt_pk_bf16_f32 v{Z}, v{Z}, v{Z}", f"v_lshlrev_b32 v{Z}, 16, v{Z}",
          f"v_sub_f32 v{T+3}, 1.0, v{Z}", f"v_cvt_pk_bf16_f32 v{T+3}, v{T+3}, v{T+3}", f"v_lshlrev_b32 v{T+3}, 16, v{T+3}", f"v_add_f32 v{T+4}, v{Z}, v{Z}",
          f"ds_write_b32 v{G1}, v{T+3} offset:128", f"ds_write_b32 v{G1}, v{T+4} offset:256"])
    add([f"s_lshl_b32 s{sT0}, s{sTILE}, 7", f"s_lshl_b32 s{sT1}, s{sW}, 5", f"s_add_u32 s{sT0}, s{sT0}, s{sT1}", f"s_lshl_b32 s{sT0}, s{sT0}, 2",
         f"s_add_u32 s{sT0}, s{sT0}, {WS_G}", f"s_cmp_eq_u32 s{sSLICE}, 0", f"s_cselect_b32 s{sT1}, 32, 0"])
    adds([f"v_lshlrev_b32 v{T+5}, 2, {L}", f"v_cmp_gt_u32 vcc, s{sT1}, {L}", f"v_mov_b32 v{T+6}, {hex(OOB)}", f"v_and_b32 v{T+7}, 15, {L}",
          f"v_cndmask_b32 v{T+5}, v{T+6}, v{T+5}, vcc", f"buffer_store_dword v{Z}, v{T+5}, {sr(S_WS)}, s{sT0} offen",
          f"v_lshlrev_b32 v{T+7}, 2, v{T+7}", f"v_add_u32 v{T+7}, s{sW3}, v{T+7}", f"v_add_u32 v{T+7}, {PRIV}, v{T+7}"])
    for n in range(2): add(f"ds_read_b32 v{SF+n}, v{T+7} offset:{128+64*n}")
    for n in range(2): add(f"ds_read_b128 {vr(LG+4*n)}, v{G0} offset:{256+64*n}")
    adds([f"v_and_b32 v{VE+1}, 15, {L}", f"v_lshlrev_b32 v{VE+1}, 3, v{VE+1}", f"v_add_u32 v{VE}, v{VE}, v{VE+1}", f"v_add_u32 v{VE}, s{sW3}, v{VE}",
          f"v_add_u32 v{VE}, {PRIV}, v{VE}", f"v_add_u32 v{VE+1}, 1536, v{VE}"])
    add(WaitRegs([f"v{SF}", f"v{SF+1}"] + regs_of(vr(LG, 8))), deadline=dlG)
    for r in range(1, 4):
        for b in range(3):
            are, aim = TA1 + 2 * b, TA1 + 2 * b + 1
            for n in range(2):
                R, Im = xb(b, 0, n), xb(b, 1, n)
                adds([f"v_fmac_f32 v{R+r}, v{are}, v{R+r-1}", f"v_fmac_f32 v{Im+r}, v{are}, v{Im+r-1}"])
            for n in range(2):
                R, Im = xb(b, 0, n), xb(b, 1, n)
                adds([f"v_fma_f32 v{R+r}, -v{aim}, v{Im+r-1}, v{R+r}", f"v_fmac_f32 v{Im+r}, v{aim}, v{R+r-1}"])
    for b in range(3):
        for n in range(2):
            add(f"ds_write2_b32 v{VE+n}, v{xb(b,0,n)+3}, v{xb(b,1,n)+3} offset0:{32*b} offset1:{32*b+1}")
    adds([f"v_add_u32 v{VP}, s{sW3}, v{VCH}", f"v_add_u32 v{VP}, {PRIV}, v{VP}"])
    for m in range(8): add(f"ds_read_b64 {vr(T+2*m, 2)}, v{VP} offset:{384*m}")
    add([f"s_mul_i32 s{sT0}, s{sW}, 384", f"s_add_u32 s{sT0}, s{sT0}, {WTOT}"]); add(f"v_add_u32 v{TS}, s{sT0}, v{VCH}")
    for m in range(1, 8): adds(cmul_acc(T + 2*m, T + 2*m + 1, A4, A4 + 1, T + 2*m - 2, T + 2*m - 1))
    kWB = kF(1) + 2
    add(I(f"ds_write_b64 v{TS}, {vr(T+14, 2)}", tag="wtot"), deadline=bar_mf[kWB] - 2)
    e = bar_mf[kWB]
    adds([f"v_add_u32 v{TS}, {WTOT}, v{VCH}"])
    for m in range(4): add(f"ds_read_b64 {vr(T+2*m, 2)}, v{TS} offset:{384*m}")
    add([f"s_mul_i32 s{sT0}, s{sTILE}, 384", f"s_cmp_eq_u32 s{sW}, 0", f"s_cselect_b32 s{sT1}, 48, 0"])
    adds([f"v_add_u32 v{TS+1}, s{sT0}, v{VCH}", f"v_cmp_gt_u32 vcc, s{sT1}, {L}", f"v_mov_b32 v{TS+2}, {hex(OOB)}"])
    for m in range(1, 4): adds(cmul_acc(T + 2*m, T + 2*m + 1, A32, A32 + 1, T + 2*m - 2, T + 2*m - 1))
    adds([f"v_cndmask_b32 v{TS+1}, v{TS+2}, v{TS+1}, vcc"])
    add(I(f"buffer_store_dwordx2 {vr(T+6, 2)}, v{TS+1}, {sr(S_S)}, 0 offen sc1", tag="sst"))
    add([f"s_lshl_b32 s{sT0}, s{sSLICE}, 4", f"s_add_u32 s{sT0}, s{sT0}, s{sTILE}", f"s_cmp_eq_u32 s{sW}, 0", f"s_cselect_b32 s{sT1}, 1, 0"])
    adds([f"v_mov_b32 v{TS+1}, s{sT0}", f"v_cmp_gt_u32 vcc, s{sT1}, {L}", f"v_mov_b32 v{TS+3}, 1", f"v_cndmask_b32 v{TS+1}, v{TS+2}, v{TS+1}, vcc"])
    e = bar_mf[kWB + 2]
    add([WaitTag("sst"), I(f"buffer_store_byte v{TS+3}, v{TS+1}, {sr(S_DBG)}, 0 offen sc1")])
    kPoll = kF(2) + 1
    e = bar_mf[kPoll]
    add([f"s_lshl_b32 s{sT0}, s{sSLICE}, 4"]); add(f"v_add_u32 v{TS}, s{sT0}, {L}"); add(f"v_cmp_gt_u32 vcc, 16, {L}"); add(f"v_mov_b32 v{TS+2}, {hex(OOB)}")
    add(f"v_cndmask_b32 v{TS}, v{TS+2}, v{TS}, vcc")
    add(f"buffer_load_ubyte v{TS+1}, v{TS}, {sr(S_DBG)}, 0 offen sc1")
    e = bar_mf[kPoll + 2]
    add([I(f"v_cmp_ne_u32 vcc, 0, v{TS+1}"), I(f"s_or_b64 vcc, vcc, s[{sMASK}:{sMASK+1}]"), I("s_cmp_eq_u64 vcc, -1"), I("s_cbranch_scc0 L_slow_poll"), I("L_back_poll:")])
    add([f"s_mul_i32 s{sT0}, s{sTILE}, 384"]); add(f"v_add_u32 v{TS}, s{sT0}, v{VCH}")
    for idx, k in enumerate(range(15, 7, -1)):
        t_ = TS + 1 + (idx & 1)
        add(f"v_subrev_u32 v{t_}, {k*384}, v{TS}")
        add(f"buffer_load_dwordx2 {vr(T+2*idx, 2)}, v{t_}, {sr(S_S)}, 0 offen sc1")
    e = bar_mf[kPoll + 4]
    CC = TS + 2
    for m in range(1, 8): adds(cmul_acc(T + 2*m, T + 2*m + 1, A128, A128 + 1, T + 2*m - 2, T + 2*m - 1))
    adds([f"v_mov_b32 v{CC}, v{T+14}", f"v_mov_b32 v{CC+1}, v{T+15}"])
    for idx, k in enumerate(range(7, 0, -1)):
        add(f"v_subrev_u32 v{TS+1}, {k*384}, v{TS}")
        add(f"buffer_load_dwordx2 {vr(T+2*idx, 2)}, v{TS+1}, {sr(S_S)}, 0 offen sc1")
    e = bar_mf[kPoll + 6]
    adds(cmul_acc(T, T + 1, A128, A128 + 1, CC, CC + 1))
    for m in range(1, 7): adds(cmul_acc(T + 2*m, T + 2*m + 1, A128, A128 + 1, T + 2*m - 2, T + 2*m - 1))
    adds([f"v_mov_b32 v{CC}, v{T+12}", f"v_mov_b32 v{CC+1}, v{T+13}"])
    for k in (3, 2, 1):
        add([f"s_sub_u32 s{sT0}, s{sW}, {k}", f"s_max_i32 s{sT0}, s{sT0}, 0", f"s_mul_i32 s{sT0}, s{sT0}, 384", f"s_add_u32 s{sT0}, s{sT0}, {WTOT}"])
        add(f"v_add_u32 v{TS}, s{sT0}, v{VCH}")
        add(f"ds_read_b64 {vr(T+2*(3-k), 2)}, v{TS}")
    for k, sm in ((3, sM3), (2, sM2), (1, sM1)):
        j = T + 2 * (3 - k)
        adds([f"v_mul_f32 v{j}, s{sm}, v{j}", f"v_mul_f32 v{j+1}, s{sm}, v{j+1}"])
    adds(cmul_acc(T + 2, T + 3, A32, A32 + 1, T, T + 1)); adds(cmul_acc(T + 4, T + 5, A32, A32 + 1, T + 2, T + 3))
    adds(cmul_acc(T + 4, T + 5, PW, PW + 1, CC, CC + 1))
    adds([f"v_mov_b32 v{CC}, v{T+4}", f"v_mov_b32 v{CC+1}, v{T+5}"])
    for m in range(7): add(f"ds_read_b64 {vr(T+2*m, 2)}, v{VP} offset:{384*m}")
    add(f"ds_write_b64 v{VP}, {vr(CC, 2)}")
    adds(cmul_acc(T, T + 1, A4, A4 + 1, CC, CC + 1))
    add(f"ds_write_b64 v{VP}, {vr(T, 2)} offset:384")
    for m in range(1, 7):
        adds(cmul_acc(T + 2*m, T + 2*m + 1, A4, A4 + 1, T + 2*m - 2, T + 2*m - 1))
        add(f"ds_write_b64 v{VP}, {vr(T+2*m, 2)} offset:{384*(m+1)}")
    VW, VR = TS, TS + 1
    adds([f"v_and_b32 v{VW}, 15, {L}", f"v_lshlrev_b32 v{VW}, 5, v{VW}", f"v_lshrrev_b32 v{VR}, 4, {L}", f"v_lshlrev_b32 v{VR}, 3, v{VR}",
          f"v_add_u32 v{VW}, v{VW}, v{VR}", f"v_add_u32 v{VW}, s{sW3}, v{VW}", f"v_add_u32 v{VW}, {PRIV}, v{VW}",
          f"v_lshlrev_b32 v{VR}, 3, {L}", f"v_add_u32 v{VR}, s{sW3}, v{VR}", f"v_add_u32 v{VR}, {PRIV}, v{VR}"])
    dlS = bar_mf[kP(0) + 3]
    for n in range(2):
        for b in range(3): add(f"ds_read_b64 {vr(T+2*b, 2)}, v{VE+n} offset:{128*b}")
        for b in range(3):
            TBL = T + 6
            adds([f"ds_read_b128 {vr(TBL)}, v{VT} offset:{b*768}", f"ds_read_b128 {vr(TBL+4)}, v{VT} offset:{b*768+16}", f"ds_read_b64 {vr(TBL+8, 2)}, v{VT} offset:{b*768+32}"])
            R, Im = xb(b, 0, n), xb(b, 1, n)
            cre, cim = T + 2 * b, T + 2 * b + 1
            for r in range(4): adds(cmul_acc(R + r, Im + r, TBL + 2*r, TBL + 2*r + 1, cre, cim))
            kr, ki, tt = TBL + 8, TBL + 9, TS + 2
            for r in range(4):
                t_ = tt + (r & 1)
                adds([f"v_mul_f32 v{t_}, v{kr}, v{R+r}", f"v_fma_f32 v{t_}, -v{ki}, v{Im+r}, v{t_}",
                      f"v_mul_f32 v{Im+r}, v{kr}, v{Im+r}", f"v_fmac_f32 v{Im+r}, v{ki}, v{R+r}",
                      f"v_mul_f32 v{R+r}, v{LG+4*n+r}, v{t_}", f"v_mul_f32_e64 v{Im+r}, -v{LG+4*n+r}, v{Im+r}"])
            adds([f"v_cvt_pk_bf16_f32 v{R}, v{R}, v{R+1}", f"v_cvt_pk_bf16_f32 v{R+1}, v{R+2}, v{R+3}",
                  f"v_cvt_pk_bf16_f32 v{Im}, v{Im}, v{Im+1}", f"v_cvt_pk_bf16_f32 v{Im+1}, v{Im+2}, v{Im+3}"])
            so = 1536 * n
            adds([f"ds_write_b64 v{VW}, {vr(R, 2)} offset:{so}", f"ds_write_b64 v{VW}, {vr(Im, 2)} offset:{so+512}",
                  f"ds_read_b64_tr_b16 {vr(R, 2)}, v{VR} offset:{so}", f"ds_read_b64_tr_b16 {vr(R+2, 2)}, v{VR} offset:{so+512}"], deadline=dlS)
    add(WaitRegs([f"v{xb(b,0,n)+r}" for b in range(3) for n in range(2) for r in range(4)]), deadline=dlS)

    sW_ = Stream("warm", 5)
    if opt.get("wpf") is not None:
        fl = opt["wpf"]
        e0 = mbeg(kF(int(opt.get("wpf_at", 0))))
        sW_.add(f"v_lshlrev_b32 v{T+27}, 7, {L}", e0, e0 + 20)
        for j in range(5):
            sW_.add(f"s_add_u32 s{sT4}, s{sPST}, {8192*j}", e0 + 60 * j, e0 + 60 * j + 40)
            sW_.add(f"buffer_load_dword a{248+j}, v{T+27}, {sr(S_WS)}, s{sT4} offen{fl}", e0 + 60 * j, e0 + 60 * j + 40)
    streams = [sD, sP, sA, sE, sS, sW_]
    body, rest, stats = schedule(slots, streams)
    tail = rest
    slow = [I("L_slow_poll:"), I(f"s_mov_b32 s{sT2}, 0"), I("L_slow_poll_loop:"), I("s_sleep 2"),
            I(f"buffer_load_ubyte v{TS+1}, v{TS}, {sr(S_DBG)}, 0 offen sc1"), I("s_waitcnt vmcnt(0)"),
            I(f"v_cmp_ne_u32 vcc, 0, v{TS+1}"), I("s_nop 4"), I(f"s_or_b64 vcc, vcc, s[{sMASK}:{sMASK+1}]"), I("s_cmp_eq_u64 vcc, -1"),
            I("s_cbranch_scc1 L_back_poll"), I(f"s_add_u32 s{sT2}, s{sT2}, 1"), I(f"s_cmp_lt_u32 s{sT2}, 0x40000"),
            I("s_cbranch_scc1 L_slow_poll_loop"), I("s_branch L_back_poll")]
    if opt.get("ts"):
        tail = tail + stamp(58) + [I("s_waitcnt vmcnt(0)")] + stamp(59) + [I("s_memrealtime s[100:101]"), I("s_waitcnt lgkmcnt(0)"), I("v_writelane_b32 v255, s100, 62")]
        tail += expand([f"s_lshl_b32 s{sT0}, s2, 2", f"s_add_u32 s{sT0}, s{sT0}, s{sW}", f"s_lshl_b32 s{sT0}, s{sT0}, 8", f"s_add_u32 s{sT0}, s{sT0}, {WS_END}",
                        f"v_lshlrev_b32 v1, 2, {L}", f"buffer_store_dword v255, v1, {sr(S_WS)}, s{sT0} offen"])
    prog = pro + body + tail
    prog, nw = insert_waits(prog)
    prog, nn = pad_hazards(prog)
    ol = stats.pop("overlog")
    stats["over_by_stage"] = [sum(ol[2*u0[k]:2*u0[k+1]]) for k in range(NST)]
    info = dict(stats, NU=NU, nwait=nw, nnop=nn, ninstr=len(prog), NST=NST, tail=len(tail))
    txt = render(prog) + "\n  s_endpgm\n" + render(slow) + "\nL_main_end:\n  s_endpgm\n"
    return txt, info


def build_reduce(opt):
    o = []
    A = lambda *x: o.extend(expand(list(x)))
    A("s_cmp_ge_u32 s2, 576", "s_cbranch_scc1 L_red_end")
    if opt.get("ts"): A("s_memrealtime s[80:81]")
    A("s_load_dwordx2 s[64:65], s[0:1], 0", "s_load_dwordx2 s[66:67], s[0:1], 64", "s_load_dwordx2 s[68:69], s[0:1], 112", "s_load_dwordx2 s[70:71], s[0:1], 128")
    A("v_lshrrev_b32 v1, 6, v0", "v_and_b32 v2, 63, v0")
    A("v_readfirstlane_b32 s20, v1")
    A("s_lshl_b32 s21, s2, 2", "s_add_u32 s21, s21, s20")
    A("s_mul_i32 s22, s21, 1821", "s_lshr_b32 s22, s22, 16")
    A("s_mul_i32 s23, s22, 36", "s_sub_u32 s23, s21, s23")
    A("s_lshl_b32 s24, s21, 10")
    A("s_lshl_b32 s25, s22, 5")
    A("v_lshlrev_b32 v3, 4, v2", "v_and_b32 v4, 15, v2", "v_lshrrev_b32 v5, 4, v2")
    A("s_waitcnt lgkmcnt(0)")
    if WSOFF: A(f"s_add_u32 s70, s70, {WSOFF}", "s_addc_u32 s71, s71, 0")
    A(srd(4, "s70", "s71", WS_END), srd(8, "s64", "s65", 2359296), srd(12, "s66", "s67", 1152), srd(16, "s68", "s69", 4718592))
    for s in range(16):
        A(f"buffer_load_dwordx4 {vr(32+4*s)}, v3, s[4:7], s24 offen" + opt.get("rld", ""))
        if s < 15: A(f"s_add_u32 s24, s24, {16*4*36*1024}")
    A("s_lshl_b32 s26, s23, 4", "v_lshlrev_b32 v6, 2, v5", "v_add_u32 v6, s26, v6")
    A("v_add_u32 v7, s25, v4")
    A("v_mul_u32_u24 v8, 576, v7", "v_add_u32 v8, v8, v6")
    A("v_lshlrev_b32 v9, 1, v8", "v_lshlrev_b32 v10, 2, v8", "v_lshlrev_b32 v11, 1, v6", "v_lshlrev_b32 v12, 2, v7")
    A("buffer_load_dwordx2 v[14:15], v9, s[8:11], 0 offen")
    A("s_mov_b32 s27, 18432", "buffer_load_dwordx2 v[16:17], v9, s[8:11], s27 offen")
    A("buffer_load_dwordx2 v[18:19], v11, s[12:15], 0 offen")
    A(f"s_mov_b32 s28, {WS_G}", "buffer_load_dword v20, v12, s[4:7], s28 offen", "buffer_load_dword v21, v12, s[4:7], s28 offen offset:64")
    for r in range(8): A(f"v_mov_b32 v{100+r}, 0")
    for s in range(16):
        for j in range(4):
            src = 32 + 4 * s + j
            A(f"v_lshlrev_b32 v22, 16, v{src}", f"v_and_b32 v23, 0xffff0000, v{src}", f"v_add_f32 v{100+2*j}, v{100+2*j}, v22", f"v_add_f32 v{101+2*j}, v{101+2*j}, v23")
    for n in range(2):
        for j in range(2):
            xs, ds = 14 + 2 * n + j, 18 + j
            A(f"v_lshlrev_b32 v22, 16, v{xs}", f"v_and_b32 v23, 0xffff0000, v{xs}", f"v_lshlrev_b32 v24, 16, v{ds}", f"v_and_b32 v25, 0xffff0000, v{ds}",
              "v_mul_f32 v22, v22, v24", "v_mul_f32 v23, v23, v25", "v_cvt_pk_bf16_f32 v22, v22, v23",
              "v_and_b32 v23, 0xffff0000, v22", "v_lshlrev_b32 v22, 16, v22",
              f"v_fmac_f32 v{100+4*n+2*j}, v{20+n}, v22", f"v_fmac_f32 v{101+4*n+2*j}, v{20+n}, v23")
    A("buffer_store_dwordx4 v[100:103], v10, s[16:19], 0 offen")
    A("s_mov_b32 s27, 36864", "buffer_store_dwordx4 v[104:107], v10, s[16:19], s27 offen")
    if opt.get("ts"):
        A("s_waitcnt vmcnt(0)", "s_memrealtime s[82:83]", "s_waitcnt lgkmcnt(0)", "v_mov_b32 v30, s80", "v_mov_b32 v31, s82", "s_lshl_b32 s27, s21, 3",
          f"s_add_u32 s27, s27, {WS_END + (1 << 18)}", "v_mov_b32 v29, 0", "s_mov_b32 s6, 0x7fffffff", "buffer_store_dwordx2 v[30:31], v29, s[4:7], s27 offen")
    prog, nw = insert_waits(o)
    prog, nn = pad_hazards(prog)
    return render(prog) + "\nL_red_end:\n  s_endpgm\n"


HEADER = open("cdna_kernels/" + NAME + ".s.ref").read().split("; Override launch geometry")[0]

def kd(name, vg, acc, sg):
    return f""".p2align 6
.amdhsa_kernel {name}
  .amdhsa_next_free_vgpr {vg}
  .amdhsa_next_free_sgpr {sg}
  .amdhsa_accum_offset {acc}
  .amdhsa_group_segment_fixed_size 0
  .amdhsa_kernarg_size 136
  .amdhsa_user_sgpr_count 2
  .amdhsa_user_sgpr_kernarg_segment_ptr 1
  .amdhsa_system_sgpr_workgroup_id_x 1
.end_amdhsa_kernel
"""

def build(opt):
    global WSOFF
    WSOFF = int(opt.get('wsoff', 0))
    main, info = build_main(opt)
    red = build_reduce(opt)
    k1, k2 = NAME + "_kernel", "reduce_kernel"
    s = HEADER
    s += f"; @launch kernel={k1} grid=(256,1,1) block=(256,1,1) lds={LDS_BYTES}\n"
    s += f"; @launch kernel={k2} grid=(576,1,1) block=(256,1,1) lds=0\n"
    s += '.amdgcn_target "amdgcn-amd-amdhsa--gfx950"\n.text\n'
    s += f".globl {k1}\n.p2align 8\n.type {k1},@function\n{k1}:\n" + main
    s += f".globl {k2}\n.p2align 8\n.type {k2},@function\n{k2}:\n" + red
    s += '.section .rodata,"a"\n' + kd(k1, 512, 256, 102) + kd(k2, 128, 128, 96)
    return s, info


if __name__ == "__main__":
    out = sys.argv[1] if len(sys.argv) > 1 else "cdna_kernels/" + NAME + ".s"
    opt = {}
    for a in sys.argv[2:]:
        k, v = a.split("=", 1); opt[k] = v
    fw.VM_GAP = int(opt.get('vmgap', 5)); fw.LDS_LAT = int(opt.get('ldslat', 8)); fw.VM_LAT = int(opt.get('vmlat', 90))
    s, info = build(opt)
    open(out, "w").write(s)
    print(info, len(s))
```

```python
import re
from collections import deque

TRANS = ("v_exp_f32", "v_log_f32", "v_rcp_f32", "v_rsq_f32", "v_sqrt_f32", "v_sin_f32", "v_cos_f32")
_reg = re.compile(r"^-?\|?([vas])(\d+)\|?$")
_rng = re.compile(r"^-?\|?([vas])\[(\d+):(\d+)\]\|?$")


def regs_of(tok):
    tok = tok.strip()
    m = _reg.match(tok)
    if m:
        return [m.group(1) + m.group(2)]
    m = _rng.match(tok)
    if m:
        return [m.group(1) + str(i) for i in range(int(m.group(2)), int(m.group(3)) + 1)]
    if tok in ("vcc", "m0", "exec", "scc"):
        return [tok]
    if tok in ("vcc_hi", "vcc_lo"):
        return ["vcc"]
    return []


class I:
    __slots__ = ("txt", "op", "kind", "dst", "src", "tag", "srcC", "cexact", "wide", "args", "note")

    def __init__(self, txt, tag=None, note=None):
        self.txt = txt
        self.tag = tag
        self.note = note
        self.args = None
        self.srcC = []
        self.cexact = None
        self.wide = False
        t = txt.strip()
        if t.endswith(":"):
            self.op = "label"; self.kind = "label"; self.dst = []; self.src = []
            return
        parts = t.split(None, 1)
        op = parts[0]
        self.op = op
        rest = parts[1] if len(parts) > 1 else ""
        toks = []
        for p in rest.split(","):
            toks += [p.strip()]
        if toks:
            last = toks[-1].split()
            toks = toks[:-1] + ([last[0]] if last else [])
            mods = last[1:]
        else:
            mods = []
        R = [regs_of(x) for x in toks]
        flat = lambda l: [r for x in l for r in x]
        dst, src = [], []
        if op.startswith("v_mfma"):
            kind = "mfma"; dst = R[0]; src = flat(R[1:3]); self.srcC = R[3]; src = src + R[3]
            self.cexact = (toks[0] == toks[3])
        elif op.startswith("ds_read"):
            kind = "ds_rd"; dst = R[0]; src = flat(R[1:])
        elif op.startswith("ds_write"):
            kind = "ds_wr"; src = flat(R)
        elif op.startswith("buffer_load") and "lds" in mods:
            kind = "dma"; src = flat(R) + ["m0"]
        elif op.startswith("buffer_load") or op.startswith("global_load"):
            kind = "vm_ld"; dst = R[0]; src = flat(R[1:])
        elif op.startswith("buffer_store"):
            kind = "vm_st"; src = flat(R); self.wide = op.endswith("x4") or op.endswith("x3")
            self.args = R[0]
        elif op.startswith("s_memtime") or op.startswith("s_memrealtime"):
            kind = "salu"; dst = []; src = []
        elif op.startswith("v_writelane"):
            kind = "valu"; dst = list(R[0]); src = []
        elif op.startswith("s_load"):
            kind = "smem"; dst = R[0]; src = flat(R[1:])
        elif op == "s_waitcnt":
            kind = "wait"
        elif op == "s_nop":
            kind = "nop"; self.args = int(toks[0])
        elif op == "s_barrier":
            kind = "barrier"
        elif op.startswith("s_cbranch") or op == "s_branch":
            kind = "branch"; src = ["scc"] if "scc" in op else (["vcc"] if "vcc" in op else [])
        elif op.startswith("s_cmp"):
            kind = "salu"; dst = ["scc"]; src = flat(R)
        elif op == "s_getpc_b64":
            kind = "salu"; dst = R[0]
        elif op.startswith("s_and_saveexec"):
            kind = "salu"; dst = R[0] + ["exec", "scc"]; src = flat(R[1:])
        elif op in ("s_setprio", "s_sleep", "s_endpgm"):
            kind = "salu"
        elif op.startswith("s_"):
            kind = "salu"; dst = list(R[0]); src = flat(R[1:])
            if op.startswith(("s_add", "s_sub", "s_and", "s_or", "s_xor", "s_lshl", "s_lshr", "s_not", "s_andn2", "s_ashr", "s_min", "s_max", "s_bfm_none")):
                dst = dst + ["scc"]
            if op.startswith("s_cselect") or op.startswith("s_addc"):
                src = src + ["scc"]
        elif op.startswith("v_cmp"):
            kind = "valu"; dst = R[0]; src = flat(R[1:])
        elif op.startswith("v_"):
            kind = "valu"; dst = list(R[0]); src = flat(R[1:])
            if op.startswith("v_fmac") or op.startswith("v_permlane"):
                src = src + dst
            if op.startswith("v_cndmask") and len(toks) == 3:
                src = src + ["vcc"]
        else:
            raise ValueError("unknown instruction: " + txt)
        self.kind = kind; self.dst = dst; self.src = src

    def __repr__(self):
        return self.txt


class WaitRegs(I):
    def __init__(self, regs):
        self.txt = "; waitregs"; self.op = "waitregs"; self.kind = "pwait"; self.dst = []; self.src = list(regs)
        self.tag = None; self.note = None; self.args = None; self.srcC = []; self.cexact = None; self.wide = False


class WaitTag(I):
    def __init__(self, *tags):
        self.txt = "; waittag"; self.op = "waittag"; self.kind = "pwait"; self.dst = []; self.src = []
        self.tag = None; self.note = None; self.args = set(tags); self.srcC = []; self.cexact = None; self.wide = False


def expand(x):
    if isinstance(x, str):
        return [I(x)]
    if isinstance(x, I):
        return [x]
    out = []
    for y in x:
        out += expand(y)
    return out


class Stream:
    def __init__(self, name, prio):
        self.name = name; self.prio = prio; self.q = deque(); self.rate = 0

    def add(self, ins, earliest=0, deadline=None):
        self.q.append((expand(ins), earliest, deadline))

    def extend(self, lst, earliest=0, deadline=None):
        for x in lst:
            self.add(x, earliest, deadline)


class Slot:
    __slots__ = ("mfma", "pre", "post")

    def __init__(self, mfma, pre=None, post=None):
        self.mfma = I(mfma) if isinstance(mfma, str) else mfma
        self.pre = expand(pre or []); self.post = expand(post or [])


LDS_LAT = 8
VM_LAT = 90
VM_GAP = 5


def schedule(slots, streams, budget=2, horizon=None):
    import bisect
    n = len(slots)
    BIG = n + 10
    S = []
    for s in streams:
        items = list(s.q)
        dl = BIG; eff = [0] * len(items)
        for i in range(len(items) - 1, -1, -1):
            d = items[i][2]
            if d is not None: dl = min(dl, d)
            eff[i] = dl
        S.append(deque((g, e, eff[i]) for i, (g, e, d) in enumerate(items)))
    mand = [len(slots[k].post) + (len(slots[k + 1].pre) if k + 1 < n else 0) for k in range(n)]
    free = [max(0, budget - m) for m in mand]
    cum = [0] * (n + 1)
    for k in range(n): cum[k + 1] = cum[k] + free[k]
    out = []
    stats = {"over": 0, "forced": 0, "idle": 0}
    overlog = [0] * n
    ready = {}; tready = {}
    lastvm = [-99]

    def note(ins_list, k):
        for x in ins_list:
            if x.kind in ("vm_ld", "vm_st", "dma"): lastvm[0] = k
            if x.kind == "ds_rd":
                for r in x.dst: ready[r] = k + LDS_LAT
            elif x.kind == "vm_ld":
                for r in x.dst: ready[r] = k + VM_LAT
            if x.tag is not None and x.kind in ("ds_rd", "ds_wr", "vm_ld", "vm_st", "dma"):
                tready[x.tag] = k + (LDS_LAT if x.kind.startswith("ds") else VM_LAT)


    def eligible(g, k):
        for x in g:
            if x.kind in ("vm_ld", "vm_st", "dma") and k - lastvm[0] < VM_GAP: return False
            if x.kind == "pwait" and x.op == "waittag":
                if any(tready.get(t, -1) > k for t in x.args): return False
            else:
                for r in x.src + x.dst:
                    if ready.get(r, -1) > k: return False
        return True
    for k, sl in enumerate(slots):
        for si, q in enumerate(S):
            while q and q[0][2] <= k:
                g, e, d = q.popleft()
                assert e <= k, f"stream {streams[si].name}: deadline {d} before earliest {e}: {g}"
                out += g; stats["forced"] += len(g); overlog[k] += len(g); note(g, k)
        out += sl.pre
        out.append(sl.mfma)
        out += sl.post
        note(sl.post, k)
        used = mand[k]
        extra = 0
        cnt = {}
        for q in S:
            for (g, e, d) in q:
                if d >= BIG: break
                cnt[d] = cnt.get(d, 0) + len(g)
        acc = 0
        for d in sorted(cnt):
            acc += cnt[d]
            span = d - k
            if span <= 0: continue
            cap = cum[min(d, n)] - cum[k]
            if acc > cap:
                extra = max(extra, (acc - cap) / span)
        carry = stats.get("_carry", 0.0) + extra
        b = budget + int(carry)
        stats["_carry"] = carry - int(carry) if extra > 0 else 0.0
        while used < b:
            pick = None; best = None
            for si, q in enumerate(S):
                if q and q[0][1] <= k and eligible(q[0][0], k):
                    key = (q[0][2], streams[si].prio)
                    if best is None or key < best: best = key; pick = q
            if pick is None: break
            g, e, d = pick.popleft()
            out += g; used += len(g); note(g, k)
        if used > budget:
            stats["over"] += used - budget; overlog[k] += used - budget
        elif used < budget: stats["idle"] += budget - used
    rest = []
    for q in S:
        while q:
            g, e, d = q.popleft(); rest += g
    stats.pop("_carry", None)
    stats["overlog"] = overlog
    return out, rest, stats


VM = ("vm_ld", "vm_st", "dma")
LG = ("ds_rd", "ds_wr")


def insert_waits(prog):
    out = []
    vm = []
    lg = []
    smem_pending = set()
    nwait = 0

    def need(lst, pred):
        idx = -1
        for i, e in enumerate(lst):
            if pred(e): idx = i
        if idx < 0: return None
        return len(lst) - 1 - idx

    def emit_wait(v, l):
        nonlocal nwait
        parts = []
        if v is not None:
            assert v <= 63
            parts.append(f"vmcnt({v})"); del vm[:len(vm) - v]
        if l is not None:
            assert l <= 15, "lgkmcnt overflow"
            parts.append(f"lgkmcnt({l})"); del lg[:len(lg) - l]
        out.append(I("s_waitcnt " + " ".join(parts))); nwait += 1

    for ins in prog:
        if ins.kind == "label" or ins.kind == "branch":
            out.append(ins); continue
        if ins.kind == "wait":
            m = re.search(r"vmcnt\((\d+)\)", ins.txt)
            if m:
                v = int(m.group(1))
                if len(vm) > v: del vm[:len(vm) - v]
            m = re.search(r"lgkmcnt\((\d+)\)", ins.txt)
            if m:
                l = int(m.group(1))
                if len(lg) > l: del lg[:len(lg) - l]
                if l == 0: smem_pending.clear()
            out.append(ins); continue
        if ins.kind == "pwait" and ins.op == "waittag":
            tags = ins.args
            v = need(vm, lambda e: e[1] in tags); l = need(lg, lambda e: e[1] in tags)
            if v is not None or l is not None: emit_wait(v, l)
            continue
        touched = set(ins.src) | set(ins.dst)
        touched.discard("scc")
        if smem_pending & touched:
            raise RuntimeError("SMEM result used before lgkmcnt(0): " + ins.txt)
        v = need(vm, lambda e: e[0] & touched); l = need(lg, lambda e: e[0] & touched)
        if v is not None or l is not None: emit_wait(v, l)
        if ins.kind == "pwait":
            continue
        out.append(ins)
        if ins.kind in VM:
            vm.append((set(ins.dst), ins.tag))
            if len(vm) > 63:
                pass
        elif ins.kind in LG:
            if len(lg) >= 15:
                out.pop(); emit_wait(None, 14); out.append(ins)
            lg.append((set(ins.dst), ins.tag))
        elif ins.kind == "smem":
            smem_pending |= set(ins.dst)
    return out, nwait


def is_v(r): return r[0] in "va" and r[1:].isdigit()


def pad_hazards(prog):
    out = []
    t = 0
    w_valu = {}; w_mfma = {}; w_trans = {}; c_mfma = {}; w_valu_s = {}; w_salu_m0 = -99; st_wide = {}
    mfma_dst = {}
    nn = 0
    for ins in prog:
        if ins.kind == "label":
            out.append(ins); continue
        need = 0

        def req(prev, dist):
            nonlocal need
            if prev is not None:
                need = max(need, dist - (t - prev - 1))
        k = ins.kind
        isdpp = "dpp" in ins.txt or "row_" in ins.txt
        if k == "mfma":
            for r in ins.src:
                req(w_valu.get(r), 2)
            ab = ins.src[:len(ins.src) - len(ins.srcC)]
            for r in ab: req(w_mfma.get(r), 8)
            for r in ins.srcC:
                if r in w_mfma:
                    if mfma_dst.get(r) != tuple(ins.srcC): req(w_mfma[r], 6)
            for r in ins.dst:
                if r in w_mfma and mfma_dst.get(r) != tuple(ins.dst): req(w_mfma[r], 6)
        elif k == "valu":
            for r in ins.src + ins.dst:
                req(w_mfma.get(r), 8)
            for r in ins.dst:
                req(c_mfma.get(r), 3); req(st_wide.get(r), 2)
            if ins.op not in TRANS:
                for r in ins.src: req(w_trans.get(r), 1)
            for r in ins.src:
                if r[0] == "s" or r == "vcc": req(w_valu_s.get(r), 2)
            if ins.op.startswith("v_readfirstlane") or ins.op.startswith("v_readlane"):
                for r in ins.src: req(w_valu.get(r), 1)
            if isdpp or ins.op.startswith("v_permlane"):
                for r in ins.src: req(w_valu.get(r), 2)
        elif k in ("vm_ld", "vm_st", "dma", "ds_rd", "ds_wr"):
            for r in ins.src + ins.dst:
                req(w_mfma.get(r), 8)
            for r in ins.src:
                if r[0] == "s": req(w_valu_s.get(r), 5)
            for r in ins.dst: req(st_wide.get(r), 1)
            if k == "dma": req(w_salu_m0, 1)
        elif k in ("salu", "branch"):
            for r in ins.src:
                req(w_valu_s.get(r), 4)
        if need > 0:
            nn += need
            while need > 0:
                x = min(need, 16)
                out.append(I(f"s_nop {x - 1}")); t += x; need -= x
        out.append(ins)
        if k == "mfma":
            for r in ins.dst:
                w_mfma[r] = t; mfma_dst[r] = tuple(ins.dst); w_valu.pop(r, None)
            for r in ins.srcC: c_mfma[r] = t
        elif k == "valu":
            for r in ins.dst:
                if is_v(r):
                    w_valu[r] = t; w_mfma.pop(r, None)
                    if ins.op in TRANS: w_trans[r] = t
                    else: w_trans.pop(r, None)
                else:
                    w_valu_s[r] = t
        elif k == "salu":
            if "m0" in ins.dst: w_salu_m0 = t
            for r in ins.dst: w_valu_s.pop(r, None)
        elif k == "vm_st" and ins.wide:
            for r in ins.args: st_wide[r] = t
        elif k in ("vm_ld", "ds_rd"):
            for r in ins.dst:
                w_valu.pop(r, None); w_mfma.pop(r, None)
        t += (ins.args + 1) if k == "nop" else 1
    return out, nn


def render(prog):
    return "\n".join(("" if i.kind == "label" else "  ") + i.txt for i in prog)
```

```python
import sys
import fw
from fw import *

NAME = "gated_mix__ssm_conv_s5__glu_gated_reglu__prompt"
LOG2E = 0x3fb8aa3b
INV2PI = 0x3e22f983
OOB = 0x7ffffff0

SLOT = 24576; NSLOT = 6
MISC = SLOT * NSLOT
PRIV = MISC
WTOT = MISC + 12288
TAB = WTOT + 1536
LDS_BYTES = TAB + 2304

WS_P = 0
P_BYTES = 16 * 16 * 4 * 36 * 1024
WS_S = P_BYTES
WS_G = WS_S + 16 * 16 * 384
WS_END = WS_G + 8192

ACC = [0, 64]
XB = 128
LG = 176
P1 = 184
P2 = 196
D1 = 203; D2 = 209
SF = 215
A4 = 217; A32 = 219; A128 = 221; PW = 223
LANE = 225
VST = 226
VCH = 227
T = 228
VE = T + 16
VP = T + 18
VT = T + 19
TS = T + 20
TA = T + 24
AX = 0; AF = 144; AH = 176
L = f"v{LANE}"

S_X, S_W1, S_WD, S_B, S_C, S_WS, S_S, S_DBG, S_P = 4, 8, 12, 16, 20, 24, 28, 32, 36
sW, sTILE, sSLICE, sC0, sOA, sOB, sW6, sW3, sPST = 40, 41, 42, 43, 44, 45, 46, 47, 48
sT0, sT1, sT2 = 49, 50, 51
sC2, sFULL, sHALF, sT3 = 52, 53, 54, 55
sMASK = 56
sM1, sM2, sM3 = 58, 59, 60
sWB0 = 61
sW1F, sW1H, sWD2, sWD2B, sWD1, sC1 = 64, 65, 66, 67, 68, 69
sXO, sXL = 98, 99
sT4 = 70


def xfrag(ks, n): return f"a[{AX + 8*ks + 4*n}:{AX + 8*ks + 4*n + 3}]"
def afrag(u): return AF + 4 * (u % 8)
def vr(b, n=4): return f"v[{b}:{b+n-1}]" if n > 1 else f"v{b}"
def ar(b, n=4): return f"a[{b}:{b+n-1}]"
def sr(b): return f"s[{b}:{b+3}]"
def xb(b, mat, n): return XB + ((b * 2 + mat) * 2 + n) * 4
def srd(base, lo, hi, size):
    return [f"s_mov_b32 s{base}, {lo}", f"s_mov_b32 s{base+1}, {hi}", f"s_mov_b32 s{base+2}, {size}", f"s_mov_b32 s{base+3}, 0x20000"]
def mf(d, a, b, c): return f"v_mfma_f32_16x16x32_bf16 {d}, {a}, {b}, {c}"
def slot_of(k): return {4: 5, 5: 4}.get(k, k % NSLOT)
def slot_base(k): return slot_of(k) * SLOT
def setof(k): return slot_of(k) // 2
def slot_rel(k): return (slot_of(k) % 2) * SLOT
XBASE = 3 * SLOT
XPOS = [0, 1, 2, 3, 0, 1, 2, 3, 2]


class Stage:
    def __init__(self, fmt, units, pieces, wq, pre):
        self.fmt, self.units, self.pieces, self.wq, self.pre = fmt, units, pieces, wq, pre


def comp(d, j): return [f"v_subrev_u32 v{d}, {1024*(j%4)}, v{d}"] if j % 4 else []

def voff_par(dst, t, stride, chunk0):
    o = chunk0 + [f"v_lshlrev_b32 v{dst}, 4, v{dst}", f"v_lshrrev_b32 v{t}, 3, {L}", f"v_mul_u32_u24 v{t}, {stride}, v{t}",
                  f"v_xor_b32 v{dst+1}, 64, v{dst}", f"v_add_u32 v{dst}, v{dst}, v{t}", f"v_add_u32 v{dst+1}, v{dst+1}, v{t}",
                  f"v_add_u32 v{dst+1}, {8*stride - 1024}, v{dst+1}"]
    for j in range(2, 6):
        delta = (j - (j & 1)) * 8 * stride - (1024 * (j % 4) - 1024 * (j & 1))
        o += [f"v_add_u32 v{dst+j}, {delta}, v{dst + (j & 1)}"]
    return o

def voff_lin(dst, t, rows, stride, first):
    o = list(first)
    for j in range(1, 6): o += [f"v_add_u32 v{dst+j}, {j*rows*stride - 1024*(j%4)}, v{dst}"]
    return o

def voff_B(dst, t):
    return voff_par(dst, t, 1152, [f"v_lshrrev_b32 v{dst}, 4, {L}", f"v_and_b32 v{t}, 7, {L}", f"v_xor_b32 v{dst}, v{dst}, v{t}"])

def voff_W1full(dst, t):
    return voff_par(dst, t, 9216, [f"v_bfe_u32 v{dst}, {L}, 4, 1", f"v_lshlrev_b32 v{dst}, 1, v{dst}", f"v_and_b32 v{t}, 7, {L}", f"v_xor_b32 v{dst}, v{dst}, v{t}"])

def voff_W1half(dst, t):
    d = dst
    return voff_lin(dst, t, 16, 9216, [f"v_lshrrev_b32 v{d}, 5, {L}", f"v_lshlrev_b32 v{d}, 1, v{d}", f"v_and_b32 v{t}, 3, {L}", f"v_xor_b32 v{d}, v{d}, v{t}",
                                       f"v_lshlrev_b32 v{d}, 4, v{d}", f"v_lshrrev_b32 v{t}, 2, {L}", f"v_mul_u32_u24 v{t}, 9216, v{t}", f"v_add_u32 v{d}, v{d}, v{t}"])

def voff_Wd(dst, t):
    d = dst
    return voff_lin(dst, t, 8, 1152, [f"v_lshrrev_b32 v{d}, 4, {L}", f"v_lshlrev_b32 v{d}, 1, v{d}", f"v_and_b32 v{t}, 7, {L}", f"v_xor_b32 v{d}, v{d}, v{t}",
                                      f"v_lshlrev_b32 v{d}, 4, v{d}", f"v_lshrrev_b32 v{t}, 3, {L}", f"v_mul_u32_u24 v{t}, 1152, v{t}", f"v_add_u32 v{d}, v{d}, v{t}"])

def voff_C(dst, t):
    o = []
    for j in range(3):
        d = dst + j
        o += [f"v_add_u32 v{t}, {64*j}, {L}", f"v_mul_u32_u24 v{t+1}, 10923, v{t}", f"v_lshrrev_b32 v{t+1}, 16, v{t+1}",
              f"v_mul_u32_u24 v{d}, 6, v{t+1}", f"v_sub_u32 v{d}, v{t}, v{d}",
              f"v_bfe_u32 v{t}, v{t+1}, 3, 1", f"v_xor_b32 v{d}, v{d}, v{t}", f"v_lshlrev_b32 v{d}, 4, v{d}",
              f"v_mul_u32_u24 v{t+1}, 1152, v{t+1}", f"v_add_u32 v{d}, v{d}, v{t+1}"] + comp(d, j)
    for j in range(3):
        o += [f"v_add_u32 v{dst+j+3}, {32*1152 + 1024*(j%4) - 1024*((j+3)%4)}, v{dst+j}"]
    return o

def base_T128(dst, qrows, t):
    o = [f"v_lshrrev_b32 v{t}, 4, {L}", f"v_mul_u32_u24 v{t}, {qrows}, v{t}", f"v_bfe_u32 v{t+1}, {L}, 2, 2", f"v_add_u32 v{t}, v{t}, v{t+1}",
         f"v_lshlrev_b32 v{t}, 7, v{t}", f"v_and_b32 v{t+1}, 3, {L}", f"v_lshlrev_b32 v{t+1}, 3, v{t+1}", f"v_add_u32 v{t}, v{t}, v{t+1}",
         f"v_bfe_u32 v{t+1}, {L}, 3, 2"]
    for mt in range(4):
        d = dst + mt
        o += [f"v_xor_b32 v{d}, {mt}, v{t+1}", f"v_lshlrev_b32 v{d}, 5, v{d}", f"v_add_u32 v{d}, v{d}, v{t}",
              f"v_add_u32 v{d+4}, 49152, v{d}", f"v_add_u32 v{d+8}, {2*49152}, v{d}"]
    return o

def base_T64(dst, t):
    o = [f"v_lshrrev_b32 v{t}, 4, {L}", f"v_lshlrev_b32 v{t}, 3, v{t}", f"v_bfe_u32 v{t+1}, {L}, 2, 2", f"v_add_u32 v{t}, v{t}, v{t+1}",
         f"v_lshlrev_b32 v{t}, 6, v{t}", f"v_and_b32 v{t+1}, 3, {L}", f"v_lshlrev_b32 v{t+1}, 3, v{t+1}", f"v_add_u32 v{t}, v{t}, v{t+1}",
         f"v_bfe_u32 v{t+1}, {L}, 4, 1"]
    for mt in range(2):
        d = dst + mt
        o += [f"v_xor_b32 v{d}, {mt}, v{t+1}", f"v_lshlrev_b32 v{d}, 5, v{d}", f"v_add_u32 v{d}, v{d}, v{t}",
              f"v_add_u32 v{d+2}, 49152, v{d}", f"v_add_u32 v{d+4}, {2*49152}, v{d}"]
    return o

def base_R(dst, t):
    o = [f"v_and_b32 v{t}, 15, {L}", f"v_lshrrev_b32 v{t+1}, 1, v{t}", f"v_lshlrev_b32 v{t}, 7, v{t}"]
    for h in range(2):
        d = dst + h
        o += [f"v_lshrrev_b32 v{d}, 4, {L}", f"v_add_u32 v{d}, {4*h}, v{d}", f"v_xor_b32 v{d}, v{d}, v{t+1}", f"v_lshlrev_b32 v{d}, 4, v{d}",
              f"v_add_u32 v{d}, v{d}, v{t}", f"v_add_u32 v{d+2}, 49152, v{d}", f"v_add_u32 v{d+4}, {2*49152}, v{d}"]
    return o

def base_C(dst, t):
    return [f"v_and_b32 v{t}, 15, {L}", f"v_mul_u32_u24 v{t+1}, 96, v{t}", f"v_lshrrev_b32 v{t}, 3, v{t}", f"v_lshrrev_b32 v{t+2}, 5, {L}",
            f"v_xor_b32 v{t}, v{t}, v{t+2}", f"v_lshlrev_b32 v{t}, 4, v{t}", f"v_add_u32 v{t}, v{t}, v{t+1}",
            f"v_bfe_u32 v{t+1}, {L}, 4, 1", f"v_lshlrev_b32 v{t+1}, 3, v{t+1}", f"v_add_u32 v{dst}, v{t}, v{t+1}",
            f"v_add_u32 v{dst+1}, 49152, v{dst}", f"v_add_u32 v{dst+2}, {2*49152}, v{dst}"]


def cmul_acc(dre, dim, are, aim, sre, sim):
    return [f"v_fmac_f32 v{dre}, v{are}, v{sre}", f"v_fmac_f32 v{dim}, v{are}, v{sim}",
            f"v_fma_f32 v{dre}, -v{aim}, v{sim}, v{dre}", f"v_fmac_f32 v{dim}, v{aim}, v{sre}"]


def build_stages():
    stages = []
    tr = "ds_read_b64_tr_b16"
    for st in range(5):
        units = []
        for ksl in range(4 if st < 4 else 2):
            ks = 4 * st + ksl
            line, half = ksl >> 1, ksl & 1
            for b in range(3):
                for mat in range(2):
                    off = (2 * mat + line) * 6144 + b * 2048
                    acc = [xb(b, mat, n) for n in range(2)]
                    units.append(dict(reads=[("ds_read_b128", 4, P2 + half, off, "S2")],
                                      mf=[(vr(acc[n]), xfrag(ks, n), None, vr(acc[n]) if ks else "0") for n in range(2)], swap=True))
            units.append(dict(reads=[("ds_read_b128", 4, P2 + 6, ks * 64, "abs")],
                              mf=[(vr(LG + 4 * n), xfrag(ks, n), None, vr(LG + 4 * n) if ks else "0") for n in range(2)], swap=True))
        pre = [] if st == 0 else [f"s_add_u32 s{sOA}, s{sOA}, 256"]
        stages.append(Stage("B", units, [(D1 + j, S_B, sOA) for j in range(6)], sW6, pre))
    for c in range(4):
        for st in range(6):
            units = []
            for ksl in range(3):
                ks = 3 * st + ksl
                for mat in range(2):
                    for mt in range(4):
                        acc = ACC[c & 1] + (mat * 4 + mt) * 8
                        off = mat * 12288 + ksl * 4096
                        units.append(dict(reads=[(tr, 2, P1 + mt, off, "S4"), (tr, 2, P1 + mt, off + 512, "S4")],
                                          mf=[(vr(acc + 4 * n), None, xfrag(ks, n), vr(acc + 4 * n) if ks else "0") for n in range(2)], swap=False))
            pre = [f"s_add_u32 s{sOA}, s{sW1F}, {128*c}"] if st == 0 else [f"s_add_u32 s{sOA}, s{sOA}, {96*9216}"]
            stages.append(Stage("W1", units, [(D2 + j, S_W1, sOA) for j in range(6)], sW6, pre))
    for st in range(3):
        units = []
        for ksl in range(6):
            ks = 6 * st + ksl
            for mat in range(2):
                for mt in range(2):
                    acc = ACC[0] + (mat * 4 + mt) * 8
                    off = mat * 12288 + ksl * 2048
                    units.append(dict(reads=[(tr, 2, P2 + mt, off, "S2"), (tr, 2, P2 + mt, off + 256, "S2")],
                                      mf=[(vr(acc + 4 * n), None, xfrag(ks, n), vr(acc + 4 * n) if ks else "0") for n in range(2)], swap=False))
        pre = [f"s_mov_b32 s{sOA}, s{sW1H}"] if st == 0 else [f"s_add_u32 s{sOA}, s{sOA}, {192*9216}"]
        stages.append(Stage("W1h", units, [(D1 + j, S_W1, sOA) for j in range(6)], sW6, pre))
    hfrag = lambda K, n: ar(AH + 8 * K + 4 * n)
    sfrag = lambda b, n: vr(xb(b, 0, n))
    def wd_units(Ks, lines, buf, koff):
        units = []
        for K in Ks:
            for line in range(lines):
                for mt in range(4):
                    acc = buf + (line * 4 + mt) * 8
                    off = line * 12288 + (K - koff) * 4096
                    units.append(dict(reads=[(tr, 2, P1 + mt, off, "S4"), (tr, 2, P1 + mt, off + 2048, "S4")],
                                      mf=[(vr(acc + 4 * n), None, hfrag(K, n), vr(acc + 4 * n) if K else "0") for n in range(2)], swap=False))
        return units
    def c_units(nm, buf, imoff):
        units = []
        for b in range(3):
            for m in range(nm):
                acc = buf + m * 8
                off = m * 1536 + 32 * b
                units.append(dict(reads=[("ds_read_b64", 2, P2 + 2, off, "S1"), ("ds_read_b64", 2, P2 + 2, off + imoff, "S1")],
                                  mf=[(vr(acc + 4 * n), None, sfrag(b, n), vr(acc + 4 * n)) for n in range(2)], swap=False))
        return units
    for p in range(5):
        buf = ACC[(p + 1) & 1]
        col = 256 * p
        if p < 4:
            for st in range(3):
                units = wd_units(range(3 * st, 3 * st + 3), 2, buf, 3 * st)
                if st < 2:
                    pre = [f"s_add_u32 s{sOA}, s{sWD2}, {col + st*96*1152}"]
                    pcs = [(D2 + j, S_WD, sOA) for j in range(6)]
                else:
                    pre = [f"s_add_u32 s{sOA}, s{sWD2}, {col + 2*96*1152}", f"s_add_u32 s{sOB}, s{sWD2B}, {col}"]
                    pcs = [(D2 + j, S_WD, sOA if j < 2 else sOB) for j in range(6)]
                stages.append(Stage("Wd", units, pcs, sW6, pre))
            stages.append(Stage("C", c_units(8, buf, 12288), [(D1 + j, S_C, sOA) for j in range(6)], sW6, [f"s_add_u32 s{sOA}, s{sC2}, {128*p*1152}"]))
        else:
            stages.append(Stage("Wd1a", wd_units(range(6), 1, buf, 0), [(D2 + j, S_WD, sOA) for j in range(6)], sW6, [f"s_add_u32 s{sOA}, s{sWD1}, {col}"]))
            stages.append(Stage("Wd1b", wd_units(range(6, 9), 1, buf, 6), [(D2 + j, S_WD, sWB0 + j) for j in range(3)], sW3, []))
            stages.append(Stage("C1", c_units(4, buf, 6144), [(D1 + j, S_C, sOA) for j in range(3)], sW3, [f"s_add_u32 s{sOA}, s{sC1}, {128*4*1152}"]))
    return stages


def build_main(opt):
    pro = []
    A = lambda *x: pro.extend(expand(list(x)))
    stages = build_stages()
    NST = len(stages)
    A("s_cmp_ge_u32 s2, 256", "s_cbranch_scc1 L_main_end")
    A("s_load_dwordx16 s[64:79], s[0:1], 0", "s_load_dwordx16 s[80:95], s[0:1], 64", "s_load_dwordx2 s[96:97], s[0:1], 128")
    A(f"v_and_b32 {L}, 63, v0", "v_lshrrev_b32 v1, 6, v0")
    A(f"s_and_b32 s{sT0}, s2, 7", f"s_lshr_b32 s{sT1}, s2, 3")
    A(f"v_readfirstlane_b32 s{sW}, v1")
    A(f"s_lshl_b32 s{sSLICE}, s{sT0}, 1", f"s_and_b32 s{sT0}, s{sT1}, 1", f"s_add_u32 s{sSLICE}, s{sSLICE}, s{sT0}", f"s_lshr_b32 s{sTILE}, s{sT1}, 1")
    A(f"s_mul_i32 s{sC0}, s{sSLICE}, 9", f"s_lshr_b32 s{sC0}, s{sC0}, 1", f"s_lshl_b32 s{sC0}, s{sC0}, 3")
    A(f"v_lshlrev_b32 v{VST}, 4, {L}", f"v_min_u32 v8, 47, {L}", f"v_lshlrev_b32 v{VCH}, 3, v8")
    A(f"s_mul_i32 s{sW6}, s{sW}, 6144", f"s_mul_i32 s{sW3}, s{sW}, 3072")
    A(voff_B(D1, 10))
    A(f"s_and_b32 s{sT3}, s{sW}, 1")
    A(f"s_mul_i32 s{sOA}, s{sC0}, 1152", f"s_lshl_b32 s{sT0}, s{sT3}, 7", f"s_add_u32 s{sOA}, s{sOA}, s{sT0}")
    A(f"s_lshl_b32 s{sT0}, s{sTILE}, 7", f"s_lshl_b32 s{sT1}, s{sW}, 5", f"s_add_u32 s{sT0}, s{sT0}, s{sT1}", f"s_mul_i32 s{sXO}, s{sT0}, 1152")
    A(f"s_lshl_b32 s{sXL}, s{sW}, 12", f"s_add_u32 s{sXL}, s{sXL}, {XBASE}")
    A(f"v_add_u32 v9, s{sC0}, v8", "v_lshlrev_b32 v9, 1, v9")
    if opt.get("ts"): A("s_memtime s[100:101]", "s_waitcnt lgkmcnt(0)", "v_mov_b32 v255, 0", "v_writelane_b32 v255, s100, 0", "s_memrealtime s[100:101]")
    A("s_waitcnt lgkmcnt(0)")
    if opt.get("ts"): A("v_writelane_b32 v255, s100, 61")
    A(srd(S_X, "s64", "s65", 2359296))
    A(f"s_cmp_lt_u32 s{sW}, 2")
    A(f"s_cselect_b32 s{S_B}, s70, s72", f"s_cselect_b32 s{S_B+1}, s71, s73", f"s_mov_b32 s{S_B+2}, 663552", f"s_mov_b32 s{S_B+3}, 0x20000")

    def dma_items(k):
        st = stages[k]
        items = [[x] for x in st.pre] + [[f"s_add_u32 m0, s{st.wq}, {slot_base(k)}"]]
        for j, (v, s_, so) in enumerate(st.pieces):
            if j == 4: items.append([f"s_add_u32 m0, s{st.wq}, {slot_base(k) + 4096}"])
            imm = 1024 * (j % 4)
            items.append([I(f"buffer_load_dwordx4 v{v}, {sr(s_)}, s{so} offen" + (f" offset:{imm}" if imm else "") + " lds", tag=f"st{k}")])
        return items
    def xdma(j):
        items = [[f"s_add_u32 s{sOB}, s{sXO}, {128*j}"], [f"s_add_u32 m0, s{sXL}, {16384*XPOS[j]}"]]
        for g in range(4):
            items.append([I(f"buffer_load_dwordx4 v{D1+g}, {sr(S_X)}, s{sOB} offen" + (f" offset:{1024*g}" if g else "") + " lds", tag=f"x{j}")])
        return items
    XV = TA
    def xreads(j):
        return [I(f"ds_read_b128 {xfrag(2*j+h, n)}, v{XV+h} offset:{16384*XPOS[j] + 2048*n}", tag=f"xr{j}") for h in range(2) for n in range(2)]
    for it in dma_items(0): A(it)
    for j in range(2):
        for it in xdma(j): A(it)
    PLRE, PLIM, PLDT = T, T + 1, T + 2
    A(srd(S_P, "s66", "s67", 1152)); A(f"buffer_load_ushort v{PLRE}, v9, {sr(S_P)}, 0 offen")
    A(srd(56, "s68", "s69", 1152)); A(f"buffer_load_ushort v{PLIM}, v9, s[56:59], 0 offen")
    A(srd(60, "s78", "s79", 1152)); A(f"buffer_load_ushort v{PLDT}, v9, s[60:63], 0 offen")
    A(srd(S_P, "s90", "s91", 1152))
    A(f"s_add_u32 m0, s{sW3}, {PRIV}")
    A(I(f"buffer_load_dwordx4 v{VST}, {sr(S_P)}, 0 offen lds", tag="gw"))
    A(I(f"buffer_load_dwordx4 v{VST}, {sr(S_P)}, 0 offen offset:1024 lds", tag="gw"))
    for j in range(2, 4):
        for it in xdma(j): A(it)
    for k in (1, 2):
        for it in dma_items(k): A(it)
    PFL = opt.get("pf", " sc1")
    sX6, sPF = 71, 72
    PV = 12
    A(f"s_cmp_lt_u32 s{sW}, 2")
    A(f"s_cselect_b32 s{S_W1}, s84, s86", f"s_cselect_b32 s{S_W1+1}, s85, s87", f"s_mov_b32 s{S_W1+2}, 5308416", f"s_mov_b32 s{S_W1+3}, 0x20000")
    if opt.get("nocpf") is None:
        A("s_getpc_b64 s[100:101]", "L_main_pc:")
        A(f"s_lshr_b32 s{sT0}, s2, 3", f"s_lshl_b32 s{sT0}, s{sT0}, 2", f"s_add_u32 s{sT0}, s{sT0}, s{sW}", f"s_mul_i32 s{sT0}, s{sT0}, 640")
        A(f"v_lshlrev_b32 v12, 7, {L}", f"v_add_u32 v12, s{sT0}, v12", f"v_min_u32 v12, CODE_SPAN, v12", f"v_cmp_gt_u32 vcc, 5, {L}",
          "s_and_saveexec_b64 s[62:63], vcc", f"global_load_dword a247, v12, s[100:101]", "s_mov_b64 exec, s[62:63]")
    if opt.get("nopf") is None:
        A(f"v_and_b32 v{PV}, 15, {L}", f"v_mul_u32_u24 v{PV}, 1152, v{PV}", f"v_lshrrev_b32 v{PV+1}, 4, {L}", f"v_lshlrev_b32 v{PV+1}, 7, v{PV+1}",
          f"v_add_u32 v{PV}, v{PV}, v{PV+1}", f"s_and_b32 s100, s{sSLICE}, 1", f"s_mul_i32 s100, s100, {16*1152}", f"s_add_u32 s100, s100, s{sXO}",
          f"s_add_u32 s100, s100, 512", f"buffer_load_dword a248, v{PV}, {sr(S_X)}, s100 offen{PFL}")
        A(f"s_lshl_b32 s101, s{sTILE}, 1", f"s_add_u32 s101, s101, s{sT3}")
        A(f"s_mul_i32 s100, s101, {14*128}", f"s_mul_i32 s{sT0}, s{sC0}, 1152", f"s_add_u32 s100, s100, s{sT0}",
          f"v_lshlrev_b32 v{PV}, 7, {L}", f"v_mov_b32 v{PV+1}, {hex(OOB)}", f"v_cmp_gt_u32 vcc, 14, {L}", f"v_cndmask_b32 v{PV}, v{PV+1}, v{PV}, vcc",
          f"buffer_load_dword a249, v{PV}, {sr(S_B)}, s100 offen{PFL}")
        A(f"v_mul_u32_u24 v{PV}, 57, {L}", f"v_lshrrev_b32 v{PV}, 10, v{PV}", f"v_mul_u32_u24 v{PV+1}, 18, v{PV}", f"v_sub_u32 v{PV+1}, {L}, v{PV+1}",
          f"v_mul_u32_u24 v{PV+1}, 9216, v{PV+1}", f"v_lshlrev_b32 v{PV}, 7, v{PV}", f"v_add_u32 v{PV}, v{PV}, v{PV+1}",
          f"v_mov_b32 v{PV+1}, {hex(OOB)}", f"v_cmp_gt_u32 vcc, 36, {L}", f"v_cndmask_b32 v{PV}, v{PV+1}, v{PV}, vcc",
          f"s_mul_i32 s100, s101, {18*9216}", f"s_mul_i32 s{sT0}, s{sSLICE}, 576", f"s_add_u32 s100, s100, s{sT0}",
          f"s_and_b32 s{sT0}, s{sSLICE}, 1", f"s_lshl_b32 s{sT0}, s{sT0}, 6", f"s_add_u32 s100, s100, s{sT0}",
          f"buffer_load_dword a250, v{PV}, {sr(S_W1)}, s100 offen{PFL}")
        A(f"s_mov_b32 s{sT4}, s101")
        oob = hex(OOB)
        A(f"v_mul_u32_u24 v{PV}, 57, {L}", f"v_lshrrev_b32 v{PV}, 10, v{PV}", f"v_mul_u32_u24 v{PV+1}, 18, v{PV}", f"v_sub_u32 v{PV+1}, {L}, v{PV+1}",
          f"v_mul_u32_u24 v{PV+1}, 9216, v{PV+1}", f"v_add_u32 v{PV+2}, 2, v{PV}", f"v_lshlrev_b32 v{PV+2}, 7, v{PV+2}", f"v_add_u32 v{PV+1}, v{PV+1}, v{PV+2}",
          f"s_and_b32 s{sT0}, s{sSLICE}, 1", f"s_mul_i32 s{sT0}, s{sT0}, 576", f"v_cmp_eq_u32 vcc, 2, v{PV}", f"v_mov_b32 v{PV+2}, s{sT0}",
          f"v_cndmask_b32 v{PV+2}, 0, v{PV+2}, vcc", f"v_sub_u32 v{PV+1}, v{PV+1}, v{PV+2}",
          f"v_mov_b32 v{PV+2}, {oob}", f"v_cmp_gt_u32 vcc, 54, {L}", f"v_cndmask_b32 v{PV+1}, v{PV+2}, v{PV+1}, vcc", f"v_accvgpr_write_b32 a253, v{PV+1}")
        A(f"v_lshlrev_b32 v{PV}, 7, {L}", f"v_cmp_gt_u32 vcc, 41, {L}", f"v_cndmask_b32 v{PV}, v{PV+2}, v{PV}, vcc", f"v_accvgpr_write_b32 a254, v{PV}")
        A(f"v_lshrrev_b32 v{PV}, 1, {L}", f"v_mul_u32_u24 v{PV}, 1152, v{PV}", f"v_and_b32 v{PV+1}, 1, {L}", f"v_mul_u32_u24 v{PV+1}, 92, v{PV+1}",
          f"v_add_u32 v{PV}, v{PV}, v{PV+1}", f"v_cmp_gt_u32 vcc, 36, {L}", f"v_cndmask_b32 v{PV}, v{PV+2}, v{PV}, vcc", f"v_accvgpr_write_b32 a255, v{PV}")
    A(f"s_cmp_lt_u32 s{sW}, 2")
    A(f"s_cselect_b32 s{S_C}, s74, s76", f"s_cselect_b32 s{S_C+1}, s75, s77", f"s_mov_b32 s{S_C+2}, 663552", f"s_mov_b32 s{S_C+3}, 0x20000")
    A(srd(S_WD, "s88", "s89", 5308416))
    if WSOFF: A(f"s_add_u32 s96, s96, {WSOFF}", "s_addc_u32 s97, s97, 0")
    A(srd(S_WS, "s96", "s97", WS_END + (1 << 18) * bool(opt.get("ts"))))
    A(f"s_mul_i32 s{sT0}, s{sSLICE}, 6144", f"s_add_u32 s{sT0}, s{sT0}, {WS_S}", f"s_add_u32 s{S_S}, s96, s{sT0}", f"s_addc_u32 s{S_S+1}, s97, 0",
      f"s_mov_b32 s{S_S+2}, 6144", f"s_mov_b32 s{S_S+3}, 0x20000")
    A(srd(S_DBG, "s94", "s95", 256))
    A(base_R(P2, 12))
    A(f"v_add_u32 v{XV}, s{sXL}, v{P2}", f"v_add_u32 v{XV+1}, s{sXL}, v{P2+1}")
    A(f"v_lshrrev_b32 v3, 4, {L}", f"v_lshlrev_b32 v{P2+6}, 4, v3", f"v_add_u32 v{P2+6}, s{sW3}, v{P2+6}", f"v_add_u32 v{P2+6}, {PRIV}, v{P2+6}")

    setup = []
    B_ = lambda *x: setup.extend(list(x))
    B_([f"s_mul_i32 s{sT0}, s{sSLICE}, 576", f"s_and_b32 s{sT1}, s{sSLICE}, 1", f"s_lshl_b32 s{sT1}, s{sT1}, 6", f"s_add_u32 s{sFULL}, s{sT0}, s{sT1}",
        f"s_cmp_eq_u32 s{sT1}, 0", f"s_cselect_b32 s{sT1}, 512, 0", f"s_add_u32 s{sHALF}, s{sT0}, s{sT1}"])
    B_(f"s_mul_i32 s{sT1}, s{sT3}, {48*9216}", f"s_add_u32 s{sW1F}, s{sFULL}, s{sT1}", f"s_mul_i32 s{sT1}, s{sT3}, {96*9216}", f"s_add_u32 s{sW1H}, s{sHALF}, s{sT1}")
    B_(*voff_W1full(D2, TA + 2))
    nW1 = len(setup)
    B_(*base_T128(P1, 8, T + 20))
    nP1 = len(setup)
    B_(f"s_mul_i32 s{sFULL}, s{sFULL}, 576", f"s_mul_i32 s{sHALF}, s{sHALF}, 576")
    B_(f"s_mul_i32 s{sT1}, s{sT3}, {48*1152}", f"s_lshr_b32 s{sT2}, s{sW}, 1", f"s_lshl_b32 s{sT2}, s{sT2}, 7")
    B_(f"s_add_u32 s{sWD2}, s{sFULL}, s{sT1}", f"s_add_u32 s{sWD2}, s{sWD2}, s{sT2}")
    B_(f"s_add_u32 s{sWD2B}, s{sWD2}, {192*1152}", f"s_sub_u32 s{sT1}, s{sHALF}, {16*1152}", f"s_add_u32 s{sT1}, s{sT1}, s{sT2}",
       [f"s_cmp_eq_u32 s{sT3}, 0", f"s_cselect_b32 s{sWD2B}, s{sWD2B}, s{sT1}"])
    B_(f"s_mul_i32 s{sT1}, s{sW}, {48*1152}", f"s_add_u32 s{sWD1}, s{sFULL}, s{sT1}")
    for j in range(3):
        B_(f"s_mul_i32 s{sT0}, s{sW}, 24", f"s_add_u32 s{sT1}, s{sT0}, {8*j}",
           f"s_add_u32 s{sT2}, s{sT0}, 192", f"s_mul_i32 s{sT2}, s{sT2}, 1152", f"s_add_u32 s{sT2}, s{sT2}, s{sFULL}",
           f"s_sub_u32 s{sT0}, s{sT0}, 64", f"s_mul_i32 s{sT0}, s{sT0}, 1152", f"s_add_u32 s{sT0}, s{sT0}, s{sHALF}",
           [f"s_cmp_lt_u32 s{sT1}, 64", f"s_cselect_b32 s{sWB0+j}, s{sT2}, s{sT0}"], f"s_add_u32 s{sWB0+j}, s{sWB0+j}, 1024")
    B_(f"s_mul_i32 s{sT1}, s{sT3}, {64*1152}", f"s_lshl_b32 s{sT2}, s{sC0}, 1", f"s_add_u32 s{sC2}, s{sT1}, s{sT2}",
       f"s_mul_i32 s{sT1}, s{sT3}, {32*1152}", f"s_add_u32 s{sC1}, s{sT1}, s{sT2}")
    B_(f"s_lshl_b32 s{sPST}, s{sSLICE}, 4", f"s_add_u32 s{sPST}, s{sPST}, s{sTILE}", f"s_lshl_b32 s{sPST}, s{sPST}, 2", f"s_add_u32 s{sPST}, s{sPST}, s{sW}",
       f"s_mul_i32 s{sPST}, s{sPST}, {36*1024}")
    B_(f"s_bfm_b64 s[{sMASK}:{sMASK+1}], s{sTILE}, 0", f"s_not_b64 s[{sMASK}:{sMASK+1}], s[{sMASK}:{sMASK+1}]")
    for k, sm in ((1, sM1), (2, sM2), (3, sM3)):
        B_([f"s_cmp_ge_u32 s{sW}, {k}", f"s_cselect_b32 s{sm}, 1.0, 0"])
    LRE, LIM, DT, E1, R1, M_, A_ = T + 3, T + 4, T + 5, T + 6, T + 7, T + 20, T + 21
    TB = T + 8
    CH = T + 22
    B_(f"v_lshlrev_b32 v{LRE}, 16, v{PLRE}", f"v_lshlrev_b32 v{LIM}, 16, v{PLIM}", f"v_lshlrev_b32 v{DT}, 16, v{PLDT}")
    B_(f"v_mul_f32 v{DT}, {hex(LOG2E)}, v{DT}", f"v_exp_f32 v{DT}, v{DT}", f"v_lshrrev_b32 v{CH}, 3, v{VCH}",
       f"v_cvt_pk_bf16_f32 v{DT}, v{DT}, v{DT}", f"v_lshlrev_b32 v{DT}, 16, v{DT}")
    B_(f"v_mul_f32 v{E1}, v{DT}, v{LRE}", f"v_mul_f32 v{R1}, v{DT}, v{LIM}", f"v_mul_f32 v{E1}, {hex(LOG2E)}, v{E1}", f"v_mul_f32 v{R1}, {hex(INV2PI)}, v{R1}")
    def cpow(dre, dim, nsrc):
        return [f"v_mul_f32 v{M_}, {nsrc}, v{E1}", f"v_mul_f32 v{A_}, {nsrc}, v{R1}", f"v_exp_f32 v{M_}, v{M_}", f"v_fract_f32 v{A_}, v{A_}",
                f"v_cos_f32 v{dre}, v{A_}", f"v_sin_f32 v{dim}, v{A_}", f"v_mul_f32 v{dre}, v{M_}, v{dre}", f"v_mul_f32 v{dim}, v{M_}, v{dim}"]
    TB2 = T + 16
    B_(*cpow(TB, TB + 1, "1.0")); B_(*cpow(TB + 2, TB + 3, "2.0"))
    B_(f"s_mov_b32 s{sT0}, 0x40400000"); B_(*cpow(TB + 4, TB + 5, f"s{sT0}"))
    B_(*cpow(TB + 6, TB + 7, "4.0"))
    B_(f"v_mov_b32 v{A4}, v{TB+6}", f"v_mov_b32 v{A4+1}, v{TB+7}")
    B_(f"s_mov_b32 s{sT0}, 0x42000000"); B_(*cpow(A32, A32 + 1, f"s{sT0}"))
    B_(f"s_mov_b32 s{sT0}, 0x43000000"); B_(*cpow(A128, A128 + 1, f"s{sT0}"))
    B_(f"s_lshl_b32 s{sT0}, s{sW}, 5", f"v_cvt_f32_u32 v{T+23}, s{sT0}"); B_(*cpow(PW, PW + 1, f"v{T+23}"))
    KC = T
    B_(f"v_add_f32 v{M_}, -1.0, v{TB}", f"v_mul_f32 v{A_}, v{LRE}, v{LRE}", f"v_fmac_f32 v{A_}, v{LIM}, v{LIM}", f"v_rcp_f32 v{A_}, v{A_}",
       f"v_mul_f32 v{KC}, v{M_}, v{LRE}", f"v_fmac_f32 v{KC}, v{TB+1}, v{LIM}",
       f"v_mul_f32 v{KC+1}, v{TB+1}, v{LRE}", f"v_fma_f32 v{KC+1}, -v{M_}, v{LIM}, v{KC+1}",
       f"v_mul_f32 v{KC}, v{KC}, v{A_}", f"v_mul_f32 v{KC+1}, v{KC+1}, v{A_}")
    B_(f"s_and_b32 s{sT0}, s{sSLICE}, 1", f"s_lshl_b32 s{sT0}, s{sT0}, 3", f"s_add_u32 s{sT0}, s{sT0}, 32")
    B_(f"v_cmp_gt_u32 vcc, s{sT0}, v{CH}", f"v_mul_u32_u24 v{CH}, 48, v{CH}", f"v_add_u32 v{CH}, {TAB}, v{CH}",
       f"v_cndmask_b32 v{KC}, 0, v{KC}, vcc", f"v_cndmask_b32 v{KC+1}, 0, v{KC+1}, vcc")
    B_(f"v_mov_b32 v{KC+2}, 0", f"v_mov_b32 v{KC+3}, 0")
    B_(f"ds_write_b128 v{CH}, {vr(TB)}", f"ds_write_b128 v{CH}, {vr(TB+4)} offset:16", f"ds_write_b128 v{CH}, {vr(KC)} offset:32")

    units, ustage, u0 = [], [], []
    for k, st in enumerate(stages):
        u0.append(len(units))
        for un in st.units: units.append(un); ustage.append(k)
    NU = len(units); u0.append(NU)

    def read_ins(u):
        un = units[u]; k = ustage[u]
        o = []; d = afrag(u)
        for (op, nreg, base, off, mode) in un["reads"]:
            if mode == "abs": b, o2 = base, off
            else: b, o2 = base + int(mode[1:]) * setof(k), off + slot_rel(k)
            assert o2 < 65536
            o.append(I(f"{op} {ar(d, nreg)}, v{b} offset:{o2}")); d += nreg
        return o

    DEPTH = int(opt.get('depth', 6)); WE = int(opt.get('we', 4))
    def stamp(i):
        return [I("s_memtime s[100:101]"), I("s_waitcnt lgkmcnt(0)"), I(f"v_writelane_b32 v255, s100, {i}")]
    XR_AT = {2: ('xr4', 'xr5'), 3: ('xr7', 'xr6'), 4: ('xr8',)}
    slots = []; bar_mf = {}; extra_pre = {}
    for u in range(NU):
        un = units[u]; fr = ar(afrag(u))
        rd = read_ins(u + DEPTH) if u + DEPTH < NU else []
        pre = []
        kn = ustage[u + DEPTH] if u + DEPTH < NU else None
        if kn is not None and u + DEPTH == u0[kn]:
            pre += [WaitTag(f"st{kn}", "wtot", *XR_AT.get(kn, ())), I("s_barrier")]
            if opt.get("ts") == "1" or (opt.get("ts") == "2" and kn in (1, 2, 3, 4, 5, 11, 17, 23, 29, 32, 36, 40, 44, 48)): pre += stamp(kn + 1)
            bar_mf[kn] = 2 * u
        if u % WE == 0:
            rg = []
            for x in range(u, min(u + WE, NU)): rg += regs_of(ar(afrag(x)))
            pre += [WaitRegs(rg)]
        for n in range(2):
            d, a, b, c = un["mf"][n]
            txt = mf(d, a, fr, c) if un["swap"] else mf(d, fr, b, c)
            slots.append(Slot(txt, pre if n == 0 else [], rd[n:n + 1] if n < len(rd) else []))
    mend = lambda k: 2 * u0[k + 1] - 1
    mbeg = lambda k: 2 * u0[k]
    if opt.get("ts"): A(stamp(60))
    A(WaitTag("x0")); A(xreads(0)); A(WaitTag("x1")); A(xreads(1))
    A(WaitTag("st0", "gw"), "s_barrier")
    if opt.get("ts"): A(stamp(1))
    for u in range(DEPTH): A(read_ins(u))

    kF = lambda c: 5 + 6 * c
    kH = 29; kG = 32
    kP = lambda p: kG + 4 * p
    mXB = mend(4)
    sD = Stream("dma", 0)
    fr_of = lambda j: [r for h in range(2) for n in range(2) for r in regs_of(xfrag(2*j+h, n))]
    def xd(j, e, dl, after=None):
        its = xdma(j)
        if after is not None: sD.add([WaitRegs(fr_of(after))], e, dl)
        for it in its: sD.add(it, e, dl)
    def xr(j, e, dl):
        sD.add([WaitTag(f"x{j}")], e, dl)
        for r_ in xreads(j): sD.add(r_, e, dl)
    xd(4, 0, 10); xd(5, 0, 20)
    xr(2, 4, 30); xr(3, 4, 36)
    xd(6, 20, 46, after=2); xd(7, 20, 54, after=3)
    xr(4, 56, bar_mf[2] - 8); xr(5, 56, bar_mf[2] - 2)
    for it in dma_items(3): sD.add(it, bar_mf[2], bar_mf[2] + 12)
    xr(6, bar_mf[2] + 12, bar_mf[2] + 24)
    xd(8, bar_mf[2] + 20, bar_mf[2] + 34, after=6)
    xr(7, bar_mf[2] + 24, bar_mf[3] - 2)
    for it in dma_items(4): sD.add(it, bar_mf[3], bar_mf[3] + 12)
    xr(8, bar_mf[3] + 30, bar_mf[4] - 2)
    for it in dma_items(5): sD.add(it, bar_mf[4], bar_mf[4] + 12)
    xdone = bar_mf[4]
    prev_user = {}
    e_prev = bar_mf[4] + 12; d_prev = e_prev
    for k in range(NST):
        sl_ = slot_of(k)
        if k >= 6:
            e_ = bar_mf[prev_user[sl_] + 2]
            e_ = max(e_, e_prev)
            d_ = min(max(e_ + 44, d_prev + 20), bar_mf[k] - 2)
            for it in dma_items(k): sD.add(it, e_, d_)
            e_prev, d_prev = e_, d_
        prev_user[sl_] = k
    sP = Stream("setup", 1)
    for i_, x in enumerate(setup):
        sP.add(x, 0, bar_mf[4] if i_ < nW1 else (bar_mf[5] if i_ < nP1 else mXB))
    sA = Stream("addr", 1)
    sA.extend(voff_W1half(D1, TA), max(mXB + 1, xdone + 1), bar_mf[kH - 4])
    sA.extend(base_T64(P2, TA), mXB + 1, bar_mf[kH])
    sA.extend(voff_Wd(D2, TA), bar_mf[28 - 3], bar_mf[kG - 4])
    sA.extend(voff_C(D1, TA), bar_mf[31 - 3], bar_mf[kG + 3 - 4])
    sA.extend(base_T128(P1, 4, TA), bar_mf[kH] + 8, bar_mf[kG])
    sA.extend(base_C(P2 + 2, TA), bar_mf[kG] + 8, bar_mf[kG + 3])

    sE = Stream("epi", 2)
    def ffn_epi(c, nblk, earliest, deadline):
        buf = ACC[c & 1]
        for mt in range(nblk):
            K = 2 * c + (mt >> 1); half = mt & 1
            for n in range(2):
                g = buf + mt * 8 + 4 * n; u_ = buf + (4 + mt) * 8 + 4 * n
                o = []
                for r in range(4): o += [f"v_max_f32 v{g+r}, 0, v{g+r}", f"v_mul_f32 v{u_+r}, v{SF+n}, v{u_+r}"]
                for r in range(4): o += [f"v_mul_f32 v{g+r}, v{g+r}, v{u_+r}"]
                o += [f"v_cvt_pk_bf16_f32 v{u_}, v{g}, v{g+1}", f"v_cvt_pk_bf16_f32 v{u_+1}, v{g+2}, v{g+3}"]
                h = AH + 8 * K + 4 * n + 2 * half
                o += [f"v_accvgpr_write_b32 a{h}, v{u_}", f"v_accvgpr_write_b32 a{h+1}, v{u_+1}"]
                sE.extend(o, earliest, deadline)
    for c in range(4):
        nxt = mend(kF(c) + 5)
        dl = mbeg(kF(c + 2)) if c < 2 else (mbeg(kH) if c == 2 else mbeg(kP(0)))
        ffn_epi(c, 4, nxt + 4, dl)
    ffn_epi(4, 2, mend(kH + 2) + 4, mbeg(kP(0) + 2) + 2 * 16)
    for p in range(5):
        buf = ACC[(p + 1) & 1]
        nm = 8 if p < 4 else 4
        last = mend(kP(p) + 3) if p < 4 else mend(NST - 1)
        dl = mbeg(kP(p + 2)) if p < 3 else None
        for m in range(nm):
            a = buf + m * 8
            o = [f"v_cvt_pk_bf16_f32 v{a}, v{a}, v{a+1}", f"v_cvt_pk_bf16_f32 v{a+1}, v{a+2}, v{a+3}",
                 f"v_cvt_pk_bf16_f32 v{a+2}, v{a+4}, v{a+5}", f"v_cvt_pk_bf16_f32 v{a+3}, v{a+6}, v{a+7}"]
            sE.extend(o, last + 4, dl)
            imm = 1024 * (m % 4)
            sE.add(f"buffer_store_dwordx4 {vr(a)}, v{VST}, {sr(S_WS)}, s{sPST} offen" + (f" offset:{imm}" if imm else "") + opt.get("pst", ""), last + 4, dl)
            if m % 4 == 3: sE.add(f"s_add_u32 s{sPST}, s{sPST}, 4096", last + 4, dl)

    sS = Stream("ssm", 3)
    e = mXB + 4
    add = lambda x, earliest=None, deadline=None: sS.add(x, e if earliest is None else earliest, deadline)
    def adds(lst, **kw):
        for x in lst: add(x, **kw)
    dlG = mend(kF(0) + 5)
    G0, G1, Z = T, T + 1, T + 2
    adds([f"v_lshrrev_b32 v{G0}, 4, {L}", f"v_lshlrev_b32 v{G0}, 4, v{G0}", f"v_add_u32 v{G0}, s{sW3}, v{G0}", f"v_add_u32 v{G0}, {PRIV}, v{G0}"])
    for n in range(2): add(f"ds_write_b128 v{G0}, {vr(LG+4*n)} offset:{64*n}")
    adds([f"v_and_b32 v{G1}, 31, {L}", f"v_lshlrev_b32 v{G1}, 2, v{G1}", f"v_add_u32 v{G1}, s{sW3}, v{G1}", f"v_add_u32 v{G1}, {PRIV}, v{G1}",
          f"ds_read_b32 v{Z}, v{G1}"])
    TA1 = T + 8
    adds([f"v_and_b32 v{VT}, 15, {L}", f"v_mul_u32_u24 v{VT}, 48, v{VT}", f"v_add_u32 v{VT}, {TAB}, v{VT}"])
    for b in range(3): add(f"ds_read_b64 {vr(TA1+2*b, 2)}, v{VT} offset:{b*768}")
    adds([f"v_cvt_pk_bf16_f32 v{Z}, v{Z}, v{Z}", f"v_lshlrev_b32 v{Z}, 16, v{Z}", f"v_mul_f32 v{Z}, {hex(LOG2E ^ 0x80000000)}, v{Z}", f"v_exp_f32 v{Z}, v{Z}",
          f"v_lshrrev_b32 v{VE}, 4, {L}",
          f"v_add_f32 v{Z}, 1.0, v{Z}", f"v_rcp_f32 v{Z}, v{Z}", f"v_mul_u32_u24 v{VE}, 384, v{VE}",
          f"v_cvt_pk_bf16_f32 v{Z}, v{Z}, v{Z}", f"v_lshlrev_b32 v{Z}, 16, v{Z}",
          f"v_sub_f32 v{T+3}, 1.0, v{Z}", f"v_cvt_pk_bf16_f32 v{T+3}, v{T+3}, v{T+3}", f"v_lshlrev_b32 v{T+3}, 16, v{T+3}", f"v_add_f32 v{T+4}, v{Z}, v{Z}",
          f"ds_write_b32 v{G1}, v{T+3} offset:128", f"ds_write_b32 v{G1}, v{T+4} offset:256"])
    add([f"s_lshl_b32 s{sT0}, s{sTILE}, 7", f"s_lshl_b32 s{sT1}, s{sW}, 5", f"s_add_u32 s{sT0}, s{sT0}, s{sT1}", f"s_lshl_b32 s{sT0}, s{sT0}, 2",
         f"s_add_u32 s{sT0}, s{sT0}, {WS_G}", f"s_cmp_eq_u32 s{sSLICE}, 0", f"s_cselect_b32 s{sT1}, 32, 0"])
    adds([f"v_lshlrev_b32 v{T+5}, 2, {L}", f"v_cmp_gt_u32 vcc, s{sT1}, {L}", f"v_mov_b32 v{T+6}, {hex(OOB)}", f"v_and_b32 v{T+7}, 15, {L}",
          f"v_cndmask_b32 v{T+5}, v{T+6}, v{T+5}, vcc", f"buffer_store_dword v{Z}, v{T+5}, {sr(S_WS)}, s{sT0} offen",
          f"v_lshlrev_b32 v{T+7}, 2, v{T+7}", f"v_add_u32 v{T+7}, s{sW3}, v{T+7}", f"v_add_u32 v{T+7}, {PRIV}, v{T+7}"])
    for n in range(2): add(f"ds_read_b32 v{SF+n}, v{T+7} offset:{128+64*n}")
    for n in range(2): add(f"ds_read_b128 {vr(LG+4*n)}, v{G0} offset:{256+64*n}")
    adds([f"v_and_b32 v{VE+1}, 15, {L}", f"v_lshlrev_b32 v{VE+1}, 3, v{VE+1}", f"v_add_u32 v{VE}, v{VE}, v{VE+1}", f"v_add_u32 v{VE}, s{sW3}, v{VE}",
          f"v_add_u32 v{VE}, {PRIV}, v{VE}", f"v_add_u32 v{VE+1}, 1536, v{VE}"])
    add(WaitRegs([f"v{SF}", f"v{SF+1}"] + regs_of(vr(LG, 8))), deadline=dlG)
    for r in range(1, 4):
        for b in range(3):
            are, aim = TA1 + 2 * b, TA1 + 2 * b + 1
            for n in range(2):
                R, Im = xb(b, 0, n), xb(b, 1, n)
                adds([f"v_fmac_f32 v{R+r}, v{are}, v{R+r-1}", f"v_fmac_f32 v{Im+r}, v{are}, v{Im+r-1}"])
            for n in range(2):
                R, Im = xb(b, 0, n), xb(b, 1, n)
                adds([f"v_fma_f32 v{R+r}, -v{aim}, v{Im+r-1}, v{R+r}", f"v_fmac_f32 v{Im+r}, v{aim}, v{R+r-1}"])
    for b in range(3):
        for n in range(2):
            add(f"ds_write2_b32 v{VE+n}, v{xb(b,0,n)+3}, v{xb(b,1,n)+3} offset0:{32*b} offset1:{32*b+1}")
    adds([f"v_add_u32 v{VP}, s{sW3}, v{VCH}", f"v_add_u32 v{VP}, {PRIV}, v{VP}"])
    for m in range(8): add(f"ds_read_b64 {vr(T+2*m, 2)}, v{VP} offset:{384*m}")
    add([f"s_mul_i32 s{sT0}, s{sW}, 384", f"s_add_u32 s{sT0}, s{sT0}, {WTOT}"]); add(f"v_add_u32 v{TS}, s{sT0}, v{VCH}")
    for m in range(1, 8): adds(cmul_acc(T + 2*m, T + 2*m + 1, A4, A4 + 1, T + 2*m - 2, T + 2*m - 1))
    kWB = kF(1) + 2
    add(I(f"ds_write_b64 v{TS}, {vr(T+14, 2)}", tag="wtot"), deadline=bar_mf[kWB] - 2)
    e = bar_mf[kWB]
    adds([f"v_add_u32 v{TS}, {WTOT}, v{VCH}"])
    for m in range(4): add(f"ds_read_b64 {vr(T+2*m, 2)}, v{TS} offset:{384*m}")
    add([f"s_mul_i32 s{sT0}, s{sTILE}, 384", f"s_cmp_eq_u32 s{sW}, 0", f"s_cselect_b32 s{sT1}, 48, 0"])
    adds([f"v_add_u32 v{TS+1}, s{sT0}, v{VCH}", f"v_cmp_gt_u32 vcc, s{sT1}, {L}", f"v_mov_b32 v{TS+2}, {hex(OOB)}"])
    for m in range(1, 4): adds(cmul_acc(T + 2*m, T + 2*m + 1, A32, A32 + 1, T + 2*m - 2, T + 2*m - 1))
    adds([f"v_cndmask_b32 v{TS+1}, v{TS+2}, v{TS+1}, vcc"])
    add(I(f"buffer_store_dwordx2 {vr(T+6, 2)}, v{TS+1}, {sr(S_S)}, 0 offen sc1", tag="sst"))
    add([f"s_lshl_b32 s{sT0}, s{sSLICE}, 4", f"s_add_u32 s{sT0}, s{sT0}, s{sTILE}", f"s_cmp_eq_u32 s{sW}, 0", f"s_cselect_b32 s{sT1}, 1, 0"])
    adds([f"v_mov_b32 v{TS+1}, s{sT0}", f"v_cmp_gt_u32 vcc, s{sT1}, {L}", f"v_mov_b32 v{TS+3}, 1", f"v_cndmask_b32 v{TS+1}, v{TS+2}, v{TS+1}, vcc"])
    e = bar_mf[kWB + 2]
    add([WaitTag("sst"), I(f"buffer_store_byte v{TS+3}, v{TS+1}, {sr(S_DBG)}, 0 offen sc1")])
    kPoll = kF(2) + 1
    e = bar_mf[kPoll]
    add([f"s_lshl_b32 s{sT0}, s{sSLICE}, 4"]); add(f"v_add_u32 v{TS}, s{sT0}, {L}"); add(f"v_cmp_gt_u32 vcc, 16, {L}"); add(f"v_mov_b32 v{TS+2}, {hex(OOB)}")
    add(f"v_cndmask_b32 v{TS}, v{TS+2}, v{TS}, vcc")
    add(f"buffer_load_ubyte v{TS+1}, v{TS}, {sr(S_DBG)}, 0 offen sc1")
    e = bar_mf[kPoll + 2]
    add([I(f"v_cmp_ne_u32 vcc, 0, v{TS+1}"), I(f"s_or_b64 vcc, vcc, s[{sMASK}:{sMASK+1}]"), I("s_cmp_eq_u64 vcc, -1"), I("s_cbranch_scc0 L_slow_poll"), I("L_back_poll:")])
    add([f"s_mul_i32 s{sT0}, s{sTILE}, 384"]); add(f"v_add_u32 v{TS}, s{sT0}, v{VCH}")
    for idx, k in enumerate(range(15, 7, -1)):
        t_ = TS + 1 + (idx & 1)
        add(f"v_subrev_u32 v{t_}, {k*384}, v{TS}")
        add(f"buffer_load_dwordx2 {vr(T+2*idx, 2)}, v{t_}, {sr(S_S)}, 0 offen sc1")
    e = bar_mf[kPoll + 4]
    CC = TS + 2
    for m in range(1, 8): adds(cmul_acc(T + 2*m, T + 2*m + 1, A128, A128 + 1, T + 2*m - 2, T + 2*m - 1))
    adds([f"v_mov_b32 v{CC}, v{T+14}", f"v_mov_b32 v{CC+1}, v{T+15}"])
    for idx, k in enumerate(range(7, 0, -1)):
        add(f"v_subrev_u32 v{TS+1}, {k*384}, v{TS}")
        add(f"buffer_load_dwordx2 {vr(T+2*idx, 2)}, v{TS+1}, {sr(S_S)}, 0 offen sc1")
    e = bar_mf[kPoll + 6]
    adds(cmul_acc(T, T + 1, A128, A128 + 1, CC, CC + 1))
    for m in range(1, 7): adds(cmul_acc(T + 2*m, T + 2*m + 1, A128, A128 + 1, T + 2*m - 2, T + 2*m - 1))
    adds([f"v_mov_b32 v{CC}, v{T+12}", f"v_mov_b32 v{CC+1}, v{T+13}"])
    for k in (3, 2, 1):
        add([f"s_sub_u32 s{sT0}, s{sW}, {k}", f"s_max_i32 s{sT0}, s{sT0}, 0", f"s_mul_i32 s{sT0}, s{sT0}, 384", f"s_add_u32 s{sT0}, s{sT0}, {WTOT}"])
        add(f"v_add_u32 v{TS}, s{sT0}, v{VCH}")
        add(f"ds_read_b64 {vr(T+2*(3-k), 2)}, v{TS}")
    for k, sm in ((3, sM3), (2, sM2), (1, sM1)):
        j = T + 2 * (3 - k)
        adds([f"v_mul_f32 v{j}, s{sm}, v{j}", f"v_mul_f32 v{j+1}, s{sm}, v{j+1}"])
    adds(cmul_acc(T + 2, T + 3, A32, A32 + 1, T, T + 1)); adds(cmul_acc(T + 4, T + 5, A32, A32 + 1, T + 2, T + 3))
    adds(cmul_acc(T + 4, T + 5, PW, PW + 1, CC, CC + 1))
    adds([f"v_mov_b32 v{CC}, v{T+4}", f"v_mov_b32 v{CC+1}, v{T+5}"])
    for m in range(7): add(f"ds_read_b64 {vr(T+2*m, 2)}, v{VP} offset:{384*m}")
    add(f"ds_write_b64 v{VP}, {vr(CC, 2)}")
    adds(cmul_acc(T, T + 1, A4, A4 + 1, CC, CC + 1))
    add(f"ds_write_b64 v{VP}, {vr(T, 2)} offset:384")
    for m in range(1, 7):
        adds(cmul_acc(T + 2*m, T + 2*m + 1, A4, A4 + 1, T + 2*m - 2, T + 2*m - 1))
        add(f"ds_write_b64 v{VP}, {vr(T+2*m, 2)} offset:{384*(m+1)}")
    VW, VR = TS, TS + 1
    adds([f"v_and_b32 v{VW}, 15, {L}", f"v_lshlrev_b32 v{VW}, 5, v{VW}", f"v_lshrrev_b32 v{VR}, 4, {L}", f"v_lshlrev_b32 v{VR}, 3, v{VR}",
          f"v_add_u32 v{VW}, v{VW}, v{VR}", f"v_add_u32 v{VW}, s{sW3}, v{VW}", f"v_add_u32 v{VW}, {PRIV}, v{VW}",
          f"v_lshlrev_b32 v{VR}, 3, {L}", f"v_add_u32 v{VR}, s{sW3}, v{VR}", f"v_add_u32 v{VR}, {PRIV}, v{VR}"])
    dlS = bar_mf[kP(0) + 3]
    for n in range(2):
        for b in range(3): add(f"ds_read_b64 {vr(T+2*b, 2)}, v{VE+n} offset:{128*b}")
        for b in range(3):
            TBL = T + 6
            adds([f"ds_read_b128 {vr(TBL)}, v{VT} offset:{b*768}", f"ds_read_b128 {vr(TBL+4)}, v{VT} offset:{b*768+16}", f"ds_read_b64 {vr(TBL+8, 2)}, v{VT} offset:{b*768+32}"])
            R, Im = xb(b, 0, n), xb(b, 1, n)
            cre, cim = T + 2 * b, T + 2 * b + 1
            for r in range(4): adds(cmul_acc(R + r, Im + r, TBL + 2*r, TBL + 2*r + 1, cre, cim))
            kr, ki, tt = TBL + 8, TBL + 9, TS + 2
            for r in range(4):
                t_ = tt + (r & 1)
                adds([f"v_mul_f32 v{t_}, v{kr}, v{R+r}", f"v_fma_f32 v{t_}, -v{ki}, v{Im+r}, v{t_}",
                      f"v_mul_f32 v{Im+r}, v{kr}, v{Im+r}", f"v_fmac_f32 v{Im+r}, v{ki}, v{R+r}",
                      f"v_mul_f32 v{R+r}, v{LG+4*n+r}, v{t_}", f"v_mul_f32_e64 v{Im+r}, -v{LG+4*n+r}, v{Im+r}"])
            adds([f"v_cvt_pk_bf16_f32 v{R}, v{R}, v{R+1}", f"v_cvt_pk_bf16_f32 v{R+1}, v{R+2}, v{R+3}",
                  f"v_cvt_pk_bf16_f32 v{Im}, v{Im}, v{Im+1}", f"v_cvt_pk_bf16_f32 v{Im+1}, v{Im+2}, v{Im+3}"])
            so = 1536 * n
            adds([f"ds_write_b64 v{VW}, {vr(R, 2)} offset:{so}", f"ds_write_b64 v{VW}, {vr(Im, 2)} offset:{so+512}",
                  f"ds_read_b64_tr_b16 {vr(R, 2)}, v{VR} offset:{so}", f"ds_read_b64_tr_b16 {vr(R+2, 2)}, v{VR} offset:{so+512}"], deadline=dlS)
    add(WaitRegs([f"v{xb(b,0,n)+r}" for b in range(3) for n in range(2) for r in range(4)]), deadline=dlS)

    sW_ = Stream("warm", 5)
    if opt.get("nopf") is None:
        PFL = opt.get("pf", " sc1")
        PVL = TA + 2; sQ = 73; sX = sT4
        def pf(e, areg, sset, srd_, dst):
            sW_.add(f"v_accvgpr_read_b32 v{PVL}, a{areg}", e, e + 30)
            for x in sset: sW_.add(x, e, e + 30)
            sW_.add(f"buffer_load_dword a{dst}, v{PVL}, {sr(srd_)}, s{sQ} offen{PFL}", e, e + 40)
        t_a = int(opt.get("pf_a", mbeg(kF(0)) + 20))
        pf(t_a, 253, [f"s_mul_i32 s{sQ}, s{sX}, {18*9216}", f"s_mul_i32 s{sQ+1}, s{sSLICE}, 576", f"s_add_u32 s{sQ}, s{sQ}, s{sQ+1}",
                      f"s_and_b32 s{sQ+1}, s{sSLICE}, 1", f"s_lshl_b32 s{sQ+1}, s{sQ+1}, 6", f"s_add_u32 s{sQ}, s{sQ}, s{sQ+1}"], S_W1, 251)
        t_d = int(opt.get("pf_d", mbeg(kF(1)) + 120))
        pf(t_d, 254, [f"s_lshl_b32 s{sQ}, s{sTILE}, 2", f"s_add_u32 s{sQ}, s{sQ}, s{sW}", f"s_mul_i32 s{sQ}, s{sQ}, {41*128}",
                      f"s_mul_i32 s{sQ+1}, s{sSLICE}, {288*1152}", f"s_add_u32 s{sQ}, s{sQ}, s{sQ+1}"], S_WD, 252)
        pf(t_d + 100, 255, [f"s_mul_i32 s{sQ}, s{sX}, {18*1152}", f"s_lshl_b32 s{sQ+1}, s{sC0}, 1", f"s_add_u32 s{sQ}, s{sQ}, s{sQ+1}"], S_C, 248)
    streams = [sD, sP, sA, sE, sS, sW_]
    body, rest, stats = schedule(slots, streams)
    tail = rest
    slow = [I("L_slow_poll:"), I(f"s_mov_b32 s{sT2}, 0"), I("L_slow_poll_loop:"), I("s_sleep 2"),
            I(f"buffer_load_ubyte v{TS+1}, v{TS}, {sr(S_DBG)}, 0 offen sc1"), I("s_waitcnt vmcnt(0)"),
            I(f"v_cmp_ne_u32 vcc, 0, v{TS+1}"), I("s_nop 4"), I(f"s_or_b64 vcc, vcc, s[{sMASK}:{sMASK+1}]"), I("s_cmp_eq_u64 vcc, -1"),
            I("s_cbranch_scc1 L_back_poll"), I(f"s_add_u32 s{sT2}, s{sT2}, 1"), I(f"s_cmp_lt_u32 s{sT2}, 0x40000"),
            I("s_cbranch_scc1 L_slow_poll_loop"), I("s_branch L_back_poll")]
    if opt.get("ts"):
        tail = tail + stamp(58) + [I("s_waitcnt vmcnt(0)")] + stamp(59) + [I("s_memrealtime s[100:101]"), I("s_waitcnt lgkmcnt(0)"), I("v_writelane_b32 v255, s100, 62")]
        tail += expand([f"s_lshl_b32 s{sT0}, s2, 2", f"s_add_u32 s{sT0}, s{sT0}, s{sW}", f"s_lshl_b32 s{sT0}, s{sT0}, 8", f"s_add_u32 s{sT0}, s{sT0}, {WS_END}",
                        f"v_lshlrev_b32 v1, 2, {L}", f"buffer_store_dword v255, v1, {sr(S_WS)}, s{sT0} offen"])
    prog = pro + body + tail
    prog, nw = insert_waits(prog)
    prog, nn = pad_hazards(prog)
    ol = stats.pop("overlog")
    stats["over_by_stage"] = [sum(ol[2*u0[k]:2*u0[k+1]]) for k in range(NST)]
    info = dict(stats, NU=NU, nwait=nw, nnop=nn, ninstr=len(prog), NST=NST, tail=len(tail))
    txt = render(prog) + "\n  s_endpgm\n" + render(slow) + "\nL_main_end:\n  s_endpgm\n"
    return txt, info


def build_reduce(opt):
    o = []
    A = lambda *x: o.extend(expand(list(x)))
    A("s_cmp_ge_u32 s2, 576", "s_cbranch_scc1 L_red_end")
    if opt.get("ts"): A("s_memrealtime s[80:81]")
    A("s_load_dwordx2 s[64:65], s[0:1], 0", "s_load_dwordx2 s[66:67], s[0:1], 64", "s_load_dwordx2 s[68:69], s[0:1], 112", "s_load_dwordx2 s[70:71], s[0:1], 128")
    A("v_lshrrev_b32 v1, 6, v0", "v_and_b32 v2, 63, v0")
    A("v_readfirstlane_b32 s20, v1")
    A("s_lshl_b32 s21, s2, 2", "s_add_u32 s21, s21, s20")
    A("s_mul_i32 s22, s21, 1821", "s_lshr_b32 s22, s22, 16")
    A("s_mul_i32 s23, s22, 36", "s_sub_u32 s23, s21, s23")
    A("s_lshl_b32 s24, s21, 10")
    A("s_lshl_b32 s25, s22, 5")
    A("v_lshlrev_b32 v3, 4, v2", "v_and_b32 v4, 15, v2", "v_lshrrev_b32 v5, 4, v2")
    A("s_waitcnt lgkmcnt(0)")
    if WSOFF: A(f"s_add_u32 s70, s70, {WSOFF}", "s_addc_u32 s71, s71, 0")
    A(srd(4, "s70", "s71", WS_END), srd(8, "s64", "s65", 2359296), srd(12, "s66", "s67", 1152), srd(16, "s68", "s69", 4718592))
    for s in range(16):
        A(f"buffer_load_dwordx4 {vr(32+4*s)}, v3, s[4:7], s24 offen" + opt.get("rld", ""))
        if s < 15: A(f"s_add_u32 s24, s24, {16*4*36*1024}")
    A("s_lshl_b32 s26, s23, 4", "v_lshlrev_b32 v6, 2, v5", "v_add_u32 v6, s26, v6")
    A("v_add_u32 v7, s25, v4")
    A("v_mul_u32_u24 v8, 576, v7", "v_add_u32 v8, v8, v6")
    A("v_lshlrev_b32 v9, 1, v8", "v_lshlrev_b32 v10, 2, v8", "v_lshlrev_b32 v11, 1, v6", "v_lshlrev_b32 v12, 2, v7")
    A("buffer_load_dwordx2 v[14:15], v9, s[8:11], 0 offen")
    A("s_mov_b32 s27, 18432", "buffer_load_dwordx2 v[16:17], v9, s[8:11], s27 offen")
    A("buffer_load_dwordx2 v[18:19], v11, s[12:15], 0 offen")
    A(f"s_mov_b32 s28, {WS_G}", "buffer_load_dword v20, v12, s[4:7], s28 offen", "buffer_load_dword v21, v12, s[4:7], s28 offen offset:64")
    for r in range(8): A(f"v_mov_b32 v{100+r}, 0")
    for s in range(16):
        for j in range(4):
            src = 32 + 4 * s + j
            A(f"v_lshlrev_b32 v22, 16, v{src}", f"v_and_b32 v23, 0xffff0000, v{src}", f"v_add_f32 v{100+2*j}, v{100+2*j}, v22", f"v_add_f32 v{101+2*j}, v{101+2*j}, v23")
    for n in range(2):
        for j in range(2):
            xs, ds = 14 + 2 * n + j, 18 + j
            A(f"v_lshlrev_b32 v22, 16, v{xs}", f"v_and_b32 v23, 0xffff0000, v{xs}", f"v_lshlrev_b32 v24, 16, v{ds}", f"v_and_b32 v25, 0xffff0000, v{ds}",
              "v_mul_f32 v22, v22, v24", "v_mul_f32 v23, v23, v25", "v_cvt_pk_bf16_f32 v22, v22, v23",
              "v_and_b32 v23, 0xffff0000, v22", "v_lshlrev_b32 v22, 16, v22",
              f"v_fmac_f32 v{100+4*n+2*j}, v{20+n}, v22", f"v_fmac_f32 v{101+4*n+2*j}, v{20+n}, v23")
    A("buffer_store_dwordx4 v[100:103], v10, s[16:19], 0 offen")
    A("s_mov_b32 s27, 36864", "buffer_store_dwordx4 v[104:107], v10, s[16:19], s27 offen")
    if opt.get("ts"):
        A("s_waitcnt vmcnt(0)", "s_memrealtime s[82:83]", "s_waitcnt lgkmcnt(0)", "v_mov_b32 v30, s80", "v_mov_b32 v31, s82", "s_lshl_b32 s27, s21, 3",
          f"s_add_u32 s27, s27, {WS_END + (1 << 18)}", "v_mov_b32 v29, 0", "s_mov_b32 s6, 0x7fffffff", "buffer_store_dwordx2 v[30:31], v29, s[4:7], s27 offen")
    prog, nw = insert_waits(o)
    prog, nn = pad_hazards(prog)
    return render(prog) + "\nL_red_end:\n  s_endpgm\n"


HEADER = open("cdna_kernels/" + NAME + ".s.ref").read().split("; Override launch geometry")[0]

def kd(name, vg, acc, sg):
    return f""".p2align 6
.amdhsa_kernel {name}
  .amdhsa_next_free_vgpr {vg}
  .amdhsa_next_free_sgpr {sg}
  .amdhsa_accum_offset {acc}
  .amdhsa_group_segment_fixed_size 0
  .amdhsa_kernarg_size 136
  .amdhsa_user_sgpr_count 2
  .amdhsa_user_sgpr_kernarg_segment_ptr 1
  .amdhsa_system_sgpr_workgroup_id_x 1
.end_amdhsa_kernel
"""

def build(opt):
    global WSOFF
    WSOFF = int(opt.get('wsoff', 0))
    main, info = build_main(opt)
    red = build_reduce(opt)
    k1, k2 = NAME + "_kernel", "reduce_kernel"
    s = HEADER
    s += f"; @launch kernel={k1} grid=(256,1,1) block=(256,1,1) lds={LDS_BYTES}\n"
    s += f"; @launch kernel={k2} grid=(576,1,1) block=(256,1,1) lds=0\n"
    s += '.amdgcn_target "amdgcn-amd-amdhsa--gfx950"\n.text\n'
    s += f".globl {k1}\n.p2align 8\n.type {k1},@function\n{k1}:\n" + main
    s += f".globl {k2}\n.p2align 8\n.type {k2},@function\n{k2}:\n" + red
    s += "L_code_end:\n.set CODE_SPAN, L_code_end - L_main_pc - 4\n"
    s += '.section .rodata,"a"\n' + kd(k1, 512, 256, 102) + kd(k2, 128, 128, 96)
    return s, info


if __name__ == "__main__":
    out = sys.argv[1] if len(sys.argv) > 1 else "cdna_kernels/" + NAME + ".s"
    opt = {}
    for a in sys.argv[2:]:
        k, v = a.split("=", 1); opt[k] = v
    fw.VM_GAP = int(opt.get('vmgap', 5)); fw.LDS_LAT = int(opt.get('ldslat', 8)); fw.VM_LAT = int(opt.get('vmlat', 90))
    s, info = build(opt)
    open(out, "w").write(s)
    print(info, len(s))
```

```python
import sys
import fw
from fw import *

NAME = "gated_mix__ssm_conv_s5__glu_gated_reglu__prompt"
LOG2E = 0x3fb8aa3b
INV2PI = 0x3e22f983
OOB = 0x7ffffff0

SLOT = 24576; NSLOT = 6
MISC = SLOT * NSLOT
PRIV = MISC
WTOT = MISC + 12288
TAB = WTOT + 1536
LDS_BYTES = TAB + 2304

WS_P = 0
P_BYTES = 16 * 16 * 4 * 36 * 1024
WS_S = P_BYTES
WS_G = WS_S + 16 * 16 * 384
WS_END = WS_G + 8192

ACC = [0, 64]
XB = 128
LG = 176
P1 = 184
P2 = 196
D1 = 203; D2 = 209
SF = 215
A4 = 217; A32 = 219; A128 = 221; PW = 223
LANE = 225
VST = 226
VCH = 227
T = 228
VE = T + 16
VP = T + 18
VT = T + 19
TS = T + 20
TA = T + 24
AX = 0; AF = 144; AH = 176
L = f"v{LANE}"

S_X, S_W1, S_WD, S_B, S_C, S_WS, S_S, S_DBG, S_P = 4, 8, 12, 16, 20, 24, 28, 32, 36
sW, sTILE, sSLICE, sC0, sOA, sOB, sW6, sW3, sPST = 40, 41, 42, 43, 44, 45, 46, 47, 48
sT0, sT1, sT2 = 49, 50, 51
sC2, sFULL, sHALF, sT3 = 52, 53, 54, 55
sMASK = 56
sM1, sM2, sM3 = 58, 59, 60
sWB0 = 61
sW1F, sW1H, sWD2, sWD2B, sWD1, sC1 = 64, 65, 66, 67, 68, 69
sXO, sXL = 98, 99
sT4 = 70


def xfrag(ks, n): return f"a[{AX + 8*ks + 4*n}:{AX + 8*ks + 4*n + 3}]"
def afrag(u): return AF + 4 * (u % 8)
def vr(b, n=4): return f"v[{b}:{b+n-1}]" if n > 1 else f"v{b}"
def ar(b, n=4): return f"a[{b}:{b+n-1}]"
def sr(b): return f"s[{b}:{b+3}]"
def xb(b, mat, n): return XB + ((b * 2 + mat) * 2 + n) * 4
def srd(base, lo, hi, size):
    return [f"s_mov_b32 s{base}, {lo}", f"s_mov_b32 s{base+1}, {hi}", f"s_mov_b32 s{base+2}, {size}", f"s_mov_b32 s{base+3}, 0x20000"]
def mf(d, a, b, c): return f"v_mfma_f32_16x16x32_bf16 {d}, {a}, {b}, {c}"
def slot_of(k): return {4: 5, 5: 4}.get(k, k % NSLOT)
def slot_base(k): return slot_of(k) * SLOT
def setof(k): return slot_of(k) // 2
def slot_rel(k): return (slot_of(k) % 2) * SLOT
XBASE = 3 * SLOT
XPOS = [0, 1, 2, 3, 0, 1, 2, 3, 2]


class Stage:
    def __init__(self, fmt, units, pieces, wq, pre):
        self.fmt, self.units, self.pieces, self.wq, self.pre = fmt, units, pieces, wq, pre


def comp(d, j): return [f"v_subrev_u32 v{d}, {1024*(j%4)}, v{d}"] if j % 4 else []

def voff_par(dst, t, stride, chunk0):
    o = chunk0 + [f"v_lshlrev_b32 v{dst}, 4, v{dst}", f"v_lshrrev_b32 v{t}, 3, {L}", f"v_mul_u32_u24 v{t}, {stride}, v{t}",
                  f"v_xor_b32 v{dst+1}, 64, v{dst}", f"v_add_u32 v{dst}, v{dst}, v{t}", f"v_add_u32 v{dst+1}, v{dst+1}, v{t}",
                  f"v_add_u32 v{dst+1}, {8*stride - 1024}, v{dst+1}"]
    for j in range(2, 6):
        delta = (j - (j & 1)) * 8 * stride - (1024 * (j % 4) - 1024 * (j & 1))
        o += [f"v_add_u32 v{dst+j}, {delta}, v{dst + (j & 1)}"]
    return o

def voff_lin(dst, t, rows, stride, first):
    o = list(first)
    for j in range(1, 6): o += [f"v_add_u32 v{dst+j}, {j*rows*stride - 1024*(j%4)}, v{dst}"]
    return o

def voff_B(dst, t):
    return voff_par(dst, t, 1152, [f"v_lshrrev_b32 v{dst}, 4, {L}", f"v_and_b32 v{t}, 7, {L}", f"v_xor_b32 v{dst}, v{dst}, v{t}"])

def voff_W1full(dst, t):
    return voff_par(dst, t, 9216, [f"v_bfe_u32 v{dst}, {L}, 4, 1", f"v_lshlrev_b32 v{dst}, 1, v{dst}", f"v_and_b32 v{t}, 7, {L}", f"v_xor_b32 v{dst}, v{dst}, v{t}"])

def voff_W1half(dst, t):
    d = dst
    return voff_lin(dst, t, 16, 9216, [f"v_lshrrev_b32 v{d}, 5, {L}", f"v_lshlrev_b32 v{d}, 1, v{d}", f"v_and_b32 v{t}, 3, {L}", f"v_xor_b32 v{d}, v{d}, v{t}",
                                       f"v_lshlrev_b32 v{d}, 4, v{d}", f"v_lshrrev_b32 v{t}, 2, {L}", f"v_mul_u32_u24 v{t}, 9216, v{t}", f"v_add_u32 v{d}, v{d}, v{t}"])

def voff_Wd(dst, t):
    d = dst
    return voff_lin(dst, t, 8, 1152, [f"v_lshrrev_b32 v{d}, 4, {L}", f"v_lshlrev_b32 v{d}, 1, v{d}", f"v_and_b32 v{t}, 7, {L}", f"v_xor_b32 v{d}, v{d}, v{t}",
                                      f"v_lshlrev_b32 v{d}, 4, v{d}", f"v_lshrrev_b32 v{t}, 3, {L}", f"v_mul_u32_u24 v{t}, 1152, v{t}", f"v_add_u32 v{d}, v{d}, v{t}"])

def voff_C(dst, t):
    o = []
    for j in range(3):
        d = dst + j
        o += [f"v_add_u32 v{t}, {64*j}, {L}", f"v_mul_u32_u24 v{t+1}, 10923, v{t}", f"v_lshrrev_b32 v{t+1}, 16, v{t+1}",
              f"v_mul_u32_u24 v{d}, 6, v{t+1}", f"v_sub_u32 v{d}, v{t}, v{d}",
              f"v_bfe_u32 v{t}, v{t+1}, 3, 1", f"v_xor_b32 v{d}, v{d}, v{t}", f"v_lshlrev_b32 v{d}, 4, v{d}",
              f"v_mul_u32_u24 v{t+1}, 1152, v{t+1}", f"v_add_u32 v{d}, v{d}, v{t+1}"] + comp(d, j)
    for j in range(3):
        o += [f"v_add_u32 v{dst+j+3}, {32*1152 + 1024*(j%4) - 1024*((j+3)%4)}, v{dst+j}"]
    return o

def base_T128(dst, qrows, t):
    o = [f"v_lshrrev_b32 v{t}, 4, {L}", f"v_mul_u32_u24 v{t}, {qrows}, v{t}", f"v_bfe_u32 v{t+1}, {L}, 2, 2", f"v_add_u32 v{t}, v{t}, v{t+1}",
         f"v_lshlrev_b32 v{t}, 7, v{t}", f"v_and_b32 v{t+1}, 3, {L}", f"v_lshlrev_b32 v{t+1}, 3, v{t+1}", f"v_add_u32 v{t}, v{t}, v{t+1}",
         f"v_bfe_u32 v{t+1}, {L}, 3, 2"]
    for mt in range(4):
        d = dst + mt
        o += [f"v_xor_b32 v{d}, {mt}, v{t+1}", f"v_lshlrev_b32 v{d}, 5, v{d}", f"v_add_u32 v{d}, v{d}, v{t}",
              f"v_add_u32 v{d+4}, 49152, v{d}", f"v_add_u32 v{d+8}, {2*49152}, v{d}"]
    return o

def base_T64(dst, t):
    o = [f"v_lshrrev_b32 v{t}, 4, {L}", f"v_lshlrev_b32 v{t}, 3, v{t}", f"v_bfe_u32 v{t+1}, {L}, 2, 2", f"v_add_u32 v{t}, v{t}, v{t+1}",
         f"v_lshlrev_b32 v{t}, 6, v{t}", f"v_and_b32 v{t+1}, 3, {L}", f"v_lshlrev_b32 v{t+1}, 3, v{t+1}", f"v_add_u32 v{t}, v{t}, v{t+1}",
         f"v_bfe_u32 v{t+1}, {L}, 4, 1"]
    for mt in range(2):
        d = dst + mt
        o += [f"v_xor_b32 v{d}, {mt}, v{t+1}", f"v_lshlrev_b32 v{d}, 5, v{d}", f"v_add_u32 v{d}, v{d}, v{t}",
              f"v_add_u32 v{d+2}, 49152, v{d}", f"v_add_u32 v{d+4}, {2*49152}, v{d}"]
    return o

def base_R(dst, t):
    o = [f"v_and_b32 v{t}, 15, {L}", f"v_lshrrev_b32 v{t+1}, 1, v{t}", f"v_lshlrev_b32 v{t}, 7, v{t}"]
    for h in range(2):
        d = dst + h
        o += [f"v_lshrrev_b32 v{d}, 4, {L}", f"v_add_u32 v{d}, {4*h}, v{d}", f"v_xor_b32 v{d}, v{d}, v{t+1}", f"v_lshlrev_b32 v{d}, 4, v{d}",
              f"v_add_u32 v{d}, v{d}, v{t}", f"v_add_u32 v{d+2}, 49152, v{d}", f"v_add_u32 v{d+4}, {2*49152}, v{d}"]
    return o

def base_C(dst, t):
    return [f"v_and_b32 v{t}, 15, {L}", f"v_mul_u32_u24 v{t+1}, 96, v{t}", f"v_lshrrev_b32 v{t}, 3, v{t}", f"v_lshrrev_b32 v{t+2}, 5, {L}",
            f"v_xor_b32 v{t}, v{t}, v{t+2}", f"v_lshlrev_b32 v{t}, 4, v{t}", f"v_add_u32 v{t}, v{t}, v{t+1}",
            f"v_bfe_u32 v{t+1}, {L}, 4, 1", f"v_lshlrev_b32 v{t+1}, 3, v{t+1}", f"v_add_u32 v{dst}, v{t}, v{t+1}",
            f"v_add_u32 v{dst+1}, 49152, v{dst}", f"v_add_u32 v{dst+2}, {2*49152}, v{dst}"]


def cmul_acc(dre, dim, are, aim, sre, sim):
    return [f"v_fmac_f32 v{dre}, v{are}, v{sre}", f"v_fmac_f32 v{dim}, v{are}, v{sim}",
            f"v_fma_f32 v{dre}, -v{aim}, v{sim}, v{dre}", f"v_fmac_f32 v{dim}, v{aim}, v{sre}"]


def build_stages():
    stages = []
    tr = "ds_read_b64_tr_b16"
    for st in range(5):
        units = []
        for ksl in range(4 if st < 4 else 2):
            ks = 4 * st + ksl
            line, half = ksl >> 1, ksl & 1
            for b in range(3):
                for mat in range(2):
                    off = (2 * mat + line) * 6144 + b * 2048
                    acc = [xb(b, mat, n) for n in range(2)]
                    units.append(dict(reads=[("ds_read_b128", 4, P2 + half, off, "S2")],
                                      mf=[(vr(acc[n]), xfrag(ks, n), None, vr(acc[n]) if ks else "0") for n in range(2)], swap=True))
            units.append(dict(reads=[("ds_read_b128", 4, P2 + 6, ks * 64, "abs")],
                              mf=[(vr(LG + 4 * n), xfrag(ks, n), None, vr(LG + 4 * n) if ks else "0") for n in range(2)], swap=True))
        pre = [] if st == 0 else [f"s_add_u32 s{sOA}, s{sOA}, 256"]
        stages.append(Stage("B", units, [(D1 + j, S_B, sOA) for j in range(6)], sW6, pre))
    for c in range(4):
        for st in range(6):
            units = []
            for ksl in range(3):
                ks = 3 * st + ksl
                for mat in range(2):
                    for mt in range(4):
                        acc = ACC[c & 1] + (mat * 4 + mt) * 8
                        off = mat * 12288 + ksl * 4096
                        units.append(dict(reads=[(tr, 2, P1 + mt, off, "S4"), (tr, 2, P1 + mt, off + 512, "S4")],
                                          mf=[(vr(acc + 4 * n), None, xfrag(ks, n), vr(acc + 4 * n) if ks else "0") for n in range(2)], swap=False))
            pre = [f"s_add_u32 s{sOA}, s{sW1F}, {128*c}"] if st == 0 else [f"s_add_u32 s{sOA}, s{sOA}, {96*9216}"]
            stages.append(Stage("W1", units, [(D2 + j, S_W1, sOA) for j in range(6)], sW6, pre))
    for st in range(3):
        units = []
        for ksl in range(6):
            ks = 6 * st + ksl
            for mat in range(2):
                for mt in range(2):
                    acc = ACC[0] + (mat * 4 + mt) * 8
                    off = mat * 12288 + ksl * 2048
                    units.append(dict(reads=[(tr, 2, P2 + mt, off, "S2"), (tr, 2, P2 + mt, off + 256, "S2")],
                                      mf=[(vr(acc + 4 * n), None, xfrag(ks, n), vr(acc + 4 * n) if ks else "0") for n in range(2)], swap=False))
        pre = [f"s_mov_b32 s{sOA}, s{sW1H}"] if st == 0 else [f"s_add_u32 s{sOA}, s{sOA}, {192*9216}"]
        stages.append(Stage("W1h", units, [(D1 + j, S_W1, sOA) for j in range(6)], sW6, pre))
    hfrag = lambda K, n: ar(AH + 8 * K + 4 * n)
    sfrag = lambda b, n: vr(xb(b, 0, n))
    def wd_units(Ks, lines, buf, koff):
        units = []
        for K in Ks:
            for line in range(lines):
                for mt in range(4):
                    acc = buf + (line * 4 + mt) * 8
                    off = line * 12288 + (K - koff) * 4096
                    units.append(dict(reads=[(tr, 2, P1 + mt, off, "S4"), (tr, 2, P1 + mt, off + 2048, "S4")],
                                      mf=[(vr(acc + 4 * n), None, hfrag(K, n), vr(acc + 4 * n) if K else "0") for n in range(2)], swap=False))
        return units
    def c_units(nm, buf, imoff):
        units = []
        for b in range(3):
            for m in range(nm):
                acc = buf + m * 8
                off = m * 1536 + 32 * b
                units.append(dict(reads=[("ds_read_b64", 2, P2 + 2, off, "S1"), ("ds_read_b64", 2, P2 + 2, off + imoff, "S1")],
                                  mf=[(vr(acc + 4 * n), None, sfrag(b, n), vr(acc + 4 * n)) for n in range(2)], swap=False))
        return units
    for p in range(5):
        buf = ACC[(p + 1) & 1]
        col = 256 * p
        if p < 4:
            for st in range(3):
                units = wd_units(range(3 * st, 3 * st + 3), 2, buf, 3 * st)
                if st < 2:
                    pre = [f"s_add_u32 s{sOA}, s{sWD2}, {col + st*96*1152}"]
                    pcs = [(D2 + j, S_WD, sOA) for j in range(6)]
                else:
                    pre = [f"s_add_u32 s{sOA}, s{sWD2}, {col + 2*96*1152}", f"s_add_u32 s{sOB}, s{sWD2B}, {col}"]
                    pcs = [(D2 + j, S_WD, sOA if j < 2 else sOB) for j in range(6)]
                stages.append(Stage("Wd", units, pcs, sW6, pre))
            stages.append(Stage("C", c_units(8, buf, 12288), [(D1 + j, S_C, sOA) for j in range(6)], sW6, [f"s_add_u32 s{sOA}, s{sC2}, {128*p*1152}"]))
        else:
            stages.append(Stage("Wd1a", wd_units(range(6), 1, buf, 0), [(D2 + j, S_WD, sOA) for j in range(6)], sW6, [f"s_add_u32 s{sOA}, s{sWD1}, {col}"]))
            stages.append(Stage("Wd1b", wd_units(range(6, 9), 1, buf, 6), [(D2 + j, S_WD, sWB0 + j) for j in range(3)], sW3, []))
            stages.append(Stage("C1", c_units(4, buf, 6144), [(D1 + j, S_C, sOA) for j in range(3)], sW3, [f"s_add_u32 s{sOA}, s{sC1}, {128*4*1152}"]))
    return stages


def build_main(opt):
    pro = []
    A = lambda *x: pro.extend(expand(list(x)))
    stages = build_stages()
    NST = len(stages)
    A("s_cmp_ge_u32 s2, 256", "s_cbranch_scc1 L_main_end")
    A("s_load_dwordx16 s[64:79], s[0:1], 0", "s_load_dwordx16 s[80:95], s[0:1], 64", "s_load_dwordx2 s[96:97], s[0:1], 128")
    A(f"v_and_b32 {L}, 63, v0", "v_lshrrev_b32 v1, 6, v0")
    A(f"s_and_b32 s{sT0}, s2, 7", f"s_lshr_b32 s{sT1}, s2, 3")
    A(f"v_readfirstlane_b32 s{sW}, v1")
    A(f"s_lshl_b32 s{sSLICE}, s{sT0}, 1", f"s_and_b32 s{sT0}, s{sT1}, 1", f"s_add_u32 s{sSLICE}, s{sSLICE}, s{sT0}", f"s_lshr_b32 s{sTILE}, s{sT1}, 1")
    A(f"s_mul_i32 s{sC0}, s{sSLICE}, 9", f"s_lshr_b32 s{sC0}, s{sC0}, 1", f"s_lshl_b32 s{sC0}, s{sC0}, 3")
    A(f"v_lshlrev_b32 v{VST}, 4, {L}", f"v_min_u32 v8, 47, {L}", f"v_lshlrev_b32 v{VCH}, 3, v8")
    A(f"s_mul_i32 s{sW6}, s{sW}, 6144", f"s_mul_i32 s{sW3}, s{sW}, 3072")
    A(voff_B(D1, 10))
    A(f"s_and_b32 s{sT3}, s{sW}, 1")
    A(f"s_mul_i32 s{sOA}, s{sC0}, 1152", f"s_lshl_b32 s{sT0}, s{sT3}, 7", f"s_add_u32 s{sOA}, s{sOA}, s{sT0}")
    A(f"s_lshl_b32 s{sT0}, s{sTILE}, 7", f"s_lshl_b32 s{sT1}, s{sW}, 5", f"s_add_u32 s{sT0}, s{sT0}, s{sT1}", f"s_mul_i32 s{sXO}, s{sT0}, 1152")
    A(f"s_lshl_b32 s{sXL}, s{sW}, 12", f"s_add_u32 s{sXL}, s{sXL}, {XBASE}")
    A(f"v_add_u32 v9, s{sC0}, v8", "v_lshlrev_b32 v9, 1, v9")
    if opt.get("ts"): A("s_memtime s[100:101]", "s_waitcnt lgkmcnt(0)", "v_mov_b32 v255, 0", "v_writelane_b32 v255, s100, 0", "s_memrealtime s[100:101]")
    A("s_waitcnt lgkmcnt(0)")
    if opt.get("ts"): A("v_writelane_b32 v255, s100, 61")
    A(srd(S_X, "s64", "s65", 2359296))
    A(f"s_cmp_lt_u32 s{sW}, 2")
    A(f"s_cselect_b32 s{S_B}, s70, s72", f"s_cselect_b32 s{S_B+1}, s71, s73", f"s_mov_b32 s{S_B+2}, 663552", f"s_mov_b32 s{S_B+3}, 0x20000")

    def dma_items(k):
        st = stages[k]
        items = [[x] for x in st.pre] + [[f"s_add_u32 m0, s{st.wq}, {slot_base(k)}"]]
        for j, (v, s_, so) in enumerate(st.pieces):
            if j == 4: items.append([f"s_add_u32 m0, s{st.wq}, {slot_base(k) + 4096}"])
            imm = 1024 * (j % 4)
            items.append([I(f"buffer_load_dwordx4 v{v}, {sr(s_)}, s{so} offen" + (f" offset:{imm}" if imm else "") + " lds", tag=f"st{k}")])
        return items
    def xdma(j):
        items = [[f"s_add_u32 s{sOB}, s{sXO}, {128*j}"], [f"s_add_u32 m0, s{sXL}, {16384*XPOS[j]}"]]
        for g in range(4):
            items.append([I(f"buffer_load_dwordx4 v{D1+g}, {sr(S_X)}, s{sOB} offen" + (f" offset:{1024*g}" if g else "") + " lds", tag=f"x{j}")])
        return items
    XV = TA
    def xreads(j):
        return [I(f"ds_read_b128 {xfrag(2*j+h, n)}, v{XV+h} offset:{16384*XPOS[j] + 2048*n}", tag=f"xr{j}") for h in range(2) for n in range(2)]
    for it in dma_items(0): A(it)
    for j in range(2):
        for it in xdma(j): A(it)
    pstamp = lambda i: [I("s_memtime s[82:83]"), I("s_waitcnt lgkmcnt(0)"), I(f"v_writelane_b32 v255, s82, {i}")] if opt.get("ts") else []
    A(pstamp(52))
    PLRE, PLIM, PLDT = T, T + 1, T + 2
    A(srd(S_P, "s66", "s67", 1152)); A(f"buffer_load_ushort v{PLRE}, v9, {sr(S_P)}, 0 offen")
    A(srd(56, "s68", "s69", 1152)); A(f"buffer_load_ushort v{PLIM}, v9, s[56:59], 0 offen")
    A(srd(60, "s78", "s79", 1152)); A(f"buffer_load_ushort v{PLDT}, v9, s[60:63], 0 offen")
    A(srd(S_P, "s90", "s91", 1152))
    A(f"s_add_u32 m0, s{sW3}, {PRIV}")
    A(I(f"buffer_load_dwordx4 v{VST}, {sr(S_P)}, 0 offen lds", tag="gw"))
    A(I(f"buffer_load_dwordx4 v{VST}, {sr(S_P)}, 0 offen offset:1024 lds", tag="gw"))
    for j in range(2, 4):
        for it in xdma(j): A(it)
    for k in (1, 2):
        for it in dma_items(k): A(it)
    A(pstamp(53))
    PFL = opt.get("pf", " sc1")
    sX6, sPF = 71, 72
    PV = 12
    A(f"s_cmp_lt_u32 s{sW}, 2")
    A(f"s_cselect_b32 s{S_W1}, s84, s86", f"s_cselect_b32 s{S_W1+1}, s85, s87", f"s_mov_b32 s{S_W1+2}, 5308416", f"s_mov_b32 s{S_W1+3}, 0x20000")
    if opt.get("nocpf") is None:
        A("s_getpc_b64 s[100:101]", "L_main_pc:")
        A(f"s_lshr_b32 s{sT0}, s2, 3", f"s_lshl_b32 s{sT0}, s{sT0}, 2", f"s_add_u32 s{sT0}, s{sT0}, s{sW}", f"s_mul_i32 s{sT0}, s{sT0}, 640")
        A(f"v_lshlrev_b32 v12, 7, {L}", f"v_add_u32 v12, s{sT0}, v12", f"v_min_u32 v12, CODE_SPAN, v12", f"v_cmp_gt_u32 vcc, 5, {L}",
          "s_and_saveexec_b64 s[62:63], vcc", f"global_load_dword a247, v12, s[100:101]", "s_mov_b64 exec, s[62:63]")
    if opt.get("nopf") is None:
        A(f"v_and_b32 v{PV}, 15, {L}", f"v_mul_u32_u24 v{PV}, 1152, v{PV}", f"v_lshrrev_b32 v{PV+1}, 4, {L}", f"v_lshlrev_b32 v{PV+1}, 7, v{PV+1}",
          f"v_add_u32 v{PV}, v{PV}, v{PV+1}", f"s_and_b32 s100, s{sSLICE}, 1", f"s_mul_i32 s100, s100, {16*1152}", f"s_add_u32 s100, s100, s{sXO}",
          f"s_add_u32 s100, s100, 512", f"buffer_load_dword a248, v{PV}, {sr(S_X)}, s100 offen{PFL}")
        A(f"s_lshl_b32 s101, s{sTILE}, 1", f"s_add_u32 s101, s101, s{sT3}")
        A(f"s_mul_i32 s100, s101, {14*128}", f"s_mul_i32 s{sT0}, s{sC0}, 1152", f"s_add_u32 s100, s100, s{sT0}",
          f"v_lshlrev_b32 v{PV}, 7, {L}", f"v_mov_b32 v{PV+1}, {hex(OOB)}", f"v_cmp_gt_u32 vcc, 14, {L}", f"v_cndmask_b32 v{PV}, v{PV+1}, v{PV}, vcc",
          f"buffer_load_dword a249, v{PV}, {sr(S_B)}, s100 offen{PFL}")
        A(f"v_mul_u32_u24 v{PV}, 57, {L}", f"v_lshrrev_b32 v{PV}, 10, v{PV}", f"v_mul_u32_u24 v{PV+1}, 18, v{PV}", f"v_sub_u32 v{PV+1}, {L}, v{PV+1}",
          f"v_mul_u32_u24 v{PV+1}, 9216, v{PV+1}", f"v_lshlrev_b32 v{PV}, 7, v{PV}", f"v_add_u32 v{PV}, v{PV}, v{PV+1}",
          f"v_mov_b32 v{PV+1}, {hex(OOB)}", f"v_cmp_gt_u32 vcc, 36, {L}", f"v_cndmask_b32 v{PV}, v{PV+1}, v{PV}, vcc",
          f"s_mul_i32 s100, s101, {18*9216}", f"s_mul_i32 s{sT0}, s{sSLICE}, 576", f"s_add_u32 s100, s100, s{sT0}",
          f"s_and_b32 s{sT0}, s{sSLICE}, 1", f"s_lshl_b32 s{sT0}, s{sT0}, 6", f"s_add_u32 s100, s100, s{sT0}",
          f"buffer_load_dword a250, v{PV}, {sr(S_W1)}, s100 offen{PFL}")
        A(f"s_mov_b32 s{sT4}, s101")
        oob = hex(OOB)
        A(f"v_mul_u32_u24 v{PV}, 57, {L}", f"v_lshrrev_b32 v{PV}, 10, v{PV}", f"v_mul_u32_u24 v{PV+1}, 18, v{PV}", f"v_sub_u32 v{PV+1}, {L}, v{PV+1}",
          f"v_mul_u32_u24 v{PV+1}, 9216, v{PV+1}", f"v_add_u32 v{PV+2}, 2, v{PV}", f"v_lshlrev_b32 v{PV+2}, 7, v{PV+2}", f"v_add_u32 v{PV+1}, v{PV+1}, v{PV+2}",
          f"s_and_b32 s{sT0}, s{sSLICE}, 1", f"s_mul_i32 s{sT0}, s{sT0}, 576", f"v_cmp_eq_u32 vcc, 2, v{PV}", f"v_mov_b32 v{PV+2}, s{sT0}",
          f"v_cndmask_b32 v{PV+2}, 0, v{PV+2}, vcc", f"v_sub_u32 v{PV+1}, v{PV+1}, v{PV+2}",
          f"v_mov_b32 v{PV+2}, {oob}", f"v_cmp_gt_u32 vcc, 54, {L}", f"v_cndmask_b32 v{PV+1}, v{PV+2}, v{PV+1}, vcc", f"v_accvgpr_write_b32 a253, v{PV+1}")
        A(f"v_lshlrev_b32 v{PV}, 7, {L}", f"v_cmp_gt_u32 vcc, 41, {L}", f"v_cndmask_b32 v{PV}, v{PV+2}, v{PV}, vcc", f"v_accvgpr_write_b32 a254, v{PV}")
        A(f"v_lshrrev_b32 v{PV}, 1, {L}", f"v_mul_u32_u24 v{PV}, 1152, v{PV}", f"v_and_b32 v{PV+1}, 1, {L}", f"v_mul_u32_u24 v{PV+1}, 92, v{PV+1}",
          f"v_add_u32 v{PV}, v{PV}, v{PV+1}", f"v_cmp_gt_u32 vcc, 36, {L}", f"v_cndmask_b32 v{PV}, v{PV+2}, v{PV}, vcc", f"v_accvgpr_write_b32 a255, v{PV}")
    A(pstamp(54))
    A(f"s_cmp_lt_u32 s{sW}, 2")
    A(f"s_cselect_b32 s{S_C}, s74, s76", f"s_cselect_b32 s{S_C+1}, s75, s77", f"s_mov_b32 s{S_C+2}, 663552", f"s_mov_b32 s{S_C+3}, 0x20000")
    A(srd(S_WD, "s88", "s89", 5308416))
    if WSOFF: A(f"s_add_u32 s96, s96, {WSOFF}", "s_addc_u32 s97, s97, 0")
    A(srd(S_WS, "s96", "s97", WS_END + (1 << 18) * bool(opt.get("ts"))))
    A(f"s_mul_i32 s{sT0}, s{sSLICE}, 6144", f"s_add_u32 s{sT0}, s{sT0}, {WS_S}", f"s_add_u32 s{S_S}, s96, s{sT0}", f"s_addc_u32 s{S_S+1}, s97, 0",
      f"s_mov_b32 s{S_S+2}, 6144", f"s_mov_b32 s{S_S+3}, 0x20000")
    A(srd(S_DBG, "s94", "s95", 256))
    A(base_R(P2, 12))
    A(f"v_add_u32 v{XV}, s{sXL}, v{P2}", f"v_add_u32 v{XV+1}, s{sXL}, v{P2+1}")
    A(f"v_lshrrev_b32 v3, 4, {L}", f"v_lshlrev_b32 v{P2+6}, 4, v3", f"v_add_u32 v{P2+6}, s{sW3}, v{P2+6}", f"v_add_u32 v{P2+6}, {PRIV}, v{P2+6}")

    setup = []
    B_ = lambda *x: setup.extend(list(x))
    B_([f"s_mul_i32 s{sT0}, s{sSLICE}, 576", f"s_and_b32 s{sT1}, s{sSLICE}, 1", f"s_lshl_b32 s{sT1}, s{sT1}, 6", f"s_add_u32 s{sFULL}, s{sT0}, s{sT1}",
        f"s_cmp_eq_u32 s{sT1}, 0", f"s_cselect_b32 s{sT1}, 512, 0", f"s_add_u32 s{sHALF}, s{sT0}, s{sT1}"])
    B_(f"s_mul_i32 s{sT1}, s{sT3}, {48*9216}", f"s_add_u32 s{sW1F}, s{sFULL}, s{sT1}", f"s_mul_i32 s{sT1}, s{sT3}, {96*9216}", f"s_add_u32 s{sW1H}, s{sHALF}, s{sT1}")
    B_(*voff_W1full(D2, TA + 2))
    nW1 = len(setup)
    B_(*base_T128(P1, 8, T + 20))
    nP1 = len(setup)
    B_(f"s_mul_i32 s{sFULL}, s{sFULL}, 576", f"s_mul_i32 s{sHALF}, s{sHALF}, 576")
    B_(f"s_mul_i32 s{sT1}, s{sT3}, {48*1152}", f"s_lshr_b32 s{sT2}, s{sW}, 1", f"s_lshl_b32 s{sT2}, s{sT2}, 7")
    B_(f"s_add_u32 s{sWD2}, s{sFULL}, s{sT1}", f"s_add_u32 s{sWD2}, s{sWD2}, s{sT2}")
    B_(f"s_add_u32 s{sWD2B}, s{sWD2}, {192*1152}", f"s_sub_u32 s{sT1}, s{sHALF}, {16*1152}", f"s_add_u32 s{sT1}, s{sT1}, s{sT2}",
       [f"s_cmp_eq_u32 s{sT3}, 0", f"s_cselect_b32 s{sWD2B}, s{sWD2B}, s{sT1}"])
    B_(f"s_mul_i32 s{sT1}, s{sW}, {48*1152}", f"s_add_u32 s{sWD1}, s{sFULL}, s{sT1}")
    for j in range(3):
        B_(f"s_mul_i32 s{sT0}, s{sW}, 24", f"s_add_u32 s{sT1}, s{sT0}, {8*j}",
           f"s_add_u32 s{sT2}, s{sT0}, 192", f"s_mul_i32 s{sT2}, s{sT2}, 1152", f"s_add_u32 s{sT2}, s{sT2}, s{sFULL}",
           f"s_sub_u32 s{sT0}, s{sT0}, 64", f"s_mul_i32 s{sT0}, s{sT0}, 1152", f"s_add_u32 s{sT0}, s{sT0}, s{sHALF}",
           [f"s_cmp_lt_u32 s{sT1}, 64", f"s_cselect_b32 s{sWB0+j}, s{sT2}, s{sT0}"], f"s_add_u32 s{sWB0+j}, s{sWB0+j}, 1024")
    B_(f"s_mul_i32 s{sT1}, s{sT3}, {64*1152}", f"s_lshl_b32 s{sT2}, s{sC0}, 1", f"s_add_u32 s{sC2}, s{sT1}, s{sT2}",
       f"s_mul_i32 s{sT1}, s{sT3}, {32*1152}", f"s_add_u32 s{sC1}, s{sT1}, s{sT2}")
    B_(f"s_lshl_b32 s{sPST}, s{sSLICE}, 4", f"s_add_u32 s{sPST}, s{sPST}, s{sTILE}", f"s_lshl_b32 s{sPST}, s{sPST}, 2", f"s_add_u32 s{sPST}, s{sPST}, s{sW}",
       f"s_mul_i32 s{sPST}, s{sPST}, {36*1024}")
    B_(f"s_bfm_b64 s[{sMASK}:{sMASK+1}], s{sTILE}, 0", f"s_not_b64 s[{sMASK}:{sMASK+1}], s[{sMASK}:{sMASK+1}]")
    for k, sm in ((1, sM1), (2, sM2), (3, sM3)):
        B_([f"s_cmp_ge_u32 s{sW}, {k}", f"s_cselect_b32 s{sm}, 1.0, 0"])
    LRE, LIM, DT, E1, R1, M_, A_ = T + 3, T + 4, T + 5, T + 6, T + 7, T + 20, T + 21
    TB = T + 8
    CH = T + 22
    B_(f"v_lshlrev_b32 v{LRE}, 16, v{PLRE}", f"v_lshlrev_b32 v{LIM}, 16, v{PLIM}", f"v_lshlrev_b32 v{DT}, 16, v{PLDT}")
    B_(f"v_mul_f32 v{DT}, {hex(LOG2E)}, v{DT}", f"v_exp_f32 v{DT}, v{DT}", f"v_lshrrev_b32 v{CH}, 3, v{VCH}",
       f"v_cvt_pk_bf16_f32 v{DT}, v{DT}, v{DT}", f"v_lshlrev_b32 v{DT}, 16, v{DT}")
    B_(f"v_mul_f32 v{E1}, v{DT}, v{LRE}", f"v_mul_f32 v{R1}, v{DT}, v{LIM}", f"v_mul_f32 v{E1}, {hex(LOG2E)}, v{E1}", f"v_mul_f32 v{R1}, {hex(INV2PI)}, v{R1}")
    def cpow(dre, dim, nsrc):
        return [f"v_mul_f32 v{M_}, {nsrc}, v{E1}", f"v_mul_f32 v{A_}, {nsrc}, v{R1}", f"v_exp_f32 v{M_}, v{M_}", f"v_fract_f32 v{A_}, v{A_}",
                f"v_cos_f32 v{dre}, v{A_}", f"v_sin_f32 v{dim}, v{A_}", f"v_mul_f32 v{dre}, v{M_}, v{dre}", f"v_mul_f32 v{dim}, v{M_}, v{dim}"]
    TB2 = T + 16
    B_(*cpow(TB, TB + 1, "1.0")); B_(*cpow(TB + 2, TB + 3, "2.0"))
    B_(f"s_mov_b32 s{sT0}, 0x40400000"); B_(*cpow(TB + 4, TB + 5, f"s{sT0}"))
    B_(*cpow(TB + 6, TB + 7, "4.0"))
    B_(f"v_mov_b32 v{A4}, v{TB+6}", f"v_mov_b32 v{A4+1}, v{TB+7}")
    B_(f"s_mov_b32 s{sT0}, 0x42000000"); B_(*cpow(A32, A32 + 1, f"s{sT0}"))
    B_(f"s_mov_b32 s{sT0}, 0x43000000"); B_(*cpow(A128, A128 + 1, f"s{sT0}"))
    B_(f"s_lshl_b32 s{sT0}, s{sW}, 5", f"v_cvt_f32_u32 v{T+23}, s{sT0}"); B_(*cpow(PW, PW + 1, f"v{T+23}"))
    KC = T
    B_(f"v_add_f32 v{M_}, -1.0, v{TB}", f"v_mul_f32 v{A_}, v{LRE}, v{LRE}", f"v_fmac_f32 v{A_}, v{LIM}, v{LIM}", f"v_rcp_f32 v{A_}, v{A_}",
       f"v_mul_f32 v{KC}, v{M_}, v{LRE}", f"v_fmac_f32 v{KC}, v{TB+1}, v{LIM}",
       f"v_mul_f32 v{KC+1}, v{TB+1}, v{LRE}", f"v_fma_f32 v{KC+1}, -v{M_}, v{LIM}, v{KC+1}",
       f"v_mul_f32 v{KC}, v{KC}, v{A_}", f"v_mul_f32 v{KC+1}, v{KC+1}, v{A_}")
    B_(f"s_and_b32 s{sT0}, s{sSLICE}, 1", f"s_lshl_b32 s{sT0}, s{sT0}, 3", f"s_add_u32 s{sT0}, s{sT0}, 32")
    B_(f"v_cmp_gt_u32 vcc, s{sT0}, v{CH}", f"v_mul_u32_u24 v{CH}, 48, v{CH}", f"v_add_u32 v{CH}, {TAB}, v{CH}",
       f"v_cndmask_b32 v{KC}, 0, v{KC}, vcc", f"v_cndmask_b32 v{KC+1}, 0, v{KC+1}, vcc")
    B_(f"v_mov_b32 v{KC+2}, 0", f"v_mov_b32 v{KC+3}, 0")
    B_(f"ds_write_b128 v{CH}, {vr(TB)}", f"ds_write_b128 v{CH}, {vr(TB+4)} offset:16", f"ds_write_b128 v{CH}, {vr(KC)} offset:32")

    units, ustage, u0 = [], [], []
    for k, st in enumerate(stages):
        u0.append(len(units))
        for un in st.units: units.append(un); ustage.append(k)
    NU = len(units); u0.append(NU)

    def read_ins(u):
        un = units[u]; k = ustage[u]
        o = []; d = afrag(u)
        for (op, nreg, base, off, mode) in un["reads"]:
            if mode == "abs": b, o2 = base, off
            else: b, o2 = base + int(mode[1:]) * setof(k), off + slot_rel(k)
            assert o2 < 65536
            o.append(I(f"{op} {ar(d, nreg)}, v{b} offset:{o2}")); d += nreg
        return o

    DEPTH = int(opt.get('depth', 6)); WE = int(opt.get('we', 4))
    def stamp(i):
        return [I("s_memtime s[100:101]"), I("s_waitcnt lgkmcnt(0)"), I(f"v_writelane_b32 v255, s100, {i}")]
    XR_AT = {2: ('xr4', 'xr5'), 3: ('xr7', 'xr6'), 4: ('xr8',)}
    slots = []; bar_mf = {}; extra_pre = {}
    for u in range(NU):
        un = units[u]; fr = ar(afrag(u))
        rd = read_ins(u + DEPTH) if u + DEPTH < NU else []
        pre = []
        kn = ustage[u + DEPTH] if u + DEPTH < NU else None
        if kn is not None and u + DEPTH == u0[kn]:
            pre += [WaitTag(f"st{kn}", "wtot", *XR_AT.get(kn, ())), I("s_barrier")]
            if opt.get("ts") == "1" or (opt.get("ts") == "2" and kn in (1, 2, 3, 4, 5, 11, 17, 23, 29, 32, 36, 40, 44, 48)): pre += stamp(kn + 1)
            bar_mf[kn] = 2 * u
        if u % WE == 0:
            rg = []
            for x in range(u, min(u + WE, NU)): rg += regs_of(ar(afrag(x)))
            pre += [WaitRegs(rg)]
        for n in range(2):
            d, a, b, c = un["mf"][n]
            txt = mf(d, a, fr, c) if un["swap"] else mf(d, fr, b, c)
            slots.append(Slot(txt, pre if n == 0 else [], rd[n:n + 1] if n < len(rd) else []))
    mend = lambda k: 2 * u0[k + 1] - 1
    mbeg = lambda k: 2 * u0[k]
    if opt.get("ts"): A(stamp(60))
    A(WaitTag("x0")); A(pstamp(55)); A(xreads(0)); A(WaitTag("x1")); A(xreads(1)); A(pstamp(56))
    A(WaitTag("st0", "gw"), "s_barrier")
    if opt.get("ts"): A(stamp(1))
    for u in range(DEPTH): A(read_ins(u))

    kF = lambda c: 5 + 6 * c
    kH = 29; kG = 32
    kP = lambda p: kG + 4 * p
    mXB = mend(4)
    sD = Stream("dma", 0)
    fr_of = lambda j: [r for h in range(2) for n in range(2) for r in regs_of(xfrag(2*j+h, n))]
    def xd(j, e, dl, after=None):
        its = xdma(j)
        if after is not None: sD.add([WaitRegs(fr_of(after))], e, dl)
        for it in its: sD.add(it, e, dl)
    def xr(j, e, dl):
        sD.add([WaitTag(f"x{j}")], e, dl)
        for r_ in xreads(j): sD.add(r_, e, dl)
    xd(4, 0, 10); xd(5, 0, 20)
    xr(2, 4, 30); xr(3, 4, 36)
    xd(6, 20, 46, after=2); xd(7, 20, 54, after=3)
    xr(4, 56, bar_mf[2] - 8); xr(5, 56, bar_mf[2] - 2)
    for it in dma_items(3): sD.add(it, bar_mf[2], bar_mf[2] + 12)
    xr(6, bar_mf[2] + 12, bar_mf[2] + 24)
    xd(8, bar_mf[2] + 20, bar_mf[2] + 34, after=6)
    xr(7, bar_mf[2] + 24, bar_mf[3] - 2)
    for it in dma_items(4): sD.add(it, bar_mf[3], bar_mf[3] + 12)
    xr(8, bar_mf[3] + 30, bar_mf[4] - 2)
    for it in dma_items(5): sD.add(it, bar_mf[4], bar_mf[4] + 12)
    xdone = bar_mf[4]
    prev_user = {}
    e_prev = bar_mf[4] + 12; d_prev = e_prev
    for k in range(NST):
        sl_ = slot_of(k)
        if k >= 6:
            e_ = bar_mf[prev_user[sl_] + 2]
            e_ = max(e_, e_prev)
            d_ = min(max(e_ + 44, d_prev + 20), bar_mf[k] - 2)
            for it in dma_items(k): sD.add(it, e_, d_)
            e_prev, d_prev = e_, d_
        prev_user[sl_] = k
    sP = Stream("setup", 1)
    for i_, x in enumerate(setup):
        sP.add(x, 0, bar_mf[4] if i_ < nW1 else (bar_mf[5] if i_ < nP1 else mXB))
    sA = Stream("addr", 1)
    sA.extend(voff_W1half(D1, TA), max(mXB + 1, xdone + 1), bar_mf[kH - 4])
    sA.extend(base_T64(P2, TA), mXB + 1, bar_mf[kH])
    sA.extend(voff_Wd(D2, TA), bar_mf[28 - 3], bar_mf[kG - 4])
    sA.extend(voff_C(D1, TA), bar_mf[31 - 3], bar_mf[kG + 3 - 4])
    sA.extend(base_T128(P1, 4, TA), bar_mf[kH] + 8, bar_mf[kG])
    sA.extend(base_C(P2 + 2, TA), bar_mf[kG] + 8, bar_mf[kG + 3])

    sE = Stream("epi", 2)
    def ffn_epi(c, nblk, earliest, deadline):
        buf = ACC[c & 1]
        for mt in range(nblk):
            K = 2 * c + (mt >> 1); half = mt & 1
            for n in range(2):
                g = buf + mt * 8 + 4 * n; u_ = buf + (4 + mt) * 8 + 4 * n
                o = []
                for r in range(4): o += [f"v_max_f32 v{g+r}, 0, v{g+r}", f"v_mul_f32 v{u_+r}, v{SF+n}, v{u_+r}"]
                for r in range(4): o += [f"v_mul_f32 v{g+r}, v{g+r}, v{u_+r}"]
                o += [f"v_cvt_pk_bf16_f32 v{u_}, v{g}, v{g+1}", f"v_cvt_pk_bf16_f32 v{u_+1}, v{g+2}, v{g+3}"]
                h = AH + 8 * K + 4 * n + 2 * half
                o += [f"v_accvgpr_write_b32 a{h}, v{u_}", f"v_accvgpr_write_b32 a{h+1}, v{u_+1}"]
                sE.extend(o, earliest, deadline)
    for c in range(4):
        nxt = mend(kF(c) + 5)
        dl = mbeg(kF(c + 2)) if c < 2 else (mbeg(kH) if c == 2 else mbeg(kP(0)))
        ffn_epi(c, 4, nxt + 4, dl)
    ffn_epi(4, 2, mend(kH + 2) + 4, mbeg(kP(0) + 2) + 2 * 16)
    for p in range(5):
        buf = ACC[(p + 1) & 1]
        nm = 8 if p < 4 else 4
        last = mend(kP(p) + 3) if p < 4 else mend(NST - 1)
        dl = mbeg(kP(p + 2)) if p < 3 else None
        for m in range(nm):
            a = buf + m * 8
            o = [f"v_cvt_pk_bf16_f32 v{a}, v{a}, v{a+1}", f"v_cvt_pk_bf16_f32 v{a+1}, v{a+2}, v{a+3}",
                 f"v_cvt_pk_bf16_f32 v{a+2}, v{a+4}, v{a+5}", f"v_cvt_pk_bf16_f32 v{a+3}, v{a+6}, v{a+7}"]
            sE.extend(o, last + 4, dl)
            imm = 1024 * (m % 4)
            sE.add(f"buffer_store_dwordx4 {vr(a)}, v{VST}, {sr(S_WS)}, s{sPST} offen" + (f" offset:{imm}" if imm else "") + opt.get("pst", ""), last + 4, dl)
            if m % 4 == 3: sE.add(f"s_add_u32 s{sPST}, s{sPST}, 4096", last + 4, dl)

    sS = Stream("ssm", 3)
    e = mXB + 4
    add = lambda x, earliest=None, deadline=None: sS.add(x, e if earliest is None else earliest, deadline)
    def adds(lst, **kw):
        for x in lst: add(x, **kw)
    dlG = mend(kF(0) + 5)
    G0, G1, Z = T, T + 1, T + 2
    adds([f"v_lshrrev_b32 v{G0}, 4, {L}", f"v_lshlrev_b32 v{G0}, 4, v{G0}", f"v_add_u32 v{G0}, s{sW3}, v{G0}", f"v_add_u32 v{G0}, {PRIV}, v{G0}"])
    for n in range(2): add(f"ds_write_b128 v{G0}, {vr(LG+4*n)} offset:{64*n}")
    adds([f"v_and_b32 v{G1}, 31, {L}", f"v_lshlrev_b32 v{G1}, 2, v{G1}", f"v_add_u32 v{G1}, s{sW3}, v{G1}", f"v_add_u32 v{G1}, {PRIV}, v{G1}",
          f"ds_read_b32 v{Z}, v{G1}"])
    TA1 = T + 8
    adds([f"v_and_b32 v{VT}, 15, {L}", f"v_mul_u32_u24 v{VT}, 48, v{VT}", f"v_add_u32 v{VT}, {TAB}, v{VT}"])
    for b in range(3): add(f"ds_read_b64 {vr(TA1+2*b, 2)}, v{VT} offset:{b*768}")
    adds([f"v_cvt_pk_bf16_f32 v{Z}, v{Z}, v{Z}", f"v_lshlrev_b32 v{Z}, 16, v{Z}", f"v_mul_f32 v{Z}, {hex(LOG2E ^ 0x80000000)}, v{Z}", f"v_exp_f32 v{Z}, v{Z}",
          f"v_lshrrev_b32 v{VE}, 4, {L}",
          f"v_add_f32 v{Z}, 1.0, v{Z}", f"v_rcp_f32 v{Z}, v{Z}", f"v_mul_u32_u24 v{VE}, 384, v{VE}",
          f"v_cvt_pk_bf16_f32 v{Z}, v{Z}, v{Z}", f"v_lshlrev_b32 v{Z}, 16, v{Z}",
          f"v_sub_f32 v{T+3}, 1.0, v{Z}", f"v_cvt_pk_bf16_f32 v{T+3}, v{T+3}, v{T+3}", f"v_lshlrev_b32 v{T+3}, 16, v{T+3}", f"v_add_f32 v{T+4}, v{Z}, v{Z}",
          f"ds_write_b32 v{G1}, v{T+3} offset:128", f"ds_write_b32 v{G1}, v{T+4} offset:256"])
    add([f"s_lshl_b32 s{sT0}, s{sTILE}, 7", f"s_lshl_b32 s{sT1}, s{sW}, 5", f"s_add_u32 s{sT0}, s{sT0}, s{sT1}", f"s_lshl_b32 s{sT0}, s{sT0}, 2",
         f"s_add_u32 s{sT0}, s{sT0}, {WS_G}", f"s_cmp_eq_u32 s{sSLICE}, 0", f"s_cselect_b32 s{sT1}, 32, 0"])
    adds([f"v_lshlrev_b32 v{T+5}, 2, {L}", f"v_cmp_gt_u32 vcc, s{sT1}, {L}", f"v_mov_b32 v{T+6}, {hex(OOB)}", f"v_and_b32 v{T+7}, 15, {L}",
          f"v_cndmask_b32 v{T+5}, v{T+6}, v{T+5}, vcc", f"buffer_store_dword v{Z}, v{T+5}, {sr(S_WS)}, s{sT0} offen",
          f"v_lshlrev_b32 v{T+7}, 2, v{T+7}", f"v_add_u32 v{T+7}, s{sW3}, v{T+7}", f"v_add_u32 v{T+7}, {PRIV}, v{T+7}"])
    for n in range(2): add(f"ds_read_b32 v{SF+n}, v{T+7} offset:{128+64*n}")
    for n in range(2): add(f"ds_read_b128 {vr(LG+4*n)}, v{G0} offset:{256+64*n}")
    adds([f"v_and_b32 v{VE+1}, 15, {L}", f"v_lshlrev_b32 v{VE+1}, 3, v{VE+1}", f"v_add_u32 v{VE}, v{VE}, v{VE+1}", f"v_add_u32 v{VE}, s{sW3}, v{VE}",
          f"v_add_u32 v{VE}, {PRIV}, v{VE}", f"v_add_u32 v{VE+1}, 1536, v{VE}"])
    add(WaitRegs([f"v{SF}", f"v{SF+1}"] + regs_of(vr(LG, 8))), deadline=dlG)
    for r in range(1, 4):
        for b in range(3):
            are, aim = TA1 + 2 * b, TA1 + 2 * b + 1
            for n in range(2):
                R, Im = xb(b, 0, n), xb(b, 1, n)
                adds([f"v_fmac_f32 v{R+r}, v{are}, v{R+r-1}", f"v_fmac_f32 v{Im+r}, v{are}, v{Im+r-1}"])
            for n in range(2):
                R, Im = xb(b, 0, n), xb(b, 1, n)
                adds([f"v_fma_f32 v{R+r}, -v{aim}, v{Im+r-1}, v{R+r}", f"v_fmac_f32 v{Im+r}, v{aim}, v{R+r-1}"])
    for b in range(3):
        for n in range(2):
            add(f"ds_write2_b32 v{VE+n}, v{xb(b,0,n)+3}, v{xb(b,1,n)+3} offset0:{32*b} offset1:{32*b+1}")
    adds([f"v_add_u32 v{VP}, s{sW3}, v{VCH}", f"v_add_u32 v{VP}, {PRIV}, v{VP}"])
    for m in range(8): add(f"ds_read_b64 {vr(T+2*m, 2)}, v{VP} offset:{384*m}")
    add([f"s_mul_i32 s{sT0}, s{sW}, 384", f"s_add_u32 s{sT0}, s{sT0}, {WTOT}"]); add(f"v_add_u32 v{TS}, s{sT0}, v{VCH}")
    for m in range(1, 8): adds(cmul_acc(T + 2*m, T + 2*m + 1, A4, A4 + 1, T + 2*m - 2, T + 2*m - 1))
    kWB = kF(1) + 2
    add(I(f"ds_write_b64 v{TS}, {vr(T+14, 2)}", tag="wtot"), deadline=bar_mf[kWB] - 2)
    e = bar_mf[kWB]
    adds([f"v_add_u32 v{TS}, {WTOT}, v{VCH}"])
    for m in range(4): add(f"ds_read_b64 {vr(T+2*m, 2)}, v{TS} offset:{384*m}")
    add([f"s_mul_i32 s{sT0}, s{sTILE}, 384", f"s_cmp_eq_u32 s{sW}, 0", f"s_cselect_b32 s{sT1}, 48, 0"])
    adds([f"v_add_u32 v{TS+1}, s{sT0}, v{VCH}", f"v_cmp_gt_u32 vcc, s{sT1}, {L}", f"v_mov_b32 v{TS+2}, {hex(OOB)}"])
    for m in range(1, 4): adds(cmul_acc(T + 2*m, T + 2*m + 1, A32, A32 + 1, T + 2*m - 2, T + 2*m - 1))
    adds([f"v_cndmask_b32 v{TS+1}, v{TS+2}, v{TS+1}, vcc"])
    add(I(f"buffer_store_dwordx2 {vr(T+6, 2)}, v{TS+1}, {sr(S_S)}, 0 offen sc1", tag="sst"))
    add([f"s_lshl_b32 s{sT0}, s{sSLICE}, 4", f"s_add_u32 s{sT0}, s{sT0}, s{sTILE}", f"s_cmp_eq_u32 s{sW}, 0", f"s_cselect_b32 s{sT1}, 1, 0"])
    adds([f"v_mov_b32 v{TS+1}, s{sT0}", f"v_cmp_gt_u32 vcc, s{sT1}, {L}", f"v_mov_b32 v{TS+3}, 1", f"v_cndmask_b32 v{TS+1}, v{TS+2}, v{TS+1}, vcc"])
    e = bar_mf[kWB + 2]
    add([WaitTag("sst"), I(f"buffer_store_byte v{TS+3}, v{TS+1}, {sr(S_DBG)}, 0 offen sc1")])
    kPoll = kF(2) + 1
    e = bar_mf[kPoll]
    add([f"s_lshl_b32 s{sT0}, s{sSLICE}, 4"]); add(f"v_add_u32 v{TS}, s{sT0}, {L}"); add(f"v_cmp_gt_u32 vcc, 16, {L}"); add(f"v_mov_b32 v{TS+2}, {hex(OOB)}")
    add(f"v_cndmask_b32 v{TS}, v{TS+2}, v{TS}, vcc")
    add(f"buffer_load_ubyte v{TS+1}, v{TS}, {sr(S_DBG)}, 0 offen sc1")
    e = bar_mf[kPoll + 2]
    add([I(f"v_cmp_ne_u32 vcc, 0, v{TS+1}"), I(f"s_or_b64 vcc, vcc, s[{sMASK}:{sMASK+1}]"), I("s_cmp_eq_u64 vcc, -1"), I("s_cbranch_scc0 L_slow_poll"), I("L_back_poll:")])
    add([f"s_mul_i32 s{sT0}, s{sTILE}, 384"]); add(f"v_add_u32 v{TS}, s{sT0}, v{VCH}")
    for idx, k in enumerate(range(15, 7, -1)):
        t_ = TS + 1 + (idx & 1)
        add(f"v_subrev_u32 v{t_}, {k*384}, v{TS}")
        add(f"buffer_load_dwordx2 {vr(T+2*idx, 2)}, v{t_}, {sr(S_S)}, 0 offen sc1")
    e = bar_mf[kPoll + 4]
    CC = TS + 2
    for m in range(1, 8): adds(cmul_acc(T + 2*m, T + 2*m + 1, A128, A128 + 1, T + 2*m - 2, T + 2*m - 1))
    adds([f"v_mov_b32 v{CC}, v{T+14}", f"v_mov_b32 v{CC+1}, v{T+15}"])
    for idx, k in enumerate(range(7, 0, -1)):
        add(f"v_subrev_u32 v{TS+1}, {k*384}, v{TS}")
        add(f"buffer_load_dwordx2 {vr(T+2*idx, 2)}, v{TS+1}, {sr(S_S)}, 0 offen sc1")
    e = bar_mf[kPoll + 6]
    adds(cmul_acc(T, T + 1, A128, A128 + 1, CC, CC + 1))
    for m in range(1, 7): adds(cmul_acc(T + 2*m, T + 2*m + 1, A128, A128 + 1, T + 2*m - 2, T + 2*m - 1))
    adds([f"v_mov_b32 v{CC}, v{T+12}", f"v_mov_b32 v{CC+1}, v{T+13}"])
    for k in (3, 2, 1):
        add([f"s_sub_u32 s{sT0}, s{sW}, {k}", f"s_max_i32 s{sT0}, s{sT0}, 0", f"s_mul_i32 s{sT0}, s{sT0}, 384", f"s_add_u32 s{sT0}, s{sT0}, {WTOT}"])
        add(f"v_add_u32 v{TS}, s{sT0}, v{VCH}")
        add(f"ds_read_b64 {vr(T+2*(3-k), 2)}, v{TS}")
    for k, sm in ((3, sM3), (2, sM2), (1, sM1)):
        j = T + 2 * (3 - k)
        adds([f"v_mul_f32 v{j}, s{sm}, v{j}", f"v_mul_f32 v{j+1}, s{sm}, v{j+1}"])
    adds(cmul_acc(T + 2, T + 3, A32, A32 + 1, T, T + 1)); adds(cmul_acc(T + 4, T + 5, A32, A32 + 1, T + 2, T + 3))
    adds(cmul_acc(T + 4, T + 5, PW, PW + 1, CC, CC + 1))
    adds([f"v_mov_b32 v{CC}, v{T+4}", f"v_mov_b32 v{CC+1}, v{T+5}"])
    for m in range(7): add(f"ds_read_b64 {vr(T+2*m, 2)}, v{VP} offset:{384*m}")
    add(f"ds_write_b64 v{VP}, {vr(CC, 2)}")
    adds(cmul_acc(T, T + 1, A4, A4 + 1, CC, CC + 1))
    add(f"ds_write_b64 v{VP}, {vr(T, 2)} offset:384")
    for m in range(1, 7):
        adds(cmul_acc(T + 2*m, T + 2*m + 1, A4, A4 + 1, T + 2*m - 2, T + 2*m - 1))
        add(f"ds_write_b64 v{VP}, {vr(T+2*m, 2)} offset:{384*(m+1)}")
    VW, VR = TS, TS + 1
    adds([f"v_and_b32 v{VW}, 15, {L}", f"v_lshlrev_b32 v{VW}, 5, v{VW}", f"v_lshrrev_b32 v{VR}, 4, {L}", f"v_lshlrev_b32 v{VR}, 3, v{VR}",
          f"v_add_u32 v{VW}, v{VW}, v{VR}", f"v_add_u32 v{VW}, s{sW3}, v{VW}", f"v_add_u32 v{VW}, {PRIV}, v{VW}",
          f"v_lshlrev_b32 v{VR}, 3, {L}", f"v_add_u32 v{VR}, s{sW3}, v{VR}", f"v_add_u32 v{VR}, {PRIV}, v{VR}"])
    dlS = bar_mf[kP(0) + 3]
    for n in range(2):
        for b in range(3): add(f"ds_read_b64 {vr(T+2*b, 2)}, v{VE+n} offset:{128*b}")
        for b in range(3):
            TBL = T + 6
            adds([f"ds_read_b128 {vr(TBL)}, v{VT} offset:{b*768}", f"ds_read_b128 {vr(TBL+4)}, v{VT} offset:{b*768+16}", f"ds_read_b64 {vr(TBL+8, 2)}, v{VT} offset:{b*768+32}"])
            R, Im = xb(b, 0, n), xb(b, 1, n)
            cre, cim = T + 2 * b, T + 2 * b + 1
            for r in range(4): adds(cmul_acc(R + r, Im + r, TBL + 2*r, TBL + 2*r + 1, cre, cim))
            kr, ki, tt = TBL + 8, TBL + 9, TS + 2
            for r in range(4):
                t_ = tt + (r & 1)
                adds([f"v_mul_f32 v{t_}, v{kr}, v{R+r}", f"v_fma_f32 v{t_}, -v{ki}, v{Im+r}, v{t_}",
                      f"v_mul_f32 v{Im+r}, v{kr}, v{Im+r}", f"v_fmac_f32 v{Im+r}, v{ki}, v{R+r}",
                      f"v_mul_f32 v{R+r}, v{LG+4*n+r}, v{t_}", f"v_mul_f32_e64 v{Im+r}, -v{LG+4*n+r}, v{Im+r}"])
            adds([f"v_cvt_pk_bf16_f32 v{R}, v{R}, v{R+1}", f"v_cvt_pk_bf16_f32 v{R+1}, v{R+2}, v{R+3}",
                  f"v_cvt_pk_bf16_f32 v{Im}, v{Im}, v{Im+1}", f"v_cvt_pk_bf16_f32 v{Im+1}, v{Im+2}, v{Im+3}"])
            so = 1536 * n
            adds([f"ds_write_b64 v{VW}, {vr(R, 2)} offset:{so}", f"ds_write_b64 v{VW}, {vr(Im, 2)} offset:{so+512}",
                  f"ds_read_b64_tr_b16 {vr(R, 2)}, v{VR} offset:{so}", f"ds_read_b64_tr_b16 {vr(R+2, 2)}, v{VR} offset:{so+512}"], deadline=dlS)
    add(WaitRegs([f"v{xb(b,0,n)+r}" for b in range(3) for n in range(2) for r in range(4)]), deadline=dlS)

    sW_ = Stream("warm", 5)
    if opt.get("nopf") is None:
        PFL = opt.get("pf", " sc1")
        PVL = TA + 2; sQ = 73; sX = sT4
        def pf(e, areg, sset, srd_, dst):
            sW_.add(f"v_accvgpr_read_b32 v{PVL}, a{areg}", e, e + 30)
            for x in sset: sW_.add(x, e, e + 30)
            sW_.add(f"buffer_load_dword a{dst}, v{PVL}, {sr(srd_)}, s{sQ} offen{PFL}", e, e + 40)
        t_a = int(opt.get("pf_a", mbeg(kF(0)) + 20))
        pf(t_a, 253, [f"s_mul_i32 s{sQ}, s{sX}, {18*9216}", f"s_mul_i32 s{sQ+1}, s{sSLICE}, 576", f"s_add_u32 s{sQ}, s{sQ}, s{sQ+1}",
                      f"s_and_b32 s{sQ+1}, s{sSLICE}, 1", f"s_lshl_b32 s{sQ+1}, s{sQ+1}, 6", f"s_add_u32 s{sQ}, s{sQ}, s{sQ+1}"], S_W1, 251)
        t_d = int(opt.get("pf_d", mbeg(kF(1)) + 120))
        pf(t_d, 254, [f"s_lshl_b32 s{sQ}, s{sTILE}, 2", f"s_add_u32 s{sQ}, s{sQ}, s{sW}", f"s_mul_i32 s{sQ}, s{sQ}, {41*128}",
                      f"s_mul_i32 s{sQ+1}, s{sSLICE}, {288*1152}", f"s_add_u32 s{sQ}, s{sQ}, s{sQ+1}"], S_WD, 252)
        pf(t_d + 100, 255, [f"s_mul_i32 s{sQ}, s{sX}, {18*1152}", f"s_lshl_b32 s{sQ+1}, s{sC0}, 1", f"s_add_u32 s{sQ}, s{sQ}, s{sQ+1}"], S_C, 248)
    streams = [sD, sP, sA, sE, sS, sW_]
    body, rest, stats = schedule(slots, streams)
    tail = rest
    slow = [I("L_slow_poll:"), I(f"s_mov_b32 s{sT2}, 0"), I("L_slow_poll_loop:"), I("s_sleep 2"),
            I(f"buffer_load_ubyte v{TS+1}, v{TS}, {sr(S_DBG)}, 0 offen sc1"), I("s_waitcnt vmcnt(0)"),
            I(f"v_cmp_ne_u32 vcc, 0, v{TS+1}"), I("s_nop 4"), I(f"s_or_b64 vcc, vcc, s[{sMASK}:{sMASK+1}]"), I("s_cmp_eq_u64 vcc, -1"),
            I("s_cbranch_scc1 L_back_poll"), I(f"s_add_u32 s{sT2}, s{sT2}, 1"), I(f"s_cmp_lt_u32 s{sT2}, 0x40000"),
            I("s_cbranch_scc1 L_slow_poll_loop"), I("s_branch L_back_poll")]
    if opt.get("ts"):
        tail = tail + stamp(58) + [I("s_waitcnt vmcnt(0)")] + stamp(59) + [I("s_memrealtime s[100:101]"), I("s_waitcnt lgkmcnt(0)"), I("v_writelane_b32 v255, s100, 62")]
        tail += expand([f"s_lshl_b32 s{sT0}, s2, 2", f"s_add_u32 s{sT0}, s{sT0}, s{sW}", f"s_lshl_b32 s{sT0}, s{sT0}, 8", f"s_add_u32 s{sT0}, s{sT0}, {WS_END}",
                        f"v_lshlrev_b32 v1, 2, {L}", f"buffer_store_dword v255, v1, {sr(S_WS)}, s{sT0} offen"])
    prog = pro + body + tail
    prog, nw = insert_waits(prog)
    prog, nn = pad_hazards(prog)
    ol = stats.pop("overlog")
    stats["over_by_stage"] = [sum(ol[2*u0[k]:2*u0[k+1]]) for k in range(NST)]
    info = dict(stats, NU=NU, nwait=nw, nnop=nn, ninstr=len(prog), NST=NST, tail=len(tail))
    txt = render(prog) + "\n  s_endpgm\n" + render(slow) + "\nL_main_end:\n  s_endpgm\n"
    return txt, info


def build_reduce(opt):
    o = []
    A = lambda *x: o.extend(expand(list(x)))
    A("s_cmp_ge_u32 s2, 576", "s_cbranch_scc1 L_red_end")
    if opt.get("ts"): A("s_memrealtime s[80:81]")
    A("s_load_dwordx2 s[64:65], s[0:1], 0", "s_load_dwordx2 s[66:67], s[0:1], 64", "s_load_dwordx2 s[68:69], s[0:1], 112", "s_load_dwordx2 s[70:71], s[0:1], 128")
    A("v_lshrrev_b32 v1, 6, v0", "v_and_b32 v2, 63, v0")
    A("v_readfirstlane_b32 s20, v1")
    A("s_lshl_b32 s21, s2, 2", "s_add_u32 s21, s21, s20")
    A("s_mul_i32 s22, s21, 1821", "s_lshr_b32 s22, s22, 16")
    A("s_mul_i32 s23, s22, 36", "s_sub_u32 s23, s21, s23")
    A("s_lshl_b32 s24, s21, 10")
    A("s_lshl_b32 s25, s22, 5")
    A("v_lshlrev_b32 v3, 4, v2", "v_and_b32 v4, 15, v2", "v_lshrrev_b32 v5, 4, v2")
    A("s_waitcnt lgkmcnt(0)")
    if WSOFF: A(f"s_add_u32 s70, s70, {WSOFF}", "s_addc_u32 s71, s71, 0")
    A(srd(4, "s70", "s71", WS_END), srd(8, "s64", "s65", 2359296), srd(12, "s66", "s67", 1152), srd(16, "s68", "s69", 4718592))
    for s in range(16):
        A(f"buffer_load_dwordx4 {vr(32+4*s)}, v3, s[4:7], s24 offen" + opt.get("rld", ""))
        if s < 15: A(f"s_add_u32 s24, s24, {16*4*36*1024}")
    A("s_lshl_b32 s26, s23, 4", "v_lshlrev_b32 v6, 2, v5", "v_add_u32 v6, s26, v6")
    A("v_add_u32 v7, s25, v4")
    A("v_mul_u32_u24 v8, 576, v7", "v_add_u32 v8, v8, v6")
    A("v_lshlrev_b32 v9, 1, v8", "v_lshlrev_b32 v10, 2, v8", "v_lshlrev_b32 v11, 1, v6", "v_lshlrev_b32 v12, 2, v7")
    A("buffer_load_dwordx2 v[14:15], v9, s[8:11], 0 offen")
    A("s_mov_b32 s27, 18432", "buffer_load_dwordx2 v[16:17], v9, s[8:11], s27 offen")
    A("buffer_load_dwordx2 v[18:19], v11, s[12:15], 0 offen")
    A(f"s_mov_b32 s28, {WS_G}", "buffer_load_dword v20, v12, s[4:7], s28 offen", "buffer_load_dword v21, v12, s[4:7], s28 offen offset:64")
    for r in range(8): A(f"v_mov_b32 v{100+r}, 0")
    for s in range(16):
        for j in range(4):
            src = 32 + 4 * s + j
            A(f"v_lshlrev_b32 v22, 16, v{src}", f"v_and_b32 v23, 0xffff0000, v{src}", f"v_add_f32 v{100+2*j}, v{100+2*j}, v22", f"v_add_f32 v{101+2*j}, v{101+2*j}, v23")
    for n in range(2):
        for j in range(2):
            xs, ds = 14 + 2 * n + j, 18 + j
            A(f"v_lshlrev_b32 v22, 16, v{xs}", f"v_and_b32 v23, 0xffff0000, v{xs}", f"v_lshlrev_b32 v24, 16, v{ds}", f"v_and_b32 v25, 0xffff0000, v{ds}",
              "v_mul_f32 v22, v22, v24", "v_mul_f32 v23, v23, v25", "v_cvt_pk_bf16_f32 v22, v22, v23",
              "v_and_b32 v23, 0xffff0000, v22", "v_lshlrev_b32 v22, 16, v22",
              f"v_fmac_f32 v{100+4*n+2*j}, v{20+n}, v22", f"v_fmac_f32 v{101+4*n+2*j}, v{20+n}, v23")
    A("buffer_store_dwordx4 v[100:103], v10, s[16:19], 0 offen")
    A("s_mov_b32 s27, 36864", "buffer_store_dwordx4 v[104:107], v10, s[16:19], s27 offen")
    if opt.get("ts"):
        A("s_waitcnt vmcnt(0)", "s_memrealtime s[82:83]", "s_waitcnt lgkmcnt(0)", "v_mov_b32 v30, s80", "v_mov_b32 v31, s82", "s_lshl_b32 s27, s21, 3",
          f"s_add_u32 s27, s27, {WS_END + (1 << 18)}", "v_mov_b32 v29, 0", "s_mov_b32 s6, 0x7fffffff", "buffer_store_dwordx2 v[30:31], v29, s[4:7], s27 offen")
    prog, nw = insert_waits(o)
    prog, nn = pad_hazards(prog)
    return render(prog) + "\nL_red_end:\n  s_endpgm\n"


HEADER = open("cdna_kernels/" + NAME + ".s.ref").read().split("; Override launch geometry")[0]

def kd(name, vg, acc, sg):
    return f""".p2align 6
.amdhsa_kernel {name}
  .amdhsa_next_free_vgpr {vg}
  .amdhsa_next_free_sgpr {sg}
  .amdhsa_accum_offset {acc}
  .amdhsa_group_segment_fixed_size 0
  .amdhsa_kernarg_size 136
  .amdhsa_user_sgpr_count 2
  .amdhsa_user_sgpr_kernarg_segment_ptr 1
  .amdhsa_system_sgpr_workgroup_id_x 1
.end_amdhsa_kernel
"""

def build(opt):
    global WSOFF
    WSOFF = int(opt.get('wsoff', 0))
    main, info = build_main(opt)
    red = build_reduce(opt)
    k1, k2 = NAME + "_kernel", "reduce_kernel"
    s = HEADER
    s += f"; @launch kernel={k1} grid=(256,1,1) block=(256,1,1) lds={LDS_BYTES}\n"
    s += f"; @launch kernel={k2} grid=(576,1,1) block=(256,1,1) lds=0\n"
    s += '.amdgcn_target "amdgcn-amd-amdhsa--gfx950"\n.text\n'
    s += f".globl {k1}\n.p2align 8\n.type {k1},@function\n{k1}:\n" + main
    s += f".globl {k2}\n.p2align 8\n.type {k2},@function\n{k2}:\n" + red
    s += "L_code_end:\n.set CODE_SPAN, L_code_end - L_main_pc - 4\n"
    s += '.section .rodata,"a"\n' + kd(k1, 512, 256, 102) + kd(k2, 128, 128, 96)
    return s, info


if __name__ == "__main__":
    out = sys.argv[1] if len(sys.argv) > 1 else "cdna_kernels/" + NAME + ".s"
    opt = {}
    for a in sys.argv[2:]:
        k, v = a.split("=", 1); opt[k] = v
    fw.VM_GAP = int(opt.get('vmgap', 5)); fw.LDS_LAT = int(opt.get('ldslat', 8)); fw.VM_LAT = int(opt.get('vmlat', 90))
    s, info = build(opt)
    open(out, "w").write(s)
    print(info, len(s))
```

```python
import sys
import fw
from fw import *
from gen import (NAME, LOG2E, INV2PI, OOB, SLOT, NSLOT, MISC, PRIV, WTOT, TAB, LDS_BYTES, ACC, XB, LG, P1, P2, D1, D2, SF, A4, A32, A128, PW,
                 LANE, VST, VCH, T, VE, VP, VT, TS, TA, AX, AF, AH, L, xfrag, afrag, vr, ar, sr, xb, srd, mf,
                 voff_B, voff_W1full, voff_W1half, voff_Wd, voff_C, base_T64, base_C, cmul_acc, kd, HEADER, XBASE, XPOS)

WS_P8 = 0
P8_BYTES = 8 * 16 * 4 * 2 * 16 * 1024
WS_P16 = WS_P8 + P8_BYTES
P16_BYTES = 16 * 16 * 4 * 4 * 1024
WS_H = WS_P16 + P16_BYTES
H_BYTES = 16 * 16 * 4 * 24 * 1024
WS_S = WS_H + H_BYTES
WS_G = WS_S + 16 * 16 * 384
WS_F = WS_G + 8192
WS_END = WS_F + 256 * 128

S_X, S_W1, S_WD, S_B, S_C, S_WS, S_S, S_DBG, S_P = 4, 8, 12, 16, 20, 24, 28, 32, 36
sW, sTILE, sSLICE, sC0, sOA, sOB, sW6, sW3 = 40, 41, 42, 43, 44, 45, 46, 47
sP8, sT0, sT1, sT2, sC2, sPAR, sP16, sT3 = 48, 49, 50, 51, 52, 53, 54, 55
sMASK = 56; sM1, sM2, sM3 = 58, 59, 60
sHO, sHP, sHT = 61, 62, 63
sW1F, sW1H, sWD2, sWD1, sWD1B, sC1, sT4, sC0P, sC2P, sQ = 64, 65, 66, 67, 68, 69, 70, 71, 72, 73
sXO, sXL = 98, 99
AHP = 0
def hp_reg(K):
    order = {8: 0, 0: 1, 1: 2, 2: 3, 3: 4, 4: 5, 5: 6, 6: 7, 7: 8, 9: 9, 10: 10, 11: 11}
    return AHP + 8 * order[K]


def slot_of(k): return {4: 5, 5: 4}.get(k, k % NSLOT)
def slot_base(k): return slot_of(k) * SLOT
def setof(k): return slot_of(k) // 2
def slot_rel(k): return (slot_of(k) % 2) * SLOT

T64B = [P1 + i for i in range(6)]
T128B = [P1 + 6 + i for i in range(6)] + [P2 + i for i in range(6)]
RB = [P2 + i for i in range(6)]
CB = [P1 + i for i in range(3)]
GWB = P2 + 6


PMACC = [xb(0, 1, 0), xb(1, 1, 0), xb(2, 1, 0), LG]


class Stage:
    def __init__(self, fmt, units, pieces, wq, pre):
        self.fmt, self.units, self.pieces, self.wq, self.pre = fmt, units, pieces, wq, pre


def base_list_T128(regs, qrows, t, sets):
    o = [f"v_lshrrev_b32 v{t}, 4, {L}", f"v_mul_u32_u24 v{t}, {qrows}, v{t}", f"v_bfe_u32 v{t+1}, {L}, 2, 2", f"v_add_u32 v{t}, v{t}, v{t+1}",
         f"v_lshlrev_b32 v{t}, 7, v{t}", f"v_and_b32 v{t+1}, 3, {L}", f"v_lshlrev_b32 v{t+1}, 3, v{t+1}", f"v_add_u32 v{t}, v{t}, v{t+1}",
         f"v_bfe_u32 v{t+1}, {L}, 3, 2"]
    return o


def t128_regs(idx, t):
    s_, mt = divmod(idx, 4)
    d = T128B[idx]
    o = [f"v_xor_b32 v{d}, {mt}, v{t+1}", f"v_lshlrev_b32 v{d}, 5, v{d}", f"v_add_u32 v{d}, v{d}, v{t}"]
    if s_: o += [f"v_add_u32 v{d}, {49152*s_}, v{d}"]
    return o


def base_R2(t):
    o = [f"v_and_b32 v{t}, 15, {L}", f"v_lshrrev_b32 v{t+1}, 1, v{t}", f"v_lshlrev_b32 v{t}, 7, v{t}"]
    for h in range(2):
        d = RB[h]
        o += [f"v_lshrrev_b32 v{d}, 4, {L}", f"v_add_u32 v{d}, {4*h}, v{d}", f"v_xor_b32 v{d}, v{d}, v{t+1}", f"v_lshlrev_b32 v{d}, 4, v{d}",
              f"v_add_u32 v{d}, v{d}, v{t}", f"v_add_u32 v{RB[2+h]}, 49152, v{d}", f"v_add_u32 v{RB[4+h]}, {2*49152}, v{d}"]
    return o


def build_stages(par):
    nS = 2 if par == 0 else 3
    nSP = 5 - nS
    stages = []
    tr = "ds_read_b64_tr_b16"
    U = lambda reads, mfl, swap: dict(reads=reads, mf=mfl, swap=swap)
    for st in range(5):
        units = []
        for ksl in range(4 if st < 4 else 2):
            ks = 4 * st + ksl
            line, half = ksl >> 1, ksl & 1
            for b in range(nS):
                for mat in range(2):
                    off = (2 * mat + line) * 6144 + b * 2048
                    acc = [xb(b, mat, n) for n in range(2)]
                    units.append(U([("ds_read_b128", 4, ("R", half), off)],
                                   [(vr(acc[n]), xfrag(ks, n), None, vr(acc[n]) if ks else "0") for n in range(2)], True))
            units.append(U([("ds_read_b128", 4, ("abs", GWB), ks * 64)],
                           [(vr(LG + 4 * n), xfrag(ks, n), None, vr(LG + 4 * n) if ks else "0") for n in range(2)], True))
        pre = [] if st == 0 else [f"s_add_u32 s{sOA}, s{sOA}, 256"]
        npc = 2 * nS
        stages.append(Stage("B", units, [(D1 + j, S_B, sOA) for j in range(npc)], sW6, pre))
    for st in range(3):
        units = []
        for ksl in range(6):
            ks = 6 * st + ksl
            for mat in range(2):
                for mt in range(2):
                    acc = ACC[0] + (mat * 4 + mt) * 8
                    off = mat * 12288 + ksl * 2048
                    units.append(U([(tr, 2, ("T64", mt), off), (tr, 2, ("T64", mt), off + 256)],
                                   [(vr(acc + 4 * n), None, xfrag(ks, n), vr(acc + 4 * n) if ks else "0") for n in range(2)], False))
        pre = [f"s_mov_b32 s{sOA}, s{sW1H}"] if st == 0 else [f"s_add_u32 s{sOA}, s{sOA}, {192*9216}"]
        stages.append(Stage("W1h", units, [(D2 + j, S_W1, sOA) for j in range(6)], sW6, pre))
    for c in range(4):
        buf = ACC[(c + 1) & 1]
        for st in range(6):
            units = []
            for ksl in range(3):
                ks = 3 * st + ksl
                for mat in range(2):
                    for mt in range(4):
                        acc = buf + (mat * 4 + mt) * 8
                        off = mat * 12288 + ksl * 4096
                        units.append(U([(tr, 2, ("T128", mt), off), (tr, 2, ("T128", mt), off + 512)],
                                       [(vr(acc + 4 * n), None, xfrag(ks, n), vr(acc + 4 * n) if ks else "0") for n in range(2)], False))
            pre = [f"s_add_u32 s{sOA}, s{sW1F}, {128*c}"] if st == 0 else [f"s_add_u32 s{sOA}, s{sOA}, {96*9216}"]
            stages.append(Stage("W1", units, [(D1 + j, S_W1, sOA) for j in range(6)], sW6, pre))
    own = lambda K: (lambda n: ar(AH + 8 * K + 4 * n))
    prt = lambda K: (lambda n: ar(hp_reg(K) + 4 * n))
    owns = lambda b: (lambda n: vr(xb(b, 0, n)))
    if par == 0:
        ownW = [[0, 1, 2], [3, 4, 5], [6, 7, 8]]; prtW = [[8, 0, 1], [2, 3, 4], [5, 6, 7]]
        ms_own, ms_prt = [0, 1, 2], [3, 4, 5]
        pmA, pmB = [0, 1, 2, 3, 4, 5], [6, 7, 8]
        cols = [0, 256]
    else:
        ownW = [[8, 0, 1], [2, 3, 4], [5, 6, 7]]; prtW = [[0, 1, 2], [3, 4, 5], [6, 7, 8]]
        ms_own, ms_prt = [3, 4, 5], [0, 1, 2]
        pmA, pmB = [8, 0, 1, 2, 3, 4], [5, 6, 7]
        cols = [640, 896]
    def wd_units(bfs, lines, buf, first):
        units = []
        for i_, bf in enumerate(bfs):
            for line in range(lines):
                for mt in range(4):
                    acc = buf + (line * 4 + mt) * 8
                    off = line * 12288 + i_ * 4096
                    z = first and i_ == 0
                    units.append(U([(tr, 2, ("T128", mt), off), (tr, 2, ("T128", mt), off + 2048)],
                                   [(vr(acc + 4 * n), None, bf(n), "0" if z else vr(acc + 4 * n)) for n in range(2)], False))
        return units
    def c_units(bfs, nm, buf, imoff):
        units = []
        for b, bf in enumerate(bfs):
            for m in range(nm):
                acc = buf + m * 8
                off = m * 1536 + 32 * b
                units.append(U([("ds_read_b64", 2, ("C", 0), off), ("ds_read_b64", 2, ("C", 0), off + imoff)],
                               [(vr(acc + 4 * n), None, bf(n), vr(acc + 4 * n)) for n in range(2)], False))
        return units
    def W(p, bfs, ms, first=False):
        buf = ACC[(p + 1) & 1]
        stages.append(Stage("Wd", wd_units(bfs, 2, buf, first), [(D2 + j, S_WD, sOA) for j in range(6)], sW6,
                            [f"s_add_u32 s{sOA}, s{sWD2}, {cols[p] + ms*96*1152}"]))
    def C(p, bfs, sbase):
        buf = ACC[(p + 1) & 1]
        stages.append(Stage("C", c_units(bfs, 8, buf, 12288), [(D1 + j, S_C, sOA) for j in range(6)], sW6,
                            [f"s_add_u32 s{sOA}, s{sbase}, {(cols[p] // 2) * 1152}"]))
    oW = lambda p, i, first=False: W(p, [own(K) for K in ownW[i]], ms_own[i], first)
    pW = lambda p, i: W(p, [prt(K) for K in prtW[i]], ms_prt[i])
    oC = lambda p: C(p, [owns(b) for b in range(nS)], sC2)
    pC = lambda p: C(p, [prt(9 + b) for b in range(nSP)], sC2P)
    oW(0, 0, True); oW(0, 1); pW(0, 0); oW(0, 2); oC(0)
    oW(1, 0, True); oW(1, 1); pW(1, 0)
    def pm_units(bfs, first, kind):
        units = []
        for i_, bf in enumerate(bfs):
            for mt in range(4):
                acc = PMACC[mt]
                z = first and i_ == 0
                if kind == "W":
                    off = i_ * 4096
                    rd = [(tr, 2, ("T128", mt), off), (tr, 2, ("T128", mt), off + 2048)]
                else:
                    off = mt * 1536 + 32 * i_
                    rd = [("ds_read_b64", 2, ("C", 0), off), ("ds_read_b64", 2, ("C", 0), off + 6144)]
                units.append(U(rd, [(vr(acc + 4 * n), None, bf(n), "0" if z else vr(acc + 4 * n)) for n in range(2)], False))
        return units
    stages.append(Stage("Wd1a", pm_units([own(K) for K in pmA], True, "W"), [(D2 + j, S_WD, sOA) for j in range(6)], sW6, [f"s_add_u32 s{sOA}, s{sWD1}, 512"]))
    stages.append(Stage("Wd1b", pm_units([own(K) for K in pmB], False, "W"), [(D2 + j, S_WD, sOA) for j in range(3)], sW3, [f"s_add_u32 s{sOA}, s{sWD1B}, 512"]))
    stages.append(Stage("C1", pm_units([owns(b) for b in range(nS)], False, "C"), [(D1 + j, S_C, sOA) for j in range(3)], sW3, [f"s_add_u32 s{sOA}, s{sC1}, {256*1152}"]))
    pW(0, 1); pW(0, 2); pC(0)
    oW(1, 2); oC(1); pW(1, 1); pW(1, 2); pC(1)
    return stages, nS


def pace(st, i0, t0, t1):
    items = list(st.q)
    def walk(rate):
        t = float(t0); ready = {}; tr = {}; out = []
        for (g, e, d) in items[i0:]:
            t = max(t, e)
            for x in g:
                if x.kind == "pwait" and x.op == "waittag":
                    for tg in x.args: t = max(t, tr.get(tg, -1))
                else:
                    for r in x.src + x.dst: t = max(t, ready.get(r, -1))
            out.append(t)
            for x in g:
                if x.kind == "ds_rd":
                    for r in x.dst: ready[r] = t + fw.LDS_LAT + 1
                elif x.kind == "vm_ld":
                    for r in x.dst: ready[r] = t + fw.VM_LAT + 2
                if x.tag and x.kind in ("vm_st", "ds_wr"): tr[x.tag] = t + fw.VM_LAT
            t += len(g) / rate
        return out
    lo, hi = 0.05, 8.0
    for _ in range(30):
        mid = (lo + hi) / 2
        if walk(mid)[-1] <= t1: hi = mid
        else: lo = mid
    dls = walk(hi)
    new = deque(items[:i0])
    for (g, e, d), t in zip(items[i0:], dls):
        nd = int(t) + 3
        new.append((g, e, nd if d is None else min(d, nd)))
    st.q = new
    st.rate = hi


def interleave(vm, fill, per):
    out = []; fi = 0
    for g in vm:
        out += g
        if any(("buffer_load" in x or "global_load" in x) if isinstance(x, str) else x.kind in ("dma", "vm_ld") for x in g):
            n = 0
            while fi < len(fill) and n < per:
                f = fill[fi]; fi += 1
                out += f if isinstance(f, list) else [f]
                n += len(f) if isinstance(f, list) else 1
    for f in fill[fi:]:
        out += f if isinstance(f, list) else [f]
    return out


def build_common(opt):
    o = []
    A = lambda *x: o.extend(expand(list(x)))
    A("s_cmp_ge_u32 s2, 256", "s_cbranch_scc1 L_main_end")
    A("s_load_dwordx16 s[64:79], s[0:1], 0", "s_load_dwordx16 s[80:95], s[0:1], 64", "s_load_dwordx2 s[96:97], s[0:1], 128")
    A(f"v_and_b32 {L}, 63, v0", "v_lshrrev_b32 v1, 6, v0")
    A(f"s_and_b32 s{sT0}, s2, 7", f"s_lshr_b32 s{sT1}, s2, 3")
    A(f"v_readfirstlane_b32 s{sW}, v1")
    A(f"s_lshl_b32 s{sSLICE}, s{sT0}, 1", f"s_and_b32 s{sPAR}, s{sT1}, 1", f"s_add_u32 s{sSLICE}, s{sSLICE}, s{sPAR}", f"s_lshr_b32 s{sTILE}, s{sT1}, 1")
    choose = [f"s_cmp_eq_u32 s{sPAR}, 1", "s_cbranch_scc1 L_var1"]
    prog, _ = pad_hazards(o)
    return render(prog) + "\n  " + "\n  ".join(choose) + "\n"


def build_variant(opt, par):
    stages, nS = build_stages(par)
    nSP = 5 - nS
    NST = len(stages)
    V = f"v{par}"
    pro = []
    A = lambda *x: pro.extend(expand(list(x)))
    ts = opt.get("ts")
    A(f"s_mul_i32 s{sC0}, s{sSLICE}, 9", f"s_lshr_b32 s{sC0}, s{sC0}, 1", f"s_lshl_b32 s{sC0}, s{sC0}, 3")
    A(f"s_mul_i32 s{sW6}, s{sW}, 6144", f"s_mul_i32 s{sW3}, s{sW}, 3072")
    A(voff_B(D1, 10))
    A(f"s_and_b32 s{sT3}, s{sW}, 1")
    A(f"s_mul_i32 s{sOA}, s{sC0}, 1152", f"s_lshl_b32 s{sT0}, s{sT3}, 7", f"s_add_u32 s{sOA}, s{sOA}, s{sT0}")
    A(f"s_lshl_b32 s{sT0}, s{sTILE}, 7", f"s_lshl_b32 s{sT1}, s{sW}, 5", f"s_add_u32 s{sT0}, s{sT0}, s{sT1}", f"s_mul_i32 s{sXO}, s{sT0}, 1152")
    A(f"s_lshl_b32 s{sXL}, s{sW}, 12", f"s_add_u32 s{sXL}, s{sXL}, {XBASE}")
    if ts: A("s_memtime s[100:101]", "s_waitcnt lgkmcnt(0)", "v_mov_b32 v255, 0", "v_writelane_b32 v255, s100, 0", "s_memrealtime s[100:101]")
    A("s_waitcnt lgkmcnt(0)")
    if ts: A("v_writelane_b32 v255, s100, 61")
    A(srd(S_X, "s64", "s65", 2359296))
    A(f"s_cmp_lt_u32 s{sW}, 2")
    A(f"s_cselect_b32 s{S_B}, s70, s72", f"s_cselect_b32 s{S_B+1}, s71, s73", f"s_mov_b32 s{S_B+2}, 663552", f"s_mov_b32 s{S_B+3}, 0x20000")

    def dma_items(k):
        st = stages[k]
        items = [[x] for x in st.pre] + [[f"s_add_u32 m0, s{st.wq}, {slot_base(k)}"]]
        for j, (v, s_, so) in enumerate(st.pieces):
            if j == 4: items.append([f"s_add_u32 m0, s{st.wq}, {slot_base(k) + 4096}"])
            imm = 1024 * (j % 4)
            items.append([I(f"buffer_load_dwordx4 v{v}, {sr(s_)}, s{so} offen" + (f" offset:{imm}" if imm else "") + " lds", tag=f"st{k}")])
        return items
    def xdma(j):
        items = [[f"s_add_u32 s{sOB}, s{sXO}, {128*j}"], [f"s_add_u32 m0, s{sXL}, {16384*XPOS[j]}"]]
        for g in range(4):
            items.append([I(f"buffer_load_dwordx4 v{D1+g}, {sr(S_X)}, s{sOB} offen" + (f" offset:{1024*g}" if g else "") + " lds", tag=f"x{j}")])
        return items
    XV = TA
    def xreads(j):
        return [I(f"ds_read_b128 {xfrag(2*j+h, n)}, v{XV+h} offset:{16384*XPOS[j] + 2048*n}", tag=f"xr{j}") for h in range(2) for n in range(2)]

    PLRE, PLIM, PLDT = T, T + 1, T + 2
    PFL = opt.get("pf", " sc1")
    oob = hex(OOB)
    vm = []
    vm += dma_items(0)
    vm += xdma(0) + xdma(1)
    vm += [[f"v_lshlrev_b32 v{VST}, 4, {L}", f"v_min_u32 v8, 47, {L}", f"v_lshlrev_b32 v{VCH}, 3, v8", f"v_add_u32 v9, s{sC0}, v8", "v_lshlrev_b32 v9, 1, v9"]
           + srd(S_P, "s66", "s67", 1152) + [f"buffer_load_ushort v{PLRE}, v9, {sr(S_P)}, 0 offen"]]
    vm += [srd(56, "s68", "s69", 1152) + [f"buffer_load_ushort v{PLIM}, v9, s[56:59], 0 offen"]]
    vm += [srd(60, "s78", "s79", 1152) + [f"buffer_load_ushort v{PLDT}, v9, s[60:63], 0 offen"]]
    vm += [srd(S_P, "s90", "s91", 1152) + [f"s_add_u32 m0, s{sW3}, {PRIV}", "s_nop 0", I(f"buffer_load_dwordx4 v{VST}, {sr(S_P)}, 0 offen lds", tag="gw")]]
    vm += [[I(f"buffer_load_dwordx4 v{VST}, {sr(S_P)}, 0 offen offset:1024 lds", tag="gw")]]
    vm += xdma(2) + xdma(3) + dma_items(1)
    PV = 12
    vm += [[f"s_cmp_lt_u32 s{sW}, 2", f"s_cselect_b32 s{S_W1}, s84, s86", f"s_cselect_b32 s{S_W1+1}, s85, s87", f"s_mov_b32 s{S_W1+2}, 5308416", f"s_mov_b32 s{S_W1+3}, 0x20000"]]
    if opt.get("nocpf") is None:
        vm += [[f"s_getpc_b64 s[100:101]", I(f"L_pc{par}:"),
                f"s_lshr_b32 s{sT0}, s2, 4", f"s_lshl_b32 s{sT0}, s{sT0}, 2", f"s_add_u32 s{sT0}, s{sT0}, s{sW}", f"s_mul_i32 s{sT0}, s{sT0}, 1152",
                f"v_lshlrev_b32 v12, 7, {L}", f"v_add_u32 v12, s{sT0}, v12", f"v_min_u32 v12, CODE_SPAN{par}, v12", f"v_cmp_gt_u32 vcc, 9, {L}",
                "s_and_saveexec_b64 s[62:63], vcc", f"global_load_dword a247, v12, s[100:101]", "s_mov_b64 exec, s[62:63]"]]
    fullcol = 64 * par; halfcol = 512 if par == 0 else 0
    if opt.get("nopf") is None:
        vm += [[f"s_lshl_b32 s{sT4}, s{sTILE}, 1", f"s_add_u32 s{sT4}, s{sT4}, s{sT3}",
                f"s_mul_i32 s100, s{sT4}, {14*128}", f"s_mul_i32 s{sT0}, s{sC0}, 1152", f"s_add_u32 s100, s100, s{sT0}",
                f"v_lshlrev_b32 v{PV}, 7, {L}", f"v_mov_b32 v{PV+1}, {oob}", f"v_cmp_gt_u32 vcc, 14, {L}", f"v_cndmask_b32 v{PV}, v{PV+1}, v{PV}, vcc",
                f"buffer_load_dword a249, v{PV}, {sr(S_B)}, s100 offen{PFL}"]]
        vm += [[f"v_mul_u32_u24 v{PV}, 57, {L}", f"v_lshrrev_b32 v{PV}, 10, v{PV}", f"v_mul_u32_u24 v{PV+1}, 18, v{PV}", f"v_sub_u32 v{PV+1}, {L}, v{PV+1}",
                f"v_mul_u32_u24 v{PV+1}, 9216, v{PV+1}", f"v_mul_i32_i24 v{PV}, {fullcol - halfcol}, v{PV}", f"v_add_u32 v{PV}, {halfcol}, v{PV}",
                f"v_add_u32 v{PV}, v{PV}, v{PV+1}",
                f"v_mov_b32 v{PV+1}, {oob}", f"v_cmp_gt_u32 vcc, 36, {L}", f"v_cndmask_b32 v{PV}, v{PV+1}, v{PV}, vcc",
                f"s_mul_i32 s100, s{sT4}, {18*9216}", f"s_mul_i32 s{sT0}, s{sSLICE}, 576", f"s_add_u32 s100, s100, s{sT0}",
                f"buffer_load_dword a250, v{PV}, {sr(S_W1)}, s100 offen{PFL}"]]
    fill = []
    F = lambda *x: fill.extend(list(x))
    F(*base_R2(14))
    F(f"v_add_u32 v{XV}, s{sXL}, v{RB[0]}", f"v_add_u32 v{XV+1}, s{sXL}, v{RB[1]}")
    F(f"v_lshrrev_b32 v3, 4, {L}", f"v_lshlrev_b32 v{GWB}, 4, v3", f"v_add_u32 v{GWB}, s{sW3}, v{GWB}", f"v_add_u32 v{GWB}, {PRIV}, v{GWB}")
    F(*voff_W1half(D2, 14))
    F(*base_T64(P1, 14))
    F(f"s_mul_i32 s{sT0}, s{sSLICE}, 576", f"s_mul_i32 s{sT1}, s{sT3}, {48*9216}", f"s_add_u32 s{sW1F}, s{sT0}, s{sT1}", f"s_add_u32 s{sW1F}, s{sW1F}, {fullcol}",
      f"s_mul_i32 s{sT1}, s{sT3}, {96*9216}", f"s_add_u32 s{sW1H}, s{sT0}, s{sT1}", f"s_add_u32 s{sW1H}, s{sW1H}, {halfcol}")
    F([f"s_cmp_lt_u32 s{sW}, 2", f"s_cselect_b32 s{S_C}, s74, s76", f"s_cselect_b32 s{S_C+1}, s75, s77"], f"s_mov_b32 s{S_C+2}, 663552", f"s_mov_b32 s{S_C+3}, 0x20000")
    F(*srd(S_WD, "s88", "s89", 5308416))
    F(*srd(S_WS, "s96", "s97", WS_END + (1 << 19) * bool(ts)))
    F(f"s_mul_i32 s{sT0}, s{sSLICE}, 6144", f"s_add_u32 s{sT0}, s{sT0}, {WS_S}", [f"s_add_u32 s{S_S}, s96, s{sT0}", f"s_addc_u32 s{S_S+1}, s97, 0"],
      f"s_mov_b32 s{S_S+2}, 6144", f"s_mov_b32 s{S_S+3}, 0x20000")
    F(*srd(S_DBG, "s94", "s95", 256))
    nfill_early = len(fill)
    late = []
    G = lambda *x: late.extend(list(x))
    G(f"s_lshr_b32 s{sT0}, s{sSLICE}, 1", f"s_mul_i32 s{sT0}, s{sT0}, {576*1152}",
      f"s_mul_i32 s{sT1}, s{sT3}, {48*1152}", f"s_lshr_b32 s{sT2}, s{sW}, 1", f"s_lshl_b32 s{sT2}, s{sT2}, 7",
      f"s_add_u32 s{sWD2}, s{sT0}, s{sT1}", f"s_add_u32 s{sWD2}, s{sWD2}, s{sT2}",
      f"s_add_u32 s{sT0}, s{sT0}, {288*1152*par}", f"s_mul_i32 s{sT1}, s{sW}, {48*1152}", f"s_add_u32 s{sWD1}, s{sT0}, s{sT1}",
      f"s_mul_i32 s{sT1}, s{sW}, {24*1152}", f"s_add_u32 s{sWD1B}, s{sT0}, s{sT1}", f"s_add_u32 s{sWD1B}, s{sWD1B}, {192*1152}")
    G(f"s_add_u32 s{sC0P}, s{sC0}, {32 if par == 0 else -32 & 0xffffffff}")
    G(f"s_mul_i32 s{sT1}, s{sT3}, {64*1152}", f"s_lshl_b32 s{sT2}, s{sC0}, 1", f"s_add_u32 s{sC2}, s{sT1}, s{sT2}",
      f"s_lshl_b32 s{sT0}, s{sC0P}, 1", f"s_add_u32 s{sC2P}, s{sT1}, s{sT0}",
      f"s_mul_i32 s{sT1}, s{sT3}, {32*1152}", f"s_add_u32 s{sC1}, s{sT1}, s{sT2}")
    G(f"s_lshr_b32 s{sP8}, s{sSLICE}, 1", f"s_lshl_b32 s{sP8}, s{sP8}, 4", f"s_add_u32 s{sP8}, s{sP8}, s{sTILE}", f"s_lshl_b32 s{sP8}, s{sP8}, 2",
      f"s_add_u32 s{sP8}, s{sP8}, s{sW}", f"s_lshl_b32 s{sP8}, s{sP8}, 15", f"s_add_u32 s{sP8}, s{sP8}, {WS_P8 + 16384*par}")
    G(f"s_lshl_b32 s{sP16}, s{sSLICE}, 4", f"s_add_u32 s{sP16}, s{sP16}, s{sTILE}", f"s_lshl_b32 s{sP16}, s{sP16}, 2", f"s_add_u32 s{sP16}, s{sP16}, s{sW}",
      f"s_lshl_b32 s{sP16}, s{sP16}, 12", f"s_add_u32 s{sP16}, s{sP16}, {WS_P16}")
    G(f"s_lshl_b32 s{sHO}, s{sTILE}, 4", f"s_add_u32 s{sHP}, s{sHO}, s{sSLICE}", f"s_lshl_b32 s{sHP}, s{sHP}, 2", f"s_add_u32 s{sHP}, s{sHP}, s{sW}",
      f"s_mul_i32 s{sHO}, s{sHP}, {24*1024}", f"s_add_u32 s{sHO}, s{sHO}, {WS_H}",
      f"s_add_u32 s{sHP}, s{sHO}, {(4*24*1024 if par == 0 else -4*24*1024) & 0xffffffff}")
    G(f"s_bfm_b64 s[{sMASK}:{sMASK+1}], s{sTILE}, 0", f"s_not_b64 s[{sMASK}:{sMASK+1}], s[{sMASK}:{sMASK+1}]")
    for k, sm in ((1, sM1), (2, sM2), (3, sM3)):
        G([f"s_cmp_ge_u32 s{sW}, {k}", f"s_cselect_b32 s{sm}, 1.0, 0"])
    if opt.get("nopf") is None:
        Q = TS
        G(f"v_mul_u32_u24 v{Q}, 57, {L}", f"v_lshrrev_b32 v{Q}, 10, v{Q}", f"v_mul_u32_u24 v{Q+1}, 18, v{Q}", f"v_sub_u32 v{Q+1}, {L}, v{Q+1}",
          f"v_mul_u32_u24 v{Q+1}, 9216, v{Q+1}", f"v_lshlrev_b32 v{Q}, 7, v{Q}", f"v_add_u32 v{Q}, {fullcol + 128}, v{Q}", f"v_add_u32 v{Q+1}, v{Q+1}, v{Q}",
          f"v_mov_b32 v{Q+2}, {oob}", f"v_cmp_gt_u32 vcc, 54, {L}", f"v_cndmask_b32 v{Q+1}, v{Q+2}, v{Q+1}, vcc", f"v_accvgpr_write_b32 a253, v{Q+1}")
        G(f"v_lshlrev_b32 v{Q}, 7, {L}", f"v_cmp_gt_u32 vcc, 41, {L}", f"v_cndmask_b32 v{Q}, v{Q+2}, v{Q}, vcc", f"v_accvgpr_write_b32 a254, v{Q}")
        G(f"v_lshrrev_b32 v{Q}, 1, {L}", f"v_mul_u32_u24 v{Q}, 1152, v{Q}", f"v_and_b32 v{Q+1}, 1, {L}", f"v_mul_u32_u24 v{Q+1}, 92, v{Q+1}",
          f"v_add_u32 v{Q}, v{Q}, v{Q+1}", f"v_cmp_gt_u32 vcc, 36, {L}", f"v_cndmask_b32 v{Q}, v{Q+2}, v{Q}, vcc", f"v_accvgpr_write_b32 a255, v{Q}")
    LRE, LIM, DT, E1, R1, M_, A_ = T + 3, T + 4, T + 5, T + 6, T + 7, T + 20, T + 21
    TB = T + 8; CH = T + 22
    G(f"v_lshlrev_b32 v{LRE}, 16, v{PLRE}", f"v_lshlrev_b32 v{LIM}, 16, v{PLIM}", f"v_lshlrev_b32 v{DT}, 16, v{PLDT}")
    G(f"v_mul_f32 v{DT}, {hex(LOG2E)}, v{DT}", f"v_exp_f32 v{DT}, v{DT}", f"v_lshrrev_b32 v{CH}, 3, v{VCH}",
      f"v_cvt_pk_bf16_f32 v{DT}, v{DT}, v{DT}", f"v_lshlrev_b32 v{DT}, 16, v{DT}")
    G(f"v_mul_f32 v{E1}, v{DT}, v{LRE}", f"v_mul_f32 v{R1}, v{DT}, v{LIM}", f"v_mul_f32 v{E1}, {hex(LOG2E)}, v{E1}", f"v_mul_f32 v{R1}, {hex(INV2PI)}, v{R1}")
    def cpow(dre, dim, nsrc):
        return [f"v_mul_f32 v{M_}, {nsrc}, v{E1}", f"v_mul_f32 v{A_}, {nsrc}, v{R1}", f"v_exp_f32 v{M_}, v{M_}", f"v_fract_f32 v{A_}, v{A_}",
                f"v_cos_f32 v{dre}, v{A_}", f"v_sin_f32 v{dim}, v{A_}", f"v_mul_f32 v{dre}, v{M_}, v{dre}", f"v_mul_f32 v{dim}, v{M_}, v{dim}"]
    G(*cpow(TB, TB + 1, "1.0")); G(*cpow(TB + 2, TB + 3, "2.0"))
    G(f"s_mov_b32 s{sT0}, 0x40400000"); G(*cpow(TB + 4, TB + 5, f"s{sT0}"))
    G(*cpow(TB + 6, TB + 7, "4.0"))
    G(f"v_mov_b32 v{A4}, v{TB+6}", f"v_mov_b32 v{A4+1}, v{TB+7}")
    G(f"s_mov_b32 s{sT0}, 0x42000000"); G(*cpow(A32, A32 + 1, f"s{sT0}"))
    G(f"s_mov_b32 s{sT0}, 0x43000000"); G(*cpow(A128, A128 + 1, f"s{sT0}"))
    G(f"s_lshl_b32 s{sT0}, s{sW}, 5", f"v_cvt_f32_u32 v{T+23}, s{sT0}"); G(*cpow(PW, PW + 1, f"v{T+23}"))
    KC = T
    G(f"v_add_f32 v{M_}, -1.0, v{TB}", f"v_mul_f32 v{A_}, v{LRE}, v{LRE}", f"v_fmac_f32 v{A_}, v{LIM}, v{LIM}", f"v_rcp_f32 v{A_}, v{A_}",
      f"v_mul_f32 v{KC}, v{M_}, v{LRE}", f"v_fmac_f32 v{KC}, v{TB+1}, v{LIM}",
      f"v_mul_f32 v{KC+1}, v{TB+1}, v{LRE}", f"v_fma_f32 v{KC+1}, -v{M_}, v{LIM}, v{KC+1}",
      f"v_mul_f32 v{KC}, v{KC}, v{A_}", f"v_mul_f32 v{KC+1}, v{KC+1}, v{A_}")
    G(f"v_cmp_gt_u32 vcc, {32 + 8*par}, v{CH}", f"v_mul_u32_u24 v{CH}, 48, v{CH}", f"v_add_u32 v{CH}, {TAB}, v{CH}",
      f"v_cndmask_b32 v{KC}, 0, v{KC}, vcc", f"v_cndmask_b32 v{KC+1}, 0, v{KC+1}, vcc")
    G(f"v_mov_b32 v{KC+2}, 0", f"v_mov_b32 v{KC+3}, 0")
    G(f"ds_write_b128 v{CH}, {vr(TB)}", f"ds_write_b128 v{CH}, {vr(TB+4)} offset:16", f"ds_write_b128 v{CH}, {vr(KC)} offset:32")
    per = int(opt.get("per", 12))
    A(interleave(vm, fill, per))

    units, ustage, u0 = [], [], []
    for k, st in enumerate(stages):
        u0.append(len(units))
        for un in st.units: units.append(un); ustage.append(k)
    NU = len(units); u0.append(NU)

    def read_ins(u):
        un = units[u]; k = ustage[u]
        o = []; d = afrag(u)
        for (op, nreg, (kind, idx), off) in un["reads"]:
            s_ = setof(k)
            if kind == "abs": b, o2 = idx, off
            else:
                b = {"R": lambda: RB[2*s_ + idx], "T64": lambda: T64B[2*s_ + idx], "T128": lambda: T128B[4*s_ + idx], "C": lambda: CB[s_]}[kind]()
                o2 = off + slot_rel(k)
            assert o2 < 65536
            o.append(I(f"{op} {ar(d, nreg)}, v{b}" + (f" offset:{o2}" if o2 else ""))); d += nreg
        return o

    DEPTH = int(opt.get('depth', 6)); WE = int(opt.get('we', 4))
    def stamp(i):
        return [I("s_memtime s[100:101]"), I("s_waitcnt lgkmcnt(0)"), I(f"v_writelane_b32 v255, s100, {i}")]
    kH = 5; kF = lambda c: 8 + 6 * c; kPA = 32; kPM = 40
    kWB = kF(0) + 1
    kHA = kF(3) + 1
    kHB = kPA + int(opt.get('khb', 4))
    BTAG = {2: ('xr4', 'xr5'), 3: ('xr7', 'xr6'), 4: ('xr8',), kWB: ('wtot',), kHA: ('hstA',), kHB: ('hstB',)}
    slots = []; bar_mf = {}
    for u in range(NU):
        un = units[u]; fr = ar(afrag(u))
        rd = read_ins(u + DEPTH) if u + DEPTH < NU else []
        pre = []
        kn = ustage[u + DEPTH] if u + DEPTH < NU else None
        if kn is not None and u + DEPTH == u0[kn]:
            pre += [WaitTag(f"st{kn}", *BTAG.get(kn, ())), I("s_barrier")]
            if ts == "1" or (ts == "2" and kn in (1, 2, 3, 4, 5, 8, 14, 20, 26, 32, 37, 40, 43, 46)): pre += stamp(kn + 1)
            bar_mf[kn] = 2 * u
        if u % WE == 0:
            rg = []
            for x in range(u, min(u + WE, NU)): rg += regs_of(ar(afrag(x)))
            pre += [WaitRegs(rg)]
        for n in range(2):
            d, a, b, c = un["mf"][n]
            txt = mf(d, a, fr, c) if un["swap"] else mf(d, fr, b, c)
            slots.append(Slot(txt, pre if n == 0 else [], rd[n:n + 1] if n < len(rd) else []))
    mend = lambda k: 2 * u0[k + 1] - 1
    mbeg = lambda k: 2 * u0[k]
    if ts: A(stamp(60))
    A(WaitTag("x0")); A(xreads(0)); A(WaitTag("x1")); A(xreads(1))
    A(WaitTag("st0", "gw"), "s_barrier")
    if ts: A(stamp(1))
    for u in range(DEPTH): A(read_ins(u))

    mXB = mend(4)
    XS = 2 * len(stages[0].units)
    sD = Stream("dma", 0)
    fr_of = lambda j: [r for h in range(2) for n in range(2) for r in regs_of(xfrag(2*j+h, n))]
    def xd(j, e, dl, after=None):
        if after is not None: sD.add([WaitRegs(fr_of(after))], e, dl)
        for it in xdma(j): sD.add(it, e, dl)
    def xr(j, e, dl):
        sD.add([WaitTag(f"x{j}")], e, dl)
        for r_ in xreads(j): sD.add(r_, e, dl)
    xd(4, 0, 10); xd(5, 0, 20)
    xr(2, 2, bar_mf[1] + 2); xr(3, 2, bar_mf[1] + 8)
    for it in dma_items(2): sD.add(it, 0, bar_mf[1] + 20)
    xd(6, 20, bar_mf[1] + 30, after=2); xd(7, 20, bar_mf[1] + 40, after=3)
    xr(4, bar_mf[1] + 10, bar_mf[2] - 8); xr(5, bar_mf[1] + 10, bar_mf[2] - 2)
    for it in dma_items(3): sD.add(it, bar_mf[2], bar_mf[2] + 16)
    xr(6, bar_mf[2] + 8, bar_mf[2] + 22)
    xd(8, bar_mf[2] + 16, bar_mf[2] + 34, after=6)
    xr(7, bar_mf[2] + 20, bar_mf[3] - 2)
    for it in dma_items(4): sD.add(it, bar_mf[3], bar_mf[3] + 16)
    xr(8, bar_mf[3] + 20, bar_mf[4] - 2)
    for it in dma_items(5): sD.add(it, bar_mf[4], bar_mf[4] + 12)
    xdone = bar_mf[4]
    prev_user = {}; dma_e = {}; dma_d = {}
    e_prev = bar_mf[4] + 12; d_prev = e_prev
    for k in range(NST):
        sl_ = slot_of(k)
        if k >= 6:
            e_ = max(bar_mf[prev_user[sl_] + 2], e_prev)
            d_ = min(max(e_ + 44, d_prev + 20), bar_mf[k] - 2)
            for it in dma_items(k): sD.add(it, e_, d_)
            dma_e[k], dma_d[k] = e_, d_
            e_prev, d_prev = e_, d_
        prev_user[sl_] = k
    clr = [[f"s_lshl_b32 s{sT0}, s{sSLICE}, 4", f"s_add_u32 s{sT0}, s{sT0}, s{sTILE}", f"s_lshl_b32 s{sT1}, s{sT0}, 7", f"s_add_u32 s{sT1}, s{sT1}, {WS_F}",
            f"s_cmp_eq_u32 s{sW}, 0", f"s_cselect_b32 s{sT2}, 1, 0"],
           f"v_cmp_gt_u32 vcc, s{sT2}, {L}", f"v_mov_b32 v{TS}, {oob}", f"v_mov_b32 v{TS+1}, s{sT1}", f"v_mov_b32 v{TS+2}, s{sT0}", f"v_mov_b32 v{TS+3}, 0",
           f"v_cndmask_b32 v{TS+1}, v{TS}, v{TS+1}, vcc", f"v_cndmask_b32 v{GWB+0 if False else TA+2}, v{TS}, v{TS+2}, vcc",
           I(f"buffer_store_dword v{TS+3}, v{TS+1}, {sr(S_WS)}, 0 offen sc1", tag="clr")]
    sP = Stream("setup", 1)
    for x in clr: sP.add(x, 0, 60)
    for x in late: sP.add(x, 0, mXB)
    sCl = Stream("clr", 1)
    sCl.add([I(f"v_mov_b32 v64, 1"), WaitTag("clr"), I(f"buffer_store_byte v64, v{TA+2}, {sr(S_DBG)}, 0 offen sc1")], bar_mf[2], bar_mf[3] + 10)
    sA = Stream("addr", 1)
    sA.extend(voff_W1full(D1, TA + 2), bar_mf[3] + 18, dma_e[kF(0)])
    common = base_list_T128(T128B, 8, TA, None)
    sA.extend(common, xdone + 1, bar_mf[kF(0)])
    for idx in range(6): sA.extend(t128_regs(idx, TA), xdone + 1, bar_mf[kF(0)])
    for idx in range(6, 12): sA.extend(t128_regs(idx, TA), mXB + 1, bar_mf[kF(0)])
    sA.extend(voff_Wd(D2, TA), max(dma_d[7], mXB + 2), dma_e[kPA])
    sA.extend([x.replace(f'v{TA+2}', f'v{CB[2]}') for x in base_C(CB[0], TA)], bar_mf[kF(0)] + 4, bar_mf[kPA + 4])
    sA.extend(voff_C(D1, TA), dma_d[kPA - 1], dma_e[kPA + 4])
    last_use = {}; next_use = {}
    for k in range(kF(0), kPA): last_use[setof(k)] = k
    for k in range(NST - 1, kPA - 1, -1):
        if stages[k].fmt.startswith("Wd"): next_use[setof(k)] = k
    sB = Stream("bases", 1)
    order = sorted(range(3), key=lambda s_: last_use[s_])
    sB.add(f"v_lshrrev_b32 v{TA+2}, 4, {L}", bar_mf[last_use[order[0]] + 1], bar_mf[next_use[order[0]]] - 20)
    sB.add(f"v_lshlrev_b32 v{TA+2}, 9, v{TA+2}", bar_mf[last_use[order[0]] + 1], bar_mf[next_use[order[0]]] - 20)
    for s_ in order:
        for mt in range(4):
            r_ = T128B[4 * s_ + mt]
            sB.add(f"v_sub_u32 v{r_}, v{r_}, v{TA+2}", bar_mf[last_use[s_] + 1], bar_mf[next_use[s_]])

    sE = Stream("epi", 2)
    HST = opt.get("hst", " sc1")
    def hstore(reg, K, n, tag):
        off = (K * 2 + n) * 1024
        return [I(f"s_add_u32 s{sHT}, s{sHO}, {off & ~4095}"),
                I(f"buffer_store_dwordx4 {vr(reg)}, v{VST}, {sr(S_WS)}, s{sHT} offen" + (f" offset:{off & 4095}" if off & 4095 else "") + HST, tag=tag)]
    def ffn_epi(buf, Ks, earliest, deadline, tag):
        for kk, K in enumerate(Ks):
            for n in range(2):
                o = []
                gs = [buf + (2 * kk + h) * 8 + 4 * n for h in range(2)]; us = [buf + (4 + 2 * kk + h) * 8 + 4 * n for h in range(2)]
                for h in range(2):
                    g, u_ = gs[h], us[h]
                    for r in range(4): o += [f"v_max_f32 v{g+r}, 0, v{g+r}", f"v_mul_f32 v{u_+r}, v{SF+n}, v{u_+r}"]
                    for r in range(4): o += [f"v_mul_f32 v{g+r}, v{g+r}, v{u_+r}"]
                d = us[0]
                o += [f"v_cvt_pk_bf16_f32 v{d}, v{gs[0]}, v{gs[0]+1}", f"v_cvt_pk_bf16_f32 v{d+1}, v{gs[0]+2}, v{gs[0]+3}",
                      f"v_cvt_pk_bf16_f32 v{d+2}, v{gs[1]}, v{gs[1]+1}", f"v_cvt_pk_bf16_f32 v{d+3}, v{gs[1]+2}, v{gs[1]+3}"]
                h_ = AH + 8 * K + 4 * n
                o += [f"v_accvgpr_write_b32 a{h_+j}, v{d+j}" for j in range(4)]
                sE.extend(o, earliest, deadline)
                sE.add(hstore(d, K, n, tag), earliest, deadline)
    ffn_epi(ACC[0], [8], mend(kH + 2) + 4, mbeg(kF(1)), "hstA")
    ffn_epi(ACC[1], [0, 1], mend(kF(0) + 5) + 4, mbeg(kF(2)), "hstA")
    ffn_epi(ACC[0], [2, 3], mend(kF(1) + 5) + 4, mbeg(kF(3)) - 60, "hstA")
    ffn_epi(ACC[1], [4, 5], mend(kF(2) + 5) + 4, mbeg(kPA), "hstB")
    ffn_epi(ACC[0], [6, 7], mend(kF(3) + 5) + 4, min(bar_mf[kHB - 1] - 20, mbeg(kPA + 3) - 4), "hstB")
    PST = opt.get("pst", " sc1")
    for p, k1 in ((2, kPM + 2), (0, 45), (1, 50)):
        nm = 8 if p < 2 else 4
        last = mend(k1)
        sreg = sP8 if p < 2 else sP16
        for m in range(nm):
            a = (ACC[(p + 1) & 1] + m * 8) if p < 2 else PMACC[m]
            o = [f"v_cvt_pk_bf16_f32 v{a}, v{a}, v{a+1}", f"v_cvt_pk_bf16_f32 v{a+1}, v{a+2}, v{a+3}",
                 f"v_cvt_pk_bf16_f32 v{a+2}, v{a+4}, v{a+5}", f"v_cvt_pk_bf16_f32 v{a+3}, v{a+6}, v{a+7}"]
            sE.extend(o, last + 4, None)
            imm = 1024 * (m % 4)
            sE.add(f"buffer_store_dwordx4 {vr(a)}, v{VST}, {sr(S_WS)}, s{sreg} offen" + (f" offset:{imm}" if imm else "") + PST, last + 4, None)
            if m % 4 == 3: sE.add(f"s_add_u32 s{sreg}, s{sreg}, 4096", last + 4, None)

    sS = Stream("ssm", 3)
    e = [mXB + 4]
    add = lambda x, deadline=None: sS.add(x, e[0], deadline)
    def adds(lst, **kw):
        for x in lst: add(x, **kw)
    dlG = mend(kH + 2)
    G0, G1, Z = T, T + 1, T + 2
    adds([f"v_lshrrev_b32 v{G0}, 4, {L}", f"v_lshlrev_b32 v{G0}, 4, v{G0}", f"v_add_u32 v{G0}, s{sW3}, v{G0}", f"v_add_u32 v{G0}, {PRIV}, v{G0}"])
    for n in range(2): add(f"ds_write_b128 v{G0}, {vr(LG+4*n)} offset:{64*n}")
    adds([f"v_and_b32 v{G1}, 31, {L}", f"v_lshlrev_b32 v{G1}, 2, v{G1}", f"v_add_u32 v{G1}, s{sW3}, v{G1}", f"v_add_u32 v{G1}, {PRIV}, v{G1}",
          f"ds_read_b32 v{Z}, v{G1}"])
    TA1 = T + 8
    adds([f"v_and_b32 v{VT}, 15, {L}", f"v_mul_u32_u24 v{VT}, 48, v{VT}", f"v_add_u32 v{VT}, {TAB}, v{VT}"])
    for b in range(nS): add(f"ds_read_b64 {vr(TA1+2*b, 2)}, v{VT} offset:{b*768}")
    adds([f"v_cvt_pk_bf16_f32 v{Z}, v{Z}, v{Z}", f"v_lshlrev_b32 v{Z}, 16, v{Z}", f"v_mul_f32 v{Z}, {hex(LOG2E ^ 0x80000000)}, v{Z}", f"v_exp_f32 v{Z}, v{Z}",
          f"v_lshrrev_b32 v{VE}, 4, {L}",
          f"v_add_f32 v{Z}, 1.0, v{Z}", f"v_rcp_f32 v{Z}, v{Z}", f"v_mul_u32_u24 v{VE}, 384, v{VE}",
          f"v_cvt_pk_bf16_f32 v{Z}, v{Z}, v{Z}", f"v_lshlrev_b32 v{Z}, 16, v{Z}",
          f"v_sub_f32 v{T+3}, 1.0, v{Z}", f"v_cvt_pk_bf16_f32 v{T+3}, v{T+3}, v{T+3}", f"v_lshlrev_b32 v{T+3}, 16, v{T+3}", f"v_add_f32 v{T+4}, v{Z}, v{Z}",
          f"ds_write_b32 v{G1}, v{T+3} offset:128", f"ds_write_b32 v{G1}, v{T+4} offset:256"])
    if par == 0:
        add([f"s_lshl_b32 s{sT0}, s{sTILE}, 7", f"s_lshl_b32 s{sT1}, s{sW}, 5", f"s_add_u32 s{sT0}, s{sT0}, s{sT1}", f"s_lshl_b32 s{sT0}, s{sT0}, 2",
             f"s_add_u32 s{sT0}, s{sT0}, {WS_G}", f"s_cmp_eq_u32 s{sSLICE}, 0", f"s_cselect_b32 s{sT1}, 32, 0"])
        adds([f"v_lshlrev_b32 v{T+5}, 2, {L}", f"v_cmp_gt_u32 vcc, s{sT1}, {L}", f"v_mov_b32 v{T+6}, {oob}",
              f"v_cndmask_b32 v{T+5}, v{T+6}, v{T+5}, vcc", f"buffer_store_dword v{Z}, v{T+5}, {sr(S_WS)}, s{sT0} offen"])
    adds([f"v_and_b32 v{T+7}, 15, {L}", f"v_lshlrev_b32 v{T+7}, 2, v{T+7}", f"v_add_u32 v{T+7}, s{sW3}, v{T+7}", f"v_add_u32 v{T+7}, {PRIV}, v{T+7}"])
    for n in range(2): add(f"ds_read_b32 v{SF+n}, v{T+7} offset:{128+64*n}")
    for n in range(2): add(f"ds_read_b128 {vr(LG+4*n)}, v{G0} offset:{256+64*n}")
    adds([f"v_and_b32 v{VE+1}, 15, {L}", f"v_lshlrev_b32 v{VE+1}, 3, v{VE+1}", f"v_add_u32 v{VE}, v{VE}, v{VE+1}", f"v_add_u32 v{VE}, s{sW3}, v{VE}",
          f"v_add_u32 v{VE}, {PRIV}, v{VE}", f"v_add_u32 v{VE+1}, 1536, v{VE}"])
    add(WaitRegs([f"v{SF}", f"v{SF+1}"] + regs_of(vr(LG, 8))), deadline=dlG)
    for r in range(1, 4):
        for b in range(nS):
            are, aim = TA1 + 2 * b, TA1 + 2 * b + 1
            for n in range(2):
                R, Im = xb(b, 0, n), xb(b, 1, n)
                adds([f"v_fmac_f32 v{R+r}, v{are}, v{R+r-1}", f"v_fmac_f32 v{Im+r}, v{are}, v{Im+r-1}"])
            for n in range(2):
                R, Im = xb(b, 0, n), xb(b, 1, n)
                adds([f"v_fma_f32 v{R+r}, -v{aim}, v{Im+r-1}, v{R+r}", f"v_fmac_f32 v{Im+r}, v{aim}, v{R+r-1}"])
    for b in range(nS):
        for n in range(2):
            add(f"ds_write2_b32 v{VE+n}, v{xb(b,0,n)+3}, v{xb(b,1,n)+3} offset0:{32*b} offset1:{32*b+1}")
    adds([f"v_add_u32 v{VP}, s{sW3}, v{VCH}", f"v_add_u32 v{VP}, {PRIV}, v{VP}"])
    for m in range(8): add(f"ds_read_b64 {vr(T+2*m, 2)}, v{VP} offset:{384*m}")
    add([f"s_mul_i32 s{sT0}, s{sW}, 384", f"s_add_u32 s{sT0}, s{sT0}, {WTOT}"]); add(f"v_add_u32 v{TS}, s{sT0}, v{VCH}")
    for m in range(1, 8): adds(cmul_acc(T + 2*m, T + 2*m + 1, A4, A4 + 1, T + 2*m - 2, T + 2*m - 1))
    add(I(f"ds_write_b64 v{TS}, {vr(T+14, 2)}", tag="wtot"), deadline=bar_mf[kWB] - 2)
    e[0] = bar_mf[kWB]
    adds([f"v_add_u32 v{TS}, {WTOT}, v{VCH}"])
    for m in range(4): add(f"ds_read_b64 {vr(T+2*m, 2)}, v{TS} offset:{384*m}")
    add([f"s_mul_i32 s{sT0}, s{sTILE}, 384", f"s_cmp_eq_u32 s{sW}, 0", f"s_cselect_b32 s{sT1}, 48, 0"])
    adds([f"v_add_u32 v{TS+1}, s{sT0}, v{VCH}", f"v_cmp_gt_u32 vcc, s{sT1}, {L}", f"v_mov_b32 v{TS+2}, {oob}"])
    for m in range(1, 4): adds(cmul_acc(T + 2*m, T + 2*m + 1, A32, A32 + 1, T + 2*m - 2, T + 2*m - 1))
    adds([f"v_cndmask_b32 v{TS+1}, v{TS+2}, v{TS+1}, vcc"])
    add(I(f"buffer_store_dwordx2 {vr(T+6, 2)}, v{TS+1}, {sr(S_S)}, 0 offen sc1", tag="sst"))
    XF, XP, XT = P1 + 3, P1 + 4, P1 + 5
    eX = bar_mf[kF(0)] + 4
    sX_ = Stream("xch", 2)
    sX_.add([f"s_lshl_b32 s{sQ+1}, s{sSLICE}, 4", f"s_add_u32 s{sQ+1}, s{sQ+1}, s{sTILE}", f"s_lshl_b32 s{sQ+1}, s{sQ+1}, 7", f"s_add_u32 s{sQ+1}, s{sQ+1}, {WS_F}",
             f"s_cmp_eq_u32 s{sW}, 0", f"s_cselect_b32 s{sQ+2}, 1, 0"], eX, bar_mf[kWB] + 8)
    for x in [f"v_mov_b32 v{XF}, s{sQ+1}", f"v_cmp_gt_u32 vcc, s{sQ+2}, {L}", f"v_mov_b32 v{XT}, {oob}", f"v_cndmask_b32 v{XF}, v{XT}, v{XF}, vcc",
              [f"s_sub_u32 s{sQ+1}, s{sQ+1}, {WS_F}", f"s_xor_b32 s{sQ+1}, s{sQ+1}, 2048", f"s_add_u32 s{sQ+1}, s{sQ+1}, {WS_F}"], f"v_mov_b32 v{XP}, s{sQ+1}"]:
        sX_.add(x, eX, bar_mf[kWB] + 8)
    add([I(f"v_mov_b32 v{TS+3}, 1"), WaitTag("sst"), I(f"buffer_store_dword v{TS+3}, v{XF}, {sr(S_WS)}, 0 offen sc1")])
    slow = []
    def poll(emit, name, areg, dreg, cond_instrs, cnt, dbg=False):
        ld = f"buffer_load_ubyte v{dreg}, v{areg}, {sr(S_DBG)}, 0 offen sc1" if dbg else f"buffer_load_dword v{dreg}, v{areg}, {sr(S_WS)}, 0 offen sc1"
        emit(ld, False)
        emit([I(x) for x in cond_instrs] + [I("s_cmp_eq_u64 vcc, -1"), I(f"s_cbranch_scc0 L_slow_{name}{par}"), I(f"L_back_{name}{par}:")], True)
        slow.extend([I(f"L_slow_{name}{par}:"), I(f"s_mov_b32 s{cnt}, 0"), I(f"L_slowl_{name}{par}:"), I("s_sleep 1"), I(ld), I("s_waitcnt vmcnt(0)")]
                    + [I(cond_instrs[0]), I("s_nop 4")] + [I(x) for x in cond_instrs[1:]]
                    + [I("s_cmp_eq_u64 vcc, -1"), I(f"s_cbranch_scc1 L_back_{name}{par}"), I(f"s_add_u32 s{cnt}, s{cnt}, 1"), I(f"s_cmp_lt_u32 s{cnt}, 0x40000"),
                       I(f"s_cbranch_scc1 L_slowl_{name}{par}"), I(f"s_branch L_back_{name}{par}")])
    kPoll = int(opt.get("kpoll", kF(1)))
    pace_from = [len(sS.q)]
    e[0] = bar_mf[kPoll]
    adds([[f"s_lshl_b32 s{sT0}, s{sSLICE}, 4", f"s_sub_u32 s{sT1}, s{sTILE}, 256"],
          f"v_add_u32 v{TS}, s{sT0}, {L}", f"v_lshlrev_b32 v{TS+2}, 4, {L}", f"v_add_u32 v{TS+2}, s{sT1}, v{TS+2}",
          f"v_cmp_gt_u32 vcc, 16, {L}", f"v_cndmask_b32 v{TS}, v{TS+2}, v{TS}, vcc",
          f"v_mov_b32 v{TS+2}, {oob}", f"v_cmp_gt_u32 vcc, 32, {L}", f"v_cndmask_b32 v{TS}, v{TS+2}, v{TS}, vcc"])
    poll(lambda x, chk: add(x), "C", TS, TS + 1, [f"v_cmp_ne_u32 vcc, 0, v{TS+1}", f"s_or_b32 vcc_hi, vcc_hi, -1"], sT2, dbg=True)
    adds([[f"s_lshl_b32 s{sT0}, s{sSLICE}, 11", f"s_add_u32 s{sT0}, s{sT0}, {WS_F}"], f"v_lshlrev_b32 v{TS}, 7, {L}", f"v_add_u32 v{TS}, s{sT0}, v{TS}",
          f"v_cmp_gt_u32 vcc, 16, {L}", f"v_mov_b32 v{TS+2}, {oob}", f"v_cndmask_b32 v{TS}, v{TS+2}, v{TS}, vcc"])
    poll(lambda x, chk: add(x), "S", TS, TS + 1, [f"v_cmp_ne_u32 vcc, 0, v{TS+1}", f"s_or_b64 vcc, vcc, s[{sMASK}:{sMASK+1}]"], sT2)
    add([f"s_mul_i32 s{sT0}, s{sTILE}, 384"]); add(f"v_add_u32 v{TS}, s{sT0}, v{VCH}")
    for idx, k in enumerate(range(15, 7, -1)):
        t_ = TS + 1 + (idx & 1)
        add(f"v_subrev_u32 v{t_}, {k*384}, v{TS}")
        add(f"buffer_load_dwordx2 {vr(T+2*idx, 2)}, v{t_}, {sr(S_S)}, 0 offen sc1")
    CC = TS + 2
    for m in range(1, 8): adds(cmul_acc(T + 2*m, T + 2*m + 1, A128, A128 + 1, T + 2*m - 2, T + 2*m - 1))
    adds([f"v_mov_b32 v{CC}, v{T+14}", f"v_mov_b32 v{CC+1}, v{T+15}"])
    for idx, k in enumerate(range(7, 0, -1)):
        add(f"v_subrev_u32 v{TS+1}, {k*384}, v{TS}")
        add(f"buffer_load_dwordx2 {vr(T+2*idx, 2)}, v{TS+1}, {sr(S_S)}, 0 offen sc1")
    adds(cmul_acc(T, T + 1, A128, A128 + 1, CC, CC + 1))
    for m in range(1, 7): adds(cmul_acc(T + 2*m, T + 2*m + 1, A128, A128 + 1, T + 2*m - 2, T + 2*m - 1))
    adds([f"v_mov_b32 v{CC}, v{T+12}", f"v_mov_b32 v{CC+1}, v{T+13}"])
    for k in (3, 2, 1):
        add([f"s_sub_u32 s{sT0}, s{sW}, {k}", f"s_max_i32 s{sT0}, s{sT0}, 0", f"s_mul_i32 s{sT0}, s{sT0}, 384", f"s_add_u32 s{sT0}, s{sT0}, {WTOT}"])
        add(f"v_add_u32 v{TS}, s{sT0}, v{VCH}")
        add(f"ds_read_b64 {vr(T+2*(3-k), 2)}, v{TS}")
    for k, sm in ((3, sM3), (2, sM2), (1, sM1)):
        j = T + 2 * (3 - k)
        adds([f"v_mul_f32 v{j}, s{sm}, v{j}", f"v_mul_f32 v{j+1}, s{sm}, v{j+1}"])
    adds(cmul_acc(T + 2, T + 3, A32, A32 + 1, T, T + 1)); adds(cmul_acc(T + 4, T + 5, A32, A32 + 1, T + 2, T + 3))
    adds(cmul_acc(T + 4, T + 5, PW, PW + 1, CC, CC + 1))
    adds([f"v_mov_b32 v{CC}, v{T+4}", f"v_mov_b32 v{CC+1}, v{T+5}"])
    for m in range(7): add(f"ds_read_b64 {vr(T+2*m, 2)}, v{VP} offset:{384*m}")
    add(f"ds_write_b64 v{VP}, {vr(CC, 2)}")
    adds(cmul_acc(T, T + 1, A4, A4 + 1, CC, CC + 1))
    add(f"ds_write_b64 v{VP}, {vr(T, 2)} offset:384")
    for m in range(1, 7):
        adds(cmul_acc(T + 2*m, T + 2*m + 1, A4, A4 + 1, T + 2*m - 2, T + 2*m - 1))
        add(f"ds_write_b64 v{VP}, {vr(T+2*m, 2)} offset:{384*(m+1)}")
    VW, VR = TS, TS + 1
    adds([f"v_and_b32 v{VW}, 15, {L}", f"v_lshlrev_b32 v{VW}, 5, v{VW}", f"v_lshrrev_b32 v{VR}, 4, {L}", f"v_lshlrev_b32 v{VR}, 3, v{VR}",
          f"v_add_u32 v{VW}, v{VW}, v{VR}", f"v_add_u32 v{VW}, s{sW3}, v{VW}", f"v_add_u32 v{VW}, {PRIV}, v{VW}",
          f"v_lshlrev_b32 v{VR}, 3, {L}", f"v_add_u32 v{VR}, s{sW3}, v{VR}", f"v_add_u32 v{VR}, {PRIV}, v{VR}"])
    dlS = bar_mf[kHB - 1] - 20
    for n in range(2):
        for b in range(nS): add(f"ds_read_b64 {vr(T+2*b, 2)}, v{VE+n} offset:{128*b}")
        for b in range(nS):
            TBL = T + 6
            adds([f"ds_read_b128 {vr(TBL)}, v{VT} offset:{b*768}", f"ds_read_b128 {vr(TBL+4)}, v{VT} offset:{b*768+16}", f"ds_read_b64 {vr(TBL+8, 2)}, v{VT} offset:{b*768+32}"])
            R, Im = xb(b, 0, n), xb(b, 1, n)
            cre, cim = T + 2 * b, T + 2 * b + 1
            for r in range(4): adds(cmul_acc(R + r, Im + r, TBL + 2*r, TBL + 2*r + 1, cre, cim))
            kr, ki, tt = TBL + 8, TBL + 9, TS + 2
            for r in range(4):
                t_ = tt + (r & 1)
                adds([f"v_mul_f32 v{t_}, v{kr}, v{R+r}", f"v_fma_f32 v{t_}, -v{ki}, v{Im+r}, v{t_}",
                      f"v_mul_f32 v{Im+r}, v{kr}, v{Im+r}", f"v_fmac_f32 v{Im+r}, v{ki}, v{R+r}",
                      f"v_mul_f32 v{R+r}, v{LG+4*n+r}, v{t_}", f"v_mul_f32_e64 v{Im+r}, -v{LG+4*n+r}, v{Im+r}"])
            adds([f"v_cvt_pk_bf16_f32 v{R}, v{R}, v{R+1}", f"v_cvt_pk_bf16_f32 v{R+1}, v{R+2}, v{R+3}",
                  f"v_cvt_pk_bf16_f32 v{Im}, v{Im}, v{Im+1}", f"v_cvt_pk_bf16_f32 v{Im+1}, v{Im+2}, v{Im+3}"])
            so = 1536 * n
            adds([f"ds_write_b64 v{VW}, {vr(R, 2)} offset:{so}", f"ds_write_b64 v{VW}, {vr(Im, 2)} offset:{so+512}",
                  f"ds_read_b64_tr_b16 {vr(R, 2)}, v{VR} offset:{so}", f"ds_read_b64_tr_b16 {vr(R+2, 2)}, v{VR} offset:{so+512}"])
    for n in range(2):
        for b in range(nS):
            off = ((9 + b) * 2 + n) * 1024
            add([I(f"s_add_u32 s{sT0}, s{sHO}, {off & ~4095}"),
                 I(f"buffer_store_dwordx4 {vr(xb(b,0,n))}, v{VST}, {sr(S_WS)}, s{sT0} offen" + (f" offset:{off & 4095}" if off & 4095 else "") + HST, tag="hstB")],
                deadline=dlS)
    def hload(K, n):
        off = (K * 2 + n) * 1024
        return [I(f"s_add_u32 s{sQ+1}, s{sHP}, {off & ~4095}"),
                I(f"buffer_load_dwordx4 {ar(hp_reg(K) + 4*n)}, v{VST}, {sr(S_WS)}, s{sQ+1} offen" + (f" offset:{off & 4095}" if off & 4095 else "") + " sc1")]
    sFl = Stream("flag", 1)
    def flag(val, k):
        sFl.add(f"v_mov_b32 v{XT}, {val}", bar_mf[k], bar_mf[k] + 6)
        sFl.add(f"buffer_store_dword v{XT}, v{XF}, {sr(S_WS)}, 0 offen sc1", bar_mf[k], bar_mf[k] + 10)
    def xpoll(name, val, t_load, t_chk, Ks, dl):
        tt = [t_load]
        def emit(x, chk):
            if chk: sX_.add(x, t_chk, t_chk + 10)
            else: sX_.add(x, t_load, t_load + 10)
        poll(emit, name, XP, GWB, [f"v_cmp_le_u32 vcc, {val}, v{GWB}"], sQ + 2)
        for K in Ks:
            for n in range(2): sX_.add(hload(K, n), t_chk, dl)
    flag(2, kHA)
    needA = mbeg(kPA + 2); needB = mbeg(43)
    firstA = [8, 0, 1, 2, 3] if par == 0 else [0, 1, 2, 3, 8]
    tA = int(opt.get("tA", 190)); tB = int(opt.get("tB", 150))
    xpoll("A", 2, needA - tA - 70, needA - tA, firstA, needA - 60)
    flag(3, kHB)
    xpoll("B", 3, needB - tB - 70, needB - tB, [4, 5, 6, 7] + [9 + b for b in range(nSP)], needB - 40)

    sW_ = Stream("warm", 5)
    if opt.get("nopf") is None:
        PVL = TA + 2
        def pf(e_, areg, sset, srd_, dst):
            sW_.add(f"v_accvgpr_read_b32 v{PVL}, a{areg}", e_, e_ + 30)
            for x in sset: sW_.add(x, e_, e_ + 30)
            sW_.add(f"buffer_load_dword a{dst}, v{PVL}, {sr(srd_)}, s{sQ} offen{PFL}", e_, e_ + 40)
        t_a = int(opt.get("pf_a", mbeg(kH) + 30))
        pf(t_a, 253, [f"s_mul_i32 s{sQ}, s{sT4}, {18*9216}", f"s_mul_i32 s{sQ+3}, s{sSLICE}, 576", f"s_add_u32 s{sQ}, s{sQ}, s{sQ+3}"], S_W1, 251)
        t_d = int(opt.get("pf_d", mbeg(kF(1)) + 20))
        pf(t_d, 254, [f"s_lshl_b32 s{sQ}, s{sTILE}, 2", f"s_add_u32 s{sQ}, s{sQ}, s{sW}", f"s_mul_i32 s{sQ}, s{sQ}, {41*128}",
                      f"s_mul_i32 s{sQ+3}, s{sSLICE}, {288*1152}", f"s_add_u32 s{sQ}, s{sQ}, s{sQ+3}"], S_WD, 252)
        pf(t_d + 100, 255, [f"s_mul_i32 s{sQ}, s{sT4}, {18*1152}", f"s_lshl_b32 s{sQ+3}, s{sC0}, 1", f"s_add_u32 s{sQ}, s{sQ}, s{sQ+3}"], S_C, 248)
    pace(sS, pace_from[0], bar_mf[kPoll], dlS - 10)
    streams = [sD, sP, sCl, sA, sB, sE, sS, sX_, sFl, sW_]
    body, rest, stats = schedule(slots, streams)
    tail = rest
    if ts:
        tail = tail + stamp(58) + [I("s_waitcnt vmcnt(0)")] + stamp(59) + [I("s_memrealtime s[100:101]"), I("s_waitcnt lgkmcnt(0)"), I("v_writelane_b32 v255, s100, 62")]
        tail += expand([f"s_lshl_b32 s{sT0}, s2, 2", f"s_add_u32 s{sT0}, s{sT0}, s{sW}", f"s_lshl_b32 s{sT0}, s{sT0}, 8", f"s_add_u32 s{sT0}, s{sT0}, {WS_END}",
                        f"v_lshlrev_b32 v1, 2, {L}", f"buffer_store_dword v255, v1, {sr(S_WS)}, s{sT0} offen"])
    prog = pro + body + tail
    prog, nw = insert_waits(prog)
    prog, nn = pad_hazards(prog)
    ol = stats.pop("overlog")
    stats["over_by_stage"] = [sum(ol[2*u0[k]:2*u0[k+1]]) for k in range(NST)]
    info = dict(stats, rate=round(sS.rate, 2), NU=NU, nwait=nw, nnop=nn, ninstr=len(prog), tail=len(tail))
    txt = render(prog) + "\n  s_endpgm\n" + render(slow) + "\n"
    return txt, info


def build_reduce(opt):
    o = []
    A = lambda *x: o.extend(expand(list(x)))
    A("s_cmp_ge_u32 s2, 576", "s_cbranch_scc1 L_red_end")
    if opt.get("ts"): A("s_memrealtime s[80:81]")
    A("s_load_dwordx2 s[64:65], s[0:1], 0", "s_load_dwordx2 s[66:67], s[0:1], 64", "s_load_dwordx2 s[68:69], s[0:1], 112", "s_load_dwordx2 s[70:71], s[0:1], 128")
    A("v_lshrrev_b32 v1, 6, v0", "v_and_b32 v2, 63, v0")
    A("v_readfirstlane_b32 s20, v1")
    A("s_lshl_b32 s21, s2, 2", "s_add_u32 s21, s21, s20")
    A("s_mul_i32 s22, s21, 1821", "s_lshr_b32 s22, s22, 16")
    A("s_mul_i32 s23, s22, 36", "s_sub_u32 s23, s21, s23")
    A("s_lshl_b32 s25, s22, 5")
    A("v_lshlrev_b32 v3, 4, v2", "v_and_b32 v4, 15, v2", "v_lshrrev_b32 v5, 4, v2")
    A("s_sub_u32 s29, s23, 4", "s_cmp_ge_u32 s23, 20", "s_cselect_b32 s29, s29, s23")
    A("s_lshl_b32 s24, s22, 15", "s_lshl_b32 s29, s29, 10", "s_add_u32 s24, s24, s29", f"s_add_u32 s24, s24, {WS_P8}")
    A(f"s_mov_b32 s30, {16*4*32768}")
    A("s_lshl_b32 s31, s22, 12", "s_sub_u32 s29, s23, 16", "s_lshl_b32 s33, s29, 10", "s_add_u32 s31, s31, s33", f"s_add_u32 s31, s31, {WS_P16}")
    A("s_cmp_lt_u32 s29, 4", "s_cselect_b32 s24, s31, s24", f"s_cselect_b32 s30, {16*4*4096}, s30", "s_cselect_b32 s34, 1, 0")
    A("s_waitcnt lgkmcnt(0)")
    A(srd(4, "s70", "s71", WS_END), srd(8, "s64", "s65", 2359296), srd(12, "s66", "s67", 1152), srd(16, "s68", "s69", 4718592))
    RLD = opt.get("rld", "")
    for s_ in range(8):
        A(f"buffer_load_dwordx4 {vr(32+4*s_)}, v3, s[4:7], s24 offen{RLD}", "s_add_u32 s24, s24, s30")
    A("s_cmp_eq_u32 s34, 1", "s_cselect_b32 s24, s24, 0x7ff00000", "s_cselect_b32 s30, s30, 0")
    for s_ in range(8, 16):
        A(f"buffer_load_dwordx4 {vr(32+4*s_)}, v3, s[4:7], s24 offen{RLD}", "s_add_u32 s24, s24, s30")
    A("s_lshl_b32 s26, s23, 4", "v_lshlrev_b32 v6, 2, v5", "v_add_u32 v6, s26, v6")
    A("v_add_u32 v7, s25, v4")
    A("v_mul_u32_u24 v8, 576, v7", "v_add_u32 v8, v8, v6")
    A("v_lshlrev_b32 v9, 1, v8", "v_lshlrev_b32 v10, 2, v8", "v_lshlrev_b32 v11, 1, v6", "v_lshlrev_b32 v12, 2, v7")
    A("buffer_load_dwordx2 v[14:15], v9, s[8:11], 0 offen")
    A("s_mov_b32 s27, 18432", "buffer_load_dwordx2 v[16:17], v9, s[8:11], s27 offen")
    A("buffer_load_dwordx2 v[18:19], v11, s[12:15], 0 offen")
    A(f"s_mov_b32 s28, {WS_G}", "buffer_load_dword v20, v12, s[4:7], s28 offen", "buffer_load_dword v21, v12, s[4:7], s28 offen offset:64")
    for r in range(8): A(f"v_mov_b32 v{100+r}, 0")
    for s_ in range(16):
        for j in range(4):
            src = 32 + 4 * s_ + j
            A(f"v_lshlrev_b32 v22, 16, v{src}", f"v_and_b32 v23, 0xffff0000, v{src}", f"v_add_f32 v{100+2*j}, v{100+2*j}, v22", f"v_add_f32 v{101+2*j}, v{101+2*j}, v23")
    for n in range(2):
        for j in range(2):
            xs, ds = 14 + 2 * n + j, 18 + j
            A(f"v_lshlrev_b32 v22, 16, v{xs}", f"v_and_b32 v23, 0xffff0000, v{xs}", f"v_lshlrev_b32 v24, 16, v{ds}", f"v_and_b32 v25, 0xffff0000, v{ds}",
              "v_mul_f32 v22, v22, v24", "v_mul_f32 v23, v23, v25", "v_cvt_pk_bf16_f32 v22, v22, v23",
              "v_and_b32 v23, 0xffff0000, v22", "v_lshlrev_b32 v22, 16, v22",
              f"v_fmac_f32 v{100+4*n+2*j}, v{20+n}, v22", f"v_fmac_f32 v{101+4*n+2*j}, v{20+n}, v23")
    A("buffer_store_dwordx4 v[100:103], v10, s[16:19], 0 offen")
    A("s_mov_b32 s27, 36864", "buffer_store_dwordx4 v[104:107], v10, s[16:19], s27 offen")
    if opt.get("ts"):
        A("s_waitcnt vmcnt(0)", "s_memrealtime s[82:83]", "s_waitcnt lgkmcnt(0)", "v_mov_b32 v30, s80", "v_mov_b32 v31, s82", "s_lshl_b32 s27, s21, 3",
          f"s_add_u32 s27, s27, {WS_END + (1 << 18)}", "v_mov_b32 v29, 0", "s_mov_b32 s6, 0x7fffffff", "buffer_store_dwordx2 v[30:31], v29, s[4:7], s27 offen")
    prog, nw = insert_waits(o)
    prog, nn = pad_hazards(prog)
    return render(prog) + "\nL_red_end:\n  s_endpgm\n"


def build(opt):
    common = build_common(opt)
    v0, i0 = build_variant(opt, 0)
    v1, i1 = build_variant(opt, 1)
    red = build_reduce(opt)
    k1, k2 = NAME + "_kernel", "reduce_kernel"
    s = HEADER
    s += f"; @launch kernel={k1} grid=(256,1,1) block=(256,1,1) lds={LDS_BYTES}\n"
    s += f"; @launch kernel={k2} grid=(576,1,1) block=(256,1,1) lds=0\n"
    s += '.amdgcn_target "amdgcn-amd-amdhsa--gfx950"\n.text\n'
    far = "  s_cbranch_scc1 L_var1\n"
    common = common.replace("  s_cbranch_scc1 L_main_end\n", "  s_cbranch_scc0 L_go\n  s_endpgm\nL_go:\n")
    common = common.replace("  s_cbranch_scc1 L_var1\n", "  s_cbranch_scc0 L_var0\n  s_branch L_var1\nL_var0:\n")
    s += f".globl {k1}\n.p2align 8\n.type {k1},@function\n{k1}:\n" + common + v0 + "L_end0:\n.p2align 6\nL_var1:\n" + v1 + "L_end1:\n"
    s += f".globl {k2}\n.p2align 8\n.type {k2},@function\n{k2}:\n" + red
    if opt.get("nocpf") is None:
        s += ".set CODE_SPAN0, L_end0 - L_pc0 - 4\n.set CODE_SPAN1, L_end1 - L_pc1 - 4\n"
    s += '.section .rodata,"a"\n' + kd(k1, 512, 256, 102) + kd(k2, 128, 128, 96)
    return s, (i0, i1)


if __name__ == "__main__":
    out = sys.argv[1]
    opt = {}
    for a in sys.argv[2:]:
        k, v = a.split("=", 1); opt[k] = v
    fw.VM_GAP = int(opt.get('vmgap', 5)); fw.LDS_LAT = int(opt.get('ldslat', 8)); fw.VM_LAT = int(opt.get('vmlat', 90))
    s, info = build(opt)
    open(out, "w").write(s)
    for i in info: print(i)
    print(len(s))
```

```python
import re
from collections import deque

TRANS = ("v_exp_f32", "v_log_f32", "v_rcp_f32", "v_rsq_f32", "v_sqrt_f32", "v_sin_f32", "v_cos_f32")
_reg = re.compile(r"^-?\|?([vas])(\d+)\|?$")
_rng = re.compile(r"^-?\|?([vas])\[(\d+):(\d+)\]\|?$")


def regs_of(tok):
    tok = tok.strip()
    m = _reg.match(tok)
    if m:
        return [m.group(1) + m.group(2)]
    m = _rng.match(tok)
    if m:
        return [m.group(1) + str(i) for i in range(int(m.group(2)), int(m.group(3)) + 1)]
    if tok in ("vcc", "m0", "exec", "scc"):
        return [tok]
    if tok in ("vcc_hi", "vcc_lo"):
        return ["vcc"]
    return []


class I:
    __slots__ = ("txt", "op", "kind", "dst", "src", "tag", "srcC", "cexact", "wide", "args", "note")

    def __init__(self, txt, tag=None, note=None):
        self.txt = txt
        self.tag = tag
        self.note = note
        self.args = None
        self.srcC = []
        self.cexact = None
        self.wide = False
        t = txt.strip()
        if t.endswith(":"):
            self.op = "label"; self.kind = "label"; self.dst = []; self.src = []
            return
        parts = t.split(None, 1)
        op = parts[0]
        self.op = op
        rest = parts[1] if len(parts) > 1 else ""
        toks = []
        for p in rest.split(","):
            toks += [p.strip()]
        if toks:
            last = toks[-1].split()
            toks = toks[:-1] + ([last[0]] if last else [])
            mods = last[1:]
        else:
            mods = []
        R = [regs_of(x) for x in toks]
        flat = lambda l: [r for x in l for r in x]
        dst, src = [], []
        if op.startswith("v_mfma"):
            kind = "mfma"; dst = R[0]; src = flat(R[1:3]); self.srcC = R[3]; src = src + R[3]
            self.cexact = (toks[0] == toks[3])
        elif op.startswith("ds_read"):
            kind = "ds_rd"; dst = R[0]; src = flat(R[1:])
        elif op.startswith("ds_write"):
            kind = "ds_wr"; src = flat(R)
        elif op.startswith("buffer_load") and "lds" in mods:
            kind = "dma"; src = flat(R) + ["m0"]
        elif op.startswith("buffer_load") or op.startswith("global_load"):
            kind = "vm_ld"; dst = R[0]; src = flat(R[1:])
        elif op.startswith("buffer_store"):
            kind = "vm_st"; src = flat(R); self.wide = op.endswith("x4") or op.endswith("x3")
            self.args = R[0]
        elif op.startswith("s_memtime") or op.startswith("s_memrealtime"):
            kind = "salu"; dst = []; src = []
        elif op.startswith("v_writelane"):
            kind = "valu"; dst = list(R[0]); src = []
        elif op.startswith("s_load"):
            kind = "smem"; dst = R[0]; src = flat(R[1:])
        elif op == "s_waitcnt":
            kind = "wait"
        elif op == "s_nop":
            kind = "nop"; self.args = int(toks[0])
        elif op == "s_barrier":
            kind = "barrier"
        elif op.startswith("s_cbranch") or op == "s_branch":
            kind = "branch"; src = ["scc"] if "scc" in op else (["vcc"] if "vcc" in op else [])
        elif op.startswith("s_cmp"):
            kind = "salu"; dst = ["scc"]; src = flat(R)
        elif op == "s_getpc_b64":
            kind = "salu"; dst = R[0]
        elif op.startswith("s_and_saveexec"):
            kind = "salu"; dst = R[0] + ["exec", "scc"]; src = flat(R[1:])
        elif op in ("s_setprio", "s_sleep", "s_endpgm"):
            kind = "salu"
        elif op.startswith("s_"):
            kind = "salu"; dst = list(R[0]); src = flat(R[1:])
            if op.startswith(("s_add", "s_sub", "s_and", "s_or", "s_xor", "s_lshl", "s_lshr", "s_not", "s_andn2", "s_ashr", "s_min", "s_max", "s_bfm_none")):
                dst = dst + ["scc"]
            if op.startswith("s_cselect") or op.startswith("s_addc"):
                src = src + ["scc"]
        elif op.startswith("v_cmp"):
            kind = "valu"; dst = R[0]; src = flat(R[1:])
        elif op.startswith("v_"):
            kind = "valu"; dst = list(R[0]); src = flat(R[1:])
            if op.startswith("v_fmac") or op.startswith("v_permlane"):
                src = src + dst
            if op.startswith("v_cndmask") and len(toks) == 3:
                src = src + ["vcc"]
        else:
            raise ValueError("unknown instruction: " + txt)
        self.kind = kind; self.dst = dst; self.src = src

    def __repr__(self):
        return self.txt


class WaitRegs(I):
    def __init__(self, regs):
        self.txt = "; waitregs"; self.op = "waitregs"; self.kind = "pwait"; self.dst = []; self.src = list(regs)
        self.tag = None; self.note = None; self.args = None; self.srcC = []; self.cexact = None; self.wide = False


class WaitTag(I):
    def __init__(self, *tags):
        self.txt = "; waittag"; self.op = "waittag"; self.kind = "pwait"; self.dst = []; self.src = []
        self.tag = None; self.note = None; self.args = set(tags); self.srcC = []; self.cexact = None; self.wide = False


def expand(x):
    if isinstance(x, str):
        return [I(x)]
    if isinstance(x, I):
        return [x]
    out = []
    for y in x:
        out += expand(y)
    return out


class Stream:
    def __init__(self, name, prio):
        self.name = name; self.prio = prio; self.q = deque(); self.rate = 0

    def add(self, ins, earliest=0, deadline=None):
        self.q.append((expand(ins), earliest, deadline))

    def extend(self, lst, earliest=0, deadline=None):
        for x in lst:
            self.add(x, earliest, deadline)


class Slot:
    __slots__ = ("mfma", "pre", "post")

    def __init__(self, mfma, pre=None, post=None):
        self.mfma = I(mfma) if isinstance(mfma, str) else mfma
        self.pre = expand(pre or []); self.post = expand(post or [])


LDS_LAT = 8
VM_LAT = 90
VM_GAP = 5
DEPAWARE = True


def cost(x):
    return 2 if x.op in TRANS else 1


def schedule(slots, streams, budget=2, horizon=None):
    import bisect
    n = len(slots)
    BIG = n + 10
    S = []
    for s in streams:
        items = list(s.q)
        dl = BIG; eff = [0] * len(items)
        for i in range(len(items) - 1, -1, -1):
            d = items[i][2]
            if d is not None: dl = min(dl, d)
            eff[i] = dl
        S.append(deque((g, e, eff[i]) for i, (g, e, d) in enumerate(items)))
    mand = [len(slots[k].post) + (len(slots[k + 1].pre) if k + 1 < n else 0) for k in range(n)]
    free = [max(0, budget - m) for m in mand]
    cum = [0] * (n + 1)
    for k in range(n): cum[k + 1] = cum[k] + free[k]
    out = []
    stats = {"over": 0, "forced": 0, "idle": 0}
    overlog = [0] * n
    ready = {}; tready = {}
    lastvm = [-99]

    def note(ins_list, k):
        for x in ins_list:
            if x.kind in ("vm_ld", "vm_st", "dma"): lastvm[0] = k
            if x.kind == "ds_rd":
                for r in x.dst: ready[r] = k + LDS_LAT
            elif x.kind == "vm_ld":
                for r in x.dst: ready[r] = k + VM_LAT
            if x.tag is not None and x.kind in ("ds_rd", "ds_wr", "vm_ld", "vm_st", "dma"):
                tready[x.tag] = k + (LDS_LAT if x.kind.startswith("ds") else VM_LAT)


    def eligible(g, k):
        for x in g:
            if x.kind in ("vm_ld", "vm_st", "dma") and k - lastvm[0] < VM_GAP: return False
            if x.kind == "pwait" and x.op == "waittag":
                if any(tready.get(t, -1) > k for t in x.args): return False
            else:
                for r in x.src + x.dst:
                    if ready.get(r, -1) > k: return False
        return True
    for k, sl in enumerate(slots):
        for si, q in enumerate(S):
            while q and q[0][2] <= k:
                g, e, d = q.popleft()
                assert e <= k, f"stream {streams[si].name}: deadline {d} before earliest {e}: {g}"
                out += g; stats["forced"] += len(g); overlog[k] += len(g); note(g, k)
        out += sl.pre
        out.append(sl.mfma)
        out += sl.post
        note(sl.post, k)
        used = mand[k]
        extra = 0
        cnt = {}
        for q in S:
            for (g, e, d) in q:
                if d >= BIG: break
                cnt[d] = cnt.get(d, 0) + len(g)
        acc = 0
        for d in sorted(cnt):
            acc += cnt[d]
            span = d - k
            if span <= 0: continue
            cap = cum[min(d, n)] - cum[k]
            if acc > cap:
                extra = max(extra, (acc - cap) / span)
        carry = stats.get("_carry", 0.0) + extra
        b = budget + int(carry)
        stats["_carry"] = carry - int(carry) if extra > 0 else 0.0
        lastw = set()
        while used < b:
            pick = None; best = None
            for si, q in enumerate(S):
                if q and q[0][1] <= k and eligible(q[0][0], k):
                    g0 = q[0][0][0]
                    if DEPAWARE and g0.kind == "valu" and lastw & set(g0.src): continue
                    key = (q[0][2], streams[si].prio)
                    if best is None or key < best: best = key; pick = q
            if pick is None: break
            g, e, d = pick.popleft()
            out += g; used += sum(cost(x) for x in g); note(g, k)
            lastw = set(g[-1].dst) if g[-1].kind == "valu" else set()
        if used > budget:
            stats["over"] += used - budget; overlog[k] += used - budget
        elif used < budget: stats["idle"] += budget - used
    rest = []
    for q in S:
        while q:
            g, e, d = q.popleft(); rest += g
    stats.pop("_carry", None)
    stats["overlog"] = overlog
    return out, rest, stats


VM = ("vm_ld", "vm_st", "dma")
LG = ("ds_rd", "ds_wr")


def insert_waits(prog):
    out = []
    vm = []
    lg = []
    smem_pending = set()
    nwait = 0

    def need(lst, pred):
        idx = -1
        for i, e in enumerate(lst):
            if pred(e): idx = i
        if idx < 0: return None
        return len(lst) - 1 - idx

    def emit_wait(v, l):
        nonlocal nwait
        parts = []
        if v is not None:
            assert v <= 63
            parts.append(f"vmcnt({v})"); del vm[:len(vm) - v]
        if l is not None:
            assert l <= 15, "lgkmcnt overflow"
            parts.append(f"lgkmcnt({l})"); del lg[:len(lg) - l]
        out.append(I("s_waitcnt " + " ".join(parts))); nwait += 1

    for ins in prog:
        if ins.kind == "label" or ins.kind == "branch":
            out.append(ins); continue
        if ins.kind == "wait":
            m = re.search(r"vmcnt\((\d+)\)", ins.txt)
            if m:
                v = int(m.group(1))
                if len(vm) > v: del vm[:len(vm) - v]
            m = re.search(r"lgkmcnt\((\d+)\)", ins.txt)
            if m:
                l = int(m.group(1))
                if len(lg) > l: del lg[:len(lg) - l]
                if l == 0: smem_pending.clear()
            out.append(ins); continue
        if ins.kind == "pwait" and ins.op == "waittag":
            tags = ins.args
            v = need(vm, lambda e: e[1] in tags); l = need(lg, lambda e: e[1] in tags)
            if v is not None or l is not None: emit_wait(v, l)
            continue
        touched = set(ins.src) | set(ins.dst)
        touched.discard("scc")
        if smem_pending & touched:
            raise RuntimeError("SMEM result used before lgkmcnt(0): " + ins.txt)
        v = need(vm, lambda e: e[0] & touched); l = need(lg, lambda e: e[0] & touched)
        if v is not None or l is not None: emit_wait(v, l)
        if ins.kind == "pwait":
            continue
        out.append(ins)
        if ins.kind in VM:
            vm.append((set(ins.dst), ins.tag))
            if len(vm) > 63:
                pass
        elif ins.kind in LG:
            if len(lg) >= 15:
                out.pop(); emit_wait(None, 14); out.append(ins)
            lg.append((set(ins.dst), ins.tag))
        elif ins.kind == "smem":
            smem_pending |= set(ins.dst)
    return out, nwait


def is_v(r): return r[0] in "va" and r[1:].isdigit()


def pad_hazards(prog):
    out = []
    t = 0
    w_valu = {}; w_mfma = {}; w_trans = {}; c_mfma = {}; w_valu_s = {}; w_salu_m0 = -99; st_wide = {}
    mfma_dst = {}
    nn = 0
    for ins in prog:
        if ins.kind == "label":
            out.append(ins); continue
        need = 0

        def req(prev, dist):
            nonlocal need
            if prev is not None:
                need = max(need, dist - (t - prev - 1))
        k = ins.kind
        isdpp = "dpp" in ins.txt or "row_" in ins.txt
        if k == "mfma":
            for r in ins.src:
                req(w_valu.get(r), 2)
            ab = ins.src[:len(ins.src) - len(ins.srcC)]
            for r in ab: req(w_mfma.get(r), 8)
            for r in ins.srcC:
                if r in w_mfma:
                    if mfma_dst.get(r) != tuple(ins.srcC): req(w_mfma[r], 6)
            for r in ins.dst:
                if r in w_mfma and mfma_dst.get(r) != tuple(ins.dst): req(w_mfma[r], 6)
        elif k == "valu":
            for r in ins.src + ins.dst:
                req(w_mfma.get(r), 8)
            for r in ins.dst:
                req(c_mfma.get(r), 3); req(st_wide.get(r), 2)
            if ins.op not in TRANS:
                for r in ins.src: req(w_trans.get(r), 1)
            for r in ins.src:
                if r[0] == "s" or r == "vcc": req(w_valu_s.get(r), 2)
            if ins.op.startswith("v_readfirstlane") or ins.op.startswith("v_readlane"):
                for r in ins.src: req(w_valu.get(r), 1)
            if isdpp or ins.op.startswith("v_permlane"):
                for r in ins.src: req(w_valu.get(r), 2)
        elif k in ("vm_ld", "vm_st", "dma", "ds_rd", "ds_wr"):
            for r in ins.src + ins.dst:
                req(w_mfma.get(r), 8)
            for r in ins.src:
                if r[0] == "s": req(w_valu_s.get(r), 5)
            for r in ins.dst: req(st_wide.get(r), 1)
            if k == "dma": req(w_salu_m0, 1)
        elif k in ("salu", "branch"):
            for r in ins.src:
                req(w_valu_s.get(r), 4)
        if need > 0:
            nn += need
            while need > 0:
                x = min(need, 16)
                out.append(I(f"s_nop {x - 1}")); t += x; need -= x
        out.append(ins)
        if k == "mfma":
            for r in ins.dst:
                w_mfma[r] = t; mfma_dst[r] = tuple(ins.dst); w_valu.pop(r, None)
            for r in ins.srcC: c_mfma[r] = t
        elif k == "valu":
            for r in ins.dst:
                if is_v(r):
                    w_valu[r] = t; w_mfma.pop(r, None)
                    if ins.op in TRANS: w_trans[r] = t
                    else: w_trans.pop(r, None)
                else:
                    w_valu_s[r] = t
        elif k == "salu":
            if "m0" in ins.dst: w_salu_m0 = t
            for r in ins.dst: w_valu_s.pop(r, None)
        elif k == "vm_st" and ins.wide:
            for r in ins.args: st_wide[r] = t
        elif k in ("vm_ld", "ds_rd"):
            for r in ins.dst:
                w_valu.pop(r, None); w_mfma.pop(r, None)
        t += (ins.args + 1) if k == "nop" else 1
    return out, nn


def render(prog):
    return "\n".join(("" if i.kind == "label" else "  ") + i.txt for i in prog)
```

```python
import sys
import fw
from fw import *
from gen import (NAME, LOG2E, INV2PI, OOB, SLOT, NSLOT, MISC, PRIV, WTOT, TAB, LDS_BYTES, ACC, XB, LG, P1, P2, D1, D2, SF, A4, A32, A128, PW,
                 LANE, VST, VCH, T, VE, VP, VT, TS, TA, AX, AF, AH, L, xfrag, afrag, vr, ar, sr, xb, srd, mf,
                 voff_B, voff_W1full, voff_W1half, voff_Wd, voff_C, base_T64, base_C, cmul_acc, kd, HEADER)
XBASE = 2 * SLOT
XPOS = [0, 1, 2, 3, 4, 5, 3, 4, 5]

WS_P8 = 0
P8_BYTES = 8 * 16 * 4 * 2 * 16 * 1024
WS_P16 = WS_P8 + P8_BYTES
P16_BYTES = 16 * 16 * 4 * 4 * 1024
WS_H = WS_P16 + P16_BYTES
H_BYTES = 16 * 16 * 4 * 24 * 1024
WS_S = WS_H + H_BYTES
WS_G = WS_S + 16 * 16 * 384
WS_F = WS_G + 8192
WS_END = WS_F + 256 * 128

S_X, S_W1, S_WD, S_B, S_C, S_WS, S_S, S_DBG, S_P = 4, 8, 12, 16, 20, 24, 28, 32, 36
sW, sTILE, sSLICE, sC0, sOA, sOB, sW6, sW3 = 40, 41, 42, 43, 44, 45, 46, 47
sP8, sT0, sT1, sT2, sC2, sPAR, sP16, sT3 = 48, 49, 50, 51, 52, 53, 54, 55
sMASK = 56; sM1, sM2, sM3 = 58, 59, 60
sHO, sHP, sHT = 61, 62, 63
sW1F, sW1H, sWD2, sWD1, sWD1B, sC1, sT4, sC0P, sC2P, sQ = 64, 65, 66, 67, 68, 69, 70, 71, 72, 73
sXO, sXL = 98, 99
AHP = 0
def hp_reg(K):
    order = {8: 0, 0: 1, 1: 2, 2: 3, 3: 4, 4: 5, 5: 6, 6: 7, 7: 8, 9: 9, 10: 10, 11: 11}
    return AHP + 8 * order[K]


CYC = [0, 1, 2, 4, 5, 3]
def slot_of(k): return k if k < 4 else CYC[(k - 4) % 6]
def slot_base(k): return slot_of(k) * SLOT
def setof(k): return slot_of(k) // 2
def slot_rel(k): return (slot_of(k) % 2) * SLOT

T64B = [P1 + i for i in range(6)]
T128B = [P1 + 6 + i for i in range(6)] + [P2 + i for i in range(6)]
RB = [P2 + i for i in range(6)]
CB = [P1 + i for i in range(3)]
GWB = P2 + 6


PMACC = [96, 104, 112, 120]


class Stage:
    def __init__(self, fmt, units, pieces, wq, pre):
        self.fmt, self.units, self.pieces, self.wq, self.pre = fmt, units, pieces, wq, pre


def base_list_T128(regs, qrows, t, sets):
    o = [f"v_lshrrev_b32 v{t}, 4, {L}", f"v_mul_u32_u24 v{t}, {qrows}, v{t}", f"v_bfe_u32 v{t+1}, {L}, 2, 2", f"v_add_u32 v{t}, v{t}, v{t+1}",
         f"v_lshlrev_b32 v{t}, 7, v{t}", f"v_and_b32 v{t+1}, 3, {L}", f"v_lshlrev_b32 v{t+1}, 3, v{t+1}", f"v_add_u32 v{t}, v{t}, v{t+1}",
         f"v_bfe_u32 v{t+1}, {L}, 3, 2"]
    return o


def t128_regs(idx, t):
    s_, mt = divmod(idx, 4)
    d = T128B[idx]
    o = [f"v_xor_b32 v{d}, {mt}, v{t+1}", f"v_lshlrev_b32 v{d}, 5, v{d}", f"v_add_u32 v{d}, v{d}, v{t}"]
    if s_: o += [f"v_add_u32 v{d}, {49152*s_}, v{d}"]
    return o


def base_R2(t):
    o = [f"v_and_b32 v{t}, 15, {L}", f"v_lshrrev_b32 v{t+1}, 1, v{t}", f"v_lshlrev_b32 v{t}, 7, v{t}"]
    for h in range(2):
        d = RB[h]
        o += [f"v_lshrrev_b32 v{d}, 4, {L}", f"v_add_u32 v{d}, {4*h}, v{d}", f"v_xor_b32 v{d}, v{d}, v{t+1}", f"v_lshlrev_b32 v{d}, 4, v{d}",
              f"v_add_u32 v{d}, v{d}, v{t}", f"v_add_u32 v{RB[2+h]}, 49152, v{d}", f"v_add_u32 v{RB[4+h]}, {2*49152}, v{d}"]
    return o


def build_stages(par):
    nS = 2 if par == 0 else 3
    nSP = 5 - nS
    stages = []
    tr = "ds_read_b64_tr_b16"
    U = lambda reads, mfl, swap: dict(reads=reads, mf=mfl, swap=swap)
    for st in range(5):
        units = []
        for ksl in range(4 if st < 4 else 2):
            ks = 4 * st + ksl
            line, half = ksl >> 1, ksl & 1
            for b in range(nS):
                for mat in range(2):
                    off = (2 * mat + line) * 6144 + b * 2048
                    acc = [xb(b, mat, n) for n in range(2)]
                    units.append(U([("ds_read_b128", 4, ("R", half), off)],
                                   [(vr(acc[n]), xfrag(ks, n), None, vr(acc[n]) if ks else "0") for n in range(2)], True))
            units.append(U([("ds_read_b128", 4, ("abs", GWB), ks * 64)],
                           [(vr(LG + 4 * n), xfrag(ks, n), None, vr(LG + 4 * n) if ks else "0") for n in range(2)], True))
        pre = [] if st == 0 else [f"s_add_u32 s{sOA}, s{sOA}, 256"]
        npc = 2 * nS
        stages.append(Stage("B", units, [(D1 + j, S_B, sOA) for j in range(npc)], sW6, pre))
    for st in range(3):
        units = []
        for ksl in range(6):
            ks = 6 * st + ksl
            for mat in range(2):
                for mt in range(2):
                    acc = ACC[0] + (mat * 4 + mt) * 8
                    off = mat * 12288 + ksl * 2048
                    units.append(U([(tr, 2, ("T64", mt), off), (tr, 2, ("T64", mt), off + 256)],
                                   [(vr(acc + 4 * n), None, xfrag(ks, n), vr(acc + 4 * n) if ks else "0") for n in range(2)], False))
        pre = [f"s_mov_b32 s{sOA}, s{sW1H}"] if st == 0 else [f"s_add_u32 s{sOA}, s{sOA}, {192*9216}"]
        stages.append(Stage("W1h", units, [(D2 + j, S_W1, sOA) for j in range(6)], sW6, pre))
    for c in range(4):
        buf = ACC[(c + 1) & 1]
        for st in range(6):
            units = []
            for ksl in range(3):
                ks = 3 * st + ksl
                for mat in range(2):
                    for mt in range(4):
                        acc = buf + (mat * 4 + mt) * 8
                        off = mat * 12288 + ksl * 4096
                        units.append(U([(tr, 2, ("T128", mt), off), (tr, 2, ("T128", mt), off + 512)],
                                       [(vr(acc + 4 * n), None, xfrag(ks, n), vr(acc + 4 * n) if ks else "0") for n in range(2)], False))
            pre = [f"s_add_u32 s{sOA}, s{sW1F}, {128*c}"] if st == 0 else [f"s_add_u32 s{sOA}, s{sOA}, {96*9216}"]
            stages.append(Stage("W1", units, [(D1 + j, S_W1, sOA) for j in range(6)], sW6, pre))
    own = lambda K: (lambda n: ar(AH + 8 * K + 4 * n))
    prt = lambda K: (lambda n: ar(hp_reg(K) + 4 * n))
    owns = lambda b: (lambda n: vr(xb(b, 0, n)))
    if par == 0:
        ownW = [[0, 1, 2], [3, 4, 5], [6, 7, 8]]; prtW = [[8, 0, 1], [2, 3, 4], [5, 6, 7]]
        ms_own, ms_prt = [0, 1, 2], [3, 4, 5]
        pmA, pmB = [0, 1, 2, 3, 4, 5], [6, 7, 8]
        cols = [0, 256]
    else:
        ownW = [[8, 0, 1], [2, 3, 4], [5, 6, 7]]; prtW = [[0, 1, 2], [3, 4, 5], [6, 7, 8]]
        ms_own, ms_prt = [3, 4, 5], [0, 1, 2]
        pmA, pmB = [8, 0, 1, 2, 3, 4], [5, 6, 7]
        cols = [640, 896]
    def wd_units(bfs, lines, buf, first):
        units = []
        for i_, bf in enumerate(bfs):
            for line in range(lines):
                for mt in range(4):
                    acc = buf + (line * 4 + mt) * 8
                    off = line * 12288 + i_ * 4096
                    z = first and i_ == 0
                    units.append(U([(tr, 2, ("T128", mt), off), (tr, 2, ("T128", mt), off + 2048)],
                                   [(vr(acc + 4 * n), None, bf(n), "0" if z else vr(acc + 4 * n)) for n in range(2)], False))
        return units
    def c_units(bfs, nm, buf, imoff):
        units = []
        for b, bf in enumerate(bfs):
            for m in range(nm):
                acc = buf + m * 8
                off = m * 1536 + 32 * b
                units.append(U([("ds_read_b64", 2, ("C", 0), off), ("ds_read_b64", 2, ("C", 0), off + imoff)],
                               [(vr(acc + 4 * n), None, bf(n), vr(acc + 4 * n)) for n in range(2)], False))
        return units
    def W(p, bfs, ms, first=False):
        buf = ACC[(p + 1) & 1]
        stages.append(Stage("Wd", wd_units(bfs, 2, buf, first), [(D2 + j, S_WD, sOA) for j in range(6)], sW6,
                            [f"s_add_u32 s{sOA}, s{sWD2}, {cols[p] + ms*96*1152}"]))
    def C(p, bfs, sbase):
        buf = ACC[(p + 1) & 1]
        stages.append(Stage("C", c_units(bfs, 8, buf, 12288), [(D1 + j, S_C, sOA) for j in range(6)], sW6,
                            [f"s_add_u32 s{sOA}, s{sbase}, {(cols[p] // 2) * 1152}"]))
    oW = lambda p, i, first=False: W(p, [own(K) for K in ownW[i]], ms_own[i], first)
    pW = lambda p, i: W(p, [prt(K) for K in prtW[i]], ms_prt[i])
    oC = lambda p: C(p, [owns(b) for b in range(nS)], sC2)
    pC = lambda p: C(p, [prt(9 + b) for b in range(nSP)], sC2P)
    def pm_units(bfs, first, kind):
        units = []
        for i_, bf in enumerate(bfs):
            for mt in range(4):
                acc = PMACC[mt]
                z = first and i_ == 0
                if kind == "W":
                    off = i_ * 4096
                    rd = [(tr, 2, ("T128", mt), off), (tr, 2, ("T128", mt), off + 2048)]
                else:
                    off = mt * 1536 + 32 * i_
                    rd = [("ds_read_b64", 2, ("C", 0), off), ("ds_read_b64", 2, ("C", 0), off + 6144)]
                units.append(U(rd, [(ar(acc + 4 * n), None, bf(n), "0" if z else ar(acc + 4 * n)) for n in range(2)], False))
        return units
    pmWa = lambda: stages.append(Stage("Wd1a", pm_units([own(K) for K in pmA], True, "W"), [(D2 + j, S_WD, sOA) for j in range(6)], sW6, [f"s_add_u32 s{sOA}, s{sWD1}, 512"]))
    pmWb = lambda: stages.append(Stage("Wd1b", pm_units([own(K) for K in pmB], False, "W"), [(D2 + j, S_WD, sOA) for j in range(3)], sW3, [f"s_add_u32 s{sOA}, s{sWD1B}, 512"]))
    pmC = lambda: stages.append(Stage("C1", pm_units([owns(b) for b in range(nS)], False, "C"), [(D1 + j, S_C, sOA) for j in range(3)], sW3, [f"s_add_u32 s{sOA}, s{sC1}, {256*1152}"]))
    oW(0, 0, True); oW(0, 1); pmWa(); oW(1, 0, True); oW(1, 1); oW(0, 2); oW(1, 2); pmWb()
    oC(0); oC(1); pmC()
    pW(0, 0); pW(1, 0); pW(0, 1); pW(1, 1); pW(0, 2); pC(0); pW(1, 2); pC(1)
    return stages, nS


def pace(st, i0, t0, t1):
    items = list(st.q)
    def walk(rate):
        t = float(t0); ready = {}; tr = {}; out = []
        for (g, e, d) in items[i0:]:
            t = max(t, e)
            for x in g:
                if x.kind == "pwait" and x.op == "waittag":
                    for tg in x.args: t = max(t, tr.get(tg, -1))
                else:
                    for r in x.src + x.dst: t = max(t, ready.get(r, -1))
            out.append(t)
            for x in g:
                if x.kind == "ds_rd":
                    for r in x.dst: ready[r] = t + fw.LDS_LAT + 1
                elif x.kind == "vm_ld":
                    for r in x.dst: ready[r] = t + fw.VM_LAT + 2
                if x.tag and x.kind in ("vm_st", "ds_wr"): tr[x.tag] = t + fw.VM_LAT
            t += len(g) / rate
        return out
    lo, hi = 0.05, 8.0
    for _ in range(30):
        mid = (lo + hi) / 2
        if walk(mid)[-1] <= t1: hi = mid
        else: lo = mid
    dls = walk(hi)
    new = deque(items[:i0])
    for (g, e, d), t in zip(items[i0:], dls):
        nd = int(t) + 3
        new.append((g, e, nd if d is None else min(d, nd)))
    st.q = new
    st.rate = hi


def interleave(vm, fill, per):
    out = []; fi = 0
    for g in vm:
        out += g
        if any(("buffer_load" in x or "global_load" in x) if isinstance(x, str) else x.kind in ("dma", "vm_ld") for x in g):
            n = 0
            while fi < len(fill) and n < per:
                f = fill[fi]; fi += 1
                out += f if isinstance(f, list) else [f]
                n += len(f) if isinstance(f, list) else 1
    for f in fill[fi:]:
        out += f if isinstance(f, list) else [f]
    return out


def build_common(opt):
    o = []
    A = lambda *x: o.extend(expand(list(x)))
    A("s_cmp_ge_u32 s2, 256", "s_cbranch_scc1 L_main_end")
    A("s_load_dwordx16 s[64:79], s[0:1], 0", "s_load_dwordx16 s[80:95], s[0:1], 64", "s_load_dwordx2 s[96:97], s[0:1], 128")
    A(f"v_and_b32 {L}, 63, v0", "v_lshrrev_b32 v1, 6, v0")
    A(f"s_and_b32 s{sT0}, s2, 7", f"s_lshr_b32 s{sT1}, s2, 3")
    A(f"v_readfirstlane_b32 s{sW}, v1")
    A(f"s_lshl_b32 s{sSLICE}, s{sT0}, 1", f"s_and_b32 s{sPAR}, s{sT1}, 1", f"s_add_u32 s{sSLICE}, s{sSLICE}, s{sPAR}", f"s_lshr_b32 s{sTILE}, s{sT1}, 1")
    choose = [f"s_cmp_eq_u32 s{sPAR}, 1", "s_cbranch_scc1 L_var1"]
    prog, _ = pad_hazards(o)
    return render(prog) + "\n  " + "\n  ".join(choose) + "\n"


def final_reduce(opt, par, XF, XT, XD, slow):
    o = []
    A = lambda *x: o.extend(expand(list(x)))
    oob = hex(OOB)
    S_OUT, S_DS = S_P, S_B
    def flagst(val): A(f"v_mov_b32 v{XT}, {val}", f"buffer_store_dword v{XT}, v{XF}, {sr(S_WS)}, 0 offen sc1")
    FA, FD = 200, 201
    def poll_ld(): A(f"buffer_load_dword v{FD}, v{FA}, {sr(S_WS)}, 0 offen sc1")
    def poll_chk(name, val, mask):
        cond = [f"v_cmp_le_u32 vcc, {val}, v{FD}", f"s_or_b64 vcc, vcc, s[{mask}:{mask+1}]"]
        A(*cond, "s_cmp_eq_u64 vcc, -1", f"s_cbranch_scc0 L_slow_{name}{par}", I(f"L_back_{name}{par}:"))
        ld = f"buffer_load_dword v{FD}, v{FA}, {sr(S_WS)}, 0 offen sc1"
        slow.extend([I(f"L_slow_{name}{par}:"), I(f"s_mov_b32 s{sT2}, 0"), I(f"L_slowl_{name}{par}:"), I(ld), I("s_waitcnt vmcnt(0)"),
                     I(cond[0]), I("s_nop 4"), I(cond[1]), I("s_cmp_eq_u64 vcc, -1"), I(f"s_cbranch_scc1 L_back_{name}{par}"),
                     I(f"s_add_u32 s{sT2}, s{sT2}, 1"), I(f"s_cmp_lt_u32 s{sT2}, 0x40000"), I(f"s_cbranch_scc1 L_slowl_{name}{par}"), I(f"s_branch L_back_{name}{par}")])
    A(WaitTag("pstA"), "s_barrier"); flagst(6)
    A(srd(S_OUT, "s92", "s93", 4718592), srd(S_DS, "s80", "s81", 1152))
    A(f"s_lshl_b32 s{sT0}, s{sTILE}, 7", f"s_add_u32 s{sT0}, s{sT0}, {WS_F}", f"v_lshlrev_b32 v{FA}, 11, {L}", f"v_add_u32 v{FA}, s{sT0}, v{FA}",
      f"v_cmp_gt_u32 vcc, 16, {L}", f"v_mov_b32 v{FD}, {oob}", f"v_cndmask_b32 v{FA}, v{FD}, v{FA}, vcc")
    poll_ld()
    mALL, mPAR = 56, 58
    A(f"s_mov_b32 s{mALL}, 0xffff0000", f"s_mov_b32 s{mALL+1}, -1", f"s_mov_b32 s{mPAR}, {hex(0xffff0000 | (0xaaaa if par == 0 else 0x5555))}", f"s_mov_b32 s{mPAR+1}, -1")
    LT, LQ = 190, 191
    A(f"v_and_b32 v{LT}, 15, {L}", f"v_lshrrev_b32 v{LQ}, 4, {L}")
    sJ, sTOK, sSRC, sM_ = 60, 61, 62, 63
    A(f"s_lshr_b32 s{sJ}, s{sSLICE}, 1")
    A(WaitTag("pstB"), WaitRegs([f"v{FD}"]), "s_barrier"); flagst(7)
    poll_chk("M", 5, mALL)
    A(f"s_lshr_b32 s{sT0}, s{sSLICE}, 2", f"s_and_b32 s{sM_}, s{sSLICE}, 3", f"s_and_b32 s{sT3}, s{sW}, 1", f"s_lshr_b32 s{sT1}, s{sW}, 1",
      f"s_lshl_b32 s{sSRC}, s{sTILE}, 2", f"s_add_u32 s{sSRC}, s{sSRC}, s{sT0}", f"s_lshl_b32 s{sSRC}, s{sSRC}, 2", f"s_add_u32 s{sSRC}, s{sSRC}, s{sM_}",
      f"s_lshl_b32 s{sSRC}, s{sSRC}, 10", f"s_mul_i32 s{sT1}, s{sT1}, {8*16*4*4096}", f"s_add_u32 s{sSRC}, s{sSRC}, s{sT1}", f"s_lshl_b32 s{sT2}, s{sT3}, 3",
      f"s_add_u32 s{sSRC}, s{sSRC}, s{sT2}", f"s_add_u32 s{sSRC}, s{sSRC}, {WS_P16}")
    for j in range(8):
        A(f"buffer_load_dwordx2 {vr(2*j, 2)}, v{VST}, {sr(S_WS)}, s{sSRC} offen sc1", f"s_add_u32 s{sSRC}, s{sSRC}, {16*4*4096}")
    A(f"s_lshl_b32 s{sTOK}, s{sTILE}, 7", f"s_lshl_b32 s{sT0}, s{sT0}, 5", f"s_add_u32 s{sTOK}, s{sTOK}, s{sT0}", f"s_lshl_b32 s{sT2}, s{sT3}, 4", f"s_add_u32 s{sTOK}, s{sTOK}, s{sT2}",
      f"s_lshl_b32 s{sM_}, s{sM_}, 4", f"s_add_u32 s{sM_}, s{sM_}, 256")
    MT, MD, ME = 16, 17, 18
    A(f"v_add_u32 v{MT}, s{sTOK}, v{LT}", f"v_lshlrev_b32 v{MD}, 2, v{LQ}", f"v_add_u32 v{MD}, s{sM_}, v{MD}", f"v_mul_u32_u24 v{ME}, 576, v{MT}", f"v_add_u32 v{ME}, v{ME}, v{MD}",
      f"v_lshlrev_b32 v19, 1, v{ME}", f"v_lshlrev_b32 v20, 1, v{MD}", f"v_lshlrev_b32 v21, 2, v{MT}", f"s_mov_b32 s{sT0}, {WS_G}")
    A(f"buffer_load_dwordx2 v[22:23], v19, {sr(S_X)}, 0 offen", f"buffer_load_dwordx2 v[24:25], v20, {sr(S_DS)}, 0 offen",
      f"buffer_load_dword v26, v21, {sr(S_WS)}, s{sT0} offen sc1")
    poll_ld()
    sPA, sDA = 64, 65
    A(f"s_lshl_b32 s{sPA}, s{sTILE}, 2", f"s_add_u32 s{sPA}, s{sPA}, s{sW}", f"s_lshl_b32 s{sPA}, s{sPA}, 15", f"s_lshl_b32 s{sT0}, s{sJ}, 10", f"s_add_u32 s{sPA}, s{sPA}, s{sT0}",
      f"s_add_u32 s{sPA}, s{sPA}, {WS_P8 + 16384*par}", f"s_lshl_b32 s{sDA}, s{sJ}, 4", f"s_add_u32 s{sDA}, s{sDA}, {320*par}",
      f"s_lshl_b32 s{sTOK}, s{sTILE}, 7", f"s_lshl_b32 s{sT0}, s{sW}, 5", f"s_add_u32 s{sTOK}, s{sTOK}, s{sT0}")
    PT, PD, PE = 28, 29, 30
    A(f"v_add_u32 v{PT}, s{sTOK}, v{LT}", f"v_lshlrev_b32 v{PD}, 2, v{LQ}", f"v_add_u32 v{PD}, s{sDA}, v{PD}", f"v_mul_u32_u24 v{PE}, 576, v{PT}", f"v_add_u32 v{PE}, v{PE}, v{PD}",
      f"v_lshlrev_b32 v31, 1, v{PE}", f"v_lshlrev_b32 v{PD}, 1, v{PD}", f"v_lshlrev_b32 v{PE}, 2, v{PE}", "v_accvgpr_read_b32 v128, a249", "v_accvgpr_read_b32 v129, a250")
    def aux(base, dcol):
        A(f"s_mov_b32 s{sT0}, {2*dcol}", f"buffer_load_dwordx2 {vr(base, 2)}, v31, {sr(S_X)}, s{sT0} offen",
          f"s_mov_b32 s{sT1}, {2*dcol + 18432}", f"buffer_load_dwordx2 {vr(base+2, 2)}, v31, {sr(S_X)}, s{sT1} offen",
          f"buffer_load_dwordx2 {vr(base+4, 2)}, v{PD}, {sr(S_DS)}, s{sT0} offen")
    aux(130, 0); aux(136, 128)
    poll_chk("PA", 6, mPAR)
    def loads8(dst, extra):
        A(f"s_add_u32 s{sSRC}, s{sPA}, {extra}")
        for j in range(8):
            A(f"buffer_load_dwordx4 {vr(dst+4*j)}, v{VST}, {sr(S_WS)}, s{sSRC} offen sc1")
            if j < 7: A(f"s_add_u32 s{sSRC}, s{sSRC}, {16*4*32768}")
    loads8(32, 0)
    poll_ld()
    def unpack_sum(dst, srcs, nreg):
        for si, sb in enumerate(srcs):
            for j in range(nreg):
                if si == 0: A(f"v_lshlrev_b32 v{dst+2*j}, 16, v{sb+j}", f"v_and_b32 v{dst+2*j+1}, 0xffff0000, v{sb+j}")
                else: A(f"v_lshlrev_b32 v150, 16, v{sb+j}", f"v_and_b32 v151, 0xffff0000, v{sb+j}", f"v_add_f32 v{dst+2*j}, v{dst+2*j}, v150", f"v_add_f32 v{dst+2*j+1}, v{dst+2*j+1}, v151")
    def skip(dst, xs, ds, g):
        for j in range(2):
            A(f"v_lshlrev_b32 v150, 16, v{xs+j}", f"v_and_b32 v151, 0xffff0000, v{xs+j}", f"v_lshlrev_b32 v152, 16, v{ds+j}", f"v_and_b32 v153, 0xffff0000, v{ds+j}",
              "v_mul_f32 v150, v150, v152", "v_mul_f32 v151, v151, v153", "v_cvt_pk_bf16_f32 v150, v150, v151",
              "v_and_b32 v151, 0xffff0000, v150", "v_lshlrev_b32 v150, 16, v150", f"v_fmac_f32 v{dst+2*j}, v{g}, v150", f"v_fmac_f32 v{dst+2*j+1}, v{g}, v151")
    unpack_sum(160, [2*j for j in range(8)], 2)
    A(f"s_and_b32 s{sT0}, s{sW}, 1", f"s_lshl_b32 s{sT0}, s{sT0}, 10", f"v_add_u32 v154, s{sT0}, v{VST}")
    A(f"s_cmp_ge_u32 s{sW}, 2", f"s_cselect_b32 s{sT1}, 0, {2048}", f"v_add_u32 v155, s{sT1}, v154")
    A(I(f"ds_write_b128 v155, v[160:163]", tag="pmx"), WaitTag("pmx"), "s_barrier", f"ds_read_b128 v[164:167], v154")
    skip(160, 22, 24, 26)
    for j in range(4): A(f"v_add_f32 v{160+j}, v{160+j}, v{164+j}")
    A(f"v_lshlrev_b32 v{ME}, 2, v{ME}", f"s_cmp_lt_u32 s{sW}, 2", f"s_cselect_b32 s{sT0}, 0, 0x7ff00000")
    A(f"buffer_store_dwordx4 v[160:163], v{ME}, {sr(S_OUT)}, s{sT0} offen")
    OST = opt.get("ost", "")
    def finish(src, auxb, dcol):
        unpack_sum(168, [src + 4*j for j in range(8)], 4)
        skip(168, auxb, auxb + 4, 128); skip(172, auxb + 2, auxb + 4, 129)
        A(f"s_mov_b32 s{sT0}, {4*dcol}", f"buffer_store_dwordx4 v[168:171], v{PE}, {sr(S_OUT)}, s{sT0} offen{OST}",
          f"s_mov_b32 s{sT1}, {4*dcol + 36864}", f"buffer_store_dwordx4 v[172:175], v{PE}, {sr(S_OUT)}, s{sT1} offen{OST}")
    poll_chk("PB", 7, mPAR)
    loads8(64, 8192)
    finish(32, 130, 0)
    finish(64, 136, 128)
    return o


def build_variant(opt, par):
    stages, nS = build_stages(par)
    nSP = 5 - nS
    NST = len(stages)
    V = f"v{par}"
    pro = []
    A = lambda *x: pro.extend(expand(list(x)))
    ts = opt.get("ts")
    A(f"s_mul_i32 s{sC0}, s{sSLICE}, 9", f"s_lshr_b32 s{sC0}, s{sC0}, 1", f"s_lshl_b32 s{sC0}, s{sC0}, 3")
    A(f"s_mul_i32 s{sW6}, s{sW}, 6144", f"s_mul_i32 s{sW3}, s{sW}, 3072")
    A(voff_B(D1, 10))
    A(f"s_and_b32 s{sT3}, s{sW}, 1")
    A(f"s_mul_i32 s{sOA}, s{sC0}, 1152", f"s_lshl_b32 s{sT0}, s{sT3}, 7", f"s_add_u32 s{sOA}, s{sOA}, s{sT0}")
    A(f"s_lshl_b32 s{sT0}, s{sTILE}, 7", f"s_lshl_b32 s{sT1}, s{sW}, 5", f"s_add_u32 s{sT0}, s{sT0}, s{sT1}", f"s_mul_i32 s{sXO}, s{sT0}, 1152")
    A(f"s_lshl_b32 s{sXL}, s{sW}, 12", f"s_add_u32 s{sXL}, s{sXL}, {XBASE}")
    if ts: A("s_memtime s[100:101]", "s_waitcnt lgkmcnt(0)", "v_mov_b32 v255, 0", "v_writelane_b32 v255, s100, 0", "s_memrealtime s[100:101]")
    A("s_waitcnt lgkmcnt(0)")
    if ts: A("v_writelane_b32 v255, s100, 61")
    A(srd(S_X, "s64", "s65", 2359296))
    A(f"s_cmp_lt_u32 s{sW}, 2")
    A(f"s_cselect_b32 s{S_B}, s70, s72", f"s_cselect_b32 s{S_B+1}, s71, s73", f"s_mov_b32 s{S_B+2}, 663552", f"s_mov_b32 s{S_B+3}, 0x20000")

    def dma_items(k):
        st = stages[k]
        items = [[x] for x in st.pre] + [[f"s_add_u32 m0, s{st.wq}, {slot_base(k)}"]]
        for j, (v, s_, so) in enumerate(st.pieces):
            if j == 4: items.append([f"s_add_u32 m0, s{st.wq}, {slot_base(k) + 4096}"])
            imm = 1024 * (j % 4)
            items.append([I(f"buffer_load_dwordx4 v{v}, {sr(s_)}, s{so} offen" + (f" offset:{imm}" if imm else "") + " lds", tag=f"st{k}")])
        return items
    def xdma(j):
        items = [[f"s_add_u32 s{sOB}, s{sXO}, {128*j}"], [f"s_add_u32 m0, s{sXL}, {16384*XPOS[j]}"]]
        for g in range(4):
            items.append([I(f"buffer_load_dwordx4 v{D1+g}, {sr(S_X)}, s{sOB} offen" + (f" offset:{1024*g}" if g else "") + " lds", tag=f"x{j}")])
        return items
    XV = TA; XV2 = 66
    def xreads(j):
        p_ = XPOS[j]
        return [I(f"ds_read_b128 {xfrag(2*j+h, n)}, v{(XV if p_ < 3 else XV2)+h} offset:{16384*(p_ % 3) + 2048*n}", tag=f"xr{j}") for h in range(2) for n in range(2)]

    PLRE, PLIM, PLDT = T, T + 1, T + 2
    PFL = opt.get("pf", " sc1")
    oob = hex(OOB)
    vm = []
    vm += dma_items(0)
    vm += xdma(0) + xdma(1)
    vm += [[f"v_lshlrev_b32 v{VST}, 4, {L}", f"v_min_u32 v8, 47, {L}", f"v_lshlrev_b32 v{VCH}, 3, v8", f"v_add_u32 v9, s{sC0}, v8", "v_lshlrev_b32 v9, 1, v9"]
           + srd(S_P, "s66", "s67", 1152) + [f"buffer_load_ushort v{PLRE}, v9, {sr(S_P)}, 0 offen"]]
    vm += [srd(56, "s68", "s69", 1152) + [f"buffer_load_ushort v{PLIM}, v9, s[56:59], 0 offen"]]
    vm += [srd(60, "s78", "s79", 1152) + [f"buffer_load_ushort v{PLDT}, v9, s[60:63], 0 offen"]]
    vm += [srd(S_P, "s90", "s91", 1152) + [f"s_add_u32 m0, s{sW3}, {PRIV}", "s_nop 0", I(f"buffer_load_dwordx4 v{VST}, {sr(S_P)}, 0 offen lds", tag="gw")]]
    vm += [[I(f"buffer_load_dwordx4 v{VST}, {sr(S_P)}, 0 offen offset:1024 lds", tag="gw")]]
    vm += xdma(2) + xdma(3) + dma_items(1)
    if opt.get('x45', '1') == '1': vm += xdma(4) + xdma(5)
    PV = 12
    vm += [[f"s_cmp_lt_u32 s{sW}, 2", f"s_cselect_b32 s{S_W1}, s84, s86", f"s_cselect_b32 s{S_W1+1}, s85, s87", f"s_mov_b32 s{S_W1+2}, 5308416", f"s_mov_b32 s{S_W1+3}, 0x20000"]]
    if opt.get("nocpf") is None:
        vm += [[f"s_getpc_b64 s[100:101]", I(f"L_pc{par}:"),
                f"s_lshr_b32 s{sT0}, s2, 4", f"s_lshl_b32 s{sT0}, s{sT0}, 2", f"s_add_u32 s{sT0}, s{sT0}, s{sW}", f"s_mul_i32 s{sT0}, s{sT0}, 1152",
                f"v_lshlrev_b32 v12, 7, {L}", f"v_add_u32 v12, s{sT0}, v12", f"v_min_u32 v12, CODE_SPAN{par}, v12", f"v_cmp_gt_u32 vcc, 9, {L}",
                "s_and_saveexec_b64 s[62:63], vcc", f"global_load_dword a247, v12, s[100:101]", "s_mov_b64 exec, s[62:63]"]]
    fullcol = 64 * par; halfcol = 512 if par == 0 else 0
    if opt.get("nopf") is None:
        vm += [[f"s_lshl_b32 s{sT4}, s{sTILE}, 1", f"s_add_u32 s{sT4}, s{sT4}, s{sT3}",
                f"s_mul_i32 s100, s{sT4}, {14*128}", f"s_mul_i32 s{sT0}, s{sC0}, 1152", f"s_add_u32 s100, s100, s{sT0}",
                f"v_lshlrev_b32 v{PV}, 7, {L}", f"v_mov_b32 v{PV+1}, {oob}", f"v_cmp_gt_u32 vcc, 14, {L}", f"v_cndmask_b32 v{PV}, v{PV+1}, v{PV}, vcc",
                f"buffer_load_dword a248, v{PV}, {sr(S_B)}, s100 offen{PFL}"]]
        vm += [[f"v_mul_u32_u24 v{PV}, 57, {L}", f"v_lshrrev_b32 v{PV}, 10, v{PV}", f"v_mul_u32_u24 v{PV+1}, 18, v{PV}", f"v_sub_u32 v{PV+1}, {L}, v{PV+1}",
                f"v_mul_u32_u24 v{PV+1}, 9216, v{PV+1}", f"v_mul_i32_i24 v{PV}, {fullcol - halfcol}, v{PV}", f"v_add_u32 v{PV}, {halfcol}, v{PV}",
                f"v_add_u32 v{PV}, v{PV}, v{PV+1}",
                f"v_mov_b32 v{PV+1}, {oob}", f"v_cmp_gt_u32 vcc, 36, {L}", f"v_cndmask_b32 v{PV}, v{PV+1}, v{PV}, vcc",
                f"s_mul_i32 s100, s{sT4}, {18*9216}", f"s_mul_i32 s{sT0}, s{sSLICE}, 576", f"s_add_u32 s100, s100, s{sT0}",
                f"buffer_load_dword a251, v{PV}, {sr(S_W1)}, s100 offen{PFL}"]]
    fill = []
    F = lambda *x: fill.extend(list(x))
    F(*base_R2(14))
    F(f"v_add_u32 v{XV}, s{sXL}, v{RB[0]}", f"v_add_u32 v{XV+1}, s{sXL}, v{RB[1]}", f"v_add_u32 v{XV2}, 49152, v{XV}", f"v_add_u32 v{XV2+1}, 49152, v{XV+1}")
    F(f"v_lshrrev_b32 v3, 4, {L}", f"v_lshlrev_b32 v{GWB}, 4, v3", f"v_add_u32 v{GWB}, s{sW3}, v{GWB}", f"v_add_u32 v{GWB}, {PRIV}, v{GWB}")
    F(*voff_W1half(D2, 14))
    F(*base_T64(P1, 14))
    F(f"s_mul_i32 s{sT0}, s{sSLICE}, 576", f"s_mul_i32 s{sT1}, s{sT3}, {48*9216}", f"s_add_u32 s{sW1F}, s{sT0}, s{sT1}", f"s_add_u32 s{sW1F}, s{sW1F}, {fullcol}",
      f"s_mul_i32 s{sT1}, s{sT3}, {96*9216}", f"s_add_u32 s{sW1H}, s{sT0}, s{sT1}", f"s_add_u32 s{sW1H}, s{sW1H}, {halfcol}")
    F([f"s_cmp_lt_u32 s{sW}, 2", f"s_cselect_b32 s{S_C}, s74, s76", f"s_cselect_b32 s{S_C+1}, s75, s77"], f"s_mov_b32 s{S_C+2}, 663552", f"s_mov_b32 s{S_C+3}, 0x20000")
    F(*srd(S_WD, "s88", "s89", 5308416))
    F(*srd(S_WS, "s96", "s97", WS_END + (1 << 19) * bool(ts)))
    F(f"s_mul_i32 s{sT0}, s{sSLICE}, 6144", f"s_add_u32 s{sT0}, s{sT0}, {WS_S}", [f"s_add_u32 s{S_S}, s96, s{sT0}", f"s_addc_u32 s{S_S+1}, s97, 0"],
      f"s_mov_b32 s{S_S+2}, 6144", f"s_mov_b32 s{S_S+3}, 0x20000")
    F(*srd(S_DBG, "s94", "s95", 256))
    nfill_early = len(fill)
    late = []
    G = lambda *x: late.extend(list(x))
    G(f"s_lshr_b32 s{sT0}, s{sSLICE}, 1", f"s_mul_i32 s{sT0}, s{sT0}, {576*1152}",
      f"s_mul_i32 s{sT1}, s{sT3}, {48*1152}", f"s_lshr_b32 s{sT2}, s{sW}, 1", f"s_lshl_b32 s{sT2}, s{sT2}, 7",
      f"s_add_u32 s{sWD2}, s{sT0}, s{sT1}", f"s_add_u32 s{sWD2}, s{sWD2}, s{sT2}",
      f"s_add_u32 s{sT0}, s{sT0}, {288*1152*par}", f"s_mul_i32 s{sT1}, s{sW}, {48*1152}", f"s_add_u32 s{sWD1}, s{sT0}, s{sT1}",
      f"s_mul_i32 s{sT1}, s{sW}, {24*1152}", f"s_add_u32 s{sWD1B}, s{sT0}, s{sT1}", f"s_add_u32 s{sWD1B}, s{sWD1B}, {192*1152}")
    G(f"s_add_u32 s{sC0P}, s{sC0}, {32 if par == 0 else -32 & 0xffffffff}")
    G(f"s_mul_i32 s{sT1}, s{sT3}, {64*1152}", f"s_lshl_b32 s{sT2}, s{sC0}, 1", f"s_add_u32 s{sC2}, s{sT1}, s{sT2}",
      f"s_lshl_b32 s{sT0}, s{sC0P}, 1", f"s_add_u32 s{sC2P}, s{sT1}, s{sT0}",
      f"s_mul_i32 s{sT1}, s{sT3}, {32*1152}", f"s_add_u32 s{sC1}, s{sT1}, s{sT2}")
    G(f"s_lshr_b32 s{sP8}, s{sSLICE}, 1", f"s_lshl_b32 s{sP8}, s{sP8}, 4", f"s_add_u32 s{sP8}, s{sP8}, s{sTILE}", f"s_lshl_b32 s{sP8}, s{sP8}, 2",
      f"s_add_u32 s{sP8}, s{sP8}, s{sW}", f"s_lshl_b32 s{sP8}, s{sP8}, 15", f"s_add_u32 s{sP8}, s{sP8}, {WS_P8 + 16384*par}")
    G(f"s_lshl_b32 s{sP16}, s{sSLICE}, 4", f"s_add_u32 s{sP16}, s{sP16}, s{sTILE}", f"s_lshl_b32 s{sP16}, s{sP16}, 2", f"s_add_u32 s{sP16}, s{sP16}, s{sW}",
      f"s_lshl_b32 s{sP16}, s{sP16}, 12", f"s_add_u32 s{sP16}, s{sP16}, {WS_P16}")
    G(f"s_lshl_b32 s{sHO}, s{sTILE}, 4", f"s_add_u32 s{sHP}, s{sHO}, s{sSLICE}", f"s_lshl_b32 s{sHP}, s{sHP}, 2", f"s_add_u32 s{sHP}, s{sHP}, s{sW}",
      f"s_mul_i32 s{sHO}, s{sHP}, {24*1024}", f"s_add_u32 s{sHO}, s{sHO}, {WS_H}",
      f"s_add_u32 s{sHP}, s{sHO}, {(4*24*1024 if par == 0 else -4*24*1024) & 0xffffffff}")
    G(f"s_bfm_b64 s[{sMASK}:{sMASK+1}], s{sTILE}, 0", f"s_not_b64 s[{sMASK}:{sMASK+1}], s[{sMASK}:{sMASK+1}]")
    for k, sm in ((1, sM1), (2, sM2), (3, sM3)):
        G([f"s_cmp_ge_u32 s{sW}, {k}", f"s_cselect_b32 s{sm}, 1.0, 0"])
    if opt.get("nopf") is None:
        Q = TS
        G(f"v_mul_u32_u24 v{Q}, 57, {L}", f"v_lshrrev_b32 v{Q}, 10, v{Q}", f"v_mul_u32_u24 v{Q+1}, 18, v{Q}", f"v_sub_u32 v{Q+1}, {L}, v{Q+1}",
          f"v_mul_u32_u24 v{Q+1}, 9216, v{Q+1}", f"v_lshlrev_b32 v{Q}, 7, v{Q}", f"v_add_u32 v{Q}, {fullcol + 128}, v{Q}", f"v_add_u32 v{Q+1}, v{Q+1}, v{Q}",
          f"v_mov_b32 v{Q+2}, {oob}", f"v_cmp_gt_u32 vcc, 54, {L}", f"v_cndmask_b32 v{Q+1}, v{Q+2}, v{Q+1}, vcc", f"v_accvgpr_write_b32 a253, v{Q+1}")
        G(f"v_lshlrev_b32 v{Q}, 7, {L}", f"v_cmp_gt_u32 vcc, 41, {L}", f"v_cndmask_b32 v{Q}, v{Q+2}, v{Q}, vcc", f"v_accvgpr_write_b32 a254, v{Q}")
        G(f"v_lshrrev_b32 v{Q}, 1, {L}", f"v_mul_u32_u24 v{Q}, 1152, v{Q}", f"v_and_b32 v{Q+1}, 1, {L}", f"v_mul_u32_u24 v{Q+1}, 92, v{Q+1}",
          f"v_add_u32 v{Q}, v{Q}, v{Q+1}", f"v_cmp_gt_u32 vcc, 36, {L}", f"v_cndmask_b32 v{Q}, v{Q+2}, v{Q}, vcc", f"v_accvgpr_write_b32 a255, v{Q}")
    LRE, LIM, DT, E1, R1, M_, A_ = T + 3, T + 4, T + 5, T + 6, T + 7, T + 20, T + 21
    TB = T + 8; CH = T + 22
    G(f"v_lshlrev_b32 v{LRE}, 16, v{PLRE}", f"v_lshlrev_b32 v{LIM}, 16, v{PLIM}", f"v_lshlrev_b32 v{DT}, 16, v{PLDT}")
    G(f"v_mul_f32 v{DT}, {hex(LOG2E)}, v{DT}", f"v_exp_f32 v{DT}, v{DT}", f"v_lshrrev_b32 v{CH}, 3, v{VCH}",
      f"v_cvt_pk_bf16_f32 v{DT}, v{DT}, v{DT}", f"v_lshlrev_b32 v{DT}, 16, v{DT}")
    G(f"v_mul_f32 v{E1}, v{DT}, v{LRE}", f"v_mul_f32 v{R1}, v{DT}, v{LIM}", f"v_mul_f32 v{E1}, {hex(LOG2E)}, v{E1}", f"v_mul_f32 v{R1}, {hex(INV2PI)}, v{R1}")
    def cpow(dre, dim, nsrc):
        return [f"v_mul_f32 v{M_}, {nsrc}, v{E1}", f"v_mul_f32 v{A_}, {nsrc}, v{R1}", f"v_exp_f32 v{M_}, v{M_}", f"v_fract_f32 v{A_}, v{A_}",
                f"v_cos_f32 v{dre}, v{A_}", f"v_sin_f32 v{dim}, v{A_}", f"v_mul_f32 v{dre}, v{M_}, v{dre}", f"v_mul_f32 v{dim}, v{M_}, v{dim}"]
    G(*cpow(TB, TB + 1, "1.0")); G(*cpow(TB + 2, TB + 3, "2.0"))
    G(f"s_mov_b32 s{sT0}, 0x40400000"); G(*cpow(TB + 4, TB + 5, f"s{sT0}"))
    G(*cpow(TB + 6, TB + 7, "4.0"))
    G(f"v_mov_b32 v{A4}, v{TB+6}", f"v_mov_b32 v{A4+1}, v{TB+7}")
    G(f"s_mov_b32 s{sT0}, 0x42000000"); G(*cpow(A32, A32 + 1, f"s{sT0}"))
    G(f"s_mov_b32 s{sT0}, 0x43000000"); G(*cpow(A128, A128 + 1, f"s{sT0}"))
    G(f"s_lshl_b32 s{sT0}, s{sW}, 5", f"v_cvt_f32_u32 v{T+23}, s{sT0}"); G(*cpow(PW, PW + 1, f"v{T+23}"))
    KC = T
    G(f"v_add_f32 v{M_}, -1.0, v{TB}", f"v_mul_f32 v{A_}, v{LRE}, v{LRE}", f"v_fmac_f32 v{A_}, v{LIM}, v{LIM}", f"v_rcp_f32 v{A_}, v{A_}",
      f"v_mul_f32 v{KC}, v{M_}, v{LRE}", f"v_fmac_f32 v{KC}, v{TB+1}, v{LIM}",
      f"v_mul_f32 v{KC+1}, v{TB+1}, v{LRE}", f"v_fma_f32 v{KC+1}, -v{M_}, v{LIM}, v{KC+1}",
      f"v_mul_f32 v{KC}, v{KC}, v{A_}", f"v_mul_f32 v{KC+1}, v{KC+1}, v{A_}")
    G(f"v_cmp_gt_u32 vcc, {32 + 8*par}, v{CH}", f"v_mul_u32_u24 v{CH}, 48, v{CH}", f"v_add_u32 v{CH}, {TAB}, v{CH}",
      f"v_cndmask_b32 v{KC}, 0, v{KC}, vcc", f"v_cndmask_b32 v{KC+1}, 0, v{KC+1}, vcc")
    G(f"v_mov_b32 v{KC+2}, 0", f"v_mov_b32 v{KC+3}, 0")
    G(f"ds_write_b128 v{CH}, {vr(TB)}", f"ds_write_b128 v{CH}, {vr(TB+4)} offset:16", f"ds_write_b128 v{CH}, {vr(KC)} offset:32")
    per = int(opt.get("per", 12))
    A(interleave(vm, fill, per))

    units, ustage, u0 = [], [], []
    for k, st in enumerate(stages):
        u0.append(len(units))
        for un in st.units: units.append(un); ustage.append(k)
    NU = len(units); u0.append(NU)

    def read_ins(u):
        un = units[u]; k = ustage[u]
        o = []; d = afrag(u)
        for (op, nreg, (kind, idx), off) in un["reads"]:
            s_ = setof(k)
            if kind == "abs": b, o2 = idx, off
            else:
                b = {"R": lambda: RB[2*s_ + idx], "T64": lambda: T64B[2*s_ + idx], "T128": lambda: T128B[4*s_ + idx], "C": lambda: CB[s_]}[kind]()
                o2 = off + slot_rel(k)
            assert o2 < 65536
            o.append(I(f"{op} {ar(d, nreg)}, v{b}" + (f" offset:{o2}" if o2 else ""))); d += nreg
        return o

    DEPTH = int(opt.get('depth', 6)); WE = int(opt.get('we', 4))
    def stamp(i):
        return [I("s_memtime s[100:101]"), I("s_waitcnt lgkmcnt(0)"), I(f"v_writelane_b32 v255, s100, {i}")]
    kH = 5; kF = lambda c: 8 + 6 * c; kPA = 32; kPM = 40
    kWB = kF(0) + 1
    kHA = kF(3) + int(opt.get('kha', 2))
    kHB = int(opt.get('khb', 38))
    kHC = int(opt.get('khc', 43))
    FUSE = opt.get('fuse', '1') == '1'
    kFM = 47
    BTAG = {kFM: ('pstM',) if FUSE else (), 1: ('xr2',), 4: ('xr8', 'xr7', 'xr6'), kWB: ('wtot',), kHA: ('hstA',), kHB: ('hstB',), kHC: ('hstC',)}
    slots = []; bar_mf = {}
    fs = [int(x) for x in opt.get("fs", "").split(",") if x]
    for u in range(NU):
        un = units[u]; fr = ar(afrag(u))
        rd = read_ins(u + DEPTH) if u + DEPTH < NU else []
        pre = []
        kn = ustage[u + DEPTH] if u + DEPTH < NU else None
        if kn is not None and u + DEPTH == u0[kn]:
            pre += [WaitTag(f"st{kn}", *BTAG.get(kn, ())), I("s_barrier")]
            if ts == "1" or (ts == "2" and kn in (1, 2, 3, 4, 5, 8, 14, 20, 26, 32, 35, 40, 43, 47)): pre += stamp(kn + 1)
            bar_mf[kn] = 2 * u
        if ts == "3":
            k_ = ustage[u]
            if k_ in fs and (u - u0[k_]) % 3 == 0 and (u - u0[k_]) // 3 < 8:
                j_ = (u - u0[k_]) // 3
                pre += [I(f"s_memtime s[{78+2*j_}:{79+2*j_}]")]
            if k_ - 1 in fs and u == u0[k_] + 2:
                base_ = 8 * fs.index(k_ - 1) + 1
                pre += [I("s_waitcnt lgkmcnt(0)")] + [I(f"v_writelane_b32 v255, s{78+2*j_}, {base_ + j_}") for j_ in range(8)]
        if u % WE == 0:
            rg = []
            for x in range(u, min(u + WE, NU)): rg += regs_of(ar(afrag(x)))
            pre += [WaitRegs(rg)]
        for n in range(2):
            d, a, b, c = un["mf"][n]
            txt = mf(d, a, fr, c) if un["swap"] else mf(d, fr, b, c)
            slots.append(Slot(txt, pre if n == 0 else [], rd[n:n + 1] if n < len(rd) else []))
    mend = lambda k: 2 * u0[k + 1] - 1
    mbeg = lambda k: 2 * u0[k]
    if ts: A(stamp(60))
    A(WaitTag("x0")); A(xreads(0)); A(WaitTag("x1")); A(xreads(1))
    A(WaitTag("st0", "gw"), "s_barrier")
    if ts: A(stamp(1))
    for u in range(DEPTH): A(read_ins(u))

    mXB = mend(4)
    XS = 2 * len(stages[0].units)
    sD = Stream("dma", 0)
    fr_of = lambda j: [r for h in range(2) for n in range(2) for r in regs_of(xfrag(2*j+h, n))]
    def xd(j, e, dl, after=None):
        if after is not None: sD.add([WaitRegs(fr_of(after))], e, dl)
        for it in xdma(j): sD.add(it, e, dl)
    def xr(j, e, dl):
        sD.add([WaitTag(f"x{j}")], e, dl)
        for r_ in xreads(j): sD.add(r_, e, dl)
    if opt.get('x45', '1') != '1':
        xd(4, 0, 8); xd(5, 0, 16)
    xr(2, 0, 14); xr(3, 0, 20)
    for it in dma_items(2): sD.add(it, 0, 34)
    xd(6, 10, bar_mf[1] + 2, after=3)
    for it in dma_items(3): sD.add(it, bar_mf[1], bar_mf[1] + 16)
    xr(4, bar_mf[1], bar_mf[1] + 22)
    xd(7, bar_mf[1] + 8, bar_mf[1] + 34, after=4)
    xr(5, bar_mf[1] + 12, bar_mf[1] + 38)
    xd(8, bar_mf[1] + 24, bar_mf[2] + 4, after=5)
    for it in dma_items(4): sD.add(it, bar_mf[2], bar_mf[2] + 20)
    xr(6, bar_mf[2], bar_mf[3] - 8); xr(7, bar_mf[2], bar_mf[3] - 2)
    for it in dma_items(5): sD.add(it, bar_mf[3], bar_mf[3] + 16)
    xr(8, bar_mf[3] + 4, bar_mf[4] - 2)
    xdone = bar_mf[4]
    prev_user = {}; dma_e = {}; dma_d = {}
    e_prev = bar_mf[3] + 16; d_prev = e_prev
    for k in range(NST):
        sl_ = slot_of(k)
        if k >= 6:
            e_ = bar_mf[prev_user[sl_] + 2] if sl_ in prev_user else bar_mf[4]
            if k in (7, 8): e_ = max(e_, bar_mf[4])
            e_ = max(e_, e_prev)
            d_ = min(max(e_ + (44 if k >= 10 else 20), d_prev + 14), bar_mf[k] - 2)
            for it in dma_items(k): sD.add(it, e_, d_)
            dma_e[k], dma_d[k] = e_, d_
            e_prev, d_prev = e_, d_
        prev_user[sl_] = k
    clr = [[f"s_lshl_b32 s{sT0}, s{sSLICE}, 4", f"s_add_u32 s{sT0}, s{sT0}, s{sTILE}", f"s_lshl_b32 s{sT1}, s{sT0}, 7", f"s_add_u32 s{sT1}, s{sT1}, {WS_F}",
            f"s_cmp_eq_u32 s{sW}, 0", f"s_cselect_b32 s{sT2}, 1, 0"],
           f"v_cmp_gt_u32 vcc, s{sT2}, {L}", f"v_mov_b32 v{TS}, {oob}", f"v_mov_b32 v{TS+1}, s{sT1}", f"v_mov_b32 v{TS+2}, s{sT0}", f"v_mov_b32 v{TS+3}, 0",
           f"v_cndmask_b32 v{TS+1}, v{TS}, v{TS+1}, vcc", f"v_cndmask_b32 v{GWB+0 if False else TA+2}, v{TS}, v{TS+2}, vcc",
           I(f"buffer_store_dword v{TS+3}, v{TS+1}, {sr(S_WS)}, 0 offen sc1", tag="clr")]
    sP = Stream("setup", 1)
    for x in clr: sP.add(x, 0, 60)
    for x in late: sP.add(x, 0, mXB)
    sCl = Stream("clr", 1)
    sCl.add([I(f"v_mov_b32 v64, 1"), WaitTag("clr"), I(f"buffer_store_byte v64, v{TA+2}, {sr(S_DBG)}, 0 offen sc1")], bar_mf[2], bar_mf[3] + 10)
    sA = Stream("addr", 1)
    sA.extend(voff_W1full(D1, TA + 2), bar_mf[3] + 12, dma_e[kF(0)])
    common = base_list_T128(T128B, 8, TA, None)
    sA.extend(common, xdone + 1, bar_mf[kF(0)])
    for idx in range(6): sA.extend(t128_regs(idx, TA), xdone + 1, bar_mf[kF(0)])
    for idx in range(6, 12): sA.extend(t128_regs(idx, TA), mXB + 1, bar_mf[kF(0)])
    sA.extend(voff_Wd(D2, TA), max(dma_d[7], mXB + 2), dma_e[kPA])
    sA.extend([x.replace(f'v{TA+2}', f'v{CB[2]}') for x in base_C(CB[0], TA)], bar_mf[kF(0)] + 4, bar_mf[40])
    sA.extend(voff_C(D1, TA), dma_d[kPA - 1], dma_e[40])
    last_use = {}; next_use = {}
    for k in range(kF(0), kPA): last_use[setof(k)] = k
    for k in range(NST - 1, kPA - 1, -1):
        if stages[k].fmt.startswith("Wd"): next_use[setof(k)] = k
    sB = Stream("bases", 1)
    order = sorted(range(3), key=lambda s_: last_use[s_])
    sB.add(f"v_lshrrev_b32 v{TA+2}, 4, {L}", bar_mf[last_use[order[0]] + 1], bar_mf[next_use[order[0]]] - 20)
    sB.add(f"v_lshlrev_b32 v{TA+2}, 9, v{TA+2}", bar_mf[last_use[order[0]] + 1], bar_mf[next_use[order[0]]] - 20)
    for s_ in order:
        for mt in range(4):
            r_ = T128B[4 * s_ + mt]
            sB.add(f"v_sub_u32 v{r_}, v{r_}, v{TA+2}", bar_mf[last_use[s_] + 1], bar_mf[next_use[s_]])

    sE = Stream("epi", 2)
    HST = opt.get("hst", " sc1")
    def hstore(reg, K, n, tag):
        off = (K * 2 + n) * 1024
        return [I(f"s_add_u32 s{sHT}, s{sHO}, {off & ~4095}"),
                I(f"buffer_store_dwordx4 {vr(reg)}, v{VST}, {sr(S_WS)}, s{sHT} offen" + (f" offset:{off & 4095}" if off & 4095 else "") + HST, tag=tag)]
    def ffn_epi(buf, Ks, earliest, deadline, tag):
        for kk, K in enumerate(Ks):
            for n in range(2):
                o = []
                gs = [buf + (2 * kk + h) * 8 + 4 * n for h in range(2)]; us = [buf + (4 + 2 * kk + h) * 8 + 4 * n for h in range(2)]
                for h in range(2):
                    g, u_ = gs[h], us[h]
                    for r in range(4): o += [f"v_max_f32 v{g+r}, 0, v{g+r}", f"v_mul_f32 v{u_+r}, v{SF+n}, v{u_+r}"]
                    for r in range(4): o += [f"v_mul_f32 v{g+r}, v{g+r}, v{u_+r}"]
                d = us[0]
                o += [f"v_cvt_pk_bf16_f32 v{d}, v{gs[0]}, v{gs[0]+1}", f"v_cvt_pk_bf16_f32 v{d+1}, v{gs[0]+2}, v{gs[0]+3}",
                      f"v_cvt_pk_bf16_f32 v{d+2}, v{gs[1]}, v{gs[1]+1}", f"v_cvt_pk_bf16_f32 v{d+3}, v{gs[1]+2}, v{gs[1]+3}"]
                h_ = AH + 8 * K + 4 * n
                o += [f"v_accvgpr_write_b32 a{h_+j}, v{d+j}" for j in range(4)]
                sE.extend(o, earliest, deadline)
                sE.add(hstore(d, K, n, tag), earliest, deadline)
    ffn_epi(ACC[0], [8], mend(kH + 2) + 4, mbeg(kF(1)), "hstA")
    ffn_epi(ACC[1], [0, 1], mend(kF(0) + 5) + 4, mbeg(kF(2)), "hstA")
    ffn_epi(ACC[0], [2, 3], mend(kF(1) + 5) + 4, mbeg(kF(3)) - 60, "hstA")
    ffn_epi(ACC[1], [4, 5], mend(kF(2) + 5) + 4, mbeg(kPA), "hstB")
    ffn_epi(ACC[0], [6, 7], mend(kF(3) + 5) + 4, mbeg(35) - 4, "hstB")
    PST = opt.get("pst", " sc1")
    DLP = {2: bar_mf[kFM - 2] if FUSE else None, 0: None, 1: None}
    for p, k1 in ((2, 42), (0, 48), (1, 50)):
        nm = 8 if p < 2 else 4
        last = mend(k1)
        sreg = sP8 if p < 2 else sP16
        for m in range(nm):
            if p < 2:
                a = ACC[(p + 1) & 1] + m * 8
                o = []
            else:
                a = T + 8 * (m & 1)
                o = [f"v_accvgpr_read_b32 v{a+j}, a{PMACC[m]+j}" for j in range(8)]
            o += [f"v_cvt_pk_bf16_f32 v{a}, v{a}, v{a+1}", f"v_cvt_pk_bf16_f32 v{a+1}, v{a+2}, v{a+3}",
                  f"v_cvt_pk_bf16_f32 v{a+2}, v{a+4}, v{a+5}", f"v_cvt_pk_bf16_f32 v{a+3}, v{a+6}, v{a+7}"]
            sE.extend(o, last + 4, DLP[p])
            imm = 1024 * (m % 4)
            sE.add(f"buffer_store_dwordx4 {vr(a)}, v{VST}, {sr(S_WS)}, s{sreg} offen" + (f" offset:{imm}" if imm else "") + PST, last + 4, DLP[p])
            sE.q[-1][0][0].tag = "pst" + "ABM"[p]
            if m % 4 == 3: sE.add(f"s_add_u32 s{sreg}, s{sreg}, 4096", last + 4, DLP[p])

    sS = Stream("ssm", 3)
    e = [mXB + 4]
    add = lambda x, deadline=None: sS.add(x, e[0], deadline)
    def adds(lst, **kw):
        for x in lst: add(x, **kw)
    dlG = mend(kH + 2)
    G0, G1, Z = T, T + 1, T + 2
    adds([f"v_lshrrev_b32 v{G0}, 4, {L}", f"v_lshlrev_b32 v{G0}, 4, v{G0}", f"v_add_u32 v{G0}, s{sW3}, v{G0}", f"v_add_u32 v{G0}, {PRIV}, v{G0}"])
    for n in range(2): add(f"ds_write_b128 v{G0}, {vr(LG+4*n)} offset:{64*n}")
    adds([f"v_and_b32 v{G1}, 31, {L}", f"v_lshlrev_b32 v{G1}, 2, v{G1}", f"v_add_u32 v{G1}, s{sW3}, v{G1}", f"v_add_u32 v{G1}, {PRIV}, v{G1}",
          f"ds_read_b32 v{Z}, v{G1}"])
    TA1 = T + 8
    adds([f"v_and_b32 v{VT}, 15, {L}", f"v_mul_u32_u24 v{VT}, 48, v{VT}", f"v_add_u32 v{VT}, {TAB}, v{VT}"])
    for b in range(nS): add(f"ds_read_b64 {vr(TA1+2*b, 2)}, v{VT} offset:{b*768}")
    adds([f"v_cvt_pk_bf16_f32 v{Z}, v{Z}, v{Z}", f"v_lshlrev_b32 v{Z}, 16, v{Z}", f"v_mul_f32 v{Z}, {hex(LOG2E ^ 0x80000000)}, v{Z}", f"v_exp_f32 v{Z}, v{Z}",
          f"v_lshrrev_b32 v{VE}, 4, {L}",
          f"v_add_f32 v{Z}, 1.0, v{Z}", f"v_rcp_f32 v{Z}, v{Z}", f"v_mul_u32_u24 v{VE}, 384, v{VE}",
          f"v_cvt_pk_bf16_f32 v{Z}, v{Z}, v{Z}", f"v_lshlrev_b32 v{Z}, 16, v{Z}",
          f"v_sub_f32 v{T+3}, 1.0, v{Z}", f"v_cvt_pk_bf16_f32 v{T+3}, v{T+3}, v{T+3}", f"v_lshlrev_b32 v{T+3}, 16, v{T+3}", f"v_add_f32 v{T+4}, v{Z}, v{Z}",
          f"ds_write_b32 v{G1}, v{T+3} offset:128", f"ds_write_b32 v{G1}, v{T+4} offset:256", f"ds_write_b32 v{G1}, v{Z} offset:384"])
    if par == 0:
        add([f"s_lshl_b32 s{sT0}, s{sTILE}, 7", f"s_lshl_b32 s{sT1}, s{sW}, 5", f"s_add_u32 s{sT0}, s{sT0}, s{sT1}", f"s_lshl_b32 s{sT0}, s{sT0}, 2",
             f"s_add_u32 s{sT0}, s{sT0}, {WS_G}", f"s_cmp_eq_u32 s{sSLICE}, 0", f"s_cselect_b32 s{sT1}, 32, 0"])
        adds([f"v_lshlrev_b32 v{T+5}, 2, {L}", f"v_cmp_gt_u32 vcc, s{sT1}, {L}", f"v_mov_b32 v{T+6}, {oob}",
              f"v_cndmask_b32 v{T+5}, v{T+6}, v{T+5}, vcc", I(f"buffer_store_dword v{Z}, v{T+5}, {sr(S_WS)}, s{sT0} offen sc1", tag="sst")])
    adds([f"v_and_b32 v{T+7}, 15, {L}", f"v_lshlrev_b32 v{T+7}, 2, v{T+7}", f"v_add_u32 v{T+7}, s{sW3}, v{T+7}", f"v_add_u32 v{T+7}, {PRIV}, v{T+7}"])
    for n in range(2): add(f"ds_read_b32 v{SF+n}, v{T+7} offset:{128+64*n}")
    for n in range(2): add(f"ds_read_b128 {vr(LG+4*n)}, v{G0} offset:{256+64*n}")
    for n in range(2): add(f"ds_read_b32 v{T+5+n}, v{T+7} offset:{384+64*n}")
    adds([f"v_and_b32 v{VE+1}, 15, {L}", f"v_lshlrev_b32 v{VE+1}, 3, v{VE+1}", f"v_add_u32 v{VE}, v{VE}, v{VE+1}", f"v_add_u32 v{VE}, s{sW3}, v{VE}",
          f"v_add_u32 v{VE}, {PRIV}, v{VE}", f"v_add_u32 v{VE+1}, 1536, v{VE}"])
    add(WaitRegs([f"v{SF}", f"v{SF+1}"] + regs_of(vr(LG, 8))), deadline=dlG)
    adds([f"v_accvgpr_write_b32 a249, v{T+5}", f"v_accvgpr_write_b32 a250, v{T+6}"])
    for r in range(1, 4):
        for b in range(nS):
            are, aim = TA1 + 2 * b, TA1 + 2 * b + 1
            for n in range(2):
                R, Im = xb(b, 0, n), xb(b, 1, n)
                adds([f"v_fmac_f32 v{R+r}, v{are}, v{R+r-1}", f"v_fmac_f32 v{Im+r}, v{are}, v{Im+r-1}"])
            for n in range(2):
                R, Im = xb(b, 0, n), xb(b, 1, n)
                adds([f"v_fma_f32 v{R+r}, -v{aim}, v{Im+r-1}, v{R+r}", f"v_fmac_f32 v{Im+r}, v{aim}, v{R+r-1}"])
    for b in range(nS):
        for n in range(2):
            add(f"ds_write2_b32 v{VE+n}, v{xb(b,0,n)+3}, v{xb(b,1,n)+3} offset0:{32*b} offset1:{32*b+1}")
    adds([f"v_add_u32 v{VP}, s{sW3}, v{VCH}", f"v_add_u32 v{VP}, {PRIV}, v{VP}"])
    for m in range(8): add(f"ds_read_b64 {vr(T+2*m, 2)}, v{VP} offset:{384*m}")
    add([f"s_mul_i32 s{sT0}, s{sW}, 384", f"s_add_u32 s{sT0}, s{sT0}, {WTOT}"]); add(f"v_add_u32 v{TS}, s{sT0}, v{VCH}")
    for m in range(1, 8): adds(cmul_acc(T + 2*m, T + 2*m + 1, A4, A4 + 1, T + 2*m - 2, T + 2*m - 1))
    add(I(f"ds_write_b64 v{TS}, {vr(T+14, 2)}", tag="wtot"), deadline=bar_mf[kWB] - 2)
    e[0] = bar_mf[kWB]
    adds([f"v_add_u32 v{TS}, {WTOT}, v{VCH}"])
    for m in range(4): add(f"ds_read_b64 {vr(T+2*m, 2)}, v{TS} offset:{384*m}")
    add([f"s_mul_i32 s{sT0}, s{sTILE}, 384", f"s_cmp_eq_u32 s{sW}, 0", f"s_cselect_b32 s{sT1}, 48, 0"])
    adds([f"v_add_u32 v{TS+1}, s{sT0}, v{VCH}", f"v_cmp_gt_u32 vcc, s{sT1}, {L}", f"v_mov_b32 v{TS+2}, {oob}"])
    for m in range(1, 4): adds(cmul_acc(T + 2*m, T + 2*m + 1, A32, A32 + 1, T + 2*m - 2, T + 2*m - 1))
    adds([f"v_cndmask_b32 v{TS+1}, v{TS+2}, v{TS+1}, vcc"])
    add(I(f"buffer_store_dwordx2 {vr(T+6, 2)}, v{TS+1}, {sr(S_S)}, 0 offen sc1", tag="sst"))
    XF, XP, XT = P1 + 3, P1 + 4, P1 + 5
    eX = bar_mf[kF(0)] + 4
    sX_ = Stream("xch", 2)
    sX_.add([f"s_lshl_b32 s{sQ+1}, s{sSLICE}, 4", f"s_add_u32 s{sQ+1}, s{sQ+1}, s{sTILE}", f"s_lshl_b32 s{sQ+1}, s{sQ+1}, 7", f"s_add_u32 s{sQ+1}, s{sQ+1}, {WS_F}",
             f"s_cmp_eq_u32 s{sW}, 0", f"s_cselect_b32 s{sQ+2}, 1, 0"], eX, bar_mf[kWB] + 8)
    for x in [f"v_mov_b32 v{XF}, s{sQ+1}", f"v_cmp_gt_u32 vcc, s{sQ+2}, {L}", f"v_mov_b32 v{XT}, {oob}", f"v_cndmask_b32 v{XF}, v{XT}, v{XF}, vcc",
              [f"s_sub_u32 s{sQ+1}, s{sQ+1}, {WS_F}", f"s_xor_b32 s{sQ+1}, s{sQ+1}, 2048", f"s_add_u32 s{sQ+1}, s{sQ+1}, {WS_F}"], f"v_mov_b32 v{XP}, s{sQ+1}"]:
        sX_.add(x, eX, bar_mf[kWB] + 8)
    add([I(f"v_mov_b32 v{TS+3}, 1"), WaitTag("sst"), I(f"buffer_store_dword v{TS+3}, v{XF}, {sr(S_WS)}, 0 offen sc1")])
    slow = []
    def poll(emit, name, areg, dreg, cond_instrs, cnt, dbg=False):
        ld = f"buffer_load_ubyte v{dreg}, v{areg}, {sr(S_DBG)}, 0 offen sc1" if dbg else f"buffer_load_dword v{dreg}, v{areg}, {sr(S_WS)}, 0 offen sc1"
        emit(ld, False)
        emit([I(x) for x in cond_instrs] + [I("s_cmp_eq_u64 vcc, -1"), I(f"s_cbranch_scc0 L_slow_{name}{par}"), I(f"L_back_{name}{par}:")], True)
        slow.extend([I(f"L_slow_{name}{par}:"), I(f"s_mov_b32 s{cnt}, 0"), I(f"L_slowl_{name}{par}:"), I("s_sleep 1"), I(ld), I("s_waitcnt vmcnt(0)")]
                    + [I(cond_instrs[0]), I("s_nop 4")] + [I(x) for x in cond_instrs[1:]]
                    + [I("s_cmp_eq_u64 vcc, -1"), I(f"s_cbranch_scc1 L_back_{name}{par}"), I(f"s_add_u32 s{cnt}, s{cnt}, 1"), I(f"s_cmp_lt_u32 s{cnt}, 0x40000"),
                       I(f"s_cbranch_scc1 L_slowl_{name}{par}"), I(f"s_branch L_back_{name}{par}")])
    kPoll = int(opt.get("kpoll", kF(1)))
    pace_from = [len(sS.q)]
    e[0] = bar_mf[kPoll]
    adds([[f"s_lshl_b32 s{sT0}, s{sSLICE}, 4", f"s_sub_u32 s{sT1}, s{sTILE}, 256"],
          f"v_add_u32 v{TS}, s{sT0}, {L}", f"v_lshlrev_b32 v{TS+2}, 4, {L}", f"v_add_u32 v{TS+2}, s{sT1}, v{TS+2}",
          f"v_cmp_gt_u32 vcc, 16, {L}", f"v_cndmask_b32 v{TS}, v{TS+2}, v{TS}, vcc",
          f"v_mov_b32 v{TS+2}, {oob}", f"v_cmp_gt_u32 vcc, 32, {L}", f"v_cndmask_b32 v{TS}, v{TS+2}, v{TS}, vcc"])
    poll(lambda x, chk: add(x), "C", TS, TS + 1, [f"v_cmp_ne_u32 vcc, 0, v{TS+1}", f"s_or_b32 vcc_hi, vcc_hi, -1"], sT2, dbg=True)
    adds([[f"s_lshl_b32 s{sT0}, s{sSLICE}, 11", f"s_add_u32 s{sT0}, s{sT0}, {WS_F}"], f"v_lshlrev_b32 v{TS}, 7, {L}", f"v_add_u32 v{TS}, s{sT0}, v{TS}",
          f"v_cmp_gt_u32 vcc, 16, {L}", f"v_mov_b32 v{TS+2}, {oob}", f"v_cndmask_b32 v{TS}, v{TS+2}, v{TS}, vcc"])
    poll(lambda x, chk: add(x), "S", TS, TS + 1, [f"v_cmp_ne_u32 vcc, 0, v{TS+1}", f"s_or_b64 vcc, vcc, s[{sMASK}:{sMASK+1}]"], sT2)
    add([f"s_mul_i32 s{sT0}, s{sTILE}, 384"]); add(f"v_add_u32 v{TS}, s{sT0}, v{VCH}")
    for idx, k in enumerate(range(15, 7, -1)):
        t_ = TS + 1 + (idx & 1)
        add(f"v_subrev_u32 v{t_}, {k*384}, v{TS}")
        add(f"buffer_load_dwordx2 {vr(T+2*idx, 2)}, v{t_}, {sr(S_S)}, 0 offen sc1")
    CC = TS + 2
    for m in range(1, 8): adds(cmul_acc(T + 2*m, T + 2*m + 1, A128, A128 + 1, T + 2*m - 2, T + 2*m - 1))
    adds([f"v_mov_b32 v{CC}, v{T+14}", f"v_mov_b32 v{CC+1}, v{T+15}"])
    for idx, k in enumerate(range(7, 0, -1)):
        add(f"v_subrev_u32 v{TS+1}, {k*384}, v{TS}")
        add(f"buffer_load_dwordx2 {vr(T+2*idx, 2)}, v{TS+1}, {sr(S_S)}, 0 offen sc1")
    adds(cmul_acc(T, T + 1, A128, A128 + 1, CC, CC + 1))
    for m in range(1, 7): adds(cmul_acc(T + 2*m, T + 2*m + 1, A128, A128 + 1, T + 2*m - 2, T + 2*m - 1))
    adds([f"v_mov_b32 v{CC}, v{T+12}", f"v_mov_b32 v{CC+1}, v{T+13}"])
    for k in (3, 2, 1):
        add([f"s_sub_u32 s{sT0}, s{sW}, {k}", f"s_max_i32 s{sT0}, s{sT0}, 0", f"s_mul_i32 s{sT0}, s{sT0}, 384", f"s_add_u32 s{sT0}, s{sT0}, {WTOT}"])
        add(f"v_add_u32 v{TS}, s{sT0}, v{VCH}")
        add(f"ds_read_b64 {vr(T+2*(3-k), 2)}, v{TS}")
    for k, sm in ((3, sM3), (2, sM2), (1, sM1)):
        j = T + 2 * (3 - k)
        adds([f"v_mul_f32 v{j}, s{sm}, v{j}", f"v_mul_f32 v{j+1}, s{sm}, v{j+1}"])
    adds(cmul_acc(T + 2, T + 3, A32, A32 + 1, T, T + 1)); adds(cmul_acc(T + 4, T + 5, A32, A32 + 1, T + 2, T + 3))
    adds(cmul_acc(T + 4, T + 5, PW, PW + 1, CC, CC + 1))
    adds([f"v_mov_b32 v{CC}, v{T+4}", f"v_mov_b32 v{CC+1}, v{T+5}"])
    for m in range(7): add(f"ds_read_b64 {vr(T+2*m, 2)}, v{VP} offset:{384*m}")
    add(f"ds_write_b64 v{VP}, {vr(CC, 2)}")
    adds(cmul_acc(T, T + 1, A4, A4 + 1, CC, CC + 1))
    add(f"ds_write_b64 v{VP}, {vr(T, 2)} offset:384")
    for m in range(1, 7):
        adds(cmul_acc(T + 2*m, T + 2*m + 1, A4, A4 + 1, T + 2*m - 2, T + 2*m - 1))
        add(f"ds_write_b64 v{VP}, {vr(T+2*m, 2)} offset:{384*(m+1)}")
    VW, VR = TS, TS + 1
    adds([f"v_and_b32 v{VW}, 15, {L}", f"v_lshlrev_b32 v{VW}, 5, v{VW}", f"v_lshrrev_b32 v{VR}, 4, {L}", f"v_lshlrev_b32 v{VR}, 3, v{VR}",
          f"v_add_u32 v{VW}, v{VW}, v{VR}", f"v_add_u32 v{VW}, s{sW3}, v{VW}", f"v_add_u32 v{VW}, {PRIV}, v{VW}",
          f"v_lshlrev_b32 v{VR}, 3, {L}", f"v_add_u32 v{VR}, s{sW3}, v{VR}", f"v_add_u32 v{VR}, {PRIV}, v{VR}"])
    dlS = bar_mf[40] - int(opt.get('dls', 10))
    for n in range(2):
        for b in range(nS): add(f"ds_read_b64 {vr(T+2*b, 2)}, v{VE+n} offset:{128*b}")
        for b in range(nS):
            TBL = T + 6
            adds([f"ds_read_b128 {vr(TBL)}, v{VT} offset:{b*768}", f"ds_read_b128 {vr(TBL+4)}, v{VT} offset:{b*768+16}", f"ds_read_b64 {vr(TBL+8, 2)}, v{VT} offset:{b*768+32}"])
            R, Im = xb(b, 0, n), xb(b, 1, n)
            cre, cim = T + 2 * b, T + 2 * b + 1
            for r in range(4): adds(cmul_acc(R + r, Im + r, TBL + 2*r, TBL + 2*r + 1, cre, cim))
            kr, ki, tt = TBL + 8, TBL + 9, TS + 2
            for r in range(4):
                t_ = tt + (r & 1)
                adds([f"v_mul_f32 v{t_}, v{kr}, v{R+r}", f"v_fma_f32 v{t_}, -v{ki}, v{Im+r}, v{t_}",
                      f"v_mul_f32 v{Im+r}, v{kr}, v{Im+r}", f"v_fmac_f32 v{Im+r}, v{ki}, v{R+r}",
                      f"v_mul_f32 v{R+r}, v{LG+4*n+r}, v{t_}", f"v_mul_f32_e64 v{Im+r}, -v{LG+4*n+r}, v{Im+r}"])
            adds([f"v_cvt_pk_bf16_f32 v{R}, v{R}, v{R+1}", f"v_cvt_pk_bf16_f32 v{R+1}, v{R+2}, v{R+3}",
                  f"v_cvt_pk_bf16_f32 v{Im}, v{Im}, v{Im+1}", f"v_cvt_pk_bf16_f32 v{Im+1}, v{Im+2}, v{Im+3}"])
            so = 1536 * n
            adds([f"ds_write_b64 v{VW}, {vr(R, 2)} offset:{so}", f"ds_write_b64 v{VW}, {vr(Im, 2)} offset:{so+512}",
                  f"ds_read_b64_tr_b16 {vr(R, 2)}, v{VR} offset:{so}", f"ds_read_b64_tr_b16 {vr(R+2, 2)}, v{VR} offset:{so+512}"])
    for n in range(2):
        for b in range(nS):
            off = ((9 + b) * 2 + n) * 1024
            add([I(f"s_add_u32 s{sT0}, s{sHO}, {off & ~4095}"),
                 I(f"buffer_store_dwordx4 {vr(xb(b,0,n))}, v{VST}, {sr(S_WS)}, s{sT0} offen" + (f" offset:{off & 4095}" if off & 4095 else "") + HST, tag="hstC")],
                deadline=dlS)
    def hload(K, n):
        off = (K * 2 + n) * 1024
        return [I(f"s_add_u32 s{sQ+1}, s{sHP}, {off & ~4095}"),
                I(f"buffer_load_dwordx4 {ar(hp_reg(K) + 4*n)}, v{VST}, {sr(S_WS)}, s{sQ+1} offen" + (f" offset:{off & 4095}" if off & 4095 else "") + " sc1")]
    sFl = Stream("flag", 1)
    def flag(val, k):
        sFl.add(f"v_mov_b32 v{XT}, {val}", bar_mf[k], bar_mf[k] + 6)
        sFl.add(f"buffer_store_dword v{XT}, v{XF}, {sr(S_WS)}, 0 offen sc1", bar_mf[k], bar_mf[k] + 10)
    def xpoll(name, val, t_load, t_chk, Ks, dl):
        tt = [t_load]
        def emit(x, chk):
            if chk: sX_.add(x, t_chk, t_chk + 10)
            else: sX_.add(x, t_load, t_load + 10)
        poll(emit, name, XP, GWB, [f"v_cmp_le_u32 vcc, {val}, v{GWB}"], sQ + 2)
        for K in Ks:
            for n in range(2): sX_.add(hload(K, n), t_chk, dl)
    flag(2, kHA)
    needA = mbeg(43); needB = mbeg(45); needC = mbeg(48)
    firstA = [8, 0, 1, 2, 3] if par == 0 else [0, 1, 2, 3, 8]
    tA = int(opt.get("tA", 190)); tB = int(opt.get("tB", 150))
    xpoll("A", 2, mbeg(36), mbeg(36) + 90, firstA, mbeg(40))
    flag(3, kHB)
    xpoll("B", 3, needB - tB - 80, needB - tB, [4, 5, 6, 7], needB - 70)
    flag(4, kHC)
    if FUSE: flag(5, kFM)
    xpoll("D", 4, needC - 120 - 70, needC - 120, [9 + b for b in range(nSP)], needC - 70)

    sW_ = Stream("warm", 5)
    if opt.get("nopf") is None:
        PVL = TA + 2
        def pf(e_, areg, sset, srd_, dst):
            sW_.add(f"v_accvgpr_read_b32 v{PVL}, a{areg}", e_, e_ + 30)
            for x in sset: sW_.add(x, e_, e_ + 30)
            sW_.add(f"buffer_load_dword a{dst}, v{PVL}, {sr(srd_)}, s{sQ} offen{PFL}", e_, e_ + 40)
        t_a = int(opt.get("pf_a", mbeg(kH) + 30))
        pf(t_a, 253, [f"s_mul_i32 s{sQ}, s{sT4}, {18*9216}", f"s_mul_i32 s{sQ+3}, s{sSLICE}, 576", f"s_add_u32 s{sQ}, s{sQ}, s{sQ+3}"], S_W1, 252)
        t_d = int(opt.get("pf_d", mbeg(kF(1)) + 20))
        pf(t_d, 254, [f"s_lshl_b32 s{sQ}, s{sTILE}, 2", f"s_add_u32 s{sQ}, s{sQ}, s{sW}", f"s_mul_i32 s{sQ}, s{sQ}, {41*128}",
                      f"s_mul_i32 s{sQ+3}, s{sSLICE}, {288*1152}", f"s_add_u32 s{sQ}, s{sQ}, s{sQ+3}"], S_WD, 248)
        pf(t_d + 100, 255, [f"s_mul_i32 s{sQ}, s{sT4}, {18*1152}", f"s_lshl_b32 s{sQ+3}, s{sC0}, 1", f"s_add_u32 s{sQ}, s{sQ}, s{sQ+3}"], S_C, 251)
    pace(sS, pace_from[0], bar_mf[kPoll], dlS - 10)
    streams = [sD, sP, sCl, sA, sB, sE, sS, sX_, sFl, sW_]
    strip = opt.get("strip", "")
    if "e" in strip: streams = [x for x in streams if x not in (sE, sS, sX_, sFl, sW_, sCl)]; slow = []
    if "S" in strip: streams = [x for x in streams if x not in (sS, sX_, sFl, sW_, sCl)]; slow = []
    if "E" in strip: streams = [x for x in streams if x is not sE]
    if "h" in strip: sE.q = deque(it for it in sE.q if not any(x.kind == "vm_st" for x in it[0]))
    if "X" in strip: streams = [x for x in streams if x not in (sX_, sFl)]; slow = [x for x in slow if False]
    if "b" in strip:
        for sl in slots: sl.pre = [x for x in sl.pre if x.kind != "barrier"]
    if "d" in strip:
        keep = deque(it for it in sD.q if not any(getattr(x, "tag", "") and str(x.tag).startswith("st") and int(x.tag[2:]) > 8 for x in it[0]))
        sD.q = keep
    if "r" in strip:
        for sl in slots[400:]: sl.post = []
    body, rest, stats = schedule(slots, streams)
    tail = rest
    if FUSE:
        tail = tail + final_reduce(opt, par, XF, XT, GWB, slow)
    if ts:
        tail = tail + stamp(58) + [I("s_waitcnt vmcnt(0)")] + stamp(59) + [I("s_memrealtime s[100:101]"), I("s_waitcnt lgkmcnt(0)"), I("v_writelane_b32 v255, s100, 62")]
        tail += expand([f"s_lshl_b32 s{sT0}, s2, 2", f"s_add_u32 s{sT0}, s{sT0}, s{sW}", f"s_lshl_b32 s{sT0}, s{sT0}, 8", f"s_add_u32 s{sT0}, s{sT0}, {WS_END}",
                        f"v_lshlrev_b32 v1, 2, {L}", f"buffer_store_dword v255, v1, {sr(S_WS)}, s{sT0} offen"])
    prog = pro + body + tail
    prog, nw = insert_waits(prog)
    prog, nn = pad_hazards(prog)
    ol = stats.pop("overlog")
    stats["over_by_stage"] = [sum(ol[2*u0[k]:2*u0[k+1]]) for k in range(NST)]
    info = dict(stats, rate=round(sS.rate, 2), NU=NU, nwait=nw, nnop=nn, ninstr=len(prog), tail=len(tail))
    txt = render(prog) + "\n  s_endpgm\n" + render(slow) + "\n"
    return txt, info


def build_reduce(opt):
    o = []
    A = lambda *x: o.extend(expand(list(x)))
    A("s_cmp_ge_u32 s2, 576", "s_cbranch_scc1 L_red_end")
    if opt.get("ts"): A("s_memrealtime s[80:81]")
    A("s_load_dwordx2 s[64:65], s[0:1], 0", "s_load_dwordx2 s[66:67], s[0:1], 64", "s_load_dwordx2 s[68:69], s[0:1], 112", "s_load_dwordx2 s[70:71], s[0:1], 128")
    A("v_lshrrev_b32 v1, 6, v0", "v_and_b32 v2, 63, v0")
    A("v_readfirstlane_b32 s20, v1")
    A("s_lshl_b32 s21, s2, 2", "s_add_u32 s21, s21, s20")
    A("s_mul_i32 s22, s21, 1821", "s_lshr_b32 s22, s22, 16")
    A("s_mul_i32 s23, s22, 36", "s_sub_u32 s23, s21, s23")
    A("s_lshl_b32 s25, s22, 5")
    A("v_lshlrev_b32 v3, 4, v2", "v_and_b32 v4, 15, v2", "v_lshrrev_b32 v5, 4, v2")
    A("s_sub_u32 s29, s23, 4", "s_cmp_ge_u32 s23, 20", "s_cselect_b32 s29, s29, s23")
    A("s_lshl_b32 s24, s22, 15", "s_lshl_b32 s29, s29, 10", "s_add_u32 s24, s24, s29", f"s_add_u32 s24, s24, {WS_P8}")
    A(f"s_mov_b32 s30, {16*4*32768}")
    A("s_lshl_b32 s31, s22, 12", "s_sub_u32 s29, s23, 16", "s_lshl_b32 s33, s29, 10", "s_add_u32 s31, s31, s33", f"s_add_u32 s31, s31, {WS_P16}")
    A("s_cmp_lt_u32 s29, 4", "s_cselect_b32 s24, s31, s24", f"s_cselect_b32 s30, {16*4*4096}, s30", "s_cselect_b32 s34, 1, 0")
    A("s_waitcnt lgkmcnt(0)")
    A(srd(4, "s70", "s71", WS_END), srd(8, "s64", "s65", 2359296), srd(12, "s66", "s67", 1152), srd(16, "s68", "s69", 4718592))
    RLD = opt.get("rld", "")
    for s_ in range(8):
        A(f"buffer_load_dwordx4 {vr(32+4*s_)}, v3, s[4:7], s24 offen{RLD}", "s_add_u32 s24, s24, s30")
    A("s_cmp_eq_u32 s34, 1", "s_cselect_b32 s24, s24, 0x7ff00000", "s_cselect_b32 s30, s30, 0")
    for s_ in range(8, 16):
        A(f"buffer_load_dwordx4 {vr(32+4*s_)}, v3, s[4:7], s24 offen{RLD}", "s_add_u32 s24, s24, s30")
    A("s_lshl_b32 s26, s23, 4", "v_lshlrev_b32 v6, 2, v5", "v_add_u32 v6, s26, v6")
    A("v_add_u32 v7, s25, v4")
    A("v_mul_u32_u24 v8, 576, v7", "v_add_u32 v8, v8, v6")
    A("v_lshlrev_b32 v9, 1, v8", "v_lshlrev_b32 v10, 2, v8", "v_lshlrev_b32 v11, 1, v6", "v_lshlrev_b32 v12, 2, v7")
    A("buffer_load_dwordx2 v[14:15], v9, s[8:11], 0 offen")
    A("s_mov_b32 s27, 18432", "buffer_load_dwordx2 v[16:17], v9, s[8:11], s27 offen")
    A("buffer_load_dwordx2 v[18:19], v11, s[12:15], 0 offen")
    A(f"s_mov_b32 s28, {WS_G}", "buffer_load_dword v20, v12, s[4:7], s28 offen", "buffer_load_dword v21, v12, s[4:7], s28 offen offset:64")
    for r in range(8): A(f"v_mov_b32 v{100+r}, 0")
    for s_ in range(16):
        for j in range(4):
            src = 32 + 4 * s_ + j
            A(f"v_lshlrev_b32 v22, 16, v{src}", f"v_and_b32 v23, 0xffff0000, v{src}", f"v_add_f32 v{100+2*j}, v{100+2*j}, v22", f"v_add_f32 v{101+2*j}, v{101+2*j}, v23")
    for n in range(2):
        for j in range(2):
            xs, ds = 14 + 2 * n + j, 18 + j
            A(f"v_lshlrev_b32 v22, 16, v{xs}", f"v_and_b32 v23, 0xffff0000, v{xs}", f"v_lshlrev_b32 v24, 16, v{ds}", f"v_and_b32 v25, 0xffff0000, v{ds}",
              "v_mul_f32 v22, v22, v24", "v_mul_f32 v23, v23, v25", "v_cvt_pk_bf16_f32 v22, v22, v23",
              "v_and_b32 v23, 0xffff0000, v22", "v_lshlrev_b32 v22, 16, v22",
              f"v_fmac_f32 v{100+4*n+2*j}, v{20+n}, v22", f"v_fmac_f32 v{101+4*n+2*j}, v{20+n}, v23")
    A("buffer_store_dwordx4 v[100:103], v10, s[16:19], 0 offen")
    A("s_mov_b32 s27, 36864", "buffer_store_dwordx4 v[104:107], v10, s[16:19], s27 offen")
    if opt.get("ts"):
        A("s_waitcnt vmcnt(0)", "s_memrealtime s[82:83]", "s_waitcnt lgkmcnt(0)", "v_mov_b32 v30, s80", "v_mov_b32 v31, s82", "s_lshl_b32 s27, s21, 3",
          f"s_add_u32 s27, s27, {WS_END + (1 << 18)}", "v_mov_b32 v29, 0", "s_mov_b32 s6, 0x7fffffff", "buffer_store_dwordx2 v[30:31], v29, s[4:7], s27 offen")
    prog, nw = insert_waits(o)
    prog, nn = pad_hazards(prog)
    return render(prog) + "\nL_red_end:\n  s_endpgm\n"


def build(opt):
    common = build_common(opt)
    v0, i0 = build_variant(opt, 0)
    v1, i1 = build_variant(opt, 1)
    red = build_reduce(opt)
    k1, k2 = NAME + "_kernel", "reduce_kernel"
    fuse = opt.get('fuse', '1') == '1'
    s = HEADER
    if fuse:
        s += f"; @launch grid=(256,1,1) block=(256,1,1) lds={LDS_BYTES}\n"
    else:
        s += f"; @launch kernel={k1} grid=(256,1,1) block=(256,1,1) lds={LDS_BYTES}\n"
        s += f"; @launch kernel={k2} grid=(576,1,1) block=(256,1,1) lds=0\n"
    s += '.amdgcn_target "amdgcn-amd-amdhsa--gfx950"\n.text\n'
    far = "  s_cbranch_scc1 L_var1\n"
    common = common.replace("  s_cbranch_scc1 L_main_end\n", "  s_cbranch_scc0 L_go\n  s_endpgm\nL_go:\n")
    common = common.replace("  s_cbranch_scc1 L_var1\n", "  s_cbranch_scc0 L_var0\n  s_branch L_var1\nL_var0:\n")
    s += f".globl {k1}\n.p2align 8\n.type {k1},@function\n{k1}:\n" + common + v0 + "L_end0:\n.p2align 6\nL_var1:\n" + v1 + "L_end1:\n"
    if not fuse: s += f".globl {k2}\n.p2align 8\n.type {k2},@function\n{k2}:\n" + red
    if opt.get("nocpf") is None:
        s += ".set CODE_SPAN0, L_end0 - L_pc0 - 4\n.set CODE_SPAN1, L_end1 - L_pc1 - 4\n"
    s += '.section .rodata,"a"\n' + kd(k1, 512, 256, 102) + ("" if fuse else kd(k2, 128, 128, 96))
    return s, (i0, i1)


if __name__ == "__main__":
    out = sys.argv[1]
    opt = {}
    for a in sys.argv[2:]:
        k, v = a.split("=", 1); opt[k] = v
    fw.DEPAWARE = opt.get('dep', '1') == '1'; fw.VM_GAP = int(opt.get('vmgap', 5)); fw.LDS_LAT = int(opt.get('ldslat', 8)); fw.VM_LAT = int(opt.get('vmlat', 90))
    s, info = build(opt)
    open(out, "w").write(s)
    for i in info: print(i)
    print(len(s))
```

```python
import re
from collections import deque

TRANS = ("v_exp_f32", "v_log_f32", "v_rcp_f32", "v_rsq_f32", "v_sqrt_f32", "v_sin_f32", "v_cos_f32")
_reg = re.compile(r"^-?\|?([vas])(\d+)\|?$")
_rng = re.compile(r"^-?\|?([vas])\[(\d+):(\d+)\]\|?$")


def regs_of(tok):
    tok = tok.strip()
    m = _reg.match(tok)
    if m:
        return [m.group(1) + m.group(2)]
    m = _rng.match(tok)
    if m:
        return [m.group(1) + str(i) for i in range(int(m.group(2)), int(m.group(3)) + 1)]
    if tok in ("vcc", "m0", "exec", "scc"):
        return [tok]
    if tok in ("vcc_hi", "vcc_lo"):
        return ["vcc"]
    return []


class I:
    __slots__ = ("txt", "op", "kind", "dst", "src", "tag", "srcC", "cexact", "wide", "args", "note", "pbepi")

    def __init__(self, txt, tag=None, note=None):
        self.txt = txt
        self.tag = tag
        self.note = note
        self.args = None
        self.srcC = []
        self.cexact = None
        self.wide = False
        t = txt.strip()
        if t.endswith(":"):
            self.op = "label"; self.kind = "label"; self.dst = []; self.src = []
            return
        parts = t.split(None, 1)
        op = parts[0]
        self.op = op
        rest = parts[1] if len(parts) > 1 else ""
        toks = []
        for p in rest.split(","):
            toks += [p.strip()]
        if toks:
            last = toks[-1].split()
            toks = toks[:-1] + ([last[0]] if last else [])
            mods = last[1:]
        else:
            mods = []
        R = [regs_of(x) for x in toks]
        flat = lambda l: [r for x in l for r in x]
        dst, src = [], []
        if op.startswith("v_mfma"):
            kind = "mfma"; dst = R[0]; src = flat(R[1:3]); self.srcC = R[3]; src = src + R[3]
            self.cexact = (toks[0] == toks[3])
        elif op.startswith("ds_read"):
            kind = "ds_rd"; dst = R[0]; src = flat(R[1:])
        elif op.startswith("ds_write"):
            kind = "ds_wr"; src = flat(R)
        elif op.startswith("buffer_load") and "lds" in mods:
            kind = "dma"; src = flat(R) + ["m0"]
        elif op.startswith("buffer_load") or op.startswith("global_load"):
            kind = "vm_ld"; dst = R[0]; src = flat(R[1:])
        elif op.startswith("buffer_store"):
            kind = "vm_st"; src = flat(R); self.wide = op.endswith("x4") or op.endswith("x3")
            self.args = R[0]
        elif op.startswith("s_memtime") or op.startswith("s_memrealtime"):
            kind = "salu"; dst = []; src = []
        elif op.startswith("v_writelane"):
            kind = "valu"; dst = list(R[0]); src = []
        elif op.startswith("s_load"):
            kind = "smem"; dst = R[0]; src = flat(R[1:])
        elif op == "s_waitcnt":
            kind = "wait"
        elif op == "s_nop":
            kind = "nop"; self.args = int(toks[0])
        elif op == "s_barrier":
            kind = "barrier"
        elif op.startswith("s_cbranch") or op == "s_branch":
            kind = "branch"; src = ["scc"] if "scc" in op else (["vcc"] if "vcc" in op else [])
        elif op.startswith("s_cmp"):
            kind = "salu"; dst = ["scc"]; src = flat(R)
        elif op == "s_getreg_b32":
            kind = "salu"; dst = R[0]
        elif op == "s_getpc_b64":
            kind = "salu"; dst = R[0]
        elif op.startswith("s_and_saveexec"):
            kind = "salu"; dst = R[0] + ["exec", "scc"]; src = flat(R[1:])
        elif op in ("s_setprio", "s_sleep", "s_endpgm"):
            kind = "salu"
        elif op.startswith("s_"):
            kind = "salu"; dst = list(R[0]); src = flat(R[1:])
            if op.startswith(("s_add", "s_sub", "s_and", "s_or", "s_xor", "s_lshl", "s_lshr", "s_not", "s_andn2", "s_ashr", "s_min", "s_max", "s_bfm_none")):
                dst = dst + ["scc"]
            if op.startswith("s_cselect") or op.startswith("s_addc"):
                src = src + ["scc"]
        elif op.startswith("v_cmp"):
            kind = "valu"; dst = R[0]; src = flat(R[1:])
        elif op.startswith("v_"):
            kind = "valu"; dst = list(R[0]); src = flat(R[1:])
            if op.startswith("v_fmac") or op.startswith("v_permlane"):
                src = src + dst
            if op.startswith("v_cndmask") and len(toks) == 3:
                src = src + ["vcc"]
        else:
            raise ValueError("unknown instruction: " + txt)
        self.kind = kind; self.dst = dst; self.src = src

    def __repr__(self):
        return self.txt


class DualStore(I):
    _n = [0]
    def __init__(self, plain, other, sel, tag=None):
        I.__init__(self, plain, tag=tag)
        k = DualStore._n[0]; DualStore._n[0] += 1
        self.src = self.src + [f"s{sel}"]
        self.dst = ["scc"]
        self.txt = (f"s_cmp_eq_u32 s{sel}, 1\n  s_cbranch_scc1 L_dsa{k}\n  {other}\n  s_branch L_dsb{k}\nL_dsa{k}:\n  {plain}\nL_dsb{k}:")


class WaitRegs(I):
    def __init__(self, regs):
        self.txt = "; waitregs"; self.op = "waitregs"; self.kind = "pwait"; self.dst = []; self.src = list(regs)
        self.tag = None; self.note = None; self.args = None; self.srcC = []; self.cexact = None; self.wide = False


class WaitTag(I):
    def __init__(self, *tags):
        self.txt = "; waittag"; self.op = "waittag"; self.kind = "pwait"; self.dst = []; self.src = []
        self.tag = None; self.note = None; self.args = set(tags); self.srcC = []; self.cexact = None; self.wide = False


def expand(x):
    if isinstance(x, str):
        return [I(x)]
    if isinstance(x, I):
        return [x]
    out = []
    for y in x:
        out += expand(y)
    return out


class Stream:
    def __init__(self, name, prio):
        self.name = name; self.prio = prio; self.q = deque(); self.rate = 0

    def add(self, ins, earliest=0, deadline=None):
        g = expand(ins)
        for x in g: x.note = self.name
        self.q.append((g, earliest, deadline))

    def extend(self, lst, earliest=0, deadline=None):
        for x in lst:
            self.add(x, earliest, deadline)


class Slot:
    __slots__ = ("mfma", "pre", "post")

    def __init__(self, mfma, pre=None, post=None):
        self.mfma = I(mfma) if isinstance(mfma, str) else mfma
        self.pre = expand(pre or []); self.post = expand(post or [])


LDS_LAT = 8
VM_LAT = 90
VM_GAP = 5
DEPAWARE = True
DMA_GAP = 0
DMA_GAP_FROM = 0


VMCOST = 1


def cost(x):
    if x.kind in ('vm_ld', 'vm_st', 'dma'): return VMCOST
    return 2 if x.op in TRANS else 1


def schedule(slots, streams, budget=2, horizon=None):
    import bisect
    n = len(slots)
    BIG = n + 10
    S = []
    for s in streams:
        items = list(s.q)
        dl = BIG; eff = [0] * len(items)
        for i in range(len(items) - 1, -1, -1):
            d = items[i][2]
            if d is not None: dl = min(dl, d)
            eff[i] = dl
        S.append(deque((g, e, eff[i]) for i, (g, e, d) in enumerate(items)))
    mand = [len(slots[k].post) + (len(slots[k + 1].pre) if k + 1 < n else 0) for k in range(n)]
    free = [max(0, budget - m) for m in mand]
    cum = [0] * (n + 1)
    for k in range(n): cum[k + 1] = cum[k] + free[k]
    out = []
    stats = {"over": 0, "forced": 0, "idle": 0}
    overlog = [0] * n
    ready = {}; tready = {}
    lastvm = [-99]; lastdma = [-99]

    def note(ins_list, k):
        for x in ins_list:
            if x.kind in ("vm_ld", "vm_st", "dma"): lastvm[0] = k
            if x.kind == "dma": lastdma[0] = k
            if x.kind == "ds_rd":
                for r in x.dst: ready[r] = k + LDS_LAT
            elif x.kind == "vm_ld":
                for r in x.dst: ready[r] = k + VM_LAT
            if x.tag is not None and x.kind in ("ds_rd", "ds_wr", "vm_ld", "vm_st", "dma"):
                tready[x.tag] = k + (LDS_LAT if x.kind.startswith("ds") else VM_LAT)


    def eligible(g, k):
        for x in g:
            if x.kind in ("vm_ld", "vm_st", "dma") and k - lastvm[0] < VM_GAP: return False
            if x.kind == "dma" and k >= DMA_GAP_FROM and k - lastdma[0] < DMA_GAP: return False
            if x.kind == "pwait" and x.op == "waittag":
                if any(tready.get(t, -1) > k for t in x.args): return False
            else:
                for r in x.src + x.dst:
                    if ready.get(r, -1) > k: return False
        return True
    for k, sl in enumerate(slots):
        for si, q in enumerate(S):
            while q and q[0][2] <= k:
                g, e, d = q.popleft()
                assert e <= k, f"stream {streams[si].name}: deadline {d} before earliest {e}: {g}"
                out += g; stats["forced"] += len(g); overlog[k] += len(g); note(g, k)
        out += sl.pre
        out.append(sl.mfma)
        out += sl.post
        note(sl.post, k)
        used = mand[k]
        extra = 0
        cnt = {}
        for q in S:
            for (g, e, d) in q:
                if d >= BIG: break
                cnt[d] = cnt.get(d, 0) + len(g)
        acc = 0
        for d in sorted(cnt):
            acc += cnt[d]
            span = d - k
            if span <= 0: continue
            cap = cum[min(d, n)] - cum[k]
            if acc > cap:
                extra = max(extra, (acc - cap) / span)
        carry = stats.get("_carry", 0.0) + extra
        b = budget + int(carry)
        stats["_carry"] = carry - int(carry) if extra > 0 else 0.0
        lastw = set()
        while used < b:
            pick = None; best = None
            for si, q in enumerate(S):
                if q and q[0][1] <= k and eligible(q[0][0], k):
                    g0 = q[0][0][0]
                    if DEPAWARE and g0.kind == "valu" and lastw & set(g0.src): continue
                    if VMCOST > 1 and any(x.kind in ("vm_ld", "vm_st", "dma") for x in q[0][0]) and used + VMCOST > b and q[0][2] - k > 12: continue
                    key = (q[0][2], streams[si].prio)
                    if best is None or key < best: best = key; pick = q
            if pick is None: break
            g, e, d = pick.popleft()
            out += g; used += sum(cost(x) for x in g); note(g, k)
            lastw = set(g[-1].dst) if g[-1].kind == "valu" else set()
        if used > budget:
            stats["over"] += used - budget; overlog[k] += used - budget
        elif used < budget: stats["idle"] += budget - used
    rest = []
    for q in S:
        while q:
            g, e, d = q.popleft(); rest += g
    stats.pop("_carry", None)
    stats["overlog"] = overlog
    return out, rest, stats


VM = ("vm_ld", "vm_st", "dma")
LG = ("ds_rd", "ds_wr")


def insert_waits(prog):
    out = []
    vm = []
    lg = []
    smem_pending = set()
    nwait = 0

    def need(lst, pred):
        idx = -1
        for i, e in enumerate(lst):
            if pred(e): idx = i
        if idx < 0: return None
        return len(lst) - 1 - idx

    def emit_wait(v, l):
        nonlocal nwait
        parts = []
        if v is not None:
            assert v <= 63
            parts.append(f"vmcnt({v})"); del vm[:len(vm) - v]
        if l is not None:
            assert l <= 15, "lgkmcnt overflow"
            parts.append(f"lgkmcnt({l})"); del lg[:len(lg) - l]
        out.append(I("s_waitcnt " + " ".join(parts))); nwait += 1

    for ins in prog:
        if ins.kind == "label" or ins.kind == "branch":
            out.append(ins); continue
        if ins.kind == "wait":
            m = re.search(r"vmcnt\((\d+)\)", ins.txt)
            if m:
                v = int(m.group(1))
                if len(vm) > v: del vm[:len(vm) - v]
            m = re.search(r"lgkmcnt\((\d+)\)", ins.txt)
            if m:
                l = int(m.group(1))
                if len(lg) > l: del lg[:len(lg) - l]
                if l == 0: smem_pending.clear()
            out.append(ins); continue
        if ins.kind == "pwait" and ins.op == "waittag":
            tags = ins.args
            v = need(vm, lambda e: e[1] in tags); l = need(lg, lambda e: e[1] in tags)
            if v is not None or l is not None: emit_wait(v, l)
            continue
        touched = set(ins.src) | set(ins.dst)
        touched.discard("scc")
        if smem_pending & touched:
            raise RuntimeError("SMEM result used before lgkmcnt(0): " + ins.txt)
        v = need(vm, lambda e: e[0] & touched); l = need(lg, lambda e: e[0] & touched)
        if v is not None or l is not None: emit_wait(v, l)
        if ins.kind == "pwait":
            continue
        out.append(ins)
        if ins.kind in VM:
            vm.append((set(ins.dst), ins.tag))
            if len(vm) > 63:
                pass
        elif ins.kind in LG:
            if len(lg) >= 15:
                out.pop(); emit_wait(None, 14); out.append(ins)
            lg.append((set(ins.dst), ins.tag))
        elif ins.kind == "smem":
            smem_pending |= set(ins.dst)
    return out, nwait


def is_v(r): return r[0] in "va" and r[1:].isdigit()


def pad_hazards(prog):
    out = []
    t = 0
    w_valu = {}; w_mfma = {}; w_trans = {}; c_mfma = {}; w_valu_s = {}; w_salu_m0 = -99; st_wide = {}
    mfma_dst = {}
    nn = 0
    for ins in prog:
        if ins.kind == "label":
            out.append(ins); continue
        need = 0

        def req(prev, dist):
            nonlocal need
            if prev is not None:
                need = max(need, dist - (t - prev - 1))
        k = ins.kind
        isdpp = "dpp" in ins.txt or "row_" in ins.txt
        if k == "mfma":
            for r in ins.src:
                req(w_valu.get(r), 2)
            ab = ins.src[:len(ins.src) - len(ins.srcC)]
            for r in ab: req(w_mfma.get(r), 8)
            for r in ins.srcC:
                if r in w_mfma:
                    if mfma_dst.get(r) != tuple(ins.srcC): req(w_mfma[r], 6)
            for r in ins.dst:
                if r in w_mfma and mfma_dst.get(r) != tuple(ins.dst): req(w_mfma[r], 6)
        elif k == "valu":
            for r in ins.src + ins.dst:
                req(w_mfma.get(r), 8)
            for r in ins.dst:
                req(c_mfma.get(r), 3); req(st_wide.get(r), 2)
            if ins.op not in TRANS:
                for r in ins.src: req(w_trans.get(r), 1)
            for r in ins.src:
                if r[0] == "s" or r == "vcc": req(w_valu_s.get(r), 2)
            if ins.op.startswith("v_readfirstlane") or ins.op.startswith("v_readlane"):
                for r in ins.src: req(w_valu.get(r), 1)
            if isdpp or ins.op.startswith("v_permlane"):
                for r in ins.src: req(w_valu.get(r), 2)
        elif k in ("vm_ld", "vm_st", "dma", "ds_rd", "ds_wr"):
            for r in ins.src + ins.dst:
                req(w_mfma.get(r), 8)
            for r in ins.src:
                if r[0] == "s": req(w_valu_s.get(r), 5)
            for r in ins.dst: req(st_wide.get(r), 1)
            if k == "dma": req(w_salu_m0, 1)
        elif k in ("salu", "branch"):
            for r in ins.src:
                req(w_valu_s.get(r), 4)
        if need > 0:
            nn += need
            while need > 0:
                x = min(need, 16)
                out.append(I(f"s_nop {x - 1}")); t += x; need -= x
        out.append(ins)
        if k == "mfma":
            for r in ins.dst:
                w_mfma[r] = t; mfma_dst[r] = tuple(ins.dst); w_valu.pop(r, None)
            for r in ins.srcC: c_mfma[r] = t
        elif k == "valu":
            for r in ins.dst:
                if is_v(r):
                    w_valu[r] = t; w_mfma.pop(r, None)
                    if ins.op in TRANS: w_trans[r] = t
                    else: w_trans.pop(r, None)
                else:
                    w_valu_s[r] = t
        elif k == "salu":
            if "m0" in ins.dst: w_salu_m0 = t
            for r in ins.dst: w_valu_s.pop(r, None)
        elif k == "vm_st" and ins.wide:
            for r in ins.args: st_wide[r] = t
        elif k in ("vm_ld", "ds_rd"):
            for r in ins.dst:
                w_valu.pop(r, None); w_mfma.pop(r, None)
        t += (ins.args + 1) if k == "nop" else 1
    return out, nn


def render(prog):
    return "\n".join(("" if i.kind == "label" else "  ") + i.txt for i in prog)


def check_flags(prog):
    last = {"vcc": None, "scc": None}
    bad = []
    for i, x in enumerate(prog):
        if isinstance(x, DualStore) or x.kind in ("label", "pwait", "wait", "nop"):
            if isinstance(x, DualStore): last["scc"] = ("?", i)
            continue
        for r in ("vcc", "scc"):
            if r in x.src and r not in x.dst or (r in x.src and r in x.dst):
                if last[r] is not None and last[r][0] != x.note: bad.append((i, r, x.txt, x.note, last[r]))
        for r in ("vcc", "scc"):
            if r in x.dst: last[r] = (x.note, i)
    return bad
```

```python
import sys
import fw
from fw import *
from gen import (NAME, LOG2E, INV2PI, OOB, SLOT, NSLOT, MISC, PRIV, WTOT, TAB, LDS_BYTES, ACC, XB, LG, P1, P2, D1, D2, SF, A4, A32, A128, PW,
                 LANE, VST, VCH, T, VE, VP, VT, TS, TA, AX, AF, AH, L, xfrag, afrag, vr, ar, sr, xb, srd, mf,
                 voff_B, voff_W1full, voff_W1half, voff_Wd, voff_C, base_T64, base_C, cmul_acc, kd, HEADER)
XBASE = 2 * SLOT
XPOS = [0, 1, 2, 3, 4, 5, 3, 4, 5]

WS_P8 = 0
P8_BYTES = 8 * 16 * 4 * 2 * 16 * 1024
WS_P16 = WS_P8 + P8_BYTES
P16_BYTES = 16 * 16 * 4 * 4 * 1024
WS_H = WS_P16 + P16_BYTES
H_BYTES = 16 * 16 * 4 * 24 * 1024
WS_S = WS_H + H_BYTES
WS_G = WS_S + 16 * 16 * 384
WS_F = WS_G + 8192
WS_END = WS_F + 256 * 128

S_X, S_W1, S_WD, S_B, S_C, S_WS, S_S, S_DBG, S_P = 4, 8, 12, 16, 20, 24, 28, 32, 36
sW, sTILE, sSLICE, sC0, sOA, sOB, sW6, sW3 = 40, 41, 42, 43, 44, 45, 46, 47
sP8, sT0, sT1, sT2, sC2, sPAR, sP16, sT3 = 48, 49, 50, 51, 52, 53, 54, 55
sMASK = 56; sM1, sM2, sM3 = 58, 59, 60
sHO, sHP, sHT = 61, 62, 63
sW1F, sW1H, sWD2, sWD1, sWD1B, sC1, sT4, sC0P, sC2P, sQ = 64, 65, 66, 67, 68, 69, 70, 71, 72, 73
sXO, sXL = 98, 99
AHP = 0
def hp_reg(K):
    order = {8: 0, 0: 1, 1: 2, 2: 3, 3: 4, 4: 5, 5: 6, 6: 7, 7: 8, 9: 9, 10: 10, 11: 11}
    return AHP + 8 * order[K]


CYC = [0, 1, 2, 4, 5, 3]
def slot_of(k): return k if k < 4 else CYC[(k - 4) % 6]
def slot_base(k): return slot_of(k) * SLOT
def setof(k): return slot_of(k) // 2
def slot_rel(k): return (slot_of(k) % 2) * SLOT

T64B = [P1 + i for i in range(6)]
T128B = [P1 + 6 + i for i in range(6)] + [P2 + i for i in range(6)]
RB = [P2 + i for i in range(6)]
CB = [P1 + i for i in range(3)]
GWB = P2 + 6


PMACC = [96, 104, 112, 120]


class Stage:
    def __init__(self, fmt, units, pieces, wq, pre):
        self.fmt, self.units, self.pieces, self.wq, self.pre = fmt, units, pieces, wq, pre


def base_list_T128(regs, qrows, t, sets):
    o = [f"v_lshrrev_b32 v{t}, 4, {L}", f"v_mul_u32_u24 v{t}, {qrows}, v{t}", f"v_bfe_u32 v{t+1}, {L}, 2, 2", f"v_add_u32 v{t}, v{t}, v{t+1}",
         f"v_lshlrev_b32 v{t}, 7, v{t}", f"v_and_b32 v{t+1}, 3, {L}", f"v_lshlrev_b32 v{t+1}, 3, v{t+1}", f"v_add_u32 v{t}, v{t}, v{t+1}",
         f"v_bfe_u32 v{t+1}, {L}, 3, 2"]
    return o


def t128_regs(idx, t):
    s_, mt = divmod(idx, 4)
    d = T128B[idx]
    o = [f"v_xor_b32 v{d}, {mt}, v{t+1}", f"v_lshlrev_b32 v{d}, 5, v{d}", f"v_add_u32 v{d}, v{d}, v{t}"]
    if s_: o += [f"v_add_u32 v{d}, {49152*s_}, v{d}"]
    return o


def base_R2(t):
    o = [f"v_and_b32 v{t}, 15, {L}", f"v_lshrrev_b32 v{t+1}, 1, v{t}", f"v_lshlrev_b32 v{t}, 7, v{t}"]
    for h in range(2):
        d = RB[h]
        o += [f"v_lshrrev_b32 v{d}, 4, {L}", f"v_add_u32 v{d}, {4*h}, v{d}", f"v_xor_b32 v{d}, v{d}, v{t+1}", f"v_lshlrev_b32 v{d}, 4, v{d}",
              f"v_add_u32 v{d}, v{d}, v{t}", f"v_add_u32 v{RB[2+h]}, 49152, v{d}", f"v_add_u32 v{RB[4+h]}, {2*49152}, v{d}"]
    return o


def build_stages(par):
    nS = 2 if par == 0 else 3
    nSP = 5 - nS
    stages = []
    tr = "ds_read_b64_tr_b16"
    U = lambda reads, mfl, swap: dict(reads=reads, mf=mfl, swap=swap)
    for st in range(5):
        units = []
        for ksl in range(4 if st < 4 else 2):
            ks = 4 * st + ksl
            line, half = ksl >> 1, ksl & 1
            for b in range(nS):
                for mat in range(2):
                    off = (2 * mat + line) * 6144 + b * 2048
                    acc = [xb(b, mat, n) for n in range(2)]
                    units.append(U([("ds_read_b128", 4, ("R", half), off)],
                                   [(vr(acc[n]), xfrag(ks, n), None, vr(acc[n]) if ks else "0") for n in range(2)], True))
            units.append(U([("ds_read_b128", 4, ("abs", GWB), ks * 64)],
                           [(vr(LG + 4 * n), xfrag(ks, n), None, vr(LG + 4 * n) if ks else "0") for n in range(2)], True))
        pre = [] if st == 0 else [f"s_add_u32 s{sOA}, s{sOA}, 256"]
        npc = 2 * nS
        stages.append(Stage("B", units, [(D1 + j, S_B, sOA) for j in range(npc)], sW6, pre))
    for st in range(3):
        units = []
        for ksl in range(6):
            ks = 6 * st + ksl
            for mat in range(2):
                for mt in range(2):
                    acc = ACC[0] + (mat * 4 + mt) * 8
                    off = mat * 12288 + ksl * 2048
                    units.append(U([(tr, 2, ("T64", mt), off), (tr, 2, ("T64", mt), off + 256)],
                                   [(vr(acc + 4 * n), None, xfrag(ks, n), vr(acc + 4 * n) if ks else "0") for n in range(2)], False))
        pre = [f"s_mov_b32 s{sOA}, s{sW1H}"] if st == 0 else [f"s_add_u32 s{sOA}, s{sOA}, {192*9216}"]
        stages.append(Stage("W1h", units, [(D2 + j, S_W1, sOA) for j in range(6)], sW6, pre))
    for c in range(4):
        buf = ACC[(c + 1) & 1]
        for st in range(6):
            units = []
            for ksl in range(3):
                ks = 3 * st + ksl
                for mat in range(2):
                    for mt in range(4):
                        acc = buf + (mat * 4 + mt) * 8
                        off = mat * 12288 + ksl * 4096
                        units.append(U([(tr, 2, ("T128", mt), off), (tr, 2, ("T128", mt), off + 512)],
                                       [(vr(acc + 4 * n), None, xfrag(ks, n), vr(acc + 4 * n) if ks else "0") for n in range(2)], False))
            pre = [f"s_add_u32 s{sOA}, s{sW1F}, {128*c}"] if st == 0 else [f"s_add_u32 s{sOA}, s{sOA}, {96*9216}"]
            stages.append(Stage("W1", units, [(D1 + j, S_W1, sOA) for j in range(6)], sW6, pre))
    own = lambda K: (lambda n: ar(AH + 8 * K + 4 * n))
    prt = lambda K: (lambda n: ar(hp_reg(K) + 4 * n))
    owns = lambda b: (lambda n: vr(xb(b, 0, n)))
    if par == 0:
        ownW = [[0, 1, 2], [3, 4, 5], [6, 7, 8]]; prtW = [[8, 0, 1], [2, 3, 4], [5, 6, 7]]
        ms_own, ms_prt = [0, 1, 2], [3, 4, 5]
        pmA, pmB = [0, 1, 2, 3, 4, 5], [6, 7, 8]
        cols = [0, 256]
    else:
        ownW = [[8, 0, 1], [2, 3, 4], [5, 6, 7]]; prtW = [[0, 1, 2], [3, 4, 5], [6, 7, 8]]
        ms_own, ms_prt = [3, 4, 5], [0, 1, 2]
        pmA, pmB = [8, 0, 1, 2, 3, 4], [5, 6, 7]
        cols = [640, 896]
    def wd_units(bfs, lines, buf, first):
        units = []
        for i_, bf in enumerate(bfs):
            for line in range(lines):
                for mt in range(4):
                    acc = buf + (line * 4 + mt) * 8
                    off = line * 12288 + i_ * 4096
                    z = first and i_ == 0
                    units.append(U([(tr, 2, ("T128", mt), off), (tr, 2, ("T128", mt), off + 2048)],
                                   [(vr(acc + 4 * n), None, bf(n), "0" if z else vr(acc + 4 * n)) for n in range(2)], False))
        return units
    def c_units(bfs, nm, buf, imoff):
        units = []
        for b, bf in enumerate(bfs):
            for m in range(nm):
                acc = buf + m * 8
                off = m * 1536 + 32 * b
                units.append(U([("ds_read_b64", 2, ("C", 0), off), ("ds_read_b64", 2, ("C", 0), off + imoff)],
                               [(vr(acc + 4 * n), None, bf(n), vr(acc + 4 * n)) for n in range(2)], False))
        return units
    def W(p, bfs, ms, first=False):
        buf = ACC[(p + 1) & 1]
        stages.append(Stage("Wd", wd_units(bfs, 2, buf, first), [(D2 + j, S_WD, sOA) for j in range(6)], sW6,
                            [f"s_add_u32 s{sOA}, s{sWD2}, {cols[p] + ms*96*1152}"]))
    def C(p, bfs, sbase):
        buf = ACC[(p + 1) & 1]
        stages.append(Stage("C", c_units(bfs, 8, buf, 12288), [(D1 + j, S_C, sOA) for j in range(6)], sW6,
                            [f"s_add_u32 s{sOA}, s{sbase}, {(cols[p] // 2) * 1152}"]))
    oW = lambda p, i, first=False: W(p, [own(K) for K in ownW[i]], ms_own[i], first)
    pW = lambda p, i: W(p, [prt(K) for K in prtW[i]], ms_prt[i])
    oC = lambda p: C(p, [owns(b) for b in range(nS)], sC2)
    pC = lambda p: C(p, [prt(9 + b) for b in range(nSP)], sC2P)
    def pm_units(bfs, first, kind):
        units = []
        for i_, bf in enumerate(bfs):
            for mt in range(4):
                acc = PMACC[mt]
                z = first and i_ == 0
                if kind == "W":
                    off = i_ * 4096
                    rd = [(tr, 2, ("T128", mt), off), (tr, 2, ("T128", mt), off + 2048)]
                else:
                    off = mt * 1536 + 32 * i_
                    rd = [("ds_read_b64", 2, ("C", 0), off), ("ds_read_b64", 2, ("C", 0), off + 6144)]
                units.append(U(rd, [(ar(acc + 4 * n), None, bf(n), "0" if z else ar(acc + 4 * n)) for n in range(2)], False))
        return units
    pmWa = lambda: stages.append(Stage("Wd1a", pm_units([own(K) for K in pmA], True, "W"), [(D2 + j, S_WD, sOA) for j in range(6)], sW6, [f"s_add_u32 s{sOA}, s{sWD1}, 512"]))
    pmWb = lambda: stages.append(Stage("Wd1b", pm_units([own(K) for K in pmB], False, "W"), [(D2 + j, S_WD, sOA) for j in range(3)], sW3, [f"s_add_u32 s{sOA}, s{sWD1B}, 512"]))
    pmC = lambda: stages.append(Stage("C1", pm_units([owns(b) for b in range(nS)], False, "C"), [(D1 + j, S_C, sOA) for j in range(3)], sW3, [f"s_add_u32 s{sOA}, s{sC1}, {256*1152}"]))
    oW(0, 0, True); oW(0, 1); pmWa(); oW(1, 0, True); oW(1, 1); oW(0, 2); oW(1, 2); pmWb()
    oC(0); oC(1); pmC()
    pW(0, 0); pW(1, 0); pW(0, 1); pW(1, 1); pW(0, 2); pC(0); pW(1, 2); pC(1)
    return stages, nS


def pace(st, i0, t0, t1):
    items = list(st.q)
    def walk(rate):
        t = float(t0); ready = {}; tr = {}; out = []
        for (g, e, d) in items[i0:]:
            t = max(t, e)
            for x in g:
                if x.kind == "pwait" and x.op == "waittag":
                    for tg in x.args: t = max(t, tr.get(tg, -1))
                else:
                    for r in x.src + x.dst: t = max(t, ready.get(r, -1))
            out.append(t)
            for x in g:
                if x.kind == "ds_rd":
                    for r in x.dst: ready[r] = t + fw.LDS_LAT + 1
                elif x.kind == "vm_ld":
                    for r in x.dst: ready[r] = t + fw.VM_LAT + 2
                if x.tag and x.kind in ("vm_st", "ds_wr"): tr[x.tag] = t + fw.VM_LAT
            t += len(g) / rate
        return out
    lo, hi = 0.05, 8.0
    for _ in range(30):
        mid = (lo + hi) / 2
        if walk(mid)[-1] <= t1: hi = mid
        else: lo = mid
    dls = walk(hi)
    new = deque(items[:i0])
    for (g, e, d), t in zip(items[i0:], dls):
        nd = int(t) + 3
        new.append((g, e, nd if d is None else min(d, nd)))
    st.q = new
    st.rate = hi


def interleave(vm, fill, per):
    out = []; fi = 0
    for g in vm:
        out += g
        if any(("buffer_load" in x or "global_load" in x) if isinstance(x, str) else x.kind in ("dma", "vm_ld") for x in g):
            n = 0
            while fi < len(fill) and n < per:
                f = fill[fi]; fi += 1
                out += f if isinstance(f, list) else [f]
                n += len(f) if isinstance(f, list) else 1
    for f in fill[fi:]:
        out += f if isinstance(f, list) else [f]
    return out


def build_common(opt):
    o = []
    A = lambda *x: o.extend(expand(list(x)))
    A("s_cmp_ge_u32 s2, 256", "s_cbranch_scc1 L_main_end")
    A("s_load_dwordx16 s[64:79], s[0:1], 0", "s_load_dwordx16 s[80:95], s[0:1], 64", "s_load_dwordx2 s[96:97], s[0:1], 128")
    A(f"v_and_b32 {L}, 63, v0", "v_lshrrev_b32 v1, 6, v0")
    A(f"s_and_b32 s{sT0}, s2, 7", f"s_lshr_b32 s{sT1}, s2, 3")
    A(f"v_readfirstlane_b32 s{sW}, v1")
    if opt.get("parhi", "0") == "1":
        A(f"s_lshr_b32 s{sPAR}, s{sT1}, 4", f"s_xor_b32 s{sPAR}, s{sPAR}, 1", f"s_lshl_b32 s{sSLICE}, s{sT0}, 1", f"s_add_u32 s{sSLICE}, s{sSLICE}, s{sPAR}", f"s_and_b32 s{sTILE}, s{sT1}, 15")
    else:
        A(f"s_lshl_b32 s{sSLICE}, s{sT0}, 1", f"s_and_b32 s{sPAR}, s{sT1}, 1", f"s_add_u32 s{sSLICE}, s{sSLICE}, s{sPAR}", f"s_lshr_b32 s{sTILE}, s{sT1}, 1")
    choose = [f"s_cmp_eq_u32 s{sPAR}, 1", "s_cbranch_scc1 L_var1"]
    prog, _ = pad_hazards(o)
    return render(prog) + "\n  " + "\n  ".join(choose) + "\n"


I0, I1, I2 = xb(0, 1, 0), xb(1, 1, 0), xb(2, 1, 0)
FA, FD, LT, LQ = A4, A4 + 1, A4 + 2, A4 + 3
GREG = A4 + 5
PE, PX, PD, ME = I0, I0 + 1, I0 + 2, I0 + 3
MS, DA, DB, TMP, MX = I0 + 4, I1, I2, LG, LG + 4
MLA, EII, E0, E1 = 96, 112, 116, 120
S_OUT, S_DS = S_P, S_B
sJ, sTOK, sSRC, sM_, sPA, sDA, sRM, sMS = 82, 83, 84, 85, 86, 87, 88, 89
mALL, mPAR = 56, 58


def skip_init(dst, xs, ds, g):
    o = []; a, b, c, d = TMP, TMP + 1, TMP + 2, TMP + 3
    for j in range(2):
        o += [f"v_lshlrev_b32 v{a}, 16, v{xs+j}", f"v_and_b32 v{b}, 0xffff0000, v{xs+j}", f"v_lshlrev_b32 v{c}, 16, v{ds+j}", f"v_and_b32 v{d}, 0xffff0000, v{ds+j}",
              f"v_mul_f32 v{a}, v{a}, v{c}", f"v_mul_f32 v{b}, v{b}, v{d}", f"v_cvt_pk_bf16_f32 v{a}, v{a}, v{b}",
              f"v_and_b32 v{b}, 0xffff0000, v{a}", f"v_lshlrev_b32 v{a}, 16, v{a}", f"v_mul_f32 v{dst+2*j}, v{g}, v{a}", f"v_mul_f32 v{dst+2*j+1}, v{g}, v{b}"]
    return o


def reduce_prep(opt, par, e0, eM, lastm):
    oob = hex(OOB)
    sR = Stream("red", 4)
    add = lambda x, e=e0, d=None: sR.add(x, e, d)
    def adds(l, e=e0, d=None):
        for x in l: add(x, e, d)
    adds(srd(S_OUT, "s92", "s93", 4718592) + srd(S_DS, "s80", "s81", 1152))
    adds([f"s_mov_b32 s{mALL}, 0xffff0000", f"s_mov_b32 s{mALL+1}, -1", f"s_mov_b32 s{mPAR}, {hex(0xffff0000 | (0xaaaa if par == 0 else 0x5555))}", f"s_mov_b32 s{mPAR+1}, -1"])
    adds([[f"s_lshl_b32 s{sT0}, s{sTILE}, 7", f"s_add_u32 s{sT0}, s{sT0}, {WS_F}"], f"v_lshlrev_b32 v{FA}, 11, {L}", f"v_add_u32 v{FA}, s{sT0}, v{FA}",
          [f"v_cmp_gt_u32 vcc, 16, {L}", f"v_mov_b32 v{FD}, {oob}", f"v_cndmask_b32 v{FA}, v{FD}, v{FA}, vcc"],
          f"v_and_b32 v{LT}, 15, {L}", f"v_lshrrev_b32 v{LQ}, 4, {L}", f"s_lshr_b32 s{sJ}, s{sSLICE}, 1"], e0, eM - 95)
    adds([[f"s_lshr_b32 s{sT0}, s{sSLICE}, 2", f"s_and_b32 s{sM_}, s{sSLICE}, 3", f"s_and_b32 s{sT3}, s{sW}, 1", f"s_lshr_b32 s{sT1}, s{sW}, 1",
           f"s_lshl_b32 s{sMS}, s{sTILE}, 2", f"s_add_u32 s{sMS}, s{sMS}, s{sT0}", f"s_lshl_b32 s{sMS}, s{sMS}, 2", f"s_add_u32 s{sMS}, s{sMS}, s{sM_}"],
          f"s_lshl_b32 s{sMS}, s{sMS}, 10", f"s_mul_i32 s{sT1}, s{sT1}, {8*16*4*4096}", f"s_add_u32 s{sMS}, s{sMS}, s{sT1}", f"s_lshl_b32 s{sT2}, s{sT3}, 3",
          f"s_add_u32 s{sMS}, s{sMS}, s{sT2}", f"s_add_u32 s{sMS}, s{sMS}, {WS_P16}"], e0, eM - 4)
    adds([[f"s_lshl_b32 s{sPA}, s{sTILE}, 2", f"s_add_u32 s{sPA}, s{sPA}, s{sW}"], f"s_lshl_b32 s{sPA}, s{sPA}, 15", f"s_lshl_b32 s{sT0}, s{sJ}, 10", f"s_add_u32 s{sPA}, s{sPA}, s{sT0}",
          f"s_add_u32 s{sPA}, s{sPA}, {WS_P8 + 16384*par}", f"s_lshl_b32 s{sDA}, s{sJ}, 4", f"s_add_u32 s{sDA}, s{sDA}, {320*par}",
          f"s_lshl_b32 s{sTOK}, s{sTILE}, 7", f"s_lshl_b32 s{sT0}, s{sW}, 5", f"s_add_u32 s{sTOK}, s{sTOK}, s{sT0}",
          f"v_add_u32 v{PE}, s{sTOK}, v{LT}", f"v_lshlrev_b32 v{PD}, 2, v{LQ}", f"v_add_u32 v{PD}, s{sDA}, v{PD}", f"v_mul_u32_u24 v{PE}, 576, v{PE}",
          f"v_add_u32 v{PE}, v{PE}, v{PD}", f"v_lshlrev_b32 v{PX}, 1, v{PE}", f"v_lshlrev_b32 v{PD}, 1, v{PD}", f"v_lshlrev_b32 v{PE}, 2, v{PE}",
          f"v_accvgpr_read_b32 v{GREG}, a249", f"v_accvgpr_read_b32 v{GREG+1}, a250"])
    def aux(base, dcol):
        add([f"s_mov_b32 s{sT0}, {2*dcol}", f"buffer_load_dwordx2 {vr(base, 2)}, v{PX}, {sr(S_X)}, s{sT0} offen"])
        add([f"s_mov_b32 s{sT1}, {2*dcol + 18432}", f"buffer_load_dwordx2 {vr(base+2, 2)}, v{PX}, {sr(S_X)}, s{sT1} offen"])
        add([f"s_mov_b32 s{sT0}, {2*dcol}", f"buffer_load_dwordx2 {vr(base+4, 2)}, v{PD}, {sr(S_DS)}, s{sT0} offen"])
    aux(T, 0); aux(T + 6, 128)
    MA = T + 12
    adds([[f"s_lshr_b32 s{sT0}, s{sSLICE}, 2", f"s_lshl_b32 s{sTOK}, s{sTILE}, 7", f"s_lshl_b32 s{sT0}, s{sT0}, 5", f"s_add_u32 s{sTOK}, s{sTOK}, s{sT0}", f"s_lshl_b32 s{sT2}, s{sT3}, 4"],
          f"s_add_u32 s{sTOK}, s{sTOK}, s{sT2}", f"s_lshl_b32 s{sM_}, s{sM_}, 4", f"s_add_u32 s{sM_}, s{sM_}, 256",
          f"v_add_u32 v{MX}, s{sTOK}, v{LT}", f"v_lshlrev_b32 v{MA+2}, 2, v{LQ}", f"v_add_u32 v{MA+2}, s{sM_}, v{MA+2}",
          f"v_mul_u32_u24 v{ME}, 576, v{MX}", f"v_add_u32 v{ME}, v{ME}, v{MA+2}", f"v_lshlrev_b32 v{MA}, 1, v{ME}", f"v_lshlrev_b32 v{MA+2}, 1, v{MA+2}",
          f"v_lshlrev_b32 v{MX}, 2, v{MX}", f"v_lshlrev_b32 v{ME}, 2, v{ME}",
          f"buffer_load_dwordx2 {vr(MA, 2)}, v{MA}, {sr(S_X)}, 0 offen", f"buffer_load_dwordx2 {vr(MA+2, 2)}, v{MA+2}, {sr(S_DS)}, 0 offen"], e0, eM - 2)
    add(f"s_mov_b32 s{sT1}, {WS_G}", e0, eM)
    add([I(f"v_cmp_le_u32 vcc, 5, v{FD}"), I(f"s_or_b64 vcc, vcc, s[{mALL}:{mALL+1}]"), I("s_cmp_eq_u64 vcc, -1"), I(f"s_cselect_b32 s{sRM}, 1, 0"),
         I(f"s_cselect_b32 s{sSRC}, s{sMS}, 0x7ff00000"), I(f"s_cselect_b32 s{sT0}, s{sT1}, 0x7ff00000")], eM, eM + 8)
    add(f"buffer_load_dword v{MX+1}, v{MX}, {sr(S_WS)}, s{sT0} offen sc1", eM)
    for j in range(8):
        add(f"buffer_load_dwordx2 {ar(MLA+2*j, 2)}, v{VST}, {sr(S_WS)}, s{sSRC} offen sc1", eM)
        if j < 7: add(f"s_add_u32 s{sSRC}, s{sSRC}, {16*4*4096}", eM)
    adds(skip_init(DA, T, T + 4, GREG) + skip_init(DA + 4, T + 2, T + 4, GREG + 1) + skip_init(DB, T + 6, T + 10, GREG) + skip_init(DB + 4, T + 8, T + 10, GREG + 1), eM)
    EM0, EM1 = T, T + 1
    adds([f"v_lshrrev_b32 v{EM1}, 2, v{LT}", f"v_xor_b32 v{T+3}, v{EM1}, v{LQ}", f"v_and_b32 v{EM1}, 1, v{LT}", f"v_lshlrev_b32 v{EM1}, 4, v{EM1}",
          f"v_mov_b32 v{T+2}, 0x3f80", f"v_lshlrev_b32 v{EM1}, v{EM1}, v{T+2}", [f"v_cmp_eq_u32 vcc, 0, v{T+3}", f"v_cndmask_b32 v{EM1}, 0, v{EM1}, vcc"],
          f"v_and_b32 v{EM0}, 2, v{LT}", [f"v_cmp_eq_u32 vcc, 0, v{EM0}", f"v_cndmask_b32 v{EM0}, 0, v{EM1}, vcc", f"v_cndmask_b32 v{EM1}, v{EM1}, 0, vcc"],
          f"v_mov_b32 v{T+2}, 0"]
         + [f"v_accvgpr_write_b32 a{r}, v{EM0}" for r in (EII, EII + 2, E0, E1 + 2)] + [f"v_accvgpr_write_b32 a{r}, v{EM1}" for r in (EII + 1, EII + 3, E0 + 1, E1 + 3)]
         + [f"v_accvgpr_write_b32 a{r}, v{T+2}" for r in (E0 + 2, E0 + 3, E1, E1 + 1)], eM)
    sR2 = Stream("red2", 1)
    sR2.add(f"buffer_load_dword v{FD}, v{FA}, {sr(S_WS)}, 0 offen sc1", eM - 85, eM - 80)
    return sR, sR2


def final_reduce(opt, par, XF, XT, XD, slow):
    o = []
    A = lambda *x: o.extend(expand(list(x)))
    tst = lambda i: A(I(("s_memrealtime" if opt.get("ts") == "5" else "s_memtime") + " s[100:101]"), I("s_waitcnt lgkmcnt(0)"), I(f"v_writelane_b32 v255, s100, {i}")) if (opt.get("ts") and (opt.get("ts") != "4" or i == 52)) else None
    OST = opt.get("ost", " nt")
    MA = T + 12
    def flagst(val): A(f"v_mov_b32 v{XT}, {val}", f"buffer_store_dword v{XT}, v{XF}, {sr(S_WS)}, 0 offen sc1")
    ld = f"buffer_load_dword v{FD}, v{FA}, {sr(S_WS)}, 0 offen sc1"
    def spin(name, val, mask, after):
        cond = [f"v_cmp_le_u32 vcc, {val}, v{FD}", f"s_or_b64 vcc, vcc, s[{mask}:{mask+1}]"]
        slow.extend([I(f"L_slow_{name}{par}:"), I(f"s_mov_b32 s{sT2}, 0"), I(f"L_slowl_{name}{par}:"), I(ld), I("s_waitcnt vmcnt(0)"),
                     I(cond[0]), I("s_nop 4"), I(cond[1]), I("s_cmp_eq_u64 vcc, -1"), I(f"s_cbranch_scc1 L_slowd_{name}{par}"),
                     I(f"s_add_u32 s{sT2}, s{sT2}, 1"), I(f"s_cmp_lt_u32 s{sT2}, 0x40000"), I(f"s_cbranch_scc1 L_slowl_{name}{par}"), I(f"L_slowd_{name}{par}:")]
                    + expand(after) + [I("s_waitcnt vmcnt(0)"), I(f"s_branch L_back_{name}{par}")])
        return cond
    def l8(dst, extra):
        r = [f"s_add_u32 s{sSRC}, s{sPA}, {extra}"]
        for j in range(8):
            r.append(f"buffer_load_dwordx4 {vr(dst+4*j)}, v{VST}, {sr(S_WS)}, s{sSRC} offen sc1")
            if j < 7: r.append(f"s_add_u32 s{sSRC}, s{sSRC}, {16*4*32768}")
        return r
    def finish(src, dst, dcol):
        for j in range(8):
            for n in range(2): A(mf(vr(dst + 4*n), ar((E0, E1)[n]), vr(src + 4*j), vr(dst + 4*n)))
        A(f"s_mov_b32 s{sT0}, {4*dcol}", f"s_mov_b32 s{sT1}, {4*dcol + 36864}",
          f"buffer_store_dwordx4 {vr(dst)}, v{PE}, {sr(S_OUT)}, s{sT0} offen{OST}", f"buffer_store_dwordx4 {vr(dst+4)}, v{PE}, {sr(S_OUT)}, s{sT1} offen{OST}")
    tst(52)
    A(WaitTag("pstA"), "s_barrier"); flagst(6)
    tst(53)
    redo = [f"s_mov_b32 s{sSRC}, s{sMS}", f"s_mov_b32 s{sT0}, {WS_G}", f"buffer_load_dword v{MX+1}, v{MX}, {sr(S_WS)}, s{sT0} offen sc1"]
    for j in range(8):
        redo.append(f"buffer_load_dwordx2 {ar(MLA+2*j, 2)}, v{VST}, {sr(S_WS)}, s{sSRC} offen sc1")
        if j < 7: redo.append(f"s_add_u32 s{sSRC}, s{sSRC}, {16*4*4096}")
    spin("M", 5, mALL, redo)
    A(WaitRegs([f"a{MLA+j}" for j in range(16)] + [f"v{MX+1}"]), f"s_cmp_eq_u32 s{sRM}, 1", f"s_cbranch_scc0 L_slow_M{par}", I(f"L_back_M{par}:"))
    A(ld)
    A(f"s_cmp_lt_u32 s{sW}, 2", f"s_cselect_b32 s{sT0}, 1.0, 0", f"v_mul_f32 v{MX+1}, s{sT0}, v{MX+1}")
    A(skip_init(MS, MA, MA + 2, MX + 1))
    for j in range(4): A(mf(vr(MS), ar(EII), ar(MLA + 4*j), vr(MS)))
    A(f"s_and_b32 s{sT0}, s{sW}, 1", f"s_lshl_b32 s{sT0}, s{sT0}, 10", f"v_add_u32 v{MA}, s{sT0}, v{VST}",
      f"s_cmp_ge_u32 s{sW}, 2", f"s_cselect_b32 s{sT1}, 0, 2048", f"v_add_u32 v{MA+1}, s{sT1}, v{MA}")
    A(I(f"ds_write_b128 v{MA+1}, {vr(MS)}", tag="pmx"))
    A(WaitTag("pstB", "pmx"), "s_barrier"); flagst(7)
    tst(54)
    A(f"ds_read_b128 {vr(MX)}, v{MA}")
    cond = spin("PA", 6, mPAR, [])
    A(*cond, "s_cmp_eq_u64 vcc, -1", f"s_cbranch_scc0 L_slow_PA{par}", I(f"L_back_PA{par}:"))
    A(l8(32, 0)); A(ld)
    tst(55)
    for j in range(4): A(f"v_add_f32 v{MS+j}, v{MS+j}, v{MX+j}")
    A(f"s_cmp_lt_u32 s{sW}, 2", f"s_cselect_b32 s{sT0}, 0, 0x7ff00000", f"buffer_store_dwordx4 {vr(MS)}, v{ME}, {sr(S_OUT)}, s{sT0} offen{OST}")
    finish(32, DA, 0)
    tst(56)
    cond = spin("PB", 7, mPAR, [])
    A(*cond, "s_cmp_eq_u64 vcc, -1", f"s_cbranch_scc0 L_slow_PB{par}", I(f"L_back_PB{par}:"))
    tst(57)
    A(l8(64, 8192))
    finish(64, DB, 128)
    return o


def build_variant(opt, par):
    stages, nS = build_stages(par)
    nSP = 5 - nS
    NST = len(stages)
    V = f"v{par}"
    pro = []
    A = lambda *x: pro.extend(expand(list(x)))
    ts = opt.get("ts")
    A(f"s_mul_i32 s{sC0}, s{sSLICE}, 9", f"s_lshr_b32 s{sC0}, s{sC0}, 1", f"s_lshl_b32 s{sC0}, s{sC0}, 3")
    A(f"s_mul_i32 s{sW6}, s{sW}, 6144", f"s_mul_i32 s{sW3}, s{sW}, 3072")
    A(voff_B(D1, 10))
    A(f"s_and_b32 s{sT3}, s{sW}, 1")
    A(f"s_mul_i32 s{sOA}, s{sC0}, 1152", f"s_lshl_b32 s{sT0}, s{sT3}, 7", f"s_add_u32 s{sOA}, s{sOA}, s{sT0}")
    A(f"s_lshl_b32 s{sT0}, s{sTILE}, 7", f"s_lshl_b32 s{sT1}, s{sW}, 5", f"s_add_u32 s{sT0}, s{sT0}, s{sT1}", f"s_mul_i32 s{sXO}, s{sT0}, 1152")
    A(f"s_lshl_b32 s{sXL}, s{sW}, 12", f"s_add_u32 s{sXL}, s{sXL}, {XBASE}")
    if ts: A("s_memtime s[100:101]", "s_waitcnt lgkmcnt(0)", "v_mov_b32 v255, 0", "v_writelane_b32 v255, s100, 0", "s_memrealtime s[100:101]")
    A("s_waitcnt lgkmcnt(0)")
    if ts: A("v_writelane_b32 v255, s100, 61")
    A(srd(S_X, "s64", "s65", 2359296))
    A(f"s_cmp_lt_u32 s{sW}, 2")
    A(f"s_cselect_b32 s{S_B}, s70, s72", f"s_cselect_b32 s{S_B+1}, s71, s73", f"s_mov_b32 s{S_B+2}, 663552", f"s_mov_b32 s{S_B+3}, 0x20000")

    def dma_items(k):
        st = stages[k]
        items = [[x] for x in st.pre] + [[f"s_add_u32 m0, s{st.wq}, {slot_base(k)}"]]
        for j, (v, s_, so) in enumerate(st.pieces):
            if j == 4: items.append([f"s_add_u32 m0, s{st.wq}, {slot_base(k) + 4096}"])
            imm = 1024 * (j % 4)
            items.append([I(f"buffer_load_dwordx4 v{v}, {sr(s_)}, s{so} offen" + (f" offset:{imm}" if imm else "") + " lds", tag=f"st{k}")])
        return items
    def xdma(j):
        items = [[f"s_add_u32 s{sOB}, s{sXO}, {128*j}"], [f"s_add_u32 m0, s{sXL}, {16384*XPOS[j]}"]]
        for g in range(4):
            items.append([I(f"buffer_load_dwordx4 v{D1+g}, {sr(S_X)}, s{sOB} offen" + (f" offset:{1024*g}" if g else "") + " lds", tag=f"x{j}")])
        return items
    XV = TA; XV2 = 66
    def xreads(j):
        p_ = XPOS[j]
        return [I(f"ds_read_b128 {xfrag(2*j+h, n)}, v{(XV if p_ < 3 else XV2)+h} offset:{16384*(p_ % 3) + 2048*n}", tag=f"xr{j}") for h in range(2) for n in range(2)]

    PLRE, PLIM, PLDT = T, T + 1, T + 2
    PFL = opt.get("pf", " sc1")
    oob = hex(OOB)
    vm = []
    if opt.get("xpf", "0") == "1":
        vm += [[f"v_and_b32 v12, 15, {L}", f"v_mul_u32_u24 v12, 1152, v12", f"v_lshrrev_b32 v13, 4, {L}", f"v_lshlrev_b32 v13, 7, v13", f"v_add_u32 v12, v12, v13",
                f"s_add_u32 s100, s{sXO}, {16*1152*par}", f"buffer_load_dword a244, v12, {sr(S_X)}, s100 offen{PFL}"]]
        vm += [[f"buffer_load_dword a245, v12, {sr(S_X)}, s100 offen offset:512{PFL}"]]
        vm += [[f"v_mov_b32 v13, {oob}", f"v_cmp_gt_u32 vcc, 16, {L}", f"v_cndmask_b32 v12, v13, v12, vcc",
                f"buffer_load_dword a246, v12, {sr(S_X)}, s100 offen offset:1024{PFL}"]]
    vm += dma_items(0)
    vm += xdma(0) + xdma(1)
    vm += [[f"v_lshlrev_b32 v{VST}, 4, {L}", f"v_min_u32 v8, 47, {L}", f"v_lshlrev_b32 v{VCH}, 3, v8", f"v_add_u32 v9, s{sC0}, v8", "v_lshlrev_b32 v9, 1, v9"]
           + srd(S_P, "s66", "s67", 1152) + [f"buffer_load_ushort v{PLRE}, v9, {sr(S_P)}, 0 offen"]]
    vm += [srd(56, "s68", "s69", 1152) + [f"buffer_load_ushort v{PLIM}, v9, s[56:59], 0 offen"]]
    vm += [srd(60, "s78", "s79", 1152) + [f"buffer_load_ushort v{PLDT}, v9, s[60:63], 0 offen"]]
    vm += [srd(S_P, "s90", "s91", 1152) + [f"s_add_u32 m0, s{sW3}, {PRIV}", "s_nop 0", I(f"buffer_load_dwordx4 v{VST}, {sr(S_P)}, 0 offen lds", tag="gw")]]
    vm += [[I(f"buffer_load_dwordx4 v{VST}, {sr(S_P)}, 0 offen offset:1024 lds", tag="gw")]]
    vm1 = vm; vm = []
    vm += xdma(2) + xdma(3) + dma_items(1)
    if opt.get('x45', '1') == '1': vm += xdma(4) + xdma(5)
    vm2 = vm; vm = []
    PV = 12
    vm += [[f"s_cmp_lt_u32 s{sW}, 2", f"s_cselect_b32 s{S_W1}, s84, s86", f"s_cselect_b32 s{S_W1+1}, s85, s87", f"s_mov_b32 s{S_W1+2}, 5308416", f"s_mov_b32 s{S_W1+3}, 0x20000"]]
    if opt.get("nocpf") is None:
        vm += [[f"s_getpc_b64 s[100:101]", I(f"L_pc{par}:"),
                f"s_lshl_b32 s{sT0}, s{sTILE}, 2", f"s_add_u32 s{sT0}, s{sT0}, s{sW}", f"s_mul_i32 s{sT0}, s{sT0}, 1152",
                f"v_lshlrev_b32 v12, 7, {L}", f"v_add_u32 v12, s{sT0}, v12", f"v_min_u32 v12, CODE_SPAN{par}, v12", f"v_cmp_gt_u32 vcc, 9, {L}",
                "s_and_saveexec_b64 s[62:63], vcc", f"global_load_dword a247, v12, s[100:101]", "s_mov_b64 exec, s[62:63]"]]
    fullcol = 64 * par; halfcol = 512 if par == 0 else 0
    vm += [[f"s_lshl_b32 s{sT4}, s{sTILE}, 1", f"s_add_u32 s{sT4}, s{sT4}, s{sT3}"]]
    if opt.get("nopf") is None and opt.get("pfb", "1") == "1":
        vm += [[
                f"s_mul_i32 s100, s{sT4}, {14*128}", f"s_mul_i32 s{sT0}, s{sC0}, 1152", f"s_add_u32 s100, s100, s{sT0}",
                f"v_lshlrev_b32 v{PV}, 7, {L}", f"v_mov_b32 v{PV+1}, {oob}", f"v_cmp_gt_u32 vcc, 14, {L}", f"v_cndmask_b32 v{PV}, v{PV+1}, v{PV}, vcc",
                f"buffer_load_dword a248, v{PV}, {sr(S_B)}, s100 offen{PFL}"]]
    if opt.get("nopf") is None and opt.get("pfw", "1") == "1":
        vm += [[f"v_mul_u32_u24 v{PV}, 57, {L}", f"v_lshrrev_b32 v{PV}, 10, v{PV}", f"v_mul_u32_u24 v{PV+1}, 18, v{PV}", f"v_sub_u32 v{PV+1}, {L}, v{PV+1}",
                f"v_mul_u32_u24 v{PV+1}, 9216, v{PV+1}", f"v_mul_i32_i24 v{PV}, {fullcol - halfcol}, v{PV}", f"v_add_u32 v{PV}, {halfcol}, v{PV}",
                f"v_add_u32 v{PV}, v{PV}, v{PV+1}",
                f"v_mov_b32 v{PV+1}, {oob}", f"v_cmp_gt_u32 vcc, 36, {L}", f"v_cndmask_b32 v{PV}, v{PV+1}, v{PV}, vcc",
                f"s_mul_i32 s100, s{sT4}, {18*9216}", f"s_mul_i32 s{sT0}, s{sSLICE}, 576", f"s_add_u32 s100, s100, s{sT0}",
                f"buffer_load_dword a251, v{PV}, {sr(S_W1)}, s100 offen{PFL}"]]
    fill = []
    F = lambda *x: fill.extend(list(x))
    F(*base_R2(14))
    F(f"v_add_u32 v{XV}, s{sXL}, v{RB[0]}", f"v_add_u32 v{XV+1}, s{sXL}, v{RB[1]}", f"v_add_u32 v{XV2}, 49152, v{XV}", f"v_add_u32 v{XV2+1}, 49152, v{XV+1}")
    F(f"v_lshrrev_b32 v3, 4, {L}", f"v_lshlrev_b32 v{GWB}, 4, v3", f"v_add_u32 v{GWB}, s{sW3}, v{GWB}", f"v_add_u32 v{GWB}, {PRIV}, v{GWB}")
    F(*voff_W1half(D2, 14))
    F(*base_T64(P1, 14))
    F(f"s_mul_i32 s{sT0}, s{sSLICE}, 576", f"s_mul_i32 s{sT1}, s{sT3}, {48*9216}", f"s_add_u32 s{sW1F}, s{sT0}, s{sT1}", f"s_add_u32 s{sW1F}, s{sW1F}, {fullcol}",
      f"s_mul_i32 s{sT1}, s{sT3}, {96*9216}", f"s_add_u32 s{sW1H}, s{sT0}, s{sT1}", f"s_add_u32 s{sW1H}, s{sW1H}, {halfcol}")
    F([f"s_cmp_lt_u32 s{sW}, 2", f"s_cselect_b32 s{S_C}, s74, s76", f"s_cselect_b32 s{S_C+1}, s75, s77"], f"s_mov_b32 s{S_C+2}, 663552", f"s_mov_b32 s{S_C+3}, 0x20000")
    F(*srd(S_WD, "s88", "s89", 5308416))
    F(*srd(S_WS, "s96", "s97", WS_END + (1 << 19) * bool(ts)))
    F(f"s_mul_i32 s{sT0}, s{sSLICE}, 6144", f"s_add_u32 s{sT0}, s{sT0}, {WS_S}", [f"s_add_u32 s{S_S}, s96, s{sT0}", f"s_addc_u32 s{S_S+1}, s97, 0"],
      f"s_mov_b32 s{S_S+2}, 6144", f"s_mov_b32 s{S_S+3}, 0x20000")
    F(*srd(S_DBG, "s94", "s95", 256))
    nfill_early = len(fill)
    late = []
    G = lambda *x: late.extend(list(x))
    G(f"s_lshr_b32 s{sT0}, s{sSLICE}, 1", f"s_mul_i32 s{sT0}, s{sT0}, {576*1152}",
      f"s_mul_i32 s{sT1}, s{sT3}, {48*1152}", f"s_lshr_b32 s{sT2}, s{sW}, 1", f"s_lshl_b32 s{sT2}, s{sT2}, 7",
      f"s_add_u32 s{sWD2}, s{sT0}, s{sT1}", f"s_add_u32 s{sWD2}, s{sWD2}, s{sT2}",
      f"s_add_u32 s{sT0}, s{sT0}, {288*1152*par}", f"s_mul_i32 s{sT1}, s{sW}, {48*1152}", f"s_add_u32 s{sWD1}, s{sT0}, s{sT1}",
      f"s_mul_i32 s{sT1}, s{sW}, {24*1152}", f"s_add_u32 s{sWD1B}, s{sT0}, s{sT1}", f"s_add_u32 s{sWD1B}, s{sWD1B}, {192*1152}")
    G(f"s_add_u32 s{sC0P}, s{sC0}, {32 if par == 0 else -32 & 0xffffffff}")
    G(f"s_mul_i32 s{sT1}, s{sT3}, {64*1152}", f"s_lshl_b32 s{sT2}, s{sC0}, 1", f"s_add_u32 s{sC2}, s{sT1}, s{sT2}",
      f"s_lshl_b32 s{sT0}, s{sC0P}, 1", f"s_add_u32 s{sC2P}, s{sT1}, s{sT0}",
      f"s_mul_i32 s{sT1}, s{sT3}, {32*1152}", f"s_add_u32 s{sC1}, s{sT1}, s{sT2}")
    G(f"s_lshr_b32 s{sP8}, s{sSLICE}, 1", f"s_lshl_b32 s{sP8}, s{sP8}, 4", f"s_add_u32 s{sP8}, s{sP8}, s{sTILE}", f"s_lshl_b32 s{sP8}, s{sP8}, 2",
      f"s_add_u32 s{sP8}, s{sP8}, s{sW}", f"s_lshl_b32 s{sP8}, s{sP8}, 15", f"s_add_u32 s{sP8}, s{sP8}, {WS_P8 + 16384*par}")
    G(f"s_lshl_b32 s{sP16}, s{sSLICE}, 4", f"s_add_u32 s{sP16}, s{sP16}, s{sTILE}", f"s_lshl_b32 s{sP16}, s{sP16}, 2", f"s_add_u32 s{sP16}, s{sP16}, s{sW}",
      f"s_lshl_b32 s{sP16}, s{sP16}, 12", f"s_add_u32 s{sP16}, s{sP16}, {WS_P16}")
    G(f"s_lshl_b32 s{sHO}, s{sTILE}, 4", f"s_add_u32 s{sHP}, s{sHO}, s{sSLICE}", f"s_lshl_b32 s{sHP}, s{sHP}, 2", f"s_add_u32 s{sHP}, s{sHP}, s{sW}",
      f"s_mul_i32 s{sHO}, s{sHP}, {24*1024}", f"s_add_u32 s{sHO}, s{sHO}, {WS_H}",
      f"s_add_u32 s{sHP}, s{sHO}, {(4*24*1024 if par == 0 else -4*24*1024) & 0xffffffff}")
    G(f"s_bfm_b64 s[{sMASK}:{sMASK+1}], s{sTILE}, 0", f"s_not_b64 s[{sMASK}:{sMASK+1}], s[{sMASK}:{sMASK+1}]")
    for k, sm in ((1, sM1), (2, sM2), (3, sM3)):
        G([f"s_cmp_ge_u32 s{sW}, {k}", f"s_cselect_b32 s{sm}, 1.0, 0"])
    if opt.get("nopf") is None:
        Q = TS
        G(f"v_mul_u32_u24 v{Q}, 57, {L}", f"v_lshrrev_b32 v{Q}, 10, v{Q}", f"v_mul_u32_u24 v{Q+1}, 18, v{Q}", f"v_sub_u32 v{Q+1}, {L}, v{Q+1}",
          f"v_mul_u32_u24 v{Q+1}, 9216, v{Q+1}", f"v_lshlrev_b32 v{Q}, 7, v{Q}", f"v_add_u32 v{Q}, {fullcol + 128}, v{Q}", f"v_add_u32 v{Q+1}, v{Q+1}, v{Q}",
          f"v_mov_b32 v{Q+2}, {oob}", f"v_cmp_gt_u32 vcc, 54, {L}", f"v_cndmask_b32 v{Q+1}, v{Q+2}, v{Q+1}, vcc", f"v_accvgpr_write_b32 a253, v{Q+1}")
        G(f"v_lshlrev_b32 v{Q}, 7, {L}", f"v_cmp_gt_u32 vcc, 41, {L}", f"v_cndmask_b32 v{Q}, v{Q+2}, v{Q}, vcc", f"v_accvgpr_write_b32 a254, v{Q}")
        G(f"v_lshrrev_b32 v{Q}, 1, {L}", f"v_mul_u32_u24 v{Q}, 1152, v{Q}", f"v_and_b32 v{Q+1}, 1, {L}", f"v_mul_u32_u24 v{Q+1}, 92, v{Q+1}",
          f"v_add_u32 v{Q}, v{Q}, v{Q+1}", f"v_cmp_gt_u32 vcc, 36, {L}", f"v_cndmask_b32 v{Q}, v{Q+2}, v{Q}, vcc", f"v_accvgpr_write_b32 a255, v{Q}")
    LRE, LIM, DT, E1, R1, M_, A_ = T + 3, T + 4, T + 5, T + 6, T + 7, T + 20, T + 21
    TB = T + 8; CH = T + 22
    G(f"v_lshlrev_b32 v{LRE}, 16, v{PLRE}", f"v_lshlrev_b32 v{LIM}, 16, v{PLIM}", f"v_lshlrev_b32 v{DT}, 16, v{PLDT}")
    G(f"v_mul_f32 v{DT}, {hex(LOG2E)}, v{DT}", f"v_exp_f32 v{DT}, v{DT}", f"v_lshrrev_b32 v{CH}, 3, v{VCH}",
      f"v_cvt_pk_bf16_f32 v{DT}, v{DT}, v{DT}", f"v_lshlrev_b32 v{DT}, 16, v{DT}")
    G(f"v_mul_f32 v{E1}, v{DT}, v{LRE}", f"v_mul_f32 v{R1}, v{DT}, v{LIM}", f"v_mul_f32 v{E1}, {hex(LOG2E)}, v{E1}", f"v_mul_f32 v{R1}, {hex(INV2PI)}, v{R1}")
    def cpow(dre, dim, nsrc):
        return [f"v_mul_f32 v{M_}, {nsrc}, v{E1}", f"v_mul_f32 v{A_}, {nsrc}, v{R1}", f"v_exp_f32 v{M_}, v{M_}", f"v_fract_f32 v{A_}, v{A_}",
                f"v_cos_f32 v{dre}, v{A_}", f"v_sin_f32 v{dim}, v{A_}", f"v_mul_f32 v{dre}, v{M_}, v{dre}", f"v_mul_f32 v{dim}, v{M_}, v{dim}"]
    G(*cpow(TB, TB + 1, "1.0")); G(*cpow(TB + 2, TB + 3, "2.0"))
    G(f"s_mov_b32 s{sT0}, 0x40400000"); G(*cpow(TB + 4, TB + 5, f"s{sT0}"))
    G(*cpow(TB + 6, TB + 7, "4.0"))
    G(f"v_mov_b32 v{A4}, v{TB+6}", f"v_mov_b32 v{A4+1}, v{TB+7}")
    G(f"s_mov_b32 s{sT0}, 0x42000000"); G(*cpow(A32, A32 + 1, f"s{sT0}"))
    G(f"s_mov_b32 s{sT0}, 0x43000000"); G(*cpow(A128, A128 + 1, f"s{sT0}"))
    G(f"s_lshl_b32 s{sT0}, s{sW}, 5", f"v_cvt_f32_u32 v{T+23}, s{sT0}"); G(*cpow(PW, PW + 1, f"v{T+23}"))
    KC = T
    G(f"v_add_f32 v{M_}, -1.0, v{TB}", f"v_mul_f32 v{A_}, v{LRE}, v{LRE}", f"v_fmac_f32 v{A_}, v{LIM}, v{LIM}", f"v_rcp_f32 v{A_}, v{A_}",
      f"v_mul_f32 v{KC}, v{M_}, v{LRE}", f"v_fmac_f32 v{KC}, v{TB+1}, v{LIM}",
      f"v_mul_f32 v{KC+1}, v{TB+1}, v{LRE}", f"v_fma_f32 v{KC+1}, -v{M_}, v{LIM}, v{KC+1}",
      f"v_mul_f32 v{KC}, v{KC}, v{A_}", f"v_mul_f32 v{KC+1}, v{KC+1}, v{A_}")
    G(f"v_cmp_gt_u32 vcc, {32 + 8*par}, v{CH}", f"v_mul_u32_u24 v{CH}, 48, v{CH}", f"v_add_u32 v{CH}, {TAB}, v{CH}",
      f"v_cndmask_b32 v{KC}, 0, v{KC}, vcc", f"v_cndmask_b32 v{KC+1}, 0, v{KC+1}, vcc")
    G(f"v_mov_b32 v{KC+2}, 0", f"v_mov_b32 v{KC+3}, 0")
    G(f"ds_write_b128 v{CH}, {vr(TB)}", f"ds_write_b128 v{CH}, {vr(TB+4)} offset:16", f"ds_write_b128 v{CH}, {vr(KC)} offset:32")
    per = int(opt.get("per", 12))
    if opt.get("lateinpro", "0") == "1":
        A(interleave(vm1, fill, per)); A(interleave(vm2, late, int(opt.get("per2", 14)))); late = []
        A(interleave(vm, [], 0))
    else:
        if opt.get("pffirst", "0") == "1":
            A(interleave(vm, [], 0)); A(interleave(vm1 + vm2, fill, per))
        elif opt.get("pffirst", "0") == "2":
            n0 = len(dma_items(0)) + 2 * len(xdma(0))
            A(interleave(vm1[:n0], fill[:57], per)); A(interleave(vm, [], 0)); A(interleave(vm1[n0:] + vm2, fill[57:], per))
        else:
            A(interleave(vm1 + vm2 + vm, fill, per))

    units, ustage, u0 = [], [], []
    for k, st in enumerate(stages):
        u0.append(len(units))
        for un in st.units: units.append(un); ustage.append(k)
    NU = len(units); u0.append(NU)

    def read_ins(u):
        un = units[u]; k = ustage[u]
        o = []; d = afrag(u)
        for (op, nreg, (kind, idx), off) in un["reads"]:
            s_ = setof(k)
            if kind == "abs": b, o2 = idx, off
            else:
                b = {"R": lambda: RB[2*s_ + idx], "T64": lambda: T64B[2*s_ + idx], "T128": lambda: T128B[4*s_ + idx], "C": lambda: CB[s_]}[kind]()
                o2 = off + slot_rel(k)
            assert o2 < 65536
            o.append(I(f"{op} {ar(d, nreg)}, v{b}" + (f" offset:{o2}" if o2 else ""))); d += nreg
        return o

    DEPTH = int(opt.get('depth', 6)); WE = int(opt.get('we', 4)); WOFF = int(opt.get('woff', 1)); RR = int(opt.get('rr', 0))
    def stamp(i):
        op = "s_memrealtime" if ts == "5" and i not in (59,) else "s_memtime"
        return [I(f"{op} s[100:101]"), I("s_waitcnt lgkmcnt(0)"), I(f"v_writelane_b32 v255, s100, {i}")]
    kH = 5; kF = lambda c: 8 + 6 * c; kPA = 32; kPM = 40
    kWB = kF(0) + 1
    kHA = kF(3) + int(opt.get('kha', 2))
    kHB = int(opt.get('khb', 38))
    kHC = int(opt.get('khc', 43))
    FUSE = opt.get('fuse', '1') == '1'
    kFM = 47
    BTAG = {kFM: ('pstM',) if FUSE else (), 1: ('xr2',), 4: ('xr8', 'xr7', 'xr6'), kWB: ('wtot',), kHA: ('hstA',), kHB: ('hstB',), kHC: ('hstC',)}
    slots = []; bar_mf = {}
    fs = [int(x) for x in opt.get("fs", "").split(",") if x]
    for u in range(NU):
        un = units[u]; fr = ar(afrag(u))
        rd = read_ins(u + DEPTH) if u + DEPTH < NU else []
        pre = []
        kn = ustage[u + DEPTH] if u + DEPTH < NU else None
        if kn is not None and u + DEPTH == u0[kn]:
            if opt.get("splitbar", "1") == "1" and slots:
                slots[-1].pre = slots[-1].pre + [WaitTag(f"st{kn}", *BTAG.get(kn, ()))]
                pre += [I("s_barrier")]
            else:
                pre += [WaitTag(f"st{kn}", *BTAG.get(kn, ())), I("s_barrier")]
            if ts == "1" or (ts == "4" and kn in (5, 32)) or (ts == "5" and kn in (1, 5, 8, 14, 20, 26, 32, 36, 40, 43, 47)) or (ts == "2" and kn in (1, 2, 3, 4, 5, 8, 14, 20, 26, 32, 35, 40, 43, 47)): pre += stamp(kn + 1)
            bar_mf[kn] = 2 * u
        if ts == "3":
            k_ = ustage[u]
            if k_ in fs and (u - u0[k_]) % 3 == 0 and (u - u0[k_]) // 3 < 8:
                j_ = (u - u0[k_]) // 3
                pre += [I(f"s_memtime s[{78+2*j_}:{79+2*j_}]")]
            if k_ - 1 in fs and u == u0[k_] + 2:
                base_ = 8 * fs.index(k_ - 1) + 1
                pre += [I("s_waitcnt lgkmcnt(0)")] + [I(f"v_writelane_b32 v255, s{78+2*j_}, {base_ + j_}") for j_ in range(8)]
        if (u + WOFF) % WE == 0 or u == 0:
            rg = []
            for x in range(u, min(u + (WE if (u + WOFF) % WE == 0 else WE - WOFF), NU)): rg += regs_of(ar(afrag(x)))
            pre += [WaitRegs(rg)]
        for n in range(2):
            d, a, b, c = un["mf"][n]
            txt = mf(d, a, fr, c) if un["swap"] else mf(d, fr, b, c)
            if RR and len(rd) == 2 and u % RR == RR - 2: post = rd if n == 0 else []
            else: post = rd[n:n + 1] if n < len(rd) else []
            slots.append(Slot(txt, pre if n == 0 else [], post))
    mend = lambda k: 2 * u0[k + 1] - 1
    mbeg = lambda k: 2 * u0[k]
    if ts: A(stamp(60))
    A(WaitTag("x0")); A(xreads(0)); A(WaitTag("x1")); A(xreads(1))
    A(WaitTag("st0", "gw"), "s_barrier")
    if ts: A(stamp(1))
    for u in range(DEPTH): A(read_ins(u))

    mXB = mend(4)
    XS = 2 * len(stages[0].units)
    sD = Stream("dma", 0)
    fr_of = lambda j: [r for h in range(2) for n in range(2) for r in regs_of(xfrag(2*j+h, n))]
    def xd(j, e, dl, after=None):
        if after is not None: sD.add([WaitRegs(fr_of(after))], e, dl)
        for it in xdma(j): sD.add(it, e, dl)
    def xr(j, e, dl):
        sD.add([WaitTag(f"x{j}")], e, dl)
        for r_ in xreads(j): sD.add(r_, e, dl)
    if opt.get('x45', '1') != '1':
        xd(4, 0, 8); xd(5, 0, 16)
    xr(2, 0, 14); xr(3, 0, 20)
    for it in dma_items(2): sD.add(it, 0, 34)
    xd(6, 10, bar_mf[1] + 2, after=3)
    for it in dma_items(3): sD.add(it, bar_mf[1], bar_mf[1] + 16)
    xr(4, bar_mf[1], bar_mf[1] + 22)
    xd(7, bar_mf[1] + 8, bar_mf[1] + 34, after=4)
    xr(5, bar_mf[1] + 12, bar_mf[1] + 38)
    xd(8, bar_mf[1] + 24, bar_mf[2] + 4, after=5)
    for it in dma_items(4): sD.add(it, bar_mf[2], bar_mf[2] + 20)
    xr(6, bar_mf[2], bar_mf[3] - 8); xr(7, bar_mf[2], bar_mf[3] - 2)
    for it in dma_items(5): sD.add(it, bar_mf[3], bar_mf[3] + 16)
    xr(8, bar_mf[3] + 4, bar_mf[4] - 2)
    xdone = bar_mf[4]
    prev_user = {}; dma_e = {}; dma_d = {}
    e_prev = bar_mf[3] + 16; d_prev = e_prev
    for k in range(NST):
        sl_ = slot_of(k)
        if k >= 6:
            e_ = bar_mf[prev_user[sl_] + 2] if sl_ in prev_user else bar_mf[4]
            if k in (7, 8): e_ = max(e_, bar_mf[4])
            e_ = max(e_, e_prev)
            lead = int(opt.get("lead", 75))
            if k < int(opt.get("krelax", 16)): d_ = max(min(bar_mf[k] - lead, bar_mf[k] - 2), min(d_prev + 14, bar_mf[k] - 2), e_ + 4)
            else: d_ = min(max(e_ + 44, d_prev + 14), bar_mf[k] - 2)
            d_ = min(d_, bar_mf[k] - 2)
            for it in dma_items(k): sD.add(it, e_, d_)
            dma_e[k], dma_d[k] = e_, d_
            e_prev, d_prev = e_, d_
        prev_user[sl_] = k
    clr = [[f"s_lshl_b32 s{sT0}, s{sSLICE}, 4", f"s_add_u32 s{sT0}, s{sT0}, s{sTILE}", f"s_lshl_b32 s{sT1}, s{sT0}, 7", f"s_add_u32 s{sT1}, s{sT1}, {WS_F}",
            f"s_cmp_eq_u32 s{sW}, 0", f"s_cselect_b32 s{sT2}, 1, 0"],
           f"v_cmp_gt_u32 vcc, s{sT2}, {L}", f"v_mov_b32 v{TS}, {oob}", f"v_mov_b32 v{TS+1}, s{sT1}", f"v_mov_b32 v{TS+2}, s{sT0}", f"v_mov_b32 v{TS+3}, 0",
           f"v_cndmask_b32 v{TS+1}, v{TS}, v{TS+1}, vcc", f"v_cndmask_b32 v{GWB+0 if False else TA+2}, v{TS}, v{TS+2}, vcc",
           I(f"buffer_store_dword v{TS+3}, v{TS+1}, {sr(S_WS)}, 0 offen sc1", tag="clr")]
    sP = Stream("setup", 1)
    for x in clr: sP.add(x, 0, 60)
    for x in late: sP.add(x, 0, mXB)
    sCl = Stream("clr", 1)
    sCl.add([I(f"v_mov_b32 v64, 1"), WaitTag("clr"), I(f"buffer_store_byte v64, v{TA+2}, {sr(S_DBG)}, 0 offen sc1")], bar_mf[2], bar_mf[3] + 10)
    sA = Stream("addr", 1)
    sA.extend(voff_W1full(D1, TA + 2), bar_mf[3] + 12, dma_e[kF(0)])
    common = base_list_T128(T128B, 8, TA, None)
    sA.extend(common, xdone + 1, bar_mf[kF(0)])
    for idx in range(6): sA.extend(t128_regs(idx, TA), xdone + 1, bar_mf[kF(0)])
    for idx in range(6, 12): sA.extend(t128_regs(idx, TA), mXB + 1, bar_mf[kF(0)])
    sA.extend(voff_Wd(D2, TA), max(dma_d[7], mXB + 2), dma_e[kPA])
    sA.extend([x.replace(f'v{TA+2}', f'v{CB[2]}') for x in base_C(CB[0], TA)], bar_mf[kF(0)] + 4, bar_mf[40])
    sA.extend(voff_C(D1, TA), dma_d[kPA - 1], dma_e[40])
    last_use = {}; next_use = {}
    for k in range(kF(0), kPA): last_use[setof(k)] = k
    for k in range(NST - 1, kPA - 1, -1):
        if stages[k].fmt.startswith("Wd"): next_use[setof(k)] = k
    sB = Stream("bases", 1)
    order = sorted(range(3), key=lambda s_: last_use[s_])
    sB.add(f"v_lshrrev_b32 v{TA+2}, 4, {L}", bar_mf[last_use[order[0]] + 1], bar_mf[next_use[order[0]]] - 20)
    sB.add(f"v_lshlrev_b32 v{TA+2}, 9, v{TA+2}", bar_mf[last_use[order[0]] + 1], bar_mf[next_use[order[0]]] - 20)
    for s_ in order:
        for mt in range(4):
            r_ = T128B[4 * s_ + mt]
            sB.add(f"v_sub_u32 v{r_}, v{r_}, v{TA+2}", bar_mf[last_use[s_] + 1], bar_mf[next_use[s_]])

    sE = Stream("epi", 2)
    HST = opt.get("hst", " sc1")
    def hstore(reg, K, n, tag):
        off = (K * 2 + n) * 1024
        return [I(f"s_add_u32 s{sHT}, s{sHO}, {off & ~4095}"),
                I(f"buffer_store_dwordx4 {vr(reg)}, v{VST}, {sr(S_WS)}, s{sHT} offen" + (f" offset:{off & 4095}" if off & 4095 else "") + HST, tag=tag)]
    def ffn_epi(buf, Ks, earliest, deadline, tag):
        for kk, K in enumerate(Ks):
            for n in range(2):
                o = []
                gs = [buf + (2 * kk + h) * 8 + 4 * n for h in range(2)]; us = [buf + (4 + 2 * kk + h) * 8 + 4 * n for h in range(2)]
                for h in range(2):
                    g, u_ = gs[h], us[h]
                    for r in range(4): o += [f"v_max_f32 v{g+r}, 0, v{g+r}", f"v_mul_f32 v{u_+r}, v{SF+n}, v{u_+r}"]
                    for r in range(4): o += [f"v_mul_f32 v{g+r}, v{g+r}, v{u_+r}"]
                d = us[0]
                o += [f"v_cvt_pk_bf16_f32 v{d}, v{gs[0]}, v{gs[0]+1}", f"v_cvt_pk_bf16_f32 v{d+1}, v{gs[0]+2}, v{gs[0]+3}",
                      f"v_cvt_pk_bf16_f32 v{d+2}, v{gs[1]}, v{gs[1]+1}", f"v_cvt_pk_bf16_f32 v{d+3}, v{gs[1]+2}, v{gs[1]+3}"]
                h_ = AH + 8 * K + 4 * n
                o += [f"v_accvgpr_write_b32 a{h_+j}, v{d+j}" for j in range(4)]
                sE.extend(o, earliest, deadline)
                sE.add(hstore(d, K, n, tag), earliest, deadline)
    ffn_epi(ACC[0], [8], mend(kH + 2) + 4, mbeg(kF(1)), "hstA")
    ffn_epi(ACC[1], [0, 1], mend(kF(0) + 5) + 4, mbeg(kF(2)), "hstA")
    ffn_epi(ACC[0], [2, 3], mend(kF(1) + 5) + 4, mbeg(kF(3)) - 60, "hstA")
    ffn_epi(ACC[1], [4, 5], mend(kF(2) + 5) + 4, mbeg(kPA), "hstB")
    ffn_epi(ACC[0], [6, 7], mend(kF(3) + 5) + 4, mbeg(35) - 4, "hstB")
    PST = opt.get("pst", " sc1")
    DLP = {2: bar_mf[kFM - 2] if FUSE else None, 0: None, 1: None}
    for p, k1 in ((2, 42), (0, 48), (1, 50)):
        nm = 8 if p < 2 else 4
        last = mend(k1)
        sreg = sP8 if p < 2 else sP16
        for m in range(nm):
            if p < 2:
                a = ACC[(p + 1) & 1] + m * 8
                o = []
            else:
                a = T + 8 * (m & 1)
                o = [f"v_accvgpr_read_b32 v{a+j}, a{PMACC[m]+j}" for j in range(8)]
            o += [f"v_cvt_pk_bf16_f32 v{a}, v{a}, v{a+1}", f"v_cvt_pk_bf16_f32 v{a+1}, v{a+2}, v{a+3}",
                  f"v_cvt_pk_bf16_f32 v{a+2}, v{a+4}, v{a+5}", f"v_cvt_pk_bf16_f32 v{a+3}, v{a+6}, v{a+7}"]
            sE.extend(o, last + 4, DLP[p])
            imm = 1024 * (m % 4)
            sE.add(f"buffer_store_dwordx4 {vr(a)}, v{VST}, {sr(S_WS)}, s{sreg} offen" + (f" offset:{imm}" if imm else "") + PST, last + 4, DLP[p])
            sE.q[-1][0][0].tag = "pst" + "ABM"[p]
            if m % 4 == 3: sE.add(f"s_add_u32 s{sreg}, s{sreg}, 4096", last + 4, DLP[p])

    sS = Stream("ssm", 3)
    e = [mXB + 4]
    add = lambda x, deadline=None: sS.add(x, e[0], deadline)
    def adds(lst, **kw):
        for x in lst: add(x, **kw)
    dlG = mend(kH + 2)
    G0, G1, Z = T, T + 1, T + 2
    adds([f"v_lshrrev_b32 v{G0}, 4, {L}", f"v_lshlrev_b32 v{G0}, 4, v{G0}", f"v_add_u32 v{G0}, s{sW3}, v{G0}", f"v_add_u32 v{G0}, {PRIV}, v{G0}"])
    for n in range(2): add(f"ds_write_b128 v{G0}, {vr(LG+4*n)} offset:{64*n}")
    adds([f"v_and_b32 v{G1}, 31, {L}", f"v_lshlrev_b32 v{G1}, 2, v{G1}", f"v_add_u32 v{G1}, s{sW3}, v{G1}", f"v_add_u32 v{G1}, {PRIV}, v{G1}",
          f"ds_read_b32 v{Z}, v{G1}"])
    TA1 = T + 8
    adds([f"v_and_b32 v{VT}, 15, {L}", f"v_mul_u32_u24 v{VT}, 48, v{VT}", f"v_add_u32 v{VT}, {TAB}, v{VT}"])
    for b in range(nS): add(f"ds_read_b64 {vr(TA1+2*b, 2)}, v{VT} offset:{b*768}")
    adds([f"v_cvt_pk_bf16_f32 v{Z}, v{Z}, v{Z}", f"v_lshlrev_b32 v{Z}, 16, v{Z}", f"v_mul_f32 v{Z}, {hex(LOG2E ^ 0x80000000)}, v{Z}", f"v_exp_f32 v{Z}, v{Z}",
          f"v_lshrrev_b32 v{VE}, 4, {L}",
          f"v_add_f32 v{Z}, 1.0, v{Z}", f"v_rcp_f32 v{Z}, v{Z}", f"v_mul_u32_u24 v{VE}, 384, v{VE}",
          f"v_cvt_pk_bf16_f32 v{Z}, v{Z}, v{Z}", f"v_lshlrev_b32 v{Z}, 16, v{Z}",
          f"v_sub_f32 v{T+3}, 1.0, v{Z}", f"v_cvt_pk_bf16_f32 v{T+3}, v{T+3}, v{T+3}", f"v_lshlrev_b32 v{T+3}, 16, v{T+3}", f"v_add_f32 v{T+4}, v{Z}, v{Z}",
          f"ds_write_b32 v{G1}, v{T+3} offset:128", f"ds_write_b32 v{G1}, v{T+4} offset:256", f"ds_write_b32 v{G1}, v{Z} offset:384"])
    if par == 0:
        add([f"s_lshl_b32 s{sT0}, s{sTILE}, 7", f"s_lshl_b32 s{sT1}, s{sW}, 5", f"s_add_u32 s{sT0}, s{sT0}, s{sT1}", f"s_lshl_b32 s{sT0}, s{sT0}, 2",
             f"s_add_u32 s{sT0}, s{sT0}, {WS_G}", f"s_cmp_eq_u32 s{sSLICE}, 0", f"s_cselect_b32 s{sT1}, 32, 0"])
        adds([f"v_lshlrev_b32 v{T+5}, 2, {L}", f"v_cmp_gt_u32 vcc, s{sT1}, {L}", f"v_mov_b32 v{T+6}, {oob}",
              f"v_cndmask_b32 v{T+5}, v{T+6}, v{T+5}, vcc", I(f"buffer_store_dword v{Z}, v{T+5}, {sr(S_WS)}, s{sT0} offen sc1", tag="sst")])
    adds([f"v_and_b32 v{T+7}, 15, {L}", f"v_lshlrev_b32 v{T+7}, 2, v{T+7}", f"v_add_u32 v{T+7}, s{sW3}, v{T+7}", f"v_add_u32 v{T+7}, {PRIV}, v{T+7}"])
    for n in range(2): add(f"ds_read_b32 v{SF+n}, v{T+7} offset:{128+64*n}")
    for n in range(2): add(f"ds_read_b128 {vr(LG+4*n)}, v{G0} offset:{256+64*n}")
    for n in range(2): add(f"ds_read_b32 v{T+5+n}, v{T+7} offset:{384+64*n}")
    adds([f"v_and_b32 v{VE+1}, 15, {L}", f"v_lshlrev_b32 v{VE+1}, 3, v{VE+1}", f"v_add_u32 v{VE}, v{VE}, v{VE+1}", f"v_add_u32 v{VE}, s{sW3}, v{VE}",
          f"v_add_u32 v{VE}, {PRIV}, v{VE}", f"v_add_u32 v{VE+1}, 1536, v{VE}"])
    add(WaitRegs([f"v{SF}", f"v{SF+1}"] + regs_of(vr(LG, 8))), deadline=dlG)
    adds([f"v_accvgpr_write_b32 a249, v{T+5}", f"v_accvgpr_write_b32 a250, v{T+6}"])
    for r in range(1, 4):
        for b in range(nS):
            are, aim = TA1 + 2 * b, TA1 + 2 * b + 1
            for n in range(2):
                R, Im = xb(b, 0, n), xb(b, 1, n)
                adds([f"v_fmac_f32 v{R+r}, v{are}, v{R+r-1}", f"v_fmac_f32 v{Im+r}, v{are}, v{Im+r-1}"])
            for n in range(2):
                R, Im = xb(b, 0, n), xb(b, 1, n)
                adds([f"v_fma_f32 v{R+r}, -v{aim}, v{Im+r-1}, v{R+r}", f"v_fmac_f32 v{Im+r}, v{aim}, v{R+r-1}"])
    for b in range(nS):
        for n in range(2):
            add(f"ds_write2_b32 v{VE+n}, v{xb(b,0,n)+3}, v{xb(b,1,n)+3} offset0:{32*b} offset1:{32*b+1}")
    adds([f"v_add_u32 v{VP}, s{sW3}, v{VCH}", f"v_add_u32 v{VP}, {PRIV}, v{VP}"])
    for m in range(8): add(f"ds_read_b64 {vr(T+2*m, 2)}, v{VP} offset:{384*m}")
    add([f"s_mul_i32 s{sT0}, s{sW}, 384", f"s_add_u32 s{sT0}, s{sT0}, {WTOT}"]); add(f"v_add_u32 v{TS}, s{sT0}, v{VCH}")
    for m in range(1, 8): adds(cmul_acc(T + 2*m, T + 2*m + 1, A4, A4 + 1, T + 2*m - 2, T + 2*m - 1))
    add(I(f"ds_write_b64 v{TS}, {vr(T+14, 2)}", tag="wtot"), deadline=bar_mf[kWB] - 2)
    e[0] = bar_mf[kWB]
    adds([f"v_add_u32 v{TS}, {WTOT}, v{VCH}"])
    for m in range(4): add(f"ds_read_b64 {vr(T+2*m, 2)}, v{TS} offset:{384*m}")
    add([f"s_mul_i32 s{sT0}, s{sTILE}, 384", f"s_cmp_eq_u32 s{sW}, 0", f"s_cselect_b32 s{sT1}, 48, 0"])
    adds([f"v_add_u32 v{TS+1}, s{sT0}, v{VCH}", f"v_cmp_gt_u32 vcc, s{sT1}, {L}", f"v_mov_b32 v{TS+2}, {oob}"])
    for m in range(1, 4): adds(cmul_acc(T + 2*m, T + 2*m + 1, A32, A32 + 1, T + 2*m - 2, T + 2*m - 1))
    adds([f"v_cndmask_b32 v{TS+1}, v{TS+2}, v{TS+1}, vcc"])
    add(I(f"buffer_store_dwordx2 {vr(T+6, 2)}, v{TS+1}, {sr(S_S)}, 0 offen sc1", tag="sst"))
    XF, XP, XT = P1 + 3, P1 + 4, P1 + 5
    eX = bar_mf[kF(0)] + 4
    sX_ = Stream("xch", 2)
    sX_.add([f"s_lshl_b32 s{sQ+1}, s{sSLICE}, 4", f"s_add_u32 s{sQ+1}, s{sQ+1}, s{sTILE}", f"s_lshl_b32 s{sQ+1}, s{sQ+1}, 7", f"s_add_u32 s{sQ+1}, s{sQ+1}, {WS_F}",
             f"s_cmp_eq_u32 s{sW}, 0", f"s_cselect_b32 s{sQ+2}, 1, 0"], eX, bar_mf[kWB] + 8)
    for x in [f"v_mov_b32 v{XF}, s{sQ+1}", f"v_cmp_gt_u32 vcc, s{sQ+2}, {L}", f"v_mov_b32 v{XT}, {oob}", f"v_cndmask_b32 v{XF}, v{XT}, v{XF}, vcc",
              [f"s_sub_u32 s{sQ+1}, s{sQ+1}, {WS_F}", f"s_xor_b32 s{sQ+1}, s{sQ+1}, 2048", f"s_add_u32 s{sQ+1}, s{sQ+1}, {WS_F}"], f"v_mov_b32 v{XP}, s{sQ+1}"]:
        sX_.add(x, eX, bar_mf[kWB] + 8)
    add([I(f"v_mov_b32 v{TS+3}, 1"), WaitTag("sst"), I(f"buffer_store_dword v{TS+3}, v{XF}, {sr(S_WS)}, 0 offen sc1")])
    slow = []
    def poll(emit, name, areg, dreg, cond_instrs, cnt, dbg=False):
        ld = f"buffer_load_ubyte v{dreg}, v{areg}, {sr(S_DBG)}, 0 offen sc1" if dbg else f"buffer_load_dword v{dreg}, v{areg}, {sr(S_WS)}, 0 offen sc1"
        emit(ld, False)
        emit([I(x) for x in cond_instrs] + [I("s_cmp_eq_u64 vcc, -1"), I(f"s_cbranch_scc0 L_slow_{name}{par}"), I(f"L_back_{name}{par}:")], True)
        slow.extend([I(f"L_slow_{name}{par}:"), I(f"s_mov_b32 s{cnt}, 0"), I(f"L_slowl_{name}{par}:"), I("s_sleep 1"), I(ld), I("s_waitcnt vmcnt(0)")]
                    + [I(cond_instrs[0]), I("s_nop 4")] + [I(x) for x in cond_instrs[1:]]
                    + [I("s_cmp_eq_u64 vcc, -1"), I(f"s_cbranch_scc1 L_back_{name}{par}"), I(f"s_add_u32 s{cnt}, s{cnt}, 1"), I(f"s_cmp_lt_u32 s{cnt}, 0x40000"),
                       I(f"s_cbranch_scc1 L_slowl_{name}{par}"), I(f"s_branch L_back_{name}{par}")])
    kPoll = int(opt.get("kpoll", kF(1)))
    pace_from = [len(sS.q)]
    e[0] = bar_mf[kPoll]
    adds([[f"s_lshl_b32 s{sT0}, s{sSLICE}, 4", f"s_sub_u32 s{sT1}, s{sTILE}, 256"],
          f"v_add_u32 v{TS}, s{sT0}, {L}", f"v_lshlrev_b32 v{TS+2}, 4, {L}", f"v_add_u32 v{TS+2}, s{sT1}, v{TS+2}",
          f"v_cmp_gt_u32 vcc, 16, {L}", f"v_cndmask_b32 v{TS}, v{TS+2}, v{TS}, vcc",
          f"v_mov_b32 v{TS+2}, {oob}", f"v_cmp_gt_u32 vcc, 32, {L}", f"v_cndmask_b32 v{TS}, v{TS+2}, v{TS}, vcc"])
    poll(lambda x, chk: add(x), "C", TS, TS + 1, [f"v_cmp_ne_u32 vcc, 0, v{TS+1}", f"s_or_b32 vcc_hi, vcc_hi, -1"], sT2, dbg=True)
    adds([[f"s_lshl_b32 s{sT0}, s{sSLICE}, 11", f"s_add_u32 s{sT0}, s{sT0}, {WS_F}"], f"v_lshlrev_b32 v{TS}, 7, {L}", f"v_add_u32 v{TS}, s{sT0}, v{TS}",
          f"v_cmp_gt_u32 vcc, 16, {L}", f"v_mov_b32 v{TS+2}, {oob}", f"v_cndmask_b32 v{TS}, v{TS+2}, v{TS}, vcc"])
    poll(lambda x, chk: add(x), "S", TS, TS + 1, [f"v_cmp_ne_u32 vcc, 0, v{TS+1}", f"s_or_b64 vcc, vcc, s[{sMASK}:{sMASK+1}]"], sT2)
    add([f"s_mul_i32 s{sT0}, s{sTILE}, 384"]); add(f"v_add_u32 v{TS}, s{sT0}, v{VCH}")
    for idx, k in enumerate(range(15, 7, -1)):
        t_ = TS + 1 + (idx & 1)
        add(f"v_subrev_u32 v{t_}, {k*384}, v{TS}")
        add(f"buffer_load_dwordx2 {vr(T+2*idx, 2)}, v{t_}, {sr(S_S)}, 0 offen sc1")
    CC = TS + 2
    for m in range(1, 8): adds(cmul_acc(T + 2*m, T + 2*m + 1, A128, A128 + 1, T + 2*m - 2, T + 2*m - 1))
    adds([f"v_mov_b32 v{CC}, v{T+14}", f"v_mov_b32 v{CC+1}, v{T+15}"])
    for idx, k in enumerate(range(7, 0, -1)):
        add(f"v_subrev_u32 v{TS+1}, {k*384}, v{TS}")
        add(f"buffer_load_dwordx2 {vr(T+2*idx, 2)}, v{TS+1}, {sr(S_S)}, 0 offen sc1")
    adds(cmul_acc(T, T + 1, A128, A128 + 1, CC, CC + 1))
    for m in range(1, 7): adds(cmul_acc(T + 2*m, T + 2*m + 1, A128, A128 + 1, T + 2*m - 2, T + 2*m - 1))
    adds([f"v_mov_b32 v{CC}, v{T+12}", f"v_mov_b32 v{CC+1}, v{T+13}"])
    for k in (3, 2, 1):
        add([f"s_sub_u32 s{sT0}, s{sW}, {k}", f"s_max_i32 s{sT0}, s{sT0}, 0", f"s_mul_i32 s{sT0}, s{sT0}, 384", f"s_add_u32 s{sT0}, s{sT0}, {WTOT}"])
        add(f"v_add_u32 v{TS}, s{sT0}, v{VCH}")
        add(f"ds_read_b64 {vr(T+2*(3-k), 2)}, v{TS}")
    for k, sm in ((3, sM3), (2, sM2), (1, sM1)):
        j = T + 2 * (3 - k)
        adds([f"v_mul_f32 v{j}, s{sm}, v{j}", f"v_mul_f32 v{j+1}, s{sm}, v{j+1}"])
    adds(cmul_acc(T + 2, T + 3, A32, A32 + 1, T, T + 1)); adds(cmul_acc(T + 4, T + 5, A32, A32 + 1, T + 2, T + 3))
    adds(cmul_acc(T + 4, T + 5, PW, PW + 1, CC, CC + 1))
    adds([f"v_mov_b32 v{CC}, v{T+4}", f"v_mov_b32 v{CC+1}, v{T+5}"])
    for m in range(7): add(f"ds_read_b64 {vr(T+2*m, 2)}, v{VP} offset:{384*m}")
    add(f"ds_write_b64 v{VP}, {vr(CC, 2)}")
    adds(cmul_acc(T, T + 1, A4, A4 + 1, CC, CC + 1))
    add(f"ds_write_b64 v{VP}, {vr(T, 2)} offset:384")
    for m in range(1, 7):
        adds(cmul_acc(T + 2*m, T + 2*m + 1, A4, A4 + 1, T + 2*m - 2, T + 2*m - 1))
        add(f"ds_write_b64 v{VP}, {vr(T+2*m, 2)} offset:{384*(m+1)}")
    VW, VR = TS, TS + 1
    adds([f"v_and_b32 v{VW}, 15, {L}", f"v_lshlrev_b32 v{VW}, 5, v{VW}", f"v_lshrrev_b32 v{VR}, 4, {L}", f"v_lshlrev_b32 v{VR}, 3, v{VR}",
          f"v_add_u32 v{VW}, v{VW}, v{VR}", f"v_add_u32 v{VW}, s{sW3}, v{VW}", f"v_add_u32 v{VW}, {PRIV}, v{VW}",
          f"v_lshlrev_b32 v{VR}, 3, {L}", f"v_add_u32 v{VR}, s{sW3}, v{VR}", f"v_add_u32 v{VR}, {PRIV}, v{VR}"])
    dlS = bar_mf[40] - int(opt.get('dls', 10))
    for n in range(2):
        for b in range(nS): add(f"ds_read_b64 {vr(T+2*b, 2)}, v{VE+n} offset:{128*b}")
        for b in range(nS):
            TBL = T + 6
            adds([f"ds_read_b128 {vr(TBL)}, v{VT} offset:{b*768}", f"ds_read_b128 {vr(TBL+4)}, v{VT} offset:{b*768+16}", f"ds_read_b64 {vr(TBL+8, 2)}, v{VT} offset:{b*768+32}"])
            R, Im = xb(b, 0, n), xb(b, 1, n)
            cre, cim = T + 2 * b, T + 2 * b + 1
            for r in range(4): adds(cmul_acc(R + r, Im + r, TBL + 2*r, TBL + 2*r + 1, cre, cim))
            kr, ki, tt = TBL + 8, TBL + 9, TS + 2
            for r in range(4):
                t_ = tt + (r & 1)
                adds([f"v_mul_f32 v{t_}, v{kr}, v{R+r}", f"v_fma_f32 v{t_}, -v{ki}, v{Im+r}, v{t_}",
                      f"v_mul_f32 v{Im+r}, v{kr}, v{Im+r}", f"v_fmac_f32 v{Im+r}, v{ki}, v{R+r}",
                      f"v_mul_f32 v{R+r}, v{LG+4*n+r}, v{t_}", f"v_mul_f32_e64 v{Im+r}, -v{LG+4*n+r}, v{Im+r}"])
            adds([f"v_cvt_pk_bf16_f32 v{R}, v{R}, v{R+1}", f"v_cvt_pk_bf16_f32 v{R+1}, v{R+2}, v{R+3}",
                  f"v_cvt_pk_bf16_f32 v{Im}, v{Im}, v{Im+1}", f"v_cvt_pk_bf16_f32 v{Im+1}, v{Im+2}, v{Im+3}"])
            so = 1536 * n
            adds([f"ds_write_b64 v{VW}, {vr(R, 2)} offset:{so}", f"ds_write_b64 v{VW}, {vr(Im, 2)} offset:{so+512}",
                  f"ds_read_b64_tr_b16 {vr(R, 2)}, v{VR} offset:{so}", f"ds_read_b64_tr_b16 {vr(R+2, 2)}, v{VR} offset:{so+512}"])
    for n in range(2):
        for b in range(nS):
            off = ((9 + b) * 2 + n) * 1024
            add([I(f"s_add_u32 s{sT0}, s{sHO}, {off & ~4095}"),
                 I(f"buffer_store_dwordx4 {vr(xb(b,0,n))}, v{VST}, {sr(S_WS)}, s{sT0} offen" + (f" offset:{off & 4095}" if off & 4095 else "") + HST, tag="hstC")],
                deadline=dlS)
    def hload(K, n):
        off = (K * 2 + n) * 1024
        return [I(f"s_add_u32 s{sQ+1}, s{sHP}, {off & ~4095}"),
                I(f"buffer_load_dwordx4 {ar(hp_reg(K) + 4*n)}, v{VST}, {sr(S_WS)}, s{sQ+1} offen" + (f" offset:{off & 4095}" if off & 4095 else "") + " sc1")]
    sFl = Stream("flag", 1)
    def flag(val, k):
        sFl.add(f"v_mov_b32 v{XT}, {val}", bar_mf[k], bar_mf[k] + 6)
        sFl.add(f"buffer_store_dword v{XT}, v{XF}, {sr(S_WS)}, 0 offen sc1", bar_mf[k], bar_mf[k] + 10)
    def xpoll(name, val, t_load, t_chk, Ks, dl):
        tt = [t_load]
        def emit(x, chk):
            if chk: sX_.add(x, t_chk, t_chk + 10)
            else: sX_.add(x, t_load, t_load + 10)
        poll(emit, name, XP, GWB, [f"v_cmp_le_u32 vcc, {val}, v{GWB}"], sQ + 2)
        for K in Ks:
            for n in range(2): sX_.add(hload(K, n), t_chk, dl)
    flag(2, kHA)
    needA = mbeg(43); needB = mbeg(45); needC = mbeg(48)
    firstA = [8, 0, 1, 2, 3] if par == 0 else [0, 1, 2, 3, 8]
    tA = int(opt.get("tA", 190)); tB = int(opt.get("tB", 150))
    xpoll("A", 2, mbeg(36), mbeg(36) + 90, firstA, mbeg(40))
    flag(3, kHB)
    xpoll("B", 3, needB - tB - 80, needB - tB, [4, 5, 6, 7], needB - 70)
    flag(4, kHC)
    if FUSE: flag(5, kFM)
    xpoll("D", 4, needC - 120 - 70, needC - 120, [9 + b for b in range(nSP)], needC - 70)

    sW_ = Stream("warm", 5)
    if opt.get("nopf") is None:
        PVL = TA + 2
        def pf(e_, areg, sset, srd_, dst):
            sW_.add(f"v_accvgpr_read_b32 v{PVL}, a{areg}", e_, e_ + 30)
            for x in sset: sW_.add(x, e_, e_ + 30)
            sW_.add(f"buffer_load_dword a{dst}, v{PVL}, {sr(srd_)}, s{sQ} offen{PFL}", e_, e_ + 40)
        t_a = int(opt.get("pf_a", mbeg(kH) + 30))
        pf(t_a, 253, [f"s_mul_i32 s{sQ}, s{sT4}, {18*9216}", f"s_mul_i32 s{sQ+3}, s{sSLICE}, 576", f"s_add_u32 s{sQ}, s{sQ}, s{sQ+3}"], S_W1, 252)
        t_d = int(opt.get("pf_d", mbeg(kF(1)) + 20))
        pf(t_d, 254, [f"s_lshl_b32 s{sQ}, s{sTILE}, 2", f"s_add_u32 s{sQ}, s{sQ}, s{sW}", f"s_mul_i32 s{sQ}, s{sQ}, {41*128}",
                      f"s_mul_i32 s{sQ+3}, s{sSLICE}, {288*1152}", f"s_add_u32 s{sQ}, s{sQ}, s{sQ+3}"], S_WD, 248)
        pf(t_d + 100, 255, [f"s_mul_i32 s{sQ}, s{sT4}, {18*1152}", f"s_lshl_b32 s{sQ+3}, s{sC0}, 1", f"s_add_u32 s{sQ}, s{sQ}, s{sQ+3}"], S_C, 251)
    pace(sS, pace_from[0], bar_mf[kPoll], dlS - 10)
    streams = [sD, sP, sCl, sA, sB, sE, sS, sX_, sFl, sW_]
    if FUSE:
        sR, sR2 = reduce_prep(opt, par, bar_mf[46], bar_mf[int(opt.get("kmchk", 49))] + int(opt.get("tmchk", 0)), mend(NST - 1))
        streams += [sR, sR2]
    strip = opt.get("strip", "")
    if "e" in strip: streams = [x for x in streams if x not in (sE, sS, sX_, sFl, sW_, sCl)]; slow = []
    if "S" in strip: streams = [x for x in streams if x not in (sS, sX_, sFl, sW_, sCl)]; slow = []
    if "E" in strip: streams = [x for x in streams if x is not sE]
    if "h" in strip: sE.q = deque(it for it in sE.q if not any(x.kind == "vm_st" for x in it[0]))
    if "X" in strip: streams = [x for x in streams if x not in (sX_, sFl)]; slow = [x for x in slow if False]
    if "b" in strip:
        for sl in slots: sl.pre = [x for x in sl.pre if x.kind != "barrier"]
    if "d" in strip:
        keep = deque(it for it in sD.q if not any(getattr(x, "tag", "") and str(x.tag).startswith("st") and int(x.tag[2:]) > 8 for x in it[0]))
        sD.q = keep
    if "r" in strip:
        for sl in slots[400:]: sl.post = []
    fw.DMA_GAP = int(opt.get('dgap', 7)); fw.DMA_GAP_FROM = mXB - 20
    body, rest, stats = schedule(slots, streams)
    tail = rest
    if FUSE:
        tail = tail + final_reduce(opt, par, XF, XT, GWB, slow)
    if ts:
        tail = tail + stamp(58) + [I("s_waitcnt vmcnt(0)")] + stamp(59) + [I("s_memrealtime s[100:101]"), I("s_waitcnt lgkmcnt(0)"), I("v_writelane_b32 v255, s100, 62")]
        tail += expand([f"s_lshl_b32 s{sT0}, s2, 2", f"s_add_u32 s{sT0}, s{sT0}, s{sW}", f"s_lshl_b32 s{sT0}, s{sT0}, 8", f"s_add_u32 s{sT0}, s{sT0}, {WS_END}",
                        f"v_lshlrev_b32 v1, 2, {L}", f"buffer_store_dword v255, v1, {sr(S_WS)}, s{sT0} offen"])
    for b_ in check_flags(body)[:10]: print('FLAG HAZARD', par, b_)
    prog = pro + body + tail
    prog, nw = insert_waits(prog)
    prog, nn = pad_hazards(prog)
    ol = stats.pop("overlog")
    stats["over_by_stage"] = [sum(ol[2*u0[k]:2*u0[k+1]]) for k in range(NST)]
    info = dict(stats, rate=round(sS.rate, 2), NU=NU, nwait=nw, nnop=nn, ninstr=len(prog), tail=len(tail))
    txt = render(prog) + "\n  s_endpgm\n" + render(slow) + "\n"
    return txt, info


def build_reduce(opt):
    o = []
    A = lambda *x: o.extend(expand(list(x)))
    A("s_cmp_ge_u32 s2, 576", "s_cbranch_scc1 L_red_end")
    if opt.get("ts"): A("s_memrealtime s[80:81]")
    A("s_load_dwordx2 s[64:65], s[0:1], 0", "s_load_dwordx2 s[66:67], s[0:1], 64", "s_load_dwordx2 s[68:69], s[0:1], 112", "s_load_dwordx2 s[70:71], s[0:1], 128")
    A("v_lshrrev_b32 v1, 6, v0", "v_and_b32 v2, 63, v0")
    A("v_readfirstlane_b32 s20, v1")
    A("s_lshl_b32 s21, s2, 2", "s_add_u32 s21, s21, s20")
    A("s_mul_i32 s22, s21, 1821", "s_lshr_b32 s22, s22, 16")
    A("s_mul_i32 s23, s22, 36", "s_sub_u32 s23, s21, s23")
    A("s_lshl_b32 s25, s22, 5")
    A("v_lshlrev_b32 v3, 4, v2", "v_and_b32 v4, 15, v2", "v_lshrrev_b32 v5, 4, v2")
    A("s_sub_u32 s29, s23, 4", "s_cmp_ge_u32 s23, 20", "s_cselect_b32 s29, s29, s23")
    A("s_lshl_b32 s24, s22, 15", "s_lshl_b32 s29, s29, 10", "s_add_u32 s24, s24, s29", f"s_add_u32 s24, s24, {WS_P8}")
    A(f"s_mov_b32 s30, {16*4*32768}")
    A("s_lshl_b32 s31, s22, 12", "s_sub_u32 s29, s23, 16", "s_lshl_b32 s33, s29, 10", "s_add_u32 s31, s31, s33", f"s_add_u32 s31, s31, {WS_P16}")
    A("s_cmp_lt_u32 s29, 4", "s_cselect_b32 s24, s31, s24", f"s_cselect_b32 s30, {16*4*4096}, s30", "s_cselect_b32 s34, 1, 0")
    A("s_waitcnt lgkmcnt(0)")
    A(srd(4, "s70", "s71", WS_END), srd(8, "s64", "s65", 2359296), srd(12, "s66", "s67", 1152), srd(16, "s68", "s69", 4718592))
    RLD = opt.get("rld", "")
    for s_ in range(8):
        A(f"buffer_load_dwordx4 {vr(32+4*s_)}, v3, s[4:7], s24 offen{RLD}", "s_add_u32 s24, s24, s30")
    A("s_cmp_eq_u32 s34, 1", "s_cselect_b32 s24, s24, 0x7ff00000", "s_cselect_b32 s30, s30, 0")
    for s_ in range(8, 16):
        A(f"buffer_load_dwordx4 {vr(32+4*s_)}, v3, s[4:7], s24 offen{RLD}", "s_add_u32 s24, s24, s30")
    A("s_lshl_b32 s26, s23, 4", "v_lshlrev_b32 v6, 2, v5", "v_add_u32 v6, s26, v6")
    A("v_add_u32 v7, s25, v4")
    A("v_mul_u32_u24 v8, 576, v7", "v_add_u32 v8, v8, v6")
    A("v_lshlrev_b32 v9, 1, v8", "v_lshlrev_b32 v10, 2, v8", "v_lshlrev_b32 v11, 1, v6", "v_lshlrev_b32 v12, 2, v7")
    A("buffer_load_dwordx2 v[14:15], v9, s[8:11], 0 offen")
    A("s_mov_b32 s27, 18432", "buffer_load_dwordx2 v[16:17], v9, s[8:11], s27 offen")
    A("buffer_load_dwordx2 v[18:19], v11, s[12:15], 0 offen")
    A(f"s_mov_b32 s28, {WS_G}", "buffer_load_dword v20, v12, s[4:7], s28 offen", "buffer_load_dword v21, v12, s[4:7], s28 offen offset:64")
    for r in range(8): A(f"v_mov_b32 v{100+r}, 0")
    for s_ in range(16):
        for j in range(4):
            src = 32 + 4 * s_ + j
            A(f"v_lshlrev_b32 v22, 16, v{src}", f"v_and_b32 v23, 0xffff0000, v{src}", f"v_add_f32 v{100+2*j}, v{100+2*j}, v22", f"v_add_f32 v{101+2*j}, v{101+2*j}, v23")
    for n in range(2):
        for j in range(2):
            xs, ds = 14 + 2 * n + j, 18 + j
            A(f"v_lshlrev_b32 v22, 16, v{xs}", f"v_and_b32 v23, 0xffff0000, v{xs}", f"v_lshlrev_b32 v24, 16, v{ds}", f"v_and_b32 v25, 0xffff0000, v{ds}",
              "v_mul_f32 v22, v22, v24", "v_mul_f32 v23, v23, v25", "v_cvt_pk_bf16_f32 v22, v22, v23",
              "v_and_b32 v23, 0xffff0000, v22", "v_lshlrev_b32 v22, 16, v22",
              f"v_fmac_f32 v{100+4*n+2*j}, v{20+n}, v22", f"v_fmac_f32 v{101+4*n+2*j}, v{20+n}, v23")
    A("buffer_store_dwordx4 v[100:103], v10, s[16:19], 0 offen")
    A("s_mov_b32 s27, 36864", "buffer_store_dwordx4 v[104:107], v10, s[16:19], s27 offen")
    if opt.get("ts"):
        A("s_waitcnt vmcnt(0)", "s_memrealtime s[82:83]", "s_waitcnt lgkmcnt(0)", "v_mov_b32 v30, s80", "v_mov_b32 v31, s82", "s_lshl_b32 s27, s21, 3",
          f"s_add_u32 s27, s27, {WS_END + (1 << 18)}", "v_mov_b32 v29, 0", "s_mov_b32 s6, 0x7fffffff", "buffer_store_dwordx2 v[30:31], v29, s[4:7], s27 offen")
    prog, nw = insert_waits(o)
    prog, nn = pad_hazards(prog)
    return render(prog) + "\nL_red_end:\n  s_endpgm\n"


def build(opt):
    common = build_common(opt)
    v0, i0 = build_variant(opt, 0)
    v1, i1 = build_variant(opt, 1)
    red = build_reduce(opt)
    k1, k2 = NAME + "_kernel", "reduce_kernel"
    fuse = opt.get('fuse', '1') == '1'
    s = HEADER
    if fuse:
        s += f"; @launch grid=(256,1,1) block=(256,1,1) lds={LDS_BYTES}\n"
    else:
        s += f"; @launch kernel={k1} grid=(256,1,1) block=(256,1,1) lds={LDS_BYTES}\n"
        s += f"; @launch kernel={k2} grid=(576,1,1) block=(256,1,1) lds=0\n"
    s += '.amdgcn_target "amdgcn-amd-amdhsa--gfx950"\n.text\n'
    far = "  s_cbranch_scc1 L_var1\n"
    common = common.replace("  s_cbranch_scc1 L_main_end\n", "  s_cbranch_scc0 L_go\n  s_endpgm\nL_go:\n")
    common = common.replace("  s_cbranch_scc1 L_var1\n", "  s_cbranch_scc0 L_var0\n  s_branch L_var1\nL_var0:\n")
    s += f".globl {k1}\n.p2align 8\n.type {k1},@function\n{k1}:\n" + common + v0 + "L_end0:\n.p2align 6\nL_var1:\n" + v1 + "L_end1:\n"
    if not fuse: s += f".globl {k2}\n.p2align 8\n.type {k2},@function\n{k2}:\n" + red
    if opt.get("nocpf") is None:
        s += ".set CODE_SPAN0, L_end0 - L_pc0 - 4\n.set CODE_SPAN1, L_end1 - L_pc1 - 4\n"
    s += '.section .rodata,"a"\n' + kd(k1, 512, 256, 102) + ("" if fuse else kd(k2, 128, 128, 96))
    return s, (i0, i1)


if __name__ == "__main__":
    out = sys.argv[1]
    opt = {}
    for a in sys.argv[2:]:
        k, v = a.split("=", 1); opt[k] = v
    fw.DEPAWARE = opt.get('dep', '1') == '1'; fw.VMCOST = int(opt.get('vmcost', 1)); fw.VM_GAP = int(opt.get('vmgap', 5)); fw.LDS_LAT = int(opt.get('ldslat', 8)); fw.VM_LAT = int(opt.get('vmlat', 90))
    s, info = build(opt)
    open(out, "w").write(s)
    for i in info: print(i)
    print(len(s))
```

```python
import sys
import fw
from fw import *
from gen import (NAME, LOG2E, INV2PI, OOB, SLOT, NSLOT, MISC, PRIV, WTOT, TAB, LDS_BYTES, ACC, XB, LG, P1, P2, D1, D2, SF, A4, A32, A128, PW,
                 LANE, VST, VCH, T, VE, VP, VT, TS, TA, AX, AF, AH, L, xfrag, afrag, vr, ar, sr, xb, srd, mf,
                 voff_B, voff_W1full, voff_W1half, voff_Wd, voff_C, base_T64, base_C, cmul_acc, kd, HEADER)
XBASE = 2 * SLOT
XPOS = [0, 1, 2, 3, 4, 5, 3, 4, 5]

WS_P8 = 0
P8_BYTES = 8 * 16 * 4 * 2 * 16 * 1024
WS_P16 = WS_P8 + P8_BYTES
P16_BYTES = 16 * 16 * 4 * 4 * 1024
WS_H = WS_P16 + P16_BYTES
H_BYTES = 16 * 16 * 4 * 24 * 1024
WS_S = WS_H + H_BYTES
WS_G = WS_S + 16 * 16 * 384
WS_F = WS_G + 8192
WS_END = WS_F + 256 * 128

S_X, S_W1, S_WD, S_B, S_C, S_WS, S_S, S_DBG, S_P = 4, 8, 12, 16, 20, 24, 28, 32, 36
sW, sTILE, sSLICE, sC0, sOA, sOB, sW6, sW3 = 40, 41, 42, 43, 44, 45, 46, 47
sP8, sT0, sT1, sT2, sC2, sPAR, sP16, sT3 = 48, 49, 50, 51, 52, 53, 54, 55
sMASK = 56; sM1, sM2, sM3 = 58, 59, 60
sHO, sHP, sHT = 61, 62, 63
sW1F, sW1H, sWD2, sWD1, sWD1B, sC1, sT4, sC0P, sC2P, sQ = 64, 65, 66, 67, 68, 69, 70, 71, 72, 73
sXO, sXL = 98, 99
AHP = 0
def hp_reg(K):
    order = {8: 0, 0: 1, 1: 2, 2: 3, 3: 4, 4: 5, 5: 6, 6: 7, 7: 8, 9: 9, 10: 10, 11: 11}
    return AHP + 8 * order[K]


CYC = [0, 1, 2, 4, 5, 3]
def slot_of(k): return k if k < 4 else CYC[(k - 4) % 6]
def slot_base(k): return slot_of(k) * SLOT
def setof(k): return slot_of(k) // 2
def slot_rel(k): return (slot_of(k) % 2) * SLOT

T64B = [P1 + i for i in range(6)]
T128B = [P1 + 6 + i for i in range(6)] + [P2 + i for i in range(6)]
RB = [P2 + i for i in range(6)]
CB = [P1 + i for i in range(3)]
GWB = P2 + 6


PMACC = [96, 104, 112, 120]


class Stage:
    def __init__(self, fmt, units, pieces, wq, pre):
        self.fmt, self.units, self.pieces, self.wq, self.pre = fmt, units, pieces, wq, pre


def base_list_T128(regs, qrows, t, sets):
    o = [f"v_lshrrev_b32 v{t}, 4, {L}", f"v_mul_u32_u24 v{t}, {qrows}, v{t}", f"v_bfe_u32 v{t+1}, {L}, 2, 2", f"v_add_u32 v{t}, v{t}, v{t+1}",
         f"v_lshlrev_b32 v{t}, 7, v{t}", f"v_and_b32 v{t+1}, 3, {L}", f"v_lshlrev_b32 v{t+1}, 3, v{t+1}", f"v_add_u32 v{t}, v{t}, v{t+1}",
         f"v_bfe_u32 v{t+1}, {L}, 3, 2"]
    return o


def t128_regs(idx, t):
    s_, mt = divmod(idx, 4)
    d = T128B[idx]
    o = [f"v_xor_b32 v{d}, {mt}, v{t+1}", f"v_lshlrev_b32 v{d}, 5, v{d}", f"v_add_u32 v{d}, v{d}, v{t}"]
    if s_: o += [f"v_add_u32 v{d}, {49152*s_}, v{d}"]
    return o


def base_R2(t):
    o = [f"v_and_b32 v{t}, 15, {L}", f"v_lshrrev_b32 v{t+1}, 1, v{t}", f"v_lshlrev_b32 v{t}, 7, v{t}"]
    for h in range(2):
        d = RB[h]
        o += [f"v_lshrrev_b32 v{d}, 4, {L}", f"v_add_u32 v{d}, {4*h}, v{d}", f"v_xor_b32 v{d}, v{d}, v{t+1}", f"v_lshlrev_b32 v{d}, 4, v{d}",
              f"v_add_u32 v{d}, v{d}, v{t}", f"v_add_u32 v{RB[2+h]}, 49152, v{d}", f"v_add_u32 v{RB[4+h]}, {2*49152}, v{d}"]
    return o


def build_stages(par):
    nS = 2 if par == 0 else 3
    nSP = 5 - nS
    stages = []
    tr = "ds_read_b64_tr_b16"
    U = lambda reads, mfl, swap: dict(reads=reads, mf=mfl, swap=swap)
    for st in range(5):
        units = []
        for ksl in range(4 if st < 4 else 2):
            ks = 4 * st + ksl
            line, half = ksl >> 1, ksl & 1
            for b in range(nS):
                for mat in range(2):
                    off = (2 * mat + line) * 6144 + b * 2048
                    acc = [xb(b, mat, n) for n in range(2)]
                    units.append(U([("ds_read_b128", 4, ("R", half), off)],
                                   [(vr(acc[n]), xfrag(ks, n), None, vr(acc[n]) if ks else "0") for n in range(2)], True))
            units.append(U([("ds_read_b128", 4, ("abs", GWB), ks * 64)],
                           [(vr(LG + 4 * n), xfrag(ks, n), None, vr(LG + 4 * n) if ks else "0") for n in range(2)], True))
        pre = [] if st == 0 else [f"s_add_u32 s{sOA}, s{sOA}, 256"]
        npc = 2 * nS
        stages.append(Stage("B", units, [(D1 + j, S_B, sOA) for j in range(npc)], sW6, pre))
    for st in range(3):
        units = []
        for ksl in range(6):
            ks = 6 * st + ksl
            for mat in range(2):
                for mt in range(2):
                    acc = ACC[0] + (mat * 4 + mt) * 8
                    off = mat * 12288 + ksl * 2048
                    units.append(U([(tr, 2, ("T64", mt), off), (tr, 2, ("T64", mt), off + 256)],
                                   [(vr(acc + 4 * n), None, xfrag(ks, n), vr(acc + 4 * n) if ks else "0") for n in range(2)], False))
        pre = [f"s_mov_b32 s{sOA}, s{sW1H}"] if st == 0 else [f"s_add_u32 s{sOA}, s{sOA}, {192*9216}"]
        stages.append(Stage("W1h", units, [(D2 + j, S_W1, sOA) for j in range(6)], sW6, pre))
    for c in range(4):
        buf = ACC[(c + 1) & 1]
        for st in range(6):
            units = []
            for ksl in range(3):
                ks = 3 * st + ksl
                for mat in range(2):
                    for mt in range(4):
                        acc = buf + (mat * 4 + mt) * 8
                        off = mat * 12288 + ksl * 4096
                        units.append(U([(tr, 2, ("T128", mt), off), (tr, 2, ("T128", mt), off + 512)],
                                       [(vr(acc + 4 * n), None, xfrag(ks, n), vr(acc + 4 * n) if ks else "0") for n in range(2)], False))
            pre = [f"s_add_u32 s{sOA}, s{sW1F}, {128*c}"] if st == 0 else [f"s_add_u32 s{sOA}, s{sOA}, {96*9216}"]
            stages.append(Stage("W1", units, [(D1 + j, S_W1, sOA) for j in range(6)], sW6, pre))
    own = lambda K: (lambda n: ar(AH + 8 * K + 4 * n))
    prt = lambda K: (lambda n: ar(hp_reg(K) + 4 * n))
    owns = lambda b: (lambda n: vr(xb(b, 0, n)))
    if par == 0:
        ownW = [[0, 1, 2], [3, 4, 5], [6, 7, 8]]; prtW = [[8, 0, 1], [2, 3, 4], [5, 6, 7]]
        ms_own, ms_prt = [0, 1, 2], [3, 4, 5]
        pmA, pmB = [0, 1, 2, 3, 4, 5], [6, 7, 8]
        cols = [0, 256]
    else:
        ownW = [[8, 0, 1], [2, 3, 4], [5, 6, 7]]; prtW = [[0, 1, 2], [3, 4, 5], [6, 7, 8]]
        ms_own, ms_prt = [3, 4, 5], [0, 1, 2]
        pmA, pmB = [8, 0, 1, 2, 3, 4], [5, 6, 7]
        cols = [640, 896]
    def wd_units(bfs, lines, buf, first):
        units = []
        for i_, bf in enumerate(bfs):
            for line in range(lines):
                for mt in range(4):
                    acc = buf + (line * 4 + mt) * 8
                    off = line * 12288 + i_ * 4096
                    z = first and i_ == 0
                    units.append(U([(tr, 2, ("T128", mt), off), (tr, 2, ("T128", mt), off + 2048)],
                                   [(vr(acc + 4 * n), None, bf(n), "0" if z else vr(acc + 4 * n)) for n in range(2)], False))
        return units
    def c_units(bfs, nm, buf, imoff):
        units = []
        for b, bf in enumerate(bfs):
            for m in range(nm):
                acc = buf + m * 8
                off = m * 1536 + 32 * b
                units.append(U([("ds_read_b64", 2, ("C", 0), off), ("ds_read_b64", 2, ("C", 0), off + imoff)],
                               [(vr(acc + 4 * n), None, bf(n), vr(acc + 4 * n)) for n in range(2)], False))
        return units
    def W(p, bfs, ms, first=False):
        buf = ACC[(p + 1) & 1]
        stages.append(Stage("Wd", wd_units(bfs, 2, buf, first), [(D2 + j, S_WD, sOA) for j in range(6)], sW6,
                            [f"s_add_u32 s{sOA}, s{sWD2}, {cols[p] + ms*96*1152}"]))
    def C(p, bfs, sbase):
        buf = ACC[(p + 1) & 1]
        stages.append(Stage("C", c_units(bfs, 8, buf, 12288), [(D1 + j, S_C, sOA) for j in range(6)], sW6,
                            [f"s_add_u32 s{sOA}, s{sbase}, {(cols[p] // 2) * 1152}"]))
    oW = lambda p, i, first=False: W(p, [own(K) for K in ownW[i]], ms_own[i], first)
    pW = lambda p, i: W(p, [prt(K) for K in prtW[i]], ms_prt[i])
    oC = lambda p: C(p, [owns(b) for b in range(nS)], sC2)
    pC = lambda p: C(p, [prt(9 + b) for b in range(nSP)], sC2P)
    def pm_units(bfs, first, kind):
        units = []
        for i_, bf in enumerate(bfs):
            for mt in range(4):
                acc = PMACC[mt]
                z = first and i_ == 0
                if kind == "W":
                    off = i_ * 4096
                    rd = [(tr, 2, ("T128", mt), off), (tr, 2, ("T128", mt), off + 2048)]
                else:
                    off = mt * 1536 + 32 * i_
                    rd = [("ds_read_b64", 2, ("C", 0), off), ("ds_read_b64", 2, ("C", 0), off + 6144)]
                units.append(U(rd, [(ar(acc + 4 * n), None, bf(n), "0" if z else ar(acc + 4 * n)) for n in range(2)], False))
        return units
    pmWa = lambda: stages.append(Stage("Wd1a", pm_units([own(K) for K in pmA], True, "W"), [(D2 + j, S_WD, sOA) for j in range(6)], sW6, [f"s_add_u32 s{sOA}, s{sWD1}, 512"]))
    pmWb = lambda: stages.append(Stage("Wd1b", pm_units([own(K) for K in pmB], False, "W"), [(D2 + j, S_WD, sOA) for j in range(3)], sW3, [f"s_add_u32 s{sOA}, s{sWD1B}, 512"]))
    pmC = lambda: stages.append(Stage("C1", pm_units([owns(b) for b in range(nS)], False, "C"), [(D1 + j, S_C, sOA) for j in range(3)], sW3, [f"s_add_u32 s{sOA}, s{sC1}, {256*1152}"]))
    oW(0, 0, True); oW(0, 1); pmWa(); oW(1, 0, True); oW(1, 1); oW(0, 2); oW(1, 2); pmWb()
    oC(0); oC(1); pmC()
    pW(0, 0); pW(1, 0); pW(0, 1); pW(1, 1); pW(0, 2); pC(0); pW(1, 2); pC(1)
    return stages, nS


def pace(st, i0, t0, t1):
    items = list(st.q)
    def walk(rate):
        t = float(t0); ready = {}; tr = {}; out = []
        for (g, e, d) in items[i0:]:
            t = max(t, e)
            for x in g:
                if x.kind == "pwait" and x.op == "waittag":
                    for tg in x.args: t = max(t, tr.get(tg, -1))
                else:
                    for r in x.src + x.dst: t = max(t, ready.get(r, -1))
            out.append(t)
            for x in g:
                if x.kind == "ds_rd":
                    for r in x.dst: ready[r] = t + fw.LDS_LAT + 1
                elif x.kind == "vm_ld":
                    for r in x.dst: ready[r] = t + fw.VM_LAT + 2
                if x.tag and x.kind in ("vm_st", "ds_wr"): tr[x.tag] = t + fw.VM_LAT
            t += len(g) / rate
        return out
    lo, hi = 0.05, 8.0
    for _ in range(30):
        mid = (lo + hi) / 2
        if walk(mid)[-1] <= t1: hi = mid
        else: lo = mid
    dls = walk(hi)
    new = deque(items[:i0])
    for (g, e, d), t in zip(items[i0:], dls):
        nd = int(t) + 3
        new.append((g, e, nd if d is None else min(d, nd)))
    st.q = new
    st.rate = hi


def interleave(vm, fill, per):
    out = []; fi = 0
    for g in vm:
        out += g
        if any(("buffer_load" in x or "global_load" in x) if isinstance(x, str) else x.kind in ("dma", "vm_ld") for x in g):
            n = 0
            while fi < len(fill) and n < per:
                f = fill[fi]; fi += 1
                out += f if isinstance(f, list) else [f]
                n += len(f) if isinstance(f, list) else 1
    for f in fill[fi:]:
        out += f if isinstance(f, list) else [f]
    return out


def build_common(opt):
    o = []
    A = lambda *x: o.extend(expand(list(x)))
    A("s_cmp_ge_u32 s2, 256", "s_cbranch_scc1 L_main_end")
    A("s_load_dwordx16 s[64:79], s[0:1], 0", "s_load_dwordx16 s[80:95], s[0:1], 64", "s_load_dwordx2 s[96:97], s[0:1], 128")
    A(f"v_and_b32 {L}, 63, v0", "v_lshrrev_b32 v1, 6, v0")
    A(f"s_and_b32 s{sT0}, s2, 7", f"s_lshr_b32 s{sT1}, s2, 3")
    A(f"v_readfirstlane_b32 s{sW}, v1")
    if opt.get("parhi", "0") == "1":
        A(f"s_lshr_b32 s{sPAR}, s{sT1}, 4", f"s_xor_b32 s{sPAR}, s{sPAR}, 1", f"s_lshl_b32 s{sSLICE}, s{sT0}, 1", f"s_add_u32 s{sSLICE}, s{sSLICE}, s{sPAR}", f"s_and_b32 s{sTILE}, s{sT1}, 15")
    else:
        A(f"s_lshl_b32 s{sSLICE}, s{sT0}, 1", f"s_and_b32 s{sPAR}, s{sT1}, 1", f"s_add_u32 s{sSLICE}, s{sSLICE}, s{sPAR}", f"s_lshr_b32 s{sTILE}, s{sT1}, 1")
    choose = [f"s_cmp_eq_u32 s{sPAR}, 1", "s_cbranch_scc1 L_var1"]
    prog, _ = pad_hazards(o)
    return render(prog) + "\n  " + "\n  ".join(choose) + "\n"


I0, I1, I2 = xb(0, 1, 0), xb(1, 1, 0), xb(2, 1, 0)
FA, FD, LT, LQ = A4, A4 + 1, A4 + 2, A4 + 3
GREG = A4 + 5
PE, PX, PD, ME = I0, I0 + 1, I0 + 2, I0 + 3
MS, DA, DB, TMP, MX = I0 + 4, I1, I2, LG, LG + 4
MLA, EII, E0, E1 = 96, 112, 116, 120
S_OUT, S_DS = S_P, S_B
sJ, sTOK, sSRC, sM_, sPA, sDA, sRM, sMS = 82, 83, 84, 85, 86, 87, 88, 89
mALL, mPAR = 56, 58


def skip_init(dst, xs, ds, g):
    o = []; a, b, c, d = TMP, TMP + 1, TMP + 2, TMP + 3
    for j in range(2):
        o += [f"v_lshlrev_b32 v{a}, 16, v{xs+j}", f"v_and_b32 v{b}, 0xffff0000, v{xs+j}", f"v_lshlrev_b32 v{c}, 16, v{ds+j}", f"v_and_b32 v{d}, 0xffff0000, v{ds+j}",
              f"v_mul_f32 v{a}, v{a}, v{c}", f"v_mul_f32 v{b}, v{b}, v{d}", f"v_cvt_pk_bf16_f32 v{a}, v{a}, v{b}",
              f"v_and_b32 v{b}, 0xffff0000, v{a}", f"v_lshlrev_b32 v{a}, 16, v{a}", f"v_mul_f32 v{dst+2*j}, v{g}, v{a}", f"v_mul_f32 v{dst+2*j+1}, v{g}, v{b}"]
    return o


def reduce_prep(opt, par, e0, eM, lastm):
    oob = hex(OOB)
    sR = Stream("red", 4)
    add = lambda x, e=e0, d=None: sR.add(x, e, d)
    def adds(l, e=e0, d=None):
        for x in l: add(x, e, d)
    adds(srd(S_OUT, "s92", "s93", 4718592) + srd(S_DS, "s80", "s81", 1152))
    adds([f"s_mov_b32 s{mALL}, 0xffff0000", f"s_mov_b32 s{mALL+1}, -1", f"s_mov_b32 s{mPAR}, {hex(0xffff0000 | (0xaaaa if par == 0 else 0x5555))}", f"s_mov_b32 s{mPAR+1}, -1"])
    adds([[f"s_lshl_b32 s{sT0}, s{sTILE}, 7", f"s_add_u32 s{sT0}, s{sT0}, {WS_F}"], f"v_lshlrev_b32 v{FA}, 11, {L}", f"v_add_u32 v{FA}, s{sT0}, v{FA}",
          [f"v_cmp_gt_u32 vcc, 16, {L}", f"v_mov_b32 v{FD}, {oob}", f"v_cndmask_b32 v{FA}, v{FD}, v{FA}, vcc"],
          f"v_and_b32 v{LT}, 15, {L}", f"v_lshrrev_b32 v{LQ}, 4, {L}", f"s_lshr_b32 s{sJ}, s{sSLICE}, 1"], e0, eM - 95)
    adds([[f"s_lshr_b32 s{sT0}, s{sSLICE}, 2", f"s_and_b32 s{sM_}, s{sSLICE}, 3", f"s_and_b32 s{sT3}, s{sW}, 1", f"s_lshr_b32 s{sT1}, s{sW}, 1",
           f"s_lshl_b32 s{sMS}, s{sTILE}, 2", f"s_add_u32 s{sMS}, s{sMS}, s{sT0}", f"s_lshl_b32 s{sMS}, s{sMS}, 2", f"s_add_u32 s{sMS}, s{sMS}, s{sM_}"],
          f"s_lshl_b32 s{sMS}, s{sMS}, 10", f"s_mul_i32 s{sT1}, s{sT1}, {8*16*4*4096}", f"s_add_u32 s{sMS}, s{sMS}, s{sT1}", f"s_lshl_b32 s{sT2}, s{sT3}, 3",
          f"s_add_u32 s{sMS}, s{sMS}, s{sT2}", f"s_add_u32 s{sMS}, s{sMS}, {WS_P16}"], e0, eM - 4)
    adds([[f"s_lshl_b32 s{sPA}, s{sTILE}, 2", f"s_add_u32 s{sPA}, s{sPA}, s{sW}"], f"s_lshl_b32 s{sPA}, s{sPA}, 15", f"s_lshl_b32 s{sT0}, s{sJ}, 10", f"s_add_u32 s{sPA}, s{sPA}, s{sT0}",
          f"s_add_u32 s{sPA}, s{sPA}, {WS_P8 + 16384*par}", f"s_lshl_b32 s{sDA}, s{sJ}, 4", f"s_add_u32 s{sDA}, s{sDA}, {320*par}",
          f"s_lshl_b32 s{sTOK}, s{sTILE}, 7", f"s_lshl_b32 s{sT0}, s{sW}, 5", f"s_add_u32 s{sTOK}, s{sTOK}, s{sT0}",
          f"v_add_u32 v{PE}, s{sTOK}, v{LT}", f"v_lshlrev_b32 v{PD}, 2, v{LQ}", f"v_add_u32 v{PD}, s{sDA}, v{PD}", f"v_mul_u32_u24 v{PE}, 576, v{PE}",
          f"v_add_u32 v{PE}, v{PE}, v{PD}", f"v_lshlrev_b32 v{PX}, 1, v{PE}", f"v_lshlrev_b32 v{PD}, 1, v{PD}", f"v_lshlrev_b32 v{PE}, 2, v{PE}",
          f"v_accvgpr_read_b32 v{GREG}, a249", f"v_accvgpr_read_b32 v{GREG+1}, a250"])
    def aux(base, dcol):
        add([f"s_mov_b32 s{sT0}, {2*dcol}", f"buffer_load_dwordx2 {vr(base, 2)}, v{PX}, {sr(S_X)}, s{sT0} offen"])
        add([f"s_mov_b32 s{sT1}, {2*dcol + 18432}", f"buffer_load_dwordx2 {vr(base+2, 2)}, v{PX}, {sr(S_X)}, s{sT1} offen"])
        add([f"s_mov_b32 s{sT0}, {2*dcol}", f"buffer_load_dwordx2 {vr(base+4, 2)}, v{PD}, {sr(S_DS)}, s{sT0} offen"])
    aux(T, 0); aux(T + 6, 128)
    MA = T + 12
    adds([[f"s_lshr_b32 s{sT0}, s{sSLICE}, 2", f"s_lshl_b32 s{sTOK}, s{sTILE}, 7", f"s_lshl_b32 s{sT0}, s{sT0}, 5", f"s_add_u32 s{sTOK}, s{sTOK}, s{sT0}", f"s_lshl_b32 s{sT2}, s{sT3}, 4"],
          f"s_add_u32 s{sTOK}, s{sTOK}, s{sT2}", f"s_lshl_b32 s{sM_}, s{sM_}, 4", f"s_add_u32 s{sM_}, s{sM_}, 256",
          f"v_add_u32 v{MX}, s{sTOK}, v{LT}", f"v_lshlrev_b32 v{MA+2}, 2, v{LQ}", f"v_add_u32 v{MA+2}, s{sM_}, v{MA+2}",
          f"v_mul_u32_u24 v{ME}, 576, v{MX}", f"v_add_u32 v{ME}, v{ME}, v{MA+2}", f"v_lshlrev_b32 v{MA}, 1, v{ME}", f"v_lshlrev_b32 v{MA+2}, 1, v{MA+2}",
          f"v_lshlrev_b32 v{MX}, 2, v{MX}", f"v_lshlrev_b32 v{ME}, 2, v{ME}",
          f"buffer_load_dwordx2 {vr(MA, 2)}, v{MA}, {sr(S_X)}, 0 offen", f"buffer_load_dwordx2 {vr(MA+2, 2)}, v{MA+2}, {sr(S_DS)}, 0 offen"], e0, eM - 2)
    add(f"s_mov_b32 s{sT1}, {WS_G}", e0, eM)
    add([I(f"v_cmp_le_u32 vcc, 5, v{FD}"), I(f"s_or_b64 vcc, vcc, s[{mALL}:{mALL+1}]"), I("s_cmp_eq_u64 vcc, -1"), I(f"s_cselect_b32 s{sRM}, 1, 0"),
         I(f"s_cselect_b32 s{sSRC}, s{sMS}, 0x7ff00000"), I(f"s_cselect_b32 s{sT0}, s{sT1}, 0x7ff00000")], eM, eM + 8)
    add(f"buffer_load_dword v{MX+1}, v{MX}, {sr(S_WS)}, s{sT0} offen sc1", eM)
    for j in range(8):
        add(f"buffer_load_dwordx2 {ar(MLA+2*j, 2)}, v{VST}, {sr(S_WS)}, s{sSRC} offen sc1", eM)
        if j < 7: add(f"s_add_u32 s{sSRC}, s{sSRC}, {16*4*4096}", eM)
    adds(skip_init(DA, T, T + 4, GREG) + skip_init(DA + 4, T + 2, T + 4, GREG + 1) + skip_init(DB, T + 6, T + 10, GREG) + skip_init(DB + 4, T + 8, T + 10, GREG + 1), eM)
    EM0, EM1 = T, T + 1
    adds([f"v_lshrrev_b32 v{EM1}, 2, v{LT}", f"v_xor_b32 v{T+3}, v{EM1}, v{LQ}", f"v_and_b32 v{EM1}, 1, v{LT}", f"v_lshlrev_b32 v{EM1}, 4, v{EM1}",
          f"v_mov_b32 v{T+2}, 0x3f80", f"v_lshlrev_b32 v{EM1}, v{EM1}, v{T+2}", [f"v_cmp_eq_u32 vcc, 0, v{T+3}", f"v_cndmask_b32 v{EM1}, 0, v{EM1}, vcc"],
          f"v_and_b32 v{EM0}, 2, v{LT}", [f"v_cmp_eq_u32 vcc, 0, v{EM0}", f"v_cndmask_b32 v{EM0}, 0, v{EM1}, vcc", f"v_cndmask_b32 v{EM1}, v{EM1}, 0, vcc"],
          f"v_mov_b32 v{T+2}, 0"]
         + [f"v_accvgpr_write_b32 a{r}, v{EM0}" for r in (EII, EII + 2, E0, E1 + 2)] + [f"v_accvgpr_write_b32 a{r}, v{EM1}" for r in (EII + 1, EII + 3, E0 + 1, E1 + 3)]
         + [f"v_accvgpr_write_b32 a{r}, v{T+2}" for r in (E0 + 2, E0 + 3, E1, E1 + 1)], eM)
    sR2 = Stream("red2", 1)
    sR2.add(f"buffer_load_dword v{FD}, v{FA}, {sr(S_WS)}, 0 offen sc1", eM - 85, eM - 80)
    return sR, sR2


def final_reduce(opt, par, XF, XT, XD, slow, pb):
    o = []
    A = lambda *x: o.extend(expand(list(x)))
    tst = lambda i: A(I(("s_memrealtime" if opt.get("ts") == "5" else "s_memtime") + " s[100:101]"), I("s_waitcnt lgkmcnt(0)"), I(f"v_writelane_b32 v255, s100, {i}")) if (opt.get("ts") and (opt.get("ts") != "4" or i == 52)) else None
    OST = opt.get("ost", " nt")
    MA = T + 12
    def flagst(val): A(f"v_mov_b32 v{XT}, {val}", f"buffer_store_dword v{XT}, v{XF}, {sr(S_WS)}, 0 offen sc1")
    ld = f"buffer_load_dword v{FD}, v{FA}, {sr(S_WS)}, 0 offen sc1"
    def spin(name, val, mask, after):
        cond = [f"v_cmp_le_u32 vcc, {val}, v{FD}", f"s_or_b64 vcc, vcc, s[{mask}:{mask+1}]"]
        slow.extend([I(f"L_slow_{name}{par}:"), I(f"s_mov_b32 s{sT2}, 0"), I(f"L_slowl_{name}{par}:"), I(ld), I("s_waitcnt vmcnt(0)"),
                     I(cond[0]), I("s_nop 4"), I(cond[1]), I("s_cmp_eq_u64 vcc, -1"), I(f"s_cbranch_scc1 L_slowd_{name}{par}"),
                     I(f"s_add_u32 s{sT2}, s{sT2}, 1"), I(f"s_cmp_lt_u32 s{sT2}, 0x40000"), I(f"s_cbranch_scc1 L_slowl_{name}{par}"), I(f"L_slowd_{name}{par}:")]
                    + expand(after) + [I("s_waitcnt vmcnt(0)"), I(f"s_branch L_back_{name}{par}")])
        return cond
    def l8(dst, extra):
        r = [f"s_add_u32 s{sSRC}, s{sPA}, {extra}"]
        for j in range(8):
            r.append(f"buffer_load_dwordx4 {vr(dst+4*j)}, v{VST}, {sr(S_WS)}, s{sSRC} offen sc1")
            if j < 7: r.append(f"s_add_u32 s{sSRC}, s{sSRC}, {16*4*32768}")
        return r
    def finish(src, dst, dcol):
        for j in range(8):
            for n in range(2): A(mf(vr(dst + 4*n), ar((E0, E1)[n]), vr(src + 4*j), vr(dst + 4*n)))
        A(f"s_mov_b32 s{sT0}, {4*dcol}", f"s_mov_b32 s{sT1}, {4*dcol + 36864}",
          f"buffer_store_dwordx4 {vr(dst)}, v{PE}, {sr(S_OUT)}, s{sT0} offen{OST}", f"buffer_store_dwordx4 {vr(dst+4)}, v{PE}, {sr(S_OUT)}, s{sT1} offen{OST}")
    tst(52)
    redo = [f"s_mov_b32 s{sSRC}, s{sMS}", f"s_mov_b32 s{sT0}, {WS_G}", f"buffer_load_dword v{MX+1}, v{MX}, {sr(S_WS)}, s{sT0} offen sc1"]
    for j in range(8):
        redo.append(f"buffer_load_dwordx2 {ar(MLA+2*j, 2)}, v{VST}, {sr(S_WS)}, s{sSRC} offen sc1")
        if j < 7: redo.append(f"s_add_u32 s{sSRC}, s{sSRC}, {16*4*4096}")
    def pm_part():
        spin("M", 5, mALL, redo + [ld])
        A(WaitRegs([f"a{MLA+j}" for j in range(16)] + [f"v{MX+1}"]), f"s_cmp_eq_u32 s{sRM}, 1", f"s_cbranch_scc0 L_slow_M{par}", I(f"L_back_M{par}:"))
        A(f"s_cmp_lt_u32 s{sW}, 2", f"s_cselect_b32 s{sT0}, 1.0, 0", f"v_mul_f32 v{MX+1}, s{sT0}, v{MX+1}")
        A(skip_init(MS, MA, MA + 2, MX + 1))
        for j in range(4): A(mf(vr(MS), ar(EII), ar(MLA + 4*j), vr(MS)))
        A(f"s_and_b32 s{sT0}, s{sW}, 1", f"s_lshl_b32 s{sT0}, s{sT0}, 10", f"v_add_u32 v{MA}, s{sT0}, v{VST}",
          f"s_cmp_ge_u32 s{sW}, 2", f"s_cselect_b32 s{sT1}, 0, 2048", f"v_add_u32 v{MA+1}, s{sT1}, v{MA}")
        A(I(f"ds_write_b128 v{MA+1}, {vr(MS)}", tag="pmx"))
    if pb is not None:
        A(WaitTag("pstA"), "s_barrier"); flagst(6)
        A(ld)
        A(pb)
        pm_part()
        tst(53)
        cond = spin("PA", 6, mPAR, [])
        A(*cond, "s_cmp_eq_u64 vcc, -1", f"s_cbranch_scc0 L_slow_PA{par}", I(f"L_back_PA{par}:"))
        A(l8(64, 0))
        A(WaitTag("pstB", "pmx"), "s_barrier"); flagst(7)
        tst(54)
        A(ld)
        A(f"ds_read_b128 {vr(MX)}, v{MA}")
        srcA, srcB = 64, 0
    else:
        A(WaitTag("pstA"), "s_barrier"); flagst(6)
        tst(53)
        pm_part()
        A(ld)
        A(WaitTag("pstB", "pmx"), "s_barrier"); flagst(7)
        tst(54)
        A(f"ds_read_b128 {vr(MX)}, v{MA}")
        cond = spin("PA", 6, mPAR, [])
        A(*cond, "s_cmp_eq_u64 vcc, -1", f"s_cbranch_scc0 L_slow_PA{par}", I(f"L_back_PA{par}:"))
        A(l8(32, 0)); A(ld)
        srcA, srcB = 32, 64
    tst(55)
    for j in range(4): A(f"v_add_f32 v{MS+j}, v{MS+j}, v{MX+j}")
    A(f"s_cmp_lt_u32 s{sW}, 2", f"s_cselect_b32 s{sT0}, 0, 0x7ff00000", f"buffer_store_dwordx4 {vr(MS)}, v{ME}, {sr(S_OUT)}, s{sT0} offen{OST}")
    finish(srcA, DA, 0)
    tst(56)
    cond = spin("PB", 7, mPAR, [])
    A(*cond, "s_cmp_eq_u64 vcc, -1", f"s_cbranch_scc0 L_slow_PB{par}", I(f"L_back_PB{par}:"))
    tst(57)
    A(l8(srcB, 8192))
    finish(srcB, DB, 128)
    return o


def build_variant(opt, par):
    stages, nS = build_stages(par)
    nSP = 5 - nS
    NST = len(stages)
    V = f"v{par}"
    pro = []
    A = lambda *x: pro.extend(expand(list(x)))
    ts = opt.get("ts")
    A(f"s_mul_i32 s{sC0}, s{sSLICE}, 9", f"s_lshr_b32 s{sC0}, s{sC0}, 1", f"s_lshl_b32 s{sC0}, s{sC0}, 3")
    A(f"s_mul_i32 s{sW6}, s{sW}, 6144", f"s_mul_i32 s{sW3}, s{sW}, 3072")
    A(voff_B(D1, 10))
    A(f"s_and_b32 s{sT3}, s{sW}, 1")
    A(f"s_mul_i32 s{sOA}, s{sC0}, 1152", f"s_lshl_b32 s{sT0}, s{sT3}, 7", f"s_add_u32 s{sOA}, s{sOA}, s{sT0}")
    A(f"s_lshl_b32 s{sT0}, s{sTILE}, 7", f"s_lshl_b32 s{sT1}, s{sW}, 5", f"s_add_u32 s{sT0}, s{sT0}, s{sT1}", f"s_mul_i32 s{sXO}, s{sT0}, 1152")
    A(f"s_lshl_b32 s{sXL}, s{sW}, 12", f"s_add_u32 s{sXL}, s{sXL}, {XBASE}")
    if ts: A("s_memtime s[100:101]", "s_waitcnt lgkmcnt(0)", "v_mov_b32 v255, 0", "v_writelane_b32 v255, s100, 0", "s_memrealtime s[100:101]")
    A("s_waitcnt lgkmcnt(0)")
    if ts: A("v_writelane_b32 v255, s100, 61")
    A(srd(S_X, "s64", "s65", 2359296))
    A(f"s_cmp_lt_u32 s{sW}, 2")
    A(f"s_cselect_b32 s{S_B}, s70, s72", f"s_cselect_b32 s{S_B+1}, s71, s73", f"s_mov_b32 s{S_B+2}, 663552", f"s_mov_b32 s{S_B+3}, 0x20000")

    def dma_items(k):
        st = stages[k]
        items = [[x] for x in st.pre] + [[f"s_add_u32 m0, s{st.wq}, {slot_base(k)}"]]
        for j, (v, s_, so) in enumerate(st.pieces):
            if j == 4: items.append([f"s_add_u32 m0, s{st.wq}, {slot_base(k) + 4096}"])
            imm = 1024 * (j % 4)
            items.append([I(f"buffer_load_dwordx4 v{v}, {sr(s_)}, s{so} offen" + (f" offset:{imm}" if imm else "") + " lds", tag=f"st{k}")])
        return items
    def xdma(j):
        items = [[f"s_add_u32 s{sOB}, s{sXO}, {128*j}"], [f"s_add_u32 m0, s{sXL}, {16384*XPOS[j]}"]]
        for g in range(4):
            items.append([I(f"buffer_load_dwordx4 v{D1+g}, {sr(S_X)}, s{sOB} offen" + (f" offset:{1024*g}" if g else "") + " lds", tag=f"x{j}")])
        return items
    XV = TA; XV2 = 66
    def xreads(j):
        p_ = XPOS[j]
        return [I(f"ds_read_b128 {xfrag(2*j+h, n)}, v{(XV if p_ < 3 else XV2)+h} offset:{16384*(p_ % 3) + 2048*n}", tag=f"xr{j}") for h in range(2) for n in range(2)]

    PLRE, PLIM, PLDT = T, T + 1, T + 2
    PFL = opt.get("pf", " sc1")
    oob = hex(OOB)
    vm = []
    if opt.get("xpf", "0") == "1":
        vm += [[f"v_and_b32 v12, 15, {L}", f"v_mul_u32_u24 v12, 1152, v12", f"v_lshrrev_b32 v13, 4, {L}", f"v_lshlrev_b32 v13, 7, v13", f"v_add_u32 v12, v12, v13",
                f"s_add_u32 s100, s{sXO}, {16*1152*par}", f"buffer_load_dword a244, v12, {sr(S_X)}, s100 offen{PFL}"]]
        vm += [[f"buffer_load_dword a245, v12, {sr(S_X)}, s100 offen offset:512{PFL}"]]
        vm += [[f"v_mov_b32 v13, {oob}", f"v_cmp_gt_u32 vcc, 16, {L}", f"v_cndmask_b32 v12, v13, v12, vcc",
                f"buffer_load_dword a246, v12, {sr(S_X)}, s100 offen offset:1024{PFL}"]]
    vm += dma_items(0)
    vm += xdma(0) + xdma(1)
    vm += [[f"v_lshlrev_b32 v{VST}, 4, {L}", f"v_min_u32 v8, 47, {L}", f"v_lshlrev_b32 v{VCH}, 3, v8", f"v_add_u32 v9, s{sC0}, v8", "v_lshlrev_b32 v9, 1, v9"]
           + srd(S_P, "s66", "s67", 1152) + [f"buffer_load_ushort v{PLRE}, v9, {sr(S_P)}, 0 offen"]]
    vm += [srd(56, "s68", "s69", 1152) + [f"buffer_load_ushort v{PLIM}, v9, s[56:59], 0 offen"]]
    vm += [srd(60, "s78", "s79", 1152) + [f"buffer_load_ushort v{PLDT}, v9, s[60:63], 0 offen"]]
    vm += [srd(S_P, "s90", "s91", 1152) + [f"s_add_u32 m0, s{sW3}, {PRIV}", "s_nop 0", I(f"buffer_load_dwordx4 v{VST}, {sr(S_P)}, 0 offen lds", tag="gw")]]
    vm += [[I(f"buffer_load_dwordx4 v{VST}, {sr(S_P)}, 0 offen offset:1024 lds", tag="gw")]]
    vm1 = vm; vm = []
    vm += xdma(2) + xdma(3) + dma_items(1)
    if opt.get('x45', '1') == '1': vm += xdma(4) + xdma(5)
    vm2 = vm; vm = []
    PV = 12
    vm += [[f"s_cmp_lt_u32 s{sW}, 2", f"s_cselect_b32 s{S_W1}, s84, s86", f"s_cselect_b32 s{S_W1+1}, s85, s87", f"s_mov_b32 s{S_W1+2}, 5308416", f"s_mov_b32 s{S_W1+3}, 0x20000"]]
    if opt.get("nocpf") is None:
        vm += [[f"s_getpc_b64 s[100:101]", I(f"L_pc{par}:"),
                f"s_lshl_b32 s{sT0}, s{sTILE}, 2", f"s_add_u32 s{sT0}, s{sT0}, s{sW}", f"s_mul_i32 s{sT0}, s{sT0}, 1152",
                f"v_lshlrev_b32 v12, 7, {L}", f"v_add_u32 v12, s{sT0}, v12", f"v_min_u32 v12, CODE_SPAN{par}, v12", f"v_cmp_gt_u32 vcc, 9, {L}",
                "s_and_saveexec_b64 s[62:63], vcc", f"global_load_dword a247, v12, s[100:101]", "s_mov_b64 exec, s[62:63]"]]
    fullcol = 64 * par; halfcol = 512 if par == 0 else 0
    vm += [[f"s_lshl_b32 s{sT4}, s{sTILE}, 1", f"s_add_u32 s{sT4}, s{sT4}, s{sT3}"]]
    if opt.get("nopf") is None and opt.get("pfb", "1") == "1":
        vm += [[
                f"s_mul_i32 s100, s{sT4}, {14*128}", f"s_mul_i32 s{sT0}, s{sC0}, 1152", f"s_add_u32 s100, s100, s{sT0}",
                f"v_lshlrev_b32 v{PV}, 7, {L}", f"v_mov_b32 v{PV+1}, {oob}", f"v_cmp_gt_u32 vcc, 14, {L}", f"v_cndmask_b32 v{PV}, v{PV+1}, v{PV}, vcc",
                f"buffer_load_dword a248, v{PV}, {sr(S_B)}, s100 offen{PFL}"]]
    if opt.get("nopf") is None and opt.get("pfw", "1") == "1":
        vm += [[f"v_mul_u32_u24 v{PV}, 57, {L}", f"v_lshrrev_b32 v{PV}, 10, v{PV}", f"v_mul_u32_u24 v{PV+1}, 18, v{PV}", f"v_sub_u32 v{PV+1}, {L}, v{PV+1}",
                f"v_mul_u32_u24 v{PV+1}, 9216, v{PV+1}", f"v_mul_i32_i24 v{PV}, {fullcol - halfcol}, v{PV}", f"v_add_u32 v{PV}, {halfcol}, v{PV}",
                f"v_add_u32 v{PV}, v{PV}, v{PV+1}",
                f"v_mov_b32 v{PV+1}, {oob}", f"v_cmp_gt_u32 vcc, 36, {L}", f"v_cndmask_b32 v{PV}, v{PV+1}, v{PV}, vcc",
                f"s_mul_i32 s100, s{sT4}, {18*9216}", f"s_mul_i32 s{sT0}, s{sSLICE}, 576", f"s_add_u32 s100, s100, s{sT0}",
                f"buffer_load_dword a251, v{PV}, {sr(S_W1)}, s100 offen{PFL}"]]
    if opt.get("pfall"):
        which = opt["pfall"]
        Q = PV
        if "a" in which:
            vm += [[f"v_mul_u32_u24 v{Q}, 57, {L}", f"v_lshrrev_b32 v{Q}, 10, v{Q}", f"v_mul_u32_u24 v{Q+1}, 18, v{Q}", f"v_sub_u32 v{Q+1}, {L}, v{Q+1}",
                    f"v_mul_u32_u24 v{Q+1}, 9216, v{Q+1}", f"v_lshlrev_b32 v{Q}, 7, v{Q}", f"v_add_u32 v{Q}, {fullcol + 128}, v{Q}", f"v_add_u32 v{Q+1}, v{Q+1}, v{Q}",
                    f"v_mov_b32 v{Q}, {oob}", f"v_cmp_gt_u32 vcc, 54, {L}", f"v_cndmask_b32 v{Q+1}, v{Q}, v{Q+1}, vcc",
                    f"s_mul_i32 s100, s{sT4}, {18*9216}", f"s_mul_i32 s{sT0}, s{sSLICE}, 576", f"s_add_u32 s100, s100, s{sT0}",
                    f"buffer_load_dword a252, v{Q+1}, {sr(S_W1)}, s100 offen{PFL}"]]
        if "d" in which:
            vm += [srd(56, "s88", "s89", 5308416) + [f"v_lshlrev_b32 v{Q}, 7, {L}", f"v_mov_b32 v{Q+1}, {oob}", f"v_cmp_gt_u32 vcc, 41, {L}", f"v_cndmask_b32 v{Q}, v{Q+1}, v{Q}, vcc",
                    f"s_lshl_b32 s100, s{sTILE}, 2", f"s_add_u32 s100, s100, s{sW}", f"s_mul_i32 s100, s100, {41*128}", f"s_mul_i32 s{sT0}, s{sSLICE}, {288*1152}",
                    f"s_add_u32 s100, s100, s{sT0}", f"buffer_load_dword a246, v{Q}, s[56:59], s100 offen{PFL}"]]
        if "c" in which:
            vm += [[f"s_cmp_lt_u32 s{sW}, 2", f"s_cselect_b32 s56, s74, s76", f"s_cselect_b32 s57, s75, s77", "s_mov_b32 s58, 663552", "s_mov_b32 s59, 0x20000",
                    f"v_lshrrev_b32 v{Q}, 1, {L}", f"v_mul_u32_u24 v{Q}, 1152, v{Q}", f"v_and_b32 v{Q+1}, 1, {L}", f"v_mul_u32_u24 v{Q+1}, 92, v{Q+1}",
                    f"v_add_u32 v{Q}, v{Q}, v{Q+1}", f"v_mov_b32 v{Q+1}, {oob}", f"v_cmp_gt_u32 vcc, 36, {L}", f"v_cndmask_b32 v{Q}, v{Q+1}, v{Q}, vcc",
                    f"s_mul_i32 s100, s{sT4}, {18*1152}", f"s_lshl_b32 s{sT0}, s{sC0}, 1", f"s_add_u32 s100, s100, s{sT0}",
                    f"buffer_load_dword a245, v{Q}, s[56:59], s100 offen{PFL}"]]
    fill = []
    F = lambda *x: fill.extend(list(x))
    F(*base_R2(14))
    F(f"v_add_u32 v{XV}, s{sXL}, v{RB[0]}", f"v_add_u32 v{XV+1}, s{sXL}, v{RB[1]}", f"v_add_u32 v{XV2}, 49152, v{XV}", f"v_add_u32 v{XV2+1}, 49152, v{XV+1}")
    F(f"v_lshrrev_b32 v3, 4, {L}", f"v_lshlrev_b32 v{GWB}, 4, v3", f"v_add_u32 v{GWB}, s{sW3}, v{GWB}", f"v_add_u32 v{GWB}, {PRIV}, v{GWB}")
    F(*voff_W1half(D2, 14))
    F(*base_T64(P1, 14))
    F(f"s_mul_i32 s{sT0}, s{sSLICE}, 576", f"s_mul_i32 s{sT1}, s{sT3}, {48*9216}", f"s_add_u32 s{sW1F}, s{sT0}, s{sT1}", f"s_add_u32 s{sW1F}, s{sW1F}, {fullcol}",
      f"s_mul_i32 s{sT1}, s{sT3}, {96*9216}", f"s_add_u32 s{sW1H}, s{sT0}, s{sT1}", f"s_add_u32 s{sW1H}, s{sW1H}, {halfcol}")
    F([f"s_cmp_lt_u32 s{sW}, 2", f"s_cselect_b32 s{S_C}, s74, s76", f"s_cselect_b32 s{S_C+1}, s75, s77"], f"s_mov_b32 s{S_C+2}, 663552", f"s_mov_b32 s{S_C+3}, 0x20000")
    F(*srd(S_WD, "s88", "s89", 5308416))
    F(*srd(S_WS, "s96", "s97", WS_END + (1 << 19) * bool(ts)))
    F(f"s_mul_i32 s{sT0}, s{sSLICE}, 6144", f"s_add_u32 s{sT0}, s{sT0}, {WS_S}", [f"s_add_u32 s{S_S}, s96, s{sT0}", f"s_addc_u32 s{S_S+1}, s97, 0"],
      f"s_mov_b32 s{S_S+2}, 6144", f"s_mov_b32 s{S_S+3}, 0x20000")
    F(*srd(S_DBG, "s94", "s95", 256))
    nfill_early = len(fill)
    late = []
    G = lambda *x: late.extend(list(x))
    G(f"s_lshr_b32 s{sT0}, s{sSLICE}, 1", f"s_mul_i32 s{sT0}, s{sT0}, {576*1152}",
      f"s_mul_i32 s{sT1}, s{sT3}, {48*1152}", f"s_lshr_b32 s{sT2}, s{sW}, 1", f"s_lshl_b32 s{sT2}, s{sT2}, 7",
      f"s_add_u32 s{sWD2}, s{sT0}, s{sT1}", f"s_add_u32 s{sWD2}, s{sWD2}, s{sT2}",
      f"s_add_u32 s{sT0}, s{sT0}, {288*1152*par}", f"s_mul_i32 s{sT1}, s{sW}, {48*1152}", f"s_add_u32 s{sWD1}, s{sT0}, s{sT1}",
      f"s_mul_i32 s{sT1}, s{sW}, {24*1152}", f"s_add_u32 s{sWD1B}, s{sT0}, s{sT1}", f"s_add_u32 s{sWD1B}, s{sWD1B}, {192*1152}")
    G(f"s_add_u32 s{sC0P}, s{sC0}, {32 if par == 0 else -32 & 0xffffffff}")
    G(f"s_mul_i32 s{sT1}, s{sT3}, {64*1152}", f"s_lshl_b32 s{sT2}, s{sC0}, 1", f"s_add_u32 s{sC2}, s{sT1}, s{sT2}",
      f"s_lshl_b32 s{sT0}, s{sC0P}, 1", f"s_add_u32 s{sC2P}, s{sT1}, s{sT0}",
      f"s_mul_i32 s{sT1}, s{sT3}, {32*1152}", f"s_add_u32 s{sC1}, s{sT1}, s{sT2}")
    G(f"s_lshr_b32 s{sP8}, s{sSLICE}, 1", f"s_lshl_b32 s{sP8}, s{sP8}, 4", f"s_add_u32 s{sP8}, s{sP8}, s{sTILE}", f"s_lshl_b32 s{sP8}, s{sP8}, 2",
      f"s_add_u32 s{sP8}, s{sP8}, s{sW}", f"s_lshl_b32 s{sP8}, s{sP8}, 15", f"s_add_u32 s{sP8}, s{sP8}, {WS_P8 + 16384*par}")
    G(f"s_lshl_b32 s{sP16}, s{sSLICE}, 4", f"s_add_u32 s{sP16}, s{sP16}, s{sTILE}", f"s_lshl_b32 s{sP16}, s{sP16}, 2", f"s_add_u32 s{sP16}, s{sP16}, s{sW}",
      f"s_lshl_b32 s{sP16}, s{sP16}, 12", f"s_add_u32 s{sP16}, s{sP16}, {WS_P16}")
    G(f"s_lshl_b32 s{sHO}, s{sTILE}, 4", f"s_add_u32 s{sHP}, s{sHO}, s{sSLICE}", f"s_lshl_b32 s{sHP}, s{sHP}, 2", f"s_add_u32 s{sHP}, s{sHP}, s{sW}",
      f"s_mul_i32 s{sHO}, s{sHP}, {24*1024}", f"s_add_u32 s{sHO}, s{sHO}, {WS_H}",
      f"s_add_u32 s{sHP}, s{sHO}, {(4*24*1024 if par == 0 else -4*24*1024) & 0xffffffff}")
    G(f"s_bfm_b64 s[{sMASK}:{sMASK+1}], s{sTILE}, 0", f"s_not_b64 s[{sMASK}:{sMASK+1}], s[{sMASK}:{sMASK+1}]")
    for k, sm in ((1, sM1), (2, sM2), (3, sM3)):
        G([f"s_cmp_ge_u32 s{sW}, {k}", f"s_cselect_b32 s{sm}, 1.0, 0"])
    if opt.get("nopf") is None:
        Q = TS
        G(f"v_mul_u32_u24 v{Q}, 57, {L}", f"v_lshrrev_b32 v{Q}, 10, v{Q}", f"v_mul_u32_u24 v{Q+1}, 18, v{Q}", f"v_sub_u32 v{Q+1}, {L}, v{Q+1}",
          f"v_mul_u32_u24 v{Q+1}, 9216, v{Q+1}", f"v_lshlrev_b32 v{Q}, 7, v{Q}", f"v_add_u32 v{Q}, {fullcol + 128}, v{Q}", f"v_add_u32 v{Q+1}, v{Q+1}, v{Q}",
          f"v_mov_b32 v{Q+2}, {oob}", f"v_cmp_gt_u32 vcc, 54, {L}", f"v_cndmask_b32 v{Q+1}, v{Q+2}, v{Q+1}, vcc", f"v_accvgpr_write_b32 a253, v{Q+1}")
        G(f"v_lshlrev_b32 v{Q}, 7, {L}", f"v_cmp_gt_u32 vcc, 41, {L}", f"v_cndmask_b32 v{Q}, v{Q+2}, v{Q}, vcc", f"v_accvgpr_write_b32 a254, v{Q}")
        G(f"v_lshrrev_b32 v{Q}, 1, {L}", f"v_mul_u32_u24 v{Q}, 1152, v{Q}", f"v_and_b32 v{Q+1}, 1, {L}", f"v_mul_u32_u24 v{Q+1}, 92, v{Q+1}",
          f"v_add_u32 v{Q}, v{Q}, v{Q+1}", f"v_cmp_gt_u32 vcc, 36, {L}", f"v_cndmask_b32 v{Q}, v{Q+2}, v{Q}, vcc", f"v_accvgpr_write_b32 a255, v{Q}")
    LRE, LIM, DT, E1, R1, M_, A_ = T + 3, T + 4, T + 5, T + 6, T + 7, T + 20, T + 21
    TB = T + 8; CH = T + 22
    G(f"v_lshlrev_b32 v{LRE}, 16, v{PLRE}", f"v_lshlrev_b32 v{LIM}, 16, v{PLIM}", f"v_lshlrev_b32 v{DT}, 16, v{PLDT}")
    G(f"v_mul_f32 v{DT}, {hex(LOG2E)}, v{DT}", f"v_exp_f32 v{DT}, v{DT}", f"v_lshrrev_b32 v{CH}, 3, v{VCH}",
      f"v_cvt_pk_bf16_f32 v{DT}, v{DT}, v{DT}", f"v_lshlrev_b32 v{DT}, 16, v{DT}")
    G(f"v_mul_f32 v{E1}, v{DT}, v{LRE}", f"v_mul_f32 v{R1}, v{DT}, v{LIM}", f"v_mul_f32 v{E1}, {hex(LOG2E)}, v{E1}", f"v_mul_f32 v{R1}, {hex(INV2PI)}, v{R1}")
    def cpow(dre, dim, nsrc):
        return [f"v_mul_f32 v{M_}, {nsrc}, v{E1}", f"v_mul_f32 v{A_}, {nsrc}, v{R1}", f"v_exp_f32 v{M_}, v{M_}", f"v_fract_f32 v{A_}, v{A_}",
                f"v_cos_f32 v{dre}, v{A_}", f"v_sin_f32 v{dim}, v{A_}", f"v_mul_f32 v{dre}, v{M_}, v{dre}", f"v_mul_f32 v{dim}, v{M_}, v{dim}"]
    G(*cpow(TB, TB + 1, "1.0")); G(*cpow(TB + 2, TB + 3, "2.0"))
    G(f"s_mov_b32 s{sT0}, 0x40400000"); G(*cpow(TB + 4, TB + 5, f"s{sT0}"))
    G(*cpow(TB + 6, TB + 7, "4.0"))
    G(f"v_mov_b32 v{A4}, v{TB+6}", f"v_mov_b32 v{A4+1}, v{TB+7}")
    G(f"s_mov_b32 s{sT0}, 0x42000000"); G(*cpow(A32, A32 + 1, f"s{sT0}"))
    G(f"s_mov_b32 s{sT0}, 0x43000000"); G(*cpow(A128, A128 + 1, f"s{sT0}"))
    G(f"s_lshl_b32 s{sT0}, s{sW}, 5", f"v_cvt_f32_u32 v{T+23}, s{sT0}"); G(*cpow(PW, PW + 1, f"v{T+23}"))
    KC = T
    G(f"v_add_f32 v{M_}, -1.0, v{TB}", f"v_mul_f32 v{A_}, v{LRE}, v{LRE}", f"v_fmac_f32 v{A_}, v{LIM}, v{LIM}", f"v_rcp_f32 v{A_}, v{A_}",
      f"v_mul_f32 v{KC}, v{M_}, v{LRE}", f"v_fmac_f32 v{KC}, v{TB+1}, v{LIM}",
      f"v_mul_f32 v{KC+1}, v{TB+1}, v{LRE}", f"v_fma_f32 v{KC+1}, -v{M_}, v{LIM}, v{KC+1}",
      f"v_mul_f32 v{KC}, v{KC}, v{A_}", f"v_mul_f32 v{KC+1}, v{KC+1}, v{A_}")
    G(f"v_cmp_gt_u32 vcc, {32 + 8*par}, v{CH}", f"v_mul_u32_u24 v{CH}, 48, v{CH}", f"v_add_u32 v{CH}, {TAB}, v{CH}",
      f"v_cndmask_b32 v{KC}, 0, v{KC}, vcc", f"v_cndmask_b32 v{KC+1}, 0, v{KC+1}, vcc")
    G(f"v_mov_b32 v{KC+2}, 0", f"v_mov_b32 v{KC+3}, 0")
    G(f"ds_write_b128 v{CH}, {vr(TB)}", f"ds_write_b128 v{CH}, {vr(TB+4)} offset:16", f"ds_write_b128 v{CH}, {vr(KC)} offset:32")
    per = int(opt.get("per", 12))
    if opt.get("lateinpro", "0") == "1":
        A(interleave(vm1, fill, per)); A(interleave(vm2, late, int(opt.get("per2", 14)))); late = []
        A(interleave(vm, [], 0))
    else:
        if opt.get("pffirst", "0") == "1":
            A(interleave(vm, [], 0)); A(interleave(vm1 + vm2, fill, per))
        elif opt.get("pffirst", "0") == "2":
            n0 = len(dma_items(0)) + 2 * len(xdma(0))
            A(interleave(vm1[:n0], fill[:57], per)); A(interleave(vm, [], 0)); A(interleave(vm1[n0:] + vm2, fill[57:], per))
        else:
            A(interleave(vm1 + vm2 + vm, fill, per))

    units, ustage, u0 = [], [], []
    for k, st in enumerate(stages):
        u0.append(len(units))
        for un in st.units: units.append(un); ustage.append(k)
    NU = len(units); u0.append(NU)

    def read_ins(u):
        un = units[u]; k = ustage[u]
        o = []; d = afrag(u)
        for (op, nreg, (kind, idx), off) in un["reads"]:
            s_ = setof(k)
            if kind == "abs": b, o2 = idx, off
            else:
                b = {"R": lambda: RB[2*s_ + idx], "T64": lambda: T64B[2*s_ + idx], "T128": lambda: T128B[4*s_ + idx], "C": lambda: CB[s_]}[kind]()
                o2 = off + slot_rel(k)
            assert o2 < 65536
            o.append(I(f"{op} {ar(d, nreg)}, v{b}" + (f" offset:{o2}" if o2 else ""))); d += nreg
        return o

    DEPTH = int(opt.get('depth', 6)); WE = int(opt.get('we', 4)); WOFF = int(opt.get('woff', 1)); RR = int(opt.get('rr', 0))
    def stamp(i):
        op = "s_memrealtime" if ts == "5" and i not in (59,) else "s_memtime"
        return [I(f"{op} s[100:101]"), I("s_waitcnt lgkmcnt(0)"), I(f"v_writelane_b32 v255, s100, {i}")]
    kH = 5; kF = lambda c: 8 + 6 * c; kPA = 32; kPM = 40
    kWB = kF(0) + 1
    kHA = kF(3) + int(opt.get('kha', 2))
    kHB = int(opt.get('khb', 38))
    kHC = int(opt.get('khc', 43))
    FUSE = opt.get('fuse', '1') == '1'
    kFM = 47
    BTAG = {kFM: ('pstM',) if FUSE else (), 1: ('xr2',), 4: ('xr8', 'xr7', 'xr6'), kWB: ('wtot',), kHA: ('hstA',), kHB: ('hstB',), kHC: ('hstC',)}
    slots = []; bar_mf = {}
    fs = [int(x) for x in opt.get("fs", "").split(",") if x]
    for u in range(NU):
        un = units[u]; fr = ar(afrag(u))
        rd = read_ins(u + DEPTH) if u + DEPTH < NU else []
        pre = []
        kn = ustage[u + DEPTH] if u + DEPTH < NU else None
        if kn is not None and u + DEPTH == u0[kn]:
            if opt.get("splitbar", "1") == "1" and slots:
                slots[-1].pre = slots[-1].pre + [WaitTag(f"st{kn}", *BTAG.get(kn, ()))]
                pre += [I("s_barrier")]
            else:
                pre += [WaitTag(f"st{kn}", *BTAG.get(kn, ())), I("s_barrier")]
            if ts == "1" or (ts == "4" and kn in (5, 32)) or (ts == "5" and kn in (1, 5, 8, 14, 20, 26, 32, 36, 40, 43, 47)) or (ts == "2" and kn in (1, 2, 3, 4, 5, 8, 14, 20, 26, 32, 35, 40, 43, 47)): pre += stamp(kn + 1)
            bar_mf[kn] = 2 * u
        if ts == "3":
            k_ = ustage[u]
            if k_ in fs and (u - u0[k_]) % 3 == 0 and (u - u0[k_]) // 3 < 8:
                j_ = (u - u0[k_]) // 3
                pre += [I(f"s_memtime s[{78+2*j_}:{79+2*j_}]")]
            if k_ - 1 in fs and u == u0[k_] + 2:
                base_ = 8 * fs.index(k_ - 1) + 1
                pre += [I("s_waitcnt lgkmcnt(0)")] + [I(f"v_writelane_b32 v255, s{78+2*j_}, {base_ + j_}") for j_ in range(8)]
        if (u + WOFF) % WE == 0 or u == 0:
            rg = []
            for x in range(u, min(u + (WE if (u + WOFF) % WE == 0 else WE - WOFF), NU)): rg += regs_of(ar(afrag(x)))
            pre += [WaitRegs(rg)]
        for n in range(2):
            d, a, b, c = un["mf"][n]
            txt = mf(d, a, fr, c) if un["swap"] else mf(d, fr, b, c)
            if RR and len(rd) == 2 and u % RR == RR - 2: post = rd if n == 0 else []
            else: post = rd[n:n + 1] if n < len(rd) else []
            slots.append(Slot(txt, pre if n == 0 else [], post))
    mend = lambda k: 2 * u0[k + 1] - 1
    mbeg = lambda k: 2 * u0[k]
    if ts: A(stamp(60))
    A(WaitTag("x0")); A(xreads(0)); A(WaitTag("x1")); A(xreads(1))
    A(WaitTag("st0", "gw"), "s_barrier")
    if ts: A(stamp(1))
    for u in range(DEPTH): A(read_ins(u))

    mXB = mend(4)
    XS = 2 * len(stages[0].units)
    sD = Stream("dma", 0)
    fr_of = lambda j: [r for h in range(2) for n in range(2) for r in regs_of(xfrag(2*j+h, n))]
    def xd(j, e, dl, after=None):
        if after is not None: sD.add([WaitRegs(fr_of(after))], e, dl)
        for it in xdma(j): sD.add(it, e, dl)
    def xr(j, e, dl):
        sD.add([WaitTag(f"x{j}")], e, dl)
        for r_ in xreads(j): sD.add(r_, e, dl)
    if opt.get('x45', '1') != '1':
        xd(4, 0, 8); xd(5, 0, 16)
    xr(2, 0, 14); xr(3, 0, 20)
    for it in dma_items(2): sD.add(it, 0, 34)
    xd(6, 10, bar_mf[1] + 2, after=3)
    for it in dma_items(3): sD.add(it, bar_mf[1], bar_mf[1] + 16)
    xr(4, bar_mf[1], bar_mf[1] + 22)
    xd(7, bar_mf[1] + 8, bar_mf[1] + 34, after=4)
    xr(5, bar_mf[1] + 12, bar_mf[1] + 38)
    xd(8, bar_mf[1] + 24, bar_mf[2] + 4, after=5)
    for it in dma_items(4): sD.add(it, bar_mf[2], bar_mf[2] + 20)
    xr(6, bar_mf[2], bar_mf[3] - 8); xr(7, bar_mf[2], bar_mf[3] - 2)
    for it in dma_items(5): sD.add(it, bar_mf[3], bar_mf[3] + 16)
    xr(8, bar_mf[3] + 4, bar_mf[4] - 2)
    xdone = bar_mf[4]
    prev_user = {}; dma_e = {}; dma_d = {}
    e_prev = bar_mf[3] + 16; d_prev = e_prev
    for k in range(NST):
        sl_ = slot_of(k)
        if k >= 6:
            e_ = bar_mf[prev_user[sl_] + 2] if sl_ in prev_user else bar_mf[4]
            if k in (7, 8): e_ = max(e_, bar_mf[4])
            e_ = max(e_, e_prev)
            lead = int(opt.get("lead", 75))
            if k < int(opt.get("krelax", 16)): d_ = max(min(bar_mf[k] - lead, bar_mf[k] - 2), min(d_prev + 14, bar_mf[k] - 2), e_ + 4)
            else: d_ = min(max(e_ + 44, d_prev + 14), bar_mf[k] - 2)
            d_ = min(d_, bar_mf[k] - 2)
            for it in dma_items(k): sD.add(it, e_, d_)
            dma_e[k], dma_d[k] = e_, d_
            e_prev, d_prev = e_, d_
        prev_user[sl_] = k
    clr = [[f"s_lshl_b32 s{sT0}, s{sSLICE}, 4", f"s_add_u32 s{sT0}, s{sT0}, s{sTILE}", f"s_lshl_b32 s{sT1}, s{sT0}, 7", f"s_add_u32 s{sT1}, s{sT1}, {WS_F}",
            f"s_cmp_eq_u32 s{sW}, 0", f"s_cselect_b32 s{sT2}, 1, 0"],
           f"v_cmp_gt_u32 vcc, s{sT2}, {L}", f"v_mov_b32 v{TS}, {oob}", f"v_mov_b32 v{TS+1}, s{sT1}", f"v_mov_b32 v{TS+2}, s{sT0}", f"v_mov_b32 v{TS+3}, 0",
           f"v_cndmask_b32 v{TS+1}, v{TS}, v{TS+1}, vcc", f"v_cndmask_b32 v{GWB+0 if False else TA+2}, v{TS}, v{TS+2}, vcc",
           I(f"buffer_store_dword v{TS+3}, v{TS+1}, {sr(S_WS)}, 0 offen sc1", tag="clr")]
    sP = Stream("setup", 1)
    for x in clr: sP.add(x, 0, 60)
    for x in late: sP.add(x, 0, mXB)
    sCl = Stream("clr", 1)
    sCl.add([I(f"v_mov_b32 v64, 1"), WaitTag("clr"), I(f"buffer_store_byte v64, v{TA+2}, {sr(S_DBG)}, 0 offen sc1")], bar_mf[2], bar_mf[3] + 10)
    sA = Stream("addr", 1)
    sA.extend(voff_W1full(D1, TA + 2), bar_mf[3] + 12, dma_e[kF(0)])
    common = base_list_T128(T128B, 8, TA, None)
    sA.extend(common, xdone + 1, bar_mf[kF(0)])
    for idx in range(6): sA.extend(t128_regs(idx, TA), xdone + 1, bar_mf[kF(0)])
    for idx in range(6, 12): sA.extend(t128_regs(idx, TA), mXB + 1, bar_mf[kF(0)])
    sA.extend(voff_Wd(D2, TA), max(dma_d[7], mXB + 2), dma_e[kPA])
    sA.extend([x.replace(f'v{TA+2}', f'v{CB[2]}') for x in base_C(CB[0], TA)], bar_mf[kF(0)] + 4, bar_mf[40])
    sA.extend(voff_C(D1, TA), dma_d[kPA - 1], dma_e[40])
    last_use = {}; next_use = {}
    for k in range(kF(0), kPA): last_use[setof(k)] = k
    for k in range(NST - 1, kPA - 1, -1):
        if stages[k].fmt.startswith("Wd"): next_use[setof(k)] = k
    sB = Stream("bases", 1)
    order = sorted(range(3), key=lambda s_: last_use[s_])
    sB.add(f"v_lshrrev_b32 v{TA+2}, 4, {L}", bar_mf[last_use[order[0]] + 1], bar_mf[next_use[order[0]]] - 20)
    sB.add(f"v_lshlrev_b32 v{TA+2}, 9, v{TA+2}", bar_mf[last_use[order[0]] + 1], bar_mf[next_use[order[0]]] - 20)
    for s_ in order:
        for mt in range(4):
            r_ = T128B[4 * s_ + mt]
            sB.add(f"v_sub_u32 v{r_}, v{r_}, v{TA+2}", bar_mf[last_use[s_] + 1], bar_mf[next_use[s_]])

    sE = Stream("epi", 2)
    HST = opt.get("hst", " sc1")
    def hstore(reg, K, n, tag):
        off = (K * 2 + n) * 1024
        return [I(f"s_add_u32 s{sHT}, s{sHO}, {off & ~4095}"),
                I(f"buffer_store_dwordx4 {vr(reg)}, v{VST}, {sr(S_WS)}, s{sHT} offen" + (f" offset:{off & 4095}" if off & 4095 else "") + HST, tag=tag)]
    def ffn_epi(buf, Ks, earliest, deadline, tag):
        for kk, K in enumerate(Ks):
            for n in range(2):
                o = []
                gs = [buf + (2 * kk + h) * 8 + 4 * n for h in range(2)]; us = [buf + (4 + 2 * kk + h) * 8 + 4 * n for h in range(2)]
                for h in range(2):
                    g, u_ = gs[h], us[h]
                    if opt.get("norho"):
                        for r in range(4): o += [f"v_max_f32 v{g+r}, 0, v{g+r}"]
                    else:
                        for r in range(4): o += [f"v_max_f32 v{g+r}, 0, v{g+r}", f"v_mul_f32 v{u_+r}, v{SF+n}, v{u_+r}"]
                    for r in range(4): o += [f"v_mul_f32 v{g+r}, v{g+r}, v{u_+r}"]
                d = us[0]
                o += [f"v_cvt_pk_bf16_f32 v{d}, v{gs[0]}, v{gs[0]+1}", f"v_cvt_pk_bf16_f32 v{d+1}, v{gs[0]+2}, v{gs[0]+3}",
                      f"v_cvt_pk_bf16_f32 v{d+2}, v{gs[1]}, v{gs[1]+1}", f"v_cvt_pk_bf16_f32 v{d+3}, v{gs[1]+2}, v{gs[1]+3}"]
                h_ = AH + 8 * K + 4 * n
                o += [f"v_accvgpr_write_b32 a{h_+j}, v{d+j}" for j in range(4)]
                sE.extend(o, earliest, deadline)
                sE.add(hstore(d, K, n, tag), earliest, deadline)
    ffn_epi(ACC[0], [8], mend(kH + 2) + 4, mbeg(kF(1)), "hstA")
    ffn_epi(ACC[1], [0, 1], mend(kF(0) + 5) + 4, mbeg(kF(2)), "hstA")
    ffn_epi(ACC[0], [2, 3], mend(kF(1) + 5) + 4, mbeg(kF(3)) - 60, "hstA")
    ffn_epi(ACC[1], [4, 5], mend(kF(2) + 5) + 4, mbeg(kPA), "hstB")
    ffn_epi(ACC[0], [6, 7], mend(kF(3) + 5) + 4, mbeg(35) - 4, "hstB")
    PST = opt.get("pst", " sc1")
    DLP = {2: bar_mf[kFM - 2] if FUSE else None, 0: None, 1: None}
    for p, k1 in ((2, 42), (0, 48), (1, 50)):
        nm = 8 if p < 2 else 4
        last = mend(k1)
        sreg = sP8 if p < 2 else sP16
        for m in range(nm):
            if p < 2:
                a = ACC[(p + 1) & 1] + m * 8
                o = []
            else:
                a = T + 8 * (m & 1)
                o = [f"v_accvgpr_read_b32 v{a+j}, a{PMACC[m]+j}" for j in range(8)]
            o += [f"v_cvt_pk_bf16_f32 v{a}, v{a}, v{a+1}", f"v_cvt_pk_bf16_f32 v{a+1}, v{a+2}, v{a+3}",
                  f"v_cvt_pk_bf16_f32 v{a+2}, v{a+4}, v{a+5}", f"v_cvt_pk_bf16_f32 v{a+3}, v{a+6}, v{a+7}"]
            sE.extend(o, last + 4, DLP[p])
            imm = 1024 * (m % 4)
            sE.add(f"buffer_store_dwordx4 {vr(a)}, v{VST}, {sr(S_WS)}, s{sreg} offen" + (f" offset:{imm}" if imm else "") + PST, last + 4, DLP[p])
            sE.q[-1][0][0].tag = "pst" + "ABM"[p]
            if p == 1:
                for it in list(sE.q)[-(len(o) + 1):]:
                    for x in it[0]: x.pbepi = True
            if m % 4 == 3:
                sE.add(f"s_add_u32 s{sreg}, s{sreg}, 4096", last + 4, DLP[p])
                if p == 1: sE.q[-1][0][0].pbepi = True

    sS = Stream("ssm", 3)
    e = [mXB + 4]
    add = lambda x, deadline=None: sS.add(x, e[0], deadline)
    def adds(lst, **kw):
        for x in lst: add(x, **kw)
    dlG = mend(kH + 2)
    G0, G1, Z = T, T + 1, T + 2
    adds([f"v_lshrrev_b32 v{G0}, 4, {L}", f"v_lshlrev_b32 v{G0}, 4, v{G0}", f"v_add_u32 v{G0}, s{sW3}, v{G0}", f"v_add_u32 v{G0}, {PRIV}, v{G0}"])
    for n in range(2): add(f"ds_write_b128 v{G0}, {vr(LG+4*n)} offset:{64*n}")
    adds([f"v_and_b32 v{G1}, 31, {L}", f"v_lshlrev_b32 v{G1}, 2, v{G1}", f"v_add_u32 v{G1}, s{sW3}, v{G1}", f"v_add_u32 v{G1}, {PRIV}, v{G1}",
          f"ds_read_b32 v{Z}, v{G1}"])
    TA1 = T + 8
    adds([f"v_and_b32 v{VT}, 15, {L}", f"v_mul_u32_u24 v{VT}, 48, v{VT}", f"v_add_u32 v{VT}, {TAB}, v{VT}"])
    for b in range(nS): add(f"ds_read_b64 {vr(TA1+2*b, 2)}, v{VT} offset:{b*768}")
    adds([f"v_cvt_pk_bf16_f32 v{Z}, v{Z}, v{Z}", f"v_lshlrev_b32 v{Z}, 16, v{Z}", f"v_mul_f32 v{Z}, {hex(LOG2E ^ 0x80000000)}, v{Z}", f"v_exp_f32 v{Z}, v{Z}",
          f"v_lshrrev_b32 v{VE}, 4, {L}",
          f"v_add_f32 v{Z}, 1.0, v{Z}", f"v_rcp_f32 v{Z}, v{Z}", f"v_mul_u32_u24 v{VE}, 384, v{VE}",
          f"v_cvt_pk_bf16_f32 v{Z}, v{Z}, v{Z}", f"v_lshlrev_b32 v{Z}, 16, v{Z}",
          f"v_sub_f32 v{T+3}, 1.0, v{Z}", f"v_cvt_pk_bf16_f32 v{T+3}, v{T+3}, v{T+3}", f"v_lshlrev_b32 v{T+3}, 16, v{T+3}", f"v_add_f32 v{T+4}, v{Z}, v{Z}",
          f"ds_write_b32 v{G1}, v{T+3} offset:128", f"ds_write_b32 v{G1}, v{T+4} offset:256", f"ds_write_b32 v{G1}, v{Z} offset:384"])
    if par == 0:
        add([f"s_lshl_b32 s{sT0}, s{sTILE}, 7", f"s_lshl_b32 s{sT1}, s{sW}, 5", f"s_add_u32 s{sT0}, s{sT0}, s{sT1}", f"s_lshl_b32 s{sT0}, s{sT0}, 2",
             f"s_add_u32 s{sT0}, s{sT0}, {WS_G}", f"s_cmp_eq_u32 s{sSLICE}, 0", f"s_cselect_b32 s{sT1}, 32, 0"])
        adds([f"v_lshlrev_b32 v{T+5}, 2, {L}", f"v_cmp_gt_u32 vcc, s{sT1}, {L}", f"v_mov_b32 v{T+6}, {oob}",
              f"v_cndmask_b32 v{T+5}, v{T+6}, v{T+5}, vcc", I(f"buffer_store_dword v{Z}, v{T+5}, {sr(S_WS)}, s{sT0} offen sc1", tag="sst")])
    adds([f"v_and_b32 v{T+7}, 15, {L}", f"v_lshlrev_b32 v{T+7}, 2, v{T+7}", f"v_add_u32 v{T+7}, s{sW3}, v{T+7}", f"v_add_u32 v{T+7}, {PRIV}, v{T+7}"])
    for n in range(2): add(f"ds_read_b32 v{SF+n}, v{T+7} offset:{128+64*n}")
    for n in range(2): add(f"ds_read_b128 {vr(LG+4*n)}, v{G0} offset:{256+64*n}")
    for n in range(2): add(f"ds_read_b32 v{T+5+n}, v{T+7} offset:{384+64*n}")
    adds([f"v_and_b32 v{VE+1}, 15, {L}", f"v_lshlrev_b32 v{VE+1}, 3, v{VE+1}", f"v_add_u32 v{VE}, v{VE}, v{VE+1}", f"v_add_u32 v{VE}, s{sW3}, v{VE}",
          f"v_add_u32 v{VE}, {PRIV}, v{VE}", f"v_add_u32 v{VE+1}, 1536, v{VE}"])
    add(WaitRegs([f"v{SF}", f"v{SF+1}"] + regs_of(vr(LG, 8))), deadline=dlG)
    adds([f"v_accvgpr_write_b32 a249, v{T+5}", f"v_accvgpr_write_b32 a250, v{T+6}"])
    for r in range(1, 4):
        for b in range(nS):
            are, aim = TA1 + 2 * b, TA1 + 2 * b + 1
            for n in range(2):
                R, Im = xb(b, 0, n), xb(b, 1, n)
                adds([f"v_fmac_f32 v{R+r}, v{are}, v{R+r-1}", f"v_fmac_f32 v{Im+r}, v{are}, v{Im+r-1}"])
            for n in range(2):
                R, Im = xb(b, 0, n), xb(b, 1, n)
                adds([f"v_fma_f32 v{R+r}, -v{aim}, v{Im+r-1}, v{R+r}", f"v_fmac_f32 v{Im+r}, v{aim}, v{R+r-1}"])
    for b in range(nS):
        for n in range(2):
            add(f"ds_write2_b32 v{VE+n}, v{xb(b,0,n)+3}, v{xb(b,1,n)+3} offset0:{32*b} offset1:{32*b+1}")
    adds([f"v_add_u32 v{VP}, s{sW3}, v{VCH}", f"v_add_u32 v{VP}, {PRIV}, v{VP}"])
    for m in range(8): add(f"ds_read_b64 {vr(T+2*m, 2)}, v{VP} offset:{384*m}")
    add([f"s_mul_i32 s{sT0}, s{sW}, 384", f"s_add_u32 s{sT0}, s{sT0}, {WTOT}"]); add(f"v_add_u32 v{TS}, s{sT0}, v{VCH}")
    for m in range(1, 8): adds(cmul_acc(T + 2*m, T + 2*m + 1, A4, A4 + 1, T + 2*m - 2, T + 2*m - 1))
    add(I(f"ds_write_b64 v{TS}, {vr(T+14, 2)}", tag="wtot"), deadline=bar_mf[kWB] - 2)
    e[0] = bar_mf[kWB]
    adds([f"v_add_u32 v{TS}, {WTOT}, v{VCH}"])
    for m in range(4): add(f"ds_read_b64 {vr(T+2*m, 2)}, v{TS} offset:{384*m}")
    add([f"s_mul_i32 s{sT0}, s{sTILE}, 384", f"s_cmp_eq_u32 s{sW}, 0", f"s_cselect_b32 s{sT1}, 48, 0"])
    adds([f"v_add_u32 v{TS+1}, s{sT0}, v{VCH}", f"v_cmp_gt_u32 vcc, s{sT1}, {L}", f"v_mov_b32 v{TS+2}, {oob}"])
    for m in range(1, 4): adds(cmul_acc(T + 2*m, T + 2*m + 1, A32, A32 + 1, T + 2*m - 2, T + 2*m - 1))
    adds([f"v_cndmask_b32 v{TS+1}, v{TS+2}, v{TS+1}, vcc"])
    add(I(f"buffer_store_dwordx2 {vr(T+6, 2)}, v{TS+1}, {sr(S_S)}, 0 offen sc1", tag="sst"))
    XF, XP, XT = P1 + 3, P1 + 4, P1 + 5
    eX = bar_mf[kF(0)] + 4
    sX_ = Stream("xch", 2)
    sX_.add([f"s_lshl_b32 s{sQ+1}, s{sSLICE}, 4", f"s_add_u32 s{sQ+1}, s{sQ+1}, s{sTILE}", f"s_lshl_b32 s{sQ+1}, s{sQ+1}, 7", f"s_add_u32 s{sQ+1}, s{sQ+1}, {WS_F}",
             f"s_cmp_eq_u32 s{sW}, 0", f"s_cselect_b32 s{sQ+2}, 1, 0"], eX, bar_mf[kWB] + 8)
    for x in [f"v_mov_b32 v{XF}, s{sQ+1}", f"v_cmp_gt_u32 vcc, s{sQ+2}, {L}", f"v_mov_b32 v{XT}, {oob}", f"v_cndmask_b32 v{XF}, v{XT}, v{XF}, vcc",
              [f"s_sub_u32 s{sQ+1}, s{sQ+1}, {WS_F}", f"s_xor_b32 s{sQ+1}, s{sQ+1}, 2048", f"s_add_u32 s{sQ+1}, s{sQ+1}, {WS_F}"], f"v_mov_b32 v{XP}, s{sQ+1}"]:
        sX_.add(x, eX, bar_mf[kWB] + 8)
    add([I(f"v_mov_b32 v{TS+3}, 1"), WaitTag("sst"), I(f"buffer_store_dword v{TS+3}, v{XF}, {sr(S_WS)}, 0 offen sc1")])
    slow = []
    def poll(emit, name, areg, dreg, cond_instrs, cnt, dbg=False):
        ld = f"buffer_load_ubyte v{dreg}, v{areg}, {sr(S_DBG)}, 0 offen sc1" if dbg else f"buffer_load_dword v{dreg}, v{areg}, {sr(S_WS)}, 0 offen sc1"
        emit(ld, False)
        emit([I(x) for x in cond_instrs] + [I("s_cmp_eq_u64 vcc, -1"), I(f"s_cbranch_scc0 L_slow_{name}{par}"), I(f"L_back_{name}{par}:")], True)
        slow.extend([I(f"L_slow_{name}{par}:"), I(f"s_mov_b32 s{cnt}, 0"), I(f"L_slowl_{name}{par}:"), I("s_sleep 1"), I(ld), I("s_waitcnt vmcnt(0)")]
                    + [I(cond_instrs[0]), I("s_nop 4")] + [I(x) for x in cond_instrs[1:]]
                    + [I("s_cmp_eq_u64 vcc, -1"), I(f"s_cbranch_scc1 L_back_{name}{par}"), I(f"s_add_u32 s{cnt}, s{cnt}, 1"), I(f"s_cmp_lt_u32 s{cnt}, 0x40000"),
                       I(f"s_cbranch_scc1 L_slowl_{name}{par}"), I(f"s_branch L_back_{name}{par}")])
    kPoll = int(opt.get("kpoll", kF(1)))
    pace_from = [len(sS.q)]
    e[0] = bar_mf[kPoll]
    adds([[f"s_lshl_b32 s{sT0}, s{sSLICE}, 4", f"s_sub_u32 s{sT1}, s{sTILE}, 256"],
          f"v_add_u32 v{TS}, s{sT0}, {L}", f"v_lshlrev_b32 v{TS+2}, 4, {L}", f"v_add_u32 v{TS+2}, s{sT1}, v{TS+2}",
          f"v_cmp_gt_u32 vcc, 16, {L}", f"v_cndmask_b32 v{TS}, v{TS+2}, v{TS}, vcc",
          f"v_mov_b32 v{TS+2}, {oob}", f"v_cmp_gt_u32 vcc, 32, {L}", f"v_cndmask_b32 v{TS}, v{TS+2}, v{TS}, vcc"])
    poll(lambda x, chk: add(x), "C", TS, TS + 1, [f"v_cmp_ne_u32 vcc, 0, v{TS+1}", f"s_or_b32 vcc_hi, vcc_hi, -1"], sT2, dbg=True)
    adds([[f"s_lshl_b32 s{sT0}, s{sSLICE}, 11", f"s_add_u32 s{sT0}, s{sT0}, {WS_F}"], f"v_lshlrev_b32 v{TS}, 7, {L}", f"v_add_u32 v{TS}, s{sT0}, v{TS}",
          f"v_cmp_gt_u32 vcc, 16, {L}", f"v_mov_b32 v{TS+2}, {oob}", f"v_cndmask_b32 v{TS}, v{TS+2}, v{TS}, vcc"])
    poll(lambda x, chk: add(x), "S", TS, TS + 1, [f"v_cmp_ne_u32 vcc, 0, v{TS+1}", f"s_or_b64 vcc, vcc, s[{sMASK}:{sMASK+1}]"], sT2)
    add([f"s_mul_i32 s{sT0}, s{sTILE}, 384"]); add(f"v_add_u32 v{TS}, s{sT0}, v{VCH}")
    for idx, k in enumerate(range(15, 7, -1)):
        t_ = TS + 1 + (idx & 1)
        add(f"v_subrev_u32 v{t_}, {k*384}, v{TS}")
        add(f"buffer_load_dwordx2 {vr(T+2*idx, 2)}, v{t_}, {sr(S_S)}, 0 offen sc1")
    CC = TS + 2
    for m in range(1, 8): adds(cmul_acc(T + 2*m, T + 2*m + 1, A128, A128 + 1, T + 2*m - 2, T + 2*m - 1))
    adds([f"v_mov_b32 v{CC}, v{T+14}", f"v_mov_b32 v{CC+1}, v{T+15}"])
    for idx, k in enumerate(range(7, 0, -1)):
        add(f"v_subrev_u32 v{TS+1}, {k*384}, v{TS}")
        add(f"buffer_load_dwordx2 {vr(T+2*idx, 2)}, v{TS+1}, {sr(S_S)}, 0 offen sc1")
    adds(cmul_acc(T, T + 1, A128, A128 + 1, CC, CC + 1))
    for m in range(1, 7): adds(cmul_acc(T + 2*m, T + 2*m + 1, A128, A128 + 1, T + 2*m - 2, T + 2*m - 1))
    adds([f"v_mov_b32 v{CC}, v{T+12}", f"v_mov_b32 v{CC+1}, v{T+13}"])
    for k in (3, 2, 1):
        add([f"s_sub_u32 s{sT0}, s{sW}, {k}", f"s_max_i32 s{sT0}, s{sT0}, 0", f"s_mul_i32 s{sT0}, s{sT0}, 384", f"s_add_u32 s{sT0}, s{sT0}, {WTOT}"])
        add(f"v_add_u32 v{TS}, s{sT0}, v{VCH}")
        add(f"ds_read_b64 {vr(T+2*(3-k), 2)}, v{TS}")
    for k, sm in ((3, sM3), (2, sM2), (1, sM1)):
        j = T + 2 * (3 - k)
        adds([f"v_mul_f32 v{j}, s{sm}, v{j}", f"v_mul_f32 v{j+1}, s{sm}, v{j+1}"])
    adds(cmul_acc(T + 2, T + 3, A32, A32 + 1, T, T + 1)); adds(cmul_acc(T + 4, T + 5, A32, A32 + 1, T + 2, T + 3))
    adds(cmul_acc(T + 4, T + 5, PW, PW + 1, CC, CC + 1))
    adds([f"v_mov_b32 v{CC}, v{T+4}", f"v_mov_b32 v{CC+1}, v{T+5}"])
    for m in range(7): add(f"ds_read_b64 {vr(T+2*m, 2)}, v{VP} offset:{384*m}")
    add(f"ds_write_b64 v{VP}, {vr(CC, 2)}")
    adds(cmul_acc(T, T + 1, A4, A4 + 1, CC, CC + 1))
    add(f"ds_write_b64 v{VP}, {vr(T, 2)} offset:384")
    for m in range(1, 7):
        adds(cmul_acc(T + 2*m, T + 2*m + 1, A4, A4 + 1, T + 2*m - 2, T + 2*m - 1))
        add(f"ds_write_b64 v{VP}, {vr(T+2*m, 2)} offset:{384*(m+1)}")
    VW, VR = TS, TS + 1
    adds([f"v_and_b32 v{VW}, 15, {L}", f"v_lshlrev_b32 v{VW}, 5, v{VW}", f"v_lshrrev_b32 v{VR}, 4, {L}", f"v_lshlrev_b32 v{VR}, 3, v{VR}",
          f"v_add_u32 v{VW}, v{VW}, v{VR}", f"v_add_u32 v{VW}, s{sW3}, v{VW}", f"v_add_u32 v{VW}, {PRIV}, v{VW}",
          f"v_lshlrev_b32 v{VR}, 3, {L}", f"v_add_u32 v{VR}, s{sW3}, v{VR}", f"v_add_u32 v{VR}, {PRIV}, v{VR}"])
    dlS = bar_mf[40] - int(opt.get('dls', 10))
    for n in range(2):
        for b in range(nS): add(f"ds_read_b64 {vr(T+2*b, 2)}, v{VE+n} offset:{128*b}")
        for b in range(nS):
            TBL = T + 6
            adds([f"ds_read_b128 {vr(TBL)}, v{VT} offset:{b*768}", f"ds_read_b128 {vr(TBL+4)}, v{VT} offset:{b*768+16}", f"ds_read_b64 {vr(TBL+8, 2)}, v{VT} offset:{b*768+32}"])
            R, Im = xb(b, 0, n), xb(b, 1, n)
            cre, cim = T + 2 * b, T + 2 * b + 1
            for r in range(4): adds(cmul_acc(R + r, Im + r, TBL + 2*r, TBL + 2*r + 1, cre, cim))
            kr, ki, tt = TBL + 8, TBL + 9, TS + 2
            for r in range(4):
                t_ = tt + (r & 1)
                adds([f"v_mul_f32 v{t_}, v{kr}, v{R+r}", f"v_fma_f32 v{t_}, -v{ki}, v{Im+r}, v{t_}",
                      f"v_mul_f32 v{Im+r}, v{kr}, v{Im+r}", f"v_fmac_f32 v{Im+r}, v{ki}, v{R+r}",
                      f"v_mul_f32 v{R+r}, v{LG+4*n+r}, v{t_}", f"v_mul_f32_e64 v{Im+r}, -v{LG+4*n+r}, v{Im+r}"])
            adds([f"v_cvt_pk_bf16_f32 v{R}, v{R}, v{R+1}", f"v_cvt_pk_bf16_f32 v{R+1}, v{R+2}, v{R+3}",
                  f"v_cvt_pk_bf16_f32 v{Im}, v{Im}, v{Im+1}", f"v_cvt_pk_bf16_f32 v{Im+1}, v{Im+2}, v{Im+3}"])
            so = 1536 * n
            adds([f"ds_write_b64 v{VW}, {vr(R, 2)} offset:{so}", f"ds_write_b64 v{VW}, {vr(Im, 2)} offset:{so+512}",
                  f"ds_read_b64_tr_b16 {vr(R, 2)}, v{VR} offset:{so}", f"ds_read_b64_tr_b16 {vr(R+2, 2)}, v{VR} offset:{so+512}"])
    for n in range(2):
        for b in range(nS):
            off = ((9 + b) * 2 + n) * 1024
            add([I(f"s_add_u32 s{sT0}, s{sHO}, {off & ~4095}"),
                 I(f"buffer_store_dwordx4 {vr(xb(b,0,n))}, v{VST}, {sr(S_WS)}, s{sT0} offen" + (f" offset:{off & 4095}" if off & 4095 else "") + HST, tag="hstC")],
                deadline=dlS)
    def hload(K, n):
        off = (K * 2 + n) * 1024
        return [I(f"s_add_u32 s{sQ+1}, s{sHP}, {off & ~4095}"),
                I(f"buffer_load_dwordx4 {ar(hp_reg(K) + 4*n)}, v{VST}, {sr(S_WS)}, s{sQ+1} offen" + (f" offset:{off & 4095}" if off & 4095 else "") + " sc1")]
    sFl = Stream("flag", 1)
    def flag(val, k):
        sFl.add(f"v_mov_b32 v{XT}, {val}", bar_mf[k], bar_mf[k] + 6)
        sFl.add(f"buffer_store_dword v{XT}, v{XF}, {sr(S_WS)}, 0 offen sc1", bar_mf[k], bar_mf[k] + 10)
    def xpoll(name, val, t_load, t_chk, Ks, dl):
        tt = [t_load]
        def emit(x, chk):
            if chk: sX_.add(x, t_chk, t_chk + 10)
            else: sX_.add(x, t_load, t_load + 10)
        poll(emit, name, XP, GWB, [f"v_cmp_le_u32 vcc, {val}, v{GWB}"], sQ + 2)
        for K in Ks:
            for n in range(2): sX_.add(hload(K, n), t_chk, dl)
    flag(2, kHA)
    needA = mbeg(43); needB = mbeg(45); needC = mbeg(48)
    firstA = [8, 0, 1, 2, 3] if par == 0 else [0, 1, 2, 3, 8]
    tA = int(opt.get("tA", 190)); tB = int(opt.get("tB", 150))
    xpoll("A", 2, mbeg(36), mbeg(36) + 90, firstA, mbeg(40))
    flag(3, kHB)
    xpoll("B", 3, needB - tB - 80, needB - tB, [4, 5, 6, 7], needB - 70)
    flag(4, kHC)
    if FUSE: flag(5, kFM)
    xpoll("D", 4, needC - 120 - 70, needC - 120, [9 + b for b in range(nSP)], needC - 70)

    sW_ = Stream("warm", 5)
    if opt.get("nopf") is None:
        PVL = TA + 2
        def pf(e_, areg, sset, srd_, dst):
            sW_.add(f"v_accvgpr_read_b32 v{PVL}, a{areg}", e_, e_ + 30)
            for x in sset: sW_.add(x, e_, e_ + 30)
            sW_.add(f"buffer_load_dword a{dst}, v{PVL}, {sr(srd_)}, s{sQ} offen{PFL}", e_, e_ + 40)
        t_a = int(opt.get("pf_a", mbeg(kH) + 30))
        which = opt.get("pfall", "")
        if "a" not in which: pf(t_a, 253, [f"s_mul_i32 s{sQ}, s{sT4}, {18*9216}", f"s_mul_i32 s{sQ+3}, s{sSLICE}, 576", f"s_add_u32 s{sQ}, s{sQ}, s{sQ+3}"], S_W1, 252)
        t_d = int(opt.get("pf_d", mbeg(kF(1)) + 20))
        if "d" not in which: pf(t_d, 254, [f"s_lshl_b32 s{sQ}, s{sTILE}, 2", f"s_add_u32 s{sQ}, s{sQ}, s{sW}", f"s_mul_i32 s{sQ}, s{sQ}, {41*128}",
                      f"s_mul_i32 s{sQ+3}, s{sSLICE}, {288*1152}", f"s_add_u32 s{sQ}, s{sQ}, s{sQ+3}"], S_WD, 248)
        if "c" not in which: pf(t_d + 100, 255, [f"s_mul_i32 s{sQ}, s{sT4}, {18*1152}", f"s_lshl_b32 s{sQ+3}, s{sC0}, 1", f"s_add_u32 s{sQ}, s{sQ}, s{sQ+3}"], S_C, 251)
    pace(sS, pace_from[0], bar_mf[kPoll], dlS - 10)
    streams = [sD, sP, sCl, sA, sB, sE, sS, sX_, sFl, sW_]
    if FUSE:
        sR, sR2 = reduce_prep(opt, par, bar_mf[46], bar_mf[int(opt.get("kmchk", 49))] + int(opt.get("tmchk", 0)), mend(NST - 1))
        streams += [sR, sR2]
    strip = opt.get("strip", "")
    if "e" in strip: streams = [x for x in streams if x not in (sE, sS, sX_, sFl, sW_, sCl)]; slow = []
    if "S" in strip: streams = [x for x in streams if x not in (sS, sX_, sFl, sW_, sCl)]; slow = []
    if "E" in strip: streams = [x for x in streams if x is not sE]
    if "h" in strip: sE.q = deque(it for it in sE.q if not any(x.kind == "vm_st" for x in it[0]))
    if "X" in strip: streams = [x for x in streams if x not in (sX_, sFl)]; slow = [x for x in slow if False]
    if "b" in strip:
        for sl in slots: sl.pre = [x for x in sl.pre if x.kind != "barrier"]
    if "d" in strip:
        keep = deque(it for it in sD.q if not any(getattr(x, "tag", "") and str(x.tag).startswith("st") and int(x.tag[2:]) > 8 for x in it[0]))
        sD.q = keep
    if "r" in strip:
        for sl in slots[400:]: sl.post = []
    fw.DMA_GAP = int(opt.get('dgap', 7)); fw.DMA_GAP_FROM = mXB - 20
    body, rest, stats = schedule(slots, streams)
    tail = rest
    if FUSE:
        pb = [x for x in rest if getattr(x, "pbepi", False)]
        others = [x for x in rest if not getattr(x, "pbepi", False)]
        if opt.get("tailv", "2") == "2": tail = others + final_reduce(opt, par, XF, XT, GWB, slow, pb)
        else: tail = rest + final_reduce(opt, par, XF, XT, GWB, slow, None)
    if ts:
        tail = tail + stamp(58) + [I("s_waitcnt vmcnt(0)")] + stamp(59) + [I("s_memrealtime s[100:101]"), I("s_waitcnt lgkmcnt(0)"), I("v_writelane_b32 v255, s100, 62")]
        tail += expand([f"s_lshl_b32 s{sT0}, s2, 2", f"s_add_u32 s{sT0}, s{sT0}, s{sW}", f"s_lshl_b32 s{sT0}, s{sT0}, 8", f"s_add_u32 s{sT0}, s{sT0}, {WS_END}",
                        f"v_lshlrev_b32 v1, 2, {L}", f"buffer_store_dword v255, v1, {sr(S_WS)}, s{sT0} offen"])
    for b_ in check_flags(body)[:10]: print('FLAG HAZARD', par, b_)
    prog = pro + body + tail
    prog, nw = insert_waits(prog)
    prog, nn = pad_hazards(prog)
    ol = stats.pop("overlog")
    stats["over_by_stage"] = [sum(ol[2*u0[k]:2*u0[k+1]]) for k in range(NST)]
    info = dict(stats, rate=round(sS.rate, 2), NU=NU, nwait=nw, nnop=nn, ninstr=len(prog), tail=len(tail))
    txt = render(prog) + "\n  s_endpgm\n" + render(slow) + "\n"
    return txt, info


def build_reduce(opt):
    o = []
    A = lambda *x: o.extend(expand(list(x)))
    A("s_cmp_ge_u32 s2, 576", "s_cbranch_scc1 L_red_end")
    if opt.get("ts"): A("s_memrealtime s[80:81]")
    A("s_load_dwordx2 s[64:65], s[0:1], 0", "s_load_dwordx2 s[66:67], s[0:1], 64", "s_load_dwordx2 s[68:69], s[0:1], 112", "s_load_dwordx2 s[70:71], s[0:1], 128")
    A("v_lshrrev_b32 v1, 6, v0", "v_and_b32 v2, 63, v0")
    A("v_readfirstlane_b32 s20, v1")
    A("s_lshl_b32 s21, s2, 2", "s_add_u32 s21, s21, s20")
    A("s_mul_i32 s22, s21, 1821", "s_lshr_b32 s22, s22, 16")
    A("s_mul_i32 s23, s22, 36", "s_sub_u32 s23, s21, s23")
    A("s_lshl_b32 s25, s22, 5")
    A("v_lshlrev_b32 v3, 4, v2", "v_and_b32 v4, 15, v2", "v_lshrrev_b32 v5, 4, v2")
    A("s_sub_u32 s29, s23, 4", "s_cmp_ge_u32 s23, 20", "s_cselect_b32 s29, s29, s23")
    A("s_lshl_b32 s24, s22, 15", "s_lshl_b32 s29, s29, 10", "s_add_u32 s24, s24, s29", f"s_add_u32 s24, s24, {WS_P8}")
    A(f"s_mov_b32 s30, {16*4*32768}")
    A("s_lshl_b32 s31, s22, 12", "s_sub_u32 s29, s23, 16", "s_lshl_b32 s33, s29, 10", "s_add_u32 s31, s31, s33", f"s_add_u32 s31, s31, {WS_P16}")
    A("s_cmp_lt_u32 s29, 4", "s_cselect_b32 s24, s31, s24", f"s_cselect_b32 s30, {16*4*4096}, s30", "s_cselect_b32 s34, 1, 0")
    A("s_waitcnt lgkmcnt(0)")
    A(srd(4, "s70", "s71", WS_END), srd(8, "s64", "s65", 2359296), srd(12, "s66", "s67", 1152), srd(16, "s68", "s69", 4718592))
    RLD = opt.get("rld", "")
    for s_ in range(8):
        A(f"buffer_load_dwordx4 {vr(32+4*s_)}, v3, s[4:7], s24 offen{RLD}", "s_add_u32 s24, s24, s30")
    A("s_cmp_eq_u32 s34, 1", "s_cselect_b32 s24, s24, 0x7ff00000", "s_cselect_b32 s30, s30, 0")
    for s_ in range(8, 16):
        A(f"buffer_load_dwordx4 {vr(32+4*s_)}, v3, s[4:7], s24 offen{RLD}", "s_add_u32 s24, s24, s30")
    A("s_lshl_b32 s26, s23, 4", "v_lshlrev_b32 v6, 2, v5", "v_add_u32 v6, s26, v6")
    A("v_add_u32 v7, s25, v4")
    A("v_mul_u32_u24 v8, 576, v7", "v_add_u32 v8, v8, v6")
    A("v_lshlrev_b32 v9, 1, v8", "v_lshlrev_b32 v10, 2, v8", "v_lshlrev_b32 v11, 1, v6", "v_lshlrev_b32 v12, 2, v7")
    A("buffer_load_dwordx2 v[14:15], v9, s[8:11], 0 offen")
    A("s_mov_b32 s27, 18432", "buffer_load_dwordx2 v[16:17], v9, s[8:11], s27 offen")
    A("buffer_load_dwordx2 v[18:19], v11, s[12:15], 0 offen")
    A(f"s_mov_b32 s28, {WS_G}", "buffer_load_dword v20, v12, s[4:7], s28 offen", "buffer_load_dword v21, v12, s[4:7], s28 offen offset:64")
    for r in range(8): A(f"v_mov_b32 v{100+r}, 0")
    for s_ in range(16):
        for j in range(4):
            src = 32 + 4 * s_ + j
            A(f"v_lshlrev_b32 v22, 16, v{src}", f"v_and_b32 v23, 0xffff0000, v{src}", f"v_add_f32 v{100+2*j}, v{100+2*j}, v22", f"v_add_f32 v{101+2*j}, v{101+2*j}, v23")
    for n in range(2):
        for j in range(2):
            xs, ds = 14 + 2 * n + j, 18 + j
            A(f"v_lshlrev_b32 v22, 16, v{xs}", f"v_and_b32 v23, 0xffff0000, v{xs}", f"v_lshlrev_b32 v24, 16, v{ds}", f"v_and_b32 v25, 0xffff0000, v{ds}",
              "v_mul_f32 v22, v22, v24", "v_mul_f32 v23, v23, v25", "v_cvt_pk_bf16_f32 v22, v22, v23",
              "v_and_b32 v23, 0xffff0000, v22", "v_lshlrev_b32 v22, 16, v22",
              f"v_fmac_f32 v{100+4*n+2*j}, v{20+n}, v22", f"v_fmac_f32 v{101+4*n+2*j}, v{20+n}, v23")
    A("buffer_store_dwordx4 v[100:103], v10, s[16:19], 0 offen")
    A("s_mov_b32 s27, 36864", "buffer_store_dwordx4 v[104:107], v10, s[16:19], s27 offen")
    if opt.get("ts"):
        A("s_waitcnt vmcnt(0)", "s_memrealtime s[82:83]", "s_waitcnt lgkmcnt(0)", "v_mov_b32 v30, s80", "v_mov_b32 v31, s82", "s_lshl_b32 s27, s21, 3",
          f"s_add_u32 s27, s27, {WS_END + (1 << 18)}", "v_mov_b32 v29, 0", "s_mov_b32 s6, 0x7fffffff", "buffer_store_dwordx2 v[30:31], v29, s[4:7], s27 offen")
    prog, nw = insert_waits(o)
    prog, nn = pad_hazards(prog)
    return render(prog) + "\nL_red_end:\n  s_endpgm\n"


def build(opt):
    common = build_common(opt)
    v0, i0 = build_variant(opt, 0)
    v1, i1 = build_variant(opt, 1)
    red = build_reduce(opt)
    k1, k2 = NAME + "_kernel", "reduce_kernel"
    fuse = opt.get('fuse', '1') == '1'
    s = HEADER
    if fuse:
        s += f"; @launch grid=(256,1,1) block=(256,1,1) lds={LDS_BYTES}\n"
    else:
        s += f"; @launch kernel={k1} grid=(256,1,1) block=(256,1,1) lds={LDS_BYTES}\n"
        s += f"; @launch kernel={k2} grid=(576,1,1) block=(256,1,1) lds=0\n"
    s += '.amdgcn_target "amdgcn-amd-amdhsa--gfx950"\n.text\n'
    far = "  s_cbranch_scc1 L_var1\n"
    common = common.replace("  s_cbranch_scc1 L_main_end\n", "  s_cbranch_scc0 L_go\n  s_endpgm\nL_go:\n")
    common = common.replace("  s_cbranch_scc1 L_var1\n", "  s_cbranch_scc0 L_var0\n  s_branch L_var1\nL_var0:\n")
    s += f".globl {k1}\n.p2align 8\n.type {k1},@function\n{k1}:\n" + common + v0 + "L_end0:\n.p2align 6\nL_var1:\n" + v1 + "L_end1:\n"
    if not fuse: s += f".globl {k2}\n.p2align 8\n.type {k2},@function\n{k2}:\n" + red
    if opt.get("nocpf") is None:
        s += ".set CODE_SPAN0, L_end0 - L_pc0 - 4\n.set CODE_SPAN1, L_end1 - L_pc1 - 4\n"
    s += '.section .rodata,"a"\n' + kd(k1, 512, 256, 102) + ("" if fuse else kd(k2, 128, 128, 96))
    return s, (i0, i1)


if __name__ == "__main__":
    out = sys.argv[1]
    opt = {}
    for a in sys.argv[2:]:
        k, v = a.split("=", 1); opt[k] = v
    fw.DEPAWARE = opt.get('dep', '1') == '1'; fw.VMCOST = int(opt.get('vmcost', 1)); fw.VM_GAP = int(opt.get('vmgap', 5)); fw.LDS_LAT = int(opt.get('ldslat', 8)); fw.VM_LAT = int(opt.get('vmlat', 90))
    s, info = build(opt)
    open(out, "w").write(s)
    for i in info: print(i)
    print(len(s))
```

```python
import sys
import fw
from fw import *
from gen import (NAME, LOG2E, INV2PI, OOB, SLOT, NSLOT, MISC, PRIV, WTOT, TAB, LDS_BYTES, ACC, XB, LG, P1, P2, D1, D2, SF, A4, A32, A128, PW,
                 LANE, VST, VCH, T, VE, VP, VT, TS, TA, AX, AF, AH, L, xfrag, afrag, vr, ar, sr, xb, srd, mf,
                 voff_B, voff_W1full, voff_W1half, voff_Wd, voff_C, base_T64, base_C, cmul_acc, kd, HEADER)
XBASE = 2 * SLOT
XPOS = [0, 1, 2, 3, 4, 5, 3, 4, 5]

WS_P8 = 0
P8_BYTES = 8 * 16 * 4 * 2 * 16 * 1024
WS_P16 = WS_P8 + P8_BYTES
P16_BYTES = 16 * 16 * 4 * 4 * 1024
WS_H = WS_P16 + P16_BYTES
H_BYTES = 16 * 16 * 4 * 24 * 1024
WS_S = WS_H + H_BYTES
WS_G = WS_S + 16 * 16 * 384
WS_F = WS_G + 8192
WS_END = WS_F + 256 * 128

S_X, S_W1, S_WD, S_B, S_C, S_WS, S_S, S_DBG, S_P = 4, 8, 12, 16, 20, 24, 28, 32, 36
sW, sTILE, sSLICE, sC0, sOA, sOB, sW6, sW3 = 40, 41, 42, 43, 44, 45, 46, 47
sP8, sT0, sT1, sT2, sC2, sPAR, sP16, sT3 = 48, 49, 50, 51, 52, 53, 54, 55
sMASK = 56; sM1, sM2, sM3 = 58, 59, 60
sHO, sHP, sHT = 61, 62, 63
sW1F, sW1H, sWD2, sWD1, sWD1B, sC1, sT4, sC0P, sC2P, sQ = 64, 65, 66, 67, 68, 69, 70, 71, 72, 73
sXO, sXL = 98, 99
AHP = 0
def hp_reg(K):
    order = {8: 0, 0: 1, 1: 2, 2: 3, 3: 4, 4: 5, 5: 6, 6: 7, 7: 8, 9: 9, 10: 10, 11: 11}
    return AHP + 8 * order[K]


CYC = [0, 1, 2, 4, 5, 3]
def slot_of(k): return k if k < 4 else CYC[(k - 4) % 6]
def slot_base(k): return slot_of(k) * SLOT
def setof(k): return slot_of(k) // 2
def slot_rel(k): return (slot_of(k) % 2) * SLOT

T64B = [P1 + i for i in range(6)]
T128B = [P1 + 6 + i for i in range(6)] + [P2 + i for i in range(6)]
RB = [P2 + i for i in range(6)]
CB = [P1 + i for i in range(3)]
GWB = P2 + 6


PMACC = [96, 104, 112, 120]


class Stage:
    def __init__(self, fmt, units, pieces, wq, pre):
        self.fmt, self.units, self.pieces, self.wq, self.pre = fmt, units, pieces, wq, pre


def base_list_T128(regs, qrows, t, sets):
    o = [f"v_lshrrev_b32 v{t}, 4, {L}", f"v_mul_u32_u24 v{t}, {qrows}, v{t}", f"v_bfe_u32 v{t+1}, {L}, 2, 2", f"v_add_u32 v{t}, v{t}, v{t+1}",
         f"v_lshlrev_b32 v{t}, 7, v{t}", f"v_and_b32 v{t+1}, 3, {L}", f"v_lshlrev_b32 v{t+1}, 3, v{t+1}", f"v_add_u32 v{t}, v{t}, v{t+1}",
         f"v_bfe_u32 v{t+1}, {L}, 3, 2"]
    return o


def t128_regs(idx, t):
    s_, mt = divmod(idx, 4)
    d = T128B[idx]
    o = [f"v_xor_b32 v{d}, {mt}, v{t+1}", f"v_lshlrev_b32 v{d}, 5, v{d}", f"v_add_u32 v{d}, v{d}, v{t}"]
    if s_: o += [f"v_add_u32 v{d}, {49152*s_}, v{d}"]
    return o


def base_R2(t):
    o = [f"v_and_b32 v{t}, 15, {L}", f"v_lshrrev_b32 v{t+1}, 1, v{t}", f"v_lshlrev_b32 v{t}, 7, v{t}"]
    for h in range(2):
        d = RB[h]
        o += [f"v_lshrrev_b32 v{d}, 4, {L}", f"v_add_u32 v{d}, {4*h}, v{d}", f"v_xor_b32 v{d}, v{d}, v{t+1}", f"v_lshlrev_b32 v{d}, 4, v{d}",
              f"v_add_u32 v{d}, v{d}, v{t}", f"v_add_u32 v{RB[2+h]}, 49152, v{d}", f"v_add_u32 v{RB[4+h]}, {2*49152}, v{d}"]
    return o


def build_stages(par):
    nS = 2 if par == 0 else 3
    nSP = 5 - nS
    stages = []
    tr = "ds_read_b64_tr_b16"
    U = lambda reads, mfl, swap: dict(reads=reads, mf=mfl, swap=swap)
    for st in range(5):
        units = []
        for ksl in range(4 if st < 4 else 2):
            ks = 4 * st + ksl
            line, half = ksl >> 1, ksl & 1
            for b in range(nS):
                for mat in range(2):
                    off = (2 * mat + line) * 6144 + b * 2048
                    acc = [xb(b, mat, n) for n in range(2)]
                    units.append(U([("ds_read_b128", 4, ("R", half), off)],
                                   [(vr(acc[n]), xfrag(ks, n), None, vr(acc[n]) if ks else "0") for n in range(2)], True))
            units.append(U([("ds_read_b128", 4, ("abs", GWB), ks * 64)],
                           [(vr(LG + 4 * n), xfrag(ks, n), None, vr(LG + 4 * n) if ks else "0") for n in range(2)], True))
        pre = [] if st == 0 else [f"s_add_u32 s{sOA}, s{sOA}, 256"]
        npc = 2 * nS
        stages.append(Stage("B", units, [(D1 + j, S_B, sOA) for j in range(npc)], sW6, pre))
    for st in range(3):
        units = []
        for ksl in range(6):
            ks = 6 * st + ksl
            for mat in range(2):
                for mt in range(2):
                    acc = ACC[0] + (mat * 4 + mt) * 8
                    off = mat * 12288 + ksl * 2048
                    units.append(U([(tr, 2, ("T64", mt), off), (tr, 2, ("T64", mt), off + 256)],
                                   [(vr(acc + 4 * n), None, xfrag(ks, n), vr(acc + 4 * n) if ks else "0") for n in range(2)], False))
        pre = [f"s_mov_b32 s{sOA}, s{sW1H}"] if st == 0 else [f"s_add_u32 s{sOA}, s{sOA}, {192*9216}"]
        stages.append(Stage("W1h", units, [(D2 + j, S_W1, sOA) for j in range(6)], sW6, pre))
    for c in range(4):
        buf = ACC[(c + 1) & 1]
        for st in range(6):
            units = []
            for ksl in range(3):
                ks = 3 * st + ksl
                for mat in range(2):
                    for mt in range(4):
                        acc = buf + (mat * 4 + mt) * 8
                        off = mat * 12288 + ksl * 4096
                        units.append(U([(tr, 2, ("T128", mt), off), (tr, 2, ("T128", mt), off + 512)],
                                       [(vr(acc + 4 * n), None, xfrag(ks, n), vr(acc + 4 * n) if ks else "0") for n in range(2)], False))
            pre = [f"s_add_u32 s{sOA}, s{sW1F}, {128*c}"] if st == 0 else [f"s_add_u32 s{sOA}, s{sOA}, {96*9216}"]
            stages.append(Stage("W1", units, [(D1 + j, S_W1, sOA) for j in range(6)], sW6, pre))
    own = lambda K: (lambda n: ar(AH + 8 * K + 4 * n))
    prt = lambda K: (lambda n: ar(hp_reg(K) + 4 * n))
    owns = lambda b: (lambda n: vr(xb(b, 0, n)))
    if par == 0:
        ownW = [[0, 1, 2], [3, 4, 5], [6, 7, 8]]; prtW = [[8, 0, 1], [2, 3, 4], [5, 6, 7]]
        ms_own, ms_prt = [0, 1, 2], [3, 4, 5]
        pmA, pmB = [0, 1, 2, 3, 4, 5], [6, 7, 8]
        cols = [0, 256]
    else:
        ownW = [[8, 0, 1], [2, 3, 4], [5, 6, 7]]; prtW = [[0, 1, 2], [3, 4, 5], [6, 7, 8]]
        ms_own, ms_prt = [3, 4, 5], [0, 1, 2]
        pmA, pmB = [8, 0, 1, 2, 3, 4], [5, 6, 7]
        cols = [640, 896]
    def wd_units(bfs, lines, buf, first):
        units = []
        for i_, bf in enumerate(bfs):
            for line in range(lines):
                for mt in range(4):
                    acc = buf + (line * 4 + mt) * 8
                    off = line * 12288 + i_ * 4096
                    z = first and i_ == 0
                    units.append(U([(tr, 2, ("T128", mt), off), (tr, 2, ("T128", mt), off + 2048)],
                                   [(vr(acc + 4 * n), None, bf(n), "0" if z else vr(acc + 4 * n)) for n in range(2)], False))
        return units
    def c_units(bfs, nm, buf, imoff):
        units = []
        for b, bf in enumerate(bfs):
            for m in range(nm):
                acc = buf + m * 8
                off = m * 1536 + 32 * b
                units.append(U([("ds_read_b64", 2, ("C", 0), off), ("ds_read_b64", 2, ("C", 0), off + imoff)],
                               [(vr(acc + 4 * n), None, bf(n), vr(acc + 4 * n)) for n in range(2)], False))
        return units
    def W(p, bfs, ms, first=False):
        buf = ACC[(p + 1) & 1]
        stages.append(Stage("Wd", wd_units(bfs, 2, buf, first), [(D2 + j, S_WD, sOA) for j in range(6)], sW6,
                            [f"s_add_u32 s{sOA}, s{sWD2}, {cols[p] + ms*96*1152}"]))
    def C(p, bfs, sbase):
        buf = ACC[(p + 1) & 1]
        stages.append(Stage("C", c_units(bfs, 8, buf, 12288), [(D1 + j, S_C, sOA) for j in range(6)], sW6,
                            [f"s_add_u32 s{sOA}, s{sbase}, {(cols[p] // 2) * 1152}"]))
    oW = lambda p, i, first=False: W(p, [own(K) for K in ownW[i]], ms_own[i], first)
    pW = lambda p, i: W(p, [prt(K) for K in prtW[i]], ms_prt[i])
    oC = lambda p: C(p, [owns(b) for b in range(nS)], sC2)
    pC = lambda p: C(p, [prt(9 + b) for b in range(nSP)], sC2P)
    def pm_units(bfs, first, kind):
        units = []
        for i_, bf in enumerate(bfs):
            for mt in range(4):
                acc = PMACC[mt]
                z = first and i_ == 0
                if kind == "W":
                    off = i_ * 4096
                    rd = [(tr, 2, ("T128", mt), off), (tr, 2, ("T128", mt), off + 2048)]
                else:
                    off = mt * 1536 + 32 * i_
                    rd = [("ds_read_b64", 2, ("C", 0), off), ("ds_read_b64", 2, ("C", 0), off + 6144)]
                units.append(U(rd, [(ar(acc + 4 * n), None, bf(n), "0" if z else ar(acc + 4 * n)) for n in range(2)], False))
        return units
    pmWa = lambda: stages.append(Stage("Wd1a", pm_units([own(K) for K in pmA], True, "W"), [(D2 + j, S_WD, sOA) for j in range(6)], sW6, [f"s_add_u32 s{sOA}, s{sWD1}, 512"]))
    pmWb = lambda: stages.append(Stage("Wd1b", pm_units([own(K) for K in pmB], False, "W"), [(D2 + j, S_WD, sOA) for j in range(3)], sW3, [f"s_add_u32 s{sOA}, s{sWD1B}, 512"]))
    pmC = lambda: stages.append(Stage("C1", pm_units([owns(b) for b in range(nS)], False, "C"), [(D1 + j, S_C, sOA) for j in range(3)], sW3, [f"s_add_u32 s{sOA}, s{sC1}, {256*1152}"]))
    oW(0, 0, True); oW(0, 1); pmWa(); oW(1, 0, True); oW(1, 1); oW(0, 2); oW(1, 2); pmWb()
    oC(0); oC(1); pmC()
    pW(0, 0); pW(1, 0); pW(0, 1); pW(1, 1); pW(0, 2); pC(0); pW(1, 2); pC(1)
    return stages, nS


def pace(st, i0, t0, t1):
    items = list(st.q)
    def walk(rate):
        t = float(t0); ready = {}; tr = {}; out = []
        for (g, e, d) in items[i0:]:
            t = max(t, e)
            for x in g:
                if x.kind == "pwait" and x.op == "waittag":
                    for tg in x.args: t = max(t, tr.get(tg, -1))
                else:
                    for r in x.src + x.dst: t = max(t, ready.get(r, -1))
            out.append(t)
            for x in g:
                if x.kind == "ds_rd":
                    for r in x.dst: ready[r] = t + fw.LDS_LAT + 1
                elif x.kind == "vm_ld":
                    for r in x.dst: ready[r] = t + fw.VM_LAT + 2
                if x.tag and x.kind in ("vm_st", "ds_wr"): tr[x.tag] = t + fw.VM_LAT
            t += len(g) / rate
        return out
    lo, hi = 0.05, 8.0
    for _ in range(30):
        mid = (lo + hi) / 2
        if walk(mid)[-1] <= t1: hi = mid
        else: lo = mid
    dls = walk(hi)
    new = deque(items[:i0])
    for (g, e, d), t in zip(items[i0:], dls):
        nd = int(t) + 3
        new.append((g, e, nd if d is None else min(d, nd)))
    st.q = new
    st.rate = hi


def interleave(vm, fill, per):
    out = []; fi = 0
    for g in vm:
        out += g
        if any(("buffer_load" in x or "global_load" in x) if isinstance(x, str) else x.kind in ("dma", "vm_ld") for x in g):
            n = 0
            while fi < len(fill) and n < per:
                f = fill[fi]; fi += 1
                out += f if isinstance(f, list) else [f]
                n += len(f) if isinstance(f, list) else 1
    for f in fill[fi:]:
        out += f if isinstance(f, list) else [f]
    return out


def build_common(opt):
    o = []
    A = lambda *x: o.extend(expand(list(x)))
    A("s_cmp_ge_u32 s2, 256", "s_cbranch_scc1 L_main_end")
    A("s_load_dwordx16 s[64:79], s[0:1], 0", "s_load_dwordx16 s[80:95], s[0:1], 64", "s_load_dwordx2 s[96:97], s[0:1], 128")
    A(f"v_and_b32 {L}, 63, v0", "v_lshrrev_b32 v1, 6, v0")
    A(f"s_and_b32 s{sT0}, s2, 7", f"s_lshr_b32 s{sT1}, s2, 3")
    A(f"v_readfirstlane_b32 s{sW}, v1")
    if opt.get("map", "2") == "4":
        A(f"s_and_b32 s{sSLICE}, s{sT0}, 3", f"s_lshl_b32 s{sSLICE}, s{sSLICE}, 2", f"s_and_b32 s{sT2}, s{sT1}, 3", f"s_add_u32 s{sSLICE}, s{sSLICE}, s{sT2}",
          f"s_and_b32 s{sPAR}, s{sSLICE}, 1", f"s_lshr_b32 s{sTILE}, s{sT0}, 2", f"s_lshl_b32 s{sTILE}, s{sTILE}, 3", f"s_lshr_b32 s{sT2}, s{sT1}, 2", f"s_add_u32 s{sTILE}, s{sTILE}, s{sT2}")
    elif opt.get("map", "2") == "8":
        A(f"s_and_b32 s{sSLICE}, s{sT0}, 1", f"s_lshl_b32 s{sSLICE}, s{sSLICE}, 3", f"s_and_b32 s{sT2}, s{sT1}, 7", f"s_add_u32 s{sSLICE}, s{sSLICE}, s{sT2}",
          f"s_and_b32 s{sPAR}, s{sSLICE}, 1", f"s_lshr_b32 s{sTILE}, s{sT0}, 1", f"s_lshl_b32 s{sTILE}, s{sTILE}, 2", f"s_lshr_b32 s{sT2}, s{sT1}, 3", f"s_add_u32 s{sTILE}, s{sTILE}, s{sT2}")
    elif opt.get("parhi", "0") == "1":
        A(f"s_lshr_b32 s{sPAR}, s{sT1}, 4", f"s_xor_b32 s{sPAR}, s{sPAR}, 1", f"s_lshl_b32 s{sSLICE}, s{sT0}, 1", f"s_add_u32 s{sSLICE}, s{sSLICE}, s{sPAR}", f"s_and_b32 s{sTILE}, s{sT1}, 15")
    else:
        A(f"s_lshl_b32 s{sSLICE}, s{sT0}, 1", f"s_and_b32 s{sPAR}, s{sT1}, 1", f"s_add_u32 s{sSLICE}, s{sSLICE}, s{sPAR}", f"s_lshr_b32 s{sTILE}, s{sT1}, 1")
    choose = [f"s_cmp_eq_u32 s{sPAR}, 1", "s_cbranch_scc1 L_var1"]
    prog, _ = pad_hazards(o)
    return render(prog) + "\n  " + "\n  ".join(choose) + "\n"


I0, I1, I2 = xb(0, 1, 0), xb(1, 1, 0), xb(2, 1, 0)
FA, FD, LT, LQ = A4, A4 + 1, A4 + 2, A4 + 3
GREG = A4 + 5
PE, PX, PD, ME = I0, I0 + 1, I0 + 2, I0 + 3
MS, DA, DB, TMP, MX = I0 + 4, I1, I2, LG, LG + 4
MLA, EII, E0, E1 = 96, 112, 116, 120
S_OUT, S_DS = S_P, S_B
sJ, sTOK, sSRC, sM_, sPA, sDA, sRM, sMS = 82, 83, 84, 85, 86, 87, 88, 89
mALL, mPAR = 56, 58


def skip_init(dst, xs, ds, g):
    o = []; a, b, c, d = TMP, TMP + 1, TMP + 2, TMP + 3
    for j in range(2):
        o += [f"v_lshlrev_b32 v{a}, 16, v{xs+j}", f"v_and_b32 v{b}, 0xffff0000, v{xs+j}", f"v_lshlrev_b32 v{c}, 16, v{ds+j}", f"v_and_b32 v{d}, 0xffff0000, v{ds+j}",
              f"v_mul_f32 v{a}, v{a}, v{c}", f"v_mul_f32 v{b}, v{b}, v{d}", f"v_cvt_pk_bf16_f32 v{a}, v{a}, v{b}",
              f"v_and_b32 v{b}, 0xffff0000, v{a}", f"v_lshlrev_b32 v{a}, 16, v{a}", f"v_mul_f32 v{dst+2*j}, v{g}, v{a}", f"v_mul_f32 v{dst+2*j+1}, v{g}, v{b}"]
    return o


def reduce_prep(opt, par, e0, eM, lastm):
    oob = hex(OOB)
    sR = Stream("red", 4)
    add = lambda x, e=e0, d=None: sR.add(x, e, d)
    def adds(l, e=e0, d=None):
        for x in l: add(x, e, d)
    adds(srd(S_OUT, "s92", "s93", 4718592) + srd(S_DS, "s80", "s81", 1152))
    adds([f"s_mov_b32 s{mALL}, 0xffff0000", f"s_mov_b32 s{mALL+1}, -1", f"s_mov_b32 s{mPAR}, {hex(0xffff0000 | (0xaaaa if par == 0 else 0x5555))}", f"s_mov_b32 s{mPAR+1}, -1"])
    adds([[f"s_lshl_b32 s{sT0}, s{sTILE}, 7", f"s_add_u32 s{sT0}, s{sT0}, {WS_F}"], f"v_lshlrev_b32 v{FA}, 11, {L}", f"v_add_u32 v{FA}, s{sT0}, v{FA}",
          [f"v_cmp_gt_u32 vcc, 16, {L}", f"v_mov_b32 v{FD}, {oob}", f"v_cndmask_b32 v{FA}, v{FD}, v{FA}, vcc"],
          f"v_and_b32 v{LT}, 15, {L}", f"v_lshrrev_b32 v{LQ}, 4, {L}", f"s_lshr_b32 s{sJ}, s{sSLICE}, 1"], e0, eM - 95)
    adds([[f"s_lshr_b32 s{sT0}, s{sSLICE}, 2", f"s_and_b32 s{sM_}, s{sSLICE}, 3", f"s_and_b32 s{sT3}, s{sW}, 1", f"s_lshr_b32 s{sT1}, s{sW}, 1",
           f"s_lshl_b32 s{sMS}, s{sTILE}, 2", f"s_add_u32 s{sMS}, s{sMS}, s{sT0}", f"s_lshl_b32 s{sMS}, s{sMS}, 2", f"s_add_u32 s{sMS}, s{sMS}, s{sM_}"],
          f"s_lshl_b32 s{sMS}, s{sMS}, 10", f"s_mul_i32 s{sT1}, s{sT1}, {8*16*4*4096}", f"s_add_u32 s{sMS}, s{sMS}, s{sT1}", f"s_lshl_b32 s{sT2}, s{sT3}, 3",
          f"s_add_u32 s{sMS}, s{sMS}, s{sT2}", f"s_add_u32 s{sMS}, s{sMS}, {WS_P16}"], e0, eM - 4)
    adds([[f"s_lshl_b32 s{sPA}, s{sTILE}, 2", f"s_add_u32 s{sPA}, s{sPA}, s{sW}"], f"s_lshl_b32 s{sPA}, s{sPA}, 15", f"s_lshl_b32 s{sT0}, s{sJ}, 10", f"s_add_u32 s{sPA}, s{sPA}, s{sT0}",
          f"s_add_u32 s{sPA}, s{sPA}, {WS_P8 + 16384*par}", f"s_lshl_b32 s{sDA}, s{sJ}, 4", f"s_add_u32 s{sDA}, s{sDA}, {320*par}",
          f"s_lshl_b32 s{sTOK}, s{sTILE}, 7", f"s_lshl_b32 s{sT0}, s{sW}, 5", f"s_add_u32 s{sTOK}, s{sTOK}, s{sT0}",
          f"v_add_u32 v{PE}, s{sTOK}, v{LT}", f"v_lshlrev_b32 v{PD}, 2, v{LQ}", f"v_add_u32 v{PD}, s{sDA}, v{PD}", f"v_mul_u32_u24 v{PE}, 576, v{PE}",
          f"v_add_u32 v{PE}, v{PE}, v{PD}", f"v_lshlrev_b32 v{PX}, 1, v{PE}", f"v_lshlrev_b32 v{PD}, 1, v{PD}", f"v_lshlrev_b32 v{PE}, 2, v{PE}",
          f"v_accvgpr_read_b32 v{GREG}, a249", f"v_accvgpr_read_b32 v{GREG+1}, a250"])
    def aux(base, dcol):
        add([f"s_mov_b32 s{sT0}, {2*dcol}", f"buffer_load_dwordx2 {vr(base, 2)}, v{PX}, {sr(S_X)}, s{sT0} offen"])
        add([f"s_mov_b32 s{sT1}, {2*dcol + 18432}", f"buffer_load_dwordx2 {vr(base+2, 2)}, v{PX}, {sr(S_X)}, s{sT1} offen"])
        add([f"s_mov_b32 s{sT0}, {2*dcol}", f"buffer_load_dwordx2 {vr(base+4, 2)}, v{PD}, {sr(S_DS)}, s{sT0} offen"])
    aux(T, 0); aux(T + 6, 128)
    MA = T + 12
    adds([[f"s_lshr_b32 s{sT0}, s{sSLICE}, 2", f"s_lshl_b32 s{sTOK}, s{sTILE}, 7", f"s_lshl_b32 s{sT0}, s{sT0}, 5", f"s_add_u32 s{sTOK}, s{sTOK}, s{sT0}", f"s_lshl_b32 s{sT2}, s{sT3}, 4"],
          f"s_add_u32 s{sTOK}, s{sTOK}, s{sT2}", f"s_lshl_b32 s{sM_}, s{sM_}, 4", f"s_add_u32 s{sM_}, s{sM_}, 256",
          f"v_add_u32 v{MX}, s{sTOK}, v{LT}", f"v_lshlrev_b32 v{MA+2}, 2, v{LQ}", f"v_add_u32 v{MA+2}, s{sM_}, v{MA+2}",
          f"v_mul_u32_u24 v{ME}, 576, v{MX}", f"v_add_u32 v{ME}, v{ME}, v{MA+2}", f"v_lshlrev_b32 v{MA}, 1, v{ME}", f"v_lshlrev_b32 v{MA+2}, 1, v{MA+2}",
          f"v_lshlrev_b32 v{MX}, 2, v{MX}", f"v_lshlrev_b32 v{ME}, 2, v{ME}",
          f"buffer_load_dwordx2 {vr(MA, 2)}, v{MA}, {sr(S_X)}, 0 offen", f"buffer_load_dwordx2 {vr(MA+2, 2)}, v{MA+2}, {sr(S_DS)}, 0 offen"], e0, eM - 2)
    add(f"s_mov_b32 s{sT1}, {WS_G}", e0, eM)
    add([I(f"v_cmp_le_u32 vcc, 5, v{FD}"), I(f"s_or_b64 vcc, vcc, s[{mALL}:{mALL+1}]"), I("s_cmp_eq_u64 vcc, -1"), I(f"s_cselect_b32 s{sRM}, 1, 0"),
         I(f"s_cselect_b32 s{sSRC}, s{sMS}, 0x7ff00000"), I(f"s_cselect_b32 s{sT0}, s{sT1}, 0x7ff00000")], eM, eM + 8)
    add(f"buffer_load_dword v{MX+1}, v{MX}, {sr(S_WS)}, s{sT0} offen sc1", eM)
    for j in range(8):
        add(f"buffer_load_dwordx2 {ar(MLA+2*j, 2)}, v{VST}, {sr(S_WS)}, s{sSRC} offen sc1", eM)
        if j < 7: add(f"s_add_u32 s{sSRC}, s{sSRC}, {16*4*4096}", eM)
    adds(skip_init(DA, T, T + 4, GREG) + skip_init(DA + 4, T + 2, T + 4, GREG + 1) + skip_init(DB, T + 6, T + 10, GREG) + skip_init(DB + 4, T + 8, T + 10, GREG + 1), eM)
    EM0, EM1 = T, T + 1
    adds([f"v_lshrrev_b32 v{EM1}, 2, v{LT}", f"v_xor_b32 v{T+3}, v{EM1}, v{LQ}", f"v_and_b32 v{EM1}, 1, v{LT}", f"v_lshlrev_b32 v{EM1}, 4, v{EM1}",
          f"v_mov_b32 v{T+2}, 0x3f80", f"v_lshlrev_b32 v{EM1}, v{EM1}, v{T+2}", [f"v_cmp_eq_u32 vcc, 0, v{T+3}", f"v_cndmask_b32 v{EM1}, 0, v{EM1}, vcc"],
          f"v_and_b32 v{EM0}, 2, v{LT}", [f"v_cmp_eq_u32 vcc, 0, v{EM0}", f"v_cndmask_b32 v{EM0}, 0, v{EM1}, vcc", f"v_cndmask_b32 v{EM1}, v{EM1}, 0, vcc"],
          f"v_mov_b32 v{T+2}, 0"]
         + [f"v_accvgpr_write_b32 a{r}, v{EM0}" for r in (EII, EII + 2, E0, E1 + 2)] + [f"v_accvgpr_write_b32 a{r}, v{EM1}" for r in (EII + 1, EII + 3, E0 + 1, E1 + 3)]
         + [f"v_accvgpr_write_b32 a{r}, v{T+2}" for r in (E0 + 2, E0 + 3, E1, E1 + 1)], eM)
    sR2 = Stream("red2", 1)
    sR2.add(f"buffer_load_dword v{FD}, v{FA}, {sr(S_WS)}, 0 offen sc1", eM - 85, eM - 80)
    return sR, sR2


def final_reduce(opt, par, XF, XT, XD, slow, pb):
    o = []
    A = lambda *x: o.extend(expand(list(x)))
    tst = lambda i: A(I(("s_memrealtime" if opt.get("ts") == "5" else "s_memtime") + " s[100:101]"), I("s_waitcnt lgkmcnt(0)"), I(f"v_writelane_b32 v255, s100, {i}")) if (opt.get("ts") and (opt.get("ts") != "4" or i == 52)) else None
    OST = opt.get("ost", " nt")
    MA = T + 12
    def flagst(val): A(f"v_mov_b32 v{XT}, {val}", f"buffer_store_dword v{XT}, v{XF}, {sr(S_WS)}, 0 offen sc1")
    ld = f"buffer_load_dword v{FD}, v{FA}, {sr(S_WS)}, 0 offen sc1"
    def spin(name, val, mask, after):
        cond = [f"v_cmp_le_u32 vcc, {val}, v{FD}", f"s_or_b64 vcc, vcc, s[{mask}:{mask+1}]"]
        slow.extend([I(f"L_slow_{name}{par}:"), I(f"s_mov_b32 s{sT2}, 0"), I(f"L_slowl_{name}{par}:"), I(ld), I("s_waitcnt vmcnt(0)"),
                     I(cond[0]), I("s_nop 4"), I(cond[1]), I("s_cmp_eq_u64 vcc, -1"), I(f"s_cbranch_scc1 L_slowd_{name}{par}"),
                     I(f"s_add_u32 s{sT2}, s{sT2}, 1"), I(f"s_cmp_lt_u32 s{sT2}, 0x40000"), I(f"s_cbranch_scc1 L_slowl_{name}{par}"), I(f"L_slowd_{name}{par}:")]
                    + expand(after) + [I("s_waitcnt vmcnt(0)"), I(f"s_branch L_back_{name}{par}")])
        return cond
    def l8(dst, extra):
        r = [f"s_add_u32 s{sSRC}, s{sPA}, {extra}"]
        for j in range(8):
            r.append(f"buffer_load_dwordx4 {vr(dst+4*j)}, v{VST}, {sr(S_WS)}, s{sSRC} offen sc1")
            if j < 7: r.append(f"s_add_u32 s{sSRC}, s{sSRC}, {16*4*32768}")
        return r
    def finish(src, dst, dcol):
        for j in range(8):
            for n in range(2): A(mf(vr(dst + 4*n), ar((E0, E1)[n]), vr(src + 4*j), vr(dst + 4*n)))
        A(f"s_mov_b32 s{sT0}, {4*dcol}", f"s_mov_b32 s{sT1}, {4*dcol + 36864}",
          f"buffer_store_dwordx4 {vr(dst)}, v{PE}, {sr(S_OUT)}, s{sT0} offen{OST}", f"buffer_store_dwordx4 {vr(dst+4)}, v{PE}, {sr(S_OUT)}, s{sT1} offen{OST}")
    tst(52)
    redo = [f"s_mov_b32 s{sSRC}, s{sMS}", f"s_mov_b32 s{sT0}, {WS_G}", f"buffer_load_dword v{MX+1}, v{MX}, {sr(S_WS)}, s{sT0} offen sc1"]
    for j in range(8):
        redo.append(f"buffer_load_dwordx2 {ar(MLA+2*j, 2)}, v{VST}, {sr(S_WS)}, s{sSRC} offen sc1")
        if j < 7: redo.append(f"s_add_u32 s{sSRC}, s{sSRC}, {16*4*4096}")
    def pm_part():
        spin("M", 5, mALL, redo + [ld])
        A(WaitRegs([f"a{MLA+j}" for j in range(16)] + [f"v{MX+1}"]), f"s_cmp_eq_u32 s{sRM}, 1", f"s_cbranch_scc0 L_slow_M{par}", I(f"L_back_M{par}:"))
        A(f"s_cmp_lt_u32 s{sW}, 2", f"s_cselect_b32 s{sT0}, 1.0, 0", f"v_mul_f32 v{MX+1}, s{sT0}, v{MX+1}")
        A(skip_init(MS, MA, MA + 2, MX + 1))
        for j in range(4): A(mf(vr(MS), ar(EII), ar(MLA + 4*j), vr(MS)))
        A(f"s_and_b32 s{sT0}, s{sW}, 1", f"s_lshl_b32 s{sT0}, s{sT0}, 10", f"v_add_u32 v{MA}, s{sT0}, v{VST}",
          f"s_cmp_ge_u32 s{sW}, 2", f"s_cselect_b32 s{sT1}, 0, 2048", f"v_add_u32 v{MA+1}, s{sT1}, v{MA}")
        A(I(f"ds_write_b128 v{MA+1}, {vr(MS)}", tag="pmx"))
    if pb is not None:
        A(WaitTag("pstA"), "s_barrier"); flagst(6)
        A(ld)
        A(pb)
        pm_part()
        tst(53)
        cond = spin("PA", 6, mPAR, [])
        A(*cond, "s_cmp_eq_u64 vcc, -1", f"s_cbranch_scc0 L_slow_PA{par}", I(f"L_back_PA{par}:"))
        A(l8(64, 0))
        A(WaitTag("pstB", "pmx"), "s_barrier"); flagst(7)
        tst(54)
        A(ld)
        A(f"ds_read_b128 {vr(MX)}, v{MA}")
        srcA, srcB = 64, 0
    else:
        A(WaitTag("pstA"), "s_barrier"); flagst(6)
        tst(53)
        pm_part()
        A(ld)
        A(WaitTag("pstB", "pmx"), "s_barrier"); flagst(7)
        tst(54)
        A(f"ds_read_b128 {vr(MX)}, v{MA}")
        cond = spin("PA", 6, mPAR, [])
        A(*cond, "s_cmp_eq_u64 vcc, -1", f"s_cbranch_scc0 L_slow_PA{par}", I(f"L_back_PA{par}:"))
        A(l8(32, 0)); A(ld)
        srcA, srcB = 32, 64
    tst(55)
    for j in range(4): A(f"v_add_f32 v{MS+j}, v{MS+j}, v{MX+j}")
    A(f"s_cmp_lt_u32 s{sW}, 2", f"s_cselect_b32 s{sT0}, 0, 0x7ff00000", f"buffer_store_dwordx4 {vr(MS)}, v{ME}, {sr(S_OUT)}, s{sT0} offen{OST}")
    finish(srcA, DA, 0)
    tst(56)
    cond = spin("PB", 7, mPAR, [])
    A(*cond, "s_cmp_eq_u64 vcc, -1", f"s_cbranch_scc0 L_slow_PB{par}", I(f"L_back_PB{par}:"))
    tst(57)
    A(l8(srcB, 8192))
    finish(srcB, DB, 128)
    return o


def build_variant(opt, par):
    stages, nS = build_stages(par)
    nSP = 5 - nS
    NST = len(stages)
    V = f"v{par}"
    pro = []
    A = lambda *x: pro.extend(expand(list(x)))
    ts = opt.get("ts")
    A(f"s_mul_i32 s{sC0}, s{sSLICE}, 9", f"s_lshr_b32 s{sC0}, s{sC0}, 1", f"s_lshl_b32 s{sC0}, s{sC0}, 3")
    A(f"s_mul_i32 s{sW6}, s{sW}, 6144", f"s_mul_i32 s{sW3}, s{sW}, 3072")
    A(voff_B(D1, 10))
    A(f"s_and_b32 s{sT3}, s{sW}, 1")
    A(f"s_mul_i32 s{sOA}, s{sC0}, 1152", f"s_lshl_b32 s{sT0}, s{sT3}, 7", f"s_add_u32 s{sOA}, s{sOA}, s{sT0}")
    A(f"s_lshl_b32 s{sT0}, s{sTILE}, 7", f"s_lshl_b32 s{sT1}, s{sW}, 5", f"s_add_u32 s{sT0}, s{sT0}, s{sT1}", f"s_mul_i32 s{sXO}, s{sT0}, 1152")
    A(f"s_lshl_b32 s{sXL}, s{sW}, 12", f"s_add_u32 s{sXL}, s{sXL}, {XBASE}")
    if ts: A("s_memtime s[100:101]", "s_waitcnt lgkmcnt(0)", "v_mov_b32 v255, 0", "v_writelane_b32 v255, s100, 0", "s_memrealtime s[100:101]")
    A("s_waitcnt lgkmcnt(0)")
    if ts: A("v_writelane_b32 v255, s100, 61")
    A(srd(S_X, "s64", "s65", 2359296))
    A(f"s_cmp_lt_u32 s{sW}, 2")
    A(f"s_cselect_b32 s{S_B}, s70, s72", f"s_cselect_b32 s{S_B+1}, s71, s73", f"s_mov_b32 s{S_B+2}, 663552", f"s_mov_b32 s{S_B+3}, 0x20000")

    def dma_items(k):
        st = stages[k]
        items = [[x] for x in st.pre] + [[f"s_add_u32 m0, s{st.wq}, {slot_base(k)}"]]
        for j, (v, s_, so) in enumerate(st.pieces):
            if j == 4: items.append([f"s_add_u32 m0, s{st.wq}, {slot_base(k) + 4096}"])
            imm = 1024 * (j % 4)
            items.append([I(f"buffer_load_dwordx4 v{v}, {sr(s_)}, s{so} offen" + (f" offset:{imm}" if imm else "") + " lds", tag=f"st{k}")])
        return items
    def xdma(j):
        items = [[f"s_add_u32 s{sOB}, s{sXO}, {128*j}"], [f"s_add_u32 m0, s{sXL}, {16384*XPOS[j]}"]]
        for g in range(4):
            items.append([I(f"buffer_load_dwordx4 v{D1+g}, {sr(S_X)}, s{sOB} offen" + (f" offset:{1024*g}" if g else "") + " lds", tag=f"x{j}")])
        return items
    XV = TA; XV2 = 66
    def xreads(j):
        p_ = XPOS[j]
        return [I(f"ds_read_b128 {xfrag(2*j+h, n)}, v{(XV if p_ < 3 else XV2)+h} offset:{16384*(p_ % 3) + 2048*n}", tag=f"xr{j}") for h in range(2) for n in range(2)]

    PLRE, PLIM, PLDT = T, T + 1, T + 2
    PFL = opt.get("pf", " sc1")
    oob = hex(OOB)
    vm = []
    if opt.get("xpf", "0") == "1":
        vm += [[f"v_and_b32 v12, 15, {L}", f"v_mul_u32_u24 v12, 1152, v12", f"v_lshrrev_b32 v13, 4, {L}", f"v_lshlrev_b32 v13, 7, v13", f"v_add_u32 v12, v12, v13",
                f"s_add_u32 s100, s{sXO}, {16*1152*par}", f"buffer_load_dword a244, v12, {sr(S_X)}, s100 offen{PFL}"]]
        vm += [[f"buffer_load_dword a245, v12, {sr(S_X)}, s100 offen offset:512{PFL}"]]
        vm += [[f"v_mov_b32 v13, {oob}", f"v_cmp_gt_u32 vcc, 16, {L}", f"v_cndmask_b32 v12, v13, v12, vcc",
                f"buffer_load_dword a246, v12, {sr(S_X)}, s100 offen offset:1024{PFL}"]]
    vm += dma_items(0)
    vm += xdma(0) + xdma(1)
    vm += [[f"v_lshlrev_b32 v{VST}, 4, {L}", f"v_min_u32 v8, 47, {L}", f"v_lshlrev_b32 v{VCH}, 3, v8", f"v_add_u32 v9, s{sC0}, v8", "v_lshlrev_b32 v9, 1, v9"]
           + srd(S_P, "s66", "s67", 1152) + [f"buffer_load_ushort v{PLRE}, v9, {sr(S_P)}, 0 offen"]]
    vm += [srd(56, "s68", "s69", 1152) + [f"buffer_load_ushort v{PLIM}, v9, s[56:59], 0 offen"]]
    vm += [srd(60, "s78", "s79", 1152) + [f"buffer_load_ushort v{PLDT}, v9, s[60:63], 0 offen"]]
    vm += [srd(S_P, "s90", "s91", 1152) + [f"s_add_u32 m0, s{sW3}, {PRIV}", "s_nop 0", I(f"buffer_load_dwordx4 v{VST}, {sr(S_P)}, 0 offen lds", tag="gw")]]
    vm += [[I(f"buffer_load_dwordx4 v{VST}, {sr(S_P)}, 0 offen offset:1024 lds", tag="gw")]]
    vm1 = vm; vm = []
    vm += xdma(2) + xdma(3) + dma_items(1)
    if opt.get('x45', '1') == '1': vm += xdma(4) + xdma(5)
    vm2 = vm; vm = []
    PV = 12
    vm += [[f"s_cmp_lt_u32 s{sW}, 2", f"s_cselect_b32 s{S_W1}, s84, s86", f"s_cselect_b32 s{S_W1+1}, s85, s87", f"s_mov_b32 s{S_W1+2}, 5308416", f"s_mov_b32 s{S_W1+3}, 0x20000"]]
    if opt.get("nocpf") is None:
        vm += [[f"s_getpc_b64 s[100:101]", I(f"L_pc{par}:"),
                f"s_lshl_b32 s{sT0}, s{sTILE}, 2", f"s_add_u32 s{sT0}, s{sT0}, s{sW}", f"s_mul_i32 s{sT0}, s{sT0}, 1152",
                f"v_lshlrev_b32 v12, 7, {L}", f"v_add_u32 v12, s{sT0}, v12", f"v_min_u32 v12, CODE_SPAN{par}, v12", f"v_cmp_gt_u32 vcc, 9, {L}",
                "s_and_saveexec_b64 s[62:63], vcc", f"global_load_dword a247, v12, s[100:101]", "s_mov_b64 exec, s[62:63]"]]
    fullcol = 64 * par; halfcol = 512 if par == 0 else 0
    vm += [[f"s_lshl_b32 s{sT4}, s{sTILE}, 1", f"s_add_u32 s{sT4}, s{sT4}, s{sT3}"]]
    if opt.get("nopf") is None and opt.get("pfb", "1") == "1":
        vm += [[
                f"s_mul_i32 s100, s{sT4}, {14*128}", f"s_mul_i32 s{sT0}, s{sC0}, 1152", f"s_add_u32 s100, s100, s{sT0}",
                f"v_lshlrev_b32 v{PV}, 7, {L}", f"v_mov_b32 v{PV+1}, {oob}", f"v_cmp_gt_u32 vcc, 14, {L}", f"v_cndmask_b32 v{PV}, v{PV+1}, v{PV}, vcc",
                f"buffer_load_dword a248, v{PV}, {sr(S_B)}, s100 offen{PFL}"]]
    if opt.get("nopf") is None and opt.get("pfw", "1") == "1":
        vm += [[f"v_mul_u32_u24 v{PV}, 57, {L}", f"v_lshrrev_b32 v{PV}, 10, v{PV}", f"v_mul_u32_u24 v{PV+1}, 18, v{PV}", f"v_sub_u32 v{PV+1}, {L}, v{PV+1}",
                f"v_mul_u32_u24 v{PV+1}, 9216, v{PV+1}", f"v_mul_i32_i24 v{PV}, {fullcol - halfcol}, v{PV}", f"v_add_u32 v{PV}, {halfcol}, v{PV}",
                f"v_add_u32 v{PV}, v{PV}, v{PV+1}",
                f"v_mov_b32 v{PV+1}, {oob}", f"v_cmp_gt_u32 vcc, 36, {L}", f"v_cndmask_b32 v{PV}, v{PV+1}, v{PV}, vcc",
                f"s_mul_i32 s100, s{sT4}, {18*9216}", f"s_mul_i32 s{sT0}, s{sSLICE}, 576", f"s_add_u32 s100, s100, s{sT0}",
                f"buffer_load_dword a251, v{PV}, {sr(S_W1)}, s100 offen{PFL}"]]
    if opt.get("pfall"):
        which = opt["pfall"]
        Q = PV
        if "a" in which:
            vm += [[f"v_mul_u32_u24 v{Q}, 57, {L}", f"v_lshrrev_b32 v{Q}, 10, v{Q}", f"v_mul_u32_u24 v{Q+1}, 18, v{Q}", f"v_sub_u32 v{Q+1}, {L}, v{Q+1}",
                    f"v_mul_u32_u24 v{Q+1}, 9216, v{Q+1}", f"v_lshlrev_b32 v{Q}, 7, v{Q}", f"v_add_u32 v{Q}, {fullcol + 128}, v{Q}", f"v_add_u32 v{Q+1}, v{Q+1}, v{Q}",
                    f"v_mov_b32 v{Q}, {oob}", f"v_cmp_gt_u32 vcc, 54, {L}", f"v_cndmask_b32 v{Q+1}, v{Q}, v{Q+1}, vcc",
                    f"s_mul_i32 s100, s{sT4}, {18*9216}", f"s_mul_i32 s{sT0}, s{sSLICE}, 576", f"s_add_u32 s100, s100, s{sT0}",
                    f"buffer_load_dword a252, v{Q+1}, {sr(S_W1)}, s100 offen{PFL}"]]
        if "d" in which:
            vm += [srd(56, "s88", "s89", 5308416) + [f"v_lshlrev_b32 v{Q}, 7, {L}", f"v_mov_b32 v{Q+1}, {oob}", f"v_cmp_gt_u32 vcc, 41, {L}", f"v_cndmask_b32 v{Q}, v{Q+1}, v{Q}, vcc",
                    f"s_lshl_b32 s100, s{sTILE}, 2", f"s_add_u32 s100, s100, s{sW}", f"s_mul_i32 s100, s100, {41*128}", f"s_mul_i32 s{sT0}, s{sSLICE}, {288*1152}",
                    f"s_add_u32 s100, s100, s{sT0}", f"buffer_load_dword a246, v{Q}, s[56:59], s100 offen{PFL}"]]
        if "c" in which:
            vm += [[f"s_cmp_lt_u32 s{sW}, 2", f"s_cselect_b32 s56, s74, s76", f"s_cselect_b32 s57, s75, s77", "s_mov_b32 s58, 663552", "s_mov_b32 s59, 0x20000",
                    f"v_lshrrev_b32 v{Q}, 1, {L}", f"v_mul_u32_u24 v{Q}, 1152, v{Q}", f"v_and_b32 v{Q+1}, 1, {L}", f"v_mul_u32_u24 v{Q+1}, 92, v{Q+1}",
                    f"v_add_u32 v{Q}, v{Q}, v{Q+1}", f"v_mov_b32 v{Q+1}, {oob}", f"v_cmp_gt_u32 vcc, 36, {L}", f"v_cndmask_b32 v{Q}, v{Q+1}, v{Q}, vcc",
                    f"s_mul_i32 s100, s{sT4}, {18*1152}", f"s_lshl_b32 s{sT0}, s{sC0}, 1", f"s_add_u32 s100, s100, s{sT0}",
                    f"buffer_load_dword a245, v{Q}, s[56:59], s100 offen{PFL}"]]
    fill = []
    F = lambda *x: fill.extend(list(x))
    F(*base_R2(14))
    F(f"v_add_u32 v{XV}, s{sXL}, v{RB[0]}", f"v_add_u32 v{XV+1}, s{sXL}, v{RB[1]}", f"v_add_u32 v{XV2}, 49152, v{XV}", f"v_add_u32 v{XV2+1}, 49152, v{XV+1}")
    F(f"v_lshrrev_b32 v3, 4, {L}", f"v_lshlrev_b32 v{GWB}, 4, v3", f"v_add_u32 v{GWB}, s{sW3}, v{GWB}", f"v_add_u32 v{GWB}, {PRIV}, v{GWB}")
    F(*voff_W1half(D2, 14))
    F(*base_T64(P1, 14))
    F(f"s_mul_i32 s{sT0}, s{sSLICE}, 576", f"s_mul_i32 s{sT1}, s{sT3}, {48*9216}", f"s_add_u32 s{sW1F}, s{sT0}, s{sT1}", f"s_add_u32 s{sW1F}, s{sW1F}, {fullcol}",
      f"s_mul_i32 s{sT1}, s{sT3}, {96*9216}", f"s_add_u32 s{sW1H}, s{sT0}, s{sT1}", f"s_add_u32 s{sW1H}, s{sW1H}, {halfcol}")
    F([f"s_cmp_lt_u32 s{sW}, 2", f"s_cselect_b32 s{S_C}, s74, s76", f"s_cselect_b32 s{S_C+1}, s75, s77"], f"s_mov_b32 s{S_C+2}, 663552", f"s_mov_b32 s{S_C+3}, 0x20000")
    F(*srd(S_WD, "s88", "s89", 5308416))
    F(*srd(S_WS, "s96", "s97", WS_END + (1 << 19) * bool(ts)))
    F(f"s_mul_i32 s{sT0}, s{sSLICE}, 6144", f"s_add_u32 s{sT0}, s{sT0}, {WS_S}", [f"s_add_u32 s{S_S}, s96, s{sT0}", f"s_addc_u32 s{S_S+1}, s97, 0"],
      f"s_mov_b32 s{S_S+2}, 6144", f"s_mov_b32 s{S_S+3}, 0x20000")
    F(*srd(S_DBG, "s94", "s95", 256))
    nfill_early = len(fill)
    late = []
    G = lambda *x: late.extend(list(x))
    G(f"s_lshr_b32 s{sT0}, s{sSLICE}, 1", f"s_mul_i32 s{sT0}, s{sT0}, {576*1152}",
      f"s_mul_i32 s{sT1}, s{sT3}, {48*1152}", f"s_lshr_b32 s{sT2}, s{sW}, 1", f"s_lshl_b32 s{sT2}, s{sT2}, 7",
      f"s_add_u32 s{sWD2}, s{sT0}, s{sT1}", f"s_add_u32 s{sWD2}, s{sWD2}, s{sT2}",
      f"s_add_u32 s{sT0}, s{sT0}, {288*1152*par}", f"s_mul_i32 s{sT1}, s{sW}, {48*1152}", f"s_add_u32 s{sWD1}, s{sT0}, s{sT1}",
      f"s_mul_i32 s{sT1}, s{sW}, {24*1152}", f"s_add_u32 s{sWD1B}, s{sT0}, s{sT1}", f"s_add_u32 s{sWD1B}, s{sWD1B}, {192*1152}")
    G(f"s_add_u32 s{sC0P}, s{sC0}, {32 if par == 0 else -32 & 0xffffffff}")
    G(f"s_mul_i32 s{sT1}, s{sT3}, {64*1152}", f"s_lshl_b32 s{sT2}, s{sC0}, 1", f"s_add_u32 s{sC2}, s{sT1}, s{sT2}",
      f"s_lshl_b32 s{sT0}, s{sC0P}, 1", f"s_add_u32 s{sC2P}, s{sT1}, s{sT0}",
      f"s_mul_i32 s{sT1}, s{sT3}, {32*1152}", f"s_add_u32 s{sC1}, s{sT1}, s{sT2}")
    G(f"s_lshr_b32 s{sP8}, s{sSLICE}, 1", f"s_lshl_b32 s{sP8}, s{sP8}, 4", f"s_add_u32 s{sP8}, s{sP8}, s{sTILE}", f"s_lshl_b32 s{sP8}, s{sP8}, 2",
      f"s_add_u32 s{sP8}, s{sP8}, s{sW}", f"s_lshl_b32 s{sP8}, s{sP8}, 15", f"s_add_u32 s{sP8}, s{sP8}, {WS_P8 + 16384*par}")
    G(f"s_lshl_b32 s{sP16}, s{sSLICE}, 4", f"s_add_u32 s{sP16}, s{sP16}, s{sTILE}", f"s_lshl_b32 s{sP16}, s{sP16}, 2", f"s_add_u32 s{sP16}, s{sP16}, s{sW}",
      f"s_lshl_b32 s{sP16}, s{sP16}, 12", f"s_add_u32 s{sP16}, s{sP16}, {WS_P16}")
    G(f"s_lshl_b32 s{sHO}, s{sTILE}, 4", f"s_add_u32 s{sHP}, s{sHO}, s{sSLICE}", f"s_lshl_b32 s{sHP}, s{sHP}, 2", f"s_add_u32 s{sHP}, s{sHP}, s{sW}",
      f"s_mul_i32 s{sHO}, s{sHP}, {24*1024}", f"s_add_u32 s{sHO}, s{sHO}, {WS_H}",
      f"s_add_u32 s{sHP}, s{sHO}, {(4*24*1024 if par == 0 else -4*24*1024) & 0xffffffff}")
    G(f"s_bfm_b64 s[{sMASK}:{sMASK+1}], s{sTILE}, 0", f"s_not_b64 s[{sMASK}:{sMASK+1}], s[{sMASK}:{sMASK+1}]")
    for k, sm in ((1, sM1), (2, sM2), (3, sM3)):
        G([f"s_cmp_ge_u32 s{sW}, {k}", f"s_cselect_b32 s{sm}, 1.0, 0"])
    if opt.get("nopf") is None:
        Q = TS
        G(f"v_mul_u32_u24 v{Q}, 57, {L}", f"v_lshrrev_b32 v{Q}, 10, v{Q}", f"v_mul_u32_u24 v{Q+1}, 18, v{Q}", f"v_sub_u32 v{Q+1}, {L}, v{Q+1}",
          f"v_mul_u32_u24 v{Q+1}, 9216, v{Q+1}", f"v_lshlrev_b32 v{Q}, 7, v{Q}", f"v_add_u32 v{Q}, {fullcol + 128}, v{Q}", f"v_add_u32 v{Q+1}, v{Q+1}, v{Q}",
          f"v_mov_b32 v{Q+2}, {oob}", f"v_cmp_gt_u32 vcc, 54, {L}", f"v_cndmask_b32 v{Q+1}, v{Q+2}, v{Q+1}, vcc", f"v_accvgpr_write_b32 a253, v{Q+1}")
        G(f"v_lshlrev_b32 v{Q}, 7, {L}", f"v_cmp_gt_u32 vcc, 41, {L}", f"v_cndmask_b32 v{Q}, v{Q+2}, v{Q}, vcc", f"v_accvgpr_write_b32 a254, v{Q}")
        G(f"v_lshrrev_b32 v{Q}, 1, {L}", f"v_mul_u32_u24 v{Q}, 1152, v{Q}", f"v_and_b32 v{Q+1}, 1, {L}", f"v_mul_u32_u24 v{Q+1}, 92, v{Q+1}",
          f"v_add_u32 v{Q}, v{Q}, v{Q+1}", f"v_cmp_gt_u32 vcc, 36, {L}", f"v_cndmask_b32 v{Q}, v{Q+2}, v{Q}, vcc", f"v_accvgpr_write_b32 a255, v{Q}")
    LRE, LIM, DT, E1, R1, M_, A_ = T + 3, T + 4, T + 5, T + 6, T + 7, T + 20, T + 21
    TB = T + 8; CH = T + 22
    G(f"v_lshlrev_b32 v{LRE}, 16, v{PLRE}", f"v_lshlrev_b32 v{LIM}, 16, v{PLIM}", f"v_lshlrev_b32 v{DT}, 16, v{PLDT}")
    G(f"v_mul_f32 v{DT}, {hex(LOG2E)}, v{DT}", f"v_exp_f32 v{DT}, v{DT}", f"v_lshrrev_b32 v{CH}, 3, v{VCH}",
      f"v_cvt_pk_bf16_f32 v{DT}, v{DT}, v{DT}", f"v_lshlrev_b32 v{DT}, 16, v{DT}")
    G(f"v_mul_f32 v{E1}, v{DT}, v{LRE}", f"v_mul_f32 v{R1}, v{DT}, v{LIM}", f"v_mul_f32 v{E1}, {hex(LOG2E)}, v{E1}", f"v_mul_f32 v{R1}, {hex(INV2PI)}, v{R1}")
    def cpow(dre, dim, nsrc):
        return [f"v_mul_f32 v{M_}, {nsrc}, v{E1}", f"v_mul_f32 v{A_}, {nsrc}, v{R1}", f"v_exp_f32 v{M_}, v{M_}", f"v_fract_f32 v{A_}, v{A_}",
                f"v_cos_f32 v{dre}, v{A_}", f"v_sin_f32 v{dim}, v{A_}", f"v_mul_f32 v{dre}, v{M_}, v{dre}", f"v_mul_f32 v{dim}, v{M_}, v{dim}"]
    G(*cpow(TB, TB + 1, "1.0")); G(*cpow(TB + 2, TB + 3, "2.0"))
    G(f"s_mov_b32 s{sT0}, 0x40400000"); G(*cpow(TB + 4, TB + 5, f"s{sT0}"))
    G(*cpow(TB + 6, TB + 7, "4.0"))
    G(f"v_mov_b32 v{A4}, v{TB+6}", f"v_mov_b32 v{A4+1}, v{TB+7}")
    G(f"s_mov_b32 s{sT0}, 0x42000000"); G(*cpow(A32, A32 + 1, f"s{sT0}"))
    G(f"s_mov_b32 s{sT0}, 0x43000000"); G(*cpow(A128, A128 + 1, f"s{sT0}"))
    G(f"s_lshl_b32 s{sT0}, s{sW}, 5", f"v_cvt_f32_u32 v{T+23}, s{sT0}"); G(*cpow(PW, PW + 1, f"v{T+23}"))
    KC = T
    G(f"v_add_f32 v{M_}, -1.0, v{TB}", f"v_mul_f32 v{A_}, v{LRE}, v{LRE}", f"v_fmac_f32 v{A_}, v{LIM}, v{LIM}", f"v_rcp_f32 v{A_}, v{A_}",
      f"v_mul_f32 v{KC}, v{M_}, v{LRE}", f"v_fmac_f32 v{KC}, v{TB+1}, v{LIM}",
      f"v_mul_f32 v{KC+1}, v{TB+1}, v{LRE}", f"v_fma_f32 v{KC+1}, -v{M_}, v{LIM}, v{KC+1}",
      f"v_mul_f32 v{KC}, v{KC}, v{A_}", f"v_mul_f32 v{KC+1}, v{KC+1}, v{A_}")
    G(f"v_cmp_gt_u32 vcc, {32 + 8*par}, v{CH}", f"v_mul_u32_u24 v{CH}, 48, v{CH}", f"v_add_u32 v{CH}, {TAB}, v{CH}",
      f"v_cndmask_b32 v{KC}, 0, v{KC}, vcc", f"v_cndmask_b32 v{KC+1}, 0, v{KC+1}, vcc")
    G(f"v_mov_b32 v{KC+2}, 0", f"v_mov_b32 v{KC+3}, 0")
    G(f"ds_write_b128 v{CH}, {vr(TB)}", f"ds_write_b128 v{CH}, {vr(TB+4)} offset:16", f"ds_write_b128 v{CH}, {vr(KC)} offset:32")
    per = int(opt.get("per", 12))
    if opt.get("lateinpro", "0") == "1":
        A(interleave(vm1, fill, per)); A(interleave(vm2, late, int(opt.get("per2", 14)))); late = []
        A(interleave(vm, [], 0))
    else:
        if opt.get("pffirst", "0") == "1":
            A(interleave(vm, [], 0)); A(interleave(vm1 + vm2, fill, per))
        elif opt.get("pffirst", "0") == "2":
            n0 = len(dma_items(0)) + 2 * len(xdma(0))
            A(interleave(vm1[:n0], fill[:57], per)); A(interleave(vm, [], 0)); A(interleave(vm1[n0:] + vm2, fill[57:], per))
        else:
            A(interleave(vm1 + vm2 + vm, fill, per))

    units, ustage, u0 = [], [], []
    for k, st in enumerate(stages):
        u0.append(len(units))
        for un in st.units: units.append(un); ustage.append(k)
    NU = len(units); u0.append(NU)

    def read_ins(u):
        un = units[u]; k = ustage[u]
        o = []; d = afrag(u)
        for (op, nreg, (kind, idx), off) in un["reads"]:
            s_ = setof(k)
            if kind == "abs": b, o2 = idx, off
            else:
                b = {"R": lambda: RB[2*s_ + idx], "T64": lambda: T64B[2*s_ + idx], "T128": lambda: T128B[4*s_ + idx], "C": lambda: CB[s_]}[kind]()
                o2 = off + slot_rel(k)
            assert o2 < 65536
            o.append(I(f"{op} {ar(d, nreg)}, v{b}" + (f" offset:{o2}" if o2 else ""))); d += nreg
        return o

    DEPTH = int(opt.get('depth', 6)); WE = int(opt.get('we', 4)); WOFF = int(opt.get('woff', 1)); RR = int(opt.get('rr', 0))
    def stamp(i):
        op = "s_memrealtime" if ts == "5" and i not in (59,) else "s_memtime"
        return [I(f"{op} s[100:101]"), I("s_waitcnt lgkmcnt(0)"), I(f"v_writelane_b32 v255, s100, {i}")]
    kH = 5; kF = lambda c: 8 + 6 * c; kPA = 32; kPM = 40
    kWB = kF(0) + 1
    kHA = kF(3) + int(opt.get('kha', 2))
    kHB = int(opt.get('khb', 38))
    kHC = int(opt.get('khc', 43))
    FUSE = opt.get('fuse', '1') == '1'
    kFM = int(opt.get("kfm", 47))
    BTAG = {kFM: ('pstM',) if FUSE else (), 1: ('xr2',), 4: ('xr8', 'xr7', 'xr6'), kWB: ('wtot',), kHA: ('hstA',), kHB: ('hstB',), kHC: ('hstC',)}
    slots = []; bar_mf = {}
    fs = [int(x) for x in opt.get("fs", "").split(",") if x]
    for u in range(NU):
        un = units[u]; fr = ar(afrag(u))
        rd = read_ins(u + DEPTH) if u + DEPTH < NU else []
        pre = []
        kn = ustage[u + DEPTH] if u + DEPTH < NU else None
        if kn is not None and u + DEPTH == u0[kn]:
            if opt.get("splitbar", "1") == "1" and slots:
                slots[-1].pre = slots[-1].pre + [WaitTag(f"st{kn}", *BTAG.get(kn, ()))]
                pre += [I("s_barrier")]
            else:
                pre += [WaitTag(f"st{kn}", *BTAG.get(kn, ())), I("s_barrier")]
            if ts == "1" or (ts == "4" and kn in (5, 32)) or (ts == "5" and kn in (1, 5, 8, 14, 20, 26, 32, 36, 40, 43, 47)) or (ts == "2" and kn in (1, 2, 3, 4, 5, 8, 14, 20, 26, 32, 35, 40, 43, 47)): pre += stamp(kn + 1)
            bar_mf[kn] = 2 * u
        if ts == "3":
            k_ = ustage[u]
            if k_ in fs and (u - u0[k_]) % 3 == 0 and (u - u0[k_]) // 3 < 8:
                j_ = (u - u0[k_]) // 3
                pre += [I(f"s_memtime s[{78+2*j_}:{79+2*j_}]")]
            if k_ - 1 in fs and u == u0[k_] + 2:
                base_ = 8 * fs.index(k_ - 1) + 1
                pre += [I("s_waitcnt lgkmcnt(0)")] + [I(f"v_writelane_b32 v255, s{78+2*j_}, {base_ + j_}") for j_ in range(8)]
        if (u + WOFF) % WE == 0 or u == 0:
            rg = []
            for x in range(u, min(u + (WE if (u + WOFF) % WE == 0 else WE - WOFF), NU)): rg += regs_of(ar(afrag(x)))
            pre += [WaitRegs(rg)]
        for n in range(2):
            d, a, b, c = un["mf"][n]
            txt = mf(d, a, fr, c) if un["swap"] else mf(d, fr, b, c)
            if RR and len(rd) == 2 and u % RR == RR - 2: post = rd if n == 0 else []
            else: post = rd[n:n + 1] if n < len(rd) else []
            slots.append(Slot(txt, pre if n == 0 else [], post))
    mend = lambda k: 2 * u0[k + 1] - 1
    mbeg = lambda k: 2 * u0[k]
    if ts: A(stamp(60))
    A(WaitTag("x0")); A(xreads(0)); A(WaitTag("x1")); A(xreads(1))
    A(WaitTag("st0", "gw"), "s_barrier")
    if ts: A(stamp(1))
    for u in range(DEPTH): A(read_ins(u))

    mXB = mend(4)
    XS = 2 * len(stages[0].units)
    sD = Stream("dma", 0)
    fr_of = lambda j: [r for h in range(2) for n in range(2) for r in regs_of(xfrag(2*j+h, n))]
    def xd(j, e, dl, after=None):
        if after is not None: sD.add([WaitRegs(fr_of(after))], e, dl)
        for it in xdma(j): sD.add(it, e, dl)
    def xr(j, e, dl):
        sD.add([WaitTag(f"x{j}")], e, dl)
        for r_ in xreads(j): sD.add(r_, e, dl)
    if opt.get('x45', '1') != '1':
        xd(4, 0, 8); xd(5, 0, 16)
    xr(2, 0, 14); xr(3, 0, 20)
    for it in dma_items(2): sD.add(it, 0, 34)
    xd(6, 10, bar_mf[1] + 2, after=3)
    for it in dma_items(3): sD.add(it, bar_mf[1], bar_mf[1] + 16)
    xr(4, bar_mf[1], bar_mf[1] + 22)
    xd(7, bar_mf[1] + 8, bar_mf[1] + 34, after=4)
    xr(5, bar_mf[1] + 12, bar_mf[1] + 38)
    xd(8, bar_mf[1] + 24, bar_mf[2] + 4, after=5)
    for it in dma_items(4): sD.add(it, bar_mf[2], bar_mf[2] + 20)
    xr(6, bar_mf[2], bar_mf[3] - 8); xr(7, bar_mf[2], bar_mf[3] - 2)
    for it in dma_items(5): sD.add(it, bar_mf[3], bar_mf[3] + 16)
    xr(8, bar_mf[3] + 4, bar_mf[4] - 2)
    xdone = bar_mf[4]
    prev_user = {}; dma_e = {}; dma_d = {}
    e_prev = bar_mf[3] + 16; d_prev = e_prev
    for k in range(NST):
        sl_ = slot_of(k)
        if k >= 6:
            e_ = bar_mf[prev_user[sl_] + 2] if sl_ in prev_user else bar_mf[4]
            if k in (7, 8): e_ = max(e_, bar_mf[4])
            e_ = max(e_, e_prev)
            lead = int(opt.get("lead", 75))
            if k < int(opt.get("krelax", 16)): d_ = max(min(bar_mf[k] - lead, bar_mf[k] - 2), min(d_prev + 14, bar_mf[k] - 2), e_ + 4)
            else: d_ = min(max(e_ + 44, d_prev + 14), bar_mf[k] - 2)
            d_ = min(d_, bar_mf[k] - 2)
            for it in dma_items(k): sD.add(it, e_, d_)
            dma_e[k], dma_d[k] = e_, d_
            e_prev, d_prev = e_, d_
        prev_user[sl_] = k
    clr = [[f"s_lshl_b32 s{sT0}, s{sSLICE}, 4", f"s_add_u32 s{sT0}, s{sT0}, s{sTILE}", f"s_lshl_b32 s{sT1}, s{sT0}, 7", f"s_add_u32 s{sT1}, s{sT1}, {WS_F}",
            f"s_cmp_eq_u32 s{sW}, 0", f"s_cselect_b32 s{sT2}, 1, 0"],
           f"v_cmp_gt_u32 vcc, s{sT2}, {L}", f"v_mov_b32 v{TS}, {oob}", f"v_mov_b32 v{TS+1}, s{sT1}", f"v_mov_b32 v{TS+2}, s{sT0}", f"v_mov_b32 v{TS+3}, 0",
           f"v_cndmask_b32 v{TS+1}, v{TS}, v{TS+1}, vcc", f"v_cndmask_b32 v{GWB+0 if False else TA+2}, v{TS}, v{TS+2}, vcc",
           I(f"buffer_store_dword v{TS+3}, v{TS+1}, {sr(S_WS)}, 0 offen sc1", tag="clr")]
    sP = Stream("setup", 1)
    for x in clr: sP.add(x, 0, 60)
    for x in late: sP.add(x, 0, mXB)
    sCl = Stream("clr", 1)
    sCl.add([I(f"v_mov_b32 v64, 1"), WaitTag("clr"), I(f"buffer_store_byte v64, v{TA+2}, {sr(S_DBG)}, 0 offen sc1")], bar_mf[2], bar_mf[3] + 10)
    sA = Stream("addr", 1)
    sA.extend(voff_W1full(D1, TA + 2), bar_mf[3] + 12, dma_e[kF(0)])
    common = base_list_T128(T128B, 8, TA, None)
    sA.extend(common, xdone + 1, bar_mf[kF(0)])
    for idx in range(6): sA.extend(t128_regs(idx, TA), xdone + 1, bar_mf[kF(0)])
    for idx in range(6, 12): sA.extend(t128_regs(idx, TA), mXB + 1, bar_mf[kF(0)])
    sA.extend(voff_Wd(D2, TA), max(dma_d[7], mXB + 2), dma_e[kPA])
    sA.extend([x.replace(f'v{TA+2}', f'v{CB[2]}') for x in base_C(CB[0], TA)], bar_mf[kF(0)] + 4, bar_mf[40])
    sA.extend(voff_C(D1, TA), dma_d[kPA - 1], dma_e[40])
    last_use = {}; next_use = {}
    for k in range(kF(0), kPA): last_use[setof(k)] = k
    for k in range(NST - 1, kPA - 1, -1):
        if stages[k].fmt.startswith("Wd"): next_use[setof(k)] = k
    sB = Stream("bases", 1)
    order = sorted(range(3), key=lambda s_: last_use[s_])
    sB.add(f"v_lshrrev_b32 v{TA+2}, 4, {L}", bar_mf[last_use[order[0]] + 1], bar_mf[next_use[order[0]]] - 20)
    sB.add(f"v_lshlrev_b32 v{TA+2}, 9, v{TA+2}", bar_mf[last_use[order[0]] + 1], bar_mf[next_use[order[0]]] - 20)
    for s_ in order:
        for mt in range(4):
            r_ = T128B[4 * s_ + mt]
            sB.add(f"v_sub_u32 v{r_}, v{r_}, v{TA+2}", bar_mf[last_use[s_] + 1], bar_mf[next_use[s_]])

    sE = Stream("epi", 2)
    HST = opt.get("hst", " sc1")
    def hstore(reg, K, n, tag):
        off = (K * 2 + n) * 1024
        return [I(f"s_add_u32 s{sHT}, s{sHO}, {off & ~4095}"),
                I(f"buffer_store_dwordx4 {vr(reg)}, v{VST}, {sr(S_WS)}, s{sHT} offen" + (f" offset:{off & 4095}" if off & 4095 else "") + HST, tag=tag)]
    def ffn_epi(buf, Ks, earliest, deadline, tag):
        for kk, K in enumerate(Ks):
            for n in range(2):
                o = []
                gs = [buf + (2 * kk + h) * 8 + 4 * n for h in range(2)]; us = [buf + (4 + 2 * kk + h) * 8 + 4 * n for h in range(2)]
                for h in range(2):
                    g, u_ = gs[h], us[h]
                    if opt.get("norho"):
                        for r in range(4): o += [f"v_max_f32 v{g+r}, 0, v{g+r}"]
                    else:
                        for r in range(4): o += [f"v_max_f32 v{g+r}, 0, v{g+r}", f"v_mul_f32 v{u_+r}, v{SF+n}, v{u_+r}"]
                    for r in range(4): o += [f"v_mul_f32 v{g+r}, v{g+r}, v{u_+r}"]
                d = us[0]
                o += [f"v_cvt_pk_bf16_f32 v{d}, v{gs[0]}, v{gs[0]+1}", f"v_cvt_pk_bf16_f32 v{d+1}, v{gs[0]+2}, v{gs[0]+3}",
                      f"v_cvt_pk_bf16_f32 v{d+2}, v{gs[1]}, v{gs[1]+1}", f"v_cvt_pk_bf16_f32 v{d+3}, v{gs[1]+2}, v{gs[1]+3}"]
                h_ = AH + 8 * K + 4 * n
                o += [f"v_accvgpr_write_b32 a{h_+j}, v{d+j}" for j in range(4)]
                sE.extend(o, earliest, deadline)
                sE.add(hstore(d, K, n, tag), earliest, deadline)
    ffn_epi(ACC[0], [8], mend(kH + 2) + 4, mbeg(kF(1)), "hstA")
    ffn_epi(ACC[1], [0, 1], mend(kF(0) + 5) + 4, mbeg(kF(2)), "hstA")
    ffn_epi(ACC[0], [2, 3], mend(kF(1) + 5) + 4, mbeg(kF(3)) - 60, "hstA")
    ffn_epi(ACC[1], [4, 5], mend(kF(2) + 5) + 4, mbeg(kPA), "hstB")
    ffn_epi(ACC[0], [6, 7], mend(kF(3) + 5) + 4, mbeg(35) - 4, "hstB")
    PST = opt.get("pst", " sc1")
    DLP = {2: bar_mf[kFM - 2] if FUSE else None, 0: None, 1: None}
    for p, k1 in ((2, 42), (0, 48), (1, 50)):
        nm = 8 if p < 2 else 4
        last = mend(k1)
        sreg = sP8 if p < 2 else sP16
        for m in range(nm):
            if p < 2:
                a = ACC[(p + 1) & 1] + m * 8
                o = []
            else:
                a = T + 8 * (m & 1)
                o = [f"v_accvgpr_read_b32 v{a+j}, a{PMACC[m]+j}" for j in range(8)]
            o += [f"v_cvt_pk_bf16_f32 v{a}, v{a}, v{a+1}", f"v_cvt_pk_bf16_f32 v{a+1}, v{a+2}, v{a+3}",
                  f"v_cvt_pk_bf16_f32 v{a+2}, v{a+4}, v{a+5}", f"v_cvt_pk_bf16_f32 v{a+3}, v{a+6}, v{a+7}"]
            sE.extend(o, last + 4, DLP[p])
            imm = 1024 * (m % 4)
            sE.add(f"buffer_store_dwordx4 {vr(a)}, v{VST}, {sr(S_WS)}, s{sreg} offen" + (f" offset:{imm}" if imm else "") + PST, last + 4, DLP[p])
            sE.q[-1][0][0].tag = "pst" + "ABM"[p]
            if p == 1:
                for it in list(sE.q)[-(len(o) + 1):]:
                    for x in it[0]: x.pbepi = True
            if m % 4 == 3:
                sE.add(f"s_add_u32 s{sreg}, s{sreg}, 4096", last + 4, DLP[p])
                if p == 1: sE.q[-1][0][0].pbepi = True

    sS = Stream("ssm", 3)
    e = [mXB + 4]
    add = lambda x, deadline=None: sS.add(x, e[0], deadline)
    def adds(lst, **kw):
        for x in lst: add(x, **kw)
    dlG = mend(kH + 2)
    G0, G1, Z = T, T + 1, T + 2
    adds([f"v_lshrrev_b32 v{G0}, 4, {L}", f"v_lshlrev_b32 v{G0}, 4, v{G0}", f"v_add_u32 v{G0}, s{sW3}, v{G0}", f"v_add_u32 v{G0}, {PRIV}, v{G0}"])
    for n in range(2): add(f"ds_write_b128 v{G0}, {vr(LG+4*n)} offset:{64*n}")
    adds([f"v_and_b32 v{G1}, 31, {L}", f"v_lshlrev_b32 v{G1}, 2, v{G1}", f"v_add_u32 v{G1}, s{sW3}, v{G1}", f"v_add_u32 v{G1}, {PRIV}, v{G1}",
          f"ds_read_b32 v{Z}, v{G1}"])
    TA1 = T + 8
    adds([f"v_and_b32 v{VT}, 15, {L}", f"v_mul_u32_u24 v{VT}, 48, v{VT}", f"v_add_u32 v{VT}, {TAB}, v{VT}"])
    for b in range(nS): add(f"ds_read_b64 {vr(TA1+2*b, 2)}, v{VT} offset:{b*768}")
    adds([f"v_cvt_pk_bf16_f32 v{Z}, v{Z}, v{Z}", f"v_lshlrev_b32 v{Z}, 16, v{Z}", f"v_mul_f32 v{Z}, {hex(LOG2E ^ 0x80000000)}, v{Z}", f"v_exp_f32 v{Z}, v{Z}",
          f"v_lshrrev_b32 v{VE}, 4, {L}",
          f"v_add_f32 v{Z}, 1.0, v{Z}", f"v_rcp_f32 v{Z}, v{Z}", f"v_mul_u32_u24 v{VE}, 384, v{VE}",
          f"v_cvt_pk_bf16_f32 v{Z}, v{Z}, v{Z}", f"v_lshlrev_b32 v{Z}, 16, v{Z}",
          f"v_sub_f32 v{T+3}, 1.0, v{Z}", f"v_cvt_pk_bf16_f32 v{T+3}, v{T+3}, v{T+3}", f"v_lshlrev_b32 v{T+3}, 16, v{T+3}", f"v_add_f32 v{T+4}, v{Z}, v{Z}",
          f"ds_write_b32 v{G1}, v{T+3} offset:128", f"ds_write_b32 v{G1}, v{T+4} offset:256", f"ds_write_b32 v{G1}, v{Z} offset:384"])
    if par == 0:
        add([f"s_lshl_b32 s{sT0}, s{sTILE}, 7", f"s_lshl_b32 s{sT1}, s{sW}, 5", f"s_add_u32 s{sT0}, s{sT0}, s{sT1}", f"s_lshl_b32 s{sT0}, s{sT0}, 2",
             f"s_add_u32 s{sT0}, s{sT0}, {WS_G}", f"s_cmp_eq_u32 s{sSLICE}, 0", f"s_cselect_b32 s{sT1}, 32, 0"])
        adds([f"v_lshlrev_b32 v{T+5}, 2, {L}", f"v_cmp_gt_u32 vcc, s{sT1}, {L}", f"v_mov_b32 v{T+6}, {oob}",
              f"v_cndmask_b32 v{T+5}, v{T+6}, v{T+5}, vcc", I(f"buffer_store_dword v{Z}, v{T+5}, {sr(S_WS)}, s{sT0} offen sc1", tag="sst")])
    adds([f"v_and_b32 v{T+7}, 15, {L}", f"v_lshlrev_b32 v{T+7}, 2, v{T+7}", f"v_add_u32 v{T+7}, s{sW3}, v{T+7}", f"v_add_u32 v{T+7}, {PRIV}, v{T+7}"])
    for n in range(2): add(f"ds_read_b32 v{SF+n}, v{T+7} offset:{128+64*n}")
    for n in range(2): add(f"ds_read_b128 {vr(LG+4*n)}, v{G0} offset:{256+64*n}")
    for n in range(2): add(f"ds_read_b32 v{T+5+n}, v{T+7} offset:{384+64*n}")
    adds([f"v_and_b32 v{VE+1}, 15, {L}", f"v_lshlrev_b32 v{VE+1}, 3, v{VE+1}", f"v_add_u32 v{VE}, v{VE}, v{VE+1}", f"v_add_u32 v{VE}, s{sW3}, v{VE}",
          f"v_add_u32 v{VE}, {PRIV}, v{VE}", f"v_add_u32 v{VE+1}, 1536, v{VE}"])
    add(WaitRegs([f"v{SF}", f"v{SF+1}"] + regs_of(vr(LG, 8))), deadline=dlG)
    adds([f"v_accvgpr_write_b32 a249, v{T+5}", f"v_accvgpr_write_b32 a250, v{T+6}"])
    for r in range(1, 4):
        for b in range(nS):
            are, aim = TA1 + 2 * b, TA1 + 2 * b + 1
            for n in range(2):
                R, Im = xb(b, 0, n), xb(b, 1, n)
                adds([f"v_fmac_f32 v{R+r}, v{are}, v{R+r-1}", f"v_fmac_f32 v{Im+r}, v{are}, v{Im+r-1}"])
            for n in range(2):
                R, Im = xb(b, 0, n), xb(b, 1, n)
                adds([f"v_fma_f32 v{R+r}, -v{aim}, v{Im+r-1}, v{R+r}", f"v_fmac_f32 v{Im+r}, v{aim}, v{R+r-1}"])
    for b in range(nS):
        for n in range(2):
            add(f"ds_write2_b32 v{VE+n}, v{xb(b,0,n)+3}, v{xb(b,1,n)+3} offset0:{32*b} offset1:{32*b+1}")
    adds([f"v_add_u32 v{VP}, s{sW3}, v{VCH}", f"v_add_u32 v{VP}, {PRIV}, v{VP}"])
    for m in range(8): add(f"ds_read_b64 {vr(T+2*m, 2)}, v{VP} offset:{384*m}")
    add([f"s_mul_i32 s{sT0}, s{sW}, 384", f"s_add_u32 s{sT0}, s{sT0}, {WTOT}"]); add(f"v_add_u32 v{TS}, s{sT0}, v{VCH}")
    for m in range(1, 8): adds(cmul_acc(T + 2*m, T + 2*m + 1, A4, A4 + 1, T + 2*m - 2, T + 2*m - 1))
    add(I(f"ds_write_b64 v{TS}, {vr(T+14, 2)}", tag="wtot"), deadline=bar_mf[kWB] - 2)
    e[0] = bar_mf[kWB]
    adds([f"v_add_u32 v{TS}, {WTOT}, v{VCH}"])
    for m in range(4): add(f"ds_read_b64 {vr(T+2*m, 2)}, v{TS} offset:{384*m}")
    add([f"s_mul_i32 s{sT0}, s{sTILE}, 384", f"s_cmp_eq_u32 s{sW}, 0", f"s_cselect_b32 s{sT1}, 48, 0"])
    adds([f"v_add_u32 v{TS+1}, s{sT0}, v{VCH}", f"v_cmp_gt_u32 vcc, s{sT1}, {L}", f"v_mov_b32 v{TS+2}, {oob}"])
    for m in range(1, 4): adds(cmul_acc(T + 2*m, T + 2*m + 1, A32, A32 + 1, T + 2*m - 2, T + 2*m - 1))
    adds([f"v_cndmask_b32 v{TS+1}, v{TS+2}, v{TS+1}, vcc"])
    add(I(f"buffer_store_dwordx2 {vr(T+6, 2)}, v{TS+1}, {sr(S_S)}, 0 offen sc1", tag="sst"))
    XF, XP, XT = P1 + 3, P1 + 4, P1 + 5
    eX = bar_mf[kF(0)] + 4
    sX_ = Stream("xch", 2)
    sX_.add([f"s_lshl_b32 s{sQ+1}, s{sSLICE}, 4", f"s_add_u32 s{sQ+1}, s{sQ+1}, s{sTILE}", f"s_lshl_b32 s{sQ+1}, s{sQ+1}, 7", f"s_add_u32 s{sQ+1}, s{sQ+1}, {WS_F}",
             f"s_cmp_eq_u32 s{sW}, 0", f"s_cselect_b32 s{sQ+2}, 1, 0"], eX, bar_mf[kWB] + 8)
    for x in [f"v_mov_b32 v{XF}, s{sQ+1}", f"v_cmp_gt_u32 vcc, s{sQ+2}, {L}", f"v_mov_b32 v{XT}, {oob}", f"v_cndmask_b32 v{XF}, v{XT}, v{XF}, vcc",
              [f"s_sub_u32 s{sQ+1}, s{sQ+1}, {WS_F}", f"s_xor_b32 s{sQ+1}, s{sQ+1}, 2048", f"s_add_u32 s{sQ+1}, s{sQ+1}, {WS_F}"], f"v_mov_b32 v{XP}, s{sQ+1}"]:
        sX_.add(x, eX, bar_mf[kWB] + 8)
    add([I(f"v_mov_b32 v{TS+3}, 1"), WaitTag("sst"), I(f"buffer_store_dword v{TS+3}, v{XF}, {sr(S_WS)}, 0 offen sc1")])
    slow = []
    def poll(emit, name, areg, dreg, cond_instrs, cnt, dbg=False):
        ld = f"buffer_load_ubyte v{dreg}, v{areg}, {sr(S_DBG)}, 0 offen sc1" if dbg else f"buffer_load_dword v{dreg}, v{areg}, {sr(S_WS)}, 0 offen sc1"
        emit(ld, False)
        emit([I(x) for x in cond_instrs] + [I("s_cmp_eq_u64 vcc, -1"), I(f"s_cbranch_scc0 L_slow_{name}{par}"), I(f"L_back_{name}{par}:")], True)
        slow.extend([I(f"L_slow_{name}{par}:"), I(f"s_mov_b32 s{cnt}, 0"), I(f"L_slowl_{name}{par}:"), I("s_sleep 1"), I(ld), I("s_waitcnt vmcnt(0)")]
                    + [I(cond_instrs[0]), I("s_nop 4")] + [I(x) for x in cond_instrs[1:]]
                    + [I("s_cmp_eq_u64 vcc, -1"), I(f"s_cbranch_scc1 L_back_{name}{par}"), I(f"s_add_u32 s{cnt}, s{cnt}, 1"), I(f"s_cmp_lt_u32 s{cnt}, 0x40000"),
                       I(f"s_cbranch_scc1 L_slowl_{name}{par}"), I(f"s_branch L_back_{name}{par}")])
    kPoll = int(opt.get("kpoll", kF(1)))
    pace_from = [len(sS.q)]
    e[0] = bar_mf[kPoll]
    adds([[f"s_lshl_b32 s{sT0}, s{sSLICE}, 4", f"s_sub_u32 s{sT1}, s{sTILE}, 256"],
          f"v_add_u32 v{TS}, s{sT0}, {L}", f"v_lshlrev_b32 v{TS+2}, 4, {L}", f"v_add_u32 v{TS+2}, s{sT1}, v{TS+2}",
          f"v_cmp_gt_u32 vcc, 16, {L}", f"v_cndmask_b32 v{TS}, v{TS+2}, v{TS}, vcc",
          f"v_mov_b32 v{TS+2}, {oob}", f"v_cmp_gt_u32 vcc, 32, {L}", f"v_cndmask_b32 v{TS}, v{TS+2}, v{TS}, vcc"])
    poll(lambda x, chk: add(x), "C", TS, TS + 1, [f"v_cmp_ne_u32 vcc, 0, v{TS+1}", f"s_or_b32 vcc_hi, vcc_hi, -1"], sT2, dbg=True)
    adds([[f"s_lshl_b32 s{sT0}, s{sSLICE}, 11", f"s_add_u32 s{sT0}, s{sT0}, {WS_F}"], f"v_lshlrev_b32 v{TS}, 7, {L}", f"v_add_u32 v{TS}, s{sT0}, v{TS}",
          f"v_cmp_gt_u32 vcc, 16, {L}", f"v_mov_b32 v{TS+2}, {oob}", f"v_cndmask_b32 v{TS}, v{TS+2}, v{TS}, vcc"])
    poll(lambda x, chk: add(x), "S", TS, TS + 1, [f"v_cmp_ne_u32 vcc, 0, v{TS+1}", f"s_or_b64 vcc, vcc, s[{sMASK}:{sMASK+1}]"], sT2)
    add([f"s_mul_i32 s{sT0}, s{sTILE}, 384"]); add(f"v_add_u32 v{TS}, s{sT0}, v{VCH}")
    for idx, k in enumerate(range(15, 7, -1)):
        t_ = TS + 1 + (idx & 1)
        add(f"v_subrev_u32 v{t_}, {k*384}, v{TS}")
        add(f"buffer_load_dwordx2 {vr(T+2*idx, 2)}, v{t_}, {sr(S_S)}, 0 offen sc1")
    CC = TS + 2
    for m in range(1, 8): adds(cmul_acc(T + 2*m, T + 2*m + 1, A128, A128 + 1, T + 2*m - 2, T + 2*m - 1))
    adds([f"v_mov_b32 v{CC}, v{T+14}", f"v_mov_b32 v{CC+1}, v{T+15}"])
    for idx, k in enumerate(range(7, 0, -1)):
        add(f"v_subrev_u32 v{TS+1}, {k*384}, v{TS}")
        add(f"buffer_load_dwordx2 {vr(T+2*idx, 2)}, v{TS+1}, {sr(S_S)}, 0 offen sc1")
    adds(cmul_acc(T, T + 1, A128, A128 + 1, CC, CC + 1))
    for m in range(1, 7): adds(cmul_acc(T + 2*m, T + 2*m + 1, A128, A128 + 1, T + 2*m - 2, T + 2*m - 1))
    adds([f"v_mov_b32 v{CC}, v{T+12}", f"v_mov_b32 v{CC+1}, v{T+13}"])
    for k in (3, 2, 1):
        add([f"s_sub_u32 s{sT0}, s{sW}, {k}", f"s_max_i32 s{sT0}, s{sT0}, 0", f"s_mul_i32 s{sT0}, s{sT0}, 384", f"s_add_u32 s{sT0}, s{sT0}, {WTOT}"])
        add(f"v_add_u32 v{TS}, s{sT0}, v{VCH}")
        add(f"ds_read_b64 {vr(T+2*(3-k), 2)}, v{TS}")
    for k, sm in ((3, sM3), (2, sM2), (1, sM1)):
        j = T + 2 * (3 - k)
        adds([f"v_mul_f32 v{j}, s{sm}, v{j}", f"v_mul_f32 v{j+1}, s{sm}, v{j+1}"])
    adds(cmul_acc(T + 2, T + 3, A32, A32 + 1, T, T + 1)); adds(cmul_acc(T + 4, T + 5, A32, A32 + 1, T + 2, T + 3))
    adds(cmul_acc(T + 4, T + 5, PW, PW + 1, CC, CC + 1))
    adds([f"v_mov_b32 v{CC}, v{T+4}", f"v_mov_b32 v{CC+1}, v{T+5}"])
    for m in range(7): add(f"ds_read_b64 {vr(T+2*m, 2)}, v{VP} offset:{384*m}")
    add(f"ds_write_b64 v{VP}, {vr(CC, 2)}")
    adds(cmul_acc(T, T + 1, A4, A4 + 1, CC, CC + 1))
    add(f"ds_write_b64 v{VP}, {vr(T, 2)} offset:384")
    for m in range(1, 7):
        adds(cmul_acc(T + 2*m, T + 2*m + 1, A4, A4 + 1, T + 2*m - 2, T + 2*m - 1))
        add(f"ds_write_b64 v{VP}, {vr(T+2*m, 2)} offset:{384*(m+1)}")
    VW, VR = TS, TS + 1
    adds([f"v_and_b32 v{VW}, 15, {L}", f"v_lshlrev_b32 v{VW}, 5, v{VW}", f"v_lshrrev_b32 v{VR}, 4, {L}", f"v_lshlrev_b32 v{VR}, 3, v{VR}",
          f"v_add_u32 v{VW}, v{VW}, v{VR}", f"v_add_u32 v{VW}, s{sW3}, v{VW}", f"v_add_u32 v{VW}, {PRIV}, v{VW}",
          f"v_lshlrev_b32 v{VR}, 3, {L}", f"v_add_u32 v{VR}, s{sW3}, v{VR}", f"v_add_u32 v{VR}, {PRIV}, v{VR}"])
    dlS = bar_mf[40] - int(opt.get('dls', 10))
    for n in range(2):
        for b in range(nS): add(f"ds_read_b64 {vr(T+2*b, 2)}, v{VE+n} offset:{128*b}")
        for b in range(nS):
            TBL = T + 6
            adds([f"ds_read_b128 {vr(TBL)}, v{VT} offset:{b*768}", f"ds_read_b128 {vr(TBL+4)}, v{VT} offset:{b*768+16}", f"ds_read_b64 {vr(TBL+8, 2)}, v{VT} offset:{b*768+32}"])
            R, Im = xb(b, 0, n), xb(b, 1, n)
            cre, cim = T + 2 * b, T + 2 * b + 1
            for r in range(4): adds(cmul_acc(R + r, Im + r, TBL + 2*r, TBL + 2*r + 1, cre, cim))
            kr, ki, tt = TBL + 8, TBL + 9, TS + 2
            for r in range(4):
                t_ = tt + (r & 1)
                adds([f"v_mul_f32 v{t_}, v{kr}, v{R+r}", f"v_fma_f32 v{t_}, -v{ki}, v{Im+r}, v{t_}",
                      f"v_mul_f32 v{Im+r}, v{kr}, v{Im+r}", f"v_fmac_f32 v{Im+r}, v{ki}, v{R+r}",
                      f"v_mul_f32 v{R+r}, v{LG+4*n+r}, v{t_}", f"v_mul_f32_e64 v{Im+r}, -v{LG+4*n+r}, v{Im+r}"])
            adds([f"v_cvt_pk_bf16_f32 v{R}, v{R}, v{R+1}", f"v_cvt_pk_bf16_f32 v{R+1}, v{R+2}, v{R+3}",
                  f"v_cvt_pk_bf16_f32 v{Im}, v{Im}, v{Im+1}", f"v_cvt_pk_bf16_f32 v{Im+1}, v{Im+2}, v{Im+3}"])
            so = 1536 * n
            adds([f"ds_write_b64 v{VW}, {vr(R, 2)} offset:{so}", f"ds_write_b64 v{VW}, {vr(Im, 2)} offset:{so+512}",
                  f"ds_read_b64_tr_b16 {vr(R, 2)}, v{VR} offset:{so}", f"ds_read_b64_tr_b16 {vr(R+2, 2)}, v{VR} offset:{so+512}"])
    for n in range(2):
        for b in range(nS):
            off = ((9 + b) * 2 + n) * 1024
            add([I(f"s_add_u32 s{sT0}, s{sHO}, {off & ~4095}"),
                 I(f"buffer_store_dwordx4 {vr(xb(b,0,n))}, v{VST}, {sr(S_WS)}, s{sT0} offen" + (f" offset:{off & 4095}" if off & 4095 else "") + HST, tag="hstC")],
                deadline=dlS)
    def hload(K, n):
        off = (K * 2 + n) * 1024
        return [I(f"s_add_u32 s{sQ+1}, s{sHP}, {off & ~4095}"),
                I(f"buffer_load_dwordx4 {ar(hp_reg(K) + 4*n)}, v{VST}, {sr(S_WS)}, s{sQ+1} offen" + (f" offset:{off & 4095}" if off & 4095 else "") + " sc1")]
    sFl = Stream("flag", 1)
    def flag(val, k):
        sFl.add(f"v_mov_b32 v{XT}, {val}", bar_mf[k], bar_mf[k] + 6)
        sFl.add(f"buffer_store_dword v{XT}, v{XF}, {sr(S_WS)}, 0 offen sc1", bar_mf[k], bar_mf[k] + 10)
    def xpoll(name, val, t_load, t_chk, Ks, dl):
        tt = [t_load]
        def emit(x, chk):
            if chk: sX_.add(x, t_chk, t_chk + 10)
            else: sX_.add(x, t_load, t_load + 10)
        poll(emit, name, XP, GWB, [f"v_cmp_le_u32 vcc, {val}, v{GWB}"], sQ + 2)
        for K in Ks:
            for n in range(2): sX_.add(hload(K, n), t_chk, dl)
    flag(2, kHA)
    needA = mbeg(43); needB = mbeg(45); needC = mbeg(48)
    firstA = [8, 0, 1, 2, 3] if par == 0 else [0, 1, 2, 3, 8]
    tA = int(opt.get("tA", 190)); tB = int(opt.get("tB", 150))
    xpoll("A", 2, mbeg(36), mbeg(36) + 90, firstA, mbeg(40))
    flag(3, kHB)
    xpoll("B", 3, needB - tB - 80, needB - tB, [4, 5, 6, 7], needB - 70)
    flag(4, kHC)
    if FUSE: flag(5, kFM)
    xpoll("D", 4, needC - 120 - 70, needC - 120, [9 + b for b in range(nSP)], needC - 70)

    sW_ = Stream("warm", 5)
    if opt.get("nopf") is None:
        PVL = TA + 2
        def pf(e_, areg, sset, srd_, dst):
            sW_.add(f"v_accvgpr_read_b32 v{PVL}, a{areg}", e_, e_ + 30)
            for x in sset: sW_.add(x, e_, e_ + 30)
            sW_.add(f"buffer_load_dword a{dst}, v{PVL}, {sr(srd_)}, s{sQ} offen{PFL}", e_, e_ + 40)
        t_a = int(opt.get("pf_a", mbeg(kH) + 30))
        which = opt.get("pfall", "")
        if "a" not in which: pf(t_a, 253, [f"s_mul_i32 s{sQ}, s{sT4}, {18*9216}", f"s_mul_i32 s{sQ+3}, s{sSLICE}, 576", f"s_add_u32 s{sQ}, s{sQ}, s{sQ+3}"], S_W1, 252)
        t_d = int(opt.get("pf_d", mbeg(kF(1)) + 20))
        if "d" not in which: pf(t_d, 254, [f"s_lshl_b32 s{sQ}, s{sTILE}, 2", f"s_add_u32 s{sQ}, s{sQ}, s{sW}", f"s_mul_i32 s{sQ}, s{sQ}, {41*128}",
                      f"s_mul_i32 s{sQ+3}, s{sSLICE}, {288*1152}", f"s_add_u32 s{sQ}, s{sQ}, s{sQ+3}"], S_WD, 248)
        if "c" not in which: pf(t_d + 100, 255, [f"s_mul_i32 s{sQ}, s{sT4}, {18*1152}", f"s_lshl_b32 s{sQ+3}, s{sC0}, 1", f"s_add_u32 s{sQ}, s{sQ}, s{sQ+3}"], S_C, 251)
    pace(sS, pace_from[0], bar_mf[kPoll], dlS - 10)
    streams = [sD, sP, sCl, sA, sB, sE, sS, sX_, sFl, sW_]
    if FUSE:
        sR, sR2 = reduce_prep(opt, par, bar_mf[46], bar_mf[int(opt.get("kmchk", 49))] + int(opt.get("tmchk", 0)), mend(NST - 1))
        streams += [sR, sR2]
    strip = opt.get("strip", "")
    if "e" in strip: streams = [x for x in streams if x not in (sE, sS, sX_, sFl, sW_, sCl)]; slow = []
    if "S" in strip: streams = [x for x in streams if x not in (sS, sX_, sFl, sW_, sCl)]; slow = []
    if "E" in strip: streams = [x for x in streams if x is not sE]
    if "h" in strip: sE.q = deque(it for it in sE.q if not any(x.kind == "vm_st" for x in it[0]))
    if "X" in strip: streams = [x for x in streams if x not in (sX_, sFl)]; slow = [x for x in slow if False]
    if "b" in strip:
        for sl in slots: sl.pre = [x for x in sl.pre if x.kind != "barrier"]
    if "d" in strip:
        keep = deque(it for it in sD.q if not any(getattr(x, "tag", "") and str(x.tag).startswith("st") and int(x.tag[2:]) > 8 for x in it[0]))
        sD.q = keep
    if "r" in strip:
        for sl in slots[400:]: sl.post = []
    fw.DMA_GAP = int(opt.get('dgap', 7)); fw.DMA_GAP_FROM = mXB - 20
    body, rest, stats = schedule(slots, streams)
    tail = rest
    if FUSE:
        pb = [x for x in rest if getattr(x, "pbepi", False)]
        others = [x for x in rest if not getattr(x, "pbepi", False)]
        if opt.get("tailv", "2") == "2": tail = others + final_reduce(opt, par, XF, XT, GWB, slow, pb)
        else: tail = rest + final_reduce(opt, par, XF, XT, GWB, slow, None)
    if ts:
        tail = tail + stamp(58) + [I("s_waitcnt vmcnt(0)")] + stamp(59) + [I("s_memrealtime s[100:101]"), I("s_waitcnt lgkmcnt(0)"), I("v_writelane_b32 v255, s100, 62")]
        tail += expand([f"s_lshl_b32 s{sT0}, s2, 2", f"s_add_u32 s{sT0}, s{sT0}, s{sW}", f"s_lshl_b32 s{sT0}, s{sT0}, 8", f"s_add_u32 s{sT0}, s{sT0}, {WS_END}",
                        f"v_lshlrev_b32 v1, 2, {L}", f"buffer_store_dword v255, v1, {sr(S_WS)}, s{sT0} offen"])
    for b_ in check_flags(body)[:10]: print('FLAG HAZARD', par, b_)
    prog = pro + body + tail
    prog, nw = insert_waits(prog)
    prog, nn = pad_hazards(prog)
    ol = stats.pop("overlog")
    stats["over_by_stage"] = [sum(ol[2*u0[k]:2*u0[k+1]]) for k in range(NST)]
    info = dict(stats, rate=round(sS.rate, 2), NU=NU, nwait=nw, nnop=nn, ninstr=len(prog), tail=len(tail))
    txt = render(prog) + "\n  s_endpgm\n" + render(slow) + "\n"
    return txt, info


def build_reduce(opt):
    o = []
    A = lambda *x: o.extend(expand(list(x)))
    A("s_cmp_ge_u32 s2, 576", "s_cbranch_scc1 L_red_end")
    if opt.get("ts"): A("s_memrealtime s[80:81]")
    A("s_load_dwordx2 s[64:65], s[0:1], 0", "s_load_dwordx2 s[66:67], s[0:1], 64", "s_load_dwordx2 s[68:69], s[0:1], 112", "s_load_dwordx2 s[70:71], s[0:1], 128")
    A("v_lshrrev_b32 v1, 6, v0", "v_and_b32 v2, 63, v0")
    A("v_readfirstlane_b32 s20, v1")
    A("s_lshl_b32 s21, s2, 2", "s_add_u32 s21, s21, s20")
    A("s_mul_i32 s22, s21, 1821", "s_lshr_b32 s22, s22, 16")
    A("s_mul_i32 s23, s22, 36", "s_sub_u32 s23, s21, s23")
    A("s_lshl_b32 s25, s22, 5")
    A("v_lshlrev_b32 v3, 4, v2", "v_and_b32 v4, 15, v2", "v_lshrrev_b32 v5, 4, v2")
    A("s_sub_u32 s29, s23, 4", "s_cmp_ge_u32 s23, 20", "s_cselect_b32 s29, s29, s23")
    A("s_lshl_b32 s24, s22, 15", "s_lshl_b32 s29, s29, 10", "s_add_u32 s24, s24, s29", f"s_add_u32 s24, s24, {WS_P8}")
    A(f"s_mov_b32 s30, {16*4*32768}")
    A("s_lshl_b32 s31, s22, 12", "s_sub_u32 s29, s23, 16", "s_lshl_b32 s33, s29, 10", "s_add_u32 s31, s31, s33", f"s_add_u32 s31, s31, {WS_P16}")
    A("s_cmp_lt_u32 s29, 4", "s_cselect_b32 s24, s31, s24", f"s_cselect_b32 s30, {16*4*4096}, s30", "s_cselect_b32 s34, 1, 0")
    A("s_waitcnt lgkmcnt(0)")
    A(srd(4, "s70", "s71", WS_END), srd(8, "s64", "s65", 2359296), srd(12, "s66", "s67", 1152), srd(16, "s68", "s69", 4718592))
    RLD = opt.get("rld", "")
    for s_ in range(8):
        A(f"buffer_load_dwordx4 {vr(32+4*s_)}, v3, s[4:7], s24 offen{RLD}", "s_add_u32 s24, s24, s30")
    A("s_cmp_eq_u32 s34, 1", "s_cselect_b32 s24, s24, 0x7ff00000", "s_cselect_b32 s30, s30, 0")
    for s_ in range(8, 16):
        A(f"buffer_load_dwordx4 {vr(32+4*s_)}, v3, s[4:7], s24 offen{RLD}", "s_add_u32 s24, s24, s30")
    A("s_lshl_b32 s26, s23, 4", "v_lshlrev_b32 v6, 2, v5", "v_add_u32 v6, s26, v6")
    A("v_add_u32 v7, s25, v4")
    A("v_mul_u32_u24 v8, 576, v7", "v_add_u32 v8, v8, v6")
    A("v_lshlrev_b32 v9, 1, v8", "v_lshlrev_b32 v10, 2, v8", "v_lshlrev_b32 v11, 1, v6", "v_lshlrev_b32 v12, 2, v7")
    A("buffer_load_dwordx2 v[14:15], v9, s[8:11], 0 offen")
    A("s_mov_b32 s27, 18432", "buffer_load_dwordx2 v[16:17], v9, s[8:11], s27 offen")
    A("buffer_load_dwordx2 v[18:19], v11, s[12:15], 0 offen")
    A(f"s_mov_b32 s28, {WS_G}", "buffer_load_dword v20, v12, s[4:7], s28 offen", "buffer_load_dword v21, v12, s[4:7], s28 offen offset:64")
    for r in range(8): A(f"v_mov_b32 v{100+r}, 0")
    for s_ in range(16):
        for j in range(4):
            src = 32 + 4 * s_ + j
            A(f"v_lshlrev_b32 v22, 16, v{src}", f"v_and_b32 v23, 0xffff0000, v{src}", f"v_add_f32 v{100+2*j}, v{100+2*j}, v22", f"v_add_f32 v{101+2*j}, v{101+2*j}, v23")
    for n in range(2):
        for j in range(2):
            xs, ds = 14 + 2 * n + j, 18 + j
            A(f"v_lshlrev_b32 v22, 16, v{xs}", f"v_and_b32 v23, 0xffff0000, v{xs}", f"v_lshlrev_b32 v24, 16, v{ds}", f"v_and_b32 v25, 0xffff0000, v{ds}",
              "v_mul_f32 v22, v22, v24", "v_mul_f32 v23, v23, v25", "v_cvt_pk_bf16_f32 v22, v22, v23",
              "v_and_b32 v23, 0xffff0000, v22", "v_lshlrev_b32 v22, 16, v22",
              f"v_fmac_f32 v{100+4*n+2*j}, v{20+n}, v22", f"v_fmac_f32 v{101+4*n+2*j}, v{20+n}, v23")
    A("buffer_store_dwordx4 v[100:103], v10, s[16:19], 0 offen")
    A("s_mov_b32 s27, 36864", "buffer_store_dwordx4 v[104:107], v10, s[16:19], s27 offen")
    if opt.get("ts"):
        A("s_waitcnt vmcnt(0)", "s_memrealtime s[82:83]", "s_waitcnt lgkmcnt(0)", "v_mov_b32 v30, s80", "v_mov_b32 v31, s82", "s_lshl_b32 s27, s21, 3",
          f"s_add_u32 s27, s27, {WS_END + (1 << 18)}", "v_mov_b32 v29, 0", "s_mov_b32 s6, 0x7fffffff", "buffer_store_dwordx2 v[30:31], v29, s[4:7], s27 offen")
    prog, nw = insert_waits(o)
    prog, nn = pad_hazards(prog)
    return render(prog) + "\nL_red_end:\n  s_endpgm\n"


def build(opt):
    common = build_common(opt)
    v0, i0 = build_variant(opt, 0)
    v1, i1 = build_variant(opt, 1)
    red = build_reduce(opt)
    k1, k2 = NAME + "_kernel", "reduce_kernel"
    fuse = opt.get('fuse', '1') == '1'
    s = HEADER
    if fuse:
        s += f"; @launch grid=(256,1,1) block=(256,1,1) lds={LDS_BYTES}\n"
    else:
        s += f"; @launch kernel={k1} grid=(256,1,1) block=(256,1,1) lds={LDS_BYTES}\n"
        s += f"; @launch kernel={k2} grid=(576,1,1) block=(256,1,1) lds=0\n"
    s += '.amdgcn_target "amdgcn-amd-amdhsa--gfx950"\n.text\n'
    far = "  s_cbranch_scc1 L_var1\n"
    common = common.replace("  s_cbranch_scc1 L_main_end\n", "  s_cbranch_scc0 L_go\n  s_endpgm\nL_go:\n")
    common = common.replace("  s_cbranch_scc1 L_var1\n", "  s_cbranch_scc0 L_var0\n  s_branch L_var1\nL_var0:\n")
    s += f".globl {k1}\n.p2align 8\n.type {k1},@function\n{k1}:\n" + common + v0 + "L_end0:\n.p2align 6\nL_var1:\n" + v1 + "L_end1:\n"
    if not fuse: s += f".globl {k2}\n.p2align 8\n.type {k2},@function\n{k2}:\n" + red
    if opt.get("nocpf") is None:
        s += ".set CODE_SPAN0, L_end0 - L_pc0 - 4\n.set CODE_SPAN1, L_end1 - L_pc1 - 4\n"
    s += '.section .rodata,"a"\n' + kd(k1, 512, 256, 102) + ("" if fuse else kd(k2, 128, 128, 96))
    return s, (i0, i1)


if __name__ == "__main__":
    out = sys.argv[1]
    opt = {}
    for a in sys.argv[2:]:
        k, v = a.split("=", 1); opt[k] = v
    fw.DEPAWARE = opt.get('dep', '1') == '1'; fw.VMCOST = int(opt.get('vmcost', 1)); fw.VM_GAP = int(opt.get('vmgap', 5)); fw.LDS_LAT = int(opt.get('ldslat', 8)); fw.VM_LAT = int(opt.get('vmlat', 90))
    s, info = build(opt)
    open(out, "w").write(s)
    for i in info: print(i)
    print(len(s))
```

```python
import sys
import fw
from fw import *
from gen import (NAME, LOG2E, INV2PI, OOB, SLOT, NSLOT, MISC, PRIV, WTOT, TAB, LDS_BYTES, ACC, XB, LG, P1, P2, D1, D2, SF, A4, A32, A128, PW,
                 LANE, VST, VCH, T, VE, VP, VT, TS, TA, AX, AF, AH, L, xfrag, afrag, vr, ar, sr, xb, srd, mf,
                 voff_B, voff_W1full, voff_W1half, voff_Wd, voff_C, base_T64, base_C, cmul_acc, kd, HEADER)
XBASE = 2 * SLOT
XPOS = [0, 1, 2, 3, 4, 5, 3, 4, 5]

WS_P8 = 0
P8_BYTES = 8 * 16 * 4 * 2 * 16 * 1024
WS_P16 = WS_P8 + P8_BYTES
P16_BYTES = 16 * 16 * 4 * 4 * 1024
WS_H = WS_P16 + P16_BYTES
H_BYTES = 16 * 16 * 4 * 24 * 1024
WS_S = WS_H + H_BYTES
WS_G = WS_S + 16 * 16 * 384
WS_F = WS_G + 8192
WS_END = WS_F + 256 * 128

S_X, S_W1, S_WD, S_B, S_C, S_WS, S_S, S_DBG, S_P = 4, 8, 12, 16, 20, 24, 28, 32, 36
sW, sTILE, sSLICE, sC0, sOA, sOB, sW6, sW3 = 40, 41, 42, 43, 44, 45, 46, 47
sP8, sT0, sT1, sT2, sC2, sPAR, sP16, sT3 = 48, 49, 50, 51, 52, 53, 54, 55
sMASK = 56; sM1, sM2, sM3 = 58, 59, 60
sHO, sHP, sHT = 61, 62, 63
sW1F, sW1H, sWD2, sWD1, sWD1B, sC1, sT4, sC0P, sC2P, sQ = 64, 65, 66, 67, 68, 69, 70, 71, 72, 73
sXO, sXL = 98, 99
AHP = 0
def hp_reg(K):
    order = {8: 0, 0: 1, 1: 2, 2: 3, 3: 4, 4: 5, 5: 6, 6: 7, 7: 8, 9: 9, 10: 10, 11: 11}
    return AHP + 8 * order[K]


CYC = [0, 1, 2, 4, 5, 3]
def slot_of(k): return k if k < 4 else CYC[(k - 4) % 6]
def slot_base(k): return slot_of(k) * SLOT
def setof(k): return slot_of(k) // 2
def slot_rel(k): return (slot_of(k) % 2) * SLOT

T64B = [P1 + i for i in range(6)]
T128B = [P1 + 6 + i for i in range(6)] + [P2 + i for i in range(6)]
RB = [P2 + i for i in range(6)]
CB = [P1 + i for i in range(3)]
GWB = P2 + 6


PMACC = [96, 104, 112, 120]


class Stage:
    def __init__(self, fmt, units, pieces, wq, pre):
        self.fmt, self.units, self.pieces, self.wq, self.pre = fmt, units, pieces, wq, pre


def base_list_T128(regs, qrows, t, sets):
    o = [f"v_lshrrev_b32 v{t}, 4, {L}", f"v_mul_u32_u24 v{t}, {qrows}, v{t}", f"v_bfe_u32 v{t+1}, {L}, 2, 2", f"v_add_u32 v{t}, v{t}, v{t+1}",
         f"v_lshlrev_b32 v{t}, 7, v{t}", f"v_and_b32 v{t+1}, 3, {L}", f"v_lshlrev_b32 v{t+1}, 3, v{t+1}", f"v_add_u32 v{t}, v{t}, v{t+1}",
         f"v_bfe_u32 v{t+1}, {L}, 3, 2"]
    return o


def t128_regs(idx, t):
    s_, mt = divmod(idx, 4)
    d = T128B[idx]
    o = [f"v_xor_b32 v{d}, {mt}, v{t+1}", f"v_lshlrev_b32 v{d}, 5, v{d}", f"v_add_u32 v{d}, v{d}, v{t}"]
    if s_: o += [f"v_add_u32 v{d}, {49152*s_}, v{d}"]
    return o


def base_R2(t):
    o = [f"v_and_b32 v{t}, 15, {L}", f"v_lshrrev_b32 v{t+1}, 1, v{t}", f"v_lshlrev_b32 v{t}, 7, v{t}"]
    for h in range(2):
        d = RB[h]
        o += [f"v_lshrrev_b32 v{d}, 4, {L}", f"v_add_u32 v{d}, {4*h}, v{d}", f"v_xor_b32 v{d}, v{d}, v{t+1}", f"v_lshlrev_b32 v{d}, 4, v{d}",
              f"v_add_u32 v{d}, v{d}, v{t}", f"v_add_u32 v{RB[2+h]}, 49152, v{d}", f"v_add_u32 v{RB[4+h]}, {2*49152}, v{d}"]
    return o


def build_stages(par, ord2=0):
    nS = 2 if par == 0 else 3
    nSP = 5 - nS
    stages = []
    tr = "ds_read_b64_tr_b16"
    U = lambda reads, mfl, swap: dict(reads=reads, mf=mfl, swap=swap)
    for st in range(5):
        units = []
        for ksl in range(4 if st < 4 else 2):
            ks = 4 * st + ksl
            line, half = ksl >> 1, ksl & 1
            for b in range(nS):
                for mat in range(2):
                    off = (2 * mat + line) * 6144 + b * 2048
                    acc = [xb(b, mat, n) for n in range(2)]
                    units.append(U([("ds_read_b128", 4, ("R", half), off)],
                                   [(vr(acc[n]), xfrag(ks, n), None, vr(acc[n]) if ks else "0") for n in range(2)], True))
            units.append(U([("ds_read_b128", 4, ("abs", GWB), ks * 64)],
                           [(vr(LG + 4 * n), xfrag(ks, n), None, vr(LG + 4 * n) if ks else "0") for n in range(2)], True))
        pre = [] if st == 0 else [f"s_add_u32 s{sOA}, s{sOA}, 256"]
        npc = 2 * nS
        stages.append(Stage("B", units, [(D1 + j, S_B, sOA) for j in range(npc)], sW6, pre))
    for st in range(3):
        units = []
        for ksl in range(6):
            ks = 6 * st + ksl
            for mat in range(2):
                for mt in range(2):
                    acc = ACC[0] + (mat * 4 + mt) * 8
                    off = mat * 12288 + ksl * 2048
                    units.append(U([(tr, 2, ("T64", mt), off), (tr, 2, ("T64", mt), off + 256)],
                                   [(vr(acc + 4 * n), None, xfrag(ks, n), vr(acc + 4 * n) if ks else "0") for n in range(2)], False))
        pre = [f"s_mov_b32 s{sOA}, s{sW1H}"] if st == 0 else [f"s_add_u32 s{sOA}, s{sOA}, {192*9216}"]
        stages.append(Stage("W1h", units, [(D2 + j, S_W1, sOA) for j in range(6)], sW6, pre))
    for c in range(4):
        buf = ACC[(c + 1) & 1]
        for st in range(6):
            units = []
            for ksl in range(3):
                ks = 3 * st + ksl
                for mat in range(2):
                    for mt in range(4):
                        acc = buf + (mat * 4 + mt) * 8
                        off = mat * 12288 + ksl * 4096
                        units.append(U([(tr, 2, ("T128", mt), off), (tr, 2, ("T128", mt), off + 512)],
                                       [(vr(acc + 4 * n), None, xfrag(ks, n), vr(acc + 4 * n) if ks else "0") for n in range(2)], False))
            pre = [f"s_add_u32 s{sOA}, s{sW1F}, {128*c}"] if st == 0 else [f"s_add_u32 s{sOA}, s{sOA}, {96*9216}"]
            stages.append(Stage("W1", units, [(D1 + j, S_W1, sOA) for j in range(6)], sW6, pre))
    own = lambda K: (lambda n: ar(AH + 8 * K + 4 * n))
    prt = lambda K: (lambda n: ar(hp_reg(K) + 4 * n))
    owns = lambda b: (lambda n: vr(xb(b, 0, n)))
    if par == 0:
        ownW = [[0, 1, 2], [3, 4, 5], [6, 7, 8]]; prtW = [[8, 0, 1], [2, 3, 4], [5, 6, 7]]
        ms_own, ms_prt = [0, 1, 2], [3, 4, 5]
        pmA, pmB = [0, 1, 2, 3, 4, 5], [6, 7, 8]
        cols = [0, 256]
    else:
        ownW = [[8, 0, 1], [2, 3, 4], [5, 6, 7]]; prtW = [[0, 1, 2], [3, 4, 5], [6, 7, 8]]
        ms_own, ms_prt = [3, 4, 5], [0, 1, 2]
        pmA, pmB = [8, 0, 1, 2, 3, 4], [5, 6, 7]
        cols = [640, 896]
    def wd_units(bfs, lines, buf, first):
        units = []
        for i_, bf in enumerate(bfs):
            for line in range(lines):
                for mt in range(4):
                    acc = buf + (line * 4 + mt) * 8
                    off = line * 12288 + i_ * 4096
                    z = first and i_ == 0
                    units.append(U([(tr, 2, ("T128", mt), off), (tr, 2, ("T128", mt), off + 2048)],
                                   [(vr(acc + 4 * n), None, bf(n), "0" if z else vr(acc + 4 * n)) for n in range(2)], False))
        return units
    def c_units(bfs, nm, buf, imoff):
        units = []
        for b, bf in enumerate(bfs):
            for m in range(nm):
                acc = buf + m * 8
                off = m * 1536 + 32 * b
                units.append(U([("ds_read_b64", 2, ("C", 0), off), ("ds_read_b64", 2, ("C", 0), off + imoff)],
                               [(vr(acc + 4 * n), None, bf(n), vr(acc + 4 * n)) for n in range(2)], False))
        return units
    def W(p, bfs, ms, first=False):
        buf = ACC[(p + 1) & 1]
        stages.append(Stage("Wd", wd_units(bfs, 2, buf, first), [(D2 + j, S_WD, sOA) for j in range(6)], sW6,
                            [f"s_add_u32 s{sOA}, s{sWD2}, {cols[p] + ms*96*1152}"]))
    def C(p, bfs, sbase):
        buf = ACC[(p + 1) & 1]
        stages.append(Stage("C", c_units(bfs, 8, buf, 12288), [(D1 + j, S_C, sOA) for j in range(6)], sW6,
                            [f"s_add_u32 s{sOA}, s{sbase}, {(cols[p] // 2) * 1152}"]))
    oW = lambda p, i, first=False: W(p, [own(K) for K in ownW[i]], ms_own[i], first)
    pW = lambda p, i: W(p, [prt(K) for K in prtW[i]], ms_prt[i])
    oC = lambda p: C(p, [owns(b) for b in range(nS)], sC2)
    pC = lambda p: C(p, [prt(9 + b) for b in range(nSP)], sC2P)
    def pm_units(bfs, first, kind):
        units = []
        for i_, bf in enumerate(bfs):
            for mt in range(4):
                acc = PMACC[mt]
                z = first and i_ == 0
                if kind == "W":
                    off = i_ * 4096
                    rd = [(tr, 2, ("T128", mt), off), (tr, 2, ("T128", mt), off + 2048)]
                else:
                    off = mt * 1536 + 32 * i_
                    rd = [("ds_read_b64", 2, ("C", 0), off), ("ds_read_b64", 2, ("C", 0), off + 6144)]
                units.append(U(rd, [(ar(acc + 4 * n), None, bf(n), "0" if z else ar(acc + 4 * n)) for n in range(2)], False))
        return units
    pmWa = lambda: stages.append(Stage("Wd1a", pm_units([own(K) for K in pmA], True, "W"), [(D2 + j, S_WD, sOA) for j in range(6)], sW6, [f"s_add_u32 s{sOA}, s{sWD1}, 512"]))
    pmWb = lambda: stages.append(Stage("Wd1b", pm_units([own(K) for K in pmB], False, "W"), [(D2 + j, S_WD, sOA) for j in range(3)], sW3, [f"s_add_u32 s{sOA}, s{sWD1B}, 512"]))
    pmC = lambda: stages.append(Stage("C1", pm_units([owns(b) for b in range(nS)], False, "C"), [(D1 + j, S_C, sOA) for j in range(3)], sW3, [f"s_add_u32 s{sOA}, s{sC1}, {256*1152}"]))
    oW(0, 0, True); oW(0, 1); pmWa(); oW(1, 0, True); oW(1, 1); oW(0, 2); oW(1, 2); pmWb()
    oC(0); oC(1); pmC()
    if ord2 == 0: pW(0, 0); pW(1, 0); pW(0, 1); pW(1, 1); pW(0, 2); pC(0); pW(1, 2); pC(1)
    elif ord2 == 1: pW(0, 0); pW(0, 1); pW(1, 0); pW(0, 2); pC(0); pW(1, 1); pW(1, 2); pC(1)
    else: pW(0, 0); pW(0, 1); pW(0, 2); pW(1, 0); pC(0); pW(1, 1); pW(1, 2); pC(1)
    return stages, nS


def pace(st, i0, t0, t1):
    items = list(st.q)
    def walk(rate):
        t = float(t0); ready = {}; tr = {}; out = []
        for (g, e, d) in items[i0:]:
            t = max(t, e)
            for x in g:
                if x.kind == "pwait" and x.op == "waittag":
                    for tg in x.args: t = max(t, tr.get(tg, -1))
                else:
                    for r in x.src + x.dst: t = max(t, ready.get(r, -1))
            out.append(t)
            for x in g:
                if x.kind == "ds_rd":
                    for r in x.dst: ready[r] = t + fw.LDS_LAT + 1
                elif x.kind == "vm_ld":
                    for r in x.dst: ready[r] = t + fw.VM_LAT + 2
                if x.tag and x.kind in ("vm_st", "ds_wr"): tr[x.tag] = t + fw.VM_LAT
            t += len(g) / rate
        return out
    lo, hi = 0.05, 8.0
    for _ in range(30):
        mid = (lo + hi) / 2
        if walk(mid)[-1] <= t1: hi = mid
        else: lo = mid
    dls = walk(hi)
    new = deque(items[:i0])
    for (g, e, d), t in zip(items[i0:], dls):
        nd = int(t) + 3
        new.append((g, e, nd if d is None else min(d, nd)))
    st.q = new
    st.rate = hi


def interleave(vm, fill, per):
    out = []; fi = 0
    for g in vm:
        out += g
        if any(("buffer_load" in x or "global_load" in x) if isinstance(x, str) else x.kind in ("dma", "vm_ld") for x in g):
            n = 0
            while fi < len(fill) and n < per:
                f = fill[fi]; fi += 1
                out += f if isinstance(f, list) else [f]
                n += len(f) if isinstance(f, list) else 1
    for f in fill[fi:]:
        out += f if isinstance(f, list) else [f]
    return out


def build_common(opt):
    o = []
    A = lambda *x: o.extend(expand(list(x)))
    A("s_cmp_ge_u32 s2, 256", "s_cbranch_scc1 L_main_end")
    A("s_load_dwordx16 s[64:79], s[0:1], 0", "s_load_dwordx16 s[80:95], s[0:1], 64", "s_load_dwordx2 s[96:97], s[0:1], 128")
    A(f"v_and_b32 {L}, 63, v0", "v_lshrrev_b32 v1, 6, v0")
    A(f"s_and_b32 s{sT0}, s2, 7", f"s_lshr_b32 s{sT1}, s2, 3")
    A(f"v_readfirstlane_b32 s{sW}, v1")
    if opt.get("map", "2") == "4":
        A(f"s_and_b32 s{sSLICE}, s{sT0}, 3", f"s_lshl_b32 s{sSLICE}, s{sSLICE}, 2", f"s_and_b32 s{sT2}, s{sT1}, 3", f"s_add_u32 s{sSLICE}, s{sSLICE}, s{sT2}",
          f"s_and_b32 s{sPAR}, s{sSLICE}, 1", f"s_lshr_b32 s{sTILE}, s{sT0}, 2", f"s_lshl_b32 s{sTILE}, s{sTILE}, 3", f"s_lshr_b32 s{sT2}, s{sT1}, 2", f"s_add_u32 s{sTILE}, s{sTILE}, s{sT2}")
    elif opt.get("map", "2") == "8":
        A(f"s_and_b32 s{sSLICE}, s{sT0}, 1", f"s_lshl_b32 s{sSLICE}, s{sSLICE}, 3", f"s_and_b32 s{sT2}, s{sT1}, 7", f"s_add_u32 s{sSLICE}, s{sSLICE}, s{sT2}",
          f"s_and_b32 s{sPAR}, s{sSLICE}, 1", f"s_lshr_b32 s{sTILE}, s{sT0}, 1", f"s_lshl_b32 s{sTILE}, s{sTILE}, 2", f"s_lshr_b32 s{sT2}, s{sT1}, 3", f"s_add_u32 s{sTILE}, s{sTILE}, s{sT2}")
    elif opt.get("parhi", "0") == "1":
        A(f"s_lshr_b32 s{sPAR}, s{sT1}, 4", f"s_xor_b32 s{sPAR}, s{sPAR}, 1", f"s_lshl_b32 s{sSLICE}, s{sT0}, 1", f"s_add_u32 s{sSLICE}, s{sSLICE}, s{sPAR}", f"s_and_b32 s{sTILE}, s{sT1}, 15")
    else:
        A(f"s_lshl_b32 s{sSLICE}, s{sT0}, 1", f"s_and_b32 s{sPAR}, s{sT1}, 1", f"s_add_u32 s{sSLICE}, s{sSLICE}, s{sPAR}", f"s_lshr_b32 s{sTILE}, s{sT1}, 1")
    choose = [f"s_cmp_eq_u32 s{sPAR}, 1", "s_cbranch_scc1 L_var1"]
    prog, _ = pad_hazards(o)
    return render(prog) + "\n  " + "\n  ".join(choose) + "\n"


I0, I1, I2 = xb(0, 1, 0), xb(1, 1, 0), xb(2, 1, 0)
FA, FD, LT, LQ = A4, A4 + 1, A4 + 2, A4 + 3
GREG = A4 + 5
PE, PX, PD, ME = I0, I0 + 1, I0 + 2, I0 + 3
MS, DA, DB, TMP, MX = I0 + 4, I1, I2, LG, LG + 4
MLA, EII, E0, E1 = 96, 112, 116, 120
S_OUT, S_DS = S_P, S_B
sJ, sTOK, sSRC, sM_, sPA, sDA, sRM, sMS = 82, 83, 84, 85, 86, 87, 88, 89
mALL, mPAR = 56, 58


def skip_init(dst, xs, ds, g):
    o = []; a, b, c, d = TMP, TMP + 1, TMP + 2, TMP + 3
    for j in range(2):
        o += [f"v_lshlrev_b32 v{a}, 16, v{xs+j}", f"v_and_b32 v{b}, 0xffff0000, v{xs+j}", f"v_lshlrev_b32 v{c}, 16, v{ds+j}", f"v_and_b32 v{d}, 0xffff0000, v{ds+j}",
              f"v_mul_f32 v{a}, v{a}, v{c}", f"v_mul_f32 v{b}, v{b}, v{d}", f"v_cvt_pk_bf16_f32 v{a}, v{a}, v{b}",
              f"v_and_b32 v{b}, 0xffff0000, v{a}", f"v_lshlrev_b32 v{a}, 16, v{a}", f"v_mul_f32 v{dst+2*j}, v{g}, v{a}", f"v_mul_f32 v{dst+2*j+1}, v{g}, v{b}"]
    return o


def reduce_prep(opt, par, e0, eM, lastm):
    oob = hex(OOB)
    sR = Stream("red", 4)
    add = lambda x, e=e0, d=None: sR.add(x, e, d)
    def adds(l, e=e0, d=None):
        for x in l: add(x, e, d)
    adds(srd(S_OUT, "s92", "s93", 4718592) + srd(S_DS, "s80", "s81", 1152))
    adds([f"s_mov_b32 s{mALL}, 0xffff0000", f"s_mov_b32 s{mALL+1}, -1", f"s_mov_b32 s{mPAR}, {hex(0xffff0000 | (0xaaaa if par == 0 else 0x5555))}", f"s_mov_b32 s{mPAR+1}, -1"])
    adds([[f"s_lshl_b32 s{sT0}, s{sTILE}, 7", f"s_add_u32 s{sT0}, s{sT0}, {WS_F}"], f"v_lshlrev_b32 v{FA}, 11, {L}", f"v_add_u32 v{FA}, s{sT0}, v{FA}",
          [f"v_cmp_gt_u32 vcc, 16, {L}", f"v_mov_b32 v{FD}, {oob}", f"v_cndmask_b32 v{FA}, v{FD}, v{FA}, vcc"],
          f"v_and_b32 v{LT}, 15, {L}", f"v_lshrrev_b32 v{LQ}, 4, {L}", f"s_lshr_b32 s{sJ}, s{sSLICE}, 1"], e0, eM - 95)
    adds([[f"s_lshr_b32 s{sT0}, s{sSLICE}, 2", f"s_and_b32 s{sM_}, s{sSLICE}, 3", f"s_and_b32 s{sT3}, s{sW}, 1", f"s_lshr_b32 s{sT1}, s{sW}, 1",
           f"s_lshl_b32 s{sMS}, s{sTILE}, 2", f"s_add_u32 s{sMS}, s{sMS}, s{sT0}", f"s_lshl_b32 s{sMS}, s{sMS}, 2", f"s_add_u32 s{sMS}, s{sMS}, s{sM_}"],
          f"s_lshl_b32 s{sMS}, s{sMS}, 10", f"s_mul_i32 s{sT1}, s{sT1}, {8*16*4*4096}", f"s_add_u32 s{sMS}, s{sMS}, s{sT1}", f"s_lshl_b32 s{sT2}, s{sT3}, 3",
          f"s_add_u32 s{sMS}, s{sMS}, s{sT2}", f"s_add_u32 s{sMS}, s{sMS}, {WS_P16}"], e0, eM - 4)
    adds([[f"s_lshl_b32 s{sPA}, s{sTILE}, 2", f"s_add_u32 s{sPA}, s{sPA}, s{sW}"], f"s_lshl_b32 s{sPA}, s{sPA}, 15", f"s_lshl_b32 s{sT0}, s{sJ}, 10", f"s_add_u32 s{sPA}, s{sPA}, s{sT0}",
          f"s_add_u32 s{sPA}, s{sPA}, {WS_P8 + 16384*par}", f"s_lshl_b32 s{sDA}, s{sJ}, 4", f"s_add_u32 s{sDA}, s{sDA}, {320*par}",
          f"s_lshl_b32 s{sTOK}, s{sTILE}, 7", f"s_lshl_b32 s{sT0}, s{sW}, 5", f"s_add_u32 s{sTOK}, s{sTOK}, s{sT0}",
          f"v_add_u32 v{PE}, s{sTOK}, v{LT}", f"v_lshlrev_b32 v{PD}, 2, v{LQ}", f"v_add_u32 v{PD}, s{sDA}, v{PD}", f"v_mul_u32_u24 v{PE}, 576, v{PE}",
          f"v_add_u32 v{PE}, v{PE}, v{PD}", f"v_lshlrev_b32 v{PX}, 1, v{PE}", f"v_lshlrev_b32 v{PD}, 1, v{PD}", f"v_lshlrev_b32 v{PE}, 2, v{PE}",
          f"v_accvgpr_read_b32 v{GREG}, a249", f"v_accvgpr_read_b32 v{GREG+1}, a250"])
    def aux(base, dcol):
        add([f"s_mov_b32 s{sT0}, {2*dcol}", f"buffer_load_dwordx2 {vr(base, 2)}, v{PX}, {sr(S_X)}, s{sT0} offen"])
        add([f"s_mov_b32 s{sT1}, {2*dcol + 18432}", f"buffer_load_dwordx2 {vr(base+2, 2)}, v{PX}, {sr(S_X)}, s{sT1} offen"])
        add([f"s_mov_b32 s{sT0}, {2*dcol}", f"buffer_load_dwordx2 {vr(base+4, 2)}, v{PD}, {sr(S_DS)}, s{sT0} offen"])
    aux(T, 0); aux(T + 6, 128)
    MA = T + 12
    adds([[f"s_lshr_b32 s{sT0}, s{sSLICE}, 2", f"s_lshl_b32 s{sTOK}, s{sTILE}, 7", f"s_lshl_b32 s{sT0}, s{sT0}, 5", f"s_add_u32 s{sTOK}, s{sTOK}, s{sT0}", f"s_lshl_b32 s{sT2}, s{sT3}, 4"],
          f"s_add_u32 s{sTOK}, s{sTOK}, s{sT2}", f"s_lshl_b32 s{sM_}, s{sM_}, 4", f"s_add_u32 s{sM_}, s{sM_}, 256",
          f"v_add_u32 v{MX}, s{sTOK}, v{LT}", f"v_lshlrev_b32 v{MA+2}, 2, v{LQ}", f"v_add_u32 v{MA+2}, s{sM_}, v{MA+2}",
          f"v_mul_u32_u24 v{ME}, 576, v{MX}", f"v_add_u32 v{ME}, v{ME}, v{MA+2}", f"v_lshlrev_b32 v{MA}, 1, v{ME}", f"v_lshlrev_b32 v{MA+2}, 1, v{MA+2}",
          f"v_lshlrev_b32 v{MX}, 2, v{MX}", f"v_lshlrev_b32 v{ME}, 2, v{ME}",
          f"buffer_load_dwordx2 {vr(MA, 2)}, v{MA}, {sr(S_X)}, 0 offen", f"buffer_load_dwordx2 {vr(MA+2, 2)}, v{MA+2}, {sr(S_DS)}, 0 offen"], e0, eM - 2)
    add(f"s_mov_b32 s{sT1}, {WS_G}", e0, eM)
    add([I(f"v_cmp_le_u32 vcc, 5, v{FD}"), I(f"s_or_b64 vcc, vcc, s[{mALL}:{mALL+1}]"), I("s_cmp_eq_u64 vcc, -1"), I(f"s_cselect_b32 s{sRM}, 1, 0"),
         I(f"s_cselect_b32 s{sSRC}, s{sMS}, 0x7ff00000"), I(f"s_cselect_b32 s{sT0}, s{sT1}, 0x7ff00000")], eM, eM + 8)
    add(f"buffer_load_dword v{MX+1}, v{MX}, {sr(S_WS)}, s{sT0} offen sc1", eM)
    for j in range(8):
        add(f"buffer_load_dwordx2 {ar(MLA+2*j, 2)}, v{VST}, {sr(S_WS)}, s{sSRC} offen sc1", eM)
        if j < 7: add(f"s_add_u32 s{sSRC}, s{sSRC}, {16*4*4096}", eM)
    adds(skip_init(DA, T, T + 4, GREG) + skip_init(DA + 4, T + 2, T + 4, GREG + 1) + skip_init(DB, T + 6, T + 10, GREG) + skip_init(DB + 4, T + 8, T + 10, GREG + 1), eM)
    EM0, EM1 = T, T + 1
    adds([f"v_lshrrev_b32 v{EM1}, 2, v{LT}", f"v_xor_b32 v{T+3}, v{EM1}, v{LQ}", f"v_and_b32 v{EM1}, 1, v{LT}", f"v_lshlrev_b32 v{EM1}, 4, v{EM1}",
          f"v_mov_b32 v{T+2}, 0x3f80", f"v_lshlrev_b32 v{EM1}, v{EM1}, v{T+2}", [f"v_cmp_eq_u32 vcc, 0, v{T+3}", f"v_cndmask_b32 v{EM1}, 0, v{EM1}, vcc"],
          f"v_and_b32 v{EM0}, 2, v{LT}", [f"v_cmp_eq_u32 vcc, 0, v{EM0}", f"v_cndmask_b32 v{EM0}, 0, v{EM1}, vcc", f"v_cndmask_b32 v{EM1}, v{EM1}, 0, vcc"],
          f"v_mov_b32 v{T+2}, 0"]
         + [f"v_accvgpr_write_b32 a{r}, v{EM0}" for r in (EII, EII + 2, E0, E1 + 2)] + [f"v_accvgpr_write_b32 a{r}, v{EM1}" for r in (EII + 1, EII + 3, E0 + 1, E1 + 3)]
         + [f"v_accvgpr_write_b32 a{r}, v{T+2}" for r in (E0 + 2, E0 + 3, E1, E1 + 1)], eM)
    sR2 = Stream("red2", 1)
    sR2.add(f"buffer_load_dword v{FD}, v{FA}, {sr(S_WS)}, 0 offen sc1", eM - 85, eM - 80)
    return sR, sR2


def final_reduce(opt, par, XF, XT, XD, slow, pb):
    o = []
    A = lambda *x: o.extend(expand(list(x)))
    tst = lambda i: A(I(("s_memrealtime" if opt.get("ts") == "5" else "s_memtime") + " s[100:101]"), I("s_waitcnt lgkmcnt(0)"), I(f"v_writelane_b32 v255, s100, {i}")) if (opt.get("ts") and (opt.get("ts") != "4" or i == 52)) else None
    OST = opt.get("ost", " nt")
    MA = T + 12
    def flagst(val): A(f"v_mov_b32 v{XT}, {val}", f"buffer_store_dword v{XT}, v{XF}, {sr(S_WS)}, 0 offen sc1")
    ld = f"buffer_load_dword v{FD}, v{FA}, {sr(S_WS)}, 0 offen sc1"
    def spin(name, val, mask, after):
        cond = [f"v_cmp_le_u32 vcc, {val}, v{FD}", f"s_or_b64 vcc, vcc, s[{mask}:{mask+1}]"]
        slow.extend([I(f"L_slow_{name}{par}:"), I(f"s_mov_b32 s{sT2}, 0"), I(f"L_slowl_{name}{par}:"), I(ld), I("s_waitcnt vmcnt(0)"),
                     I(cond[0]), I("s_nop 4"), I(cond[1]), I("s_cmp_eq_u64 vcc, -1"), I(f"s_cbranch_scc1 L_slowd_{name}{par}"),
                     I(f"s_add_u32 s{sT2}, s{sT2}, 1"), I(f"s_cmp_lt_u32 s{sT2}, 0x40000"), I(f"s_cbranch_scc1 L_slowl_{name}{par}"), I(f"L_slowd_{name}{par}:")]
                    + expand(after) + [I("s_waitcnt vmcnt(0)"), I(f"s_branch L_back_{name}{par}")])
        return cond
    def l8(dst, extra):
        r = [f"s_add_u32 s{sSRC}, s{sPA}, {extra}"]
        for j in range(8):
            r.append(f"buffer_load_dwordx4 {vr(dst+4*j)}, v{VST}, {sr(S_WS)}, s{sSRC} offen sc1")
            if j < 7: r.append(f"s_add_u32 s{sSRC}, s{sSRC}, {16*4*32768}")
        return r
    def finish(src, dst, dcol):
        for j in range(8):
            for n in range(2): A(mf(vr(dst + 4*n), ar((E0, E1)[n]), vr(src + 4*j), vr(dst + 4*n)))
        A(f"s_mov_b32 s{sT0}, {4*dcol}", f"s_mov_b32 s{sT1}, {4*dcol + 36864}",
          f"buffer_store_dwordx4 {vr(dst)}, v{PE}, {sr(S_OUT)}, s{sT0} offen{OST}", f"buffer_store_dwordx4 {vr(dst+4)}, v{PE}, {sr(S_OUT)}, s{sT1} offen{OST}")
    tst(52)
    redo = [f"s_mov_b32 s{sSRC}, s{sMS}", f"s_mov_b32 s{sT0}, {WS_G}", f"buffer_load_dword v{MX+1}, v{MX}, {sr(S_WS)}, s{sT0} offen sc1"]
    for j in range(8):
        redo.append(f"buffer_load_dwordx2 {ar(MLA+2*j, 2)}, v{VST}, {sr(S_WS)}, s{sSRC} offen sc1")
        if j < 7: redo.append(f"s_add_u32 s{sSRC}, s{sSRC}, {16*4*4096}")
    def pm_part():
        spin("M", 5, mALL, redo + [ld])
        A(WaitRegs([f"a{MLA+j}" for j in range(16)] + [f"v{MX+1}"]), f"s_cmp_eq_u32 s{sRM}, 1", f"s_cbranch_scc0 L_slow_M{par}", I(f"L_back_M{par}:"))
        A(f"s_cmp_lt_u32 s{sW}, 2", f"s_cselect_b32 s{sT0}, 1.0, 0", f"v_mul_f32 v{MX+1}, s{sT0}, v{MX+1}")
        A(skip_init(MS, MA, MA + 2, MX + 1))
        for j in range(4): A(mf(vr(MS), ar(EII), ar(MLA + 4*j), vr(MS)))
        A(f"s_and_b32 s{sT0}, s{sW}, 1", f"s_lshl_b32 s{sT0}, s{sT0}, 10", f"v_add_u32 v{MA}, s{sT0}, v{VST}",
          f"s_cmp_ge_u32 s{sW}, 2", f"s_cselect_b32 s{sT1}, 0, 2048", f"v_add_u32 v{MA+1}, s{sT1}, v{MA}")
        A(I(f"ds_write_b128 v{MA+1}, {vr(MS)}", tag="pmx"))
    if pb is not None:
        A(WaitTag("pstA"), "s_barrier"); flagst(6)
        A(ld)
        A(pb)
        pm_part()
        tst(53)
        cond = spin("PA", 6, mPAR, [])
        A(*cond, "s_cmp_eq_u64 vcc, -1", f"s_cbranch_scc0 L_slow_PA{par}", I(f"L_back_PA{par}:"))
        A(l8(64, 0))
        A(WaitTag("pstB", "pmx"), "s_barrier"); flagst(7)
        tst(54)
        A(ld)
        A(f"ds_read_b128 {vr(MX)}, v{MA}")
        srcA, srcB = 64, 0
    else:
        if not int(opt.get("kfa", 0)):
            A(WaitTag("pstA"), "s_barrier"); flagst(6)
        tst(53)
        pm_part()
        A(ld)
        A(WaitTag("pstB", "pmx"), "s_barrier"); flagst(7)
        tst(54)
        A(f"ds_read_b128 {vr(MX)}, v{MA}")
        cond = spin("PA", 6, mPAR, [])
        A(*cond, "s_cmp_eq_u64 vcc, -1", f"s_cbranch_scc0 L_slow_PA{par}", I(f"L_back_PA{par}:"))
        A(l8(32, 0)); A(ld)
        srcA, srcB = 32, 64
    tst(55)
    for j in range(4): A(f"v_add_f32 v{MS+j}, v{MS+j}, v{MX+j}")
    A(f"s_cmp_lt_u32 s{sW}, 2", f"s_cselect_b32 s{sT0}, 0, 0x7ff00000", f"buffer_store_dwordx4 {vr(MS)}, v{ME}, {sr(S_OUT)}, s{sT0} offen{OST}")
    finish(srcA, DA, 0)
    tst(56)
    cond = spin("PB", 7, mPAR, [])
    A(*cond, "s_cmp_eq_u64 vcc, -1", f"s_cbranch_scc0 L_slow_PB{par}", I(f"L_back_PB{par}:"))
    tst(57)
    A(l8(srcB, 8192))
    finish(srcB, DB, 128)
    return o


def build_variant(opt, par):
    ORD2 = int(opt.get('ord2', 0))
    stages, nS = build_stages(par, ORD2)
    nSP = 5 - nS
    NST = len(stages)
    V = f"v{par}"
    pro = []
    A = lambda *x: pro.extend(expand(list(x)))
    ts = opt.get("ts")
    A(f"s_mul_i32 s{sC0}, s{sSLICE}, 9", f"s_lshr_b32 s{sC0}, s{sC0}, 1", f"s_lshl_b32 s{sC0}, s{sC0}, 3")
    A(f"s_mul_i32 s{sW6}, s{sW}, 6144", f"s_mul_i32 s{sW3}, s{sW}, 3072")
    A(voff_B(D1, 10))
    A(f"s_and_b32 s{sT3}, s{sW}, 1")
    A(f"s_mul_i32 s{sOA}, s{sC0}, 1152", f"s_lshl_b32 s{sT0}, s{sT3}, 7", f"s_add_u32 s{sOA}, s{sOA}, s{sT0}")
    A(f"s_lshl_b32 s{sT0}, s{sTILE}, 7", f"s_lshl_b32 s{sT1}, s{sW}, 5", f"s_add_u32 s{sT0}, s{sT0}, s{sT1}", f"s_mul_i32 s{sXO}, s{sT0}, 1152")
    A(f"s_lshl_b32 s{sXL}, s{sW}, 12", f"s_add_u32 s{sXL}, s{sXL}, {XBASE}")
    if ts: A("s_memtime s[100:101]", "s_waitcnt lgkmcnt(0)", "v_mov_b32 v255, 0", "v_writelane_b32 v255, s100, 0", "s_memrealtime s[100:101]")
    A("s_waitcnt lgkmcnt(0)")
    if ts: A("v_writelane_b32 v255, s100, 61")
    A(srd(S_X, "s64", "s65", 2359296))
    A(f"s_cmp_lt_u32 s{sW}, 2")
    A(f"s_cselect_b32 s{S_B}, s70, s72", f"s_cselect_b32 s{S_B+1}, s71, s73", f"s_mov_b32 s{S_B+2}, 663552", f"s_mov_b32 s{S_B+3}, 0x20000")

    def dma_items(k):
        st = stages[k]
        items = [[x] for x in st.pre] + [[f"s_add_u32 m0, s{st.wq}, {slot_base(k)}"]]
        for j, (v, s_, so) in enumerate(st.pieces):
            if j == 4: items.append([f"s_add_u32 m0, s{st.wq}, {slot_base(k) + 4096}"])
            imm = 1024 * (j % 4)
            items.append([I(f"buffer_load_dwordx4 v{v}, {sr(s_)}, s{so} offen" + (f" offset:{imm}" if imm else "") + " lds", tag=f"st{k}")])
        return items
    def xdma(j):
        items = [[f"s_add_u32 s{sOB}, s{sXO}, {128*j}"], [f"s_add_u32 m0, s{sXL}, {16384*XPOS[j]}"]]
        for g in range(4):
            items.append([I(f"buffer_load_dwordx4 v{D1+g}, {sr(S_X)}, s{sOB} offen" + (f" offset:{1024*g}" if g else "") + " lds", tag=f"x{j}")])
        return items
    XV = TA; XV2 = 66
    def xreads(j):
        p_ = XPOS[j]
        return [I(f"ds_read_b128 {xfrag(2*j+h, n)}, v{(XV if p_ < 3 else XV2)+h} offset:{16384*(p_ % 3) + 2048*n}", tag=f"xr{j}") for h in range(2) for n in range(2)]

    PLRE, PLIM, PLDT = T, T + 1, T + 2
    PFL = opt.get("pf", " sc1")
    oob = hex(OOB)
    vm = []
    if opt.get("xpf", "0") == "1":
        vm += [[f"v_and_b32 v12, 15, {L}", f"v_mul_u32_u24 v12, 1152, v12", f"v_lshrrev_b32 v13, 4, {L}", f"v_lshlrev_b32 v13, 7, v13", f"v_add_u32 v12, v12, v13",
                f"s_add_u32 s100, s{sXO}, {16*1152*par}", f"buffer_load_dword a244, v12, {sr(S_X)}, s100 offen{PFL}"]]
        vm += [[f"buffer_load_dword a245, v12, {sr(S_X)}, s100 offen offset:512{PFL}"]]
        vm += [[f"v_mov_b32 v13, {oob}", f"v_cmp_gt_u32 vcc, 16, {L}", f"v_cndmask_b32 v12, v13, v12, vcc",
                f"buffer_load_dword a246, v12, {sr(S_X)}, s100 offen offset:1024{PFL}"]]
    vm += dma_items(0)
    vm += xdma(0) + xdma(1)
    vm += [[f"v_lshlrev_b32 v{VST}, 4, {L}", f"v_min_u32 v8, 47, {L}", f"v_lshlrev_b32 v{VCH}, 3, v8", f"v_add_u32 v9, s{sC0}, v8", "v_lshlrev_b32 v9, 1, v9"]
           + srd(S_P, "s66", "s67", 1152) + [f"buffer_load_ushort v{PLRE}, v9, {sr(S_P)}, 0 offen"]]
    vm += [srd(56, "s68", "s69", 1152) + [f"buffer_load_ushort v{PLIM}, v9, s[56:59], 0 offen"]]
    vm += [srd(60, "s78", "s79", 1152) + [f"buffer_load_ushort v{PLDT}, v9, s[60:63], 0 offen"]]
    vm += [srd(S_P, "s90", "s91", 1152) + [f"s_add_u32 m0, s{sW3}, {PRIV}", "s_nop 0", I(f"buffer_load_dwordx4 v{VST}, {sr(S_P)}, 0 offen lds", tag="gw")]]
    vm += [[I(f"buffer_load_dwordx4 v{VST}, {sr(S_P)}, 0 offen offset:1024 lds", tag="gw")]]
    vm1 = vm; vm = []
    vm += xdma(2) + xdma(3) + dma_items(1)
    if opt.get('x45', '1') == '1': vm += xdma(4) + xdma(5)
    vm2 = vm; vm = []
    PV = 12
    vm += [[f"s_cmp_lt_u32 s{sW}, 2", f"s_cselect_b32 s{S_W1}, s84, s86", f"s_cselect_b32 s{S_W1+1}, s85, s87", f"s_mov_b32 s{S_W1+2}, 5308416", f"s_mov_b32 s{S_W1+3}, 0x20000"]]
    if opt.get("nocpf") is None:
        vm += [[f"s_getpc_b64 s[100:101]", I(f"L_pc{par}:"),
                f"s_lshl_b32 s{sT0}, s{sTILE}, 2", f"s_add_u32 s{sT0}, s{sT0}, s{sW}", f"s_mul_i32 s{sT0}, s{sT0}, 1152",
                f"v_lshlrev_b32 v12, 7, {L}", f"v_add_u32 v12, s{sT0}, v12", f"v_min_u32 v12, CODE_SPAN{par}, v12", f"v_cmp_gt_u32 vcc, 9, {L}",
                "s_and_saveexec_b64 s[62:63], vcc", f"global_load_dword a247, v12, s[100:101]", "s_mov_b64 exec, s[62:63]"]]
    fullcol = 64 * par; halfcol = 512 if par == 0 else 0
    vm += [[f"s_lshl_b32 s{sT4}, s{sTILE}, 1", f"s_add_u32 s{sT4}, s{sT4}, s{sT3}"]]
    if opt.get("nopf") is None and opt.get("pfb", "1") == "1":
        vm += [[
                f"s_mul_i32 s100, s{sT4}, {14*128}", f"s_mul_i32 s{sT0}, s{sC0}, 1152", f"s_add_u32 s100, s100, s{sT0}",
                f"v_lshlrev_b32 v{PV}, 7, {L}", f"v_mov_b32 v{PV+1}, {oob}", f"v_cmp_gt_u32 vcc, 14, {L}", f"v_cndmask_b32 v{PV}, v{PV+1}, v{PV}, vcc",
                f"buffer_load_dword a248, v{PV}, {sr(S_B)}, s100 offen{PFL}"]]
    if opt.get("nopf") is None and opt.get("pfw", "1") == "1":
        vm += [[f"v_mul_u32_u24 v{PV}, 57, {L}", f"v_lshrrev_b32 v{PV}, 10, v{PV}", f"v_mul_u32_u24 v{PV+1}, 18, v{PV}", f"v_sub_u32 v{PV+1}, {L}, v{PV+1}",
                f"v_mul_u32_u24 v{PV+1}, 9216, v{PV+1}", f"v_mul_i32_i24 v{PV}, {fullcol - halfcol}, v{PV}", f"v_add_u32 v{PV}, {halfcol}, v{PV}",
                f"v_add_u32 v{PV}, v{PV}, v{PV+1}",
                f"v_mov_b32 v{PV+1}, {oob}", f"v_cmp_gt_u32 vcc, 36, {L}", f"v_cndmask_b32 v{PV}, v{PV+1}, v{PV}, vcc",
                f"s_mul_i32 s100, s{sT4}, {18*9216}", f"s_mul_i32 s{sT0}, s{sSLICE}, 576", f"s_add_u32 s100, s100, s{sT0}",
                f"buffer_load_dword a251, v{PV}, {sr(S_W1)}, s100 offen{PFL}"]]
    if opt.get("pfall"):
        which = opt["pfall"]
        Q = PV
        if "a" in which:
            vm += [[f"v_mul_u32_u24 v{Q}, 57, {L}", f"v_lshrrev_b32 v{Q}, 10, v{Q}", f"v_mul_u32_u24 v{Q+1}, 18, v{Q}", f"v_sub_u32 v{Q+1}, {L}, v{Q+1}",
                    f"v_mul_u32_u24 v{Q+1}, 9216, v{Q+1}", f"v_lshlrev_b32 v{Q}, 7, v{Q}", f"v_add_u32 v{Q}, {fullcol + 128}, v{Q}", f"v_add_u32 v{Q+1}, v{Q+1}, v{Q}",
                    f"v_mov_b32 v{Q}, {oob}", f"v_cmp_gt_u32 vcc, 54, {L}", f"v_cndmask_b32 v{Q+1}, v{Q}, v{Q+1}, vcc",
                    f"s_mul_i32 s100, s{sT4}, {18*9216}", f"s_mul_i32 s{sT0}, s{sSLICE}, 576", f"s_add_u32 s100, s100, s{sT0}",
                    f"buffer_load_dword a252, v{Q+1}, {sr(S_W1)}, s100 offen{PFL}"]]
        if "d" in which:
            vm += [srd(56, "s88", "s89", 5308416) + [f"v_lshlrev_b32 v{Q}, 7, {L}", f"v_mov_b32 v{Q+1}, {oob}", f"v_cmp_gt_u32 vcc, 41, {L}", f"v_cndmask_b32 v{Q}, v{Q+1}, v{Q}, vcc",
                    f"s_lshl_b32 s100, s{sTILE}, 2", f"s_add_u32 s100, s100, s{sW}", f"s_mul_i32 s100, s100, {41*128}", f"s_mul_i32 s{sT0}, s{sSLICE}, {288*1152}",
                    f"s_add_u32 s100, s100, s{sT0}", f"buffer_load_dword a246, v{Q}, s[56:59], s100 offen{PFL}"]]
        if "c" in which:
            vm += [[f"s_cmp_lt_u32 s{sW}, 2", f"s_cselect_b32 s56, s74, s76", f"s_cselect_b32 s57, s75, s77", "s_mov_b32 s58, 663552", "s_mov_b32 s59, 0x20000",
                    f"v_lshrrev_b32 v{Q}, 1, {L}", f"v_mul_u32_u24 v{Q}, 1152, v{Q}", f"v_and_b32 v{Q+1}, 1, {L}", f"v_mul_u32_u24 v{Q+1}, 92, v{Q+1}",
                    f"v_add_u32 v{Q}, v{Q}, v{Q+1}", f"v_mov_b32 v{Q+1}, {oob}", f"v_cmp_gt_u32 vcc, 36, {L}", f"v_cndmask_b32 v{Q}, v{Q+1}, v{Q}, vcc",
                    f"s_mul_i32 s100, s{sT4}, {18*1152}", f"s_lshl_b32 s{sT0}, s{sC0}, 1", f"s_add_u32 s100, s100, s{sT0}",
                    f"buffer_load_dword a245, v{Q}, s[56:59], s100 offen{PFL}"]]
    fill = []
    F = lambda *x: fill.extend(list(x))
    F(*base_R2(14))
    F(f"v_add_u32 v{XV}, s{sXL}, v{RB[0]}", f"v_add_u32 v{XV+1}, s{sXL}, v{RB[1]}", f"v_add_u32 v{XV2}, 49152, v{XV}", f"v_add_u32 v{XV2+1}, 49152, v{XV+1}")
    F(f"v_lshrrev_b32 v3, 4, {L}", f"v_lshlrev_b32 v{GWB}, 4, v3", f"v_add_u32 v{GWB}, s{sW3}, v{GWB}", f"v_add_u32 v{GWB}, {PRIV}, v{GWB}")
    F(*voff_W1half(D2, 14))
    F(*base_T64(P1, 14))
    F(f"s_mul_i32 s{sT0}, s{sSLICE}, 576", f"s_mul_i32 s{sT1}, s{sT3}, {48*9216}", f"s_add_u32 s{sW1F}, s{sT0}, s{sT1}", f"s_add_u32 s{sW1F}, s{sW1F}, {fullcol}",
      f"s_mul_i32 s{sT1}, s{sT3}, {96*9216}", f"s_add_u32 s{sW1H}, s{sT0}, s{sT1}", f"s_add_u32 s{sW1H}, s{sW1H}, {halfcol}")
    F([f"s_cmp_lt_u32 s{sW}, 2", f"s_cselect_b32 s{S_C}, s74, s76", f"s_cselect_b32 s{S_C+1}, s75, s77"], f"s_mov_b32 s{S_C+2}, 663552", f"s_mov_b32 s{S_C+3}, 0x20000")
    F(*srd(S_WD, "s88", "s89", 5308416))
    F(*srd(S_WS, "s96", "s97", WS_END + (1 << 19) * bool(ts)))
    F(f"s_mul_i32 s{sT0}, s{sSLICE}, 6144", f"s_add_u32 s{sT0}, s{sT0}, {WS_S}", [f"s_add_u32 s{S_S}, s96, s{sT0}", f"s_addc_u32 s{S_S+1}, s97, 0"],
      f"s_mov_b32 s{S_S+2}, 6144", f"s_mov_b32 s{S_S+3}, 0x20000")
    F(*srd(S_DBG, "s94", "s95", 256))
    nfill_early = len(fill)
    late = []
    G = lambda *x: late.extend(list(x))
    G(f"s_lshr_b32 s{sT0}, s{sSLICE}, 1", f"s_mul_i32 s{sT0}, s{sT0}, {576*1152}",
      f"s_mul_i32 s{sT1}, s{sT3}, {48*1152}", f"s_lshr_b32 s{sT2}, s{sW}, 1", f"s_lshl_b32 s{sT2}, s{sT2}, 7",
      f"s_add_u32 s{sWD2}, s{sT0}, s{sT1}", f"s_add_u32 s{sWD2}, s{sWD2}, s{sT2}",
      f"s_add_u32 s{sT0}, s{sT0}, {288*1152*par}", f"s_mul_i32 s{sT1}, s{sW}, {48*1152}", f"s_add_u32 s{sWD1}, s{sT0}, s{sT1}",
      f"s_mul_i32 s{sT1}, s{sW}, {24*1152}", f"s_add_u32 s{sWD1B}, s{sT0}, s{sT1}", f"s_add_u32 s{sWD1B}, s{sWD1B}, {192*1152}")
    G(f"s_add_u32 s{sC0P}, s{sC0}, {32 if par == 0 else -32 & 0xffffffff}")
    G(f"s_mul_i32 s{sT1}, s{sT3}, {64*1152}", f"s_lshl_b32 s{sT2}, s{sC0}, 1", f"s_add_u32 s{sC2}, s{sT1}, s{sT2}",
      f"s_lshl_b32 s{sT0}, s{sC0P}, 1", f"s_add_u32 s{sC2P}, s{sT1}, s{sT0}",
      f"s_mul_i32 s{sT1}, s{sT3}, {32*1152}", f"s_add_u32 s{sC1}, s{sT1}, s{sT2}")
    G(f"s_lshr_b32 s{sP8}, s{sSLICE}, 1", f"s_lshl_b32 s{sP8}, s{sP8}, 4", f"s_add_u32 s{sP8}, s{sP8}, s{sTILE}", f"s_lshl_b32 s{sP8}, s{sP8}, 2",
      f"s_add_u32 s{sP8}, s{sP8}, s{sW}", f"s_lshl_b32 s{sP8}, s{sP8}, 15", f"s_add_u32 s{sP8}, s{sP8}, {WS_P8 + 16384*par}")
    G(f"s_lshl_b32 s{sP16}, s{sSLICE}, 4", f"s_add_u32 s{sP16}, s{sP16}, s{sTILE}", f"s_lshl_b32 s{sP16}, s{sP16}, 2", f"s_add_u32 s{sP16}, s{sP16}, s{sW}",
      f"s_lshl_b32 s{sP16}, s{sP16}, 12", f"s_add_u32 s{sP16}, s{sP16}, {WS_P16}")
    G(f"s_lshl_b32 s{sHO}, s{sTILE}, 4", f"s_add_u32 s{sHP}, s{sHO}, s{sSLICE}", f"s_lshl_b32 s{sHP}, s{sHP}, 2", f"s_add_u32 s{sHP}, s{sHP}, s{sW}",
      f"s_mul_i32 s{sHO}, s{sHP}, {24*1024}", f"s_add_u32 s{sHO}, s{sHO}, {WS_H}",
      f"s_add_u32 s{sHP}, s{sHO}, {(4*24*1024 if par == 0 else -4*24*1024) & 0xffffffff}")
    G(f"s_bfm_b64 s[{sMASK}:{sMASK+1}], s{sTILE}, 0", f"s_not_b64 s[{sMASK}:{sMASK+1}], s[{sMASK}:{sMASK+1}]")
    for k, sm in ((1, sM1), (2, sM2), (3, sM3)):
        G([f"s_cmp_ge_u32 s{sW}, {k}", f"s_cselect_b32 s{sm}, 1.0, 0"])
    if opt.get("nopf") is None:
        Q = TS
        G(f"v_mul_u32_u24 v{Q}, 57, {L}", f"v_lshrrev_b32 v{Q}, 10, v{Q}", f"v_mul_u32_u24 v{Q+1}, 18, v{Q}", f"v_sub_u32 v{Q+1}, {L}, v{Q+1}",
          f"v_mul_u32_u24 v{Q+1}, 9216, v{Q+1}", f"v_lshlrev_b32 v{Q}, 7, v{Q}", f"v_add_u32 v{Q}, {fullcol + 128}, v{Q}", f"v_add_u32 v{Q+1}, v{Q+1}, v{Q}",
          f"v_mov_b32 v{Q+2}, {oob}", f"v_cmp_gt_u32 vcc, 54, {L}", f"v_cndmask_b32 v{Q+1}, v{Q+2}, v{Q+1}, vcc", f"v_accvgpr_write_b32 a253, v{Q+1}")
        G(f"v_lshlrev_b32 v{Q}, 7, {L}", f"v_cmp_gt_u32 vcc, 41, {L}", f"v_cndmask_b32 v{Q}, v{Q+2}, v{Q}, vcc", f"v_accvgpr_write_b32 a254, v{Q}")
        G(f"v_lshrrev_b32 v{Q}, 1, {L}", f"v_mul_u32_u24 v{Q}, 1152, v{Q}", f"v_and_b32 v{Q+1}, 1, {L}", f"v_mul_u32_u24 v{Q+1}, 92, v{Q+1}",
          f"v_add_u32 v{Q}, v{Q}, v{Q+1}", f"v_cmp_gt_u32 vcc, 36, {L}", f"v_cndmask_b32 v{Q}, v{Q+2}, v{Q}, vcc", f"v_accvgpr_write_b32 a255, v{Q}")
    LRE, LIM, DT, E1, R1, M_, A_ = T + 3, T + 4, T + 5, T + 6, T + 7, T + 20, T + 21
    TB = T + 8; CH = T + 22
    G(f"v_lshlrev_b32 v{LRE}, 16, v{PLRE}", f"v_lshlrev_b32 v{LIM}, 16, v{PLIM}", f"v_lshlrev_b32 v{DT}, 16, v{PLDT}")
    G(f"v_mul_f32 v{DT}, {hex(LOG2E)}, v{DT}", f"v_exp_f32 v{DT}, v{DT}", f"v_lshrrev_b32 v{CH}, 3, v{VCH}",
      f"v_cvt_pk_bf16_f32 v{DT}, v{DT}, v{DT}", f"v_lshlrev_b32 v{DT}, 16, v{DT}")
    G(f"v_mul_f32 v{E1}, v{DT}, v{LRE}", f"v_mul_f32 v{R1}, v{DT}, v{LIM}", f"v_mul_f32 v{E1}, {hex(LOG2E)}, v{E1}", f"v_mul_f32 v{R1}, {hex(INV2PI)}, v{R1}")
    def cpow(dre, dim, nsrc):
        return [f"v_mul_f32 v{M_}, {nsrc}, v{E1}", f"v_mul_f32 v{A_}, {nsrc}, v{R1}", f"v_exp_f32 v{M_}, v{M_}", f"v_fract_f32 v{A_}, v{A_}",
                f"v_cos_f32 v{dre}, v{A_}", f"v_sin_f32 v{dim}, v{A_}", f"v_mul_f32 v{dre}, v{M_}, v{dre}", f"v_mul_f32 v{dim}, v{M_}, v{dim}"]
    G(*cpow(TB, TB + 1, "1.0")); G(*cpow(TB + 2, TB + 3, "2.0"))
    G(f"s_mov_b32 s{sT0}, 0x40400000"); G(*cpow(TB + 4, TB + 5, f"s{sT0}"))
    G(*cpow(TB + 6, TB + 7, "4.0"))
    G(f"v_mov_b32 v{A4}, v{TB+6}", f"v_mov_b32 v{A4+1}, v{TB+7}")
    G(f"s_mov_b32 s{sT0}, 0x42000000"); G(*cpow(A32, A32 + 1, f"s{sT0}"))
    G(f"s_mov_b32 s{sT0}, 0x43000000"); G(*cpow(A128, A128 + 1, f"s{sT0}"))
    G(f"s_lshl_b32 s{sT0}, s{sW}, 5", f"v_cvt_f32_u32 v{T+23}, s{sT0}"); G(*cpow(PW, PW + 1, f"v{T+23}"))
    KC = T
    G(f"v_add_f32 v{M_}, -1.0, v{TB}", f"v_mul_f32 v{A_}, v{LRE}, v{LRE}", f"v_fmac_f32 v{A_}, v{LIM}, v{LIM}", f"v_rcp_f32 v{A_}, v{A_}",
      f"v_mul_f32 v{KC}, v{M_}, v{LRE}", f"v_fmac_f32 v{KC}, v{TB+1}, v{LIM}",
      f"v_mul_f32 v{KC+1}, v{TB+1}, v{LRE}", f"v_fma_f32 v{KC+1}, -v{M_}, v{LIM}, v{KC+1}",
      f"v_mul_f32 v{KC}, v{KC}, v{A_}", f"v_mul_f32 v{KC+1}, v{KC+1}, v{A_}")
    G(f"v_cmp_gt_u32 vcc, {32 + 8*par}, v{CH}", f"v_mul_u32_u24 v{CH}, 48, v{CH}", f"v_add_u32 v{CH}, {TAB}, v{CH}",
      f"v_cndmask_b32 v{KC}, 0, v{KC}, vcc", f"v_cndmask_b32 v{KC+1}, 0, v{KC+1}, vcc")
    G(f"v_mov_b32 v{KC+2}, 0", f"v_mov_b32 v{KC+3}, 0")
    G(f"ds_write_b128 v{CH}, {vr(TB)}", f"ds_write_b128 v{CH}, {vr(TB+4)} offset:16", f"ds_write_b128 v{CH}, {vr(KC)} offset:32")
    per = int(opt.get("per", 12))
    if opt.get("lateinpro", "0") == "1":
        A(interleave(vm1, fill, per)); A(interleave(vm2, late, int(opt.get("per2", 14)))); late = []
        A(interleave(vm, [], 0))
    else:
        if opt.get("pffirst", "0") == "1":
            A(interleave(vm, [], 0)); A(interleave(vm1 + vm2, fill, per))
        elif opt.get("pffirst", "0") == "2":
            n0 = len(dma_items(0)) + 2 * len(xdma(0))
            A(interleave(vm1[:n0], fill[:57], per)); A(interleave(vm, [], 0)); A(interleave(vm1[n0:] + vm2, fill[57:], per))
        else:
            A(interleave(vm1 + vm2 + vm, fill, per))

    units, ustage, u0 = [], [], []
    for k, st in enumerate(stages):
        u0.append(len(units))
        for un in st.units: units.append(un); ustage.append(k)
    NU = len(units); u0.append(NU)

    def read_ins(u):
        un = units[u]; k = ustage[u]
        o = []; d = afrag(u)
        for (op, nreg, (kind, idx), off) in un["reads"]:
            s_ = setof(k)
            if kind == "abs": b, o2 = idx, off
            else:
                b = {"R": lambda: RB[2*s_ + idx], "T64": lambda: T64B[2*s_ + idx], "T128": lambda: T128B[4*s_ + idx], "C": lambda: CB[s_]}[kind]()
                o2 = off + slot_rel(k)
            assert o2 < 65536
            o.append(I(f"{op} {ar(d, nreg)}, v{b}" + (f" offset:{o2}" if o2 else ""))); d += nreg
        return o

    DEPTH = int(opt.get('depth', 6)); WE = int(opt.get('we', 4)); WOFF = int(opt.get('woff', 1)); RR = int(opt.get('rr', 0))
    def stamp(i):
        op = "s_memrealtime" if ts == "5" and i not in (59,) else "s_memtime"
        return [I(f"{op} s[100:101]"), I("s_waitcnt lgkmcnt(0)"), I(f"v_writelane_b32 v255, s100, {i}")]
    kH = 5; kF = lambda c: 8 + 6 * c; kPA = 32; kPM = 40
    kWB = kF(0) + 1
    kHA = kF(3) + int(opt.get('kha', 2))
    kHB = int(opt.get('khb', 38))
    kHC = int(opt.get('khc', 43))
    FUSE = opt.get('fuse', '1') == '1'
    kFM = int(opt.get("kfm", 47))
    BTAG = {kFM: ('pstM',) if FUSE else (), 1: ('xr2',), 4: ('xr8', 'xr7', 'xr6'), kWB: ('wtot',), kHA: ('hstA',), kHB: ('hstB',), kHC: ('hstC',)}
    if int(opt.get('kfa', 0)): BTAG[int(opt['kfa'])] = BTAG.get(int(opt['kfa']), ()) + ('pstA',)
    slots = []; bar_mf = {}
    fs = [int(x) for x in opt.get("fs", "").split(",") if x]
    for u in range(NU):
        un = units[u]; fr = ar(afrag(u))
        rd = read_ins(u + DEPTH) if u + DEPTH < NU else []
        pre = []
        kn = ustage[u + DEPTH] if u + DEPTH < NU else None
        if kn is not None and u + DEPTH == u0[kn]:
            if opt.get("splitbar", "1") == "1" and slots:
                slots[-1].pre = slots[-1].pre + [WaitTag(f"st{kn}", *BTAG.get(kn, ()))]
                pre += [I("s_barrier")]
            else:
                pre += [WaitTag(f"st{kn}", *BTAG.get(kn, ())), I("s_barrier")]
            if ts == "1" or (ts == "4" and kn in (5, 32)) or (ts == "5" and kn in (1, 5, 8, 14, 20, 26, 32, 36, 40, 43, 47)) or (ts == "2" and kn in (1, 2, 3, 4, 5, 8, 14, 20, 26, 32, 35, 40, 43, 47)): pre += stamp(kn + 1)
            bar_mf[kn] = 2 * u
        if ts == "3":
            k_ = ustage[u]
            if k_ in fs and (u - u0[k_]) % 3 == 0 and (u - u0[k_]) // 3 < 8:
                j_ = (u - u0[k_]) // 3
                pre += [I(f"s_memtime s[{78+2*j_}:{79+2*j_}]")]
            if k_ - 1 in fs and u == u0[k_] + 2:
                base_ = 8 * fs.index(k_ - 1) + 1
                pre += [I("s_waitcnt lgkmcnt(0)")] + [I(f"v_writelane_b32 v255, s{78+2*j_}, {base_ + j_}") for j_ in range(8)]
        if (u + WOFF) % WE == 0 or u == 0:
            rg = []
            for x in range(u, min(u + (WE if (u + WOFF) % WE == 0 else WE - WOFF), NU)): rg += regs_of(ar(afrag(x)))
            pre += [WaitRegs(rg)]
        for n in range(2):
            d, a, b, c = un["mf"][n]
            txt = mf(d, a, fr, c) if un["swap"] else mf(d, fr, b, c)
            if RR and len(rd) == 2 and u % RR == RR - 2: post = rd if n == 0 else []
            else: post = rd[n:n + 1] if n < len(rd) else []
            slots.append(Slot(txt, pre if n == 0 else [], post))
    mend = lambda k: 2 * u0[k + 1] - 1
    mbeg = lambda k: 2 * u0[k]
    if ts: A(stamp(60))
    A(WaitTag("x0")); A(xreads(0)); A(WaitTag("x1")); A(xreads(1))
    A(WaitTag("st0", "gw"), "s_barrier")
    if ts: A(stamp(1))
    for u in range(DEPTH): A(read_ins(u))

    mXB = mend(4)
    XS = 2 * len(stages[0].units)
    sD = Stream("dma", 0)
    fr_of = lambda j: [r for h in range(2) for n in range(2) for r in regs_of(xfrag(2*j+h, n))]
    def xd(j, e, dl, after=None):
        if after is not None: sD.add([WaitRegs(fr_of(after))], e, dl)
        for it in xdma(j): sD.add(it, e, dl)
    def xr(j, e, dl):
        sD.add([WaitTag(f"x{j}")], e, dl)
        for r_ in xreads(j): sD.add(r_, e, dl)
    if opt.get('x45', '1') != '1':
        xd(4, 0, 8); xd(5, 0, 16)
    xr(2, 0, 14); xr(3, 0, 20)
    for it in dma_items(2): sD.add(it, 0, 34)
    xd(6, 10, bar_mf[1] + 2, after=3)
    for it in dma_items(3): sD.add(it, bar_mf[1], bar_mf[1] + 16)
    xr(4, bar_mf[1], bar_mf[1] + 22)
    xd(7, bar_mf[1] + 8, bar_mf[1] + 34, after=4)
    xr(5, bar_mf[1] + 12, bar_mf[1] + 38)
    xd(8, bar_mf[1] + 24, bar_mf[2] + 4, after=5)
    for it in dma_items(4): sD.add(it, bar_mf[2], bar_mf[2] + 20)
    xr(6, bar_mf[2], bar_mf[3] - 8); xr(7, bar_mf[2], bar_mf[3] - 2)
    for it in dma_items(5): sD.add(it, bar_mf[3], bar_mf[3] + 16)
    xr(8, bar_mf[3] + 4, bar_mf[4] - 2)
    xdone = bar_mf[4]
    prev_user = {}; dma_e = {}; dma_d = {}
    e_prev = bar_mf[3] + 16; d_prev = e_prev
    for k in range(NST):
        sl_ = slot_of(k)
        if k >= 6:
            e_ = bar_mf[prev_user[sl_] + 2] if sl_ in prev_user else bar_mf[4]
            if k in (7, 8): e_ = max(e_, bar_mf[4])
            e_ = max(e_, e_prev)
            lead = int(opt.get("lead", 75))
            if k < int(opt.get("krelax", 16)): d_ = max(min(bar_mf[k] - lead, bar_mf[k] - 2), min(d_prev + 14, bar_mf[k] - 2), e_ + 4)
            else: d_ = min(max(e_ + 44, d_prev + 14), bar_mf[k] - 2)
            d_ = min(d_, bar_mf[k] - 2)
            for it in dma_items(k): sD.add(it, e_, d_)
            dma_e[k], dma_d[k] = e_, d_
            e_prev, d_prev = e_, d_
        prev_user[sl_] = k
    clr = [[f"s_lshl_b32 s{sT0}, s{sSLICE}, 4", f"s_add_u32 s{sT0}, s{sT0}, s{sTILE}", f"s_lshl_b32 s{sT1}, s{sT0}, 7", f"s_add_u32 s{sT1}, s{sT1}, {WS_F}",
            f"s_cmp_eq_u32 s{sW}, 0", f"s_cselect_b32 s{sT2}, 1, 0"],
           f"v_cmp_gt_u32 vcc, s{sT2}, {L}", f"v_mov_b32 v{TS}, {oob}", f"v_mov_b32 v{TS+1}, s{sT1}", f"v_mov_b32 v{TS+2}, s{sT0}", f"v_mov_b32 v{TS+3}, 0",
           f"v_cndmask_b32 v{TS+1}, v{TS}, v{TS+1}, vcc", f"v_cndmask_b32 v{GWB+0 if False else TA+2}, v{TS}, v{TS+2}, vcc",
           I(f"buffer_store_dword v{TS+3}, v{TS+1}, {sr(S_WS)}, 0 offen sc1", tag="clr")]
    sP = Stream("setup", 1)
    for x in clr: sP.add(x, 0, 60)
    for x in late: sP.add(x, 0, mXB)
    sCl = Stream("clr", 1)
    sCl.add([I(f"v_mov_b32 v64, 1"), WaitTag("clr"), I(f"buffer_store_byte v64, v{TA+2}, {sr(S_DBG)}, 0 offen sc1")], bar_mf[2], bar_mf[3] + 10)
    sA = Stream("addr", 1)
    sA.extend(voff_W1full(D1, TA + 2), bar_mf[3] + 12, dma_e[kF(0)])
    common = base_list_T128(T128B, 8, TA, None)
    sA.extend(common, xdone + 1, bar_mf[kF(0)])
    for idx in range(6): sA.extend(t128_regs(idx, TA), xdone + 1, bar_mf[kF(0)])
    for idx in range(6, 12): sA.extend(t128_regs(idx, TA), mXB + 1, bar_mf[kF(0)])
    sA.extend(voff_Wd(D2, TA), max(dma_d[7], mXB + 2), dma_e[kPA])
    sA.extend([x.replace(f'v{TA+2}', f'v{CB[2]}') for x in base_C(CB[0], TA)], bar_mf[kF(0)] + 4, bar_mf[40])
    sA.extend(voff_C(D1, TA), dma_d[kPA - 1], dma_e[40])
    last_use = {}; next_use = {}
    for k in range(kF(0), kPA): last_use[setof(k)] = k
    for k in range(NST - 1, kPA - 1, -1):
        if stages[k].fmt.startswith("Wd"): next_use[setof(k)] = k
    sB = Stream("bases", 1)
    order = sorted(range(3), key=lambda s_: last_use[s_])
    sB.add(f"v_lshrrev_b32 v{TA+2}, 4, {L}", bar_mf[last_use[order[0]] + 1], bar_mf[next_use[order[0]]] - 20)
    sB.add(f"v_lshlrev_b32 v{TA+2}, 9, v{TA+2}", bar_mf[last_use[order[0]] + 1], bar_mf[next_use[order[0]]] - 20)
    for s_ in order:
        for mt in range(4):
            r_ = T128B[4 * s_ + mt]
            sB.add(f"v_sub_u32 v{r_}, v{r_}, v{TA+2}", bar_mf[last_use[s_] + 1], bar_mf[next_use[s_]])

    sE = Stream("epi", 2)
    HST = opt.get("hst", " sc1")
    def hstore(reg, K, n, tag):
        off = (K * 2 + n) * 1024
        return [I(f"s_add_u32 s{sHT}, s{sHO}, {off & ~4095}"),
                I(f"buffer_store_dwordx4 {vr(reg)}, v{VST}, {sr(S_WS)}, s{sHT} offen" + (f" offset:{off & 4095}" if off & 4095 else "") + HST, tag=tag)]
    def ffn_epi(buf, Ks, earliest, deadline, tag):
        for kk, K in enumerate(Ks):
            for n in range(2):
                o = []
                gs = [buf + (2 * kk + h) * 8 + 4 * n for h in range(2)]; us = [buf + (4 + 2 * kk + h) * 8 + 4 * n for h in range(2)]
                for h in range(2):
                    g, u_ = gs[h], us[h]
                    if opt.get("norho"):
                        for r in range(4): o += [f"v_max_f32 v{g+r}, 0, v{g+r}"]
                    else:
                        for r in range(4): o += [f"v_max_f32 v{g+r}, 0, v{g+r}", f"v_mul_f32 v{u_+r}, v{SF+n}, v{u_+r}"]
                    for r in range(4): o += [f"v_mul_f32 v{g+r}, v{g+r}, v{u_+r}"]
                d = us[0]
                o += [f"v_cvt_pk_bf16_f32 v{d}, v{gs[0]}, v{gs[0]+1}", f"v_cvt_pk_bf16_f32 v{d+1}, v{gs[0]+2}, v{gs[0]+3}",
                      f"v_cvt_pk_bf16_f32 v{d+2}, v{gs[1]}, v{gs[1]+1}", f"v_cvt_pk_bf16_f32 v{d+3}, v{gs[1]+2}, v{gs[1]+3}"]
                h_ = AH + 8 * K + 4 * n
                o += [f"v_accvgpr_write_b32 a{h_+j}, v{d+j}" for j in range(4)]
                sE.extend(o, earliest, deadline)
                sE.add(hstore(d, K, n, tag), earliest, deadline)
    ffn_epi(ACC[0], [8], mend(kH + 2) + 4, mbeg(kF(1)), "hstA")
    ffn_epi(ACC[1], [0, 1], mend(kF(0) + 5) + 4, mbeg(kF(2)), "hstA")
    ffn_epi(ACC[0], [2, 3], mend(kF(1) + 5) + 4, mbeg(kF(3)) - 60, "hstA")
    ffn_epi(ACC[1], [4, 5], mend(kF(2) + 5) + 4, mbeg(kPA), "hstB")
    ffn_epi(ACC[0], [6, 7], mend(kF(3) + 5) + 4, mbeg(35) - 4, "hstB")
    PST = opt.get("pst", " sc1")
    kAend = 48 if ORD2 == 0 else 47
    kFA = int(opt.get('kfa', 0))
    DLP = {2: bar_mf[kFM - 2] if FUSE else None, 0: (bar_mf[kFA - 1] if kFA else None), 1: None}
    for p, k1 in ((2, 42), (0, kAend), (1, 50)):
        nm = 8 if p < 2 else 4
        last = mend(k1)
        sreg = sP8 if p < 2 else sP16
        for m in range(nm):
            if p < 2:
                a = ACC[(p + 1) & 1] + m * 8
                o = []
            else:
                a = T + 8 * (m & 1)
                o = [f"v_accvgpr_read_b32 v{a+j}, a{PMACC[m]+j}" for j in range(8)]
            o += [f"v_cvt_pk_bf16_f32 v{a}, v{a}, v{a+1}", f"v_cvt_pk_bf16_f32 v{a+1}, v{a+2}, v{a+3}",
                  f"v_cvt_pk_bf16_f32 v{a+2}, v{a+4}, v{a+5}", f"v_cvt_pk_bf16_f32 v{a+3}, v{a+6}, v{a+7}"]
            sE.extend(o, last + 4, DLP[p])
            imm = 1024 * (m % 4)
            sE.add(f"buffer_store_dwordx4 {vr(a)}, v{VST}, {sr(S_WS)}, s{sreg} offen" + (f" offset:{imm}" if imm else "") + PST, last + 4, DLP[p])
            sE.q[-1][0][0].tag = "pst" + "ABM"[p]
            if p == 1:
                for it in list(sE.q)[-(len(o) + 1):]:
                    for x in it[0]: x.pbepi = True
            if m % 4 == 3:
                sE.add(f"s_add_u32 s{sreg}, s{sreg}, 4096", last + 4, DLP[p])
                if p == 1: sE.q[-1][0][0].pbepi = True

    sS = Stream("ssm", 3)
    e = [mXB + 4]
    add = lambda x, deadline=None: sS.add(x, e[0], deadline)
    def adds(lst, **kw):
        for x in lst: add(x, **kw)
    dlG = mend(kH + 2)
    G0, G1, Z = T, T + 1, T + 2
    adds([f"v_lshrrev_b32 v{G0}, 4, {L}", f"v_lshlrev_b32 v{G0}, 4, v{G0}", f"v_add_u32 v{G0}, s{sW3}, v{G0}", f"v_add_u32 v{G0}, {PRIV}, v{G0}"])
    for n in range(2): add(f"ds_write_b128 v{G0}, {vr(LG+4*n)} offset:{64*n}")
    adds([f"v_and_b32 v{G1}, 31, {L}", f"v_lshlrev_b32 v{G1}, 2, v{G1}", f"v_add_u32 v{G1}, s{sW3}, v{G1}", f"v_add_u32 v{G1}, {PRIV}, v{G1}",
          f"ds_read_b32 v{Z}, v{G1}"])
    TA1 = T + 8
    adds([f"v_and_b32 v{VT}, 15, {L}", f"v_mul_u32_u24 v{VT}, 48, v{VT}", f"v_add_u32 v{VT}, {TAB}, v{VT}"])
    for b in range(nS): add(f"ds_read_b64 {vr(TA1+2*b, 2)}, v{VT} offset:{b*768}")
    adds([f"v_cvt_pk_bf16_f32 v{Z}, v{Z}, v{Z}", f"v_lshlrev_b32 v{Z}, 16, v{Z}", f"v_mul_f32 v{Z}, {hex(LOG2E ^ 0x80000000)}, v{Z}", f"v_exp_f32 v{Z}, v{Z}",
          f"v_lshrrev_b32 v{VE}, 4, {L}",
          f"v_add_f32 v{Z}, 1.0, v{Z}", f"v_rcp_f32 v{Z}, v{Z}", f"v_mul_u32_u24 v{VE}, 384, v{VE}",
          f"v_cvt_pk_bf16_f32 v{Z}, v{Z}, v{Z}", f"v_lshlrev_b32 v{Z}, 16, v{Z}",
          f"v_sub_f32 v{T+3}, 1.0, v{Z}", f"v_cvt_pk_bf16_f32 v{T+3}, v{T+3}, v{T+3}", f"v_lshlrev_b32 v{T+3}, 16, v{T+3}", f"v_add_f32 v{T+4}, v{Z}, v{Z}",
          f"ds_write_b32 v{G1}, v{T+3} offset:128", f"ds_write_b32 v{G1}, v{T+4} offset:256", f"ds_write_b32 v{G1}, v{Z} offset:384"])
    if par == 0:
        add([f"s_lshl_b32 s{sT0}, s{sTILE}, 7", f"s_lshl_b32 s{sT1}, s{sW}, 5", f"s_add_u32 s{sT0}, s{sT0}, s{sT1}", f"s_lshl_b32 s{sT0}, s{sT0}, 2",
             f"s_add_u32 s{sT0}, s{sT0}, {WS_G}", f"s_cmp_eq_u32 s{sSLICE}, 0", f"s_cselect_b32 s{sT1}, 32, 0"])
        adds([f"v_lshlrev_b32 v{T+5}, 2, {L}", f"v_cmp_gt_u32 vcc, s{sT1}, {L}", f"v_mov_b32 v{T+6}, {oob}",
              f"v_cndmask_b32 v{T+5}, v{T+6}, v{T+5}, vcc", I(f"buffer_store_dword v{Z}, v{T+5}, {sr(S_WS)}, s{sT0} offen sc1", tag="sst")])
    adds([f"v_and_b32 v{T+7}, 15, {L}", f"v_lshlrev_b32 v{T+7}, 2, v{T+7}", f"v_add_u32 v{T+7}, s{sW3}, v{T+7}", f"v_add_u32 v{T+7}, {PRIV}, v{T+7}"])
    for n in range(2): add(f"ds_read_b32 v{SF+n}, v{T+7} offset:{128+64*n}")
    for n in range(2): add(f"ds_read_b128 {vr(LG+4*n)}, v{G0} offset:{256+64*n}")
    for n in range(2): add(f"ds_read_b32 v{T+5+n}, v{T+7} offset:{384+64*n}")
    adds([f"v_and_b32 v{VE+1}, 15, {L}", f"v_lshlrev_b32 v{VE+1}, 3, v{VE+1}", f"v_add_u32 v{VE}, v{VE}, v{VE+1}", f"v_add_u32 v{VE}, s{sW3}, v{VE}",
          f"v_add_u32 v{VE}, {PRIV}, v{VE}", f"v_add_u32 v{VE+1}, 1536, v{VE}"])
    add(WaitRegs([f"v{SF}", f"v{SF+1}"] + regs_of(vr(LG, 8))), deadline=dlG)
    adds([f"v_accvgpr_write_b32 a249, v{T+5}", f"v_accvgpr_write_b32 a250, v{T+6}"])
    for r in range(1, 4):
        for b in range(nS):
            are, aim = TA1 + 2 * b, TA1 + 2 * b + 1
            for n in range(2):
                R, Im = xb(b, 0, n), xb(b, 1, n)
                adds([f"v_fmac_f32 v{R+r}, v{are}, v{R+r-1}", f"v_fmac_f32 v{Im+r}, v{are}, v{Im+r-1}"])
            for n in range(2):
                R, Im = xb(b, 0, n), xb(b, 1, n)
                adds([f"v_fma_f32 v{R+r}, -v{aim}, v{Im+r-1}, v{R+r}", f"v_fmac_f32 v{Im+r}, v{aim}, v{R+r-1}"])
    for b in range(nS):
        for n in range(2):
            add(f"ds_write2_b32 v{VE+n}, v{xb(b,0,n)+3}, v{xb(b,1,n)+3} offset0:{32*b} offset1:{32*b+1}")
    adds([f"v_add_u32 v{VP}, s{sW3}, v{VCH}", f"v_add_u32 v{VP}, {PRIV}, v{VP}"])
    for m in range(8): add(f"ds_read_b64 {vr(T+2*m, 2)}, v{VP} offset:{384*m}")
    add([f"s_mul_i32 s{sT0}, s{sW}, 384", f"s_add_u32 s{sT0}, s{sT0}, {WTOT}"]); add(f"v_add_u32 v{TS}, s{sT0}, v{VCH}")
    for m in range(1, 8): adds(cmul_acc(T + 2*m, T + 2*m + 1, A4, A4 + 1, T + 2*m - 2, T + 2*m - 1))
    add(I(f"ds_write_b64 v{TS}, {vr(T+14, 2)}", tag="wtot"), deadline=bar_mf[kWB] - 2)
    e[0] = bar_mf[kWB]
    adds([f"v_add_u32 v{TS}, {WTOT}, v{VCH}"])
    for m in range(4): add(f"ds_read_b64 {vr(T+2*m, 2)}, v{TS} offset:{384*m}")
    add([f"s_mul_i32 s{sT0}, s{sTILE}, 384", f"s_cmp_eq_u32 s{sW}, 0", f"s_cselect_b32 s{sT1}, 48, 0"])
    adds([f"v_add_u32 v{TS+1}, s{sT0}, v{VCH}", f"v_cmp_gt_u32 vcc, s{sT1}, {L}", f"v_mov_b32 v{TS+2}, {oob}"])
    for m in range(1, 4): adds(cmul_acc(T + 2*m, T + 2*m + 1, A32, A32 + 1, T + 2*m - 2, T + 2*m - 1))
    adds([f"v_cndmask_b32 v{TS+1}, v{TS+2}, v{TS+1}, vcc"])
    add(I(f"buffer_store_dwordx2 {vr(T+6, 2)}, v{TS+1}, {sr(S_S)}, 0 offen sc1", tag="sst"))
    XF, XP, XT = P1 + 3, P1 + 4, P1 + 5
    eX = bar_mf[kF(0)] + 4
    sX_ = Stream("xch", 2)
    sX_.add([f"s_lshl_b32 s{sQ+1}, s{sSLICE}, 4", f"s_add_u32 s{sQ+1}, s{sQ+1}, s{sTILE}", f"s_lshl_b32 s{sQ+1}, s{sQ+1}, 7", f"s_add_u32 s{sQ+1}, s{sQ+1}, {WS_F}",
             f"s_cmp_eq_u32 s{sW}, 0", f"s_cselect_b32 s{sQ+2}, 1, 0"], eX, bar_mf[kWB] + 8)
    for x in [f"v_mov_b32 v{XF}, s{sQ+1}", f"v_cmp_gt_u32 vcc, s{sQ+2}, {L}", f"v_mov_b32 v{XT}, {oob}", f"v_cndmask_b32 v{XF}, v{XT}, v{XF}, vcc",
              [f"s_sub_u32 s{sQ+1}, s{sQ+1}, {WS_F}", f"s_xor_b32 s{sQ+1}, s{sQ+1}, 2048", f"s_add_u32 s{sQ+1}, s{sQ+1}, {WS_F}"], f"v_mov_b32 v{XP}, s{sQ+1}"]:
        sX_.add(x, eX, bar_mf[kWB] + 8)
    add([I(f"v_mov_b32 v{TS+3}, 1"), WaitTag("sst"), I(f"buffer_store_dword v{TS+3}, v{XF}, {sr(S_WS)}, 0 offen sc1")])
    slow = []
    def poll(emit, name, areg, dreg, cond_instrs, cnt, dbg=False):
        ld = f"buffer_load_ubyte v{dreg}, v{areg}, {sr(S_DBG)}, 0 offen sc1" if dbg else f"buffer_load_dword v{dreg}, v{areg}, {sr(S_WS)}, 0 offen sc1"
        emit(ld, False)
        emit([I(x) for x in cond_instrs] + [I("s_cmp_eq_u64 vcc, -1"), I(f"s_cbranch_scc0 L_slow_{name}{par}"), I(f"L_back_{name}{par}:")], True)
        slow.extend([I(f"L_slow_{name}{par}:"), I(f"s_mov_b32 s{cnt}, 0"), I(f"L_slowl_{name}{par}:"), I("s_sleep 1"), I(ld), I("s_waitcnt vmcnt(0)")]
                    + [I(cond_instrs[0]), I("s_nop 4")] + [I(x) for x in cond_instrs[1:]]
                    + [I("s_cmp_eq_u64 vcc, -1"), I(f"s_cbranch_scc1 L_back_{name}{par}"), I(f"s_add_u32 s{cnt}, s{cnt}, 1"), I(f"s_cmp_lt_u32 s{cnt}, 0x40000"),
                       I(f"s_cbranch_scc1 L_slowl_{name}{par}"), I(f"s_branch L_back_{name}{par}")])
    kPoll = int(opt.get("kpoll", kF(1)))
    pace_from = [len(sS.q)]
    e[0] = bar_mf[kPoll]
    adds([[f"s_lshl_b32 s{sT0}, s{sSLICE}, 4", f"s_sub_u32 s{sT1}, s{sTILE}, 256"],
          f"v_add_u32 v{TS}, s{sT0}, {L}", f"v_lshlrev_b32 v{TS+2}, 4, {L}", f"v_add_u32 v{TS+2}, s{sT1}, v{TS+2}",
          f"v_cmp_gt_u32 vcc, 16, {L}", f"v_cndmask_b32 v{TS}, v{TS+2}, v{TS}, vcc",
          f"v_mov_b32 v{TS+2}, {oob}", f"v_cmp_gt_u32 vcc, 32, {L}", f"v_cndmask_b32 v{TS}, v{TS+2}, v{TS}, vcc"])
    poll(lambda x, chk: add(x), "C", TS, TS + 1, [f"v_cmp_ne_u32 vcc, 0, v{TS+1}", f"s_or_b32 vcc_hi, vcc_hi, -1"], sT2, dbg=True)
    adds([[f"s_lshl_b32 s{sT0}, s{sSLICE}, 11", f"s_add_u32 s{sT0}, s{sT0}, {WS_F}"], f"v_lshlrev_b32 v{TS}, 7, {L}", f"v_add_u32 v{TS}, s{sT0}, v{TS}",
          f"v_cmp_gt_u32 vcc, 16, {L}", f"v_mov_b32 v{TS+2}, {oob}", f"v_cndmask_b32 v{TS}, v{TS+2}, v{TS}, vcc"])
    poll(lambda x, chk: add(x), "S", TS, TS + 1, [f"v_cmp_ne_u32 vcc, 0, v{TS+1}", f"s_or_b64 vcc, vcc, s[{sMASK}:{sMASK+1}]"], sT2)
    add([f"s_mul_i32 s{sT0}, s{sTILE}, 384"]); add(f"v_add_u32 v{TS}, s{sT0}, v{VCH}")
    for idx, k in enumerate(range(15, 7, -1)):
        t_ = TS + 1 + (idx & 1)
        add(f"v_subrev_u32 v{t_}, {k*384}, v{TS}")
        add(f"buffer_load_dwordx2 {vr(T+2*idx, 2)}, v{t_}, {sr(S_S)}, 0 offen sc1")
    CC = TS + 2
    for m in range(1, 8): adds(cmul_acc(T + 2*m, T + 2*m + 1, A128, A128 + 1, T + 2*m - 2, T + 2*m - 1))
    adds([f"v_mov_b32 v{CC}, v{T+14}", f"v_mov_b32 v{CC+1}, v{T+15}"])
    for idx, k in enumerate(range(7, 0, -1)):
        add(f"v_subrev_u32 v{TS+1}, {k*384}, v{TS}")
        add(f"buffer_load_dwordx2 {vr(T+2*idx, 2)}, v{TS+1}, {sr(S_S)}, 0 offen sc1")
    adds(cmul_acc(T, T + 1, A128, A128 + 1, CC, CC + 1))
    for m in range(1, 7): adds(cmul_acc(T + 2*m, T + 2*m + 1, A128, A128 + 1, T + 2*m - 2, T + 2*m - 1))
    adds([f"v_mov_b32 v{CC}, v{T+12}", f"v_mov_b32 v{CC+1}, v{T+13}"])
    for k in (3, 2, 1):
        add([f"s_sub_u32 s{sT0}, s{sW}, {k}", f"s_max_i32 s{sT0}, s{sT0}, 0", f"s_mul_i32 s{sT0}, s{sT0}, 384", f"s_add_u32 s{sT0}, s{sT0}, {WTOT}"])
        add(f"v_add_u32 v{TS}, s{sT0}, v{VCH}")
        add(f"ds_read_b64 {vr(T+2*(3-k), 2)}, v{TS}")
    for k, sm in ((3, sM3), (2, sM2), (1, sM1)):
        j = T + 2 * (3 - k)
        adds([f"v_mul_f32 v{j}, s{sm}, v{j}", f"v_mul_f32 v{j+1}, s{sm}, v{j+1}"])
    adds(cmul_acc(T + 2, T + 3, A32, A32 + 1, T, T + 1)); adds(cmul_acc(T + 4, T + 5, A32, A32 + 1, T + 2, T + 3))
    adds(cmul_acc(T + 4, T + 5, PW, PW + 1, CC, CC + 1))
    adds([f"v_mov_b32 v{CC}, v{T+4}", f"v_mov_b32 v{CC+1}, v{T+5}"])
    for m in range(7): add(f"ds_read_b64 {vr(T+2*m, 2)}, v{VP} offset:{384*m}")
    add(f"ds_write_b64 v{VP}, {vr(CC, 2)}")
    adds(cmul_acc(T, T + 1, A4, A4 + 1, CC, CC + 1))
    add(f"ds_write_b64 v{VP}, {vr(T, 2)} offset:384")
    for m in range(1, 7):
        adds(cmul_acc(T + 2*m, T + 2*m + 1, A4, A4 + 1, T + 2*m - 2, T + 2*m - 1))
        add(f"ds_write_b64 v{VP}, {vr(T+2*m, 2)} offset:{384*(m+1)}")
    VW, VR = TS, TS + 1
    adds([f"v_and_b32 v{VW}, 15, {L}", f"v_lshlrev_b32 v{VW}, 5, v{VW}", f"v_lshrrev_b32 v{VR}, 4, {L}", f"v_lshlrev_b32 v{VR}, 3, v{VR}",
          f"v_add_u32 v{VW}, v{VW}, v{VR}", f"v_add_u32 v{VW}, s{sW3}, v{VW}", f"v_add_u32 v{VW}, {PRIV}, v{VW}",
          f"v_lshlrev_b32 v{VR}, 3, {L}", f"v_add_u32 v{VR}, s{sW3}, v{VR}", f"v_add_u32 v{VR}, {PRIV}, v{VR}"])
    dlS = bar_mf[40] - int(opt.get('dls', 10))
    for n in range(2):
        for b in range(nS): add(f"ds_read_b64 {vr(T+2*b, 2)}, v{VE+n} offset:{128*b}")
        for b in range(nS):
            TBL = T + 6
            adds([f"ds_read_b128 {vr(TBL)}, v{VT} offset:{b*768}", f"ds_read_b128 {vr(TBL+4)}, v{VT} offset:{b*768+16}", f"ds_read_b64 {vr(TBL+8, 2)}, v{VT} offset:{b*768+32}"])
            R, Im = xb(b, 0, n), xb(b, 1, n)
            cre, cim = T + 2 * b, T + 2 * b + 1
            for r in range(4): adds(cmul_acc(R + r, Im + r, TBL + 2*r, TBL + 2*r + 1, cre, cim))
            kr, ki, tt = TBL + 8, TBL + 9, TS + 2
            for r in range(4):
                t_ = tt + (r & 1)
                adds([f"v_mul_f32 v{t_}, v{kr}, v{R+r}", f"v_fma_f32 v{t_}, -v{ki}, v{Im+r}, v{t_}",
                      f"v_mul_f32 v{Im+r}, v{kr}, v{Im+r}", f"v_fmac_f32 v{Im+r}, v{ki}, v{R+r}",
                      f"v_mul_f32 v{R+r}, v{LG+4*n+r}, v{t_}", f"v_mul_f32_e64 v{Im+r}, -v{LG+4*n+r}, v{Im+r}"])
            adds([f"v_cvt_pk_bf16_f32 v{R}, v{R}, v{R+1}", f"v_cvt_pk_bf16_f32 v{R+1}, v{R+2}, v{R+3}",
                  f"v_cvt_pk_bf16_f32 v{Im}, v{Im}, v{Im+1}", f"v_cvt_pk_bf16_f32 v{Im+1}, v{Im+2}, v{Im+3}"])
            so = 1536 * n
            adds([f"ds_write_b64 v{VW}, {vr(R, 2)} offset:{so}", f"ds_write_b64 v{VW}, {vr(Im, 2)} offset:{so+512}",
                  f"ds_read_b64_tr_b16 {vr(R, 2)}, v{VR} offset:{so}", f"ds_read_b64_tr_b16 {vr(R+2, 2)}, v{VR} offset:{so+512}"])
    for n in range(2):
        for b in range(nS):
            off = ((9 + b) * 2 + n) * 1024
            add([I(f"s_add_u32 s{sT0}, s{sHO}, {off & ~4095}"),
                 I(f"buffer_store_dwordx4 {vr(xb(b,0,n))}, v{VST}, {sr(S_WS)}, s{sT0} offen" + (f" offset:{off & 4095}" if off & 4095 else "") + HST, tag="hstC")],
                deadline=dlS)
    def hload(K, n):
        off = (K * 2 + n) * 1024
        return [I(f"s_add_u32 s{sQ+1}, s{sHP}, {off & ~4095}"),
                I(f"buffer_load_dwordx4 {ar(hp_reg(K) + 4*n)}, v{VST}, {sr(S_WS)}, s{sQ+1} offen" + (f" offset:{off & 4095}" if off & 4095 else "") + " sc1")]
    sFl = Stream("flag", 1)
    def flag(val, k):
        sFl.add(f"v_mov_b32 v{XT}, {val}", bar_mf[k], bar_mf[k] + 6)
        sFl.add(f"buffer_store_dword v{XT}, v{XF}, {sr(S_WS)}, 0 offen sc1", bar_mf[k], bar_mf[k] + 10)
    def xpoll(name, val, t_load, t_chk, Ks, dl):
        tt = [t_load]
        def emit(x, chk):
            if chk: sX_.add(x, t_chk, t_chk + 10)
            else: sX_.add(x, t_load, t_load + 10)
        poll(emit, name, XP, GWB, [f"v_cmp_le_u32 vcc, {val}, v{GWB}"], sQ + 2)
        for K in Ks:
            for n in range(2): sX_.add(hload(K, n), t_chk, dl)
    flag(2, kHA)
    needA = mbeg(43); needB = mbeg(45 if ORD2 == 0 else 44); needC = mbeg(48 if ORD2 == 0 else 47)
    firstA = [8, 0, 1, 2, 3] if par == 0 else [0, 1, 2, 3, 8]
    tA = int(opt.get("tA", 190)); tB = int(opt.get("tB", 150))
    kA0 = int(opt.get("ka0", 36 if ORD2 == 0 else 33))
    xpoll("A", 2, mbeg(kA0), mbeg(kA0) + 90, firstA, mbeg(kA0 + 4))
    flag(3, kHB)
    xpoll("B", 3, needB - tB - 80, needB - tB, [4, 5, 6, 7], needB - 70)
    flag(4, kHC)
    if FUSE: flag(5, kFM)
    if FUSE and kFA: flag(6, kFA)
    xpoll("D", 4, needC - 120 - 70, needC - 120, [9 + b for b in range(nSP)], needC - 70)

    sW_ = Stream("warm", 5)
    if opt.get("nopf") is None:
        PVL = TA + 2
        def pf(e_, areg, sset, srd_, dst):
            sW_.add(f"v_accvgpr_read_b32 v{PVL}, a{areg}", e_, e_ + 30)
            for x in sset: sW_.add(x, e_, e_ + 30)
            sW_.add(f"buffer_load_dword a{dst}, v{PVL}, {sr(srd_)}, s{sQ} offen{PFL}", e_, e_ + 40)
        t_a = int(opt.get("pf_a", mbeg(kH) + 30))
        which = opt.get("pfall", "")
        if "a" not in which: pf(t_a, 253, [f"s_mul_i32 s{sQ}, s{sT4}, {18*9216}", f"s_mul_i32 s{sQ+3}, s{sSLICE}, 576", f"s_add_u32 s{sQ}, s{sQ}, s{sQ+3}"], S_W1, 252)
        t_d = int(opt.get("pf_d", mbeg(kF(1)) + 20))
        if "d" not in which: pf(t_d, 254, [f"s_lshl_b32 s{sQ}, s{sTILE}, 2", f"s_add_u32 s{sQ}, s{sQ}, s{sW}", f"s_mul_i32 s{sQ}, s{sQ}, {41*128}",
                      f"s_mul_i32 s{sQ+3}, s{sSLICE}, {288*1152}", f"s_add_u32 s{sQ}, s{sQ}, s{sQ+3}"], S_WD, 248)
        if "c" not in which: pf(t_d + 100, 255, [f"s_mul_i32 s{sQ}, s{sT4}, {18*1152}", f"s_lshl_b32 s{sQ+3}, s{sC0}, 1", f"s_add_u32 s{sQ}, s{sQ}, s{sQ+3}"], S_C, 251)
    pace(sS, pace_from[0], bar_mf[kPoll], dlS - 10)
    streams = [sD, sP, sCl, sA, sB, sE, sS, sX_, sFl, sW_]
    if FUSE:
        sR, sR2 = reduce_prep(opt, par, bar_mf[46], bar_mf[int(opt.get("kmchk", 49))] + int(opt.get("tmchk", 0)), mend(NST - 1))
        streams += [sR, sR2]
    strip = opt.get("strip", "")
    if "e" in strip: streams = [x for x in streams if x not in (sE, sS, sX_, sFl, sW_, sCl)]; slow = []
    if "S" in strip: streams = [x for x in streams if x not in (sS, sX_, sFl, sW_, sCl)]; slow = []
    if "E" in strip: streams = [x for x in streams if x is not sE]
    if "h" in strip: sE.q = deque(it for it in sE.q if not any(x.kind == "vm_st" for x in it[0]))
    if "X" in strip: streams = [x for x in streams if x not in (sX_, sFl)]; slow = [x for x in slow if False]
    if "b" in strip:
        for sl in slots: sl.pre = [x for x in sl.pre if x.kind != "barrier"]
    if "d" in strip:
        keep = deque(it for it in sD.q if not any(getattr(x, "tag", "") and str(x.tag).startswith("st") and int(x.tag[2:]) > 8 for x in it[0]))
        sD.q = keep
    if "r" in strip:
        for sl in slots[400:]: sl.post = []
    fw.DMA_GAP = int(opt.get('dgap', 7)); fw.DMA_GAP_FROM = mXB - 20
    body, rest, stats = schedule(slots, streams)
    tail = rest
    if FUSE:
        pb = [x for x in rest if getattr(x, "pbepi", False)]
        others = [x for x in rest if not getattr(x, "pbepi", False)]
        if opt.get("tailv", "2") == "2": tail = others + final_reduce(opt, par, XF, XT, GWB, slow, pb)
        else: tail = rest + final_reduce(opt, par, XF, XT, GWB, slow, None)
    if ts:
        tail = tail + stamp(58) + [I("s_waitcnt vmcnt(0)")] + stamp(59) + [I("s_memrealtime s[100:101]"), I("s_waitcnt lgkmcnt(0)"), I("v_writelane_b32 v255, s100, 62")]
        tail += expand([f"s_lshl_b32 s{sT0}, s2, 2", f"s_add_u32 s{sT0}, s{sT0}, s{sW}", f"s_lshl_b32 s{sT0}, s{sT0}, 8", f"s_add_u32 s{sT0}, s{sT0}, {WS_END}",
                        f"v_lshlrev_b32 v1, 2, {L}", f"buffer_store_dword v255, v1, {sr(S_WS)}, s{sT0} offen"])
    for b_ in check_flags(body)[:10]: print('FLAG HAZARD', par, b_)
    prog = pro + body + tail
    prog, nw = insert_waits(prog)
    prog, nn = pad_hazards(prog)
    ol = stats.pop("overlog")
    stats["over_by_stage"] = [sum(ol[2*u0[k]:2*u0[k+1]]) for k in range(NST)]
    info = dict(stats, rate=round(sS.rate, 2), NU=NU, nwait=nw, nnop=nn, ninstr=len(prog), tail=len(tail))
    txt = render(prog) + "\n  s_endpgm\n" + render(slow) + "\n"
    return txt, info


def build_reduce(opt):
    o = []
    A = lambda *x: o.extend(expand(list(x)))
    A("s_cmp_ge_u32 s2, 576", "s_cbranch_scc1 L_red_end")
    if opt.get("ts"): A("s_memrealtime s[80:81]")
    A("s_load_dwordx2 s[64:65], s[0:1], 0", "s_load_dwordx2 s[66:67], s[0:1], 64", "s_load_dwordx2 s[68:69], s[0:1], 112", "s_load_dwordx2 s[70:71], s[0:1], 128")
    A("v_lshrrev_b32 v1, 6, v0", "v_and_b32 v2, 63, v0")
    A("v_readfirstlane_b32 s20, v1")
    A("s_lshl_b32 s21, s2, 2", "s_add_u32 s21, s21, s20")
    A("s_mul_i32 s22, s21, 1821", "s_lshr_b32 s22, s22, 16")
    A("s_mul_i32 s23, s22, 36", "s_sub_u32 s23, s21, s23")
    A("s_lshl_b32 s25, s22, 5")
    A("v_lshlrev_b32 v3, 4, v2", "v_and_b32 v4, 15, v2", "v_lshrrev_b32 v5, 4, v2")
    A("s_sub_u32 s29, s23, 4", "s_cmp_ge_u32 s23, 20", "s_cselect_b32 s29, s29, s23")
    A("s_lshl_b32 s24, s22, 15", "s_lshl_b32 s29, s29, 10", "s_add_u32 s24, s24, s29", f"s_add_u32 s24, s24, {WS_P8}")
    A(f"s_mov_b32 s30, {16*4*32768}")
    A("s_lshl_b32 s31, s22, 12", "s_sub_u32 s29, s23, 16", "s_lshl_b32 s33, s29, 10", "s_add_u32 s31, s31, s33", f"s_add_u32 s31, s31, {WS_P16}")
    A("s_cmp_lt_u32 s29, 4", "s_cselect_b32 s24, s31, s24", f"s_cselect_b32 s30, {16*4*4096}, s30", "s_cselect_b32 s34, 1, 0")
    A("s_waitcnt lgkmcnt(0)")
    A(srd(4, "s70", "s71", WS_END), srd(8, "s64", "s65", 2359296), srd(12, "s66", "s67", 1152), srd(16, "s68", "s69", 4718592))
    RLD = opt.get("rld", "")
    for s_ in range(8):
        A(f"buffer_load_dwordx4 {vr(32+4*s_)}, v3, s[4:7], s24 offen{RLD}", "s_add_u32 s24, s24, s30")
    A("s_cmp_eq_u32 s34, 1", "s_cselect_b32 s24, s24, 0x7ff00000", "s_cselect_b32 s30, s30, 0")
    for s_ in range(8, 16):
        A(f"buffer_load_dwordx4 {vr(32+4*s_)}, v3, s[4:7], s24 offen{RLD}", "s_add_u32 s24, s24, s30")
    A("s_lshl_b32 s26, s23, 4", "v_lshlrev_b32 v6, 2, v5", "v_add_u32 v6, s26, v6")
    A("v_add_u32 v7, s25, v4")
    A("v_mul_u32_u24 v8, 576, v7", "v_add_u32 v8, v8, v6")
    A("v_lshlrev_b32 v9, 1, v8", "v_lshlrev_b32 v10, 2, v8", "v_lshlrev_b32 v11, 1, v6", "v_lshlrev_b32 v12, 2, v7")
    A("buffer_load_dwordx2 v[14:15], v9, s[8:11], 0 offen")
    A("s_mov_b32 s27, 18432", "buffer_load_dwordx2 v[16:17], v9, s[8:11], s27 offen")
    A("buffer_load_dwordx2 v[18:19], v11, s[12:15], 0 offen")
    A(f"s_mov_b32 s28, {WS_G}", "buffer_load_dword v20, v12, s[4:7], s28 offen", "buffer_load_dword v21, v12, s[4:7], s28 offen offset:64")
    for r in range(8): A(f"v_mov_b32 v{100+r}, 0")
    for s_ in range(16):
        for j in range(4):
            src = 32 + 4 * s_ + j
            A(f"v_lshlrev_b32 v22, 16, v{src}", f"v_and_b32 v23, 0xffff0000, v{src}", f"v_add_f32 v{100+2*j}, v{100+2*j}, v22", f"v_add_f32 v{101+2*j}, v{101+2*j}, v23")
    for n in range(2):
        for j in range(2):
            xs, ds = 14 + 2 * n + j, 18 + j
            A(f"v_lshlrev_b32 v22, 16, v{xs}", f"v_and_b32 v23, 0xffff0000, v{xs}", f"v_lshlrev_b32 v24, 16, v{ds}", f"v_and_b32 v25, 0xffff0000, v{ds}",
              "v_mul_f32 v22, v22, v24", "v_mul_f32 v23, v23, v25", "v_cvt_pk_bf16_f32 v22, v22, v23",
              "v_and_b32 v23, 0xffff0000, v22", "v_lshlrev_b32 v22, 16, v22",
              f"v_fmac_f32 v{100+4*n+2*j}, v{20+n}, v22", f"v_fmac_f32 v{101+4*n+2*j}, v{20+n}, v23")
    A("buffer_store_dwordx4 v[100:103], v10, s[16:19], 0 offen")
    A("s_mov_b32 s27, 36864", "buffer_store_dwordx4 v[104:107], v10, s[16:19], s27 offen")
    if opt.get("ts"):
        A("s_waitcnt vmcnt(0)", "s_memrealtime s[82:83]", "s_waitcnt lgkmcnt(0)", "v_mov_b32 v30, s80", "v_mov_b32 v31, s82", "s_lshl_b32 s27, s21, 3",
          f"s_add_u32 s27, s27, {WS_END + (1 << 18)}", "v_mov_b32 v29, 0", "s_mov_b32 s6, 0x7fffffff", "buffer_store_dwordx2 v[30:31], v29, s[4:7], s27 offen")
    prog, nw = insert_waits(o)
    prog, nn = pad_hazards(prog)
    return render(prog) + "\nL_red_end:\n  s_endpgm\n"


def build(opt):
    common = build_common(opt)
    v0, i0 = build_variant(opt, 0)
    v1, i1 = build_variant(opt, 1)
    red = build_reduce(opt)
    k1, k2 = NAME + "_kernel", "reduce_kernel"
    fuse = opt.get('fuse', '1') == '1'
    s = HEADER
    if fuse:
        s += f"; @launch grid=(256,1,1) block=(256,1,1) lds={LDS_BYTES}\n"
    else:
        s += f"; @launch kernel={k1} grid=(256,1,1) block=(256,1,1) lds={LDS_BYTES}\n"
        s += f"; @launch kernel={k2} grid=(576,1,1) block=(256,1,1) lds=0\n"
    s += '.amdgcn_target "amdgcn-amd-amdhsa--gfx950"\n.text\n'
    far = "  s_cbranch_scc1 L_var1\n"
    common = common.replace("  s_cbranch_scc1 L_main_end\n", "  s_cbranch_scc0 L_go\n  s_endpgm\nL_go:\n")
    common = common.replace("  s_cbranch_scc1 L_var1\n", "  s_cbranch_scc0 L_var0\n  s_branch L_var1\nL_var0:\n")
    s += f".globl {k1}\n.p2align 8\n.type {k1},@function\n{k1}:\n" + common + v0 + "L_end0:\n.p2align 6\nL_var1:\n" + v1 + "L_end1:\n"
    if not fuse: s += f".globl {k2}\n.p2align 8\n.type {k2},@function\n{k2}:\n" + red
    if opt.get("nocpf") is None:
        s += ".set CODE_SPAN0, L_end0 - L_pc0 - 4\n.set CODE_SPAN1, L_end1 - L_pc1 - 4\n"
    s += '.section .rodata,"a"\n' + kd(k1, 512, 256, 102) + ("" if fuse else kd(k2, 128, 128, 96))
    return s, (i0, i1)


if __name__ == "__main__":
    out = sys.argv[1]
    opt = {}
    for a in sys.argv[2:]:
        k, v = a.split("=", 1); opt[k] = v
    fw.DEPAWARE = opt.get('dep', '1') == '1'; fw.VMCOST = int(opt.get('vmcost', 1)); fw.VM_GAP = int(opt.get('vmgap', 5)); fw.LDS_LAT = int(opt.get('ldslat', 8)); fw.VM_LAT = int(opt.get('vmlat', 90))
    s, info = build(opt)
    open(out, "w").write(s)
    for i in info: print(i)
    print(len(s))
```

```python
import sys
import fw
from fw import *
from gen import (NAME, LOG2E, INV2PI, OOB, SLOT, NSLOT, MISC, PRIV, WTOT, TAB, LDS_BYTES, ACC, XB, LG, P1, P2, D1, D2, SF, A4, A32, A128, PW,
                 LANE, VST, VCH, T, VE, VP, VT, TS, TA, AX, AF, AH, L, xfrag, afrag, vr, ar, sr, xb, srd, mf,
                 voff_B, voff_W1full, voff_W1half, voff_Wd, voff_C, base_T64, base_C, cmul_acc, kd, HEADER)
XBASE = 2 * SLOT
XPOS = [0, 1, 2, 3, 4, 5, 3, 4, 5]

WS_P8 = 0
P8_BYTES = 8 * 16 * 4 * 2 * 16 * 1024
WS_P16 = WS_P8 + P8_BYTES
P16_BYTES = 16 * 16 * 4 * 4 * 1024
WS_H = WS_P16 + P16_BYTES
H_BYTES = 16 * 16 * 4 * 24 * 1024
WS_S = WS_H + H_BYTES
WS_G = WS_S + 16 * 16 * 384
WS_F = WS_G + 8192
WS_END = WS_F + 256 * 128

S_X, S_W1, S_WD, S_B, S_C, S_WS, S_S, S_DBG, S_P = 4, 8, 12, 16, 20, 24, 28, 32, 36
sW, sTILE, sSLICE, sC0, sOA, sOB, sW6, sW3 = 40, 41, 42, 43, 44, 45, 46, 47
sP8, sT0, sT1, sT2, sC2, sPAR, sP16, sT3 = 48, 49, 50, 51, 52, 53, 54, 55
sMASK = 56; sM1, sM2, sM3 = 58, 59, 60
sHO, sHP, sHT = 61, 62, 63
sW1F, sW1H, sWD2, sWD1, sWD1B, sC1, sT4, sC0P, sC2P, sQ = 64, 65, 66, 67, 68, 69, 70, 71, 72, 73
sXO, sXL = 98, 99
AHP = 0
def hp_reg(K):
    order = {8: 0, 0: 1, 1: 2, 2: 3, 3: 4, 4: 5, 5: 6, 6: 7, 7: 8, 9: 9, 10: 10, 11: 11}
    return AHP + 8 * order[K]


CYC = [0, 1, 2, 4, 5, 3]
def slot_of(k): return k if k < 4 else CYC[(k - 4) % 6]
def slot_base(k): return slot_of(k) * SLOT
def setof(k): return slot_of(k) // 2
def slot_rel(k): return (slot_of(k) % 2) * SLOT

T64B = [P1 + i for i in range(6)]
T128B = [P1 + 6 + i for i in range(6)] + [P2 + i for i in range(6)]
RB = [P2 + i for i in range(6)]
CB = [P1 + i for i in range(3)]
GWB = P2 + 6


PMACC = [96, 104, 112, 120]


class Stage:
    def __init__(self, fmt, units, pieces, wq, pre):
        self.fmt, self.units, self.pieces, self.wq, self.pre = fmt, units, pieces, wq, pre


def base_list_T128(regs, qrows, t, sets):
    o = [f"v_lshrrev_b32 v{t}, 4, {L}", f"v_mul_u32_u24 v{t}, {qrows}, v{t}", f"v_bfe_u32 v{t+1}, {L}, 2, 2", f"v_add_u32 v{t}, v{t}, v{t+1}",
         f"v_lshlrev_b32 v{t}, 7, v{t}", f"v_and_b32 v{t+1}, 3, {L}", f"v_lshlrev_b32 v{t+1}, 3, v{t+1}", f"v_add_u32 v{t}, v{t}, v{t+1}",
         f"v_bfe_u32 v{t+1}, {L}, 3, 2"]
    return o


def t128_regs(idx, t):
    s_, mt = divmod(idx, 4)
    d = T128B[idx]
    o = [f"v_xor_b32 v{d}, {mt}, v{t+1}", f"v_lshlrev_b32 v{d}, 5, v{d}", f"v_add_u32 v{d}, v{d}, v{t}"]
    if s_: o += [f"v_add_u32 v{d}, {49152*s_}, v{d}"]
    return o


def base_R2(t):
    o = [f"v_and_b32 v{t}, 15, {L}", f"v_lshrrev_b32 v{t+1}, 1, v{t}", f"v_lshlrev_b32 v{t}, 7, v{t}"]
    for h in range(2):
        d = RB[h]
        o += [f"v_lshrrev_b32 v{d}, 4, {L}", f"v_add_u32 v{d}, {4*h}, v{d}", f"v_xor_b32 v{d}, v{d}, v{t+1}", f"v_lshlrev_b32 v{d}, 4, v{d}",
              f"v_add_u32 v{d}, v{d}, v{t}", f"v_add_u32 v{RB[2+h]}, 49152, v{d}", f"v_add_u32 v{RB[4+h]}, {2*49152}, v{d}"]
    return o


def build_stages(par, ord2=0):
    nS = 2 if par == 0 else 3
    nSP = 5 - nS
    stages = []
    tr = "ds_read_b64_tr_b16"
    U = lambda reads, mfl, swap: dict(reads=reads, mf=mfl, swap=swap)
    for st in range(5):
        units = []
        for ksl in range(4 if st < 4 else 2):
            ks = 4 * st + ksl
            line, half = ksl >> 1, ksl & 1
            for b in range(nS):
                for mat in range(2):
                    off = (2 * mat + line) * 6144 + b * 2048
                    acc = [xb(b, mat, n) for n in range(2)]
                    units.append(U([("ds_read_b128", 4, ("R", half), off)],
                                   [(vr(acc[n]), xfrag(ks, n), None, vr(acc[n]) if ks else "0") for n in range(2)], True))
            units.append(U([("ds_read_b128", 4, ("abs", GWB), ks * 64)],
                           [(vr(LG + 4 * n), xfrag(ks, n), None, vr(LG + 4 * n) if ks else "0") for n in range(2)], True))
        pre = [] if st == 0 else [f"s_add_u32 s{sOA}, s{sOA}, 256"]
        npc = 2 * nS
        stages.append(Stage("B", units, [(D1 + j, S_B, sOA) for j in range(npc)], sW6, pre))
    for st in range(3):
        units = []
        for ksl in range(6):
            ks = 6 * st + ksl
            for mat in range(2):
                for mt in range(2):
                    acc = ACC[0] + (mat * 4 + mt) * 8
                    off = mat * 12288 + ksl * 2048
                    units.append(U([(tr, 2, ("T64", mt), off), (tr, 2, ("T64", mt), off + 256)],
                                   [(vr(acc + 4 * n), None, xfrag(ks, n), vr(acc + 4 * n) if ks else "0") for n in range(2)], False))
        pre = [f"s_mov_b32 s{sOA}, s{sW1H}"] if st == 0 else [f"s_add_u32 s{sOA}, s{sOA}, {192*9216}"]
        stages.append(Stage("W1h", units, [(D2 + j, S_W1, sOA) for j in range(6)], sW6, pre))
    for c in range(4):
        buf = ACC[(c + 1) & 1]
        for st in range(6):
            units = []
            for ksl in range(3):
                ks = 3 * st + ksl
                for mat in range(2):
                    for mt in range(4):
                        acc = buf + (mat * 4 + mt) * 8
                        off = mat * 12288 + ksl * 4096
                        units.append(U([(tr, 2, ("T128", mt), off), (tr, 2, ("T128", mt), off + 512)],
                                       [(vr(acc + 4 * n), None, xfrag(ks, n), vr(acc + 4 * n) if ks else "0") for n in range(2)], False))
            pre = [f"s_add_u32 s{sOA}, s{sW1F}, {128*c}"] if st == 0 else [f"s_add_u32 s{sOA}, s{sOA}, {96*9216}"]
            stages.append(Stage("W1", units, [(D1 + j, S_W1, sOA) for j in range(6)], sW6, pre))
    own = lambda K: (lambda n: ar(AH + 8 * K + 4 * n))
    prt = lambda K: (lambda n: ar(hp_reg(K) + 4 * n))
    owns = lambda b: (lambda n: vr(xb(b, 0, n)))
    if par == 0:
        ownW = [[0, 1, 2], [3, 4, 5], [6, 7, 8]]; prtW = [[8, 0, 1], [2, 3, 4], [5, 6, 7]]
        ms_own, ms_prt = [0, 1, 2], [3, 4, 5]
        pmA, pmB = [0, 1, 2, 3, 4, 5], [6, 7, 8]
        cols = [0, 256]
    else:
        ownW = [[8, 0, 1], [2, 3, 4], [5, 6, 7]]; prtW = [[0, 1, 2], [3, 4, 5], [6, 7, 8]]
        ms_own, ms_prt = [3, 4, 5], [0, 1, 2]
        pmA, pmB = [8, 0, 1, 2, 3, 4], [5, 6, 7]
        cols = [640, 896]
    def wd_units(bfs, lines, buf, first):
        units = []
        for i_, bf in enumerate(bfs):
            for line in range(lines):
                for mt in range(4):
                    acc = buf + (line * 4 + mt) * 8
                    off = line * 12288 + i_ * 4096
                    z = first and i_ == 0
                    units.append(U([(tr, 2, ("T128", mt), off), (tr, 2, ("T128", mt), off + 2048)],
                                   [(vr(acc + 4 * n), None, bf(n), "0" if z else vr(acc + 4 * n)) for n in range(2)], False))
        return units
    def c_units(bfs, nm, buf, imoff):
        units = []
        for b, bf in enumerate(bfs):
            for m in range(nm):
                acc = buf + m * 8
                off = m * 1536 + 32 * b
                units.append(U([("ds_read_b64", 2, ("C", 0), off), ("ds_read_b64", 2, ("C", 0), off + imoff)],
                               [(vr(acc + 4 * n), None, bf(n), vr(acc + 4 * n)) for n in range(2)], False))
        return units
    def W(p, bfs, ms, first=False):
        buf = ACC[(p + 1) & 1]
        stages.append(Stage("Wd", wd_units(bfs, 2, buf, first), [(D2 + j, S_WD, sOA) for j in range(6)], sW6,
                            [f"s_add_u32 s{sOA}, s{sWD2}, {cols[p] + ms*96*1152}"]))
    def C(p, bfs, sbase):
        buf = ACC[(p + 1) & 1]
        stages.append(Stage("C", c_units(bfs, 8, buf, 12288), [(D1 + j, S_C, sOA) for j in range(6)], sW6,
                            [f"s_add_u32 s{sOA}, s{sbase}, {(cols[p] // 2) * 1152}"]))
    oW = lambda p, i, first=False: W(p, [own(K) for K in ownW[i]], ms_own[i], first)
    pW = lambda p, i: W(p, [prt(K) for K in prtW[i]], ms_prt[i])
    oC = lambda p: C(p, [owns(b) for b in range(nS)], sC2)
    pC = lambda p: C(p, [prt(9 + b) for b in range(nSP)], sC2P)
    def pm_units(bfs, first, kind):
        units = []
        for i_, bf in enumerate(bfs):
            for mt in range(4):
                acc = PMACC[mt]
                z = first and i_ == 0
                if kind == "W":
                    off = i_ * 4096
                    rd = [(tr, 2, ("T128", mt), off), (tr, 2, ("T128", mt), off + 2048)]
                else:
                    off = mt * 1536 + 32 * i_
                    rd = [("ds_read_b64", 2, ("C", 0), off), ("ds_read_b64", 2, ("C", 0), off + 6144)]
                units.append(U(rd, [(ar(acc + 4 * n), None, bf(n), "0" if z else ar(acc + 4 * n)) for n in range(2)], False))
        return units
    pmWa = lambda: stages.append(Stage("Wd1a", pm_units([own(K) for K in pmA], True, "W"), [(D2 + j, S_WD, sOA) for j in range(6)], sW6, [f"s_add_u32 s{sOA}, s{sWD1}, 512"]))
    pmWb = lambda: stages.append(Stage("Wd1b", pm_units([own(K) for K in pmB], False, "W"), [(D2 + j, S_WD, sOA) for j in range(3)], sW3, [f"s_add_u32 s{sOA}, s{sWD1B}, 512"]))
    pmC = lambda: stages.append(Stage("C1", pm_units([owns(b) for b in range(nS)], False, "C"), [(D1 + j, S_C, sOA) for j in range(3)], sW3, [f"s_add_u32 s{sOA}, s{sC1}, {256*1152}"]))
    oW(0, 0, True); oW(0, 1); pmWa(); oW(1, 0, True); oW(1, 1); oW(0, 2); oW(1, 2); pmWb()
    oC(0); oC(1); pmC()
    if ord2 == 0: pW(0, 0); pW(1, 0); pW(0, 1); pW(1, 1); pW(0, 2); pC(0); pW(1, 2); pC(1)
    elif ord2 == 1: pW(0, 0); pW(0, 1); pW(1, 0); pW(0, 2); pC(0); pW(1, 1); pW(1, 2); pC(1)
    else: pW(0, 0); pW(0, 1); pW(0, 2); pW(1, 0); pC(0); pW(1, 1); pW(1, 2); pC(1)
    return stages, nS


def pace(st, i0, t0, t1):
    items = list(st.q)
    def walk(rate):
        t = float(t0); ready = {}; tr = {}; out = []
        for (g, e, d) in items[i0:]:
            t = max(t, e)
            for x in g:
                if x.kind == "pwait" and x.op == "waittag":
                    for tg in x.args: t = max(t, tr.get(tg, -1))
                else:
                    for r in x.src + x.dst: t = max(t, ready.get(r, -1))
            out.append(t)
            for x in g:
                if x.kind == "ds_rd":
                    for r in x.dst: ready[r] = t + fw.LDS_LAT + 1
                elif x.kind == "vm_ld":
                    for r in x.dst: ready[r] = t + fw.VM_LAT + 2
                if x.tag and x.kind in ("vm_st", "ds_wr"): tr[x.tag] = t + fw.VM_LAT
            t += len(g) / rate
        return out
    lo, hi = 0.05, 8.0
    for _ in range(30):
        mid = (lo + hi) / 2
        if walk(mid)[-1] <= t1: hi = mid
        else: lo = mid
    dls = walk(hi)
    new = deque(items[:i0])
    for (g, e, d), t in zip(items[i0:], dls):
        nd = int(t) + 3
        new.append((g, e, nd if d is None else min(d, nd)))
    st.q = new
    st.rate = hi


def interleave(vm, fill, per):
    out = []; fi = 0
    for g in vm:
        out += g
        if any(("buffer_load" in x or "global_load" in x) if isinstance(x, str) else x.kind in ("dma", "vm_ld") for x in g):
            n = 0
            while fi < len(fill) and n < per:
                f = fill[fi]; fi += 1
                out += f if isinstance(f, list) else [f]
                n += len(f) if isinstance(f, list) else 1
    for f in fill[fi:]:
        out += f if isinstance(f, list) else [f]
    return out


def build_common(opt):
    o = []
    A = lambda *x: o.extend(expand(list(x)))
    A("s_cmp_ge_u32 s2, 256", "s_cbranch_scc1 L_main_end")
    A("s_load_dwordx16 s[64:79], s[0:1], 0", "s_load_dwordx16 s[80:95], s[0:1], 64", "s_load_dwordx2 s[96:97], s[0:1], 128")
    A(f"v_and_b32 {L}, 63, v0", "v_lshrrev_b32 v1, 6, v0")
    A(f"s_and_b32 s{sT0}, s2, 7", f"s_lshr_b32 s{sT1}, s2, 3")
    A(f"v_readfirstlane_b32 s{sW}, v1")
    if opt.get("map", "2") == "4":
        A(f"s_and_b32 s{sSLICE}, s{sT0}, 3", f"s_lshl_b32 s{sSLICE}, s{sSLICE}, 2", f"s_and_b32 s{sT2}, s{sT1}, 3", f"s_add_u32 s{sSLICE}, s{sSLICE}, s{sT2}",
          f"s_and_b32 s{sPAR}, s{sSLICE}, 1", f"s_lshr_b32 s{sTILE}, s{sT0}, 2", f"s_lshl_b32 s{sTILE}, s{sTILE}, 3", f"s_lshr_b32 s{sT2}, s{sT1}, 2", f"s_add_u32 s{sTILE}, s{sTILE}, s{sT2}")
    elif opt.get("map", "2") == "8":
        A(f"s_and_b32 s{sSLICE}, s{sT0}, 1", f"s_lshl_b32 s{sSLICE}, s{sSLICE}, 3", f"s_and_b32 s{sT2}, s{sT1}, 7", f"s_add_u32 s{sSLICE}, s{sSLICE}, s{sT2}",
          f"s_and_b32 s{sPAR}, s{sSLICE}, 1", f"s_lshr_b32 s{sTILE}, s{sT0}, 1", f"s_lshl_b32 s{sTILE}, s{sTILE}, 2", f"s_lshr_b32 s{sT2}, s{sT1}, 3", f"s_add_u32 s{sTILE}, s{sTILE}, s{sT2}")
    elif opt.get("parhi", "0") == "1":
        A(f"s_lshr_b32 s{sPAR}, s{sT1}, 4", f"s_xor_b32 s{sPAR}, s{sPAR}, 1", f"s_lshl_b32 s{sSLICE}, s{sT0}, 1", f"s_add_u32 s{sSLICE}, s{sSLICE}, s{sPAR}", f"s_and_b32 s{sTILE}, s{sT1}, 15")
    else:
        A(f"s_lshl_b32 s{sSLICE}, s{sT0}, 1", f"s_and_b32 s{sPAR}, s{sT1}, 1", f"s_add_u32 s{sSLICE}, s{sSLICE}, s{sPAR}", f"s_lshr_b32 s{sTILE}, s{sT1}, 1")
    choose = [f"s_cmp_eq_u32 s{sPAR}, 1", "s_cbranch_scc1 L_var1"]
    prog, _ = pad_hazards(o)
    return render(prog) + "\n  " + "\n  ".join(choose) + "\n"


I0, I1, I2 = xb(0, 1, 0), xb(1, 1, 0), xb(2, 1, 0)
FA, FD, LT, LQ = A4, A4 + 1, A4 + 2, A4 + 3
GREG = A4 + 5
PE, PX, PD, ME = I0, I0 + 1, I0 + 2, I0 + 3
MS, DA, DB, TMP, MX = I0 + 4, I1, I2, LG, LG + 4
MLA, EII, E0, E1 = 96, 112, 116, 120
S_OUT, S_DS = S_P, S_B
sJ, sTOK, sSRC, sM_, sPA, sDA, sRM, sMS = 82, 83, 84, 85, 86, 87, 88, 89
mALL, mPAR = 56, 58


def skip_init(dst, xs, ds, g):
    o = []; a, b, c, d = TMP, TMP + 1, TMP + 2, TMP + 3
    for j in range(2):
        o += [f"v_lshlrev_b32 v{a}, 16, v{xs+j}", f"v_and_b32 v{b}, 0xffff0000, v{xs+j}", f"v_lshlrev_b32 v{c}, 16, v{ds+j}", f"v_and_b32 v{d}, 0xffff0000, v{ds+j}",
              f"v_mul_f32 v{a}, v{a}, v{c}", f"v_mul_f32 v{b}, v{b}, v{d}", f"v_cvt_pk_bf16_f32 v{a}, v{a}, v{b}",
              f"v_and_b32 v{b}, 0xffff0000, v{a}", f"v_lshlrev_b32 v{a}, 16, v{a}", f"v_mul_f32 v{dst+2*j}, v{g}, v{a}", f"v_mul_f32 v{dst+2*j+1}, v{g}, v{b}"]
    return o


def reduce_prep(opt, par, e0, eM, lastm):
    oob = hex(OOB)
    sR = Stream("red", 4)
    add = lambda x, e=e0, d=None: sR.add(x, e, d)
    def adds(l, e=e0, d=None):
        for x in l: add(x, e, d)
    adds(srd(S_OUT, "s92", "s93", 4718592) + srd(S_DS, "s80", "s81", 1152))
    adds([f"s_mov_b32 s{mALL}, 0xffff0000", f"s_mov_b32 s{mALL+1}, -1", f"s_mov_b32 s{mPAR}, {hex(0xffff0000 | (0xaaaa if par == 0 else 0x5555))}", f"s_mov_b32 s{mPAR+1}, -1"])
    adds([[f"s_lshl_b32 s{sT0}, s{sTILE}, 7", f"s_add_u32 s{sT0}, s{sT0}, {WS_F}"], f"v_lshlrev_b32 v{FA}, 11, {L}", f"v_add_u32 v{FA}, s{sT0}, v{FA}",
          [f"v_cmp_gt_u32 vcc, 16, {L}", f"v_mov_b32 v{FD}, {oob}", f"v_cndmask_b32 v{FA}, v{FD}, v{FA}, vcc"],
          f"v_and_b32 v{LT}, 15, {L}", f"v_lshrrev_b32 v{LQ}, 4, {L}", f"s_lshr_b32 s{sJ}, s{sSLICE}, 1"], e0, eM - 95)
    adds([[f"s_lshr_b32 s{sT0}, s{sSLICE}, 2", f"s_and_b32 s{sM_}, s{sSLICE}, 3", f"s_and_b32 s{sT3}, s{sW}, 1", f"s_lshr_b32 s{sT1}, s{sW}, 1",
           f"s_lshl_b32 s{sMS}, s{sTILE}, 2", f"s_add_u32 s{sMS}, s{sMS}, s{sT0}", f"s_lshl_b32 s{sMS}, s{sMS}, 2", f"s_add_u32 s{sMS}, s{sMS}, s{sM_}"],
          f"s_lshl_b32 s{sMS}, s{sMS}, 10", f"s_mul_i32 s{sT1}, s{sT1}, {8*16*4*4096}", f"s_add_u32 s{sMS}, s{sMS}, s{sT1}", f"s_lshl_b32 s{sT2}, s{sT3}, 3",
          f"s_add_u32 s{sMS}, s{sMS}, s{sT2}", f"s_add_u32 s{sMS}, s{sMS}, {WS_P16}"], e0, eM - 4)
    adds([[f"s_lshl_b32 s{sPA}, s{sTILE}, 2", f"s_add_u32 s{sPA}, s{sPA}, s{sW}"], f"s_lshl_b32 s{sPA}, s{sPA}, 15", f"s_lshl_b32 s{sT0}, s{sJ}, 10", f"s_add_u32 s{sPA}, s{sPA}, s{sT0}",
          f"s_add_u32 s{sPA}, s{sPA}, {WS_P8 + 16384*par}", f"s_lshl_b32 s{sDA}, s{sJ}, 4", f"s_add_u32 s{sDA}, s{sDA}, {320*par}",
          f"s_lshl_b32 s{sTOK}, s{sTILE}, 7", f"s_lshl_b32 s{sT0}, s{sW}, 5", f"s_add_u32 s{sTOK}, s{sTOK}, s{sT0}",
          f"v_add_u32 v{PE}, s{sTOK}, v{LT}", f"v_lshlrev_b32 v{PD}, 2, v{LQ}", f"v_add_u32 v{PD}, s{sDA}, v{PD}", f"v_mul_u32_u24 v{PE}, 576, v{PE}",
          f"v_add_u32 v{PE}, v{PE}, v{PD}", f"v_lshlrev_b32 v{PX}, 1, v{PE}", f"v_lshlrev_b32 v{PD}, 1, v{PD}", f"v_lshlrev_b32 v{PE}, 2, v{PE}",
          f"v_accvgpr_read_b32 v{GREG}, a249", f"v_accvgpr_read_b32 v{GREG+1}, a250"])
    def aux(base, dcol):
        add([f"s_mov_b32 s{sT0}, {2*dcol}", f"buffer_load_dwordx2 {vr(base, 2)}, v{PX}, {sr(S_X)}, s{sT0} offen"])
        add([f"s_mov_b32 s{sT1}, {2*dcol + 18432}", f"buffer_load_dwordx2 {vr(base+2, 2)}, v{PX}, {sr(S_X)}, s{sT1} offen"])
        add([f"s_mov_b32 s{sT0}, {2*dcol}", f"buffer_load_dwordx2 {vr(base+4, 2)}, v{PD}, {sr(S_DS)}, s{sT0} offen"])
    aux(T, 0); aux(T + 6, 128)
    MA = T + 12
    adds([[f"s_lshr_b32 s{sT0}, s{sSLICE}, 2", f"s_lshl_b32 s{sTOK}, s{sTILE}, 7", f"s_lshl_b32 s{sT0}, s{sT0}, 5", f"s_add_u32 s{sTOK}, s{sTOK}, s{sT0}", f"s_lshl_b32 s{sT2}, s{sT3}, 4"],
          f"s_add_u32 s{sTOK}, s{sTOK}, s{sT2}", f"s_lshl_b32 s{sM_}, s{sM_}, 4", f"s_add_u32 s{sM_}, s{sM_}, 256",
          f"v_add_u32 v{MX}, s{sTOK}, v{LT}", f"v_lshlrev_b32 v{MA+2}, 2, v{LQ}", f"v_add_u32 v{MA+2}, s{sM_}, v{MA+2}",
          f"v_mul_u32_u24 v{ME}, 576, v{MX}", f"v_add_u32 v{ME}, v{ME}, v{MA+2}", f"v_lshlrev_b32 v{MA}, 1, v{ME}", f"v_lshlrev_b32 v{MA+2}, 1, v{MA+2}",
          f"v_lshlrev_b32 v{MX}, 2, v{MX}", f"v_lshlrev_b32 v{ME}, 2, v{ME}",
          f"buffer_load_dwordx2 {vr(MA, 2)}, v{MA}, {sr(S_X)}, 0 offen", f"buffer_load_dwordx2 {vr(MA+2, 2)}, v{MA+2}, {sr(S_DS)}, 0 offen"], e0, eM - 2)
    add(f"s_mov_b32 s{sT1}, {WS_G}", e0, eM)
    add([I(f"v_cmp_le_u32 vcc, 5, v{FD}"), I(f"s_or_b64 vcc, vcc, s[{mALL}:{mALL+1}]"), I("s_cmp_eq_u64 vcc, -1"), I(f"s_cselect_b32 s{sRM}, 1, 0"),
         I(f"s_cselect_b32 s{sSRC}, s{sMS}, 0x7ff00000"), I(f"s_cselect_b32 s{sT0}, s{sT1}, 0x7ff00000")], eM, eM + 8)
    add(f"buffer_load_dword v{MX+1}, v{MX}, {sr(S_WS)}, s{sT0} offen sc1", eM)
    for j in range(8):
        add(f"buffer_load_dwordx2 {ar(MLA+2*j, 2)}, v{VST}, {sr(S_WS)}, s{sSRC} offen sc1", eM)
        if j < 7: add(f"s_add_u32 s{sSRC}, s{sSRC}, {16*4*4096}", eM)
    adds(skip_init(DA, T, T + 4, GREG) + skip_init(DA + 4, T + 2, T + 4, GREG + 1) + skip_init(DB, T + 6, T + 10, GREG) + skip_init(DB + 4, T + 8, T + 10, GREG + 1), eM)
    EM0, EM1 = T, T + 1
    adds([f"v_lshrrev_b32 v{EM1}, 2, v{LT}", f"v_xor_b32 v{T+3}, v{EM1}, v{LQ}", f"v_and_b32 v{EM1}, 1, v{LT}", f"v_lshlrev_b32 v{EM1}, 4, v{EM1}",
          f"v_mov_b32 v{T+2}, 0x3f80", f"v_lshlrev_b32 v{EM1}, v{EM1}, v{T+2}", [f"v_cmp_eq_u32 vcc, 0, v{T+3}", f"v_cndmask_b32 v{EM1}, 0, v{EM1}, vcc"],
          f"v_and_b32 v{EM0}, 2, v{LT}", [f"v_cmp_eq_u32 vcc, 0, v{EM0}", f"v_cndmask_b32 v{EM0}, 0, v{EM1}, vcc", f"v_cndmask_b32 v{EM1}, v{EM1}, 0, vcc"],
          f"v_mov_b32 v{T+2}, 0"]
         + [f"v_accvgpr_write_b32 a{r}, v{EM0}" for r in (EII, EII + 2, E0, E1 + 2)] + [f"v_accvgpr_write_b32 a{r}, v{EM1}" for r in (EII + 1, EII + 3, E0 + 1, E1 + 3)]
         + [f"v_accvgpr_write_b32 a{r}, v{T+2}" for r in (E0 + 2, E0 + 3, E1, E1 + 1)], eM)
    sR2 = Stream("red2", 1)
    sR2.add(f"buffer_load_dword v{FD}, v{FA}, {sr(S_WS)}, 0 offen sc1", eM - 85, eM - 80)
    return sR, sR2


def final_reduce(opt, par, XF, XT, XD, slow, pb):
    o = []
    A = lambda *x: o.extend(expand(list(x)))
    tst = lambda i: A(I(("s_memrealtime" if opt.get("ts") == "5" else "s_memtime") + " s[100:101]"), I("s_waitcnt lgkmcnt(0)"), I(f"v_writelane_b32 v255, s100, {i}")) if (opt.get("ts") and (opt.get("ts") != "4" or i == 52)) else None
    OST = opt.get("ost", " nt")
    MA = T + 12
    def flagst(val): A(f"v_mov_b32 v{XT}, {val}", f"buffer_store_dword v{XT}, v{XF}, {sr(S_WS)}, 0 offen sc1")
    ld = f"buffer_load_dword v{FD}, v{FA}, {sr(S_WS)}, 0 offen sc1"
    def spin(name, val, mask, after):
        cond = [f"v_cmp_le_u32 vcc, {val}, v{FD}", f"s_or_b64 vcc, vcc, s[{mask}:{mask+1}]"]
        slow.extend([I(f"L_slow_{name}{par}:"), I(f"s_mov_b32 s{sT2}, 0"), I(f"L_slowl_{name}{par}:"), I(ld), I("s_waitcnt vmcnt(0)"),
                     I(cond[0]), I("s_nop 4"), I(cond[1]), I("s_cmp_eq_u64 vcc, -1"), I(f"s_cbranch_scc1 L_slowd_{name}{par}"),
                     I(f"s_add_u32 s{sT2}, s{sT2}, 1"), I(f"s_cmp_lt_u32 s{sT2}, 0x40000"), I(f"s_cbranch_scc1 L_slowl_{name}{par}"), I(f"L_slowd_{name}{par}:")]
                    + expand(after) + [I("s_waitcnt vmcnt(0)"), I(f"s_branch L_back_{name}{par}")])
        return cond
    def l8(dst, extra):
        r = [f"s_add_u32 s{sSRC}, s{sPA}, {extra}"]
        for j in range(8):
            r.append(f"buffer_load_dwordx4 {vr(dst+4*j)}, v{VST}, {sr(S_WS)}, s{sSRC} offen sc1")
            if j < 7: r.append(f"s_add_u32 s{sSRC}, s{sSRC}, {16*4*32768}")
        return r
    def finish(src, dst, dcol):
        for j in range(8):
            for n in range(2): A(mf(vr(dst + 4*n), ar((E0, E1)[n]), vr(src + 4*j), vr(dst + 4*n)))
        A(f"s_mov_b32 s{sT0}, {4*dcol}", f"s_mov_b32 s{sT1}, {4*dcol + 36864}",
          f"buffer_store_dwordx4 {vr(dst)}, v{PE}, {sr(S_OUT)}, s{sT0} offen{OST}", f"buffer_store_dwordx4 {vr(dst+4)}, v{PE}, {sr(S_OUT)}, s{sT1} offen{OST}")
    tst(52)
    redo = [f"s_mov_b32 s{sSRC}, s{sMS}", f"s_mov_b32 s{sT0}, {WS_G}", f"buffer_load_dword v{MX+1}, v{MX}, {sr(S_WS)}, s{sT0} offen sc1"]
    for j in range(8):
        redo.append(f"buffer_load_dwordx2 {ar(MLA+2*j, 2)}, v{VST}, {sr(S_WS)}, s{sSRC} offen sc1")
        if j < 7: redo.append(f"s_add_u32 s{sSRC}, s{sSRC}, {16*4*4096}")
    def pm_part():
        spin("M", 5, mALL, redo + [ld])
        A(WaitRegs([f"a{MLA+j}" for j in range(16)] + [f"v{MX+1}"]), f"s_cmp_eq_u32 s{sRM}, 1", f"s_cbranch_scc0 L_slow_M{par}", I(f"L_back_M{par}:"))
        A(f"s_cmp_lt_u32 s{sW}, 2", f"s_cselect_b32 s{sT0}, 1.0, 0", f"v_mul_f32 v{MX+1}, s{sT0}, v{MX+1}")
        A(skip_init(MS, MA, MA + 2, MX + 1))
        for j in range(4): A(mf(vr(MS), ar(EII), ar(MLA + 4*j), vr(MS)))
        A(f"s_and_b32 s{sT0}, s{sW}, 1", f"s_lshl_b32 s{sT0}, s{sT0}, 10", f"v_add_u32 v{MA}, s{sT0}, v{VST}",
          f"s_cmp_ge_u32 s{sW}, 2", f"s_cselect_b32 s{sT1}, 0, 2048", f"v_add_u32 v{MA+1}, s{sT1}, v{MA}")
        A(I(f"ds_write_b128 v{MA+1}, {vr(MS)}", tag="pmx"))
    v3 = opt.get("tailv") == "3"
    if pb is not None and v3:
        if not int(opt.get("kfa", 0)):
            A(WaitTag("pstA"), "s_barrier"); flagst(6)
        A(ld)
        A(pb)
        tst(53)
        cond = spin("PA", 6, mPAR, [])
        A(*cond, "s_cmp_eq_u64 vcc, -1", f"s_cbranch_scc0 L_slow_PA{par}", I(f"L_back_PA{par}:"))
        A(l8(64, 0))
        A(WaitTag("pstB"), "s_barrier"); flagst(7)
        tst(54)
        A(ld)
        finish(64, DA, 0)
        tst(55)
        pm_part()
        A(WaitTag("pmx"), "s_barrier", f"ds_read_b128 {vr(MX)}, v{MA}")
        for j in range(4): A(f"v_add_f32 v{MS+j}, v{MS+j}, v{MX+j}")
        A(f"s_cmp_lt_u32 s{sW}, 2", f"s_cselect_b32 s{sT0}, 0, 0x7ff00000", f"buffer_store_dwordx4 {vr(MS)}, v{ME}, {sr(S_OUT)}, s{sT0} offen{OST}")
        tst(56)
        cond = spin("PB", 7, mPAR, [])
        A(*cond, "s_cmp_eq_u64 vcc, -1", f"s_cbranch_scc0 L_slow_PB{par}", I(f"L_back_PB{par}:"))
        tst(57)
        A(l8(0, 8192))
        finish(0, DB, 128)
        return o
    if pb is not None:
        A(WaitTag("pstA"), "s_barrier"); flagst(6)
        A(ld)
        A(pb)
        pm_part()
        tst(53)
        cond = spin("PA", 6, mPAR, [])
        A(*cond, "s_cmp_eq_u64 vcc, -1", f"s_cbranch_scc0 L_slow_PA{par}", I(f"L_back_PA{par}:"))
        A(l8(64, 0))
        A(WaitTag("pstB", "pmx"), "s_barrier"); flagst(7)
        tst(54)
        A(ld)
        A(f"ds_read_b128 {vr(MX)}, v{MA}")
        srcA, srcB = 64, 0
    else:
        if not int(opt.get("kfa", 0)):
            A(WaitTag("pstA"), "s_barrier"); flagst(6)
        tst(53)
        pm_part()
        A(ld)
        A(WaitTag("pstB", "pmx"), "s_barrier"); flagst(7)
        tst(54)
        A(f"ds_read_b128 {vr(MX)}, v{MA}")
        cond = spin("PA", 6, mPAR, [])
        A(*cond, "s_cmp_eq_u64 vcc, -1", f"s_cbranch_scc0 L_slow_PA{par}", I(f"L_back_PA{par}:"))
        A(l8(32, 0)); A(ld)
        srcA, srcB = 32, 64
    tst(55)
    for j in range(4): A(f"v_add_f32 v{MS+j}, v{MS+j}, v{MX+j}")
    A(f"s_cmp_lt_u32 s{sW}, 2", f"s_cselect_b32 s{sT0}, 0, 0x7ff00000", f"buffer_store_dwordx4 {vr(MS)}, v{ME}, {sr(S_OUT)}, s{sT0} offen{OST}")
    finish(srcA, DA, 0)
    tst(56)
    cond = spin("PB", 7, mPAR, [])
    A(*cond, "s_cmp_eq_u64 vcc, -1", f"s_cbranch_scc0 L_slow_PB{par}", I(f"L_back_PB{par}:"))
    tst(57)
    A(l8(srcB, 8192))
    finish(srcB, DB, 128)
    return o


def build_variant(opt, par):
    ORD2 = int(opt.get('ord2', 0))
    stages, nS = build_stages(par, ORD2)
    nSP = 5 - nS
    NST = len(stages)
    V = f"v{par}"
    pro = []
    A = lambda *x: pro.extend(expand(list(x)))
    ts = opt.get("ts")
    A(f"s_mul_i32 s{sC0}, s{sSLICE}, 9", f"s_lshr_b32 s{sC0}, s{sC0}, 1", f"s_lshl_b32 s{sC0}, s{sC0}, 3")
    A(f"s_mul_i32 s{sW6}, s{sW}, 6144", f"s_mul_i32 s{sW3}, s{sW}, 3072")
    A(voff_B(D1, 10))
    A(f"s_and_b32 s{sT3}, s{sW}, 1")
    A(f"s_mul_i32 s{sOA}, s{sC0}, 1152", f"s_lshl_b32 s{sT0}, s{sT3}, 7", f"s_add_u32 s{sOA}, s{sOA}, s{sT0}")
    A(f"s_lshl_b32 s{sT0}, s{sTILE}, 7", f"s_lshl_b32 s{sT1}, s{sW}, 5", f"s_add_u32 s{sT0}, s{sT0}, s{sT1}", f"s_mul_i32 s{sXO}, s{sT0}, 1152")
    A(f"s_lshl_b32 s{sXL}, s{sW}, 12", f"s_add_u32 s{sXL}, s{sXL}, {XBASE}")
    if ts: A("s_memtime s[100:101]", "s_waitcnt lgkmcnt(0)", "v_mov_b32 v255, 0", "v_writelane_b32 v255, s100, 0", "s_memrealtime s[100:101]")
    A("s_waitcnt lgkmcnt(0)")
    if ts: A("v_writelane_b32 v255, s100, 61")
    A(srd(S_X, "s64", "s65", 2359296))
    A(f"s_cmp_lt_u32 s{sW}, 2")
    A(f"s_cselect_b32 s{S_B}, s70, s72", f"s_cselect_b32 s{S_B+1}, s71, s73", f"s_mov_b32 s{S_B+2}, 663552", f"s_mov_b32 s{S_B+3}, 0x20000")

    def dma_items(k):
        st = stages[k]
        items = [[x] for x in st.pre] + [[f"s_add_u32 m0, s{st.wq}, {slot_base(k)}"]]
        for j, (v, s_, so) in enumerate(st.pieces):
            if j == 4: items.append([f"s_add_u32 m0, s{st.wq}, {slot_base(k) + 4096}"])
            imm = 1024 * (j % 4)
            items.append([I(f"buffer_load_dwordx4 v{v}, {sr(s_)}, s{so} offen" + (f" offset:{imm}" if imm else "") + " lds", tag=f"st{k}")])
        return items
    def xdma(j):
        items = [[f"s_add_u32 s{sOB}, s{sXO}, {128*j}"], [f"s_add_u32 m0, s{sXL}, {16384*XPOS[j]}"]]
        for g in range(4):
            items.append([I(f"buffer_load_dwordx4 v{D1+g}, {sr(S_X)}, s{sOB} offen" + (f" offset:{1024*g}" if g else "") + " lds", tag=f"x{j}")])
        return items
    XV = TA; XV2 = 66
    def xreads(j):
        p_ = XPOS[j]
        return [I(f"ds_read_b128 {xfrag(2*j+h, n)}, v{(XV if p_ < 3 else XV2)+h} offset:{16384*(p_ % 3) + 2048*n}", tag=f"xr{j}") for h in range(2) for n in range(2)]

    PLRE, PLIM, PLDT = T, T + 1, T + 2
    PFL = opt.get("pf", " sc1")
    oob = hex(OOB)
    vm = []
    if opt.get("xpf", "0") == "1":
        vm += [[f"v_and_b32 v12, 15, {L}", f"v_mul_u32_u24 v12, 1152, v12", f"v_lshrrev_b32 v13, 4, {L}", f"v_lshlrev_b32 v13, 7, v13", f"v_add_u32 v12, v12, v13",
                f"s_add_u32 s100, s{sXO}, {16*1152*par}", f"buffer_load_dword a244, v12, {sr(S_X)}, s100 offen{PFL}"]]
        vm += [[f"buffer_load_dword a245, v12, {sr(S_X)}, s100 offen offset:512{PFL}"]]
        vm += [[f"v_mov_b32 v13, {oob}", f"v_cmp_gt_u32 vcc, 16, {L}", f"v_cndmask_b32 v12, v13, v12, vcc",
                f"buffer_load_dword a246, v12, {sr(S_X)}, s100 offen offset:1024{PFL}"]]
    vm += dma_items(0)
    vm += xdma(0) + xdma(1)
    vm += [[f"v_lshlrev_b32 v{VST}, 4, {L}", f"v_min_u32 v8, 47, {L}", f"v_lshlrev_b32 v{VCH}, 3, v8", f"v_add_u32 v9, s{sC0}, v8", "v_lshlrev_b32 v9, 1, v9"]
           + srd(S_P, "s66", "s67", 1152) + [f"buffer_load_ushort v{PLRE}, v9, {sr(S_P)}, 0 offen"]]
    vm += [srd(56, "s68", "s69", 1152) + [f"buffer_load_ushort v{PLIM}, v9, s[56:59], 0 offen"]]
    vm += [srd(60, "s78", "s79", 1152) + [f"buffer_load_ushort v{PLDT}, v9, s[60:63], 0 offen"]]
    vm += [srd(S_P, "s90", "s91", 1152) + [f"s_add_u32 m0, s{sW3}, {PRIV}", "s_nop 0", I(f"buffer_load_dwordx4 v{VST}, {sr(S_P)}, 0 offen lds", tag="gw")]]
    vm += [[I(f"buffer_load_dwordx4 v{VST}, {sr(S_P)}, 0 offen offset:1024 lds", tag="gw")]]
    vm1 = vm; vm = []
    vm += xdma(2) + xdma(3) + dma_items(1)
    if opt.get('x45', '1') == '1': vm += xdma(4) + xdma(5)
    vm2 = vm; vm = []
    PV = 12
    vm += [[f"s_cmp_lt_u32 s{sW}, 2", f"s_cselect_b32 s{S_W1}, s84, s86", f"s_cselect_b32 s{S_W1+1}, s85, s87", f"s_mov_b32 s{S_W1+2}, 5308416", f"s_mov_b32 s{S_W1+3}, 0x20000"]]
    if opt.get("nocpf") is None:
        vm += [[f"s_getpc_b64 s[100:101]", I(f"L_pc{par}:"),
                f"s_lshl_b32 s{sT0}, s{sTILE}, 2", f"s_add_u32 s{sT0}, s{sT0}, s{sW}", f"s_mul_i32 s{sT0}, s{sT0}, 1152",
                f"v_lshlrev_b32 v12, 7, {L}", f"v_add_u32 v12, s{sT0}, v12", f"v_min_u32 v12, CODE_SPAN{par}, v12", f"v_cmp_gt_u32 vcc, 9, {L}",
                "s_and_saveexec_b64 s[62:63], vcc", f"global_load_dword a247, v12, s[100:101]", "s_mov_b64 exec, s[62:63]"]]
    fullcol = 64 * par; halfcol = 512 if par == 0 else 0
    vm += [[f"s_lshl_b32 s{sT4}, s{sTILE}, 1", f"s_add_u32 s{sT4}, s{sT4}, s{sT3}"]]
    if opt.get("nopf") is None and opt.get("pfb", "1") == "1":
        vm += [[
                f"s_mul_i32 s100, s{sT4}, {14*128}", f"s_mul_i32 s{sT0}, s{sC0}, 1152", f"s_add_u32 s100, s100, s{sT0}",
                f"v_lshlrev_b32 v{PV}, 7, {L}", f"v_mov_b32 v{PV+1}, {oob}", f"v_cmp_gt_u32 vcc, 14, {L}", f"v_cndmask_b32 v{PV}, v{PV+1}, v{PV}, vcc",
                f"buffer_load_dword a248, v{PV}, {sr(S_B)}, s100 offen{PFL}"]]
    if opt.get("nopf") is None and opt.get("pfw", "1") == "1":
        vm += [[f"v_mul_u32_u24 v{PV}, 57, {L}", f"v_lshrrev_b32 v{PV}, 10, v{PV}", f"v_mul_u32_u24 v{PV+1}, 18, v{PV}", f"v_sub_u32 v{PV+1}, {L}, v{PV+1}",
                f"v_mul_u32_u24 v{PV+1}, 9216, v{PV+1}", f"v_mul_i32_i24 v{PV}, {fullcol - halfcol}, v{PV}", f"v_add_u32 v{PV}, {halfcol}, v{PV}",
                f"v_add_u32 v{PV}, v{PV}, v{PV+1}",
                f"v_mov_b32 v{PV+1}, {oob}", f"v_cmp_gt_u32 vcc, 36, {L}", f"v_cndmask_b32 v{PV}, v{PV+1}, v{PV}, vcc",
                f"s_mul_i32 s100, s{sT4}, {18*9216}", f"s_mul_i32 s{sT0}, s{sSLICE}, 576", f"s_add_u32 s100, s100, s{sT0}",
                f"buffer_load_dword a251, v{PV}, {sr(S_W1)}, s100 offen{PFL}"]]
    if opt.get("pfall"):
        which = opt["pfall"]
        Q = PV
        if "a" in which:
            vm += [[f"v_mul_u32_u24 v{Q}, 57, {L}", f"v_lshrrev_b32 v{Q}, 10, v{Q}", f"v_mul_u32_u24 v{Q+1}, 18, v{Q}", f"v_sub_u32 v{Q+1}, {L}, v{Q+1}",
                    f"v_mul_u32_u24 v{Q+1}, 9216, v{Q+1}", f"v_lshlrev_b32 v{Q}, 7, v{Q}", f"v_add_u32 v{Q}, {fullcol + 128}, v{Q}", f"v_add_u32 v{Q+1}, v{Q+1}, v{Q}",
                    f"v_mov_b32 v{Q}, {oob}", f"v_cmp_gt_u32 vcc, 54, {L}", f"v_cndmask_b32 v{Q+1}, v{Q}, v{Q+1}, vcc",
                    f"s_mul_i32 s100, s{sT4}, {18*9216}", f"s_mul_i32 s{sT0}, s{sSLICE}, 576", f"s_add_u32 s100, s100, s{sT0}",
                    f"buffer_load_dword a252, v{Q+1}, {sr(S_W1)}, s100 offen{PFL}"]]
        if "d" in which:
            vm += [srd(56, "s88", "s89", 5308416) + [f"v_lshlrev_b32 v{Q}, 7, {L}", f"v_mov_b32 v{Q+1}, {oob}", f"v_cmp_gt_u32 vcc, 41, {L}", f"v_cndmask_b32 v{Q}, v{Q+1}, v{Q}, vcc",
                    f"s_lshl_b32 s100, s{sTILE}, 2", f"s_add_u32 s100, s100, s{sW}", f"s_mul_i32 s100, s100, {41*128}", f"s_mul_i32 s{sT0}, s{sSLICE}, {288*1152}",
                    f"s_add_u32 s100, s100, s{sT0}", f"buffer_load_dword a246, v{Q}, s[56:59], s100 offen{PFL}"]]
        if "c" in which:
            vm += [[f"s_cmp_lt_u32 s{sW}, 2", f"s_cselect_b32 s56, s74, s76", f"s_cselect_b32 s57, s75, s77", "s_mov_b32 s58, 663552", "s_mov_b32 s59, 0x20000",
                    f"v_lshrrev_b32 v{Q}, 1, {L}", f"v_mul_u32_u24 v{Q}, 1152, v{Q}", f"v_and_b32 v{Q+1}, 1, {L}", f"v_mul_u32_u24 v{Q+1}, 92, v{Q+1}",
                    f"v_add_u32 v{Q}, v{Q}, v{Q+1}", f"v_mov_b32 v{Q+1}, {oob}", f"v_cmp_gt_u32 vcc, 36, {L}", f"v_cndmask_b32 v{Q}, v{Q+1}, v{Q}, vcc",
                    f"s_mul_i32 s100, s{sT4}, {18*1152}", f"s_lshl_b32 s{sT0}, s{sC0}, 1", f"s_add_u32 s100, s100, s{sT0}",
                    f"buffer_load_dword a245, v{Q}, s[56:59], s100 offen{PFL}"]]
    fill = []
    F = lambda *x: fill.extend(list(x))
    F(*base_R2(14))
    F(f"v_add_u32 v{XV}, s{sXL}, v{RB[0]}", f"v_add_u32 v{XV+1}, s{sXL}, v{RB[1]}", f"v_add_u32 v{XV2}, 49152, v{XV}", f"v_add_u32 v{XV2+1}, 49152, v{XV+1}")
    F(f"v_lshrrev_b32 v3, 4, {L}", f"v_lshlrev_b32 v{GWB}, 4, v3", f"v_add_u32 v{GWB}, s{sW3}, v{GWB}", f"v_add_u32 v{GWB}, {PRIV}, v{GWB}")
    F(*voff_W1half(D2, 14))
    F(*base_T64(P1, 14))
    F(f"s_mul_i32 s{sT0}, s{sSLICE}, 576", f"s_mul_i32 s{sT1}, s{sT3}, {48*9216}", f"s_add_u32 s{sW1F}, s{sT0}, s{sT1}", f"s_add_u32 s{sW1F}, s{sW1F}, {fullcol}",
      f"s_mul_i32 s{sT1}, s{sT3}, {96*9216}", f"s_add_u32 s{sW1H}, s{sT0}, s{sT1}", f"s_add_u32 s{sW1H}, s{sW1H}, {halfcol}")
    F([f"s_cmp_lt_u32 s{sW}, 2", f"s_cselect_b32 s{S_C}, s74, s76", f"s_cselect_b32 s{S_C+1}, s75, s77"], f"s_mov_b32 s{S_C+2}, 663552", f"s_mov_b32 s{S_C+3}, 0x20000")
    F(*srd(S_WD, "s88", "s89", 5308416))
    F(*srd(S_WS, "s96", "s97", WS_END + (1 << 19) * bool(ts)))
    F(f"s_mul_i32 s{sT0}, s{sSLICE}, 6144", f"s_add_u32 s{sT0}, s{sT0}, {WS_S}", [f"s_add_u32 s{S_S}, s96, s{sT0}", f"s_addc_u32 s{S_S+1}, s97, 0"],
      f"s_mov_b32 s{S_S+2}, 6144", f"s_mov_b32 s{S_S+3}, 0x20000")
    F(*srd(S_DBG, "s94", "s95", 256))
    nfill_early = len(fill)
    late = []
    G = lambda *x: late.extend(list(x))
    G(f"s_lshr_b32 s{sT0}, s{sSLICE}, 1", f"s_mul_i32 s{sT0}, s{sT0}, {576*1152}",
      f"s_mul_i32 s{sT1}, s{sT3}, {48*1152}", f"s_lshr_b32 s{sT2}, s{sW}, 1", f"s_lshl_b32 s{sT2}, s{sT2}, 7",
      f"s_add_u32 s{sWD2}, s{sT0}, s{sT1}", f"s_add_u32 s{sWD2}, s{sWD2}, s{sT2}",
      f"s_add_u32 s{sT0}, s{sT0}, {288*1152*par}", f"s_mul_i32 s{sT1}, s{sW}, {48*1152}", f"s_add_u32 s{sWD1}, s{sT0}, s{sT1}",
      f"s_mul_i32 s{sT1}, s{sW}, {24*1152}", f"s_add_u32 s{sWD1B}, s{sT0}, s{sT1}", f"s_add_u32 s{sWD1B}, s{sWD1B}, {192*1152}")
    G(f"s_add_u32 s{sC0P}, s{sC0}, {32 if par == 0 else -32 & 0xffffffff}")
    G(f"s_mul_i32 s{sT1}, s{sT3}, {64*1152}", f"s_lshl_b32 s{sT2}, s{sC0}, 1", f"s_add_u32 s{sC2}, s{sT1}, s{sT2}",
      f"s_lshl_b32 s{sT0}, s{sC0P}, 1", f"s_add_u32 s{sC2P}, s{sT1}, s{sT0}",
      f"s_mul_i32 s{sT1}, s{sT3}, {32*1152}", f"s_add_u32 s{sC1}, s{sT1}, s{sT2}")
    G(f"s_lshr_b32 s{sP8}, s{sSLICE}, 1", f"s_lshl_b32 s{sP8}, s{sP8}, 4", f"s_add_u32 s{sP8}, s{sP8}, s{sTILE}", f"s_lshl_b32 s{sP8}, s{sP8}, 2",
      f"s_add_u32 s{sP8}, s{sP8}, s{sW}", f"s_lshl_b32 s{sP8}, s{sP8}, 15", f"s_add_u32 s{sP8}, s{sP8}, {WS_P8 + 16384*par}")
    G(f"s_lshl_b32 s{sP16}, s{sSLICE}, 4", f"s_add_u32 s{sP16}, s{sP16}, s{sTILE}", f"s_lshl_b32 s{sP16}, s{sP16}, 2", f"s_add_u32 s{sP16}, s{sP16}, s{sW}",
      f"s_lshl_b32 s{sP16}, s{sP16}, 12", f"s_add_u32 s{sP16}, s{sP16}, {WS_P16}")
    G(f"s_lshl_b32 s{sHO}, s{sTILE}, 4", f"s_add_u32 s{sHP}, s{sHO}, s{sSLICE}", f"s_lshl_b32 s{sHP}, s{sHP}, 2", f"s_add_u32 s{sHP}, s{sHP}, s{sW}",
      f"s_mul_i32 s{sHO}, s{sHP}, {24*1024}", f"s_add_u32 s{sHO}, s{sHO}, {WS_H}",
      f"s_add_u32 s{sHP}, s{sHO}, {(4*24*1024 if par == 0 else -4*24*1024) & 0xffffffff}")
    G(f"s_bfm_b64 s[{sMASK}:{sMASK+1}], s{sTILE}, 0", f"s_not_b64 s[{sMASK}:{sMASK+1}], s[{sMASK}:{sMASK+1}]")
    for k, sm in ((1, sM1), (2, sM2), (3, sM3)):
        G([f"s_cmp_ge_u32 s{sW}, {k}", f"s_cselect_b32 s{sm}, 1.0, 0"])
    if opt.get("nopf") is None:
        Q = TS
        G(f"v_mul_u32_u24 v{Q}, 57, {L}", f"v_lshrrev_b32 v{Q}, 10, v{Q}", f"v_mul_u32_u24 v{Q+1}, 18, v{Q}", f"v_sub_u32 v{Q+1}, {L}, v{Q+1}",
          f"v_mul_u32_u24 v{Q+1}, 9216, v{Q+1}", f"v_lshlrev_b32 v{Q}, 7, v{Q}", f"v_add_u32 v{Q}, {fullcol + 128}, v{Q}", f"v_add_u32 v{Q+1}, v{Q+1}, v{Q}",
          f"v_mov_b32 v{Q+2}, {oob}", f"v_cmp_gt_u32 vcc, 54, {L}", f"v_cndmask_b32 v{Q+1}, v{Q+2}, v{Q+1}, vcc", f"v_accvgpr_write_b32 a253, v{Q+1}")
        G(f"v_lshlrev_b32 v{Q}, 7, {L}", f"v_cmp_gt_u32 vcc, 41, {L}", f"v_cndmask_b32 v{Q}, v{Q+2}, v{Q}, vcc", f"v_accvgpr_write_b32 a254, v{Q}")
        G(f"v_lshrrev_b32 v{Q}, 1, {L}", f"v_mul_u32_u24 v{Q}, 1152, v{Q}", f"v_and_b32 v{Q+1}, 1, {L}", f"v_mul_u32_u24 v{Q+1}, 92, v{Q+1}",
          f"v_add_u32 v{Q}, v{Q}, v{Q+1}", f"v_cmp_gt_u32 vcc, 36, {L}", f"v_cndmask_b32 v{Q}, v{Q+2}, v{Q}, vcc", f"v_accvgpr_write_b32 a255, v{Q}")
    LRE, LIM, DT, E1, R1, M_, A_ = T + 3, T + 4, T + 5, T + 6, T + 7, T + 20, T + 21
    TB = T + 8; CH = T + 22
    G(f"v_lshlrev_b32 v{LRE}, 16, v{PLRE}", f"v_lshlrev_b32 v{LIM}, 16, v{PLIM}", f"v_lshlrev_b32 v{DT}, 16, v{PLDT}")
    G(f"v_mul_f32 v{DT}, {hex(LOG2E)}, v{DT}", f"v_exp_f32 v{DT}, v{DT}", f"v_lshrrev_b32 v{CH}, 3, v{VCH}",
      f"v_cvt_pk_bf16_f32 v{DT}, v{DT}, v{DT}", f"v_lshlrev_b32 v{DT}, 16, v{DT}")
    G(f"v_mul_f32 v{E1}, v{DT}, v{LRE}", f"v_mul_f32 v{R1}, v{DT}, v{LIM}", f"v_mul_f32 v{E1}, {hex(LOG2E)}, v{E1}", f"v_mul_f32 v{R1}, {hex(INV2PI)}, v{R1}")
    def cpow(dre, dim, nsrc):
        return [f"v_mul_f32 v{M_}, {nsrc}, v{E1}", f"v_mul_f32 v{A_}, {nsrc}, v{R1}", f"v_exp_f32 v{M_}, v{M_}", f"v_fract_f32 v{A_}, v{A_}",
                f"v_cos_f32 v{dre}, v{A_}", f"v_sin_f32 v{dim}, v{A_}", f"v_mul_f32 v{dre}, v{M_}, v{dre}", f"v_mul_f32 v{dim}, v{M_}, v{dim}"]
    G(*cpow(TB, TB + 1, "1.0")); G(*cpow(TB + 2, TB + 3, "2.0"))
    G(f"s_mov_b32 s{sT0}, 0x40400000"); G(*cpow(TB + 4, TB + 5, f"s{sT0}"))
    G(*cpow(TB + 6, TB + 7, "4.0"))
    G(f"v_mov_b32 v{A4}, v{TB+6}", f"v_mov_b32 v{A4+1}, v{TB+7}")
    G(f"s_mov_b32 s{sT0}, 0x42000000"); G(*cpow(A32, A32 + 1, f"s{sT0}"))
    G(f"s_mov_b32 s{sT0}, 0x43000000"); G(*cpow(A128, A128 + 1, f"s{sT0}"))
    G(f"s_lshl_b32 s{sT0}, s{sW}, 5", f"v_cvt_f32_u32 v{T+23}, s{sT0}"); G(*cpow(PW, PW + 1, f"v{T+23}"))
    KC = T
    G(f"v_add_f32 v{M_}, -1.0, v{TB}", f"v_mul_f32 v{A_}, v{LRE}, v{LRE}", f"v_fmac_f32 v{A_}, v{LIM}, v{LIM}", f"v_rcp_f32 v{A_}, v{A_}",
      f"v_mul_f32 v{KC}, v{M_}, v{LRE}", f"v_fmac_f32 v{KC}, v{TB+1}, v{LIM}",
      f"v_mul_f32 v{KC+1}, v{TB+1}, v{LRE}", f"v_fma_f32 v{KC+1}, -v{M_}, v{LIM}, v{KC+1}",
      f"v_mul_f32 v{KC}, v{KC}, v{A_}", f"v_mul_f32 v{KC+1}, v{KC+1}, v{A_}")
    G(f"v_cmp_gt_u32 vcc, {32 + 8*par}, v{CH}", f"v_mul_u32_u24 v{CH}, 48, v{CH}", f"v_add_u32 v{CH}, {TAB}, v{CH}",
      f"v_cndmask_b32 v{KC}, 0, v{KC}, vcc", f"v_cndmask_b32 v{KC+1}, 0, v{KC+1}, vcc")
    G(f"v_mov_b32 v{KC+2}, 0", f"v_mov_b32 v{KC+3}, 0")
    G(f"ds_write_b128 v{CH}, {vr(TB)}", f"ds_write_b128 v{CH}, {vr(TB+4)} offset:16", f"ds_write_b128 v{CH}, {vr(KC)} offset:32")
    per = int(opt.get("per", 12))
    if opt.get("lateinpro", "0") == "1":
        A(interleave(vm1, fill, per)); A(interleave(vm2, late, int(opt.get("per2", 14)))); late = []
        A(interleave(vm, [], 0))
    else:
        if opt.get("pffirst", "0") == "1":
            A(interleave(vm, [], 0)); A(interleave(vm1 + vm2, fill, per))
        elif opt.get("pffirst", "0") == "2":
            n0 = len(dma_items(0)) + 2 * len(xdma(0))
            A(interleave(vm1[:n0], fill[:57], per)); A(interleave(vm, [], 0)); A(interleave(vm1[n0:] + vm2, fill[57:], per))
        else:
            A(interleave(vm1 + vm2 + vm, fill, per))

    units, ustage, u0 = [], [], []
    for k, st in enumerate(stages):
        u0.append(len(units))
        for un in st.units: units.append(un); ustage.append(k)
    NU = len(units); u0.append(NU)

    def read_ins(u):
        un = units[u]; k = ustage[u]
        o = []; d = afrag(u)
        for (op, nreg, (kind, idx), off) in un["reads"]:
            s_ = setof(k)
            if kind == "abs": b, o2 = idx, off
            else:
                b = {"R": lambda: RB[2*s_ + idx], "T64": lambda: T64B[2*s_ + idx], "T128": lambda: T128B[4*s_ + idx], "C": lambda: CB[s_]}[kind]()
                o2 = off + slot_rel(k)
            assert o2 < 65536
            o.append(I(f"{op} {ar(d, nreg)}, v{b}" + (f" offset:{o2}" if o2 else ""))); d += nreg
        return o

    DEPTH = int(opt.get('depth', 6)); WE = int(opt.get('we', 4)); WOFF = int(opt.get('woff', 1)); RR = int(opt.get('rr', 0))
    def stamp(i):
        op = "s_memrealtime" if ts == "5" and i not in (59,) else "s_memtime"
        return [I(f"{op} s[100:101]"), I("s_waitcnt lgkmcnt(0)"), I(f"v_writelane_b32 v255, s100, {i}")]
    kH = 5; kF = lambda c: 8 + 6 * c; kPA = 32; kPM = 40
    kWB = kF(0) + 1
    kHA = kF(3) + int(opt.get('kha', 2))
    kHB = int(opt.get('khb', 38))
    kHC = int(opt.get('khc', 43))
    FUSE = opt.get('fuse', '1') == '1'
    kFM = int(opt.get("kfm", 47))
    BTAG = {kFM: ('pstM',) if FUSE else (), 1: ('xr2',), 4: ('xr8', 'xr7', 'xr6'), kWB: ('wtot',), kHA: ('hstA',), kHB: ('hstB',), kHC: ('hstC',)}
    if int(opt.get('kfa', 0)): BTAG[int(opt['kfa'])] = BTAG.get(int(opt['kfa']), ()) + ('pstA',)
    slots = []; bar_mf = {}
    fs = [int(x) for x in opt.get("fs", "").split(",") if x]
    for u in range(NU):
        un = units[u]; fr = ar(afrag(u))
        rd = read_ins(u + DEPTH) if u + DEPTH < NU else []
        pre = []
        kn = ustage[u + DEPTH] if u + DEPTH < NU else None
        if kn is not None and u + DEPTH == u0[kn]:
            if opt.get("splitbar", "1") == "1" and slots:
                slots[-1].pre = slots[-1].pre + [WaitTag(f"st{kn}", *BTAG.get(kn, ()))]
                pre += [I("s_barrier")]
            else:
                pre += [WaitTag(f"st{kn}", *BTAG.get(kn, ())), I("s_barrier")]
            if ts == "1" or (ts == "4" and kn in (5, 32)) or (ts == "5" and kn in (1, 5, 8, 14, 20, 26, 32, 36, 40, 43, 47)) or (ts == "2" and kn in (1, 2, 3, 4, 5, 8, 14, 20, 26, 32, 35, 40, 43, 47)): pre += stamp(kn + 1)
            bar_mf[kn] = 2 * u
        if ts == "3":
            k_ = ustage[u]
            if k_ in fs and (u - u0[k_]) % 3 == 0 and (u - u0[k_]) // 3 < 8:
                j_ = (u - u0[k_]) // 3
                pre += [I(f"s_memtime s[{78+2*j_}:{79+2*j_}]")]
            if k_ - 1 in fs and u == u0[k_] + 2:
                base_ = 8 * fs.index(k_ - 1) + 1
                pre += [I("s_waitcnt lgkmcnt(0)")] + [I(f"v_writelane_b32 v255, s{78+2*j_}, {base_ + j_}") for j_ in range(8)]
        if (u + WOFF) % WE == 0 or u == 0:
            rg = []
            for x in range(u, min(u + (WE if (u + WOFF) % WE == 0 else WE - WOFF), NU)): rg += regs_of(ar(afrag(x)))
            pre += [WaitRegs(rg)]
        for n in range(2):
            d, a, b, c = un["mf"][n]
            txt = mf(d, a, fr, c) if un["swap"] else mf(d, fr, b, c)
            if RR and len(rd) == 2 and u % RR == RR - 2: post = rd if n == 0 else []
            else: post = rd[n:n + 1] if n < len(rd) else []
            slots.append(Slot(txt, pre if n == 0 else [], post))
    mend = lambda k: 2 * u0[k + 1] - 1
    mbeg = lambda k: 2 * u0[k]
    if ts: A(stamp(60))
    A(WaitTag("x0")); A(xreads(0)); A(WaitTag("x1")); A(xreads(1))
    A(WaitTag("st0", "gw"), "s_barrier")
    if ts: A(stamp(1))
    for u in range(DEPTH): A(read_ins(u))

    mXB = mend(4)
    XS = 2 * len(stages[0].units)
    sD = Stream("dma", 0)
    fr_of = lambda j: [r for h in range(2) for n in range(2) for r in regs_of(xfrag(2*j+h, n))]
    def xd(j, e, dl, after=None):
        if after is not None: sD.add([WaitRegs(fr_of(after))], e, dl)
        for it in xdma(j): sD.add(it, e, dl)
    def xr(j, e, dl):
        sD.add([WaitTag(f"x{j}")], e, dl)
        for r_ in xreads(j): sD.add(r_, e, dl)
    if opt.get('x45', '1') != '1':
        xd(4, 0, 8); xd(5, 0, 16)
    xr(2, 0, 14); xr(3, 0, 20)
    for it in dma_items(2): sD.add(it, 0, 34)
    xd(6, 10, bar_mf[1] + 2, after=3)
    for it in dma_items(3): sD.add(it, bar_mf[1], bar_mf[1] + 16)
    xr(4, bar_mf[1], bar_mf[1] + 22)
    xd(7, bar_mf[1] + 8, bar_mf[1] + 34, after=4)
    xr(5, bar_mf[1] + 12, bar_mf[1] + 38)
    xd(8, bar_mf[1] + 24, bar_mf[2] + 4, after=5)
    for it in dma_items(4): sD.add(it, bar_mf[2], bar_mf[2] + 20)
    xr(6, bar_mf[2], bar_mf[3] - 8); xr(7, bar_mf[2], bar_mf[3] - 2)
    for it in dma_items(5): sD.add(it, bar_mf[3], bar_mf[3] + 16)
    xr(8, bar_mf[3] + 4, bar_mf[4] - 2)
    xdone = bar_mf[4]
    prev_user = {}; dma_e = {}; dma_d = {}
    e_prev = bar_mf[3] + 16; d_prev = e_prev
    for k in range(NST):
        sl_ = slot_of(k)
        if k >= 6:
            e_ = bar_mf[prev_user[sl_] + 2] if sl_ in prev_user else bar_mf[4]
            if k in (7, 8): e_ = max(e_, bar_mf[4])
            e_ = max(e_, e_prev)
            lead = int(opt.get("lead", 75))
            if k < int(opt.get("krelax", 16)): d_ = max(min(bar_mf[k] - lead, bar_mf[k] - 2), min(d_prev + 14, bar_mf[k] - 2), e_ + 4)
            else: d_ = min(max(e_ + 44, d_prev + 14), bar_mf[k] - 2)
            d_ = min(d_, bar_mf[k] - 2)
            for it in dma_items(k): sD.add(it, e_, d_)
            dma_e[k], dma_d[k] = e_, d_
            e_prev, d_prev = e_, d_
        prev_user[sl_] = k
    clr = [[f"s_lshl_b32 s{sT0}, s{sSLICE}, 4", f"s_add_u32 s{sT0}, s{sT0}, s{sTILE}", f"s_lshl_b32 s{sT1}, s{sT0}, 7", f"s_add_u32 s{sT1}, s{sT1}, {WS_F}",
            f"s_cmp_eq_u32 s{sW}, 0", f"s_cselect_b32 s{sT2}, 1, 0"],
           f"v_cmp_gt_u32 vcc, s{sT2}, {L}", f"v_mov_b32 v{TS}, {oob}", f"v_mov_b32 v{TS+1}, s{sT1}", f"v_mov_b32 v{TS+2}, s{sT0}", f"v_mov_b32 v{TS+3}, 0",
           f"v_cndmask_b32 v{TS+1}, v{TS}, v{TS+1}, vcc", f"v_cndmask_b32 v{GWB+0 if False else TA+2}, v{TS}, v{TS+2}, vcc",
           I(f"buffer_store_dword v{TS+3}, v{TS+1}, {sr(S_WS)}, 0 offen sc1", tag="clr")]
    sP = Stream("setup", 1)
    for x in clr: sP.add(x, 0, 60)
    for x in late: sP.add(x, 0, mXB)
    sCl = Stream("clr", 1)
    sCl.add([I(f"v_mov_b32 v64, 1"), WaitTag("clr"), I(f"buffer_store_byte v64, v{TA+2}, {sr(S_DBG)}, 0 offen sc1")], bar_mf[2], bar_mf[3] + 10)
    sA = Stream("addr", 1)
    sA.extend(voff_W1full(D1, TA + 2), bar_mf[3] + 12, dma_e[kF(0)])
    common = base_list_T128(T128B, 8, TA, None)
    sA.extend(common, xdone + 1, bar_mf[kF(0)])
    for idx in range(6): sA.extend(t128_regs(idx, TA), xdone + 1, bar_mf[kF(0)])
    for idx in range(6, 12): sA.extend(t128_regs(idx, TA), mXB + 1, bar_mf[kF(0)])
    sA.extend(voff_Wd(D2, TA), max(dma_d[7], mXB + 2), dma_e[kPA])
    sA.extend([x.replace(f'v{TA+2}', f'v{CB[2]}') for x in base_C(CB[0], TA)], bar_mf[kF(0)] + 4, bar_mf[40])
    sA.extend(voff_C(D1, TA), dma_d[kPA - 1], dma_e[40])
    last_use = {}; next_use = {}
    for k in range(kF(0), kPA): last_use[setof(k)] = k
    for k in range(NST - 1, kPA - 1, -1):
        if stages[k].fmt.startswith("Wd"): next_use[setof(k)] = k
    sB = Stream("bases", 1)
    order = sorted(range(3), key=lambda s_: last_use[s_])
    sB.add(f"v_lshrrev_b32 v{TA+2}, 4, {L}", bar_mf[last_use[order[0]] + 1], bar_mf[next_use[order[0]]] - 20)
    sB.add(f"v_lshlrev_b32 v{TA+2}, 9, v{TA+2}", bar_mf[last_use[order[0]] + 1], bar_mf[next_use[order[0]]] - 20)
    for s_ in order:
        for mt in range(4):
            r_ = T128B[4 * s_ + mt]
            sB.add(f"v_sub_u32 v{r_}, v{r_}, v{TA+2}", bar_mf[last_use[s_] + 1], bar_mf[next_use[s_]])

    sE = Stream("epi", 2)
    HST = opt.get("hst", " sc1")
    def hstore(reg, K, n, tag):
        off = (K * 2 + n) * 1024
        return [I(f"s_add_u32 s{sHT}, s{sHO}, {off & ~4095}"),
                I(f"buffer_store_dwordx4 {vr(reg)}, v{VST}, {sr(S_WS)}, s{sHT} offen" + (f" offset:{off & 4095}" if off & 4095 else "") + HST, tag=tag)]
    def ffn_epi(buf, Ks, earliest, deadline, tag):
        for kk, K in enumerate(Ks):
            for n in range(2):
                o = []
                gs = [buf + (2 * kk + h) * 8 + 4 * n for h in range(2)]; us = [buf + (4 + 2 * kk + h) * 8 + 4 * n for h in range(2)]
                for h in range(2):
                    g, u_ = gs[h], us[h]
                    if opt.get("norho"):
                        for r in range(4): o += [f"v_max_f32 v{g+r}, 0, v{g+r}"]
                    else:
                        for r in range(4): o += [f"v_max_f32 v{g+r}, 0, v{g+r}", f"v_mul_f32 v{u_+r}, v{SF+n}, v{u_+r}"]
                    for r in range(4): o += [f"v_mul_f32 v{g+r}, v{g+r}, v{u_+r}"]
                d = us[0]
                o += [f"v_cvt_pk_bf16_f32 v{d}, v{gs[0]}, v{gs[0]+1}", f"v_cvt_pk_bf16_f32 v{d+1}, v{gs[0]+2}, v{gs[0]+3}",
                      f"v_cvt_pk_bf16_f32 v{d+2}, v{gs[1]}, v{gs[1]+1}", f"v_cvt_pk_bf16_f32 v{d+3}, v{gs[1]+2}, v{gs[1]+3}"]
                h_ = AH + 8 * K + 4 * n
                o += [f"v_accvgpr_write_b32 a{h_+j}, v{d+j}" for j in range(4)]
                sE.extend(o, earliest, deadline)
                sE.add(hstore(d, K, n, tag), earliest, deadline)
    ffn_epi(ACC[0], [8], mend(kH + 2) + 4, mbeg(kF(1)), "hstA")
    ffn_epi(ACC[1], [0, 1], mend(kF(0) + 5) + 4, mbeg(kF(2)), "hstA")
    ffn_epi(ACC[0], [2, 3], mend(kF(1) + 5) + 4, mbeg(kF(3)) - 60, "hstA")
    ffn_epi(ACC[1], [4, 5], mend(kF(2) + 5) + 4, mbeg(kPA), "hstB")
    ffn_epi(ACC[0], [6, 7], mend(kF(3) + 5) + 4, mbeg(35) - 4, "hstB")
    PST = opt.get("pst", " sc1")
    kAend = 48 if ORD2 == 0 else 47
    kFA = int(opt.get('kfa', 0))
    DLP = {2: bar_mf[kFM - 2] if FUSE else None, 0: (bar_mf[kFA - 1] if kFA else None), 1: None}
    for p, k1 in ((2, 42), (0, kAend), (1, 50)):
        nm = 8 if p < 2 else 4
        last = mend(k1)
        sreg = sP8 if p < 2 else sP16
        for m in range(nm):
            if p < 2:
                a = ACC[(p + 1) & 1] + m * 8
                o = []
            else:
                a = T + 8 * (m & 1)
                o = [f"v_accvgpr_read_b32 v{a+j}, a{PMACC[m]+j}" for j in range(8)]
            o += [f"v_cvt_pk_bf16_f32 v{a}, v{a}, v{a+1}", f"v_cvt_pk_bf16_f32 v{a+1}, v{a+2}, v{a+3}",
                  f"v_cvt_pk_bf16_f32 v{a+2}, v{a+4}, v{a+5}", f"v_cvt_pk_bf16_f32 v{a+3}, v{a+6}, v{a+7}"]
            sE.extend(o, last + 4, DLP[p])
            imm = 1024 * (m % 4)
            sE.add(f"buffer_store_dwordx4 {vr(a)}, v{VST}, {sr(S_WS)}, s{sreg} offen" + (f" offset:{imm}" if imm else "") + PST, last + 4, DLP[p])
            sE.q[-1][0][0].tag = "pst" + "ABM"[p]
            if p == 1:
                for it in list(sE.q)[-(len(o) + 1):]:
                    for x in it[0]: x.pbepi = True
            if m % 4 == 3:
                sE.add(f"s_add_u32 s{sreg}, s{sreg}, 4096", last + 4, DLP[p])
                if p == 1: sE.q[-1][0][0].pbepi = True

    sS = Stream("ssm", 3)
    e = [mXB + 4]
    add = lambda x, deadline=None: sS.add(x, e[0], deadline)
    def adds(lst, **kw):
        for x in lst: add(x, **kw)
    dlG = mend(kH + 2)
    G0, G1, Z = T, T + 1, T + 2
    adds([f"v_lshrrev_b32 v{G0}, 4, {L}", f"v_lshlrev_b32 v{G0}, 4, v{G0}", f"v_add_u32 v{G0}, s{sW3}, v{G0}", f"v_add_u32 v{G0}, {PRIV}, v{G0}"])
    for n in range(2): add(f"ds_write_b128 v{G0}, {vr(LG+4*n)} offset:{64*n}")
    adds([f"v_and_b32 v{G1}, 31, {L}", f"v_lshlrev_b32 v{G1}, 2, v{G1}", f"v_add_u32 v{G1}, s{sW3}, v{G1}", f"v_add_u32 v{G1}, {PRIV}, v{G1}",
          f"ds_read_b32 v{Z}, v{G1}"])
    TA1 = T + 8
    adds([f"v_and_b32 v{VT}, 15, {L}", f"v_mul_u32_u24 v{VT}, 48, v{VT}", f"v_add_u32 v{VT}, {TAB}, v{VT}"])
    for b in range(nS): add(f"ds_read_b64 {vr(TA1+2*b, 2)}, v{VT} offset:{b*768}")
    adds([f"v_cvt_pk_bf16_f32 v{Z}, v{Z}, v{Z}", f"v_lshlrev_b32 v{Z}, 16, v{Z}", f"v_mul_f32 v{Z}, {hex(LOG2E ^ 0x80000000)}, v{Z}", f"v_exp_f32 v{Z}, v{Z}",
          f"v_lshrrev_b32 v{VE}, 4, {L}",
          f"v_add_f32 v{Z}, 1.0, v{Z}", f"v_rcp_f32 v{Z}, v{Z}", f"v_mul_u32_u24 v{VE}, 384, v{VE}",
          f"v_cvt_pk_bf16_f32 v{Z}, v{Z}, v{Z}", f"v_lshlrev_b32 v{Z}, 16, v{Z}",
          f"v_sub_f32 v{T+3}, 1.0, v{Z}", f"v_cvt_pk_bf16_f32 v{T+3}, v{T+3}, v{T+3}", f"v_lshlrev_b32 v{T+3}, 16, v{T+3}", f"v_add_f32 v{T+4}, v{Z}, v{Z}",
          f"ds_write_b32 v{G1}, v{T+3} offset:128", f"ds_write_b32 v{G1}, v{T+4} offset:256", f"ds_write_b32 v{G1}, v{Z} offset:384"])
    if par == 0:
        add([f"s_lshl_b32 s{sT0}, s{sTILE}, 7", f"s_lshl_b32 s{sT1}, s{sW}, 5", f"s_add_u32 s{sT0}, s{sT0}, s{sT1}", f"s_lshl_b32 s{sT0}, s{sT0}, 2",
             f"s_add_u32 s{sT0}, s{sT0}, {WS_G}", f"s_cmp_eq_u32 s{sSLICE}, 0", f"s_cselect_b32 s{sT1}, 32, 0"])
        adds([f"v_lshlrev_b32 v{T+5}, 2, {L}", f"v_cmp_gt_u32 vcc, s{sT1}, {L}", f"v_mov_b32 v{T+6}, {oob}",
              f"v_cndmask_b32 v{T+5}, v{T+6}, v{T+5}, vcc", I(f"buffer_store_dword v{Z}, v{T+5}, {sr(S_WS)}, s{sT0} offen sc1", tag="sst")])
    adds([f"v_and_b32 v{T+7}, 15, {L}", f"v_lshlrev_b32 v{T+7}, 2, v{T+7}", f"v_add_u32 v{T+7}, s{sW3}, v{T+7}", f"v_add_u32 v{T+7}, {PRIV}, v{T+7}"])
    for n in range(2): add(f"ds_read_b32 v{SF+n}, v{T+7} offset:{128+64*n}")
    for n in range(2): add(f"ds_read_b128 {vr(LG+4*n)}, v{G0} offset:{256+64*n}")
    for n in range(2): add(f"ds_read_b32 v{T+5+n}, v{T+7} offset:{384+64*n}")
    adds([f"v_and_b32 v{VE+1}, 15, {L}", f"v_lshlrev_b32 v{VE+1}, 3, v{VE+1}", f"v_add_u32 v{VE}, v{VE}, v{VE+1}", f"v_add_u32 v{VE}, s{sW3}, v{VE}",
          f"v_add_u32 v{VE}, {PRIV}, v{VE}", f"v_add_u32 v{VE+1}, 1536, v{VE}"])
    add(WaitRegs([f"v{SF}", f"v{SF+1}"] + regs_of(vr(LG, 8))), deadline=dlG)
    adds([f"v_accvgpr_write_b32 a249, v{T+5}", f"v_accvgpr_write_b32 a250, v{T+6}"])
    for r in range(1, 4):
        for b in range(nS):
            are, aim = TA1 + 2 * b, TA1 + 2 * b + 1
            for n in range(2):
                R, Im = xb(b, 0, n), xb(b, 1, n)
                adds([f"v_fmac_f32 v{R+r}, v{are}, v{R+r-1}", f"v_fmac_f32 v{Im+r}, v{are}, v{Im+r-1}"])
            for n in range(2):
                R, Im = xb(b, 0, n), xb(b, 1, n)
                adds([f"v_fma_f32 v{R+r}, -v{aim}, v{Im+r-1}, v{R+r}", f"v_fmac_f32 v{Im+r}, v{aim}, v{R+r-1}"])
    for b in range(nS):
        for n in range(2):
            add(f"ds_write2_b32 v{VE+n}, v{xb(b,0,n)+3}, v{xb(b,1,n)+3} offset0:{32*b} offset1:{32*b+1}")
    adds([f"v_add_u32 v{VP}, s{sW3}, v{VCH}", f"v_add_u32 v{VP}, {PRIV}, v{VP}"])
    for m in range(8): add(f"ds_read_b64 {vr(T+2*m, 2)}, v{VP} offset:{384*m}")
    add([f"s_mul_i32 s{sT0}, s{sW}, 384", f"s_add_u32 s{sT0}, s{sT0}, {WTOT}"]); add(f"v_add_u32 v{TS}, s{sT0}, v{VCH}")
    for m in range(1, 8): adds(cmul_acc(T + 2*m, T + 2*m + 1, A4, A4 + 1, T + 2*m - 2, T + 2*m - 1))
    add(I(f"ds_write_b64 v{TS}, {vr(T+14, 2)}", tag="wtot"), deadline=bar_mf[kWB] - 2)
    e[0] = bar_mf[kWB]
    adds([f"v_add_u32 v{TS}, {WTOT}, v{VCH}"])
    for m in range(4): add(f"ds_read_b64 {vr(T+2*m, 2)}, v{TS} offset:{384*m}")
    add([f"s_mul_i32 s{sT0}, s{sTILE}, 384", f"s_cmp_eq_u32 s{sW}, 0", f"s_cselect_b32 s{sT1}, 48, 0"])
    adds([f"v_add_u32 v{TS+1}, s{sT0}, v{VCH}", f"v_cmp_gt_u32 vcc, s{sT1}, {L}", f"v_mov_b32 v{TS+2}, {oob}"])
    for m in range(1, 4): adds(cmul_acc(T + 2*m, T + 2*m + 1, A32, A32 + 1, T + 2*m - 2, T + 2*m - 1))
    adds([f"v_cndmask_b32 v{TS+1}, v{TS+2}, v{TS+1}, vcc"])
    add(I(f"buffer_store_dwordx2 {vr(T+6, 2)}, v{TS+1}, {sr(S_S)}, 0 offen sc1", tag="sst"))
    XF, XP, XT = P1 + 3, P1 + 4, P1 + 5
    eX = bar_mf[kF(0)] + 4
    sX_ = Stream("xch", 2)
    sX_.add([f"s_lshl_b32 s{sQ+1}, s{sSLICE}, 4", f"s_add_u32 s{sQ+1}, s{sQ+1}, s{sTILE}", f"s_lshl_b32 s{sQ+1}, s{sQ+1}, 7", f"s_add_u32 s{sQ+1}, s{sQ+1}, {WS_F}",
             f"s_cmp_eq_u32 s{sW}, 0", f"s_cselect_b32 s{sQ+2}, 1, 0"], eX, bar_mf[kWB] + 8)
    for x in [f"v_mov_b32 v{XF}, s{sQ+1}", f"v_cmp_gt_u32 vcc, s{sQ+2}, {L}", f"v_mov_b32 v{XT}, {oob}", f"v_cndmask_b32 v{XF}, v{XT}, v{XF}, vcc",
              [f"s_sub_u32 s{sQ+1}, s{sQ+1}, {WS_F}", f"s_xor_b32 s{sQ+1}, s{sQ+1}, 2048", f"s_add_u32 s{sQ+1}, s{sQ+1}, {WS_F}"], f"v_mov_b32 v{XP}, s{sQ+1}"]:
        sX_.add(x, eX, bar_mf[kWB] + 8)
    add([I(f"v_mov_b32 v{TS+3}, 1"), WaitTag("sst"), I(f"buffer_store_dword v{TS+3}, v{XF}, {sr(S_WS)}, 0 offen sc1")])
    slow = []
    def poll(emit, name, areg, dreg, cond_instrs, cnt, dbg=False):
        ld = f"buffer_load_ubyte v{dreg}, v{areg}, {sr(S_DBG)}, 0 offen sc1" if dbg else f"buffer_load_dword v{dreg}, v{areg}, {sr(S_WS)}, 0 offen sc1"
        emit(ld, False)
        emit([I(x) for x in cond_instrs] + [I("s_cmp_eq_u64 vcc, -1"), I(f"s_cbranch_scc0 L_slow_{name}{par}"), I(f"L_back_{name}{par}:")], True)
        slow.extend([I(f"L_slow_{name}{par}:"), I(f"s_mov_b32 s{cnt}, 0"), I(f"L_slowl_{name}{par}:"), I("s_sleep 1"), I(ld), I("s_waitcnt vmcnt(0)")]
                    + [I(cond_instrs[0]), I("s_nop 4")] + [I(x) for x in cond_instrs[1:]]
                    + [I("s_cmp_eq_u64 vcc, -1"), I(f"s_cbranch_scc1 L_back_{name}{par}"), I(f"s_add_u32 s{cnt}, s{cnt}, 1"), I(f"s_cmp_lt_u32 s{cnt}, 0x40000"),
                       I(f"s_cbranch_scc1 L_slowl_{name}{par}"), I(f"s_branch L_back_{name}{par}")])
    kPoll = int(opt.get("kpoll", kF(1)))
    pace_from = [len(sS.q)]
    e[0] = bar_mf[kPoll]
    adds([[f"s_lshl_b32 s{sT0}, s{sSLICE}, 4", f"s_sub_u32 s{sT1}, s{sTILE}, 256"],
          f"v_add_u32 v{TS}, s{sT0}, {L}", f"v_lshlrev_b32 v{TS+2}, 4, {L}", f"v_add_u32 v{TS+2}, s{sT1}, v{TS+2}",
          f"v_cmp_gt_u32 vcc, 16, {L}", f"v_cndmask_b32 v{TS}, v{TS+2}, v{TS}, vcc",
          f"v_mov_b32 v{TS+2}, {oob}", f"v_cmp_gt_u32 vcc, 32, {L}", f"v_cndmask_b32 v{TS}, v{TS+2}, v{TS}, vcc"])
    poll(lambda x, chk: add(x), "C", TS, TS + 1, [f"v_cmp_ne_u32 vcc, 0, v{TS+1}", f"s_or_b32 vcc_hi, vcc_hi, -1"], sT2, dbg=True)
    adds([[f"s_lshl_b32 s{sT0}, s{sSLICE}, 11", f"s_add_u32 s{sT0}, s{sT0}, {WS_F}"], f"v_lshlrev_b32 v{TS}, 7, {L}", f"v_add_u32 v{TS}, s{sT0}, v{TS}",
          f"v_cmp_gt_u32 vcc, 16, {L}", f"v_mov_b32 v{TS+2}, {oob}", f"v_cndmask_b32 v{TS}, v{TS+2}, v{TS}, vcc"])
    poll(lambda x, chk: add(x), "S", TS, TS + 1, [f"v_cmp_ne_u32 vcc, 0, v{TS+1}", f"s_or_b64 vcc, vcc, s[{sMASK}:{sMASK+1}]"], sT2)
    add([f"s_mul_i32 s{sT0}, s{sTILE}, 384"]); add(f"v_add_u32 v{TS}, s{sT0}, v{VCH}")
    for idx, k in enumerate(range(15, 7, -1)):
        t_ = TS + 1 + (idx & 1)
        add(f"v_subrev_u32 v{t_}, {k*384}, v{TS}")
        add(f"buffer_load_dwordx2 {vr(T+2*idx, 2)}, v{t_}, {sr(S_S)}, 0 offen sc1")
    CC = TS + 2
    for m in range(1, 8): adds(cmul_acc(T + 2*m, T + 2*m + 1, A128, A128 + 1, T + 2*m - 2, T + 2*m - 1))
    adds([f"v_mov_b32 v{CC}, v{T+14}", f"v_mov_b32 v{CC+1}, v{T+15}"])
    for idx, k in enumerate(range(7, 0, -1)):
        add(f"v_subrev_u32 v{TS+1}, {k*384}, v{TS}")
        add(f"buffer_load_dwordx2 {vr(T+2*idx, 2)}, v{TS+1}, {sr(S_S)}, 0 offen sc1")
    adds(cmul_acc(T, T + 1, A128, A128 + 1, CC, CC + 1))
    for m in range(1, 7): adds(cmul_acc(T + 2*m, T + 2*m + 1, A128, A128 + 1, T + 2*m - 2, T + 2*m - 1))
    adds([f"v_mov_b32 v{CC}, v{T+12}", f"v_mov_b32 v{CC+1}, v{T+13}"])
    for k in (3, 2, 1):
        add([f"s_sub_u32 s{sT0}, s{sW}, {k}", f"s_max_i32 s{sT0}, s{sT0}, 0", f"s_mul_i32 s{sT0}, s{sT0}, 384", f"s_add_u32 s{sT0}, s{sT0}, {WTOT}"])
        add(f"v_add_u32 v{TS}, s{sT0}, v{VCH}")
        add(f"ds_read_b64 {vr(T+2*(3-k), 2)}, v{TS}")
    for k, sm in ((3, sM3), (2, sM2), (1, sM1)):
        j = T + 2 * (3 - k)
        adds([f"v_mul_f32 v{j}, s{sm}, v{j}", f"v_mul_f32 v{j+1}, s{sm}, v{j+1}"])
    adds(cmul_acc(T + 2, T + 3, A32, A32 + 1, T, T + 1)); adds(cmul_acc(T + 4, T + 5, A32, A32 + 1, T + 2, T + 3))
    adds(cmul_acc(T + 4, T + 5, PW, PW + 1, CC, CC + 1))
    adds([f"v_mov_b32 v{CC}, v{T+4}", f"v_mov_b32 v{CC+1}, v{T+5}"])
    for m in range(7): add(f"ds_read_b64 {vr(T+2*m, 2)}, v{VP} offset:{384*m}")
    add(f"ds_write_b64 v{VP}, {vr(CC, 2)}")
    adds(cmul_acc(T, T + 1, A4, A4 + 1, CC, CC + 1))
    add(f"ds_write_b64 v{VP}, {vr(T, 2)} offset:384")
    for m in range(1, 7):
        adds(cmul_acc(T + 2*m, T + 2*m + 1, A4, A4 + 1, T + 2*m - 2, T + 2*m - 1))
        add(f"ds_write_b64 v{VP}, {vr(T+2*m, 2)} offset:{384*(m+1)}")
    VW, VR = TS, TS + 1
    adds([f"v_and_b32 v{VW}, 15, {L}", f"v_lshlrev_b32 v{VW}, 5, v{VW}", f"v_lshrrev_b32 v{VR}, 4, {L}", f"v_lshlrev_b32 v{VR}, 3, v{VR}",
          f"v_add_u32 v{VW}, v{VW}, v{VR}", f"v_add_u32 v{VW}, s{sW3}, v{VW}", f"v_add_u32 v{VW}, {PRIV}, v{VW}",
          f"v_lshlrev_b32 v{VR}, 3, {L}", f"v_add_u32 v{VR}, s{sW3}, v{VR}", f"v_add_u32 v{VR}, {PRIV}, v{VR}"])
    dlS = bar_mf[40] - int(opt.get('dls', 10))
    for n in range(2):
        for b in range(nS): add(f"ds_read_b64 {vr(T+2*b, 2)}, v{VE+n} offset:{128*b}")
        for b in range(nS):
            TBL = T + 6
            adds([f"ds_read_b128 {vr(TBL)}, v{VT} offset:{b*768}", f"ds_read_b128 {vr(TBL+4)}, v{VT} offset:{b*768+16}", f"ds_read_b64 {vr(TBL+8, 2)}, v{VT} offset:{b*768+32}"])
            R, Im = xb(b, 0, n), xb(b, 1, n)
            cre, cim = T + 2 * b, T + 2 * b + 1
            for r in range(4): adds(cmul_acc(R + r, Im + r, TBL + 2*r, TBL + 2*r + 1, cre, cim))
            kr, ki, tt = TBL + 8, TBL + 9, TS + 2
            for r in range(4):
                t_ = tt + (r & 1)
                adds([f"v_mul_f32 v{t_}, v{kr}, v{R+r}", f"v_fma_f32 v{t_}, -v{ki}, v{Im+r}, v{t_}",
                      f"v_mul_f32 v{Im+r}, v{kr}, v{Im+r}", f"v_fmac_f32 v{Im+r}, v{ki}, v{R+r}",
                      f"v_mul_f32 v{R+r}, v{LG+4*n+r}, v{t_}", f"v_mul_f32_e64 v{Im+r}, -v{LG+4*n+r}, v{Im+r}"])
            adds([f"v_cvt_pk_bf16_f32 v{R}, v{R}, v{R+1}", f"v_cvt_pk_bf16_f32 v{R+1}, v{R+2}, v{R+3}",
                  f"v_cvt_pk_bf16_f32 v{Im}, v{Im}, v{Im+1}", f"v_cvt_pk_bf16_f32 v{Im+1}, v{Im+2}, v{Im+3}"])
            so = 1536 * n
            adds([f"ds_write_b64 v{VW}, {vr(R, 2)} offset:{so}", f"ds_write_b64 v{VW}, {vr(Im, 2)} offset:{so+512}",
                  f"ds_read_b64_tr_b16 {vr(R, 2)}, v{VR} offset:{so}", f"ds_read_b64_tr_b16 {vr(R+2, 2)}, v{VR} offset:{so+512}"])
    for n in range(2):
        for b in range(nS):
            off = ((9 + b) * 2 + n) * 1024
            add([I(f"s_add_u32 s{sT0}, s{sHO}, {off & ~4095}"),
                 I(f"buffer_store_dwordx4 {vr(xb(b,0,n))}, v{VST}, {sr(S_WS)}, s{sT0} offen" + (f" offset:{off & 4095}" if off & 4095 else "") + HST, tag="hstC")],
                deadline=dlS)
    def hload(K, n):
        off = (K * 2 + n) * 1024
        return [I(f"s_add_u32 s{sQ+1}, s{sHP}, {off & ~4095}"),
                I(f"buffer_load_dwordx4 {ar(hp_reg(K) + 4*n)}, v{VST}, {sr(S_WS)}, s{sQ+1} offen" + (f" offset:{off & 4095}" if off & 4095 else "") + " sc1")]
    sFl = Stream("flag", 1)
    def flag(val, k):
        sFl.add(f"v_mov_b32 v{XT}, {val}", bar_mf[k], bar_mf[k] + 6)
        sFl.add(f"buffer_store_dword v{XT}, v{XF}, {sr(S_WS)}, 0 offen sc1", bar_mf[k], bar_mf[k] + 10)
    def xpoll(name, val, t_load, t_chk, Ks, dl):
        tt = [t_load]
        def emit(x, chk):
            if chk: sX_.add(x, t_chk, t_chk + 10)
            else: sX_.add(x, t_load, t_load + 10)
        poll(emit, name, XP, GWB, [f"v_cmp_le_u32 vcc, {val}, v{GWB}"], sQ + 2)
        for K in Ks:
            for n in range(2): sX_.add(hload(K, n), t_chk, dl)
    flag(2, kHA)
    needA = mbeg(43); needB = mbeg(45 if ORD2 == 0 else 44); needC = mbeg(48 if ORD2 == 0 else 47)
    firstA = [8, 0, 1, 2, 3] if par == 0 else [0, 1, 2, 3, 8]
    tA = int(opt.get("tA", 190)); tB = int(opt.get("tB", 150))
    kA0 = int(opt.get("ka0", 36 if ORD2 == 0 else 33))
    xpoll("A", 2, mbeg(kA0), mbeg(kA0) + 90, firstA, mbeg(kA0 + 4))
    flag(3, kHB)
    xpoll("B", 3, needB - tB - 80, needB - tB, [4, 5, 6, 7], needB - 70)
    flag(4, kHC)
    if FUSE: flag(5, kFM)
    if FUSE and kFA: flag(6, kFA)
    xpoll("D", 4, needC - 120 - 70, needC - 120, [9 + b for b in range(nSP)], needC - 70)

    sW_ = Stream("warm", 5)
    if opt.get("nopf") is None:
        PVL = TA + 2
        def pf(e_, areg, sset, srd_, dst):
            sW_.add(f"v_accvgpr_read_b32 v{PVL}, a{areg}", e_, e_ + 30)
            for x in sset: sW_.add(x, e_, e_ + 30)
            sW_.add(f"buffer_load_dword a{dst}, v{PVL}, {sr(srd_)}, s{sQ} offen{PFL}", e_, e_ + 40)
        t_a = int(opt.get("pf_a", mbeg(kH) + 30))
        which = opt.get("pfall", "")
        if "a" not in which: pf(t_a, 253, [f"s_mul_i32 s{sQ}, s{sT4}, {18*9216}", f"s_mul_i32 s{sQ+3}, s{sSLICE}, 576", f"s_add_u32 s{sQ}, s{sQ}, s{sQ+3}"], S_W1, 252)
        t_d = int(opt.get("pf_d", mbeg(kF(1)) + 20))
        if "d" not in which: pf(t_d, 254, [f"s_lshl_b32 s{sQ}, s{sTILE}, 2", f"s_add_u32 s{sQ}, s{sQ}, s{sW}", f"s_mul_i32 s{sQ}, s{sQ}, {41*128}",
                      f"s_mul_i32 s{sQ+3}, s{sSLICE}, {288*1152}", f"s_add_u32 s{sQ}, s{sQ}, s{sQ+3}"], S_WD, 248)
        if "c" not in which: pf(t_d + 100, 255, [f"s_mul_i32 s{sQ}, s{sT4}, {18*1152}", f"s_lshl_b32 s{sQ+3}, s{sC0}, 1", f"s_add_u32 s{sQ}, s{sQ}, s{sQ+3}"], S_C, 251)
    pace(sS, pace_from[0], bar_mf[kPoll], dlS - 10)
    streams = [sD, sP, sCl, sA, sB, sE, sS, sX_, sFl, sW_]
    if FUSE:
        sR, sR2 = reduce_prep(opt, par, bar_mf[46], bar_mf[int(opt.get("kmchk", 49))] + int(opt.get("tmchk", 0)), mend(NST - 1))
        streams += [sR, sR2]
    strip = opt.get("strip", "")
    if "e" in strip: streams = [x for x in streams if x not in (sE, sS, sX_, sFl, sW_, sCl)]; slow = []
    if "S" in strip: streams = [x for x in streams if x not in (sS, sX_, sFl, sW_, sCl)]; slow = []
    if "E" in strip: streams = [x for x in streams if x is not sE]
    if "h" in strip: sE.q = deque(it for it in sE.q if not any(x.kind == "vm_st" for x in it[0]))
    if "X" in strip: streams = [x for x in streams if x not in (sX_, sFl)]; slow = [x for x in slow if False]
    if "b" in strip:
        for sl in slots: sl.pre = [x for x in sl.pre if x.kind != "barrier"]
    if "d" in strip:
        keep = deque(it for it in sD.q if not any(getattr(x, "tag", "") and str(x.tag).startswith("st") and int(x.tag[2:]) > 8 for x in it[0]))
        sD.q = keep
    if "r" in strip:
        for sl in slots[400:]: sl.post = []
    fw.DMA_GAP = int(opt.get('dgap', 7)); fw.DMA_GAP_FROM = mXB - 20
    body, rest, stats = schedule(slots, streams)
    tail = rest
    if FUSE:
        pb = [x for x in rest if getattr(x, "pbepi", False)]
        others = [x for x in rest if not getattr(x, "pbepi", False)]
        if opt.get("tailv", "2") in ("2", "3"): tail = others + final_reduce(opt, par, XF, XT, GWB, slow, pb)
        else: tail = rest + final_reduce(opt, par, XF, XT, GWB, slow, None)
    if ts:
        tail = tail + stamp(58) + [I("s_waitcnt vmcnt(0)")] + stamp(59) + [I("s_memrealtime s[100:101]"), I("s_waitcnt lgkmcnt(0)"), I("v_writelane_b32 v255, s100, 62")]
        tail += expand([f"s_lshl_b32 s{sT0}, s2, 2", f"s_add_u32 s{sT0}, s{sT0}, s{sW}", f"s_lshl_b32 s{sT0}, s{sT0}, 8", f"s_add_u32 s{sT0}, s{sT0}, {WS_END}",
                        f"v_lshlrev_b32 v1, 2, {L}", f"buffer_store_dword v255, v1, {sr(S_WS)}, s{sT0} offen"])
    for b_ in check_flags(body)[:10]: print('FLAG HAZARD', par, b_)
    prog = pro + body + tail
    prog, nw = insert_waits(prog)
    prog, nn = pad_hazards(prog)
    ol = stats.pop("overlog")
    stats["over_by_stage"] = [sum(ol[2*u0[k]:2*u0[k+1]]) for k in range(NST)]
    info = dict(stats, rate=round(sS.rate, 2), NU=NU, nwait=nw, nnop=nn, ninstr=len(prog), tail=len(tail))
    txt = render(prog) + "\n  s_endpgm\n" + render(slow) + "\n"
    return txt, info


def build_reduce(opt):
    o = []
    A = lambda *x: o.extend(expand(list(x)))
    A("s_cmp_ge_u32 s2, 576", "s_cbranch_scc1 L_red_end")
    if opt.get("ts"): A("s_memrealtime s[80:81]")
    A("s_load_dwordx2 s[64:65], s[0:1], 0", "s_load_dwordx2 s[66:67], s[0:1], 64", "s_load_dwordx2 s[68:69], s[0:1], 112", "s_load_dwordx2 s[70:71], s[0:1], 128")
    A("v_lshrrev_b32 v1, 6, v0", "v_and_b32 v2, 63, v0")
    A("v_readfirstlane_b32 s20, v1")
    A("s_lshl_b32 s21, s2, 2", "s_add_u32 s21, s21, s20")
    A("s_mul_i32 s22, s21, 1821", "s_lshr_b32 s22, s22, 16")
    A("s_mul_i32 s23, s22, 36", "s_sub_u32 s23, s21, s23")
    A("s_lshl_b32 s25, s22, 5")
    A("v_lshlrev_b32 v3, 4, v2", "v_and_b32 v4, 15, v2", "v_lshrrev_b32 v5, 4, v2")
    A("s_sub_u32 s29, s23, 4", "s_cmp_ge_u32 s23, 20", "s_cselect_b32 s29, s29, s23")
    A("s_lshl_b32 s24, s22, 15", "s_lshl_b32 s29, s29, 10", "s_add_u32 s24, s24, s29", f"s_add_u32 s24, s24, {WS_P8}")
    A(f"s_mov_b32 s30, {16*4*32768}")
    A("s_lshl_b32 s31, s22, 12", "s_sub_u32 s29, s23, 16", "s_lshl_b32 s33, s29, 10", "s_add_u32 s31, s31, s33", f"s_add_u32 s31, s31, {WS_P16}")
    A("s_cmp_lt_u32 s29, 4", "s_cselect_b32 s24, s31, s24", f"s_cselect_b32 s30, {16*4*4096}, s30", "s_cselect_b32 s34, 1, 0")
    A("s_waitcnt lgkmcnt(0)")
    A(srd(4, "s70", "s71", WS_END), srd(8, "s64", "s65", 2359296), srd(12, "s66", "s67", 1152), srd(16, "s68", "s69", 4718592))
    RLD = opt.get("rld", "")
    for s_ in range(8):
        A(f"buffer_load_dwordx4 {vr(32+4*s_)}, v3, s[4:7], s24 offen{RLD}", "s_add_u32 s24, s24, s30")
    A("s_cmp_eq_u32 s34, 1", "s_cselect_b32 s24, s24, 0x7ff00000", "s_cselect_b32 s30, s30, 0")
    for s_ in range(8, 16):
        A(f"buffer_load_dwordx4 {vr(32+4*s_)}, v3, s[4:7], s24 offen{RLD}", "s_add_u32 s24, s24, s30")
    A("s_lshl_b32 s26, s23, 4", "v_lshlrev_b32 v6, 2, v5", "v_add_u32 v6, s26, v6")
    A("v_add_u32 v7, s25, v4")
    A("v_mul_u32_u24 v8, 576, v7", "v_add_u32 v8, v8, v6")
    A("v_lshlrev_b32 v9, 1, v8", "v_lshlrev_b32 v10, 2, v8", "v_lshlrev_b32 v11, 1, v6", "v_lshlrev_b32 v12, 2, v7")
    A("buffer_load_dwordx2 v[14:15], v9, s[8:11], 0 offen")
    A("s_mov_b32 s27, 18432", "buffer_load_dwordx2 v[16:17], v9, s[8:11], s27 offen")
    A("buffer_load_dwordx2 v[18:19], v11, s[12:15], 0 offen")
    A(f"s_mov_b32 s28, {WS_G}", "buffer_load_dword v20, v12, s[4:7], s28 offen", "buffer_load_dword v21, v12, s[4:7], s28 offen offset:64")
    for r in range(8): A(f"v_mov_b32 v{100+r}, 0")
    for s_ in range(16):
        for j in range(4):
            src = 32 + 4 * s_ + j
            A(f"v_lshlrev_b32 v22, 16, v{src}", f"v_and_b32 v23, 0xffff0000, v{src}", f"v_add_f32 v{100+2*j}, v{100+2*j}, v22", f"v_add_f32 v{101+2*j}, v{101+2*j}, v23")
    for n in range(2):
        for j in range(2):
            xs, ds = 14 + 2 * n + j, 18 + j
            A(f"v_lshlrev_b32 v22, 16, v{xs}", f"v_and_b32 v23, 0xffff0000, v{xs}", f"v_lshlrev_b32 v24, 16, v{ds}", f"v_and_b32 v25, 0xffff0000, v{ds}",
              "v_mul_f32 v22, v22, v24", "v_mul_f32 v23, v23, v25", "v_cvt_pk_bf16_f32 v22, v22, v23",
              "v_and_b32 v23, 0xffff0000, v22", "v_lshlrev_b32 v22, 16, v22",
              f"v_fmac_f32 v{100+4*n+2*j}, v{20+n}, v22", f"v_fmac_f32 v{101+4*n+2*j}, v{20+n}, v23")
    A("buffer_store_dwordx4 v[100:103], v10, s[16:19], 0 offen")
    A("s_mov_b32 s27, 36864", "buffer_store_dwordx4 v[104:107], v10, s[16:19], s27 offen")
    if opt.get("ts"):
        A("s_waitcnt vmcnt(0)", "s_memrealtime s[82:83]", "s_waitcnt lgkmcnt(0)", "v_mov_b32 v30, s80", "v_mov_b32 v31, s82", "s_lshl_b32 s27, s21, 3",
          f"s_add_u32 s27, s27, {WS_END + (1 << 18)}", "v_mov_b32 v29, 0", "s_mov_b32 s6, 0x7fffffff", "buffer_store_dwordx2 v[30:31], v29, s[4:7], s27 offen")
    prog, nw = insert_waits(o)
    prog, nn = pad_hazards(prog)
    return render(prog) + "\nL_red_end:\n  s_endpgm\n"


def build(opt):
    common = build_common(opt)
    v0, i0 = build_variant(opt, 0)
    v1, i1 = build_variant(opt, 1)
    red = build_reduce(opt)
    k1, k2 = NAME + "_kernel", "reduce_kernel"
    fuse = opt.get('fuse', '1') == '1'
    s = HEADER
    if fuse:
        s += f"; @launch grid=(256,1,1) block=(256,1,1) lds={LDS_BYTES}\n"
    else:
        s += f"; @launch kernel={k1} grid=(256,1,1) block=(256,1,1) lds={LDS_BYTES}\n"
        s += f"; @launch kernel={k2} grid=(576,1,1) block=(256,1,1) lds=0\n"
    s += '.amdgcn_target "amdgcn-amd-amdhsa--gfx950"\n.text\n'
    far = "  s_cbranch_scc1 L_var1\n"
    common = common.replace("  s_cbranch_scc1 L_main_end\n", "  s_cbranch_scc0 L_go\n  s_endpgm\nL_go:\n")
    common = common.replace("  s_cbranch_scc1 L_var1\n", "  s_cbranch_scc0 L_var0\n  s_branch L_var1\nL_var0:\n")
    s += f".globl {k1}\n.p2align 8\n.type {k1},@function\n{k1}:\n" + common + v0 + "L_end0:\n.p2align 6\nL_var1:\n" + v1 + "L_end1:\n"
    if not fuse: s += f".globl {k2}\n.p2align 8\n.type {k2},@function\n{k2}:\n" + red
    if opt.get("nocpf") is None:
        s += ".set CODE_SPAN0, L_end0 - L_pc0 - 4\n.set CODE_SPAN1, L_end1 - L_pc1 - 4\n"
    s += '.section .rodata,"a"\n' + kd(k1, 512, 256, 102) + ("" if fuse else kd(k2, 128, 128, 96))
    return s, (i0, i1)


if __name__ == "__main__":
    out = sys.argv[1]
    opt = {}
    for a in sys.argv[2:]:
        k, v = a.split("=", 1); opt[k] = v
    fw.DEPAWARE = opt.get('dep', '1') == '1'; fw.VMCOST = int(opt.get('vmcost', 1)); fw.VM_GAP = int(opt.get('vmgap', 5)); fw.LDS_LAT = int(opt.get('ldslat', 8)); fw.VM_LAT = int(opt.get('vmlat', 90))
    s, info = build(opt)
    open(out, "w").write(s)
    for i in info: print(i)
    print(len(s))
```

```python
import sys
import fw
from fw import *
from gen import (NAME, LOG2E, INV2PI, OOB, SLOT, NSLOT, MISC, PRIV, WTOT, TAB, LDS_BYTES, ACC, XB, LG, P1, P2, D1, D2, SF, A4, A32, A128, PW,
                 LANE, VST, VCH, T, VE, VP, VT, TS, TA, AX, AF, AH, L, xfrag, afrag, vr, ar, sr, xb, srd, mf,
                 voff_B, voff_W1full, voff_W1half, voff_Wd, voff_C, base_T64, base_C, cmul_acc, kd, HEADER)
XBASE = 2 * SLOT
XPOS = [0, 1, 2, 3, 4, 5, 3, 4, 5]

WS_P8 = 0
P8_BYTES = 8 * 16 * 4 * 2 * 16 * 1024
WS_P16 = WS_P8 + P8_BYTES
P16_BYTES = 16 * 16 * 4 * 4 * 1024
WS_H = WS_P16 + P16_BYTES
H_BYTES = 16 * 16 * 4 * 24 * 1024
WS_S = WS_H + H_BYTES
WS_G = WS_S + 16 * 16 * 384
WS_F = WS_G + 8192
WS_END = WS_F + 256 * 128

S_X, S_W1, S_WD, S_B, S_C, S_WS, S_S, S_DBG, S_P = 4, 8, 12, 16, 20, 24, 28, 32, 36
sW, sTILE, sSLICE, sC0, sOA, sOB, sW6, sW3 = 40, 41, 42, 43, 44, 45, 46, 47
sP8, sT0, sT1, sT2, sC2, sPAR, sP16, sT3 = 48, 49, 50, 51, 52, 53, 54, 55
sMASK = 56; sM1, sM2, sM3 = 58, 59, 60
sHO, sHP, sHT = 61, 62, 63
sW1F, sW1H, sWD2, sWD1, sWD1B, sC1, sT4, sC0P, sC2P, sQ = 64, 65, 66, 67, 68, 69, 70, 71, 72, 73
sXO, sXL = 98, 99
AHP = 0
def hp_reg(K):
    order = {8: 0, 0: 1, 1: 2, 2: 3, 3: 4, 4: 5, 5: 6, 6: 7, 7: 8, 9: 9, 10: 10, 11: 11}
    return AHP + 8 * order[K]


CYC = [0, 1, 2, 4, 5, 3]
def slot_of(k): return k if k < 4 else CYC[(k - 4) % 6]
def slot_base(k): return slot_of(k) * SLOT
def setof(k): return slot_of(k) // 2
def slot_rel(k): return (slot_of(k) % 2) * SLOT

T64B = [P1 + i for i in range(6)]
T128B = [P1 + 6 + i for i in range(6)] + [P2 + i for i in range(6)]
RB = [P2 + i for i in range(6)]
CB = [P1 + i for i in range(3)]
GWB = P2 + 6


PMACC = [96, 104, 112, 120]


class Stage:
    def __init__(self, fmt, units, pieces, wq, pre):
        self.fmt, self.units, self.pieces, self.wq, self.pre = fmt, units, pieces, wq, pre


def base_list_T128(regs, qrows, t, sets):
    o = [f"v_lshrrev_b32 v{t}, 4, {L}", f"v_mul_u32_u24 v{t}, {qrows}, v{t}", f"v_bfe_u32 v{t+1}, {L}, 2, 2", f"v_add_u32 v{t}, v{t}, v{t+1}",
         f"v_lshlrev_b32 v{t}, 7, v{t}", f"v_and_b32 v{t+1}, 3, {L}", f"v_lshlrev_b32 v{t+1}, 3, v{t+1}", f"v_add_u32 v{t}, v{t}, v{t+1}",
         f"v_bfe_u32 v{t+1}, {L}, 3, 2"]
    return o


def t128_regs(idx, t):
    s_, mt = divmod(idx, 4)
    d = T128B[idx]
    o = [f"v_xor_b32 v{d}, {mt}, v{t+1}", f"v_lshlrev_b32 v{d}, 5, v{d}", f"v_add_u32 v{d}, v{d}, v{t}"]
    if s_: o += [f"v_add_u32 v{d}, {49152*s_}, v{d}"]
    return o


def base_R2(t):
    o = [f"v_and_b32 v{t}, 15, {L}", f"v_lshrrev_b32 v{t+1}, 1, v{t}", f"v_lshlrev_b32 v{t}, 7, v{t}"]
    for h in range(2):
        d = RB[h]
        o += [f"v_lshrrev_b32 v{d}, 4, {L}", f"v_add_u32 v{d}, {4*h}, v{d}", f"v_xor_b32 v{d}, v{d}, v{t+1}", f"v_lshlrev_b32 v{d}, 4, v{d}",
              f"v_add_u32 v{d}, v{d}, v{t}", f"v_add_u32 v{RB[2+h]}, 49152, v{d}", f"v_add_u32 v{RB[4+h]}, {2*49152}, v{d}"]
    return o


def build_stages(par, ord2=0):
    nS = 2 if par == 0 else 3
    nSP = 5 - nS
    stages = []
    tr = "ds_read_b64_tr_b16"
    U = lambda reads, mfl, swap: dict(reads=reads, mf=mfl, swap=swap)
    for st in range(5):
        units = []
        for ksl in range(4 if st < 4 else 2):
            ks = 4 * st + ksl
            line, half = ksl >> 1, ksl & 1
            for b in range(nS):
                for mat in range(2):
                    off = (2 * mat + line) * 6144 + b * 2048
                    acc = [xb(b, mat, n) for n in range(2)]
                    units.append(U([("ds_read_b128", 4, ("R", half), off)],
                                   [(vr(acc[n]), xfrag(ks, n), None, vr(acc[n]) if ks else "0") for n in range(2)], True))
            units.append(U([("ds_read_b128", 4, ("abs", GWB), ks * 64)],
                           [(vr(LG + 4 * n), xfrag(ks, n), None, vr(LG + 4 * n) if ks else "0") for n in range(2)], True))
        pre = [] if st == 0 else [f"s_add_u32 s{sOA}, s{sOA}, 256"]
        npc = 2 * nS
        stages.append(Stage("B", units, [(D1 + j, S_B, sOA) for j in range(npc)], sW6, pre))
    for st in range(3):
        units = []
        for ksl in range(6):
            ks = 6 * st + ksl
            for mat in range(2):
                for mt in range(2):
                    acc = ACC[0] + (mat * 4 + mt) * 8
                    off = mat * 12288 + ksl * 2048
                    units.append(U([(tr, 2, ("T64", mt), off), (tr, 2, ("T64", mt), off + 256)],
                                   [(vr(acc + 4 * n), None, xfrag(ks, n), vr(acc + 4 * n) if ks else "0") for n in range(2)], False))
        pre = [f"s_mov_b32 s{sOA}, s{sW1H}"] if st == 0 else [f"s_add_u32 s{sOA}, s{sOA}, {192*9216}"]
        stages.append(Stage("W1h", units, [(D2 + j, S_W1, sOA) for j in range(6)], sW6, pre))
    for c in range(4):
        buf = ACC[(c + 1) & 1]
        for st in range(6):
            units = []
            for ksl in range(3):
                ks = 3 * st + ksl
                for mat in range(2):
                    for mt in range(4):
                        acc = buf + (mat * 4 + mt) * 8
                        off = mat * 12288 + ksl * 4096
                        units.append(U([(tr, 2, ("T128", mt), off), (tr, 2, ("T128", mt), off + 512)],
                                       [(vr(acc + 4 * n), None, xfrag(ks, n), vr(acc + 4 * n) if ks else "0") for n in range(2)], False))
            pre = [f"s_add_u32 s{sOA}, s{sW1F}, {128*c}"] if st == 0 else [f"s_add_u32 s{sOA}, s{sOA}, {96*9216}"]
            stages.append(Stage("W1", units, [(D1 + j, S_W1, sOA) for j in range(6)], sW6, pre))
    own = lambda K: (lambda n: ar(AH + 8 * K + 4 * n))
    prt = lambda K: (lambda n: ar(hp_reg(K) + 4 * n))
    owns = lambda b: (lambda n: vr(xb(b, 0, n)))
    if par == 0:
        ownW = [[0, 1, 2], [3, 4, 5], [6, 7, 8]]; prtW = [[8, 0, 1], [2, 3, 4], [5, 6, 7]]
        ms_own, ms_prt = [0, 1, 2], [3, 4, 5]
        pmA, pmB = [0, 1, 2, 3, 4, 5], [6, 7, 8]
        cols = [0, 256]
    else:
        ownW = [[8, 0, 1], [2, 3, 4], [5, 6, 7]]; prtW = [[0, 1, 2], [3, 4, 5], [6, 7, 8]]
        ms_own, ms_prt = [3, 4, 5], [0, 1, 2]
        pmA, pmB = [8, 0, 1, 2, 3, 4], [5, 6, 7]
        cols = [640, 896]
    def wd_units(bfs, lines, buf, first):
        units = []
        for i_, bf in enumerate(bfs):
            for line in range(lines):
                for mt in range(4):
                    acc = buf + (line * 4 + mt) * 8
                    off = line * 12288 + i_ * 4096
                    z = first and i_ == 0
                    units.append(U([(tr, 2, ("T128", mt), off), (tr, 2, ("T128", mt), off + 2048)],
                                   [(vr(acc + 4 * n), None, bf(n), "0" if z else vr(acc + 4 * n)) for n in range(2)], False))
        return units
    def c_units(bfs, nm, buf, imoff):
        units = []
        for b, bf in enumerate(bfs):
            for m in range(nm):
                acc = buf + m * 8
                off = m * 1536 + 32 * b
                units.append(U([("ds_read_b64", 2, ("C", 0), off), ("ds_read_b64", 2, ("C", 0), off + imoff)],
                               [(vr(acc + 4 * n), None, bf(n), vr(acc + 4 * n)) for n in range(2)], False))
        return units
    def W(p, bfs, ms, first=False):
        buf = ACC[(p + 1) & 1]
        stages.append(Stage("Wd", wd_units(bfs, 2, buf, first), [(D2 + j, S_WD, sOA) for j in range(6)], sW6,
                            [f"s_add_u32 s{sOA}, s{sWD2}, {cols[p] + ms*96*1152}"]))
    def C(p, bfs, sbase):
        buf = ACC[(p + 1) & 1]
        stages.append(Stage("C", c_units(bfs, 8, buf, 12288), [(D1 + j, S_C, sOA) for j in range(6)], sW6,
                            [f"s_add_u32 s{sOA}, s{sbase}, {(cols[p] // 2) * 1152}"]))
    oW = lambda p, i, first=False: W(p, [own(K) for K in ownW[i]], ms_own[i], first)
    pW = lambda p, i: W(p, [prt(K) for K in prtW[i]], ms_prt[i])
    oC = lambda p: C(p, [owns(b) for b in range(nS)], sC2)
    pC = lambda p: C(p, [prt(9 + b) for b in range(nSP)], sC2P)
    def pm_units(bfs, first, kind):
        units = []
        for i_, bf in enumerate(bfs):
            for mt in range(4):
                acc = PMACC[mt]
                z = first and i_ == 0
                if kind == "W":
                    off = i_ * 4096
                    rd = [(tr, 2, ("T128", mt), off), (tr, 2, ("T128", mt), off + 2048)]
                else:
                    off = mt * 1536 + 32 * i_
                    rd = [("ds_read_b64", 2, ("C", 0), off), ("ds_read_b64", 2, ("C", 0), off + 6144)]
                units.append(U(rd, [(ar(acc + 4 * n), None, bf(n), "0" if z else ar(acc + 4 * n)) for n in range(2)], False))
        return units
    pmWa = lambda: stages.append(Stage("Wd1a", pm_units([own(K) for K in pmA], True, "W"), [(D2 + j, S_WD, sOA) for j in range(6)], sW6, [f"s_add_u32 s{sOA}, s{sWD1}, 512"]))
    pmWb = lambda: stages.append(Stage("Wd1b", pm_units([own(K) for K in pmB], False, "W"), [(D2 + j, S_WD, sOA) for j in range(3)], sW3, [f"s_add_u32 s{sOA}, s{sWD1B}, 512"]))
    pmC = lambda: stages.append(Stage("C1", pm_units([owns(b) for b in range(nS)], False, "C"), [(D1 + j, S_C, sOA) for j in range(3)], sW3, [f"s_add_u32 s{sOA}, s{sC1}, {256*1152}"]))
    oW(0, 0, True); oW(0, 1); pmWa(); oW(1, 0, True); oW(1, 1); oW(0, 2); oW(1, 2); pmWb()
    oC(0); oC(1); pmC()
    if ord2 == 0: pW(0, 0); pW(1, 0); pW(0, 1); pW(1, 1); pW(0, 2); pC(0); pW(1, 2); pC(1)
    elif ord2 == 1: pW(0, 0); pW(0, 1); pW(1, 0); pW(0, 2); pC(0); pW(1, 1); pW(1, 2); pC(1)
    else: pW(0, 0); pW(0, 1); pW(0, 2); pW(1, 0); pC(0); pW(1, 1); pW(1, 2); pC(1)
    return stages, nS


def pace(st, i0, t0, t1):
    items = list(st.q)
    def walk(rate):
        t = float(t0); ready = {}; tr = {}; out = []
        for (g, e, d) in items[i0:]:
            t = max(t, e)
            for x in g:
                if x.kind == "pwait" and x.op == "waittag":
                    for tg in x.args: t = max(t, tr.get(tg, -1))
                else:
                    for r in x.src + x.dst: t = max(t, ready.get(r, -1))
            out.append(t)
            for x in g:
                if x.kind == "ds_rd":
                    for r in x.dst: ready[r] = t + fw.LDS_LAT + 1
                elif x.kind == "vm_ld":
                    for r in x.dst: ready[r] = t + fw.VM_LAT + 2
                if x.tag and x.kind in ("vm_st", "ds_wr"): tr[x.tag] = t + fw.VM_LAT
            t += len(g) / rate
        return out
    lo, hi = 0.05, 8.0
    for _ in range(30):
        mid = (lo + hi) / 2
        if walk(mid)[-1] <= t1: hi = mid
        else: lo = mid
    dls = walk(hi)
    new = deque(items[:i0])
    for (g, e, d), t in zip(items[i0:], dls):
        nd = int(t) + 3
        new.append((g, e, nd if d is None else min(d, nd)))
    st.q = new
    st.rate = hi


def interleave(vm, fill, per):
    out = []; fi = 0
    for g in vm:
        out += g
        if any(("buffer_load" in x or "global_load" in x) if isinstance(x, str) else x.kind in ("dma", "vm_ld") for x in g):
            n = 0
            while fi < len(fill) and n < per:
                f = fill[fi]; fi += 1
                out += f if isinstance(f, list) else [f]
                n += len(f) if isinstance(f, list) else 1
    for f in fill[fi:]:
        out += f if isinstance(f, list) else [f]
    return out


def build_common(opt):
    o = []
    A = lambda *x: o.extend(expand(list(x)))
    if opt.get("ts") == "5": A("s_memrealtime s[4:5]")
    A("s_cmp_ge_u32 s2, 256", "s_cbranch_scc1 L_main_end")
    A("s_load_dwordx16 s[64:79], s[0:1], 0", "s_load_dwordx16 s[80:95], s[0:1], 64", "s_load_dwordx2 s[96:97], s[0:1], 128")
    A(f"v_and_b32 {L}, 63, v0", "v_lshrrev_b32 v1, 6, v0")
    A(f"s_and_b32 s{sT0}, s2, 7", f"s_lshr_b32 s{sT1}, s2, 3")
    A(f"v_readfirstlane_b32 s{sW}, v1")
    if opt.get("map", "2") == "4":
        A(f"s_and_b32 s{sSLICE}, s{sT0}, 3", f"s_lshl_b32 s{sSLICE}, s{sSLICE}, 2", f"s_and_b32 s{sT2}, s{sT1}, 3", f"s_add_u32 s{sSLICE}, s{sSLICE}, s{sT2}",
          f"s_and_b32 s{sPAR}, s{sSLICE}, 1", f"s_lshr_b32 s{sTILE}, s{sT0}, 2", f"s_lshl_b32 s{sTILE}, s{sTILE}, 3", f"s_lshr_b32 s{sT2}, s{sT1}, 2", f"s_add_u32 s{sTILE}, s{sTILE}, s{sT2}")
    elif opt.get("map", "2") == "8":
        A(f"s_and_b32 s{sSLICE}, s{sT0}, 1", f"s_lshl_b32 s{sSLICE}, s{sSLICE}, 3", f"s_and_b32 s{sT2}, s{sT1}, 7", f"s_add_u32 s{sSLICE}, s{sSLICE}, s{sT2}",
          f"s_and_b32 s{sPAR}, s{sSLICE}, 1", f"s_lshr_b32 s{sTILE}, s{sT0}, 1", f"s_lshl_b32 s{sTILE}, s{sTILE}, 2", f"s_lshr_b32 s{sT2}, s{sT1}, 3", f"s_add_u32 s{sTILE}, s{sTILE}, s{sT2}")
    elif opt.get("parhi", "0") == "1":
        A(f"s_lshr_b32 s{sPAR}, s{sT1}, 4", f"s_xor_b32 s{sPAR}, s{sPAR}, 1", f"s_lshl_b32 s{sSLICE}, s{sT0}, 1", f"s_add_u32 s{sSLICE}, s{sSLICE}, s{sPAR}", f"s_and_b32 s{sTILE}, s{sT1}, 15")
    else:
        A(f"s_lshl_b32 s{sSLICE}, s{sT0}, 1", f"s_and_b32 s{sPAR}, s{sT1}, 1", f"s_add_u32 s{sSLICE}, s{sSLICE}, s{sPAR}", f"s_lshr_b32 s{sTILE}, s{sT1}, 1")
    choose = [f"s_cmp_eq_u32 s{sPAR}, 1", "s_cbranch_scc1 L_var1"]
    prog, _ = pad_hazards(o)
    return render(prog) + "\n  " + "\n  ".join(choose) + "\n"


I0, I1, I2 = xb(0, 1, 0), xb(1, 1, 0), xb(2, 1, 0)
FA, FD, LT, LQ = A4, A4 + 1, A4 + 2, A4 + 3
GREG = A4 + 5
PE, PX, PD, ME = I0, I0 + 1, I0 + 2, I0 + 3
MS, DA, DB, TMP, MX = I0 + 4, I1, I2, LG, LG + 4
MLA, EII, E0, E1 = 96, 112, 116, 120
S_OUT, S_DS = S_P, S_B
sJ, sTOK, sSRC, sM_, sPA, sDA, sRM, sMS = 82, 83, 84, 85, 86, 87, 88, 89
mALL, mPAR = 56, 58


def skip_init(dst, xs, ds, g):
    o = []; a, b, c, d = TMP, TMP + 1, TMP + 2, TMP + 3
    for j in range(2):
        o += [f"v_lshlrev_b32 v{a}, 16, v{xs+j}", f"v_and_b32 v{b}, 0xffff0000, v{xs+j}", f"v_lshlrev_b32 v{c}, 16, v{ds+j}", f"v_and_b32 v{d}, 0xffff0000, v{ds+j}",
              f"v_mul_f32 v{a}, v{a}, v{c}", f"v_mul_f32 v{b}, v{b}, v{d}", f"v_cvt_pk_bf16_f32 v{a}, v{a}, v{b}",
              f"v_and_b32 v{b}, 0xffff0000, v{a}", f"v_lshlrev_b32 v{a}, 16, v{a}", f"v_mul_f32 v{dst+2*j}, v{g}, v{a}", f"v_mul_f32 v{dst+2*j+1}, v{g}, v{b}"]
    return o


def reduce_prep(opt, par, e0, eM, lastm):
    oob = hex(OOB)
    sR = Stream("red", 4)
    add = lambda x, e=e0, d=None: sR.add(x, e, d)
    def adds(l, e=e0, d=None):
        for x in l: add(x, e, d)
    adds(srd(S_OUT, "s92", "s93", 4718592) + srd(S_DS, "s80", "s81", 1152))
    adds([f"s_mov_b32 s{mALL}, 0xffff0000", f"s_mov_b32 s{mALL+1}, -1", f"s_mov_b32 s{mPAR}, {hex(0xffff0000 | (0xaaaa if par == 0 else 0x5555))}", f"s_mov_b32 s{mPAR+1}, -1"])
    adds([[f"s_lshl_b32 s{sT0}, s{sTILE}, 7", f"s_add_u32 s{sT0}, s{sT0}, {WS_F}"], f"v_lshlrev_b32 v{FA}, 11, {L}", f"v_add_u32 v{FA}, s{sT0}, v{FA}",
          [f"v_cmp_gt_u32 vcc, 16, {L}", f"v_mov_b32 v{FD}, {oob}", f"v_cndmask_b32 v{FA}, v{FD}, v{FA}, vcc"],
          f"v_and_b32 v{LT}, 15, {L}", f"v_lshrrev_b32 v{LQ}, 4, {L}", f"s_lshr_b32 s{sJ}, s{sSLICE}, 1"], e0, eM - 95)
    adds([[f"s_lshr_b32 s{sT0}, s{sSLICE}, 2", f"s_and_b32 s{sM_}, s{sSLICE}, 3", f"s_and_b32 s{sT3}, s{sW}, 1", f"s_lshr_b32 s{sT1}, s{sW}, 1",
           f"s_lshl_b32 s{sMS}, s{sTILE}, 2", f"s_add_u32 s{sMS}, s{sMS}, s{sT0}", f"s_lshl_b32 s{sMS}, s{sMS}, 2", f"s_add_u32 s{sMS}, s{sMS}, s{sM_}"],
          f"s_lshl_b32 s{sMS}, s{sMS}, 10", f"s_mul_i32 s{sT1}, s{sT1}, {8*16*4*4096}", f"s_add_u32 s{sMS}, s{sMS}, s{sT1}", f"s_lshl_b32 s{sT2}, s{sT3}, 3",
          f"s_add_u32 s{sMS}, s{sMS}, s{sT2}", f"s_add_u32 s{sMS}, s{sMS}, {WS_P16}"], e0, eM - 4)
    adds([[f"s_lshl_b32 s{sPA}, s{sTILE}, 2", f"s_add_u32 s{sPA}, s{sPA}, s{sW}"], f"s_lshl_b32 s{sPA}, s{sPA}, 15", f"s_lshl_b32 s{sT0}, s{sJ}, 10", f"s_add_u32 s{sPA}, s{sPA}, s{sT0}",
          f"s_add_u32 s{sPA}, s{sPA}, {WS_P8 + 16384*par}", f"s_lshl_b32 s{sDA}, s{sJ}, 4", f"s_add_u32 s{sDA}, s{sDA}, {320*par}",
          f"s_lshl_b32 s{sTOK}, s{sTILE}, 7", f"s_lshl_b32 s{sT0}, s{sW}, 5", f"s_add_u32 s{sTOK}, s{sTOK}, s{sT0}",
          f"v_add_u32 v{PE}, s{sTOK}, v{LT}", f"v_lshlrev_b32 v{PD}, 2, v{LQ}", f"v_add_u32 v{PD}, s{sDA}, v{PD}", f"v_mul_u32_u24 v{PE}, 576, v{PE}",
          f"v_add_u32 v{PE}, v{PE}, v{PD}", f"v_lshlrev_b32 v{PX}, 1, v{PE}", f"v_lshlrev_b32 v{PD}, 1, v{PD}", f"v_lshlrev_b32 v{PE}, 2, v{PE}",
          f"v_accvgpr_read_b32 v{GREG}, a249", f"v_accvgpr_read_b32 v{GREG+1}, a250"])
    def aux(base, dcol):
        add([f"s_mov_b32 s{sT0}, {2*dcol}", f"buffer_load_dwordx2 {vr(base, 2)}, v{PX}, {sr(S_X)}, s{sT0} offen"])
        add([f"s_mov_b32 s{sT1}, {2*dcol + 18432}", f"buffer_load_dwordx2 {vr(base+2, 2)}, v{PX}, {sr(S_X)}, s{sT1} offen"])
        add([f"s_mov_b32 s{sT0}, {2*dcol}", f"buffer_load_dwordx2 {vr(base+4, 2)}, v{PD}, {sr(S_DS)}, s{sT0} offen"])
    aux(T, 0); aux(T + 6, 128)
    MA = T + 12
    adds([[f"s_lshr_b32 s{sT0}, s{sSLICE}, 2", f"s_lshl_b32 s{sTOK}, s{sTILE}, 7", f"s_lshl_b32 s{sT0}, s{sT0}, 5", f"s_add_u32 s{sTOK}, s{sTOK}, s{sT0}", f"s_lshl_b32 s{sT2}, s{sT3}, 4"],
          f"s_add_u32 s{sTOK}, s{sTOK}, s{sT2}", f"s_lshl_b32 s{sM_}, s{sM_}, 4", f"s_add_u32 s{sM_}, s{sM_}, 256",
          f"v_add_u32 v{MX}, s{sTOK}, v{LT}", f"v_lshlrev_b32 v{MA+2}, 2, v{LQ}", f"v_add_u32 v{MA+2}, s{sM_}, v{MA+2}",
          f"v_mul_u32_u24 v{ME}, 576, v{MX}", f"v_add_u32 v{ME}, v{ME}, v{MA+2}", f"v_lshlrev_b32 v{MA}, 1, v{ME}", f"v_lshlrev_b32 v{MA+2}, 1, v{MA+2}",
          f"v_lshlrev_b32 v{MX}, 2, v{MX}", f"v_lshlrev_b32 v{ME}, 2, v{ME}",
          f"buffer_load_dwordx2 {vr(MA, 2)}, v{MA}, {sr(S_X)}, 0 offen", f"buffer_load_dwordx2 {vr(MA+2, 2)}, v{MA+2}, {sr(S_DS)}, 0 offen"], e0, eM - 2)
    add(f"s_mov_b32 s{sT1}, {WS_G}", e0, eM)
    add([I(f"v_cmp_le_u32 vcc, 5, v{FD}"), I(f"s_or_b64 vcc, vcc, s[{mALL}:{mALL+1}]"), I("s_cmp_eq_u64 vcc, -1"), I(f"s_cselect_b32 s{sRM}, 1, 0"),
         I(f"s_cselect_b32 s{sSRC}, s{sMS}, 0x7ff00000"), I(f"s_cselect_b32 s{sT0}, s{sT1}, 0x7ff00000")], eM, eM + 8)
    add(f"buffer_load_dword v{MX+1}, v{MX}, {sr(S_WS)}, s{sT0} offen sc1", eM)
    for j in range(8):
        add(f"buffer_load_dwordx2 {ar(MLA+2*j, 2)}, v{VST}, {sr(S_WS)}, s{sSRC} offen sc1", eM)
        if j < 7: add(f"s_add_u32 s{sSRC}, s{sSRC}, {16*4*4096}", eM)
    adds(skip_init(DA, T, T + 4, GREG) + skip_init(DA + 4, T + 2, T + 4, GREG + 1) + skip_init(DB, T + 6, T + 10, GREG) + skip_init(DB + 4, T + 8, T + 10, GREG + 1), eM)
    EM0, EM1 = T, T + 1
    adds([f"v_lshrrev_b32 v{EM1}, 2, v{LT}", f"v_xor_b32 v{T+3}, v{EM1}, v{LQ}", f"v_and_b32 v{EM1}, 1, v{LT}", f"v_lshlrev_b32 v{EM1}, 4, v{EM1}",
          f"v_mov_b32 v{T+2}, 0x3f80", f"v_lshlrev_b32 v{EM1}, v{EM1}, v{T+2}", [f"v_cmp_eq_u32 vcc, 0, v{T+3}", f"v_cndmask_b32 v{EM1}, 0, v{EM1}, vcc"],
          f"v_and_b32 v{EM0}, 2, v{LT}", [f"v_cmp_eq_u32 vcc, 0, v{EM0}", f"v_cndmask_b32 v{EM0}, 0, v{EM1}, vcc", f"v_cndmask_b32 v{EM1}, v{EM1}, 0, vcc"],
          f"v_mov_b32 v{T+2}, 0"]
         + [f"v_accvgpr_write_b32 a{r}, v{EM0}" for r in (EII, EII + 2, E0, E1 + 2)] + [f"v_accvgpr_write_b32 a{r}, v{EM1}" for r in (EII + 1, EII + 3, E0 + 1, E1 + 3)]
         + [f"v_accvgpr_write_b32 a{r}, v{T+2}" for r in (E0 + 2, E0 + 3, E1, E1 + 1)], eM)
    sR2 = Stream("red2", 1)
    sR2.add(f"buffer_load_dword v{FD}, v{FA}, {sr(S_WS)}, 0 offen sc1", eM - 85, eM - 80)
    return sR, sR2


def final_reduce(opt, par, XF, XT, XD, slow, pb):
    o = []
    A = lambda *x: o.extend(expand(list(x)))
    tst = lambda i: A(I(("s_memrealtime" if opt.get("ts") == "5" else "s_memtime") + " s[100:101]"), I("s_waitcnt lgkmcnt(0)"), I(f"v_writelane_b32 v255, s100, {i}")) if (opt.get("ts") and (opt.get("ts") != "4" or i == 52)) else None
    OST = opt.get("ost", " nt")
    MA = T + 12
    def flagst(val): A(f"v_mov_b32 v{XT}, {val}", f"buffer_store_dword v{XT}, v{XF}, {sr(S_WS)}, 0 offen sc1")
    ld = f"buffer_load_dword v{FD}, v{FA}, {sr(S_WS)}, 0 offen sc1"
    def spin(name, val, mask, after):
        cond = [f"v_cmp_le_u32 vcc, {val}, v{FD}", f"s_or_b64 vcc, vcc, s[{mask}:{mask+1}]"]
        slow.extend([I(f"L_slow_{name}{par}:"), I(f"s_mov_b32 s{sT2}, 0"), I(f"L_slowl_{name}{par}:"), I(ld), I("s_waitcnt vmcnt(0)"),
                     I(cond[0]), I("s_nop 4"), I(cond[1]), I("s_cmp_eq_u64 vcc, -1"), I(f"s_cbranch_scc1 L_slowd_{name}{par}"),
                     I(f"s_add_u32 s{sT2}, s{sT2}, 1"), I(f"s_cmp_lt_u32 s{sT2}, 0x40000"), I(f"s_cbranch_scc1 L_slowl_{name}{par}"), I(f"L_slowd_{name}{par}:")]
                    + expand(after) + [I("s_waitcnt vmcnt(0)"), I(f"s_branch L_back_{name}{par}")])
        return cond
    def l8(dst, extra):
        r = [f"s_add_u32 s{sSRC}, s{sPA}, {extra}"]
        for j in range(8):
            r.append(f"buffer_load_dwordx4 {vr(dst+4*j)}, v{VST}, {sr(S_WS)}, s{sSRC} offen sc1")
            if j < 7: r.append(f"s_add_u32 s{sSRC}, s{sSRC}, {16*4*32768}")
        return r
    def finish(src, dst, dcol):
        for j in range(8):
            for n in range(2): A(mf(vr(dst + 4*n), ar((E0, E1)[n]), vr(src + 4*j), vr(dst + 4*n)))
        A(f"s_mov_b32 s{sT0}, {4*dcol}", f"s_mov_b32 s{sT1}, {4*dcol + 36864}",
          f"buffer_store_dwordx4 {vr(dst)}, v{PE}, {sr(S_OUT)}, s{sT0} offen{OST}", f"buffer_store_dwordx4 {vr(dst+4)}, v{PE}, {sr(S_OUT)}, s{sT1} offen{OST}")
    tst(52)
    redo = [f"s_mov_b32 s{sSRC}, s{sMS}", f"s_mov_b32 s{sT0}, {WS_G}", f"buffer_load_dword v{MX+1}, v{MX}, {sr(S_WS)}, s{sT0} offen sc1"]
    for j in range(8):
        redo.append(f"buffer_load_dwordx2 {ar(MLA+2*j, 2)}, v{VST}, {sr(S_WS)}, s{sSRC} offen sc1")
        if j < 7: redo.append(f"s_add_u32 s{sSRC}, s{sSRC}, {16*4*4096}")
    def pm_part():
        spin("M", 5, mALL, redo + [ld])
        A(WaitRegs([f"a{MLA+j}" for j in range(16)] + [f"v{MX+1}"]), f"s_cmp_eq_u32 s{sRM}, 1", f"s_cbranch_scc0 L_slow_M{par}", I(f"L_back_M{par}:"))
        A(f"s_cmp_lt_u32 s{sW}, 2", f"s_cselect_b32 s{sT0}, 1.0, 0", f"v_mul_f32 v{MX+1}, s{sT0}, v{MX+1}")
        A(skip_init(MS, MA, MA + 2, MX + 1))
        for j in range(4): A(mf(vr(MS), ar(EII), ar(MLA + 4*j), vr(MS)))
        A(f"s_and_b32 s{sT0}, s{sW}, 1", f"s_lshl_b32 s{sT0}, s{sT0}, 10", f"v_add_u32 v{MA}, s{sT0}, v{VST}",
          f"s_cmp_ge_u32 s{sW}, 2", f"s_cselect_b32 s{sT1}, 0, 2048", f"v_add_u32 v{MA+1}, s{sT1}, v{MA}")
        A(I(f"ds_write_b128 v{MA+1}, {vr(MS)}", tag="pmx"))
    v3 = opt.get("tailv") == "3"
    if pb is not None and v3:
        if not int(opt.get("kfa", 0)):
            A(WaitTag("pstA"), "s_barrier"); flagst(6)
        A(ld)
        A(pb)
        tst(53)
        cond = spin("PA", 6, mPAR, [])
        A(*cond, "s_cmp_eq_u64 vcc, -1", f"s_cbranch_scc0 L_slow_PA{par}", I(f"L_back_PA{par}:"))
        A(l8(64, 0))
        A(WaitTag("pstB"), "s_barrier"); flagst(7)
        tst(54)
        A(ld)
        finish(64, DA, 0)
        tst(55)
        pm_part()
        A(WaitTag("pmx"), "s_barrier", f"ds_read_b128 {vr(MX)}, v{MA}")
        for j in range(4): A(f"v_add_f32 v{MS+j}, v{MS+j}, v{MX+j}")
        A(f"s_cmp_lt_u32 s{sW}, 2", f"s_cselect_b32 s{sT0}, 0, 0x7ff00000", f"buffer_store_dwordx4 {vr(MS)}, v{ME}, {sr(S_OUT)}, s{sT0} offen{OST}")
        tst(56)
        cond = spin("PB", 7, mPAR, [])
        A(*cond, "s_cmp_eq_u64 vcc, -1", f"s_cbranch_scc0 L_slow_PB{par}", I(f"L_back_PB{par}:"))
        tst(57)
        A(l8(0, 8192))
        finish(0, DB, 128)
        return o
    if pb is not None:
        A(WaitTag("pstA"), "s_barrier"); flagst(6)
        A(ld)
        A(pb)
        pm_part()
        tst(53)
        cond = spin("PA", 6, mPAR, [])
        A(*cond, "s_cmp_eq_u64 vcc, -1", f"s_cbranch_scc0 L_slow_PA{par}", I(f"L_back_PA{par}:"))
        A(l8(64, 0))
        A(WaitTag("pstB", "pmx"), "s_barrier"); flagst(7)
        tst(54)
        A(ld)
        A(f"ds_read_b128 {vr(MX)}, v{MA}")
        srcA, srcB = 64, 0
    else:
        if not int(opt.get("kfa", 0)):
            A(WaitTag("pstA"), "s_barrier"); flagst(6)
        tst(53)
        pm_part()
        A(ld)
        A(WaitTag("pstB", "pmx"), "s_barrier"); flagst(7)
        tst(54)
        A(f"ds_read_b128 {vr(MX)}, v{MA}")
        cond = spin("PA", 6, mPAR, [])
        A(*cond, "s_cmp_eq_u64 vcc, -1", f"s_cbranch_scc0 L_slow_PA{par}", I(f"L_back_PA{par}:"))
        A(l8(32, 0)); A(ld)
        srcA, srcB = 32, 64
    tst(55)
    for j in range(4): A(f"v_add_f32 v{MS+j}, v{MS+j}, v{MX+j}")
    A(f"s_cmp_lt_u32 s{sW}, 2", f"s_cselect_b32 s{sT0}, 0, 0x7ff00000", f"buffer_store_dwordx4 {vr(MS)}, v{ME}, {sr(S_OUT)}, s{sT0} offen{OST}")
    finish(srcA, DA, 0)
    tst(56)
    cond = spin("PB", 7, mPAR, [])
    A(*cond, "s_cmp_eq_u64 vcc, -1", f"s_cbranch_scc0 L_slow_PB{par}", I(f"L_back_PB{par}:"))
    tst(57)
    A(l8(srcB, 8192))
    finish(srcB, DB, 128)
    return o


def build_variant(opt, par):
    ORD2 = int(opt.get('ord2', 0))
    stages, nS = build_stages(par, ORD2)
    nSP = 5 - nS
    NST = len(stages)
    V = f"v{par}"
    pro = []
    A = lambda *x: pro.extend(expand(list(x)))
    ts = opt.get("ts")
    A(f"s_mul_i32 s{sC0}, s{sSLICE}, 9", f"s_lshr_b32 s{sC0}, s{sC0}, 1", f"s_lshl_b32 s{sC0}, s{sC0}, 3")
    A(f"s_mul_i32 s{sW6}, s{sW}, 6144", f"s_mul_i32 s{sW3}, s{sW}, 3072")
    A(voff_B(D1, 10))
    A(f"s_and_b32 s{sT3}, s{sW}, 1")
    A(f"s_mul_i32 s{sOA}, s{sC0}, 1152", f"s_lshl_b32 s{sT0}, s{sT3}, 7", f"s_add_u32 s{sOA}, s{sOA}, s{sT0}")
    A(f"s_lshl_b32 s{sT0}, s{sTILE}, 7", f"s_lshl_b32 s{sT1}, s{sW}, 5", f"s_add_u32 s{sT0}, s{sT0}, s{sT1}", f"s_mul_i32 s{sXO}, s{sT0}, 1152")
    A(f"s_lshl_b32 s{sXL}, s{sW}, 12", f"s_add_u32 s{sXL}, s{sXL}, {XBASE}")
    if ts: A("s_memtime s[100:101]", "s_waitcnt lgkmcnt(0)", "v_mov_b32 v255, 0", "v_writelane_b32 v255, s100, 0", "s_memrealtime s[100:101]")
    A("s_waitcnt lgkmcnt(0)")
    if ts: A("v_writelane_b32 v255, s100, 61")
    if ts == "5": A("v_writelane_b32 v255, s4, 63")
    A(srd(S_X, "s64", "s65", 2359296))
    A(f"s_cmp_lt_u32 s{sW}, 2")
    A(f"s_cselect_b32 s{S_B}, s70, s72", f"s_cselect_b32 s{S_B+1}, s71, s73", f"s_mov_b32 s{S_B+2}, 663552", f"s_mov_b32 s{S_B+3}, 0x20000")

    def dma_items(k):
        st = stages[k]
        items = [[x] for x in st.pre] + [[f"s_add_u32 m0, s{st.wq}, {slot_base(k)}"]]
        for j, (v, s_, so) in enumerate(st.pieces):
            if j == 4: items.append([f"s_add_u32 m0, s{st.wq}, {slot_base(k) + 4096}"])
            imm = 1024 * (j % 4)
            items.append([I(f"buffer_load_dwordx4 v{v}, {sr(s_)}, s{so} offen" + (f" offset:{imm}" if imm else "") + " lds", tag=f"st{k}")])
        return items
    def xdma(j):
        items = [[f"s_add_u32 s{sOB}, s{sXO}, {128*j}"], [f"s_add_u32 m0, s{sXL}, {16384*XPOS[j]}"]]
        for g in range(4):
            items.append([I(f"buffer_load_dwordx4 v{D1+g}, {sr(S_X)}, s{sOB} offen" + (f" offset:{1024*g}" if g else "") + " lds", tag=f"x{j}")])
        return items
    XV = TA; XV2 = 66
    def xreads(j):
        p_ = XPOS[j]
        return [I(f"ds_read_b128 {xfrag(2*j+h, n)}, v{(XV if p_ < 3 else XV2)+h} offset:{16384*(p_ % 3) + 2048*n}", tag=f"xr{j}") for h in range(2) for n in range(2)]

    PLRE, PLIM, PLDT = T, T + 1, T + 2
    PFL = opt.get("pf", " sc1")
    oob = hex(OOB)
    vm = []
    if opt.get("xpf", "0") == "1":
        vm += [[f"v_and_b32 v12, 15, {L}", f"v_mul_u32_u24 v12, 1152, v12", f"v_lshrrev_b32 v13, 4, {L}", f"v_lshlrev_b32 v13, 7, v13", f"v_add_u32 v12, v12, v13",
                f"s_add_u32 s100, s{sXO}, {16*1152*par}", f"buffer_load_dword a244, v12, {sr(S_X)}, s100 offen{PFL}"]]
        vm += [[f"buffer_load_dword a245, v12, {sr(S_X)}, s100 offen offset:512{PFL}"]]
        vm += [[f"v_mov_b32 v13, {oob}", f"v_cmp_gt_u32 vcc, 16, {L}", f"v_cndmask_b32 v12, v13, v12, vcc",
                f"buffer_load_dword a246, v12, {sr(S_X)}, s100 offen offset:1024{PFL}"]]
    vm += dma_items(0)
    vm += xdma(0) + xdma(1)
    vm += [[f"v_lshlrev_b32 v{VST}, 4, {L}", f"v_min_u32 v8, 47, {L}", f"v_lshlrev_b32 v{VCH}, 3, v8", f"v_add_u32 v9, s{sC0}, v8", "v_lshlrev_b32 v9, 1, v9"]
           + srd(S_P, "s66", "s67", 1152) + [f"buffer_load_ushort v{PLRE}, v9, {sr(S_P)}, 0 offen"]]
    vm += [srd(56, "s68", "s69", 1152) + [f"buffer_load_ushort v{PLIM}, v9, s[56:59], 0 offen"]]
    vm += [srd(60, "s78", "s79", 1152) + [f"buffer_load_ushort v{PLDT}, v9, s[60:63], 0 offen"]]
    vm += [srd(S_P, "s90", "s91", 1152) + [f"s_add_u32 m0, s{sW3}, {PRIV}", "s_nop 0", I(f"buffer_load_dwordx4 v{VST}, {sr(S_P)}, 0 offen lds", tag="gw")]]
    vm += [[I(f"buffer_load_dwordx4 v{VST}, {sr(S_P)}, 0 offen offset:1024 lds", tag="gw")]]
    vm1 = vm; vm = []
    vm += xdma(2) + xdma(3) + dma_items(1)
    if opt.get('x45', '1') == '1': vm += xdma(4) + xdma(5)
    vm2 = vm; vm = []
    PV = 12
    vm += [[f"s_cmp_lt_u32 s{sW}, 2", f"s_cselect_b32 s{S_W1}, s84, s86", f"s_cselect_b32 s{S_W1+1}, s85, s87", f"s_mov_b32 s{S_W1+2}, 5308416", f"s_mov_b32 s{S_W1+3}, 0x20000"]]
    if opt.get("nocpf") is None:
        vm += [[f"s_getpc_b64 s[100:101]", I(f"L_pc{par}:"),
                f"s_lshl_b32 s{sT0}, s{sTILE}, 2", f"s_add_u32 s{sT0}, s{sT0}, s{sW}", f"s_mul_i32 s{sT0}, s{sT0}, 1152",
                f"v_lshlrev_b32 v12, 7, {L}", f"v_add_u32 v12, s{sT0}, v12", f"v_min_u32 v12, CODE_SPAN{par}, v12", f"v_cmp_gt_u32 vcc, 9, {L}",
                "s_and_saveexec_b64 s[62:63], vcc", f"global_load_dword a247, v12, s[100:101]", "s_mov_b64 exec, s[62:63]"]]
    fullcol = 64 * par; halfcol = 512 if par == 0 else 0
    vm += [[f"s_lshl_b32 s{sT4}, s{sTILE}, 1", f"s_add_u32 s{sT4}, s{sT4}, s{sT3}"]]
    if opt.get("nopf") is None and opt.get("pfb", "1") == "1":
        vm += [[
                f"s_mul_i32 s100, s{sT4}, {14*128}", f"s_mul_i32 s{sT0}, s{sC0}, 1152", f"s_add_u32 s100, s100, s{sT0}",
                f"v_lshlrev_b32 v{PV}, 7, {L}", f"v_mov_b32 v{PV+1}, {oob}", f"v_cmp_gt_u32 vcc, 14, {L}", f"v_cndmask_b32 v{PV}, v{PV+1}, v{PV}, vcc",
                f"buffer_load_dword a248, v{PV}, {sr(S_B)}, s100 offen{PFL}"]]
    if opt.get("nopf") is None and opt.get("pfw", "1") == "1":
        vm += [[f"v_mul_u32_u24 v{PV}, 57, {L}", f"v_lshrrev_b32 v{PV}, 10, v{PV}", f"v_mul_u32_u24 v{PV+1}, 18, v{PV}", f"v_sub_u32 v{PV+1}, {L}, v{PV+1}",
                f"v_mul_u32_u24 v{PV+1}, 9216, v{PV+1}", f"v_mul_i32_i24 v{PV}, {fullcol - halfcol}, v{PV}", f"v_add_u32 v{PV}, {halfcol}, v{PV}",
                f"v_add_u32 v{PV}, v{PV}, v{PV+1}",
                f"v_mov_b32 v{PV+1}, {oob}", f"v_cmp_gt_u32 vcc, 36, {L}", f"v_cndmask_b32 v{PV}, v{PV+1}, v{PV}, vcc",
                f"s_mul_i32 s100, s{sT4}, {18*9216}", f"s_mul_i32 s{sT0}, s{sSLICE}, 576", f"s_add_u32 s100, s100, s{sT0}",
                f"buffer_load_dword a251, v{PV}, {sr(S_W1)}, s100 offen{PFL}"]]
    if opt.get("pfall"):
        which = opt["pfall"]
        Q = PV
        if "a" in which:
            vm += [[f"v_mul_u32_u24 v{Q}, 57, {L}", f"v_lshrrev_b32 v{Q}, 10, v{Q}", f"v_mul_u32_u24 v{Q+1}, 18, v{Q}", f"v_sub_u32 v{Q+1}, {L}, v{Q+1}",
                    f"v_mul_u32_u24 v{Q+1}, 9216, v{Q+1}", f"v_lshlrev_b32 v{Q}, 7, v{Q}", f"v_add_u32 v{Q}, {fullcol + 128}, v{Q}", f"v_add_u32 v{Q+1}, v{Q+1}, v{Q}",
                    f"v_mov_b32 v{Q}, {oob}", f"v_cmp_gt_u32 vcc, 54, {L}", f"v_cndmask_b32 v{Q+1}, v{Q}, v{Q+1}, vcc",
                    f"s_mul_i32 s100, s{sT4}, {18*9216}", f"s_mul_i32 s{sT0}, s{sSLICE}, 576", f"s_add_u32 s100, s100, s{sT0}",
                    f"buffer_load_dword a252, v{Q+1}, {sr(S_W1)}, s100 offen{PFL}"]]
        if "d" in which:
            vm += [srd(56, "s88", "s89", 5308416) + [f"v_lshlrev_b32 v{Q}, 7, {L}", f"v_mov_b32 v{Q+1}, {oob}", f"v_cmp_gt_u32 vcc, 41, {L}", f"v_cndmask_b32 v{Q}, v{Q+1}, v{Q}, vcc",
                    f"s_lshl_b32 s100, s{sTILE}, 2", f"s_add_u32 s100, s100, s{sW}", f"s_mul_i32 s100, s100, {41*128}", f"s_mul_i32 s{sT0}, s{sSLICE}, {288*1152}",
                    f"s_add_u32 s100, s100, s{sT0}", f"buffer_load_dword a246, v{Q}, s[56:59], s100 offen{PFL}"]]
        if "c" in which:
            vm += [[f"s_cmp_lt_u32 s{sW}, 2", f"s_cselect_b32 s56, s74, s76", f"s_cselect_b32 s57, s75, s77", "s_mov_b32 s58, 663552", "s_mov_b32 s59, 0x20000",
                    f"v_lshrrev_b32 v{Q}, 1, {L}", f"v_mul_u32_u24 v{Q}, 1152, v{Q}", f"v_and_b32 v{Q+1}, 1, {L}", f"v_mul_u32_u24 v{Q+1}, 92, v{Q+1}",
                    f"v_add_u32 v{Q}, v{Q}, v{Q+1}", f"v_mov_b32 v{Q+1}, {oob}", f"v_cmp_gt_u32 vcc, 36, {L}", f"v_cndmask_b32 v{Q}, v{Q+1}, v{Q}, vcc",
                    f"s_mul_i32 s100, s{sT4}, {18*1152}", f"s_lshl_b32 s{sT0}, s{sC0}, 1", f"s_add_u32 s100, s100, s{sT0}",
                    f"buffer_load_dword a245, v{Q}, s[56:59], s100 offen{PFL}"]]
    fill = []
    F = lambda *x: fill.extend(list(x))
    F(*base_R2(14))
    F(f"v_add_u32 v{XV}, s{sXL}, v{RB[0]}", f"v_add_u32 v{XV+1}, s{sXL}, v{RB[1]}", f"v_add_u32 v{XV2}, 49152, v{XV}", f"v_add_u32 v{XV2+1}, 49152, v{XV+1}")
    F(f"v_lshrrev_b32 v3, 4, {L}", f"v_lshlrev_b32 v{GWB}, 4, v3", f"v_add_u32 v{GWB}, s{sW3}, v{GWB}", f"v_add_u32 v{GWB}, {PRIV}, v{GWB}")
    F(*voff_W1half(D2, 14))
    F(*base_T64(P1, 14))
    F(f"s_mul_i32 s{sT0}, s{sSLICE}, 576", f"s_mul_i32 s{sT1}, s{sT3}, {48*9216}", f"s_add_u32 s{sW1F}, s{sT0}, s{sT1}", f"s_add_u32 s{sW1F}, s{sW1F}, {fullcol}",
      f"s_mul_i32 s{sT1}, s{sT3}, {96*9216}", f"s_add_u32 s{sW1H}, s{sT0}, s{sT1}", f"s_add_u32 s{sW1H}, s{sW1H}, {halfcol}")
    F([f"s_cmp_lt_u32 s{sW}, 2", f"s_cselect_b32 s{S_C}, s74, s76", f"s_cselect_b32 s{S_C+1}, s75, s77"], f"s_mov_b32 s{S_C+2}, 663552", f"s_mov_b32 s{S_C+3}, 0x20000")
    F(*srd(S_WD, "s88", "s89", 5308416))
    F(*srd(S_WS, "s96", "s97", WS_END + (1 << 19) * bool(ts)))
    F(f"s_mul_i32 s{sT0}, s{sSLICE}, 6144", f"s_add_u32 s{sT0}, s{sT0}, {WS_S}", [f"s_add_u32 s{S_S}, s96, s{sT0}", f"s_addc_u32 s{S_S+1}, s97, 0"],
      f"s_mov_b32 s{S_S+2}, 6144", f"s_mov_b32 s{S_S+3}, 0x20000")
    F(*srd(S_DBG, "s94", "s95", 256))
    nfill_early = len(fill)
    late = []
    G = lambda *x: late.extend(list(x))
    G(f"s_lshr_b32 s{sT0}, s{sSLICE}, 1", f"s_mul_i32 s{sT0}, s{sT0}, {576*1152}",
      f"s_mul_i32 s{sT1}, s{sT3}, {48*1152}", f"s_lshr_b32 s{sT2}, s{sW}, 1", f"s_lshl_b32 s{sT2}, s{sT2}, 7",
      f"s_add_u32 s{sWD2}, s{sT0}, s{sT1}", f"s_add_u32 s{sWD2}, s{sWD2}, s{sT2}",
      f"s_add_u32 s{sT0}, s{sT0}, {288*1152*par}", f"s_mul_i32 s{sT1}, s{sW}, {48*1152}", f"s_add_u32 s{sWD1}, s{sT0}, s{sT1}",
      f"s_mul_i32 s{sT1}, s{sW}, {24*1152}", f"s_add_u32 s{sWD1B}, s{sT0}, s{sT1}", f"s_add_u32 s{sWD1B}, s{sWD1B}, {192*1152}")
    G(f"s_add_u32 s{sC0P}, s{sC0}, {32 if par == 0 else -32 & 0xffffffff}")
    G(f"s_mul_i32 s{sT1}, s{sT3}, {64*1152}", f"s_lshl_b32 s{sT2}, s{sC0}, 1", f"s_add_u32 s{sC2}, s{sT1}, s{sT2}",
      f"s_lshl_b32 s{sT0}, s{sC0P}, 1", f"s_add_u32 s{sC2P}, s{sT1}, s{sT0}",
      f"s_mul_i32 s{sT1}, s{sT3}, {32*1152}", f"s_add_u32 s{sC1}, s{sT1}, s{sT2}")
    G(f"s_lshr_b32 s{sP8}, s{sSLICE}, 1", f"s_lshl_b32 s{sP8}, s{sP8}, 4", f"s_add_u32 s{sP8}, s{sP8}, s{sTILE}", f"s_lshl_b32 s{sP8}, s{sP8}, 2",
      f"s_add_u32 s{sP8}, s{sP8}, s{sW}", f"s_lshl_b32 s{sP8}, s{sP8}, 15", f"s_add_u32 s{sP8}, s{sP8}, {WS_P8 + 16384*par}")
    G(f"s_lshl_b32 s{sP16}, s{sSLICE}, 4", f"s_add_u32 s{sP16}, s{sP16}, s{sTILE}", f"s_lshl_b32 s{sP16}, s{sP16}, 2", f"s_add_u32 s{sP16}, s{sP16}, s{sW}",
      f"s_lshl_b32 s{sP16}, s{sP16}, 12", f"s_add_u32 s{sP16}, s{sP16}, {WS_P16}")
    G(f"s_lshl_b32 s{sHO}, s{sTILE}, 4", f"s_add_u32 s{sHP}, s{sHO}, s{sSLICE}", f"s_lshl_b32 s{sHP}, s{sHP}, 2", f"s_add_u32 s{sHP}, s{sHP}, s{sW}",
      f"s_mul_i32 s{sHO}, s{sHP}, {24*1024}", f"s_add_u32 s{sHO}, s{sHO}, {WS_H}",
      f"s_add_u32 s{sHP}, s{sHO}, {(4*24*1024 if par == 0 else -4*24*1024) & 0xffffffff}")
    G(f"s_bfm_b64 s[{sMASK}:{sMASK+1}], s{sTILE}, 0", f"s_not_b64 s[{sMASK}:{sMASK+1}], s[{sMASK}:{sMASK+1}]")
    for k, sm in ((1, sM1), (2, sM2), (3, sM3)):
        G([f"s_cmp_ge_u32 s{sW}, {k}", f"s_cselect_b32 s{sm}, 1.0, 0"])
    if opt.get("nopf") is None:
        Q = TS
        G(f"v_mul_u32_u24 v{Q}, 57, {L}", f"v_lshrrev_b32 v{Q}, 10, v{Q}", f"v_mul_u32_u24 v{Q+1}, 18, v{Q}", f"v_sub_u32 v{Q+1}, {L}, v{Q+1}",
          f"v_mul_u32_u24 v{Q+1}, 9216, v{Q+1}", f"v_lshlrev_b32 v{Q}, 7, v{Q}", f"v_add_u32 v{Q}, {fullcol + 128}, v{Q}", f"v_add_u32 v{Q+1}, v{Q+1}, v{Q}",
          f"v_mov_b32 v{Q+2}, {oob}", f"v_cmp_gt_u32 vcc, 54, {L}", f"v_cndmask_b32 v{Q+1}, v{Q+2}, v{Q+1}, vcc", f"v_accvgpr_write_b32 a253, v{Q+1}")
        G(f"v_lshlrev_b32 v{Q}, 7, {L}", f"v_cmp_gt_u32 vcc, 41, {L}", f"v_cndmask_b32 v{Q}, v{Q+2}, v{Q}, vcc", f"v_accvgpr_write_b32 a254, v{Q}")
        G(f"v_lshrrev_b32 v{Q}, 1, {L}", f"v_mul_u32_u24 v{Q}, 1152, v{Q}", f"v_and_b32 v{Q+1}, 1, {L}", f"v_mul_u32_u24 v{Q+1}, 92, v{Q+1}",
          f"v_add_u32 v{Q}, v{Q}, v{Q+1}", f"v_cmp_gt_u32 vcc, 36, {L}", f"v_cndmask_b32 v{Q}, v{Q+2}, v{Q}, vcc", f"v_accvgpr_write_b32 a255, v{Q}")
    LRE, LIM, DT, E1, R1, M_, A_ = T + 3, T + 4, T + 5, T + 6, T + 7, T + 20, T + 21
    TB = T + 8; CH = T + 22
    G(f"v_lshlrev_b32 v{LRE}, 16, v{PLRE}", f"v_lshlrev_b32 v{LIM}, 16, v{PLIM}", f"v_lshlrev_b32 v{DT}, 16, v{PLDT}")
    G(f"v_mul_f32 v{DT}, {hex(LOG2E)}, v{DT}", f"v_exp_f32 v{DT}, v{DT}", f"v_lshrrev_b32 v{CH}, 3, v{VCH}",
      f"v_cvt_pk_bf16_f32 v{DT}, v{DT}, v{DT}", f"v_lshlrev_b32 v{DT}, 16, v{DT}")
    G(f"v_mul_f32 v{E1}, v{DT}, v{LRE}", f"v_mul_f32 v{R1}, v{DT}, v{LIM}", f"v_mul_f32 v{E1}, {hex(LOG2E)}, v{E1}", f"v_mul_f32 v{R1}, {hex(INV2PI)}, v{R1}")
    def cpow(dre, dim, nsrc):
        return [f"v_mul_f32 v{M_}, {nsrc}, v{E1}", f"v_mul_f32 v{A_}, {nsrc}, v{R1}", f"v_exp_f32 v{M_}, v{M_}", f"v_fract_f32 v{A_}, v{A_}",
                f"v_cos_f32 v{dre}, v{A_}", f"v_sin_f32 v{dim}, v{A_}", f"v_mul_f32 v{dre}, v{M_}, v{dre}", f"v_mul_f32 v{dim}, v{M_}, v{dim}"]
    G(*cpow(TB, TB + 1, "1.0")); G(*cpow(TB + 2, TB + 3, "2.0"))
    G(f"s_mov_b32 s{sT0}, 0x40400000"); G(*cpow(TB + 4, TB + 5, f"s{sT0}"))
    G(*cpow(TB + 6, TB + 7, "4.0"))
    G(f"v_mov_b32 v{A4}, v{TB+6}", f"v_mov_b32 v{A4+1}, v{TB+7}")
    G(f"s_mov_b32 s{sT0}, 0x42000000"); G(*cpow(A32, A32 + 1, f"s{sT0}"))
    G(f"s_mov_b32 s{sT0}, 0x43000000"); G(*cpow(A128, A128 + 1, f"s{sT0}"))
    G(f"s_lshl_b32 s{sT0}, s{sW}, 5", f"v_cvt_f32_u32 v{T+23}, s{sT0}"); G(*cpow(PW, PW + 1, f"v{T+23}"))
    KC = T
    G(f"v_add_f32 v{M_}, -1.0, v{TB}", f"v_mul_f32 v{A_}, v{LRE}, v{LRE}", f"v_fmac_f32 v{A_}, v{LIM}, v{LIM}", f"v_rcp_f32 v{A_}, v{A_}",
      f"v_mul_f32 v{KC}, v{M_}, v{LRE}", f"v_fmac_f32 v{KC}, v{TB+1}, v{LIM}",
      f"v_mul_f32 v{KC+1}, v{TB+1}, v{LRE}", f"v_fma_f32 v{KC+1}, -v{M_}, v{LIM}, v{KC+1}",
      f"v_mul_f32 v{KC}, v{KC}, v{A_}", f"v_mul_f32 v{KC+1}, v{KC+1}, v{A_}")
    G(f"v_cmp_gt_u32 vcc, {32 + 8*par}, v{CH}", f"v_mul_u32_u24 v{CH}, 48, v{CH}", f"v_add_u32 v{CH}, {TAB}, v{CH}",
      f"v_cndmask_b32 v{KC}, 0, v{KC}, vcc", f"v_cndmask_b32 v{KC+1}, 0, v{KC+1}, vcc")
    G(f"v_mov_b32 v{KC+2}, 0", f"v_mov_b32 v{KC+3}, 0")
    G(f"ds_write_b128 v{CH}, {vr(TB)}", f"ds_write_b128 v{CH}, {vr(TB+4)} offset:16", f"ds_write_b128 v{CH}, {vr(KC)} offset:32")
    per = int(opt.get("per", 12))
    if opt.get("lateinpro", "0") == "1":
        A(interleave(vm1, fill, per)); A(interleave(vm2, late, int(opt.get("per2", 14)))); late = []
        A(interleave(vm, [], 0))
    else:
        if opt.get("pffirst", "0") == "1":
            A(interleave(vm, [], 0)); A(interleave(vm1 + vm2, fill, per))
        elif opt.get("pffirst", "0") == "2":
            n0 = len(dma_items(0)) + 2 * len(xdma(0))
            A(interleave(vm1[:n0], fill[:57], per)); A(interleave(vm, [], 0)); A(interleave(vm1[n0:] + vm2, fill[57:], per))
        else:
            A(interleave(vm1 + vm2 + vm, fill, per))

    units, ustage, u0 = [], [], []
    for k, st in enumerate(stages):
        u0.append(len(units))
        for un in st.units: units.append(un); ustage.append(k)
    NU = len(units); u0.append(NU)

    def read_ins(u):
        un = units[u]; k = ustage[u]
        o = []; d = afrag(u)
        for (op, nreg, (kind, idx), off) in un["reads"]:
            s_ = setof(k)
            if kind == "abs": b, o2 = idx, off
            else:
                b = {"R": lambda: RB[2*s_ + idx], "T64": lambda: T64B[2*s_ + idx], "T128": lambda: T128B[4*s_ + idx], "C": lambda: CB[s_]}[kind]()
                o2 = off + slot_rel(k)
            assert o2 < 65536
            o.append(I(f"{op} {ar(d, nreg)}, v{b}" + (f" offset:{o2}" if o2 else ""))); d += nreg
        return o

    DEPTH = int(opt.get('depth', 6)); WE = int(opt.get('we', 4)); WOFF = int(opt.get('woff', 1)); RR = int(opt.get('rr', 0))
    def stamp(i):
        op = "s_memrealtime" if ts == "5" and i not in (59,) else "s_memtime"
        return [I(f"{op} s[100:101]"), I("s_waitcnt lgkmcnt(0)"), I(f"v_writelane_b32 v255, s100, {i}")]
    kH = 5; kF = lambda c: 8 + 6 * c; kPA = 32; kPM = 40
    kWB = kF(0) + 1
    kHA = kF(3) + int(opt.get('kha', 2))
    kHB = int(opt.get('khb', 38))
    kHC = int(opt.get('khc', 43))
    FUSE = opt.get('fuse', '1') == '1'
    kFM = int(opt.get("kfm", 46))
    BTAG = {kFM: ('pstM',) if FUSE else (), 1: ('xr2',), 4: ('xr8', 'xr7', 'xr6'), kWB: ('wtot',), kHA: ('hstA',), kHB: ('hstB',), kHC: ('hstC',)}
    if int(opt.get('kfa', 0)): BTAG[int(opt['kfa'])] = BTAG.get(int(opt['kfa']), ()) + ('pstA',)
    slots = []; bar_mf = {}
    fs = [int(x) for x in opt.get("fs", "").split(",") if x]
    for u in range(NU):
        un = units[u]; fr = ar(afrag(u))
        rd = read_ins(u + DEPTH) if u + DEPTH < NU else []
        pre = []
        kn = ustage[u + DEPTH] if u + DEPTH < NU else None
        if kn is not None and u + DEPTH == u0[kn]:
            if opt.get("splitbar", "1") == "1" and slots:
                slots[-1].pre = slots[-1].pre + [WaitTag(f"st{kn}", *BTAG.get(kn, ()))]
                pre += [I("s_barrier")]
            else:
                pre += [WaitTag(f"st{kn}", *BTAG.get(kn, ())), I("s_barrier")]
            if ts == "1" or (ts == "4" and kn in (5, 32)) or (ts == "5" and kn in (1, 5, 8, 14, 20, 26, 32, 36, 40, 43, 47)) or (ts == "2" and kn in (1, 2, 3, 4, 5, 8, 14, 20, 26, 32, 35, 40, 43, 47)): pre += stamp(kn + 1)
            bar_mf[kn] = 2 * u
        if ts == "3":
            k_ = ustage[u]
            if k_ in fs and (u - u0[k_]) % 3 == 0 and (u - u0[k_]) // 3 < 8:
                j_ = (u - u0[k_]) // 3
                pre += [I(f"s_memtime s[{78+2*j_}:{79+2*j_}]")]
            if k_ - 1 in fs and u == u0[k_] + 2:
                base_ = 8 * fs.index(k_ - 1) + 1
                pre += [I("s_waitcnt lgkmcnt(0)")] + [I(f"v_writelane_b32 v255, s{78+2*j_}, {base_ + j_}") for j_ in range(8)]
        if (u + WOFF) % WE == 0 or u == 0:
            rg = []
            for x in range(u, min(u + (WE if (u + WOFF) % WE == 0 else WE - WOFF), NU)): rg += regs_of(ar(afrag(x)))
            pre += [WaitRegs(rg)]
        for n in range(2):
            d, a, b, c = un["mf"][n]
            txt = mf(d, a, fr, c) if un["swap"] else mf(d, fr, b, c)
            if RR and len(rd) == 2 and u % RR == RR - 2: post = rd if n == 0 else []
            else: post = rd[n:n + 1] if n < len(rd) else []
            slots.append(Slot(txt, pre if n == 0 else [], post))
    mend = lambda k: 2 * u0[k + 1] - 1
    mbeg = lambda k: 2 * u0[k]
    if ts: A(stamp(60))
    A(WaitTag("x0")); A(xreads(0)); A(WaitTag("x1")); A(xreads(1))
    A(WaitTag("st0", "gw", "xr0", "xr1"), "s_barrier")
    if ts: A(stamp(1))
    for u in range(DEPTH): A(read_ins(u))

    mXB = mend(4)
    XS = 2 * len(stages[0].units)
    sD = Stream("dma", 0)
    fr_of = lambda j: [r for h in range(2) for n in range(2) for r in regs_of(xfrag(2*j+h, n))]
    def xd(j, e, dl, after=None):
        if after is not None: sD.add([WaitRegs(fr_of(after))], e, dl)
        for it in xdma(j): sD.add(it, e, dl)
    def xr(j, e, dl):
        sD.add([WaitTag(f"x{j}")], e, dl)
        for r_ in xreads(j): sD.add(r_, e, dl)
    if opt.get('x45', '1') != '1':
        xd(4, 0, 8); xd(5, 0, 16)
    xr(2, 0, 14); xr(3, 0, 20)
    for it in dma_items(2): sD.add(it, 0, 34)
    xd(6, 10, bar_mf[1] + 2, after=3)
    for it in dma_items(3): sD.add(it, bar_mf[1], bar_mf[1] + 16)
    xr(4, bar_mf[1], bar_mf[1] + 22)
    xd(7, bar_mf[1] + 8, bar_mf[1] + 34, after=4)
    xr(5, bar_mf[1] + 12, bar_mf[1] + 38)
    xd(8, bar_mf[1] + 24, bar_mf[2] + 4, after=5)
    for it in dma_items(4): sD.add(it, bar_mf[2], bar_mf[2] + 20)
    xr(6, bar_mf[2], bar_mf[3] - 8); xr(7, bar_mf[2], bar_mf[3] - 2)
    for it in dma_items(5): sD.add(it, bar_mf[3], bar_mf[3] + 16)
    xr(8, bar_mf[3] + 4, bar_mf[4] - 2)
    xdone = bar_mf[4]
    prev_user = {}; dma_e = {}; dma_d = {}; pf_time = [None]
    e_prev = bar_mf[3] + 16; d_prev = e_prev
    for k in range(NST):
        sl_ = slot_of(k)
        if k >= 6:
            e_ = bar_mf[prev_user[sl_] + 2] if sl_ in prev_user else bar_mf[4]
            if k in (7, 8): e_ = max(e_, bar_mf[4])
            e_ = max(e_, e_prev)
            if k == int(opt.get("kgap", 19)):
                pf_time[0] = d_prev + 1
                e_ = max(e_, d_prev + int(opt.get("gap", 110)))
            lead = int(opt.get("lead", 75))
            if k < int(opt.get("krelax", 16)): d_ = max(min(bar_mf[k] - lead, bar_mf[k] - 2), min(d_prev + 14, bar_mf[k] - 2), e_ + 4)
            else: d_ = min(max(e_ + 44, d_prev + 14), bar_mf[k] - 2)
            d_ = min(d_, bar_mf[k] - 2)
            for it in dma_items(k): sD.add(it, e_, d_)
            dma_e[k], dma_d[k] = e_, d_
            e_prev, d_prev = e_, d_
        prev_user[sl_] = k
    clr = [[f"s_lshl_b32 s{sT0}, s{sSLICE}, 4", f"s_add_u32 s{sT0}, s{sT0}, s{sTILE}", f"s_lshl_b32 s{sT1}, s{sT0}, 7", f"s_add_u32 s{sT1}, s{sT1}, {WS_F}",
            f"s_cmp_eq_u32 s{sW}, 0", f"s_cselect_b32 s{sT2}, 1, 0"],
           f"v_cmp_gt_u32 vcc, s{sT2}, {L}", f"v_mov_b32 v{TS}, {oob}", f"v_mov_b32 v{TS+1}, s{sT1}", f"v_mov_b32 v{TS+2}, s{sT0}", f"v_mov_b32 v{TS+3}, 0",
           f"v_cndmask_b32 v{TS+1}, v{TS}, v{TS+1}, vcc", f"v_cndmask_b32 v{GWB+0 if False else TA+2}, v{TS}, v{TS+2}, vcc",
           I(f"buffer_store_dword v{TS+3}, v{TS+1}, {sr(S_WS)}, 0 offen sc1", tag="clr")]
    sP = Stream("setup", 1)
    for x in clr: sP.add(x, 0, 60)
    for x in late: sP.add(x, 0, mXB)
    sCl = Stream("clr", 1)
    sCl.add([I(f"v_mov_b32 v64, 1"), WaitTag("clr"), I(f"buffer_store_byte v64, v{TA+2}, {sr(S_DBG)}, 0 offen sc1")], bar_mf[2], bar_mf[3] + 10)
    sA = Stream("addr", 1)
    sA.extend(voff_W1full(D1, TA + 2), bar_mf[3] + 12, dma_e[kF(0)])
    common = base_list_T128(T128B, 8, TA, None)
    sA.extend(common, xdone + 1, bar_mf[kF(0)])
    for idx in range(6): sA.extend(t128_regs(idx, TA), xdone + 1, bar_mf[kF(0)])
    for idx in range(6, 12): sA.extend(t128_regs(idx, TA), mXB + 1, bar_mf[kF(0)])
    sA.extend(voff_Wd(D2, TA), max(dma_d[7], mXB + 2), dma_e[kPA])
    sA.extend([x.replace(f'v{TA+2}', f'v{CB[2]}') for x in base_C(CB[0], TA)], bar_mf[kF(0)] + 4, bar_mf[40])
    sA.extend(voff_C(D1, TA), dma_d[kPA - 1], dma_e[40])
    last_use = {}; next_use = {}
    for k in range(kF(0), kPA): last_use[setof(k)] = k
    for k in range(NST - 1, kPA - 1, -1):
        if stages[k].fmt.startswith("Wd"): next_use[setof(k)] = k
    sB = Stream("bases", 1)
    order = sorted(range(3), key=lambda s_: last_use[s_])
    sB.add(f"v_lshrrev_b32 v{TA+2}, 4, {L}", bar_mf[last_use[order[0]] + 1], bar_mf[next_use[order[0]]] - 20)
    sB.add(f"v_lshlrev_b32 v{TA+2}, 9, v{TA+2}", bar_mf[last_use[order[0]] + 1], bar_mf[next_use[order[0]]] - 20)
    for s_ in order:
        for mt in range(4):
            r_ = T128B[4 * s_ + mt]
            sB.add(f"v_sub_u32 v{r_}, v{r_}, v{TA+2}", bar_mf[last_use[s_] + 1], bar_mf[next_use[s_]])

    sE = Stream("epi", 2)
    HST = opt.get("hst", " sc1")
    def hstore(reg, K, n, tag):
        off = (K * 2 + n) * 1024
        return [I(f"s_add_u32 s{sHT}, s{sHO}, {off & ~4095}"),
                I(f"buffer_store_dwordx4 {vr(reg)}, v{VST}, {sr(S_WS)}, s{sHT} offen" + (f" offset:{off & 4095}" if off & 4095 else "") + HST, tag=tag)]
    def ffn_epi(buf, Ks, earliest, deadline, tag):
        for kk, K in enumerate(Ks):
            for n in range(2):
                o = []
                gs = [buf + (2 * kk + h) * 8 + 4 * n for h in range(2)]; us = [buf + (4 + 2 * kk + h) * 8 + 4 * n for h in range(2)]
                for h in range(2):
                    g, u_ = gs[h], us[h]
                    if opt.get("norho"):
                        for r in range(4): o += [f"v_max_f32 v{g+r}, 0, v{g+r}"]
                    else:
                        for r in range(4): o += [f"v_max_f32 v{g+r}, 0, v{g+r}", f"v_mul_f32 v{u_+r}, v{SF+n}, v{u_+r}"]
                    for r in range(4): o += [f"v_mul_f32 v{g+r}, v{g+r}, v{u_+r}"]
                d = us[0]
                o += [f"v_cvt_pk_bf16_f32 v{d}, v{gs[0]}, v{gs[0]+1}", f"v_cvt_pk_bf16_f32 v{d+1}, v{gs[0]+2}, v{gs[0]+3}",
                      f"v_cvt_pk_bf16_f32 v{d+2}, v{gs[1]}, v{gs[1]+1}", f"v_cvt_pk_bf16_f32 v{d+3}, v{gs[1]+2}, v{gs[1]+3}"]
                h_ = AH + 8 * K + 4 * n
                o += [f"v_accvgpr_write_b32 a{h_+j}, v{d+j}" for j in range(4)]
                sE.extend(o, earliest, deadline)
                sE.add(hstore(d, K, n, tag), earliest, deadline)
    ffn_epi(ACC[0], [8], mend(kH + 2) + 4, mbeg(kF(1)), "hstA")
    ffn_epi(ACC[1], [0, 1], mend(kF(0) + 5) + 4, mbeg(kF(2)), "hstA")
    ffn_epi(ACC[0], [2, 3], mend(kF(1) + 5) + 4, mbeg(kF(3)) - 60, "hstA")
    ffn_epi(ACC[1], [4, 5], mend(kF(2) + 5) + 4, mbeg(kPA), "hstB")
    ffn_epi(ACC[0], [6, 7], mend(kF(3) + 5) + 4, mbeg(35) - 4, "hstB")
    PST = opt.get("pst", " sc1")
    kAend = 48 if ORD2 == 0 else 47
    kFA = int(opt.get('kfa', 0))
    DLP = {2: bar_mf[kFM - 2] if FUSE else None, 0: (bar_mf[kFA - 1] if kFA else None), 1: None}
    for p, k1 in ((2, 42), (0, kAend), (1, 50)):
        nm = 8 if p < 2 else 4
        last = mend(k1)
        sreg = sP8 if p < 2 else sP16
        for m in range(nm):
            if p < 2:
                a = ACC[(p + 1) & 1] + m * 8
                o = []
            else:
                a = T + 8 * (m & 1)
                o = [f"v_accvgpr_read_b32 v{a+j}, a{PMACC[m]+j}" for j in range(8)]
            o += [f"v_cvt_pk_bf16_f32 v{a}, v{a}, v{a+1}", f"v_cvt_pk_bf16_f32 v{a+1}, v{a+2}, v{a+3}",
                  f"v_cvt_pk_bf16_f32 v{a+2}, v{a+4}, v{a+5}", f"v_cvt_pk_bf16_f32 v{a+3}, v{a+6}, v{a+7}"]
            sE.extend(o, last + 4, DLP[p])
            imm = 1024 * (m % 4)
            sE.add(f"buffer_store_dwordx4 {vr(a)}, v{VST}, {sr(S_WS)}, s{sreg} offen" + (f" offset:{imm}" if imm else "") + PST, last + 4, DLP[p])
            sE.q[-1][0][0].tag = "pst" + "ABM"[p]
            if p == 1:
                for it in list(sE.q)[-(len(o) + 1):]:
                    for x in it[0]: x.pbepi = True
            if m % 4 == 3:
                sE.add(f"s_add_u32 s{sreg}, s{sreg}, 4096", last + 4, DLP[p])
                if p == 1: sE.q[-1][0][0].pbepi = True

    sS = Stream("ssm", 3)
    e = [mXB + 4]
    add = lambda x, deadline=None: sS.add(x, e[0], deadline)
    def adds(lst, **kw):
        for x in lst: add(x, **kw)
    dlG = mend(kH + 2)
    G0, G1, Z = T, T + 1, T + 2
    adds([f"v_lshrrev_b32 v{G0}, 4, {L}", f"v_lshlrev_b32 v{G0}, 4, v{G0}", f"v_add_u32 v{G0}, s{sW3}, v{G0}", f"v_add_u32 v{G0}, {PRIV}, v{G0}"])
    for n in range(2): add(f"ds_write_b128 v{G0}, {vr(LG+4*n)} offset:{64*n}")
    adds([f"v_and_b32 v{G1}, 31, {L}", f"v_lshlrev_b32 v{G1}, 2, v{G1}", f"v_add_u32 v{G1}, s{sW3}, v{G1}", f"v_add_u32 v{G1}, {PRIV}, v{G1}",
          f"ds_read_b32 v{Z}, v{G1}"])
    TA1 = T + 8
    adds([f"v_and_b32 v{VT}, 15, {L}", f"v_mul_u32_u24 v{VT}, 48, v{VT}", f"v_add_u32 v{VT}, {TAB}, v{VT}"])
    for b in range(nS): add(f"ds_read_b64 {vr(TA1+2*b, 2)}, v{VT} offset:{b*768}")
    adds([f"v_cvt_pk_bf16_f32 v{Z}, v{Z}, v{Z}", f"v_lshlrev_b32 v{Z}, 16, v{Z}", f"v_mul_f32 v{Z}, {hex(LOG2E ^ 0x80000000)}, v{Z}", f"v_exp_f32 v{Z}, v{Z}",
          f"v_lshrrev_b32 v{VE}, 4, {L}",
          f"v_add_f32 v{Z}, 1.0, v{Z}", f"v_rcp_f32 v{Z}, v{Z}", f"v_mul_u32_u24 v{VE}, 384, v{VE}",
          f"v_cvt_pk_bf16_f32 v{Z}, v{Z}, v{Z}", f"v_lshlrev_b32 v{Z}, 16, v{Z}",
          f"v_sub_f32 v{T+3}, 1.0, v{Z}", f"v_cvt_pk_bf16_f32 v{T+3}, v{T+3}, v{T+3}", f"v_lshlrev_b32 v{T+3}, 16, v{T+3}", f"v_add_f32 v{T+4}, v{Z}, v{Z}",
          f"ds_write_b32 v{G1}, v{T+3} offset:128", f"ds_write_b32 v{G1}, v{T+4} offset:256", f"ds_write_b32 v{G1}, v{Z} offset:384"])
    if par == 0:
        add([f"s_lshl_b32 s{sT0}, s{sTILE}, 7", f"s_lshl_b32 s{sT1}, s{sW}, 5", f"s_add_u32 s{sT0}, s{sT0}, s{sT1}", f"s_lshl_b32 s{sT0}, s{sT0}, 2",
             f"s_add_u32 s{sT0}, s{sT0}, {WS_G}", f"s_cmp_eq_u32 s{sSLICE}, 0", f"s_cselect_b32 s{sT1}, 32, 0"])
        adds([f"v_lshlrev_b32 v{T+5}, 2, {L}", f"v_cmp_gt_u32 vcc, s{sT1}, {L}", f"v_mov_b32 v{T+6}, {oob}",
              f"v_cndmask_b32 v{T+5}, v{T+6}, v{T+5}, vcc", I(f"buffer_store_dword v{Z}, v{T+5}, {sr(S_WS)}, s{sT0} offen sc1", tag="sst")])
    adds([f"v_and_b32 v{T+7}, 15, {L}", f"v_lshlrev_b32 v{T+7}, 2, v{T+7}", f"v_add_u32 v{T+7}, s{sW3}, v{T+7}", f"v_add_u32 v{T+7}, {PRIV}, v{T+7}"])
    for n in range(2): add(f"ds_read_b32 v{SF+n}, v{T+7} offset:{128+64*n}")
    for n in range(2): add(f"ds_read_b128 {vr(LG+4*n)}, v{G0} offset:{256+64*n}")
    for n in range(2): add(f"ds_read_b32 v{T+5+n}, v{T+7} offset:{384+64*n}")
    adds([f"v_and_b32 v{VE+1}, 15, {L}", f"v_lshlrev_b32 v{VE+1}, 3, v{VE+1}", f"v_add_u32 v{VE}, v{VE}, v{VE+1}", f"v_add_u32 v{VE}, s{sW3}, v{VE}",
          f"v_add_u32 v{VE}, {PRIV}, v{VE}", f"v_add_u32 v{VE+1}, 1536, v{VE}"])
    add(WaitRegs([f"v{SF}", f"v{SF+1}"] + regs_of(vr(LG, 8))), deadline=dlG)
    adds([f"v_accvgpr_write_b32 a249, v{T+5}", f"v_accvgpr_write_b32 a250, v{T+6}"])
    for r in range(1, 4):
        for b in range(nS):
            are, aim = TA1 + 2 * b, TA1 + 2 * b + 1
            for n in range(2):
                R, Im = xb(b, 0, n), xb(b, 1, n)
                adds([f"v_fmac_f32 v{R+r}, v{are}, v{R+r-1}", f"v_fmac_f32 v{Im+r}, v{are}, v{Im+r-1}"])
            for n in range(2):
                R, Im = xb(b, 0, n), xb(b, 1, n)
                adds([f"v_fma_f32 v{R+r}, -v{aim}, v{Im+r-1}, v{R+r}", f"v_fmac_f32 v{Im+r}, v{aim}, v{R+r-1}"])
    for b in range(nS):
        for n in range(2):
            add(f"ds_write2_b32 v{VE+n}, v{xb(b,0,n)+3}, v{xb(b,1,n)+3} offset0:{32*b} offset1:{32*b+1}")
    adds([f"v_add_u32 v{VP}, s{sW3}, v{VCH}", f"v_add_u32 v{VP}, {PRIV}, v{VP}"])
    for m in range(8): add(f"ds_read_b64 {vr(T+2*m, 2)}, v{VP} offset:{384*m}")
    add([f"s_mul_i32 s{sT0}, s{sW}, 384", f"s_add_u32 s{sT0}, s{sT0}, {WTOT}"]); add(f"v_add_u32 v{TS}, s{sT0}, v{VCH}")
    for m in range(1, 8): adds(cmul_acc(T + 2*m, T + 2*m + 1, A4, A4 + 1, T + 2*m - 2, T + 2*m - 1))
    add(I(f"ds_write_b64 v{TS}, {vr(T+14, 2)}", tag="wtot"), deadline=bar_mf[kWB] - 2)
    e[0] = bar_mf[kWB]
    adds([f"v_add_u32 v{TS}, {WTOT}, v{VCH}"])
    for m in range(4): add(f"ds_read_b64 {vr(T+2*m, 2)}, v{TS} offset:{384*m}")
    add([f"s_mul_i32 s{sT0}, s{sTILE}, 384", f"s_cmp_eq_u32 s{sW}, 0", f"s_cselect_b32 s{sT1}, 48, 0"])
    adds([f"v_add_u32 v{TS+1}, s{sT0}, v{VCH}", f"v_cmp_gt_u32 vcc, s{sT1}, {L}", f"v_mov_b32 v{TS+2}, {oob}"])
    for m in range(1, 4): adds(cmul_acc(T + 2*m, T + 2*m + 1, A32, A32 + 1, T + 2*m - 2, T + 2*m - 1))
    adds([f"v_cndmask_b32 v{TS+1}, v{TS+2}, v{TS+1}, vcc"])
    add(I(f"buffer_store_dwordx2 {vr(T+6, 2)}, v{TS+1}, {sr(S_S)}, 0 offen sc1", tag="sst"))
    XF, XP, XT = P1 + 3, P1 + 4, P1 + 5
    eX = bar_mf[kF(0)] + 4
    sX_ = Stream("xch", 2)
    sX_.add([f"s_lshl_b32 s{sQ+1}, s{sSLICE}, 4", f"s_add_u32 s{sQ+1}, s{sQ+1}, s{sTILE}", f"s_lshl_b32 s{sQ+1}, s{sQ+1}, 7", f"s_add_u32 s{sQ+1}, s{sQ+1}, {WS_F}",
             f"s_cmp_eq_u32 s{sW}, 0", f"s_cselect_b32 s{sQ+2}, 1, 0"], eX, bar_mf[kWB] + 8)
    for x in [f"v_mov_b32 v{XF}, s{sQ+1}", f"v_cmp_gt_u32 vcc, s{sQ+2}, {L}", f"v_mov_b32 v{XT}, {oob}", f"v_cndmask_b32 v{XF}, v{XT}, v{XF}, vcc",
              [f"s_sub_u32 s{sQ+1}, s{sQ+1}, {WS_F}", f"s_xor_b32 s{sQ+1}, s{sQ+1}, 2048", f"s_add_u32 s{sQ+1}, s{sQ+1}, {WS_F}"], f"v_mov_b32 v{XP}, s{sQ+1}"]:
        sX_.add(x, eX, bar_mf[kWB] + 8)
    add([I(f"v_mov_b32 v{TS+3}, 1"), WaitTag("sst"), I(f"buffer_store_dword v{TS+3}, v{XF}, {sr(S_WS)}, 0 offen sc1")])
    slow = []
    def poll(emit, name, areg, dreg, cond_instrs, cnt, dbg=False):
        ld = f"buffer_load_ubyte v{dreg}, v{areg}, {sr(S_DBG)}, 0 offen sc1" if dbg else f"buffer_load_dword v{dreg}, v{areg}, {sr(S_WS)}, 0 offen sc1"
        emit(ld, False)
        emit([I(x) for x in cond_instrs] + [I("s_cmp_eq_u64 vcc, -1"), I(f"s_cbranch_scc0 L_slow_{name}{par}"), I(f"L_back_{name}{par}:")], True)
        slow.extend([I(f"L_slow_{name}{par}:"), I(f"s_mov_b32 s{cnt}, 0"), I(f"L_slowl_{name}{par}:"), I("s_sleep 1"), I(ld), I("s_waitcnt vmcnt(0)")]
                    + [I(cond_instrs[0]), I("s_nop 4")] + [I(x) for x in cond_instrs[1:]]
                    + [I("s_cmp_eq_u64 vcc, -1"), I(f"s_cbranch_scc1 L_back_{name}{par}"), I(f"s_add_u32 s{cnt}, s{cnt}, 1"), I(f"s_cmp_lt_u32 s{cnt}, 0x40000"),
                       I(f"s_cbranch_scc1 L_slowl_{name}{par}"), I(f"s_branch L_back_{name}{par}")])
    kPoll = int(opt.get("kpoll", kF(1)))
    pace_from = [len(sS.q)]
    e[0] = bar_mf[kPoll]
    adds([[f"s_lshl_b32 s{sT0}, s{sSLICE}, 4", f"s_sub_u32 s{sT1}, s{sTILE}, 256"],
          f"v_add_u32 v{TS}, s{sT0}, {L}", f"v_lshlrev_b32 v{TS+2}, 4, {L}", f"v_add_u32 v{TS+2}, s{sT1}, v{TS+2}",
          f"v_cmp_gt_u32 vcc, 16, {L}", f"v_cndmask_b32 v{TS}, v{TS+2}, v{TS}, vcc",
          f"v_mov_b32 v{TS+2}, {oob}", f"v_cmp_gt_u32 vcc, 32, {L}", f"v_cndmask_b32 v{TS}, v{TS+2}, v{TS}, vcc"])
    poll(lambda x, chk: add(x), "C", TS, TS + 1, [f"v_cmp_ne_u32 vcc, 0, v{TS+1}", f"s_or_b32 vcc_hi, vcc_hi, -1"], sT2, dbg=True)
    adds([[f"s_lshl_b32 s{sT0}, s{sSLICE}, 11", f"s_add_u32 s{sT0}, s{sT0}, {WS_F}"], f"v_lshlrev_b32 v{TS}, 7, {L}", f"v_add_u32 v{TS}, s{sT0}, v{TS}",
          f"v_cmp_gt_u32 vcc, 16, {L}", f"v_mov_b32 v{TS+2}, {oob}", f"v_cndmask_b32 v{TS}, v{TS+2}, v{TS}, vcc"])
    poll(lambda x, chk: add(x), "S", TS, TS + 1, [f"v_cmp_ne_u32 vcc, 0, v{TS+1}", f"s_or_b64 vcc, vcc, s[{sMASK}:{sMASK+1}]"], sT2)
    add([f"s_mul_i32 s{sT0}, s{sTILE}, 384"]); add(f"v_add_u32 v{TS}, s{sT0}, v{VCH}")
    for idx, k in enumerate(range(15, 7, -1)):
        t_ = TS + 1 + (idx & 1)
        add(f"v_subrev_u32 v{t_}, {k*384}, v{TS}")
        add(f"buffer_load_dwordx2 {vr(T+2*idx, 2)}, v{t_}, {sr(S_S)}, 0 offen sc1")
    CC = TS + 2
    for m in range(1, 8): adds(cmul_acc(T + 2*m, T + 2*m + 1, A128, A128 + 1, T + 2*m - 2, T + 2*m - 1))
    adds([f"v_mov_b32 v{CC}, v{T+14}", f"v_mov_b32 v{CC+1}, v{T+15}"])
    for idx, k in enumerate(range(7, 0, -1)):
        add(f"v_subrev_u32 v{TS+1}, {k*384}, v{TS}")
        add(f"buffer_load_dwordx2 {vr(T+2*idx, 2)}, v{TS+1}, {sr(S_S)}, 0 offen sc1")
    adds(cmul_acc(T, T + 1, A128, A128 + 1, CC, CC + 1))
    for m in range(1, 7): adds(cmul_acc(T + 2*m, T + 2*m + 1, A128, A128 + 1, T + 2*m - 2, T + 2*m - 1))
    adds([f"v_mov_b32 v{CC}, v{T+12}", f"v_mov_b32 v{CC+1}, v{T+13}"])
    for k in (3, 2, 1):
        add([f"s_sub_u32 s{sT0}, s{sW}, {k}", f"s_max_i32 s{sT0}, s{sT0}, 0", f"s_mul_i32 s{sT0}, s{sT0}, 384", f"s_add_u32 s{sT0}, s{sT0}, {WTOT}"])
        add(f"v_add_u32 v{TS}, s{sT0}, v{VCH}")
        add(f"ds_read_b64 {vr(T+2*(3-k), 2)}, v{TS}")
    for k, sm in ((3, sM3), (2, sM2), (1, sM1)):
        j = T + 2 * (3 - k)
        adds([f"v_mul_f32 v{j}, s{sm}, v{j}", f"v_mul_f32 v{j+1}, s{sm}, v{j+1}"])
    adds(cmul_acc(T + 2, T + 3, A32, A32 + 1, T, T + 1)); adds(cmul_acc(T + 4, T + 5, A32, A32 + 1, T + 2, T + 3))
    adds(cmul_acc(T + 4, T + 5, PW, PW + 1, CC, CC + 1))
    adds([f"v_mov_b32 v{CC}, v{T+4}", f"v_mov_b32 v{CC+1}, v{T+5}"])
    for m in range(7): add(f"ds_read_b64 {vr(T+2*m, 2)}, v{VP} offset:{384*m}")
    add(f"ds_write_b64 v{VP}, {vr(CC, 2)}")
    adds(cmul_acc(T, T + 1, A4, A4 + 1, CC, CC + 1))
    add(f"ds_write_b64 v{VP}, {vr(T, 2)} offset:384")
    for m in range(1, 7):
        adds(cmul_acc(T + 2*m, T + 2*m + 1, A4, A4 + 1, T + 2*m - 2, T + 2*m - 1))
        add(f"ds_write_b64 v{VP}, {vr(T+2*m, 2)} offset:{384*(m+1)}")
    VW, VR = TS, TS + 1
    adds([f"v_and_b32 v{VW}, 15, {L}", f"v_lshlrev_b32 v{VW}, 5, v{VW}", f"v_lshrrev_b32 v{VR}, 4, {L}", f"v_lshlrev_b32 v{VR}, 3, v{VR}",
          f"v_add_u32 v{VW}, v{VW}, v{VR}", f"v_add_u32 v{VW}, s{sW3}, v{VW}", f"v_add_u32 v{VW}, {PRIV}, v{VW}",
          f"v_lshlrev_b32 v{VR}, 3, {L}", f"v_add_u32 v{VR}, s{sW3}, v{VR}", f"v_add_u32 v{VR}, {PRIV}, v{VR}"])
    dlS = bar_mf[40] - int(opt.get('dls', 10))
    for n in range(2):
        for b in range(nS): add(f"ds_read_b64 {vr(T+2*b, 2)}, v{VE+n} offset:{128*b}")
        for b in range(nS):
            TBL = T + 6
            adds([f"ds_read_b128 {vr(TBL)}, v{VT} offset:{b*768}", f"ds_read_b128 {vr(TBL+4)}, v{VT} offset:{b*768+16}", f"ds_read_b64 {vr(TBL+8, 2)}, v{VT} offset:{b*768+32}"])
            R, Im = xb(b, 0, n), xb(b, 1, n)
            cre, cim = T + 2 * b, T + 2 * b + 1
            for r in range(4): adds(cmul_acc(R + r, Im + r, TBL + 2*r, TBL + 2*r + 1, cre, cim))
            kr, ki, tt = TBL + 8, TBL + 9, TS + 2
            for r in range(4):
                t_ = tt + (r & 1)
                adds([f"v_mul_f32 v{t_}, v{kr}, v{R+r}", f"v_fma_f32 v{t_}, -v{ki}, v{Im+r}, v{t_}",
                      f"v_mul_f32 v{Im+r}, v{kr}, v{Im+r}", f"v_fmac_f32 v{Im+r}, v{ki}, v{R+r}",
                      f"v_mul_f32 v{R+r}, v{LG+4*n+r}, v{t_}", f"v_mul_f32_e64 v{Im+r}, -v{LG+4*n+r}, v{Im+r}"])
            adds([f"v_cvt_pk_bf16_f32 v{R}, v{R}, v{R+1}", f"v_cvt_pk_bf16_f32 v{R+1}, v{R+2}, v{R+3}",
                  f"v_cvt_pk_bf16_f32 v{Im}, v{Im}, v{Im+1}", f"v_cvt_pk_bf16_f32 v{Im+1}, v{Im+2}, v{Im+3}"])
            so = 1536 * n
            adds([f"ds_write_b64 v{VW}, {vr(R, 2)} offset:{so}", f"ds_write_b64 v{VW}, {vr(Im, 2)} offset:{so+512}",
                  f"ds_read_b64_tr_b16 {vr(R, 2)}, v{VR} offset:{so}", f"ds_read_b64_tr_b16 {vr(R+2, 2)}, v{VR} offset:{so+512}"])
    for n in range(2):
        for b in range(nS):
            off = ((9 + b) * 2 + n) * 1024
            add([I(f"s_add_u32 s{sT0}, s{sHO}, {off & ~4095}"),
                 I(f"buffer_store_dwordx4 {vr(xb(b,0,n))}, v{VST}, {sr(S_WS)}, s{sT0} offen" + (f" offset:{off & 4095}" if off & 4095 else "") + HST, tag="hstC")],
                deadline=dlS)
    def hload(K, n):
        off = (K * 2 + n) * 1024
        return [I(f"s_add_u32 s{sQ+1}, s{sHP}, {off & ~4095}"),
                I(f"buffer_load_dwordx4 {ar(hp_reg(K) + 4*n)}, v{VST}, {sr(S_WS)}, s{sQ+1} offen" + (f" offset:{off & 4095}" if off & 4095 else "") + " sc1")]
    sFl = Stream("flag", 1)
    def flag(val, k):
        sFl.add(f"v_mov_b32 v{XT}, {val}", bar_mf[k], bar_mf[k] + 6)
        sFl.add(f"buffer_store_dword v{XT}, v{XF}, {sr(S_WS)}, 0 offen sc1", bar_mf[k], bar_mf[k] + 10)
    def xpoll(name, val, t_load, t_chk, Ks, dl):
        tt = [t_load]
        def emit(x, chk):
            if chk: sX_.add(x, t_chk, t_chk + 10)
            else: sX_.add(x, t_load, t_load + 10)
        poll(emit, name, XP, GWB, [f"v_cmp_le_u32 vcc, {val}, v{GWB}"], sQ + 2)
        for K in Ks:
            for n in range(2): sX_.add(hload(K, n), t_chk, dl)
    flag(2, kHA)
    needA = mbeg(43); needB = mbeg(45 if ORD2 == 0 else 44); needC = mbeg(48 if ORD2 == 0 else 47)
    firstA = [8, 0, 1, 2, 3] if par == 0 else [0, 1, 2, 3, 8]
    tA = int(opt.get("tA", 190)); tB = int(opt.get("tB", 150))
    kA0 = int(opt.get("ka0", 34 if ORD2 == 0 else 33))
    xpoll("A", 2, mbeg(kA0), mbeg(kA0) + 90, firstA, mbeg(kA0 + 4))
    flag(3, kHB)
    xpoll("B", 3, needB - tB - 80, needB - tB, [4, 5, 6, 7], needB - 70)
    flag(4, kHC)
    if FUSE: flag(5, kFM)
    if FUSE and kFA: flag(6, kFA)
    xpoll("D", 4, needC - 120 - 70, needC - 120, [9 + b for b in range(nSP)], needC - 70)

    sW_ = Stream("warm", 5)
    if opt.get("nopf") is None:
        PVL = TA + 2
        def pf(e_, areg, sset, srd_, dst):
            tight = pf_time[0] is not None and e_ >= pf_time[0]
            sW_.add(f"v_accvgpr_read_b32 v{PVL}, a{areg}", e_ - (12 if tight else 0), e_ + (2 if tight else 30))
            for x in sset: sW_.add(x, e_ - (12 if tight else 0), e_ + (2 if tight else 30))
            sW_.add(f"buffer_load_dword a{dst}, v{PVL}, {sr(srd_)}, s{sQ} offen{PFL}", e_, e_ + (6 if tight else 40))
        t_a = int(opt.get("pf_a", mbeg(kH) + 30))
        which = opt.get("pfall", "")
        if "a" not in which: pf(t_a, 253, [f"s_mul_i32 s{sQ}, s{sT4}, {18*9216}", f"s_mul_i32 s{sQ+3}, s{sSLICE}, 576", f"s_add_u32 s{sQ}, s{sQ}, s{sQ+3}"], S_W1, 252)
        t_d = int(opt.get("pf_d", mbeg(kF(1)) + 20))
        t_c = t_d + 100
        if pf_time[0] is not None: t_d = pf_time[0]; t_c = t_d + 8
        if "d" not in which: pf(t_d, 254, [f"s_lshl_b32 s{sQ}, s{sTILE}, 2", f"s_add_u32 s{sQ}, s{sQ}, s{sW}", f"s_mul_i32 s{sQ}, s{sQ}, {41*128}",
                      f"s_mul_i32 s{sQ+3}, s{sSLICE}, {288*1152}", f"s_add_u32 s{sQ}, s{sQ}, s{sQ+3}"], S_WD, 248)
        if "c" not in which: pf(t_c, 255, [f"s_mul_i32 s{sQ}, s{sT4}, {18*1152}", f"s_lshl_b32 s{sQ+3}, s{sC0}, 1", f"s_add_u32 s{sQ}, s{sQ}, s{sQ+3}"], S_C, 251)
    pace(sS, pace_from[0], bar_mf[kPoll], dlS - 10)
    streams = [sD, sP, sCl, sA, sB, sE, sS, sX_, sFl, sW_]
    if FUSE:
        sR, sR2 = reduce_prep(opt, par, bar_mf[46], bar_mf[int(opt.get("kmchk", 50))] + int(opt.get("tmchk", 0)), mend(NST - 1))
        streams += [sR, sR2]
    strip = opt.get("strip", "")
    if "e" in strip: streams = [x for x in streams if x not in (sE, sS, sX_, sFl, sW_, sCl)]; slow = []
    if "S" in strip: streams = [x for x in streams if x not in (sS, sX_, sFl, sW_, sCl)]; slow = []
    if "E" in strip: streams = [x for x in streams if x is not sE]
    if "h" in strip: sE.q = deque(it for it in sE.q if not any(x.kind == "vm_st" for x in it[0]))
    if "X" in strip: streams = [x for x in streams if x not in (sX_, sFl)]; slow = [x for x in slow if False]
    if "b" in strip:
        for sl in slots: sl.pre = [x for x in sl.pre if x.kind != "barrier"]
    if "d" in strip:
        keep = deque(it for it in sD.q if not any(getattr(x, "tag", "") and str(x.tag).startswith("st") and int(x.tag[2:]) > 8 for x in it[0]))
        sD.q = keep
    if "r" in strip:
        for sl in slots[400:]: sl.post = []
    fw.DMA_GAP = int(opt.get('dgap', 7)); fw.DMA_GAP_FROM = mXB - 20
    body, rest, stats = schedule(slots, streams)
    tail = rest
    if FUSE:
        pb = [x for x in rest if getattr(x, "pbepi", False)]
        others = [x for x in rest if not getattr(x, "pbepi", False)]
        if opt.get("tailv", "1") in ("2", "3"): tail = others + final_reduce(opt, par, XF, XT, GWB, slow, pb)
        else: tail = rest + final_reduce(opt, par, XF, XT, GWB, slow, None)
    if ts:
        tail = tail + stamp(58) + [I("s_waitcnt vmcnt(0)")] + stamp(59) + [I("s_memrealtime s[100:101]"), I("s_waitcnt lgkmcnt(0)"), I("v_writelane_b32 v255, s100, 62")]
        tail += expand([f"s_lshl_b32 s{sT0}, s2, 2", f"s_add_u32 s{sT0}, s{sT0}, s{sW}", f"s_lshl_b32 s{sT0}, s{sT0}, 8", f"s_add_u32 s{sT0}, s{sT0}, {WS_END}",
                        f"v_lshlrev_b32 v1, 2, {L}", f"buffer_store_dword v255, v1, {sr(S_WS)}, s{sT0} offen"])
    for b_ in check_flags(body)[:10]: print('FLAG HAZARD', par, b_)
    prog = pro + body + tail
    prog, nw = insert_waits(prog)
    prog, nn = pad_hazards(prog)
    ol = stats.pop("overlog")
    stats["over_by_stage"] = [sum(ol[2*u0[k]:2*u0[k+1]]) for k in range(NST)]
    info = dict(stats, rate=round(sS.rate, 2), NU=NU, nwait=nw, nnop=nn, ninstr=len(prog), tail=len(tail))
    txt = render(prog) + "\n  s_endpgm\n" + render(slow) + "\n"
    return txt, info


def build_reduce(opt):
    o = []
    A = lambda *x: o.extend(expand(list(x)))
    A("s_cmp_ge_u32 s2, 576", "s_cbranch_scc1 L_red_end")
    if opt.get("ts"): A("s_memrealtime s[80:81]")
    A("s_load_dwordx2 s[64:65], s[0:1], 0", "s_load_dwordx2 s[66:67], s[0:1], 64", "s_load_dwordx2 s[68:69], s[0:1], 112", "s_load_dwordx2 s[70:71], s[0:1], 128")
    A("v_lshrrev_b32 v1, 6, v0", "v_and_b32 v2, 63, v0")
    A("v_readfirstlane_b32 s20, v1")
    A("s_lshl_b32 s21, s2, 2", "s_add_u32 s21, s21, s20")
    A("s_mul_i32 s22, s21, 1821", "s_lshr_b32 s22, s22, 16")
    A("s_mul_i32 s23, s22, 36", "s_sub_u32 s23, s21, s23")
    A("s_lshl_b32 s25, s22, 5")
    A("v_lshlrev_b32 v3, 4, v2", "v_and_b32 v4, 15, v2", "v_lshrrev_b32 v5, 4, v2")
    A("s_sub_u32 s29, s23, 4", "s_cmp_ge_u32 s23, 20", "s_cselect_b32 s29, s29, s23")
    A("s_lshl_b32 s24, s22, 15", "s_lshl_b32 s29, s29, 10", "s_add_u32 s24, s24, s29", f"s_add_u32 s24, s24, {WS_P8}")
    A(f"s_mov_b32 s30, {16*4*32768}")
    A("s_lshl_b32 s31, s22, 12", "s_sub_u32 s29, s23, 16", "s_lshl_b32 s33, s29, 10", "s_add_u32 s31, s31, s33", f"s_add_u32 s31, s31, {WS_P16}")
    A("s_cmp_lt_u32 s29, 4", "s_cselect_b32 s24, s31, s24", f"s_cselect_b32 s30, {16*4*4096}, s30", "s_cselect_b32 s34, 1, 0")
    A("s_waitcnt lgkmcnt(0)")
    A(srd(4, "s70", "s71", WS_END), srd(8, "s64", "s65", 2359296), srd(12, "s66", "s67", 1152), srd(16, "s68", "s69", 4718592))
    RLD = opt.get("rld", "")
    for s_ in range(8):
        A(f"buffer_load_dwordx4 {vr(32+4*s_)}, v3, s[4:7], s24 offen{RLD}", "s_add_u32 s24, s24, s30")
    A("s_cmp_eq_u32 s34, 1", "s_cselect_b32 s24, s24, 0x7ff00000", "s_cselect_b32 s30, s30, 0")
    for s_ in range(8, 16):
        A(f"buffer_load_dwordx4 {vr(32+4*s_)}, v3, s[4:7], s24 offen{RLD}", "s_add_u32 s24, s24, s30")
    A("s_lshl_b32 s26, s23, 4", "v_lshlrev_b32 v6, 2, v5", "v_add_u32 v6, s26, v6")
    A("v_add_u32 v7, s25, v4")
    A("v_mul_u32_u24 v8, 576, v7", "v_add_u32 v8, v8, v6")
    A("v_lshlrev_b32 v9, 1, v8", "v_lshlrev_b32 v10, 2, v8", "v_lshlrev_b32 v11, 1, v6", "v_lshlrev_b32 v12, 2, v7")
    A("buffer_load_dwordx2 v[14:15], v9, s[8:11], 0 offen")
    A("s_mov_b32 s27, 18432", "buffer_load_dwordx2 v[16:17], v9, s[8:11], s27 offen")
    A("buffer_load_dwordx2 v[18:19], v11, s[12:15], 0 offen")
    A(f"s_mov_b32 s28, {WS_G}", "buffer_load_dword v20, v12, s[4:7], s28 offen", "buffer_load_dword v21, v12, s[4:7], s28 offen offset:64")
    for r in range(8): A(f"v_mov_b32 v{100+r}, 0")
    for s_ in range(16):
        for j in range(4):
            src = 32 + 4 * s_ + j
            A(f"v_lshlrev_b32 v22, 16, v{src}", f"v_and_b32 v23, 0xffff0000, v{src}", f"v_add_f32 v{100+2*j}, v{100+2*j}, v22", f"v_add_f32 v{101+2*j}, v{101+2*j}, v23")
    for n in range(2):
        for j in range(2):
            xs, ds = 14 + 2 * n + j, 18 + j
            A(f"v_lshlrev_b32 v22, 16, v{xs}", f"v_and_b32 v23, 0xffff0000, v{xs}", f"v_lshlrev_b32 v24, 16, v{ds}", f"v_and_b32 v25, 0xffff0000, v{ds}",
              "v_mul_f32 v22, v22, v24", "v_mul_f32 v23, v23, v25", "v_cvt_pk_bf16_f32 v22, v22, v23",
              "v_and_b32 v23, 0xffff0000, v22", "v_lshlrev_b32 v22, 16, v22",
              f"v_fmac_f32 v{100+4*n+2*j}, v{20+n}, v22", f"v_fmac_f32 v{101+4*n+2*j}, v{20+n}, v23")
    A("buffer_store_dwordx4 v[100:103], v10, s[16:19], 0 offen")
    A("s_mov_b32 s27, 36864", "buffer_store_dwordx4 v[104:107], v10, s[16:19], s27 offen")
    if opt.get("ts"):
        A("s_waitcnt vmcnt(0)", "s_memrealtime s[82:83]", "s_waitcnt lgkmcnt(0)", "v_mov_b32 v30, s80", "v_mov_b32 v31, s82", "s_lshl_b32 s27, s21, 3",
          f"s_add_u32 s27, s27, {WS_END + (1 << 18)}", "v_mov_b32 v29, 0", "s_mov_b32 s6, 0x7fffffff", "buffer_store_dwordx2 v[30:31], v29, s[4:7], s27 offen")
    prog, nw = insert_waits(o)
    prog, nn = pad_hazards(prog)
    return render(prog) + "\nL_red_end:\n  s_endpgm\n"


def build(opt):
    common = build_common(opt)
    v0, i0 = build_variant(opt, 0)
    v1, i1 = build_variant(opt, 1)
    red = build_reduce(opt)
    k1, k2 = NAME + "_kernel", "reduce_kernel"
    fuse = opt.get('fuse', '1') == '1'
    s = HEADER
    if fuse:
        s += f"; @launch grid=(256,1,1) block=(256,1,1) lds={LDS_BYTES}\n"
    else:
        s += f"; @launch kernel={k1} grid=(256,1,1) block=(256,1,1) lds={LDS_BYTES}\n"
        s += f"; @launch kernel={k2} grid=(576,1,1) block=(256,1,1) lds=0\n"
    s += '.amdgcn_target "amdgcn-amd-amdhsa--gfx950"\n.text\n'
    far = "  s_cbranch_scc1 L_var1\n"
    common = common.replace("  s_cbranch_scc1 L_main_end\n", "  s_cbranch_scc0 L_go\n  s_endpgm\nL_go:\n")
    common = common.replace("  s_cbranch_scc1 L_var1\n", "  s_cbranch_scc0 L_var0\n  s_branch L_var1\nL_var0:\n")
    s += f".globl {k1}\n.p2align 8\n.type {k1},@function\n{k1}:\n" + common + v0 + "L_end0:\n.p2align 6\nL_var1:\n" + v1 + "L_end1:\n"
    if not fuse: s += f".globl {k2}\n.p2align 8\n.type {k2},@function\n{k2}:\n" + red
    if opt.get("nocpf") is None:
        s += ".set CODE_SPAN0, L_end0 - L_pc0 - 4\n.set CODE_SPAN1, L_end1 - L_pc1 - 4\n"
    s += '.section .rodata,"a"\n' + kd(k1, 512, 256, 102) + ("" if fuse else kd(k2, 128, 128, 96))
    return s, (i0, i1)


if __name__ == "__main__":
    out = sys.argv[1]
    opt = {}
    for a in sys.argv[2:]:
        k, v = a.split("=", 1); opt[k] = v
    fw.DEPAWARE = opt.get('dep', '1') == '1'; fw.VMCOST = int(opt.get('vmcost', 1)); fw.VM_GAP = int(opt.get('vmgap', 5)); fw.LDS_LAT = int(opt.get('ldslat', 8)); fw.VM_LAT = int(opt.get('vmlat', 90))
    s, info = build(opt)
    open(out, "w").write(s)
    for i in info: print(i)
    print(len(s))
```

```python
import sys
import fw
from fw import *
from gen import (NAME, LOG2E, INV2PI, OOB, SLOT, NSLOT, MISC, PRIV, WTOT, TAB, LDS_BYTES, ACC, XB, LG, P1, P2, D1, D2, SF, A4, A32, A128, PW,
                 LANE, VST, VCH, T, VE, VP, VT, TS, TA, AX, AF, AH, L, xfrag, afrag, vr, ar, sr, xb, srd, mf,
                 voff_B, voff_W1full, voff_W1half, voff_Wd, voff_C, base_T64, base_C, cmul_acc, kd, HEADER)
XBASE = 2 * SLOT
XPOS = [0, 1, 2, 3, 4, 5, 3, 4, 5]

WS_P8 = 0
P8_BYTES = 8 * 16 * 4 * 2 * 16 * 1024
WS_P16 = WS_P8 + P8_BYTES
P16_BYTES = 16 * 16 * 4 * 4 * 1024
WS_H = WS_P16 + P16_BYTES
H_BYTES = 16 * 16 * 4 * 24 * 1024
WS_S = WS_H + H_BYTES
WS_G = WS_S + 16 * 16 * 384
WS_F = WS_G + 8192
WS_END = WS_F + 256 * 128

S_X, S_W1, S_WD, S_B, S_C, S_WS, S_S, S_DBG, S_P = 4, 8, 12, 16, 20, 24, 28, 32, 36
sW, sTILE, sSLICE, sC0, sOA, sOB, sW6, sW3 = 40, 41, 42, 43, 44, 45, 46, 47
sP8, sT0, sT1, sT2, sC2, sPAR, sP16, sT3 = 48, 49, 50, 51, 52, 53, 54, 55
sMASK = 56; sM1, sM2, sM3 = 58, 59, 60
sHO, sHP, sHT = 61, 62, 63
sW1F, sW1H, sWD2, sWD1, sWD1B, sC1, sT4, sC0P, sC2P, sQ = 64, 65, 66, 67, 68, 69, 70, 71, 72, 73
sXO, sXL = 98, 99
AHP = 0
def hp_reg(K):
    order = {8: 0, 0: 1, 1: 2, 2: 3, 3: 4, 4: 5, 5: 6, 6: 7, 7: 8, 9: 9, 10: 10, 11: 11}
    return AHP + 8 * order[K]


CYC = [0, 1, 2, 4, 5, 3]
def slot_of(k): return k if k < 4 else CYC[(k - 4) % 6]
def slot_base(k): return slot_of(k) * SLOT
def setof(k): return slot_of(k) // 2
def slot_rel(k): return (slot_of(k) % 2) * SLOT

T64B = [P1 + i for i in range(6)]
T128B = [P1 + 6 + i for i in range(6)] + [P2 + i for i in range(6)]
RB = [P2 + i for i in range(6)]
CB = [P1 + i for i in range(3)]
GWB = P2 + 6


PMACC = [96, 104, 112, 120]


class Stage:
    def __init__(self, fmt, units, pieces, wq, pre):
        self.fmt, self.units, self.pieces, self.wq, self.pre = fmt, units, pieces, wq, pre


def base_list_T128(regs, qrows, t, sets):
    o = [f"v_lshrrev_b32 v{t}, 4, {L}", f"v_mul_u32_u24 v{t}, {qrows}, v{t}", f"v_bfe_u32 v{t+1}, {L}, 2, 2", f"v_add_u32 v{t}, v{t}, v{t+1}",
         f"v_lshlrev_b32 v{t}, 7, v{t}", f"v_and_b32 v{t+1}, 3, {L}", f"v_lshlrev_b32 v{t+1}, 3, v{t+1}", f"v_add_u32 v{t}, v{t}, v{t+1}",
         f"v_bfe_u32 v{t+1}, {L}, 3, 2"]
    return o


def t128_regs(idx, t):
    s_, mt = divmod(idx, 4)
    d = T128B[idx]
    o = [f"v_xor_b32 v{d}, {mt}, v{t+1}", f"v_lshlrev_b32 v{d}, 5, v{d}", f"v_add_u32 v{d}, v{d}, v{t}"]
    if s_: o += [f"v_add_u32 v{d}, {49152*s_}, v{d}"]
    return o


def base_R2(t):
    o = [f"v_and_b32 v{t}, 15, {L}", f"v_lshrrev_b32 v{t+1}, 1, v{t}", f"v_lshlrev_b32 v{t}, 7, v{t}"]
    for h in range(2):
        d = RB[h]
        o += [f"v_lshrrev_b32 v{d}, 4, {L}", f"v_add_u32 v{d}, {4*h}, v{d}", f"v_xor_b32 v{d}, v{d}, v{t+1}", f"v_lshlrev_b32 v{d}, 4, v{d}",
              f"v_add_u32 v{d}, v{d}, v{t}", f"v_add_u32 v{RB[2+h]}, 49152, v{d}", f"v_add_u32 v{RB[4+h]}, {2*49152}, v{d}"]
    return o


SKIPJ = False


def build_stages(par, ord2=0):
    nS = 2 if par == 0 else 3
    nSP = 5 - nS
    stages = []
    tr = "ds_read_b64_tr_b16"
    U = lambda reads, mfl, swap: dict(reads=reads, mf=mfl, swap=swap)
    for st in range(5):
        units = []
        for ksl in range(4 if st < 4 else 2):
            ks = 4 * st + ksl
            line, half = ksl >> 1, ksl & 1
            for b in range(nS):
                for mat in range(2):
                    off = (2 * mat + line) * 6144 + b * 2048
                    acc = [xb(b, mat, n) for n in range(2)]
                    units.append(U([("ds_read_b128", 4, ("R", half), off)],
                                   [(vr(acc[n]), xfrag(ks, n), None, vr(acc[n]) if ks else "0") for n in range(2)], True))
            units.append(U([("ds_read_b128", 4, ("abs", GWB), ks * 64)],
                           [(vr(LG + 4 * n), xfrag(ks, n), None, vr(LG + 4 * n) if ks else "0") for n in range(2)], True))
        pre = [] if st == 0 else [f"s_add_u32 s{sOA}, s{sOA}, 256"]
        if st == 4 and SKIPJ: pre = [[f"s_add_u32 s{sOA}, s{sOA}, 256", f"s_cmp_eq_u32 s{sT3}, 1", f"s_cselect_b32 s{sOA}, 0x7ff00000, s{sOA}"]]
        npc = 2 * nS
        stages.append(Stage("B", units, [(D1 + j, S_B, sOA) for j in range(npc)], sW6, pre))
    for st in range(3):
        units = []
        for ksl in range(6):
            ks = 6 * st + ksl
            for mat in range(2):
                for mt in range(2):
                    acc = ACC[0] + (mat * 4 + mt) * 8
                    off = mat * 12288 + ksl * 2048
                    units.append(U([(tr, 2, ("T64", mt), off), (tr, 2, ("T64", mt), off + 256)],
                                   [(vr(acc + 4 * n), None, xfrag(ks, n), vr(acc + 4 * n) if ks else "0") for n in range(2)], False))
        pre = [f"s_mov_b32 s{sOA}, s{sW1H}"] if st == 0 else [f"s_add_u32 s{sOA}, s{sOA}, {192*9216}"]
        stages.append(Stage("W1h", units, [(D2 + j, S_W1, sOA) for j in range(6)], sW6, pre))
    for c in range(4):
        buf = ACC[(c + 1) & 1]
        for st in range(6):
            units = []
            for ksl in range(3):
                ks = 3 * st + ksl
                for mat in range(2):
                    for mt in range(4):
                        acc = buf + (mat * 4 + mt) * 8
                        off = mat * 12288 + ksl * 4096
                        units.append(U([(tr, 2, ("T128", mt), off), (tr, 2, ("T128", mt), off + 512)],
                                       [(vr(acc + 4 * n), None, xfrag(ks, n), vr(acc + 4 * n) if ks else "0") for n in range(2)], False))
            pre = [f"s_add_u32 s{sOA}, s{sW1F}, {128*c}"] if st == 0 else [f"s_add_u32 s{sOA}, s{sOA}, {96*9216}"]
            stages.append(Stage("W1", units, [(D1 + j, S_W1, sOA) for j in range(6)], sW6, pre))
    own = lambda K: (lambda n: ar(AH + 8 * K + 4 * n))
    prt = lambda K: (lambda n: ar(hp_reg(K) + 4 * n))
    owns = lambda b: (lambda n: vr(xb(b, 0, n)))
    if par == 0:
        ownW = [[0, 1, 2], [3, 4, 5], [6, 7, 8]]; prtW = [[8, 0, 1], [2, 3, 4], [5, 6, 7]]
        ms_own, ms_prt = [0, 1, 2], [3, 4, 5]
        pmA, pmB = [0, 1, 2, 3, 4, 5], [6, 7, 8]
        cols = [0, 256]
    else:
        ownW = [[8, 0, 1], [2, 3, 4], [5, 6, 7]]; prtW = [[0, 1, 2], [3, 4, 5], [6, 7, 8]]
        ms_own, ms_prt = [3, 4, 5], [0, 1, 2]
        pmA, pmB = [8, 0, 1, 2, 3, 4], [5, 6, 7]
        cols = [640, 896]
    def wd_units(bfs, lines, buf, first):
        units = []
        for i_, bf in enumerate(bfs):
            for line in range(lines):
                for mt in range(4):
                    acc = buf + (line * 4 + mt) * 8
                    off = line * 12288 + i_ * 4096
                    z = first and i_ == 0
                    units.append(U([(tr, 2, ("T128", mt), off), (tr, 2, ("T128", mt), off + 2048)],
                                   [(vr(acc + 4 * n), None, bf(n), "0" if z else vr(acc + 4 * n)) for n in range(2)], False))
        return units
    def c_units(bfs, nm, buf, imoff):
        units = []
        for b, bf in enumerate(bfs):
            for m in range(nm):
                acc = buf + m * 8
                off = m * 1536 + 32 * b
                units.append(U([("ds_read_b64", 2, ("C", 0), off), ("ds_read_b64", 2, ("C", 0), off + imoff)],
                               [(vr(acc + 4 * n), None, bf(n), vr(acc + 4 * n)) for n in range(2)], False))
        return units
    def W(p, bfs, ms, first=False):
        buf = ACC[(p + 1) & 1]
        stages.append(Stage("Wd", wd_units(bfs, 2, buf, first), [(D2 + j, S_WD, sOA) for j in range(6)], sW6,
                            [f"s_add_u32 s{sOA}, s{sWD2}, {cols[p] + ms*96*1152}"]))
    def C(p, bfs, sbase):
        buf = ACC[(p + 1) & 1]
        stages.append(Stage("C", c_units(bfs, 8, buf, 12288), [(D1 + j, S_C, sOA) for j in range(6)], sW6,
                            [f"s_add_u32 s{sOA}, s{sbase}, {(cols[p] // 2) * 1152}"]))
    oW = lambda p, i, first=False: W(p, [own(K) for K in ownW[i]], ms_own[i], first)
    pW = lambda p, i: W(p, [prt(K) for K in prtW[i]], ms_prt[i])
    oC = lambda p: C(p, [owns(b) for b in range(nS)], sC2)
    pC = lambda p: C(p, [prt(9 + b) for b in range(nSP)], sC2P)
    def pm_units(bfs, first, kind):
        units = []
        for i_, bf in enumerate(bfs):
            for mt in range(4):
                acc = PMACC[mt]
                z = first and i_ == 0
                if kind == "W":
                    off = i_ * 4096
                    rd = [(tr, 2, ("T128", mt), off), (tr, 2, ("T128", mt), off + 2048)]
                else:
                    off = mt * 1536 + 32 * i_
                    rd = [("ds_read_b64", 2, ("C", 0), off), ("ds_read_b64", 2, ("C", 0), off + 6144)]
                units.append(U(rd, [(ar(acc + 4 * n), None, bf(n), "0" if z else ar(acc + 4 * n)) for n in range(2)], False))
        return units
    pmWa = lambda: stages.append(Stage("Wd1a", pm_units([own(K) for K in pmA], True, "W"), [(D2 + j, S_WD, sOA) for j in range(6)], sW6, [f"s_add_u32 s{sOA}, s{sWD1}, 512"]))
    pmWb = lambda: stages.append(Stage("Wd1b", pm_units([own(K) for K in pmB], False, "W"), [(D2 + j, S_WD, sOA) for j in range(3)], sW3, [f"s_add_u32 s{sOA}, s{sWD1B}, 512"]))
    pmC = lambda: stages.append(Stage("C1", pm_units([owns(b) for b in range(nS)], False, "C"), [(D1 + j, S_C, sOA) for j in range(3)], sW3, [f"s_add_u32 s{sOA}, s{sC1}, {256*1152}"]))
    oW(0, 0, True); oW(0, 1); pmWa(); oW(1, 0, True); oW(1, 1); oW(0, 2); oW(1, 2); pmWb()
    oC(0); oC(1); pmC()
    if ord2 == 0: pW(0, 0); pW(1, 0); pW(0, 1); pW(1, 1); pW(0, 2); pC(0); pW(1, 2); pC(1)
    elif ord2 == 1: pW(0, 0); pW(0, 1); pW(1, 0); pW(0, 2); pC(0); pW(1, 1); pW(1, 2); pC(1)
    else: pW(0, 0); pW(0, 1); pW(0, 2); pW(1, 0); pC(0); pW(1, 1); pW(1, 2); pC(1)
    return stages, nS


def pace(st, i0, t0, t1):
    items = list(st.q)
    def walk(rate):
        t = float(t0); ready = {}; tr = {}; out = []
        for (g, e, d) in items[i0:]:
            t = max(t, e)
            for x in g:
                if x.kind == "pwait" and x.op == "waittag":
                    for tg in x.args: t = max(t, tr.get(tg, -1))
                else:
                    for r in x.src + x.dst: t = max(t, ready.get(r, -1))
            out.append(t)
            for x in g:
                if x.kind == "ds_rd":
                    for r in x.dst: ready[r] = t + fw.LDS_LAT + 1
                elif x.kind == "vm_ld":
                    for r in x.dst: ready[r] = t + fw.VM_LAT + 2
                if x.tag and x.kind in ("vm_st", "ds_wr"): tr[x.tag] = t + fw.VM_LAT
            t += len(g) / rate
        return out
    lo, hi = 0.05, 8.0
    for _ in range(30):
        mid = (lo + hi) / 2
        if walk(mid)[-1] <= t1: hi = mid
        else: lo = mid
    dls = walk(hi)
    new = deque(items[:i0])
    for (g, e, d), t in zip(items[i0:], dls):
        nd = int(t) + 3
        new.append((g, e, nd if d is None else min(d, nd)))
    st.q = new
    st.rate = hi


def interleave(vm, fill, per):
    out = []; fi = 0
    for g in vm:
        out += g
        if any(("buffer_load" in x or "global_load" in x) if isinstance(x, str) else x.kind in ("dma", "vm_ld") for x in g):
            n = 0
            while fi < len(fill) and n < per:
                f = fill[fi]; fi += 1
                out += f if isinstance(f, list) else [f]
                n += len(f) if isinstance(f, list) else 1
    for f in fill[fi:]:
        out += f if isinstance(f, list) else [f]
    return out


def build_common(opt):
    o = []
    A = lambda *x: o.extend(expand(list(x)))
    if opt.get("ts") == "5": A("s_memrealtime s[4:5]")
    A("s_cmp_ge_u32 s2, 256", "s_cbranch_scc1 L_main_end")
    A("s_load_dwordx16 s[64:79], s[0:1], 0", "s_load_dwordx16 s[80:95], s[0:1], 64", "s_load_dwordx2 s[96:97], s[0:1], 128")
    A(f"v_and_b32 {L}, 63, v0", "v_lshrrev_b32 v1, 6, v0")
    A(f"s_and_b32 s{sT0}, s2, 7", f"s_lshr_b32 s{sT1}, s2, 3")
    A(f"v_readfirstlane_b32 s{sW}, v1")
    if opt.get("map", "2") == "4":
        A(f"s_and_b32 s{sSLICE}, s{sT0}, 3", f"s_lshl_b32 s{sSLICE}, s{sSLICE}, 2", f"s_and_b32 s{sT2}, s{sT1}, 3", f"s_add_u32 s{sSLICE}, s{sSLICE}, s{sT2}",
          f"s_and_b32 s{sPAR}, s{sSLICE}, 1", f"s_lshr_b32 s{sTILE}, s{sT0}, 2", f"s_lshl_b32 s{sTILE}, s{sTILE}, 3", f"s_lshr_b32 s{sT2}, s{sT1}, 2", f"s_add_u32 s{sTILE}, s{sTILE}, s{sT2}")
    elif opt.get("map", "2") == "8":
        A(f"s_and_b32 s{sSLICE}, s{sT0}, 1", f"s_lshl_b32 s{sSLICE}, s{sSLICE}, 3", f"s_and_b32 s{sT2}, s{sT1}, 7", f"s_add_u32 s{sSLICE}, s{sSLICE}, s{sT2}",
          f"s_and_b32 s{sPAR}, s{sSLICE}, 1", f"s_lshr_b32 s{sTILE}, s{sT0}, 1", f"s_lshl_b32 s{sTILE}, s{sTILE}, 2", f"s_lshr_b32 s{sT2}, s{sT1}, 3", f"s_add_u32 s{sTILE}, s{sTILE}, s{sT2}")
    elif opt.get("parhi", "0") == "1":
        A(f"s_lshr_b32 s{sPAR}, s{sT1}, 4", f"s_xor_b32 s{sPAR}, s{sPAR}, 1", f"s_lshl_b32 s{sSLICE}, s{sT0}, 1", f"s_add_u32 s{sSLICE}, s{sSLICE}, s{sPAR}", f"s_and_b32 s{sTILE}, s{sT1}, 15")
    else:
        A(f"s_lshl_b32 s{sSLICE}, s{sT0}, 1", f"s_and_b32 s{sPAR}, s{sT1}, 1", f"s_add_u32 s{sSLICE}, s{sSLICE}, s{sPAR}", f"s_lshr_b32 s{sTILE}, s{sT1}, 1")
    choose = [f"s_cmp_eq_u32 s{sPAR}, 1", "s_cbranch_scc1 L_var1"]
    prog, _ = pad_hazards(o)
    return render(prog) + "\n  " + "\n  ".join(choose) + "\n"


I0, I1, I2 = xb(0, 1, 0), xb(1, 1, 0), xb(2, 1, 0)
FA, FD, LT, LQ = A4, A4 + 1, A4 + 2, A4 + 3
GREG = A4 + 5
PE, PX, PD, ME = I0, I0 + 1, I0 + 2, I0 + 3
MS, DA, DB, TMP, MX = I0 + 4, I1, I2, LG, LG + 4
MLA, EII, E0, E1 = 96, 112, 116, 120
S_OUT, S_DS = S_P, S_B
sJ, sTOK, sSRC, sM_, sPA, sDA, sRM, sMS = 82, 83, 84, 85, 86, 87, 88, 89
mALL, mPAR = 56, 58


def skip_init(dst, xs, ds, g):
    o = []; a, b, c, d = TMP, TMP + 1, TMP + 2, TMP + 3
    for j in range(2):
        o += [f"v_lshlrev_b32 v{a}, 16, v{xs+j}", f"v_and_b32 v{b}, 0xffff0000, v{xs+j}", f"v_lshlrev_b32 v{c}, 16, v{ds+j}", f"v_and_b32 v{d}, 0xffff0000, v{ds+j}",
              f"v_mul_f32 v{a}, v{a}, v{c}", f"v_mul_f32 v{b}, v{b}, v{d}", f"v_cvt_pk_bf16_f32 v{a}, v{a}, v{b}",
              f"v_and_b32 v{b}, 0xffff0000, v{a}", f"v_lshlrev_b32 v{a}, 16, v{a}", f"v_mul_f32 v{dst+2*j}, v{g}, v{a}", f"v_mul_f32 v{dst+2*j+1}, v{g}, v{b}"]
    return o


def reduce_prep(opt, par, e0, eM, lastm):
    oob = hex(OOB)
    sR = Stream("red", 4)
    add = lambda x, e=e0, d=None: sR.add(x, e, d)
    def adds(l, e=e0, d=None):
        for x in l: add(x, e, d)
    adds(srd(S_OUT, "s92", "s93", 4718592) + srd(S_DS, "s80", "s81", 1152))
    adds([f"s_mov_b32 s{mALL}, 0xffff0000", f"s_mov_b32 s{mALL+1}, -1", f"s_mov_b32 s{mPAR}, {hex(0xffff0000 | (0xaaaa if par == 0 else 0x5555))}", f"s_mov_b32 s{mPAR+1}, -1"])
    adds([[f"s_lshl_b32 s{sT0}, s{sTILE}, 7", f"s_add_u32 s{sT0}, s{sT0}, {WS_F}"], f"v_lshlrev_b32 v{FA}, 11, {L}", f"v_add_u32 v{FA}, s{sT0}, v{FA}",
          [f"v_cmp_gt_u32 vcc, 16, {L}", f"v_mov_b32 v{FD}, {oob}", f"v_cndmask_b32 v{FA}, v{FD}, v{FA}, vcc"],
          f"v_and_b32 v{LT}, 15, {L}", f"v_lshrrev_b32 v{LQ}, 4, {L}", f"s_lshr_b32 s{sJ}, s{sSLICE}, 1"], e0, eM - 95)
    adds([[f"s_lshr_b32 s{sT0}, s{sSLICE}, 2", f"s_and_b32 s{sM_}, s{sSLICE}, 3", f"s_and_b32 s{sT3}, s{sW}, 1", f"s_lshr_b32 s{sT1}, s{sW}, 1",
           f"s_lshl_b32 s{sMS}, s{sTILE}, 2", f"s_add_u32 s{sMS}, s{sMS}, s{sT0}", f"s_lshl_b32 s{sMS}, s{sMS}, 2", f"s_add_u32 s{sMS}, s{sMS}, s{sM_}"],
          f"s_lshl_b32 s{sMS}, s{sMS}, 10", f"s_mul_i32 s{sT1}, s{sT1}, {8*16*4*4096}", f"s_add_u32 s{sMS}, s{sMS}, s{sT1}", f"s_lshl_b32 s{sT2}, s{sT3}, 3",
          f"s_add_u32 s{sMS}, s{sMS}, s{sT2}", f"s_add_u32 s{sMS}, s{sMS}, {WS_P16}"], e0, eM - 4)
    adds([[f"s_lshl_b32 s{sPA}, s{sTILE}, 2", f"s_add_u32 s{sPA}, s{sPA}, s{sW}"], f"s_lshl_b32 s{sPA}, s{sPA}, 15", f"s_lshl_b32 s{sT0}, s{sJ}, 10", f"s_add_u32 s{sPA}, s{sPA}, s{sT0}",
          f"s_add_u32 s{sPA}, s{sPA}, {WS_P8 + 16384*par}", f"s_lshl_b32 s{sDA}, s{sJ}, 4", f"s_add_u32 s{sDA}, s{sDA}, {320*par}",
          f"s_lshl_b32 s{sTOK}, s{sTILE}, 7", f"s_lshl_b32 s{sT0}, s{sW}, 5", f"s_add_u32 s{sTOK}, s{sTOK}, s{sT0}",
          f"v_add_u32 v{PE}, s{sTOK}, v{LT}", f"v_lshlrev_b32 v{PD}, 2, v{LQ}", f"v_add_u32 v{PD}, s{sDA}, v{PD}", f"v_mul_u32_u24 v{PE}, 576, v{PE}",
          f"v_add_u32 v{PE}, v{PE}, v{PD}", f"v_lshlrev_b32 v{PX}, 1, v{PE}", f"v_lshlrev_b32 v{PD}, 1, v{PD}", f"v_lshlrev_b32 v{PE}, 2, v{PE}",
          f"v_accvgpr_read_b32 v{GREG}, a249", f"v_accvgpr_read_b32 v{GREG+1}, a250"])
    def aux(base, dcol):
        add([f"s_mov_b32 s{sT0}, {2*dcol}", f"buffer_load_dwordx2 {vr(base, 2)}, v{PX}, {sr(S_X)}, s{sT0} offen"])
        add([f"s_mov_b32 s{sT1}, {2*dcol + 18432}", f"buffer_load_dwordx2 {vr(base+2, 2)}, v{PX}, {sr(S_X)}, s{sT1} offen"])
        add([f"s_mov_b32 s{sT0}, {2*dcol}", f"buffer_load_dwordx2 {vr(base+4, 2)}, v{PD}, {sr(S_DS)}, s{sT0} offen"])
    aux(T, 0); aux(T + 6, 128)
    MA = T + 12
    adds([[f"s_lshr_b32 s{sT0}, s{sSLICE}, 2", f"s_lshl_b32 s{sTOK}, s{sTILE}, 7", f"s_lshl_b32 s{sT0}, s{sT0}, 5", f"s_add_u32 s{sTOK}, s{sTOK}, s{sT0}", f"s_lshl_b32 s{sT2}, s{sT3}, 4"],
          f"s_add_u32 s{sTOK}, s{sTOK}, s{sT2}", f"s_lshl_b32 s{sM_}, s{sM_}, 4", f"s_add_u32 s{sM_}, s{sM_}, 256",
          f"v_add_u32 v{MX}, s{sTOK}, v{LT}", f"v_lshlrev_b32 v{MA+2}, 2, v{LQ}", f"v_add_u32 v{MA+2}, s{sM_}, v{MA+2}",
          f"v_mul_u32_u24 v{ME}, 576, v{MX}", f"v_add_u32 v{ME}, v{ME}, v{MA+2}", f"v_lshlrev_b32 v{MA}, 1, v{ME}", f"v_lshlrev_b32 v{MA+2}, 1, v{MA+2}",
          f"v_lshlrev_b32 v{MX}, 2, v{MX}", f"v_lshlrev_b32 v{ME}, 2, v{ME}",
          f"buffer_load_dwordx2 {vr(MA, 2)}, v{MA}, {sr(S_X)}, 0 offen", f"buffer_load_dwordx2 {vr(MA+2, 2)}, v{MA+2}, {sr(S_DS)}, 0 offen"], e0, eM - 2)
    early = opt.get("prepearly", "0") == "1"
    eS = e0 if early else eM
    def skips():
        adds(skip_init(DA, T, T + 4, GREG) + skip_init(DA + 4, T + 2, T + 4, GREG + 1) + skip_init(DB, T + 6, T + 10, GREG) + skip_init(DB + 4, T + 8, T + 10, GREG + 1), eS)
        EM0, EM1 = T, T + 1
        adds([f"v_lshrrev_b32 v{EM1}, 2, v{LT}", f"v_xor_b32 v{T+3}, v{EM1}, v{LQ}", f"v_and_b32 v{EM1}, 1, v{LT}", f"v_lshlrev_b32 v{EM1}, 4, v{EM1}",
              f"v_mov_b32 v{T+2}, 0x3f80", f"v_lshlrev_b32 v{EM1}, v{EM1}, v{T+2}", [f"v_cmp_eq_u32 vcc, 0, v{T+3}", f"v_cndmask_b32 v{EM1}, 0, v{EM1}, vcc"],
              f"v_and_b32 v{EM0}, 2, v{LT}", [f"v_cmp_eq_u32 vcc, 0, v{EM0}", f"v_cndmask_b32 v{EM0}, 0, v{EM1}, vcc", f"v_cndmask_b32 v{EM1}, v{EM1}, 0, vcc"],
              f"v_mov_b32 v{T+2}, 0"]
             + [f"v_accvgpr_write_b32 a{r}, v{EM0}" for r in (EII, EII + 2, E0, E1 + 2)] + [f"v_accvgpr_write_b32 a{r}, v{EM1}" for r in (EII + 1, EII + 3, E0 + 1, E1 + 3)]
             + [f"v_accvgpr_write_b32 a{r}, v{T+2}" for r in (E0 + 2, E0 + 3, E1, E1 + 1)], eS)
    if early: skips()
    add(f"s_mov_b32 s{sT1}, {WS_G}", e0, eM)
    add([I(f"v_cmp_le_u32 vcc, 5, v{FD}"), I(f"s_or_b64 vcc, vcc, s[{mALL}:{mALL+1}]"), I("s_cmp_eq_u64 vcc, -1"), I(f"s_cselect_b32 s{sRM}, 1, 0"),
         I(f"s_cselect_b32 s{sSRC}, s{sMS}, 0x7ff00000"), I(f"s_cselect_b32 s{sT0}, s{sT1}, 0x7ff00000")], eM, eM + 8)
    add(f"buffer_load_dword v{MX+1}, v{MX}, {sr(S_WS)}, s{sT0} offen sc1", eM)
    for j in range(8):
        add(f"buffer_load_dwordx2 {ar(MLA+2*j, 2)}, v{VST}, {sr(S_WS)}, s{sSRC} offen sc1", eM)
        if j < 7: add(f"s_add_u32 s{sSRC}, s{sSRC}, {16*4*4096}", eM)
    if not early: skips()
    sR2 = Stream("red2", 1)
    sR2.add(f"buffer_load_dword v{FD}, v{FA}, {sr(S_WS)}, 0 offen sc1", eM - 85, eM - 80)
    return sR, sR2


def final_reduce(opt, par, XF, XT, XD, slow, pb):
    o = []
    A = lambda *x: o.extend(expand(list(x)))
    tst = lambda i: A(I(("s_memrealtime" if opt.get("ts") == "5" else "s_memtime") + " s[100:101]"), I("s_waitcnt lgkmcnt(0)"), I(f"v_writelane_b32 v255, s100, {i}")) if (opt.get("ts") and (opt.get("ts") != "4" or i == 52)) else None
    OST = opt.get("ost", " nt")
    MA = T + 12
    def flagst(val): A(f"v_mov_b32 v{XT}, {val}", f"buffer_store_dword v{XT}, v{XF}, {sr(S_WS)}, 0 offen sc1")
    ld = f"buffer_load_dword v{FD}, v{FA}, {sr(S_WS)}, 0 offen sc1"
    def spin(name, val, mask, after):
        cond = [f"v_cmp_le_u32 vcc, {val}, v{FD}", f"s_or_b64 vcc, vcc, s[{mask}:{mask+1}]"]
        slow.extend([I(f"L_slow_{name}{par}:"), I(f"s_mov_b32 s{sT2}, 0"), I(f"L_slowl_{name}{par}:"), I(ld), I("s_waitcnt vmcnt(0)"),
                     I(cond[0]), I("s_nop 4"), I(cond[1]), I("s_cmp_eq_u64 vcc, -1"), I(f"s_cbranch_scc1 L_slowd_{name}{par}"),
                     I(f"s_add_u32 s{sT2}, s{sT2}, 1"), I(f"s_cmp_lt_u32 s{sT2}, 0x40000"), I(f"s_cbranch_scc1 L_slowl_{name}{par}"), I(f"L_slowd_{name}{par}:")]
                    + expand(after) + [I("s_waitcnt vmcnt(0)"), I(f"s_branch L_back_{name}{par}")])
        return cond
    def l8(dst, extra):
        r = [f"s_add_u32 s{sSRC}, s{sPA}, {extra}"]
        for j in range(8):
            r.append(f"buffer_load_dwordx4 {vr(dst+4*j)}, v{VST}, {sr(S_WS)}, s{sSRC} offen sc1")
            if j < 7: r.append(f"s_add_u32 s{sSRC}, s{sSRC}, {16*4*32768}")
        return r
    def finish(src, dst, dcol):
        for j in range(8):
            for n in range(2): A(mf(vr(dst + 4*n), ar((E0, E1)[n]), vr(src + 4*j), vr(dst + 4*n)))
        A(f"s_mov_b32 s{sT0}, {4*dcol}", f"s_mov_b32 s{sT1}, {4*dcol + 36864}",
          f"buffer_store_dwordx4 {vr(dst)}, v{PE}, {sr(S_OUT)}, s{sT0} offen{OST}", f"buffer_store_dwordx4 {vr(dst+4)}, v{PE}, {sr(S_OUT)}, s{sT1} offen{OST}")
    tst(52)
    redo = [f"s_mov_b32 s{sSRC}, s{sMS}", f"s_mov_b32 s{sT0}, {WS_G}", f"buffer_load_dword v{MX+1}, v{MX}, {sr(S_WS)}, s{sT0} offen sc1"]
    for j in range(8):
        redo.append(f"buffer_load_dwordx2 {ar(MLA+2*j, 2)}, v{VST}, {sr(S_WS)}, s{sSRC} offen sc1")
        if j < 7: redo.append(f"s_add_u32 s{sSRC}, s{sSRC}, {16*4*4096}")
    def pm_part():
        spin("M", 5, mALL, redo + [ld])
        A(WaitRegs([f"a{MLA+j}" for j in range(16)] + [f"v{MX+1}"]), f"s_cmp_eq_u32 s{sRM}, 1", f"s_cbranch_scc0 L_slow_M{par}", I(f"L_back_M{par}:"))
        A(f"s_cmp_lt_u32 s{sW}, 2", f"s_cselect_b32 s{sT0}, 1.0, 0", f"v_mul_f32 v{MX+1}, s{sT0}, v{MX+1}")
        A(skip_init(MS, MA, MA + 2, MX + 1))
        for j in range(4): A(mf(vr(MS), ar(EII), ar(MLA + 4*j), vr(MS)))
        A(f"s_and_b32 s{sT0}, s{sW}, 1", f"s_lshl_b32 s{sT0}, s{sT0}, 10", f"v_add_u32 v{MA}, s{sT0}, v{VST}",
          f"s_cmp_ge_u32 s{sW}, 2", f"s_cselect_b32 s{sT1}, 0, 2048", f"v_add_u32 v{MA+1}, s{sT1}, v{MA}")
        A(I(f"ds_write_b128 v{MA+1}, {vr(MS)}", tag="pmx"))
    v3 = opt.get("tailv") == "3"
    if pb is not None and v3:
        if not int(opt.get("kfa", 0)):
            A(WaitTag("pstA"), "s_barrier"); flagst(6)
        A(ld)
        A(pb)
        tst(53)
        cond = spin("PA", 6, mPAR, [])
        A(*cond, "s_cmp_eq_u64 vcc, -1", f"s_cbranch_scc0 L_slow_PA{par}", I(f"L_back_PA{par}:"))
        A(l8(64, 0))
        A(WaitTag("pstB"), "s_barrier"); flagst(7)
        tst(54)
        A(ld)
        finish(64, DA, 0)
        tst(55)
        pm_part()
        A(WaitTag("pmx"), "s_barrier", f"ds_read_b128 {vr(MX)}, v{MA}")
        for j in range(4): A(f"v_add_f32 v{MS+j}, v{MS+j}, v{MX+j}")
        A(f"s_cmp_lt_u32 s{sW}, 2", f"s_cselect_b32 s{sT0}, 0, 0x7ff00000", f"buffer_store_dwordx4 {vr(MS)}, v{ME}, {sr(S_OUT)}, s{sT0} offen{OST}")
        tst(56)
        cond = spin("PB", 7, mPAR, [])
        A(*cond, "s_cmp_eq_u64 vcc, -1", f"s_cbranch_scc0 L_slow_PB{par}", I(f"L_back_PB{par}:"))
        tst(57)
        A(l8(0, 8192))
        finish(0, DB, 128)
        return o
    if pb is not None:
        A(WaitTag("pstA"), "s_barrier"); flagst(6)
        A(ld)
        A(pb)
        pm_part()
        tst(53)
        cond = spin("PA", 6, mPAR, [])
        A(*cond, "s_cmp_eq_u64 vcc, -1", f"s_cbranch_scc0 L_slow_PA{par}", I(f"L_back_PA{par}:"))
        A(l8(64, 0))
        A(WaitTag("pstB", "pmx"), "s_barrier"); flagst(7)
        tst(54)
        A(ld)
        A(f"ds_read_b128 {vr(MX)}, v{MA}")
        srcA, srcB = 64, 0
    else:
        if not int(opt.get("kfa", 0)):
            A(WaitTag("pstA"), "s_barrier"); flagst(6)
        tst(53)
        pm_part()
        A(ld)
        A(WaitTag("pstB", "pmx"), "s_barrier"); flagst(7)
        tst(54)
        A(f"ds_read_b128 {vr(MX)}, v{MA}")
        cond = spin("PA", 6, mPAR, [])
        A(*cond, "s_cmp_eq_u64 vcc, -1", f"s_cbranch_scc0 L_slow_PA{par}", I(f"L_back_PA{par}:"))
        A(l8(32, 0)); A(ld)
        srcA, srcB = 32, 64
    tst(55)
    for j in range(4): A(f"v_add_f32 v{MS+j}, v{MS+j}, v{MX+j}")
    A(f"s_cmp_lt_u32 s{sW}, 2", f"s_cselect_b32 s{sT0}, 0, 0x7ff00000", f"buffer_store_dwordx4 {vr(MS)}, v{ME}, {sr(S_OUT)}, s{sT0} offen{OST}")
    finish(srcA, DA, 0)
    tst(56)
    cond = spin("PB", 7, mPAR, [])
    A(*cond, "s_cmp_eq_u64 vcc, -1", f"s_cbranch_scc0 L_slow_PB{par}", I(f"L_back_PB{par}:"))
    tst(57)
    A(l8(srcB, 8192))
    finish(srcB, DB, 128)
    return o


def build_variant(opt, par):
    global SKIPJ
    SKIPJ = opt.get('skipj', '0') == '1'
    ORD2 = int(opt.get('ord2', 0))
    stages, nS = build_stages(par, ORD2)
    nSP = 5 - nS
    NST = len(stages)
    V = f"v{par}"
    pro = []
    A = lambda *x: pro.extend(expand(list(x)))
    ts = opt.get("ts")
    A(f"s_mul_i32 s{sC0}, s{sSLICE}, 9", f"s_lshr_b32 s{sC0}, s{sC0}, 1", f"s_lshl_b32 s{sC0}, s{sC0}, 3")
    A(f"s_mul_i32 s{sW6}, s{sW}, 6144", f"s_mul_i32 s{sW3}, s{sW}, 3072")
    A(voff_B(D1, 10))
    A(f"s_and_b32 s{sT3}, s{sW}, 1")
    A(f"s_mul_i32 s{sOA}, s{sC0}, 1152", f"s_lshl_b32 s{sT0}, s{sT3}, 7", f"s_add_u32 s{sOA}, s{sOA}, s{sT0}")
    A(f"s_lshl_b32 s{sT0}, s{sTILE}, 7", f"s_lshl_b32 s{sT1}, s{sW}, 5", f"s_add_u32 s{sT0}, s{sT0}, s{sT1}", f"s_mul_i32 s{sXO}, s{sT0}, 1152")
    A(f"s_lshl_b32 s{sXL}, s{sW}, 12", f"s_add_u32 s{sXL}, s{sXL}, {XBASE}")
    if ts: A("s_memtime s[100:101]", "s_waitcnt lgkmcnt(0)", "v_mov_b32 v255, 0", "v_writelane_b32 v255, s100, 0", "s_memrealtime s[100:101]")
    A("s_waitcnt lgkmcnt(0)")
    if ts: A("v_writelane_b32 v255, s100, 61")
    if ts == "5": A("v_writelane_b32 v255, s4, 63")
    A(srd(S_X, "s64", "s65", 2359296))
    A(f"s_cmp_lt_u32 s{sW}, 2")
    A(f"s_cselect_b32 s{S_B}, s70, s72", f"s_cselect_b32 s{S_B+1}, s71, s73", f"s_mov_b32 s{S_B+2}, 663552", f"s_mov_b32 s{S_B+3}, 0x20000")

    def dma_items(k):
        st = stages[k]
        items = [(x if isinstance(x, list) else [x]) for x in st.pre] + [[f"s_add_u32 m0, s{st.wq}, {slot_base(k)}"]]
        for j, (v, s_, so) in enumerate(st.pieces):
            if j == 4: items.append([f"s_add_u32 m0, s{st.wq}, {slot_base(k) + 4096}"])
            imm = 1024 * (j % 4)
            fl_ = opt.get("bfl", "") if st.fmt == "B" else opt.get("wfl", "")
            items.append([I(f"buffer_load_dwordx4 v{v}, {sr(s_)}, s{so} offen" + (f" offset:{imm}" if imm else "") + fl_ + " lds", tag=f"st{k}")])
        return items
    def xdma(j):
        items = [[f"s_add_u32 s{sOB}, s{sXO}, {128*j}"], [f"s_add_u32 m0, s{sXL}, {16384*XPOS[j]}"]]
        for g in range(4):
            items.append([I(f"buffer_load_dwordx4 v{D1+g}, {sr(S_X)}, s{sOB} offen" + (f" offset:{1024*g}" if g else "") + opt.get("xfl", "") + " lds", tag=f"x{j}")])
        return items
    XV = TA; XV2 = 66
    def xreads(j):
        p_ = XPOS[j]
        return [I(f"ds_read_b128 {xfrag(2*j+h, n)}, v{(XV if p_ < 3 else XV2)+h} offset:{16384*(p_ % 3) + 2048*n}", tag=f"xr{j}") for h in range(2) for n in range(2)]

    PLRE, PLIM, PLDT = T, T + 1, T + 2
    PFL = opt.get("pf", " sc1")
    oob = hex(OOB)
    vm = []
    if opt.get("xpf", "0") == "1":
        vm += [[f"v_and_b32 v12, 15, {L}", f"v_mul_u32_u24 v12, 1152, v12", f"v_lshrrev_b32 v13, 4, {L}", f"v_lshlrev_b32 v13, 7, v13", f"v_add_u32 v12, v12, v13",
                f"s_add_u32 s100, s{sXO}, {16*1152*par}", f"buffer_load_dword a244, v12, {sr(S_X)}, s100 offen{PFL}"]]
        vm += [[f"buffer_load_dword a245, v12, {sr(S_X)}, s100 offen offset:512{PFL}"]]
        vm += [[f"v_mov_b32 v13, {oob}", f"v_cmp_gt_u32 vcc, 16, {L}", f"v_cndmask_b32 v12, v13, v12, vcc",
                f"buffer_load_dword a246, v12, {sr(S_X)}, s100 offen offset:1024{PFL}"]]
    vm += dma_items(0)
    vm += xdma(0) + xdma(1)
    vm += [[f"v_lshlrev_b32 v{VST}, 4, {L}", f"v_min_u32 v8, 47, {L}", f"v_lshlrev_b32 v{VCH}, 3, v8", f"v_add_u32 v9, s{sC0}, v8", "v_lshlrev_b32 v9, 1, v9"]
           + srd(S_P, "s66", "s67", 1152) + [f"buffer_load_ushort v{PLRE}, v9, {sr(S_P)}, 0 offen"]]
    vm += [srd(56, "s68", "s69", 1152) + [f"buffer_load_ushort v{PLIM}, v9, s[56:59], 0 offen"]]
    vm += [srd(60, "s78", "s79", 1152) + [f"buffer_load_ushort v{PLDT}, v9, s[60:63], 0 offen"]]
    vm += [srd(S_P, "s90", "s91", 1152) + [f"s_add_u32 m0, s{sW3}, {PRIV}", "s_nop 0", I(f"buffer_load_dwordx4 v{VST}, {sr(S_P)}, 0 offen lds", tag="gw")]]
    vm += [[I(f"buffer_load_dwordx4 v{VST}, {sr(S_P)}, 0 offen offset:1024 lds", tag="gw")]]
    vm1 = vm; vm = []
    vm += xdma(2) + xdma(3) + dma_items(1)
    if opt.get('x45', '1') == '1': vm += xdma(4) + xdma(5)
    vm2 = vm; vm = []
    PV = 12
    vm += [[f"s_cmp_lt_u32 s{sW}, 2", f"s_cselect_b32 s{S_W1}, s84, s86", f"s_cselect_b32 s{S_W1+1}, s85, s87", f"s_mov_b32 s{S_W1+2}, 5308416", f"s_mov_b32 s{S_W1+3}, 0x20000"]]
    if opt.get("nocpf") is None:
        vm += [[f"s_getpc_b64 s[100:101]", I(f"L_pc{par}:"),
                f"s_lshl_b32 s{sT0}, s{sTILE}, 2", f"s_add_u32 s{sT0}, s{sT0}, s{sW}", f"s_mul_i32 s{sT0}, s{sT0}, 1152",
                f"v_lshlrev_b32 v12, 7, {L}", f"v_add_u32 v12, s{sT0}, v12", f"v_min_u32 v12, CODE_SPAN{par}, v12", f"v_cmp_gt_u32 vcc, 9, {L}",
                "s_and_saveexec_b64 s[62:63], vcc", f"global_load_dword a247, v12, s[100:101]", "s_mov_b64 exec, s[62:63]"]]
    fullcol = 64 * par; halfcol = 512 if par == 0 else 0
    vm += [[f"s_lshl_b32 s{sT4}, s{sTILE}, 1", f"s_add_u32 s{sT4}, s{sT4}, s{sT3}"]]
    if opt.get("nopf") is None and opt.get("pfb", "1") == "1":
        vm += [[
                f"s_mul_i32 s100, s{sT4}, {14*128}", f"s_mul_i32 s{sT0}, s{sC0}, 1152", f"s_add_u32 s100, s100, s{sT0}",
                f"v_lshlrev_b32 v{PV}, 7, {L}", f"v_mov_b32 v{PV+1}, {oob}", f"v_cmp_gt_u32 vcc, 14, {L}", f"v_cndmask_b32 v{PV}, v{PV+1}, v{PV}, vcc",
                f"buffer_load_dword a248, v{PV}, {sr(S_B)}, s100 offen{PFL}"]]
    if opt.get("nopf") is None and opt.get("pfw", "1") == "1":
        vm += [[f"v_mul_u32_u24 v{PV}, 57, {L}", f"v_lshrrev_b32 v{PV}, 10, v{PV}", f"v_mul_u32_u24 v{PV+1}, 18, v{PV}", f"v_sub_u32 v{PV+1}, {L}, v{PV+1}",
                f"v_mul_u32_u24 v{PV+1}, 9216, v{PV+1}", f"v_mul_i32_i24 v{PV}, {fullcol - halfcol}, v{PV}", f"v_add_u32 v{PV}, {halfcol}, v{PV}",
                f"v_add_u32 v{PV}, v{PV}, v{PV+1}",
                f"v_mov_b32 v{PV+1}, {oob}", f"v_cmp_gt_u32 vcc, 36, {L}", f"v_cndmask_b32 v{PV}, v{PV+1}, v{PV}, vcc",
                f"s_mul_i32 s100, s{sT4}, {18*9216}", f"s_mul_i32 s{sT0}, s{sSLICE}, 576", f"s_add_u32 s100, s100, s{sT0}",
                f"buffer_load_dword a251, v{PV}, {sr(S_W1)}, s100 offen{PFL}"]]
    if opt.get("pfall"):
        which = opt["pfall"]
        Q = PV
        if "a" in which:
            vm += [[f"v_mul_u32_u24 v{Q}, 57, {L}", f"v_lshrrev_b32 v{Q}, 10, v{Q}", f"v_mul_u32_u24 v{Q+1}, 18, v{Q}", f"v_sub_u32 v{Q+1}, {L}, v{Q+1}",
                    f"v_mul_u32_u24 v{Q+1}, 9216, v{Q+1}", f"v_lshlrev_b32 v{Q}, 7, v{Q}", f"v_add_u32 v{Q}, {fullcol + 128}, v{Q}", f"v_add_u32 v{Q+1}, v{Q+1}, v{Q}",
                    f"v_mov_b32 v{Q}, {oob}", f"v_cmp_gt_u32 vcc, 54, {L}", f"v_cndmask_b32 v{Q+1}, v{Q}, v{Q+1}, vcc",
                    f"s_mul_i32 s100, s{sT4}, {18*9216}", f"s_mul_i32 s{sT0}, s{sSLICE}, 576", f"s_add_u32 s100, s100, s{sT0}",
                    f"buffer_load_dword a252, v{Q+1}, {sr(S_W1)}, s100 offen{PFL}"]]
        if "d" in which:
            vm += [srd(56, "s88", "s89", 5308416) + [f"v_lshlrev_b32 v{Q}, 7, {L}", f"v_mov_b32 v{Q+1}, {oob}", f"v_cmp_gt_u32 vcc, 41, {L}", f"v_cndmask_b32 v{Q}, v{Q+1}, v{Q}, vcc",
                    f"s_lshl_b32 s100, s{sTILE}, 2", f"s_add_u32 s100, s100, s{sW}", f"s_mul_i32 s100, s100, {41*128}", f"s_mul_i32 s{sT0}, s{sSLICE}, {288*1152}",
                    f"s_add_u32 s100, s100, s{sT0}", f"buffer_load_dword a246, v{Q}, s[56:59], s100 offen{PFL}"]]
        if "c" in which:
            vm += [[f"s_cmp_lt_u32 s{sW}, 2", f"s_cselect_b32 s56, s74, s76", f"s_cselect_b32 s57, s75, s77", "s_mov_b32 s58, 663552", "s_mov_b32 s59, 0x20000",
                    f"v_lshrrev_b32 v{Q}, 1, {L}", f"v_mul_u32_u24 v{Q}, 1152, v{Q}", f"v_and_b32 v{Q+1}, 1, {L}", f"v_mul_u32_u24 v{Q+1}, 92, v{Q+1}",
                    f"v_add_u32 v{Q}, v{Q}, v{Q+1}", f"v_mov_b32 v{Q+1}, {oob}", f"v_cmp_gt_u32 vcc, 36, {L}", f"v_cndmask_b32 v{Q}, v{Q+1}, v{Q}, vcc",
                    f"s_mul_i32 s100, s{sT4}, {18*1152}", f"s_lshl_b32 s{sT0}, s{sC0}, 1", f"s_add_u32 s100, s100, s{sT0}",
                    f"buffer_load_dword a245, v{Q}, s[56:59], s100 offen{PFL}"]]
    fill = []
    F = lambda *x: fill.extend(list(x))
    F(*base_R2(14))
    F(f"v_add_u32 v{XV}, s{sXL}, v{RB[0]}", f"v_add_u32 v{XV+1}, s{sXL}, v{RB[1]}", f"v_add_u32 v{XV2}, 49152, v{XV}", f"v_add_u32 v{XV2+1}, 49152, v{XV+1}")
    F(f"v_lshrrev_b32 v3, 4, {L}", f"v_lshlrev_b32 v{GWB}, 4, v3", f"v_add_u32 v{GWB}, s{sW3}, v{GWB}", f"v_add_u32 v{GWB}, {PRIV}, v{GWB}")
    F(*voff_W1half(D2, 14))
    F(*base_T64(P1, 14))
    F(f"s_mul_i32 s{sT0}, s{sSLICE}, 576", f"s_mul_i32 s{sT1}, s{sT3}, {48*9216}", f"s_add_u32 s{sW1F}, s{sT0}, s{sT1}", f"s_add_u32 s{sW1F}, s{sW1F}, {fullcol}",
      f"s_mul_i32 s{sT1}, s{sT3}, {96*9216}", f"s_add_u32 s{sW1H}, s{sT0}, s{sT1}", f"s_add_u32 s{sW1H}, s{sW1H}, {halfcol}")
    F([f"s_cmp_lt_u32 s{sW}, 2", f"s_cselect_b32 s{S_C}, s74, s76", f"s_cselect_b32 s{S_C+1}, s75, s77"], f"s_mov_b32 s{S_C+2}, 663552", f"s_mov_b32 s{S_C+3}, 0x20000")
    F(*srd(S_WD, "s88", "s89", 5308416))
    F(*srd(S_WS, "s96", "s97", WS_END + (1 << 19) * bool(ts)))
    F(f"s_mul_i32 s{sT0}, s{sSLICE}, 6144", f"s_add_u32 s{sT0}, s{sT0}, {WS_S}", [f"s_add_u32 s{S_S}, s96, s{sT0}", f"s_addc_u32 s{S_S+1}, s97, 0"],
      f"s_mov_b32 s{S_S+2}, 6144", f"s_mov_b32 s{S_S+3}, 0x20000")
    F(*srd(S_DBG, "s94", "s95", 256))
    nfill_early = len(fill)
    late = []
    G = lambda *x: late.extend(list(x))
    G(f"s_lshr_b32 s{sT0}, s{sSLICE}, 1", f"s_mul_i32 s{sT0}, s{sT0}, {576*1152}",
      f"s_mul_i32 s{sT1}, s{sT3}, {48*1152}", f"s_lshr_b32 s{sT2}, s{sW}, 1", f"s_lshl_b32 s{sT2}, s{sT2}, 7",
      f"s_add_u32 s{sWD2}, s{sT0}, s{sT1}", f"s_add_u32 s{sWD2}, s{sWD2}, s{sT2}",
      f"s_add_u32 s{sT0}, s{sT0}, {288*1152*par}", f"s_mul_i32 s{sT1}, s{sW}, {48*1152}", f"s_add_u32 s{sWD1}, s{sT0}, s{sT1}",
      f"s_mul_i32 s{sT1}, s{sW}, {24*1152}", f"s_add_u32 s{sWD1B}, s{sT0}, s{sT1}", f"s_add_u32 s{sWD1B}, s{sWD1B}, {192*1152}")
    G(f"s_add_u32 s{sC0P}, s{sC0}, {32 if par == 0 else -32 & 0xffffffff}")
    G(f"s_mul_i32 s{sT1}, s{sT3}, {64*1152}", f"s_lshl_b32 s{sT2}, s{sC0}, 1", f"s_add_u32 s{sC2}, s{sT1}, s{sT2}",
      f"s_lshl_b32 s{sT0}, s{sC0P}, 1", f"s_add_u32 s{sC2P}, s{sT1}, s{sT0}",
      f"s_mul_i32 s{sT1}, s{sT3}, {32*1152}", f"s_add_u32 s{sC1}, s{sT1}, s{sT2}")
    G(f"s_lshr_b32 s{sP8}, s{sSLICE}, 1", f"s_lshl_b32 s{sP8}, s{sP8}, 4", f"s_add_u32 s{sP8}, s{sP8}, s{sTILE}", f"s_lshl_b32 s{sP8}, s{sP8}, 2",
      f"s_add_u32 s{sP8}, s{sP8}, s{sW}", f"s_lshl_b32 s{sP8}, s{sP8}, 15", f"s_add_u32 s{sP8}, s{sP8}, {WS_P8 + 16384*par}")
    G(f"s_lshl_b32 s{sP16}, s{sSLICE}, 4", f"s_add_u32 s{sP16}, s{sP16}, s{sTILE}", f"s_lshl_b32 s{sP16}, s{sP16}, 2", f"s_add_u32 s{sP16}, s{sP16}, s{sW}",
      f"s_lshl_b32 s{sP16}, s{sP16}, 12", f"s_add_u32 s{sP16}, s{sP16}, {WS_P16}")
    G(f"s_lshl_b32 s{sHO}, s{sTILE}, 4", f"s_add_u32 s{sHP}, s{sHO}, s{sSLICE}", f"s_lshl_b32 s{sHP}, s{sHP}, 2", f"s_add_u32 s{sHP}, s{sHP}, s{sW}",
      f"s_mul_i32 s{sHO}, s{sHP}, {24*1024}", f"s_add_u32 s{sHO}, s{sHO}, {WS_H}",
      f"s_add_u32 s{sHP}, s{sHO}, {(4*24*1024 if par == 0 else -4*24*1024) & 0xffffffff}")
    G(f"s_bfm_b64 s[{sMASK}:{sMASK+1}], s{sTILE}, 0", f"s_not_b64 s[{sMASK}:{sMASK+1}], s[{sMASK}:{sMASK+1}]")
    for k, sm in ((1, sM1), (2, sM2), (3, sM3)):
        G([f"s_cmp_ge_u32 s{sW}, {k}", f"s_cselect_b32 s{sm}, 1.0, 0"])
    if opt.get("nopf") is None:
        Q = TS
        G(f"v_mul_u32_u24 v{Q}, 57, {L}", f"v_lshrrev_b32 v{Q}, 10, v{Q}", f"v_mul_u32_u24 v{Q+1}, 18, v{Q}", f"v_sub_u32 v{Q+1}, {L}, v{Q+1}",
          f"v_mul_u32_u24 v{Q+1}, 9216, v{Q+1}", f"v_lshlrev_b32 v{Q}, 7, v{Q}", f"v_add_u32 v{Q}, {fullcol + 128}, v{Q}", f"v_add_u32 v{Q+1}, v{Q+1}, v{Q}",
          f"v_mov_b32 v{Q+2}, {oob}", f"v_cmp_gt_u32 vcc, 54, {L}", f"v_cndmask_b32 v{Q+1}, v{Q+2}, v{Q+1}, vcc", f"v_accvgpr_write_b32 a253, v{Q+1}")
        G(f"v_lshlrev_b32 v{Q}, 7, {L}", f"v_cmp_gt_u32 vcc, 41, {L}", f"v_cndmask_b32 v{Q}, v{Q+2}, v{Q}, vcc", f"v_accvgpr_write_b32 a254, v{Q}")
        G(f"v_lshrrev_b32 v{Q}, 1, {L}", f"v_mul_u32_u24 v{Q}, 1152, v{Q}", f"v_and_b32 v{Q+1}, 1, {L}", f"v_mul_u32_u24 v{Q+1}, 92, v{Q+1}",
          f"v_add_u32 v{Q}, v{Q}, v{Q+1}", f"v_cmp_gt_u32 vcc, 36, {L}", f"v_cndmask_b32 v{Q}, v{Q+2}, v{Q}, vcc", f"v_accvgpr_write_b32 a255, v{Q}")
    LRE, LIM, DT, E1, R1, M_, A_ = T + 3, T + 4, T + 5, T + 6, T + 7, T + 20, T + 21
    TB = T + 8; CH = T + 22
    G(f"v_lshlrev_b32 v{LRE}, 16, v{PLRE}", f"v_lshlrev_b32 v{LIM}, 16, v{PLIM}", f"v_lshlrev_b32 v{DT}, 16, v{PLDT}")
    G(f"v_mul_f32 v{DT}, {hex(LOG2E)}, v{DT}", f"v_exp_f32 v{DT}, v{DT}", f"v_lshrrev_b32 v{CH}, 3, v{VCH}",
      f"v_cvt_pk_bf16_f32 v{DT}, v{DT}, v{DT}", f"v_lshlrev_b32 v{DT}, 16, v{DT}")
    G(f"v_mul_f32 v{E1}, v{DT}, v{LRE}", f"v_mul_f32 v{R1}, v{DT}, v{LIM}", f"v_mul_f32 v{E1}, {hex(LOG2E)}, v{E1}", f"v_mul_f32 v{R1}, {hex(INV2PI)}, v{R1}")
    def cpow(dre, dim, nsrc):
        return [f"v_mul_f32 v{M_}, {nsrc}, v{E1}", f"v_mul_f32 v{A_}, {nsrc}, v{R1}", f"v_exp_f32 v{M_}, v{M_}", f"v_fract_f32 v{A_}, v{A_}",
                f"v_cos_f32 v{dre}, v{A_}", f"v_sin_f32 v{dim}, v{A_}", f"v_mul_f32 v{dre}, v{M_}, v{dre}", f"v_mul_f32 v{dim}, v{M_}, v{dim}"]
    G(*cpow(TB, TB + 1, "1.0")); G(*cpow(TB + 2, TB + 3, "2.0"))
    G(f"s_mov_b32 s{sT0}, 0x40400000"); G(*cpow(TB + 4, TB + 5, f"s{sT0}"))
    G(*cpow(TB + 6, TB + 7, "4.0"))
    G(f"v_mov_b32 v{A4}, v{TB+6}", f"v_mov_b32 v{A4+1}, v{TB+7}")
    G(f"s_mov_b32 s{sT0}, 0x42000000"); G(*cpow(A32, A32 + 1, f"s{sT0}"))
    G(f"s_mov_b32 s{sT0}, 0x43000000"); G(*cpow(A128, A128 + 1, f"s{sT0}"))
    G(f"s_lshl_b32 s{sT0}, s{sW}, 5", f"v_cvt_f32_u32 v{T+23}, s{sT0}"); G(*cpow(PW, PW + 1, f"v{T+23}"))
    KC = T
    G(f"v_add_f32 v{M_}, -1.0, v{TB}", f"v_mul_f32 v{A_}, v{LRE}, v{LRE}", f"v_fmac_f32 v{A_}, v{LIM}, v{LIM}", f"v_rcp_f32 v{A_}, v{A_}",
      f"v_mul_f32 v{KC}, v{M_}, v{LRE}", f"v_fmac_f32 v{KC}, v{TB+1}, v{LIM}",
      f"v_mul_f32 v{KC+1}, v{TB+1}, v{LRE}", f"v_fma_f32 v{KC+1}, -v{M_}, v{LIM}, v{KC+1}",
      f"v_mul_f32 v{KC}, v{KC}, v{A_}", f"v_mul_f32 v{KC+1}, v{KC+1}, v{A_}")
    G(f"v_cmp_gt_u32 vcc, {32 + 8*par}, v{CH}", f"v_mul_u32_u24 v{CH}, 48, v{CH}", f"v_add_u32 v{CH}, {TAB}, v{CH}",
      f"v_cndmask_b32 v{KC}, 0, v{KC}, vcc", f"v_cndmask_b32 v{KC+1}, 0, v{KC+1}, vcc")
    G(f"v_mov_b32 v{KC+2}, 0", f"v_mov_b32 v{KC+3}, 0")
    G(f"ds_write_b128 v{CH}, {vr(TB)}", f"ds_write_b128 v{CH}, {vr(TB+4)} offset:16", f"ds_write_b128 v{CH}, {vr(KC)} offset:32")
    per = int(opt.get("per", 12))
    if opt.get("lateinpro", "0") == "1":
        A(interleave(vm1, fill, per)); A(interleave(vm2, late, int(opt.get("per2", 14)))); late = []
        A(interleave(vm, [], 0))
    else:
        if opt.get("pffirst", "0") == "1":
            A(interleave(vm, [], 0)); A(interleave(vm1 + vm2, fill, per))
        elif opt.get("pffirst", "0") == "2":
            n0 = len(dma_items(0)) + 2 * len(xdma(0))
            A(interleave(vm1[:n0], fill[:57], per)); A(interleave(vm, [], 0)); A(interleave(vm1[n0:] + vm2, fill[57:], per))
        else:
            A(interleave(vm1 + vm2 + vm, fill, per))

    units, ustage, u0 = [], [], []
    for k, st in enumerate(stages):
        u0.append(len(units))
        for un in st.units: units.append(un); ustage.append(k)
    NU = len(units); u0.append(NU)

    def read_ins(u):
        un = units[u]; k = ustage[u]
        o = []; d = afrag(u)
        for (op, nreg, (kind, idx), off) in un["reads"]:
            s_ = setof(k)
            if kind == "abs": b, o2 = idx, off
            else:
                b = {"R": lambda: RB[2*s_ + idx], "T64": lambda: T64B[2*s_ + idx], "T128": lambda: T128B[4*s_ + idx], "C": lambda: CB[s_]}[kind]()
                o2 = off + slot_rel(k)
            assert o2 < 65536
            o.append(I(f"{op} {ar(d, nreg)}, v{b}" + (f" offset:{o2}" if o2 else ""))); d += nreg
        return o

    DEPTH = int(opt.get('depth', 6)); WE = int(opt.get('we', 4)); WOFF = int(opt.get('woff', 1)); RR = int(opt.get('rr', 0))
    def stamp(i):
        op = "s_memrealtime" if ts == "5" and i not in (59,) else "s_memtime"
        return [I(f"{op} s[100:101]"), I("s_waitcnt lgkmcnt(0)"), I(f"v_writelane_b32 v255, s100, {i}")]
    kH = 5; kF = lambda c: 8 + 6 * c; kPA = 32; kPM = 40
    kWB = kF(0) + 1
    kHA = kF(3) + int(opt.get('kha', 2))
    kHB = int(opt.get('khb', 38))
    kHC = int(opt.get('khc', 43))
    FUSE = opt.get('fuse', '1') == '1'
    kFM = int(opt.get("kfm", 46))
    BTAG = {kFM: ('pstM',) if FUSE else (), 1: ('xr2',), 4: ('xr8', 'xr7', 'xr6'), kWB: ('wtot',), kHA: ('hstA',), kHB: ('hstB',), kHC: ('hstC',)}
    if int(opt.get('kfa', 0)): BTAG[int(opt['kfa'])] = BTAG.get(int(opt['kfa']), ()) + ('pstA',)
    slots = []; bar_mf = {}
    fs = [int(x) for x in opt.get("fs", "").split(",") if x]
    for u in range(NU):
        un = units[u]; fr = ar(afrag(u))
        rd = read_ins(u + DEPTH) if u + DEPTH < NU else []
        pre = []
        kn = ustage[u + DEPTH] if u + DEPTH < NU else None
        if kn is not None and u + DEPTH == u0[kn]:
            if opt.get("splitbar", "1") == "1" and slots:
                slots[-1].pre = slots[-1].pre + [WaitTag(f"st{kn}", *BTAG.get(kn, ()))]
                pre += [I("s_barrier")]
            else:
                pre += [WaitTag(f"st{kn}", *BTAG.get(kn, ())), I("s_barrier")]
            if ts == "1" or (ts == "4" and kn in (5, 32)) or (ts == "5" and kn in (1, 5, 8, 14, 20, 26, 32, 36, 40, 43, 47)) or (ts == "2" and kn in (1, 2, 3, 4, 5, 8, 14, 20, 26, 32, 35, 40, 43, 47)): pre += stamp(kn + 1)
            bar_mf[kn] = 2 * u
        if ts == "3":
            k_ = ustage[u]
            if k_ in fs and (u - u0[k_]) % 3 == 0 and (u - u0[k_]) // 3 < 8:
                j_ = (u - u0[k_]) // 3
                pre += [I(f"s_memtime s[{78+2*j_}:{79+2*j_}]")]
            if k_ - 1 in fs and u == u0[k_] + 2:
                base_ = 8 * fs.index(k_ - 1) + 1
                pre += [I("s_waitcnt lgkmcnt(0)")] + [I(f"v_writelane_b32 v255, s{78+2*j_}, {base_ + j_}") for j_ in range(8)]
        if (u + WOFF) % WE == 0 or u == 0:
            rg = []
            for x in range(u, min(u + (WE if (u + WOFF) % WE == 0 else WE - WOFF), NU)): rg += regs_of(ar(afrag(x)))
            pre += [WaitRegs(rg)]
        for n in range(2):
            d, a, b, c = un["mf"][n]
            txt = mf(d, a, fr, c) if un["swap"] else mf(d, fr, b, c)
            if RR and len(rd) == 2 and u % RR == RR - 2: post = rd if n == 0 else []
            else: post = rd[n:n + 1] if n < len(rd) else []
            slots.append(Slot(txt, pre if n == 0 else [], post))
    mend = lambda k: 2 * u0[k + 1] - 1
    mbeg = lambda k: 2 * u0[k]
    if ts: A(stamp(60))
    A(WaitTag("x0")); A(xreads(0)); A(WaitTag("x1")); A(xreads(1))
    A(WaitTag("st0", "gw", "xr0", "xr1"), "s_barrier")
    if ts: A(stamp(1))
    for u in range(DEPTH): A(read_ins(u))

    mXB = mend(4)
    XS = 2 * len(stages[0].units)
    sD = Stream("dma", 0)
    fr_of = lambda j: [r for h in range(2) for n in range(2) for r in regs_of(xfrag(2*j+h, n))]
    def xd(j, e, dl, after=None):
        if after is not None: sD.add([WaitRegs(fr_of(after))], e, dl)
        for it in xdma(j): sD.add(it, e, dl)
    def xr(j, e, dl):
        sD.add([WaitTag(f"x{j}")], e, dl)
        for r_ in xreads(j): sD.add(r_, e, dl)
    if opt.get('x45', '1') != '1':
        xd(4, 0, 8); xd(5, 0, 16)
    xr(2, 0, 14); xr(3, 0, 20)
    for it in dma_items(2): sD.add(it, 0, 34)
    xd(6, 10, bar_mf[1] + 2, after=3)
    for it in dma_items(3): sD.add(it, bar_mf[1], bar_mf[1] + 16)
    xr(4, bar_mf[1], bar_mf[1] + 22)
    xd(7, bar_mf[1] + 8, bar_mf[1] + 34, after=4)
    xr(5, bar_mf[1] + 12, bar_mf[1] + 38)
    xd(8, bar_mf[1] + 24, bar_mf[2] + 4, after=5)
    for it in dma_items(4): sD.add(it, bar_mf[2], bar_mf[2] + 20)
    xr(6, bar_mf[2], bar_mf[3] - 8); xr(7, bar_mf[2], bar_mf[3] - 2)
    for it in dma_items(5): sD.add(it, bar_mf[3], bar_mf[3] + 16)
    xr(8, bar_mf[3] + 4, bar_mf[4] - 2)
    xdone = bar_mf[4]
    prev_user = {}; dma_e = {}; dma_d = {}; pf_time = [None]
    e_prev = bar_mf[3] + 16; d_prev = e_prev
    for k in range(NST):
        sl_ = slot_of(k)
        if k >= 6:
            e_ = bar_mf[prev_user[sl_] + 2] if sl_ in prev_user else bar_mf[4]
            if k in (7, 8): e_ = max(e_, bar_mf[4])
            e_ = max(e_, e_prev)
            if k == int(opt.get("kgap", 19)):
                pf_time[0] = d_prev + 1
                e_ = max(e_, d_prev + int(opt.get("gap", 110)))
            lead = int(opt.get("lead", 75))
            if k < int(opt.get("krelax", 16)): d_ = max(min(bar_mf[k] - lead, bar_mf[k] - 2), min(d_prev + 14, bar_mf[k] - 2), e_ + 4)
            else: d_ = min(max(e_ + 44, d_prev + 14), bar_mf[k] - 2)
            d_ = min(d_, bar_mf[k] - 2)
            for it in dma_items(k): sD.add(it, e_, d_)
            dma_e[k], dma_d[k] = e_, d_
            e_prev, d_prev = e_, d_
        prev_user[sl_] = k
    clr = [[f"s_lshl_b32 s{sT0}, s{sSLICE}, 4", f"s_add_u32 s{sT0}, s{sT0}, s{sTILE}", f"s_lshl_b32 s{sT1}, s{sT0}, 7", f"s_add_u32 s{sT1}, s{sT1}, {WS_F}",
            f"s_cmp_eq_u32 s{sW}, 0", f"s_cselect_b32 s{sT2}, 1, 0"],
           f"v_cmp_gt_u32 vcc, s{sT2}, {L}", f"v_mov_b32 v{TS}, {oob}", f"v_mov_b32 v{TS+1}, s{sT1}", f"v_mov_b32 v{TS+2}, s{sT0}", f"v_mov_b32 v{TS+3}, 0",
           f"v_cndmask_b32 v{TS+1}, v{TS}, v{TS+1}, vcc", f"v_cndmask_b32 v{GWB+0 if False else TA+2}, v{TS}, v{TS+2}, vcc",
           I(f"buffer_store_dword v{TS+3}, v{TS+1}, {sr(S_WS)}, 0 offen sc1", tag="clr")]
    sP = Stream("setup", 1)
    for x in clr: sP.add(x, 0, 60)
    for x in late: sP.add(x, 0, mXB)
    sCl = Stream("clr", 1)
    sCl.add([I(f"v_mov_b32 v64, 1"), WaitTag("clr"), I(f"buffer_store_byte v64, v{TA+2}, {sr(S_DBG)}, 0 offen sc1")], bar_mf[2], bar_mf[3] + 10)
    sA = Stream("addr", 1)
    sA.extend(voff_W1full(D1, TA + 2), bar_mf[3] + 12, dma_e[kF(0)])
    common = base_list_T128(T128B, 8, TA, None)
    sA.extend(common, xdone + 1, bar_mf[kF(0)])
    for idx in range(6): sA.extend(t128_regs(idx, TA), xdone + 1, bar_mf[kF(0)])
    for idx in range(6, 12): sA.extend(t128_regs(idx, TA), mXB + 1, bar_mf[kF(0)])
    sA.extend(voff_Wd(D2, TA), max(dma_d[7], mXB + 2), dma_e[kPA])
    sA.extend([x.replace(f'v{TA+2}', f'v{CB[2]}') for x in base_C(CB[0], TA)], bar_mf[kF(0)] + 4, bar_mf[40])
    sA.extend(voff_C(D1, TA), dma_d[kPA - 1], dma_e[40])
    last_use = {}; next_use = {}
    for k in range(kF(0), kPA): last_use[setof(k)] = k
    for k in range(NST - 1, kPA - 1, -1):
        if stages[k].fmt.startswith("Wd"): next_use[setof(k)] = k
    sB = Stream("bases", 1)
    order = sorted(range(3), key=lambda s_: last_use[s_])
    sB.add(f"v_lshrrev_b32 v{TA+2}, 4, {L}", bar_mf[last_use[order[0]] + 1], bar_mf[next_use[order[0]]] - 20)
    sB.add(f"v_lshlrev_b32 v{TA+2}, 9, v{TA+2}", bar_mf[last_use[order[0]] + 1], bar_mf[next_use[order[0]]] - 20)
    for s_ in order:
        for mt in range(4):
            r_ = T128B[4 * s_ + mt]
            sB.add(f"v_sub_u32 v{r_}, v{r_}, v{TA+2}", bar_mf[last_use[s_] + 1], bar_mf[next_use[s_]])

    sE = Stream("epi", 2)
    HST = opt.get("hst", " sc1")
    def hstore(reg, K, n, tag):
        off = (K * 2 + n) * 1024
        return [I(f"s_add_u32 s{sHT}, s{sHO}, {off & ~4095}"),
                I(f"buffer_store_dwordx4 {vr(reg)}, v{VST}, {sr(S_WS)}, s{sHT} offen" + (f" offset:{off & 4095}" if off & 4095 else "") + HST, tag=tag)]
    def ffn_epi(buf, Ks, earliest, deadline, tag):
        for kk, K in enumerate(Ks):
            for n in range(2):
                o = []
                gs = [buf + (2 * kk + h) * 8 + 4 * n for h in range(2)]; us = [buf + (4 + 2 * kk + h) * 8 + 4 * n for h in range(2)]
                for h in range(2):
                    g, u_ = gs[h], us[h]
                    if opt.get("norho"):
                        for r in range(4): o += [f"v_max_f32 v{g+r}, 0, v{g+r}"]
                    else:
                        for r in range(4): o += [f"v_max_f32 v{g+r}, 0, v{g+r}", f"v_mul_f32 v{u_+r}, v{SF+n}, v{u_+r}"]
                    for r in range(4): o += [f"v_mul_f32 v{g+r}, v{g+r}, v{u_+r}"]
                d = us[0]
                o += [f"v_cvt_pk_bf16_f32 v{d}, v{gs[0]}, v{gs[0]+1}", f"v_cvt_pk_bf16_f32 v{d+1}, v{gs[0]+2}, v{gs[0]+3}",
                      f"v_cvt_pk_bf16_f32 v{d+2}, v{gs[1]}, v{gs[1]+1}", f"v_cvt_pk_bf16_f32 v{d+3}, v{gs[1]+2}, v{gs[1]+3}"]
                h_ = AH + 8 * K + 4 * n
                o += [f"v_accvgpr_write_b32 a{h_+j}, v{d+j}" for j in range(4)]
                sE.extend(o, earliest, deadline)
                sE.add(hstore(d, K, n, tag), earliest, deadline)
    ffn_epi(ACC[0], [8], mend(kH + 2) + 4, mbeg(kF(1)), "hstA")
    ffn_epi(ACC[1], [0, 1], mend(kF(0) + 5) + 4, mbeg(kF(2)), "hstA")
    ffn_epi(ACC[0], [2, 3], mend(kF(1) + 5) + 4, mbeg(kF(3)) - 60, "hstA")
    ffn_epi(ACC[1], [4, 5], mend(kF(2) + 5) + 4, mbeg(kPA), "hstB")
    ffn_epi(ACC[0], [6, 7], mend(kF(3) + 5) + 4, mbeg(35) - 4, "hstB")
    PST = opt.get("pst", " sc1")
    kAend = 48 if ORD2 == 0 else 47
    kFA = int(opt.get('kfa', 0))
    DLP = {2: bar_mf[kFM - 2] if FUSE else None, 0: (bar_mf[kFA - 1] if kFA else None), 1: None}
    for p, k1 in ((2, 42), (0, kAend), (1, 50)):
        nm = 8 if p < 2 else 4
        last = mend(k1)
        sreg = sP8 if p < 2 else sP16
        for m in range(nm):
            if p < 2:
                a = ACC[(p + 1) & 1] + m * 8
                o = []
            else:
                a = T + 8 * (m & 1)
                o = [f"v_accvgpr_read_b32 v{a+j}, a{PMACC[m]+j}" for j in range(8)]
            o += [f"v_cvt_pk_bf16_f32 v{a}, v{a}, v{a+1}", f"v_cvt_pk_bf16_f32 v{a+1}, v{a+2}, v{a+3}",
                  f"v_cvt_pk_bf16_f32 v{a+2}, v{a+4}, v{a+5}", f"v_cvt_pk_bf16_f32 v{a+3}, v{a+6}, v{a+7}"]
            sE.extend(o, last + 4, DLP[p])
            imm = 1024 * (m % 4)
            sE.add(f"buffer_store_dwordx4 {vr(a)}, v{VST}, {sr(S_WS)}, s{sreg} offen" + (f" offset:{imm}" if imm else "") + PST, last + 4, DLP[p])
            sE.q[-1][0][0].tag = "pst" + "ABM"[p]
            if p == 1:
                for it in list(sE.q)[-(len(o) + 1):]:
                    for x in it[0]: x.pbepi = True
            if m % 4 == 3:
                sE.add(f"s_add_u32 s{sreg}, s{sreg}, 4096", last + 4, DLP[p])
                if p == 1: sE.q[-1][0][0].pbepi = True

    sS = Stream("ssm", 3)
    e = [mXB + 4]
    add = lambda x, deadline=None: sS.add(x, e[0], deadline)
    def adds(lst, **kw):
        for x in lst: add(x, **kw)
    dlG = mend(kH + 2)
    G0, G1, Z = T, T + 1, T + 2
    adds([f"v_lshrrev_b32 v{G0}, 4, {L}", f"v_lshlrev_b32 v{G0}, 4, v{G0}", f"v_add_u32 v{G0}, s{sW3}, v{G0}", f"v_add_u32 v{G0}, {PRIV}, v{G0}"])
    for n in range(2): add(f"ds_write_b128 v{G0}, {vr(LG+4*n)} offset:{64*n}")
    adds([f"v_and_b32 v{G1}, 31, {L}", f"v_lshlrev_b32 v{G1}, 2, v{G1}", f"v_add_u32 v{G1}, s{sW3}, v{G1}", f"v_add_u32 v{G1}, {PRIV}, v{G1}",
          f"ds_read_b32 v{Z}, v{G1}"])
    TA1 = T + 8
    adds([f"v_and_b32 v{VT}, 15, {L}", f"v_mul_u32_u24 v{VT}, 48, v{VT}", f"v_add_u32 v{VT}, {TAB}, v{VT}"])
    for b in range(nS): add(f"ds_read_b64 {vr(TA1+2*b, 2)}, v{VT} offset:{b*768}")
    adds([f"v_cvt_pk_bf16_f32 v{Z}, v{Z}, v{Z}", f"v_lshlrev_b32 v{Z}, 16, v{Z}", f"v_mul_f32 v{Z}, {hex(LOG2E ^ 0x80000000)}, v{Z}", f"v_exp_f32 v{Z}, v{Z}",
          f"v_lshrrev_b32 v{VE}, 4, {L}",
          f"v_add_f32 v{Z}, 1.0, v{Z}", f"v_rcp_f32 v{Z}, v{Z}", f"v_mul_u32_u24 v{VE}, 384, v{VE}",
          f"v_cvt_pk_bf16_f32 v{Z}, v{Z}, v{Z}", f"v_lshlrev_b32 v{Z}, 16, v{Z}",
          f"v_sub_f32 v{T+3}, 1.0, v{Z}", f"v_cvt_pk_bf16_f32 v{T+3}, v{T+3}, v{T+3}", f"v_lshlrev_b32 v{T+3}, 16, v{T+3}", f"v_add_f32 v{T+4}, v{Z}, v{Z}",
          f"ds_write_b32 v{G1}, v{T+3} offset:128", f"ds_write_b32 v{G1}, v{T+4} offset:256", f"ds_write_b32 v{G1}, v{Z} offset:384"])
    if par == 0:
        add([f"s_lshl_b32 s{sT0}, s{sTILE}, 7", f"s_lshl_b32 s{sT1}, s{sW}, 5", f"s_add_u32 s{sT0}, s{sT0}, s{sT1}", f"s_lshl_b32 s{sT0}, s{sT0}, 2",
             f"s_add_u32 s{sT0}, s{sT0}, {WS_G}", f"s_cmp_eq_u32 s{sSLICE}, 0", f"s_cselect_b32 s{sT1}, 32, 0"])
        adds([f"v_lshlrev_b32 v{T+5}, 2, {L}", f"v_cmp_gt_u32 vcc, s{sT1}, {L}", f"v_mov_b32 v{T+6}, {oob}",
              f"v_cndmask_b32 v{T+5}, v{T+6}, v{T+5}, vcc", I(f"buffer_store_dword v{Z}, v{T+5}, {sr(S_WS)}, s{sT0} offen sc1", tag="sst")])
    adds([f"v_and_b32 v{T+7}, 15, {L}", f"v_lshlrev_b32 v{T+7}, 2, v{T+7}", f"v_add_u32 v{T+7}, s{sW3}, v{T+7}", f"v_add_u32 v{T+7}, {PRIV}, v{T+7}"])
    for n in range(2): add(f"ds_read_b32 v{SF+n}, v{T+7} offset:{128+64*n}")
    for n in range(2): add(f"ds_read_b128 {vr(LG+4*n)}, v{G0} offset:{256+64*n}")
    for n in range(2): add(f"ds_read_b32 v{T+5+n}, v{T+7} offset:{384+64*n}")
    adds([f"v_and_b32 v{VE+1}, 15, {L}", f"v_lshlrev_b32 v{VE+1}, 3, v{VE+1}", f"v_add_u32 v{VE}, v{VE}, v{VE+1}", f"v_add_u32 v{VE}, s{sW3}, v{VE}",
          f"v_add_u32 v{VE}, {PRIV}, v{VE}", f"v_add_u32 v{VE+1}, 1536, v{VE}"])
    add(WaitRegs([f"v{SF}", f"v{SF+1}"] + regs_of(vr(LG, 8))), deadline=dlG)
    adds([f"v_accvgpr_write_b32 a249, v{T+5}", f"v_accvgpr_write_b32 a250, v{T+6}"])
    for r in range(1, 4):
        for b in range(nS):
            are, aim = TA1 + 2 * b, TA1 + 2 * b + 1
            for n in range(2):
                R, Im = xb(b, 0, n), xb(b, 1, n)
                adds([f"v_fmac_f32 v{R+r}, v{are}, v{R+r-1}", f"v_fmac_f32 v{Im+r}, v{are}, v{Im+r-1}"])
            for n in range(2):
                R, Im = xb(b, 0, n), xb(b, 1, n)
                adds([f"v_fma_f32 v{R+r}, -v{aim}, v{Im+r-1}, v{R+r}", f"v_fmac_f32 v{Im+r}, v{aim}, v{R+r-1}"])
    for b in range(nS):
        for n in range(2):
            add(f"ds_write2_b32 v{VE+n}, v{xb(b,0,n)+3}, v{xb(b,1,n)+3} offset0:{32*b} offset1:{32*b+1}")
    adds([f"v_add_u32 v{VP}, s{sW3}, v{VCH}", f"v_add_u32 v{VP}, {PRIV}, v{VP}"])
    for m in range(8): add(f"ds_read_b64 {vr(T+2*m, 2)}, v{VP} offset:{384*m}")
    add([f"s_mul_i32 s{sT0}, s{sW}, 384", f"s_add_u32 s{sT0}, s{sT0}, {WTOT}"]); add(f"v_add_u32 v{TS}, s{sT0}, v{VCH}")
    for m in range(1, 8): adds(cmul_acc(T + 2*m, T + 2*m + 1, A4, A4 + 1, T + 2*m - 2, T + 2*m - 1))
    add(I(f"ds_write_b64 v{TS}, {vr(T+14, 2)}", tag="wtot"), deadline=bar_mf[kWB] - 2)
    e[0] = bar_mf[kWB]
    adds([f"v_add_u32 v{TS}, {WTOT}, v{VCH}"])
    for m in range(4): add(f"ds_read_b64 {vr(T+2*m, 2)}, v{TS} offset:{384*m}")
    add([f"s_mul_i32 s{sT0}, s{sTILE}, 384", f"s_cmp_eq_u32 s{sW}, 0", f"s_cselect_b32 s{sT1}, 48, 0"])
    adds([f"v_add_u32 v{TS+1}, s{sT0}, v{VCH}", f"v_cmp_gt_u32 vcc, s{sT1}, {L}", f"v_mov_b32 v{TS+2}, {oob}"])
    for m in range(1, 4): adds(cmul_acc(T + 2*m, T + 2*m + 1, A32, A32 + 1, T + 2*m - 2, T + 2*m - 1))
    adds([f"v_cndmask_b32 v{TS+1}, v{TS+2}, v{TS+1}, vcc"])
    add(I(f"buffer_store_dwordx2 {vr(T+6, 2)}, v{TS+1}, {sr(S_S)}, 0 offen sc1", tag="sst"))
    XF, XP, XT = P1 + 3, P1 + 4, P1 + 5
    eX = bar_mf[kF(0)] + 4
    sX_ = Stream("xch", 2)
    sX_.add([f"s_lshl_b32 s{sQ+1}, s{sSLICE}, 4", f"s_add_u32 s{sQ+1}, s{sQ+1}, s{sTILE}", f"s_lshl_b32 s{sQ+1}, s{sQ+1}, 7", f"s_add_u32 s{sQ+1}, s{sQ+1}, {WS_F}",
             f"s_cmp_eq_u32 s{sW}, 0", f"s_cselect_b32 s{sQ+2}, 1, 0"], eX, bar_mf[kWB] + 8)
    for x in [f"v_mov_b32 v{XF}, s{sQ+1}", f"v_cmp_gt_u32 vcc, s{sQ+2}, {L}", f"v_mov_b32 v{XT}, {oob}", f"v_cndmask_b32 v{XF}, v{XT}, v{XF}, vcc",
              [f"s_sub_u32 s{sQ+1}, s{sQ+1}, {WS_F}", f"s_xor_b32 s{sQ+1}, s{sQ+1}, 2048", f"s_add_u32 s{sQ+1}, s{sQ+1}, {WS_F}"], f"v_mov_b32 v{XP}, s{sQ+1}"]:
        sX_.add(x, eX, bar_mf[kWB] + 8)
    add([I(f"v_mov_b32 v{TS+3}, 1"), WaitTag("sst"), I(f"buffer_store_dword v{TS+3}, v{XF}, {sr(S_WS)}, 0 offen sc1")])
    slow = []
    def poll(emit, name, areg, dreg, cond_instrs, cnt, dbg=False):
        ld = f"buffer_load_ubyte v{dreg}, v{areg}, {sr(S_DBG)}, 0 offen sc1" if dbg else f"buffer_load_dword v{dreg}, v{areg}, {sr(S_WS)}, 0 offen sc1"
        emit(ld, False)
        emit([I(x) for x in cond_instrs] + [I("s_cmp_eq_u64 vcc, -1"), I(f"s_cbranch_scc0 L_slow_{name}{par}"), I(f"L_back_{name}{par}:")], True)
        slow.extend([I(f"L_slow_{name}{par}:"), I(f"s_mov_b32 s{cnt}, 0"), I(f"L_slowl_{name}{par}:"), I("s_sleep 1"), I(ld), I("s_waitcnt vmcnt(0)")]
                    + [I(cond_instrs[0]), I("s_nop 4")] + [I(x) for x in cond_instrs[1:]]
                    + [I("s_cmp_eq_u64 vcc, -1"), I(f"s_cbranch_scc1 L_back_{name}{par}"), I(f"s_add_u32 s{cnt}, s{cnt}, 1"), I(f"s_cmp_lt_u32 s{cnt}, 0x40000"),
                       I(f"s_cbranch_scc1 L_slowl_{name}{par}"), I(f"s_branch L_back_{name}{par}")])
    kPoll = int(opt.get("kpoll", kF(1)))
    pace_from = [len(sS.q)]
    e[0] = bar_mf[kPoll]
    adds([[f"s_lshl_b32 s{sT0}, s{sSLICE}, 4", f"s_sub_u32 s{sT1}, s{sTILE}, 256"],
          f"v_add_u32 v{TS}, s{sT0}, {L}", f"v_lshlrev_b32 v{TS+2}, 4, {L}", f"v_add_u32 v{TS+2}, s{sT1}, v{TS+2}",
          f"v_cmp_gt_u32 vcc, 16, {L}", f"v_cndmask_b32 v{TS}, v{TS+2}, v{TS}, vcc",
          f"v_mov_b32 v{TS+2}, {oob}", f"v_cmp_gt_u32 vcc, 32, {L}", f"v_cndmask_b32 v{TS}, v{TS+2}, v{TS}, vcc"])
    poll(lambda x, chk: add(x), "C", TS, TS + 1, [f"v_cmp_ne_u32 vcc, 0, v{TS+1}", f"s_or_b32 vcc_hi, vcc_hi, -1"], sT2, dbg=True)
    adds([[f"s_lshl_b32 s{sT0}, s{sSLICE}, 11", f"s_add_u32 s{sT0}, s{sT0}, {WS_F}"], f"v_lshlrev_b32 v{TS}, 7, {L}", f"v_add_u32 v{TS}, s{sT0}, v{TS}",
          f"v_cmp_gt_u32 vcc, 16, {L}", f"v_mov_b32 v{TS+2}, {oob}", f"v_cndmask_b32 v{TS}, v{TS+2}, v{TS}, vcc"])
    poll(lambda x, chk: add(x), "S", TS, TS + 1, [f"v_cmp_ne_u32 vcc, 0, v{TS+1}", f"s_or_b64 vcc, vcc, s[{sMASK}:{sMASK+1}]"], sT2)
    add([f"s_mul_i32 s{sT0}, s{sTILE}, 384"]); add(f"v_add_u32 v{TS}, s{sT0}, v{VCH}")
    for idx, k in enumerate(range(15, 7, -1)):
        t_ = TS + 1 + (idx & 1)
        add(f"v_subrev_u32 v{t_}, {k*384}, v{TS}")
        add(f"buffer_load_dwordx2 {vr(T+2*idx, 2)}, v{t_}, {sr(S_S)}, 0 offen sc1")
    CC = TS + 2
    for m in range(1, 8): adds(cmul_acc(T + 2*m, T + 2*m + 1, A128, A128 + 1, T + 2*m - 2, T + 2*m - 1))
    adds([f"v_mov_b32 v{CC}, v{T+14}", f"v_mov_b32 v{CC+1}, v{T+15}"])
    for idx, k in enumerate(range(7, 0, -1)):
        add(f"v_subrev_u32 v{TS+1}, {k*384}, v{TS}")
        add(f"buffer_load_dwordx2 {vr(T+2*idx, 2)}, v{TS+1}, {sr(S_S)}, 0 offen sc1")
    adds(cmul_acc(T, T + 1, A128, A128 + 1, CC, CC + 1))
    for m in range(1, 7): adds(cmul_acc(T + 2*m, T + 2*m + 1, A128, A128 + 1, T + 2*m - 2, T + 2*m - 1))
    adds([f"v_mov_b32 v{CC}, v{T+12}", f"v_mov_b32 v{CC+1}, v{T+13}"])
    for k in (3, 2, 1):
        add([f"s_sub_u32 s{sT0}, s{sW}, {k}", f"s_max_i32 s{sT0}, s{sT0}, 0", f"s_mul_i32 s{sT0}, s{sT0}, 384", f"s_add_u32 s{sT0}, s{sT0}, {WTOT}"])
        add(f"v_add_u32 v{TS}, s{sT0}, v{VCH}")
        add(f"ds_read_b64 {vr(T+2*(3-k), 2)}, v{TS}")
    for k, sm in ((3, sM3), (2, sM2), (1, sM1)):
        j = T + 2 * (3 - k)
        adds([f"v_mul_f32 v{j}, s{sm}, v{j}", f"v_mul_f32 v{j+1}, s{sm}, v{j+1}"])
    adds(cmul_acc(T + 2, T + 3, A32, A32 + 1, T, T + 1)); adds(cmul_acc(T + 4, T + 5, A32, A32 + 1, T + 2, T + 3))
    adds(cmul_acc(T + 4, T + 5, PW, PW + 1, CC, CC + 1))
    adds([f"v_mov_b32 v{CC}, v{T+4}", f"v_mov_b32 v{CC+1}, v{T+5}"])
    for m in range(7): add(f"ds_read_b64 {vr(T+2*m, 2)}, v{VP} offset:{384*m}")
    add(f"ds_write_b64 v{VP}, {vr(CC, 2)}")
    adds(cmul_acc(T, T + 1, A4, A4 + 1, CC, CC + 1))
    add(f"ds_write_b64 v{VP}, {vr(T, 2)} offset:384")
    for m in range(1, 7):
        adds(cmul_acc(T + 2*m, T + 2*m + 1, A4, A4 + 1, T + 2*m - 2, T + 2*m - 1))
        add(f"ds_write_b64 v{VP}, {vr(T+2*m, 2)} offset:{384*(m+1)}")
    VW, VR = TS, TS + 1
    adds([f"v_and_b32 v{VW}, 15, {L}", f"v_lshlrev_b32 v{VW}, 5, v{VW}", f"v_lshrrev_b32 v{VR}, 4, {L}", f"v_lshlrev_b32 v{VR}, 3, v{VR}",
          f"v_add_u32 v{VW}, v{VW}, v{VR}", f"v_add_u32 v{VW}, s{sW3}, v{VW}", f"v_add_u32 v{VW}, {PRIV}, v{VW}",
          f"v_lshlrev_b32 v{VR}, 3, {L}", f"v_add_u32 v{VR}, s{sW3}, v{VR}", f"v_add_u32 v{VR}, {PRIV}, v{VR}"])
    dlS = bar_mf[40] - int(opt.get('dls', 10))
    for n in range(2):
        for b in range(nS): add(f"ds_read_b64 {vr(T+2*b, 2)}, v{VE+n} offset:{128*b}")
        for b in range(nS):
            TBL = T + 6
            adds([f"ds_read_b128 {vr(TBL)}, v{VT} offset:{b*768}", f"ds_read_b128 {vr(TBL+4)}, v{VT} offset:{b*768+16}", f"ds_read_b64 {vr(TBL+8, 2)}, v{VT} offset:{b*768+32}"])
            R, Im = xb(b, 0, n), xb(b, 1, n)
            cre, cim = T + 2 * b, T + 2 * b + 1
            for r in range(4): adds(cmul_acc(R + r, Im + r, TBL + 2*r, TBL + 2*r + 1, cre, cim))
            kr, ki, tt = TBL + 8, TBL + 9, TS + 2
            for r in range(4):
                t_ = tt + (r & 1)
                adds([f"v_mul_f32 v{t_}, v{kr}, v{R+r}", f"v_fma_f32 v{t_}, -v{ki}, v{Im+r}, v{t_}",
                      f"v_mul_f32 v{Im+r}, v{kr}, v{Im+r}", f"v_fmac_f32 v{Im+r}, v{ki}, v{R+r}",
                      f"v_mul_f32 v{R+r}, v{LG+4*n+r}, v{t_}", f"v_mul_f32_e64 v{Im+r}, -v{LG+4*n+r}, v{Im+r}"])
            adds([f"v_cvt_pk_bf16_f32 v{R}, v{R}, v{R+1}", f"v_cvt_pk_bf16_f32 v{R+1}, v{R+2}, v{R+3}",
                  f"v_cvt_pk_bf16_f32 v{Im}, v{Im}, v{Im+1}", f"v_cvt_pk_bf16_f32 v{Im+1}, v{Im+2}, v{Im+3}"])
            so = 1536 * n
            adds([f"ds_write_b64 v{VW}, {vr(R, 2)} offset:{so}", f"ds_write_b64 v{VW}, {vr(Im, 2)} offset:{so+512}",
                  f"ds_read_b64_tr_b16 {vr(R, 2)}, v{VR} offset:{so}", f"ds_read_b64_tr_b16 {vr(R+2, 2)}, v{VR} offset:{so+512}"])
    for n in range(2):
        for b in range(nS):
            off = ((9 + b) * 2 + n) * 1024
            add([I(f"s_add_u32 s{sT0}, s{sHO}, {off & ~4095}"),
                 I(f"buffer_store_dwordx4 {vr(xb(b,0,n))}, v{VST}, {sr(S_WS)}, s{sT0} offen" + (f" offset:{off & 4095}" if off & 4095 else "") + HST, tag="hstC")],
                deadline=dlS)
    def hload(K, n):
        off = (K * 2 + n) * 1024
        return [I(f"s_add_u32 s{sQ+1}, s{sHP}, {off & ~4095}"),
                I(f"buffer_load_dwordx4 {ar(hp_reg(K) + 4*n)}, v{VST}, {sr(S_WS)}, s{sQ+1} offen" + (f" offset:{off & 4095}" if off & 4095 else "") + " sc1")]
    sFl = Stream("flag", 1)
    def flag(val, k):
        sFl.add(f"v_mov_b32 v{XT}, {val}", bar_mf[k], bar_mf[k] + 6)
        sFl.add(f"buffer_store_dword v{XT}, v{XF}, {sr(S_WS)}, 0 offen sc1", bar_mf[k], bar_mf[k] + 10)
    def xpoll(name, val, t_load, t_chk, Ks, dl):
        tt = [t_load]
        def emit(x, chk):
            if chk: sX_.add(x, t_chk, t_chk + 10)
            else: sX_.add(x, t_load, t_load + 10)
        poll(emit, name, XP, GWB, [f"v_cmp_le_u32 vcc, {val}, v{GWB}"], sQ + 2)
        for K in Ks:
            for n in range(2): sX_.add(hload(K, n), t_chk, dl)
    flag(2, kHA)
    needA = mbeg(43); needB = mbeg(45 if ORD2 == 0 else 44); needC = mbeg(48 if ORD2 == 0 else 47)
    firstA = [8, 0, 1, 2, 3] if par == 0 else [0, 1, 2, 3, 8]
    tA = int(opt.get("tA", 190)); tB = int(opt.get("tB", 150))
    kA0 = int(opt.get("ka0", 34 if ORD2 == 0 else 33))
    xpoll("A", 2, mbeg(kA0), mbeg(kA0) + 90, firstA, mbeg(kA0 + 4))
    flag(3, kHB)
    xpoll("B", 3, needB - tB - 80, needB - tB, [4, 5, 6, 7], needB - 70)
    flag(4, kHC)
    if FUSE: flag(5, kFM)
    if FUSE and kFA: flag(6, kFA)
    xpoll("D", 4, needC - 120 - 70, needC - 120, [9 + b for b in range(nSP)], needC - 70)

    sW_ = Stream("warm", 5)
    if opt.get("nopf") is None:
        PVL = TA + 2
        def pf(e_, areg, sset, srd_, dst):
            tight = pf_time[0] is not None and e_ >= pf_time[0]
            sW_.add(f"v_accvgpr_read_b32 v{PVL}, a{areg}", e_ - (12 if tight else 0), e_ + (2 if tight else 30))
            for x in sset: sW_.add(x, e_ - (12 if tight else 0), e_ + (2 if tight else 30))
            sW_.add(f"buffer_load_dword a{dst}, v{PVL}, {sr(srd_)}, s{sQ} offen{PFL}", e_, e_ + (6 if tight else 40))
        t_a = int(opt.get("pf_a", mbeg(kH) + 30))
        which = opt.get("pfall", "")
        if "a" not in which: pf(t_a, 253, [f"s_mul_i32 s{sQ}, s{sT4}, {18*9216}", f"s_mul_i32 s{sQ+3}, s{sSLICE}, 576", f"s_add_u32 s{sQ}, s{sQ}, s{sQ+3}"], S_W1, 252)
        t_d = int(opt.get("pf_d", mbeg(kF(1)) + 20))
        t_c = t_d + 100
        if pf_time[0] is not None: t_d = pf_time[0]; t_c = t_d + 8
        if "d" not in which: pf(t_d, 254, [f"s_lshl_b32 s{sQ}, s{sTILE}, 2", f"s_add_u32 s{sQ}, s{sQ}, s{sW}", f"s_mul_i32 s{sQ}, s{sQ}, {41*128}",
                      f"s_mul_i32 s{sQ+3}, s{sSLICE}, {288*1152}", f"s_add_u32 s{sQ}, s{sQ}, s{sQ+3}"], S_WD, 248)
        if "c" not in which: pf(t_c, 255, [f"s_mul_i32 s{sQ}, s{sT4}, {18*1152}", f"s_lshl_b32 s{sQ+3}, s{sC0}, 1", f"s_add_u32 s{sQ}, s{sQ}, s{sQ+3}"], S_C, 251)
    pace(sS, pace_from[0], bar_mf[kPoll], dlS - 10)
    streams = [sD, sP, sCl, sA, sB, sE, sS, sX_, sFl, sW_]
    if FUSE:
        sR, sR2 = reduce_prep(opt, par, bar_mf[int(opt.get("ke0", 46))] + 6, bar_mf[int(opt.get("kmchk", 50))] + int(opt.get("tmchk", 0)), mend(NST - 1))
        streams += [sR, sR2]
    strip = opt.get("strip", "")
    if "e" in strip: streams = [x for x in streams if x not in (sE, sS, sX_, sFl, sW_, sCl)]; slow = []
    if "S" in strip: streams = [x for x in streams if x not in (sS, sX_, sFl, sW_, sCl)]; slow = []
    if "E" in strip: streams = [x for x in streams if x is not sE]
    if "h" in strip: sE.q = deque(it for it in sE.q if not any(x.kind == "vm_st" for x in it[0]))
    if "X" in strip: streams = [x for x in streams if x not in (sX_, sFl)]; slow = [x for x in slow if False]
    if "b" in strip:
        for sl in slots: sl.pre = [x for x in sl.pre if x.kind != "barrier"]
    if "d" in strip:
        keep = deque(it for it in sD.q if not any(getattr(x, "tag", "") and str(x.tag).startswith("st") and int(x.tag[2:]) > 8 for x in it[0]))
        sD.q = keep
    if "r" in strip:
        for sl in slots[400:]: sl.post = []
    fw.DMA_GAP = int(opt.get('dgap', 7)); fw.DMA_GAP_FROM = mXB - 20
    body, rest, stats = schedule(slots, streams)
    tail = rest
    if FUSE:
        pb = [x for x in rest if getattr(x, "pbepi", False)]
        others = [x for x in rest if not getattr(x, "pbepi", False)]
        if opt.get("tailv", "1") in ("2", "3"): tail = others + final_reduce(opt, par, XF, XT, GWB, slow, pb)
        else: tail = rest + final_reduce(opt, par, XF, XT, GWB, slow, None)
    if ts:
        tail = tail + stamp(58) + [I("s_waitcnt vmcnt(0)")] + stamp(59) + [I("s_memrealtime s[100:101]"), I("s_waitcnt lgkmcnt(0)"), I("v_writelane_b32 v255, s100, 62")]
        tail += expand([f"s_lshl_b32 s{sT0}, s2, 2", f"s_add_u32 s{sT0}, s{sT0}, s{sW}", f"s_lshl_b32 s{sT0}, s{sT0}, 8", f"s_add_u32 s{sT0}, s{sT0}, {WS_END}",
                        f"v_lshlrev_b32 v1, 2, {L}", f"buffer_store_dword v255, v1, {sr(S_WS)}, s{sT0} offen"])
    for b_ in check_flags(body)[:10]: print('FLAG HAZARD', par, b_)
    prog = pro + body + tail
    prog, nw = insert_waits(prog)
    prog, nn = pad_hazards(prog)
    ol = stats.pop("overlog")
    stats["over_by_stage"] = [sum(ol[2*u0[k]:2*u0[k+1]]) for k in range(NST)]
    info = dict(stats, rate=round(sS.rate, 2), NU=NU, nwait=nw, nnop=nn, ninstr=len(prog), tail=len(tail))
    txt = render(prog) + "\n  s_endpgm\n" + render(slow) + "\n"
    return txt, info


def build_reduce(opt):
    o = []
    A = lambda *x: o.extend(expand(list(x)))
    A("s_cmp_ge_u32 s2, 576", "s_cbranch_scc1 L_red_end")
    if opt.get("ts"): A("s_memrealtime s[80:81]")
    A("s_load_dwordx2 s[64:65], s[0:1], 0", "s_load_dwordx2 s[66:67], s[0:1], 64", "s_load_dwordx2 s[68:69], s[0:1], 112", "s_load_dwordx2 s[70:71], s[0:1], 128")
    A("v_lshrrev_b32 v1, 6, v0", "v_and_b32 v2, 63, v0")
    A("v_readfirstlane_b32 s20, v1")
    A("s_lshl_b32 s21, s2, 2", "s_add_u32 s21, s21, s20")
    A("s_mul_i32 s22, s21, 1821", "s_lshr_b32 s22, s22, 16")
    A("s_mul_i32 s23, s22, 36", "s_sub_u32 s23, s21, s23")
    A("s_lshl_b32 s25, s22, 5")
    A("v_lshlrev_b32 v3, 4, v2", "v_and_b32 v4, 15, v2", "v_lshrrev_b32 v5, 4, v2")
    A("s_sub_u32 s29, s23, 4", "s_cmp_ge_u32 s23, 20", "s_cselect_b32 s29, s29, s23")
    A("s_lshl_b32 s24, s22, 15", "s_lshl_b32 s29, s29, 10", "s_add_u32 s24, s24, s29", f"s_add_u32 s24, s24, {WS_P8}")
    A(f"s_mov_b32 s30, {16*4*32768}")
    A("s_lshl_b32 s31, s22, 12", "s_sub_u32 s29, s23, 16", "s_lshl_b32 s33, s29, 10", "s_add_u32 s31, s31, s33", f"s_add_u32 s31, s31, {WS_P16}")
    A("s_cmp_lt_u32 s29, 4", "s_cselect_b32 s24, s31, s24", f"s_cselect_b32 s30, {16*4*4096}, s30", "s_cselect_b32 s34, 1, 0")
    A("s_waitcnt lgkmcnt(0)")
    A(srd(4, "s70", "s71", WS_END), srd(8, "s64", "s65", 2359296), srd(12, "s66", "s67", 1152), srd(16, "s68", "s69", 4718592))
    RLD = opt.get("rld", "")
    for s_ in range(8):
        A(f"buffer_load_dwordx4 {vr(32+4*s_)}, v3, s[4:7], s24 offen{RLD}", "s_add_u32 s24, s24, s30")
    A("s_cmp_eq_u32 s34, 1", "s_cselect_b32 s24, s24, 0x7ff00000", "s_cselect_b32 s30, s30, 0")
    for s_ in range(8, 16):
        A(f"buffer_load_dwordx4 {vr(32+4*s_)}, v3, s[4:7], s24 offen{RLD}", "s_add_u32 s24, s24, s30")
    A("s_lshl_b32 s26, s23, 4", "v_lshlrev_b32 v6, 2, v5", "v_add_u32 v6, s26, v6")
    A("v_add_u32 v7, s25, v4")
    A("v_mul_u32_u24 v8, 576, v7", "v_add_u32 v8, v8, v6")
    A("v_lshlrev_b32 v9, 1, v8", "v_lshlrev_b32 v10, 2, v8", "v_lshlrev_b32 v11, 1, v6", "v_lshlrev_b32 v12, 2, v7")
    A("buffer_load_dwordx2 v[14:15], v9, s[8:11], 0 offen")
    A("s_mov_b32 s27, 18432", "buffer_load_dwordx2 v[16:17], v9, s[8:11], s27 offen")
    A("buffer_load_dwordx2 v[18:19], v11, s[12:15], 0 offen")
    A(f"s_mov_b32 s28, {WS_G}", "buffer_load_dword v20, v12, s[4:7], s28 offen", "buffer_load_dword v21, v12, s[4:7], s28 offen offset:64")
    for r in range(8): A(f"v_mov_b32 v{100+r}, 0")
    for s_ in range(16):
        for j in range(4):
            src = 32 + 4 * s_ + j
            A(f"v_lshlrev_b32 v22, 16, v{src}", f"v_and_b32 v23, 0xffff0000, v{src}", f"v_add_f32 v{100+2*j}, v{100+2*j}, v22", f"v_add_f32 v{101+2*j}, v{101+2*j}, v23")
    for n in range(2):
        for j in range(2):
            xs, ds = 14 + 2 * n + j, 18 + j
            A(f"v_lshlrev_b32 v22, 16, v{xs}", f"v_and_b32 v23, 0xffff0000, v{xs}", f"v_lshlrev_b32 v24, 16, v{ds}", f"v_and_b32 v25, 0xffff0000, v{ds}",
              "v_mul_f32 v22, v22, v24", "v_mul_f32 v23, v23, v25", "v_cvt_pk_bf16_f32 v22, v22, v23",
              "v_and_b32 v23, 0xffff0000, v22", "v_lshlrev_b32 v22, 16, v22",
              f"v_fmac_f32 v{100+4*n+2*j}, v{20+n}, v22", f"v_fmac_f32 v{101+4*n+2*j}, v{20+n}, v23")
    A("buffer_store_dwordx4 v[100:103], v10, s[16:19], 0 offen")
    A("s_mov_b32 s27, 36864", "buffer_store_dwordx4 v[104:107], v10, s[16:19], s27 offen")
    if opt.get("ts"):
        A("s_waitcnt vmcnt(0)", "s_memrealtime s[82:83]", "s_waitcnt lgkmcnt(0)", "v_mov_b32 v30, s80", "v_mov_b32 v31, s82", "s_lshl_b32 s27, s21, 3",
          f"s_add_u32 s27, s27, {WS_END + (1 << 18)}", "v_mov_b32 v29, 0", "s_mov_b32 s6, 0x7fffffff", "buffer_store_dwordx2 v[30:31], v29, s[4:7], s27 offen")
    prog, nw = insert_waits(o)
    prog, nn = pad_hazards(prog)
    return render(prog) + "\nL_red_end:\n  s_endpgm\n"


def build(opt):
    common = build_common(opt)
    v0, i0 = build_variant(opt, 0)
    v1, i1 = build_variant(opt, 1)
    red = build_reduce(opt)
    k1, k2 = NAME + "_kernel", "reduce_kernel"
    fuse = opt.get('fuse', '1') == '1'
    s = HEADER
    if fuse:
        s += f"; @launch grid=(256,1,1) block=(256,1,1) lds={LDS_BYTES}\n"
    else:
        s += f"; @launch kernel={k1} grid=(256,1,1) block=(256,1,1) lds={LDS_BYTES}\n"
        s += f"; @launch kernel={k2} grid=(576,1,1) block=(256,1,1) lds=0\n"
    s += '.amdgcn_target "amdgcn-amd-amdhsa--gfx950"\n.text\n'
    far = "  s_cbranch_scc1 L_var1\n"
    common = common.replace("  s_cbranch_scc1 L_main_end\n", "  s_cbranch_scc0 L_go\n  s_endpgm\nL_go:\n")
    common = common.replace("  s_cbranch_scc1 L_var1\n", "  s_cbranch_scc0 L_var0\n  s_branch L_var1\nL_var0:\n")
    s += f".globl {k1}\n.p2align 8\n.type {k1},@function\n{k1}:\n" + common + v0 + "L_end0:\n.p2align 6\nL_var1:\n" + v1 + "L_end1:\n"
    if not fuse: s += f".globl {k2}\n.p2align 8\n.type {k2},@function\n{k2}:\n" + red
    if opt.get("nocpf") is None:
        s += ".set CODE_SPAN0, L_end0 - L_pc0 - 4\n.set CODE_SPAN1, L_end1 - L_pc1 - 4\n"
    s += '.section .rodata,"a"\n' + kd(k1, 512, 256, 102) + ("" if fuse else kd(k2, 128, 128, 96))
    return s, (i0, i1)


if __name__ == "__main__":
    out = sys.argv[1]
    opt = {}
    for a in sys.argv[2:]:
        k, v = a.split("=", 1); opt[k] = v
    fw.DEPAWARE = opt.get('dep', '1') == '1'; fw.VMCOST = int(opt.get('vmcost', 1)); fw.VM_GAP = int(opt.get('vmgap', 5)); fw.LDS_LAT = int(opt.get('ldslat', 8)); fw.VM_LAT = int(opt.get('vmlat', 90))
    s, info = build(opt)
    open(out, "w").write(s)
    for i in info: print(i)
    print(len(s))
```

```python
from asmlib import wrap, assemble
def kern(name, xorexpr):
    b = []; A = b.append
    A("s_cmp_ge_u32 s2, 256"); A("s_cbranch_scc1 L_end_%s" % name)
    A("s_load_dwordx2 s[4:5], s[0:1], 0"); A("s_load_dwordx2 s[6:7], s[0:1], 8")
    A("v_and_b32 v2, 63, v0"); A("v_lshrrev_b32 v1, 6, v0"); A("s_nop 0"); A("v_readfirstlane_b32 s20, v1")
    A("s_waitcnt lgkmcnt(0)")
    A("s_mov_b32 s8, s4"); A("s_mov_b32 s9, s5"); A("s_mov_b32 s10, 2359296"); A("s_mov_b32 s11, 0x20000")
    A("s_mov_b32 s12, s6"); A("s_mov_b32 s13, s7"); A("s_mov_b32 s14, 0x100000"); A("s_mov_b32 s15, 0x20000")
    A("s_lshr_b32 s25, s2, 4"); A("s_lshl_b32 s26, s25, 7"); A("s_lshl_b32 s27, s20, 5"); A("s_add_u32 s26, s26, s27"); A("s_mul_i32 s26, s26, 1152")
    A("v_lshrrev_b32 v3, 3, v2"); A("v_and_b32 v4, 7, v2")
    for x in xorexpr: A(x)
    A("v_mul_u32_u24 v3, 1152, v3"); A("v_lshlrev_b32 v4, 4, v4"); A("v_add_u32 v3, v3, v4")
    for g in range(4): A(f"v_add_u32 v{5+g}, {g*8*1152}, v3")
    A("s_mul_i32 s30, s20, 36864")
    A("s_memtime s[40:41]"); A("s_waitcnt lgkmcnt(0)")
    for ln in range(9):
        for g in range(4):
            A(f"s_add_u32 m0, s30, {(ln*4+g)*1024}"); A(f"s_add_u32 s31, s26, {128*ln}")
            A(f"buffer_load_dwordx4 v{5+g}, s[8:11], s31 offen lds")
    A("s_memtime s[42:43]"); A("s_waitcnt vmcnt(0)"); A("s_barrier")
    A("s_memtime s[44:45]"); A("s_waitcnt lgkmcnt(0)")
    A("s_sub_u32 s44, s44, s40"); A("s_sub_u32 s42, s42, s40")
    A("v_mov_b32 v8, s44"); A("v_mov_b32 v9, s42")
    A("s_lshl_b32 s3, s2, 3"); A("v_mov_b32 v10, s3")
    A("v_cmp_eq_u32 vcc, 0, v0"); A("s_and_saveexec_b64 s[50:51], vcc"); A("s_cbranch_execz L_end_%s" % name)
    A("buffer_store_dwordx2 v[8:9], v10, s[12:15], 0 offen")
    A("L_end_%s:" % name)
    return "\n".join(b)
cases = [("lin", []), ("x4", ["v_and_b32 v5, 1, v3", "v_lshlrev_b32 v5, 2, v5", "v_xor_b32 v4, v4, v5"]),
         ("x2", ["v_and_b32 v5, 1, v3", "v_lshlrev_b32 v5, 1, v5", "v_xor_b32 v4, v4, v5"]),
         ("x6", ["v_and_b32 v5, 3, v3", "v_lshlrev_b32 v5, 1, v5", "v_xor_b32 v4, v4, v5"]),
         ("x1", ["v_and_b32 v5, 1, v3", "v_xor_b32 v4, v4, v5"]),
         ("x7", ["v_xor_b32 v4, v4, v3"]),
         ("rot", ["v_add_u32 v4, v4, v3", "v_and_b32 v4, 7, v4"])]
ks = [(n, kern(n, e), 64, 64, 64, 256) for n, e in cases]
assemble(wrap(ks, 2), "mb17")
open("mb17_cfg.py", "w").write("cfg = " + repr([c[0] for c in cases]) + "\n")
```
